```python
import torch

def _softmax(x, axis=-1):
    return torch.softmax(x, dim=axis)

def _gelu(x):
    return torch.nn.functional.gelu(x, approximate='tanh')

def _silu(x):
    return torch.nn.functional.silu(x)

def _sigmoid(x):
    return torch.sigmoid(x)

def _layernorm(x, axis=-1, eps=1e-05):
    m = x.mean(dim=axis, keepdim=True)
    v = x.var(dim=axis, keepdim=True, unbiased=False)
    return (x - m) / torch.sqrt(v + eps)

def _scatter_add(tgt, idx, src, axis=0):
    return tgt.clone().index_add_(axis, idx, src)

def _segment_sum(src, seg, n):
    out = torch.zeros((n,) + src.shape[1:], dtype=src.dtype)
    return out.index_add_(0, seg, src)

def _pad(x, pw):
    flat = tuple((v for pair in reversed(pw) for v in pair))
    return torch.nn.functional.pad(x, flat)
kernel_name = 'adaLN_cond__sliding_block_cached__glu_gated_bilinear__decode'

def setup_inputs():

    _w = lambda a: (lambda t: t.to(torch.bfloat16) if t.is_floating_point() else t)(torch.as_tensor(a))

    def _A_setup():
        B, Sq, D = (2, 1, 512)
        Hq, Hkv, Sk, Dh = (32, 8, 32768, 128)
        assert Hq % Hkv == 0, (Hq, Hkv)
        return {'x': _w((lambda *s: torch.randn(*s, dtype=torch.bfloat16) * 0.05)(B, Sq, D)), 'k_cache': _w((lambda *s: torch.randn(*s, dtype=torch.bfloat16) * 3.2)(B, Hkv, Sk, Dh)), 'v_cache': _w((lambda *s: torch.randn(*s, dtype=torch.bfloat16) * 3.2)(B, Hkv, Sk, Dh)), 'wq': _w((lambda *s: torch.randn(*s, dtype=torch.bfloat16) * 3.2)(D, Hq * Dh) * D ** (-0.5)), 'wo': _w((lambda *s: torch.randn(*s, dtype=torch.bfloat16) * 3.2)(Hq * Dh, D) * (Hq * Dh) ** (-0.5))}
    _A_in = _A_setup()

    def _B_setup():
        B, S, D, F = (2, 1, 512, 1792)
        return {'x': _w((lambda *s: torch.randn(*s, dtype=torch.bfloat16) * 0.05)(B, S, D)), 'w_gate': _w((lambda *s: torch.randn(*s, dtype=torch.bfloat16) * 3.2)(D, F) * D ** (-0.5)), 'w_up': _w((lambda *s: torch.randn(*s, dtype=torch.bfloat16) * 3.2)(D, F) * D ** (-0.5)), 'w_down': _w((lambda *s: torch.randn(*s, dtype=torch.bfloat16) * 3.2)(F, D) * F ** (-0.5))}
    _B_in = _B_setup()
    return {'A_x': _A_in['x'], 'A_k_cache': _A_in['k_cache'], 'A_v_cache': _A_in['v_cache'], 'A_wq': _A_in['wq'], 'A_wo': _A_in['wo'], 'B_x': _B_in['x'], 'B_w_gate': _B_in['w_gate'], 'B_w_up': _B_in['w_up'], 'B_w_down': _B_in['w_down'], 'c': _w((lambda *s: torch.randn(*s, dtype=torch.bfloat16) * 0.2)(2, 512) * 8.0), 'w_mod': _w((lambda *s: torch.randn(*s, dtype=torch.bfloat16) * 0.2)(512, 6 * 512) * 512 ** (-0.5) * 8.0)}

def reference(A_x, A_k_cache, A_v_cache, A_wq, A_wo, B_x, B_w_gate, B_w_up, B_w_down, c, w_mod):

    def _A_ref(x, k_cache, v_cache, wq, wo):
        B, Sq, D = x.shape
        Hq, Dh = (32, 128)
        Hkv, Sk = (k_cache.shape[1], k_cache.shape[2])
        W = min(4096, max(256, Sk // 4))
        rep = Hq // Hkv
        q = (lambda x, *d: x.permute(*d))((x @ wq).reshape(B, Sq, Hq, Dh), 0, 2, 1, 3)
        k = (lambda x, n, axis: torch.repeat_interleave(x, n, dim=axis))(k_cache[:, :, Sk - W:, :], rep, axis=1)
        v = (lambda x, n, axis: torch.repeat_interleave(x, n, dim=axis))(v_cache[:, :, Sk - W:, :], rep, axis=1)
        scores = torch.einsum('bhqd,bhkd->bhqk', q, k) * Dh ** (-0.5)
        p = _softmax(scores, axis=-1)
        o = torch.einsum('bhqk,bhkd->bhqd', p, v)
        return (lambda x, *d: x.permute(*d))(o, 0, 2, 1, 3).reshape(B, Sq, Hq * Dh) @ wo

    def _B_ref(x, w_gate, w_up, w_down):
        g = torch.einsum('bsd,df->bsf', x, w_gate)
        u = torch.einsum('bsd,df->bsf', x, w_up)
        h = g * u
        return torch.einsum('bsf,fd->bsd', h, w_down)
    x = A_x
    mod = (_silu(c) @ w_mod).reshape(c.shape[0], 6, 1, -1)
    sa, ca, ga, sb, cb, gb = (mod[:, 0].clone(), mod[:, 1].clone(), mod[:, 2].clone(), mod[:, 3].clone(), mod[:, 4].clone(), mod[:, 5].clone())
    h = _layernorm(x, axis=-1) * (1 + ca) + sa
    x = x + ga * _A_ref(h, A_k_cache, A_v_cache, A_wq, A_wo)
    h = _layernorm(x, axis=-1) * (1 + cb) + sb
    x = x + gb * _B_ref(h, B_w_gate, B_w_up, B_w_down)
    return x
```

```python
import re

TRANS = ("v_exp_f32", "v_log_f32", "v_rcp_f32", "v_rsq_f32", "v_sqrt_f32", "v_sin_f32", "v_cos_f32")

def expand(op):
    op = op.strip()
    op = op.lstrip("-")
    m = re.fullmatch(r"abs\((.*)\)", op)
    if m: op = m.group(1)
    m = re.fullmatch(r"\|(.*)\|", op)
    if m: op = m.group(1)
    m = re.fullmatch(r"([vsa])\[(\d+):(\d+)\]", op)
    if m:
        return [f"{m.group(1)}{i}" for i in range(int(m.group(2)), int(m.group(3)) + 1)]
    m = re.fullmatch(r"([vsa])(\d+)", op)
    if m: return [op]
    if op in ("vcc", "exec", "m0", "scc"): return [op]
    if op in ("vcc_lo", "vcc_hi"): return ["vcc"]
    if op in ("exec_lo", "exec_hi"): return ["exec"]
    return []

class Asm:
    def __init__(self):
        self.lines = []
        self.hist = []
        self.uid = 0
        self.nops = 0
    def label(self, name):
        self.lines.append(f"{name}:")
    def newlabel(self, base="L"):
        self.uid += 1
        return f"{base}_{self.uid}"
    def comment(self, c):
        self.lines.append(f"    ; {c}")
    def raw(self, s):
        self.lines.append(s)
    def _classify(self, text):
        t = text.split(";")[0].strip()
        parts = t.split(None, 1)
        mn = parts[0]
        ops = []
        if len(parts) > 1:
            ops = [o.strip() for o in re.split(r",(?![^\[]*\])", parts[1])]
            if ops:
                last = ops[-1].split()
                ops[-1] = last[0] if last else ""
        return mn, ops, t
    def emit(self, text):
        mn, ops, t = self._classify(text)
        isv = mn.startswith("v_")
        is_mfma = mn.startswith("v_mfma")
        is_valu = isv and not is_mfma
        is_vmem = mn.startswith(("buffer_", "global_", "flat_"))
        is_ds = mn.startswith("ds_")
        is_salu = mn.startswith("s_")
        dpp = ("_dpp" in mn) or (" quad_perm" in t) or (" row_" in t)
        writes, reads = [], []
        if is_mfma:
            writes = expand(ops[0]); reads = expand(ops[1]) + expand(ops[2]); creads = expand(ops[3])
        elif is_valu:
            if mn.startswith("v_cmp"):
                writes = expand(ops[0]); reads = sum((expand(o) for o in ops[1:]), [])
            elif mn.startswith(("v_readfirstlane", "v_readlane")):
                writes = expand(ops[0]); reads = sum((expand(o) for o in ops[1:]), [])
            elif mn.startswith(("v_permlane16_swap", "v_permlane32_swap")):
                writes = expand(ops[0]) + expand(ops[1]); reads = list(writes)
            elif mn.startswith(("v_add_co", "v_addc_co", "v_sub_co")):
                writes = expand(ops[0]) + expand(ops[1]); reads = sum((expand(o) for o in ops[2:]), [])
            else:
                writes = expand(ops[0]); reads = sum((expand(o) for o in ops[1:]), [])
                if mn.startswith(("v_fmac", "v_dot2c", "v_writelane")) or dpp:
                    reads += expand(ops[0])
                if mn.startswith("v_cndmask_b32") and len(ops) == 3:
                    reads += ["vcc"]
        elif is_vmem:
            lds = " lds" in (" " + t)
            if "load" in mn and not lds:
                writes = expand(ops[0]); reads = sum((expand(o) for o in ops[1:]), [])
            else:
                reads = sum((expand(o) for o in ops), [])
            if lds: reads += ["m0"]
        elif is_ds:
            if mn.startswith(("ds_read", "ds_bpermute", "ds_permute", "ds_swizzle")) or "_rtn" in mn:
                writes = expand(ops[0]); reads = sum((expand(o) for o in ops[1:]), [])
            else:
                reads = sum((expand(o) for o in ops), [])
        elif is_salu:
            if mn.startswith(("s_cmp", "s_cbranch", "s_branch", "s_waitcnt", "s_nop", "s_barrier", "s_sleep", "s_endpgm", "s_setprio")):
                reads = sum((expand(o) for o in ops), [])
            else:
                writes = expand(ops[0]) if ops else []
                reads = sum((expand(o) for o in ops[1:]), [])
                if "saveexec" in mn: writes += ["exec"]
        need = 0
        n = len(self.hist)
        for d in range(1, min(n, 20) + 1):
            h = self.hist[n - d]
            dist = sum(x["states"] for x in self.hist[n - d + 1:n])
            hw = set(h["writes"])
            req = 0
            if h["valu"]:
                vw = {r for r in hw if r[0] == "v"}
                sw = {r for r in hw if r[0] == "s" or r == "vcc"}
                if is_mfma and vw & set(reads + creads): req = max(req, 2)
                if dpp and vw & set(reads): req = max(req, 2)
                if mn.startswith(("v_permlane16_swap", "v_permlane32_swap")) and vw & set(reads): req = max(req, 2)
                if mn.startswith(("v_readfirstlane", "v_readlane")) and vw & set(reads): req = max(req, 1)
                if h["trans"] and is_valu and vw & set(reads): req = max(req, 1)
                if is_valu and sw & set(reads): req = max(req, 2)
                if is_vmem and sw & set(reads): req = max(req, 5)
                if mn.startswith(("v_readlane", "v_writelane")) and sw & set(reads): req = max(req, 4)
                if is_salu and sw & set(reads) and not mn.startswith("s_cbranch"): req = max(req, 1)
            if h["mfma"]:
                dw = hw
                passes = h["passes"]
                big = {2: 5, 4: 8, 8: 12, 16: 20}[passes]
                if is_mfma:
                    if dw & set(reads): req = max(req, big)
                    if dw & set(creads):
                        if set(creads) == dw: req = max(req, 2 if passes == 2 else 0)
                        else: req = max(req, {2: 4, 4: 6, 8: 10, 16: 18}[passes])
                elif (is_valu or is_vmem or is_ds) and (dw & set(reads + writes)): req = max(req, big)
                if is_valu and set(h["creads"]) & set(writes): req = max(req, {2: 1, 4: 3, 8: 7, 16: 15}[passes])
            if h["widestore"] and is_valu and set(h["reads"]) & set(writes): req = max(req, 2)
            if h["widestore"] and (is_ds or is_vmem) and set(h["reads"]) & set(w for w in writes): req = max(req, 1)
            if h["salu"] and "m0" in hw and "m0" in reads and is_vmem: req = max(req, 1)
            if req - dist > need: need = req - dist
        while need > 0:
            k = min(need, 16)
            self.lines.append(f"    s_nop {k-1}")
            self.hist.append(dict(valu=False, mfma=False, trans=False, salu=True, widestore=False, writes=[], reads=[], creads=[], passes=0, states=k))
            self.nops += 1
            need -= k
        st = 1
        if mn == "s_nop": st = int(ops[0]) + 1
        passes = 0
        if is_mfma:
            passes = 8 if "32x32" in mn else 4
        self.hist.append(dict(valu=is_valu, mfma=is_mfma, trans=mn.replace("_e32", "").replace("_e64", "") in TRANS, salu=is_salu,
                              widestore=(is_vmem and "store" in mn and ("x4" in mn or "x3" in mn)), writes=writes, reads=reads,
                              creads=(creads if is_mfma else []), passes=passes, states=st))
        self.lines.append("    " + text)
    def __call__(self, text):
        for l in text.strip().split("\n"):
            l = l.strip()
            if not l or l.startswith(";"): continue
            if l.endswith(":"): self.label(l[:-1])
            else: self.emit(l)
    def text(self):
        return "\n".join(self.lines) + "\n"
```

```python
import sys
from asmlib import Asm

NAME = "adaLN_cond__sliding_block_cached__glu_gated_bilinear__decode"

class Cfg:
    D = 22
    stamps = False
    dump = False
    local = False
    spin = 1 << 20

F_LC, F_1, F_2, F_3, F_4, F_EC, F_KC, F_MB1, F_MB2, F_LATE = 0, 4, 8, 12, 16, 20, 24, 28, 32, 36
L_FAC = 64; L_MX = 128; L_LS = 192; L_ZERO = 256
L_ACT1 = 768; L_ACT2 = 1344; L_ACT4 = 1920; L_ACT6 = 2496; L_ACT7 = 3072
L_Q = 3648
L_P = 4736
L_K = 8192; L_V = L_K + 65536; L_TOTAL = L_V + 65536
L_MODW = L_V + 32768; L_WQW = L_V + 49152
L_WO = L_K; L_G = L_K + 16384; L_U = L_K + 24576; L_DN = L_K + 32768
APITCH = 272; PPITCH = 528

W_EPOCH = 0
W_MOD = 0x1000
W_Q = 0x40000
W_ST = 0x80000
W_O = 0x90000
W_A4 = 0x110000
W_X1P = 0x150000
W_X1S = 0x158000
W_GU = 0x160000
W_DN = 0x1A0000
W_STAMP = 0x200000
W_DBG = 0x280000
W_USED = 0x300000

LOG2E = 0x3fb8aa3b
SCALE = 0x3db504f3
EPS = 0x3727c5ac
INV512 = 0x3b000000

S_WG, S_W, S_X, S_LOC, S_B, S_SPL, S_KQ, S_CB, S_TAG, S_SPIN = "s2", "s3", "s4", "s5", "s6", "s7", "s8", "s9", "s10", "s11"
WSRD = "s[12:15]"
S_EP = "s89"

def gen(cfg):
    a = Asm()
    D = cfg.D
    SC1 = " sc1"

    def srd(dst, plo, size):
        a(f"s_mov_b32 s{dst}, s{plo}")
        a(f"s_and_b32 s{dst+1}, s{plo+1}, 0xffff")
        a(f"s_mov_b32 s{dst+2}, {size}")
        a(f"s_mov_b32 s{dst+3}, 0x20000")

    def stamp(k):
        if cfg.stamps:
            a(f"s_memrealtime s[{64+2*k}:{65+2*k}]")

    def dump_stamps(n):
        if not cfg.stamps: return
        a("s_waitcnt lgkmcnt(0)")
        a(f"s_mul_i32 s90, {S_WG}, 9")
        a(f"s_add_u32 s90, s90, {S_W}")
        a("s_lshl_b32 s90, s90, 7")
        a(f"s_add_u32 s90, s90, {W_STAMP}")
        a("s_mov_b64 exec, 1")
        a("v_mov_b32 v1, 0")
        for k in range(n):
            a(f"v_mov_b32 v2, s{64+2*k}")
            a(f"v_mov_b32 v3, s{65+2*k}")
            a(f"buffer_store_dwordx2 v[2:3], v1, {WSRD}, s90 offen offset:{8*k}")
            a("s_nop 1")
        a("s_waitcnt vmcnt(0)")

    def timeout():
        a(f"s_sub_u32 {S_SPIN}, {S_SPIN}, 1")
        a("s_cbranch_scc1 L_abort")

    def spin_lds(off, n, vz, vt, n_is_sgpr=False, sleep=True):
        L = a.newlabel("Lsp"); E = a.newlabel("Lspe")
        a.label(L)
        a(f"ds_read_b32 {vt}, {vz} offset:{off}")
        a("s_waitcnt lgkmcnt(0)")
        a(f"v_readfirstlane_b32 s91, {vt}")
        a(f"s_cmp_ge_i32 s91, {n}")
        a(f"s_cbranch_scc1 {E}")
        timeout()
        if sleep: a("s_sleep 1")
        a(f"s_branch {L}")
        a.label(E)

    def arrive(off, vz, vone):
        a("s_mov_b64 s[92:93], exec")
        a("s_mov_b64 exec, 1")
        a(f"ds_add_u32 {vz}, {vone} offset:{off}")
        a("s_mov_b64 exec, s[92:93]")

    def poll(loads, tags, vacc, sleep=1):
        L = a.newlabel("Lpl"); E = a.newlabel("Lple")
        a.label(L)
        for ld in loads: a(ld)
        a("s_waitcnt vmcnt(0)")
        a(f"v_xor_b32 {vacc}, {S_TAG}, {tags[0]}")
        for t in tags[1:]:
            a(f"v_bitop3_b32 {vacc}, {vacc}, {t}, {S_TAG} bitop3:0xf6")
        a(f"v_cmp_ne_u32 vcc, 0, {vacc}")
        a(f"s_cbranch_vccz {E}")
        timeout()
        if sleep: a(f"s_sleep {sleep}")
        a(f"s_branch {L}")
        a.label(E)

    def bf16r2(d0, d1, s0, s1, tmp):
        a(f"v_cvt_pk_bf16_f32 {tmp}, {s0}, {s1}")
        a(f"v_lshlrev_b32 {d0}, 16, {tmp}")
        a(f"v_and_b32 {d1}, 0xffff0000, {tmp}")

    def bf16r1(d, s):
        a(f"v_cvt_pk_bf16_f32 {d}, {s}, {s}")
        a(f"v_lshlrev_b32 {d}, 16, {d}")

    def allreduce(regs, op, tmps, steps):
        dpp = {"x1": "quad_perm:[1,0,3,2]", "x2": "quad_perm:[2,3,0,1]", "x4": "row_half_mirror", "x8": "row_mirror", "r8": "row_ror:8"}
        for s in steps:
            if s in dpp:
                for r in regs:
                    a(f"{op}_dpp {r}, {r}, {r} {dpp[s]} row_mask:0xf bank_mask:0xf")
            else:
                ins = "v_permlane16_swap_b32" if s == "x16" else "v_permlane32_swap_b32"
                for r, t in zip(regs, tmps): a(f"v_mov_b32 {t}, {r}")
                for r, t in zip(regs, tmps): a(f"{ins} {r}, {t}")
                for r, t in zip(regs, tmps): a(f"{op} {r}, {r}, {t}")

    FULL = ["x1", "x2", "x4", "x8", "x16", "x32"]

    a.label(f"{NAME}_kernel")
    a(f"s_cmp_ge_u32 {S_WG}, 256")
    a("s_cbranch_scc1 L_end")
    a("s_load_dwordx16 s[16:31], s[0:1], 0")
    a("s_load_dwordx8 s[32:39], s[0:1], 64")
    a("s_load_dwordx4 s[40:43], s[0:1], 96")
    stamp(0)
    a("v_lshrrev_b32 v1, 6, v0")
    a("v_and_b32 v0, 63, v0")
    a(f"v_readfirstlane_b32 {S_W}, v1")
    a(f"s_and_b32 {S_X}, {S_WG}, 7")
    a(f"s_lshr_b32 {S_LOC}, {S_WG}, 3")
    a(f"s_lshr_b32 {S_B}, {S_LOC}, 4")
    a(f"s_and_b32 {S_SPL}, {S_LOC}, 15")
    a(f"s_lshr_b32 {S_KQ}, {S_LOC}, 3")
    a(f"s_and_b32 {S_CB}, {S_LOC}, 7")
    a(f"s_mov_b32 {S_SPIN}, {cfg.spin}")
    a("s_waitcnt lgkmcnt(0)")
    srd(12, 42, W_USED)
    a(f"s_cmp_eq_u32 {S_W}, 8")
    a("s_cbranch_scc1 L_loader")
    a("v_mov_b32 v2, 0")
    a(f"buffer_load_dword v3, v2, {WSRD}, 0 offen sc1")
    a(f"s_cmp_ge_u32 {S_W}, 4")
    a("s_cbranch_scc1 L_gwave")

    def get_tag():
        a(f"v_readfirstlane_b32 {S_EP}, v3")
        a(f"s_add_u32 {S_EP}, {S_EP}, 1")
        a(f"s_mul_i32 {S_TAG}, {S_EP}, 0x9E3779B1")

    a.label("L_mwave")
    a("v_lshrrev_b32 v1, 4, v0")
    a("v_and_b32 v2, 15, v0")
    a("v_mov_b32 v4, 1")
    a("v_bfe_u32 v6, v2, 2, 1")
    a(f"v_mul_u32_u24 v6, {APITCH}, v6")
    a("v_lshl_add_u32 v6, v1, 4, v6")
    a("v_bfe_u32 v8, v0, 2, 2")
    a("v_and_b32 v9, 3, v0")
    a("v_lshl_add_u32 v10, v1, 3, v8")
    a("v_lshlrev_b32 v7, 7, v10")
    a("v_lshrrev_b32 v11, 1, v8")
    a("v_and_b32 v12, 1, v1")
    a("v_lshl_or_b32 v11, v12, 1, v11")
    a("v_lshrrev_b32 v13, 1, v9")
    a(f"s_lshl_b32 s90, {S_W}, 1")
    a("v_add_u32 v13, s90, v13")
    a("v_lshlrev_b32 v11, 1, v11")
    a("v_xor_b32 v13, v13, v11")
    a("v_lshl_add_u32 v7, v13, 4, v7")
    a("v_and_b32 v14, 1, v9")
    a("v_lshl_add_u32 v7, v14, 3, v7")
    a("v_bfe_u32 v8, v0, 4, 1")
    a("v_lshlrev_b32 v9, 3, v2")
    a("s_waitcnt vmcnt(0)")
    get_tag()
    a("v_mov_b32 v3, 0")
    a("s_barrier")
    stamp(1)

    def loadB(vaddr, nk, kstride, hoff, base=16):
        for t in range(nk):
            a(f"ds_read_b64_tr_b16 v[{base+4*t}:{base+4*t+1}], {vaddr} offset:{t*kstride}")
            a(f"ds_read_b64_tr_b16 v[{base+4*t+2}:{base+4*t+3}], {vaddr} offset:{t*kstride+hoff}")

    def gemv(act_off, nk, bbase=16):
        for t in range(nk):
            a(f"ds_read_b128 v[{32+4*t}:{35+4*t}], v6 offset:{act_off+64*t}")
        a("s_waitcnt lgkmcnt(0)")
        for t in range(nk):
            c = "0" if t == 0 else "v[48:51]"
            a(f"v_mfma_f32_16x16x32_bf16 v[48:51], v[{32+4*t}:{35+4*t}], v[{bbase+4*t}:{bbase+4*t+3}], {c}")

    def publish(shift, soff, flag=SC1):
        a(f"v_lshl_add_u32 v54, v8, {shift}, v9")
        a(f"v_mov_b32 v53, {S_TAG}")
        a("v_mov_b32 v52, v48")
        a("s_mov_b32 exec_hi, 0")
        a(f"buffer_store_dwordx2 v[52:53], v54, {WSRD}, {soff} offen{flag}")
        a("s_mov_b32 exec_hi, -1")

    a(f"s_cmp_ge_u32 {S_WG}, 192")
    a("s_cbranch_scc1 L_m_s2")
    spin_lds(F_1, 2, "v3", "v5")
    spin_lds(F_LC, 16, "v3", "v5")
    a(f"v_add_u32 v10, {L_MODW}, v7")
    loadB("v10", 4, 4096, 512)
    gemv(L_ACT1, 4)
    a(f"s_lshr_b32 s90, {S_WG}, 5")
    a("s_lshl_b32 s90, s90, 15")
    a(f"s_bfe_u32 s94, {S_WG}, 0x20003")
    a("s_lshl_b32 s94, s94, 12")
    a("s_add_u32 s90, s90, s94")
    a(f"s_and_b32 s94, {S_WG}, 3")
    a("s_lshl_b32 s94, s94, 10")
    a("s_add_u32 s90, s90, s94")
    a(f"s_bfe_u32 s94, {S_WG}, 0x10002")
    a("s_lshl_b32 s94, s94, 9")
    a("s_add_u32 s90, s90, s94")
    a(f"s_lshl_b32 s94, {S_W}, 7")
    a("s_add_u32 s90, s90, s94")
    a(f"s_add_u32 s90, s90, {W_MOD}")
    publish(14, "s90")
    stamp(2)
    a.label("L_m_s2")
    spin_lds(F_LC, 32, "v3", "v5")
    a(f"v_add_u32 v10, {L_WQW}, v7")
    loadB("v10", 4, 4096, 512)
    a("s_waitcnt lgkmcnt(0)")
    arrive(F_EC, "v3", "v4")
    spin_lds(F_2, 2, "v3", "v5")
    gemv(L_ACT2, 4)
    a(f"s_lshl_b32 s90, {S_X}, 15")
    a(f"s_lshr_b32 s94, {S_CB}, 1")
    a("s_lshl_b32 s94, s94, 12")
    a("s_add_u32 s90, s90, s94")
    a(f"s_lshl_b32 s94, {S_KQ}, 10")
    a("s_add_u32 s90, s90, s94")
    a(f"s_and_b32 s94, {S_CB}, 1")
    a("s_lshl_b32 s94, s94, 9")
    a("s_add_u32 s90, s90, s94")
    a(f"s_lshl_b32 s94, {S_W}, 7")
    a("s_add_u32 s90, s90, s94")
    a(f"s_add_u32 s90, s90, {W_Q}")
    publish(14, "s90")
    stamp(3)
    a("v_xor_b32 v10, v1, v2")
    a("v_lshlrev_b32 v10, 4, v10")
    a("v_lshl_add_u32 v10, v2, 8, v10")
    a(f"s_lshl_b32 s90, {S_W}, 14")
    a(f"s_add_u32 s90, s90, {L_K}")
    a("v_add_u32 v56, s90, v10")
    a("v_xor_b32 v57, 64, v56")
    a("v_xor_b32 v58, 0x80, v56")
    a("v_xor_b32 v59, 0xc0, v56")
    a("v_and_b32 v10, 3, v2")
    a(f"v_mul_u32_u24 v10, {APITCH}, v10")
    a("v_lshl_add_u32 v10, v1, 4, v10")
    a(f"v_add_u32 v10, {L_Q}, v10")
    a("v_lshlrev_b32 v11, 4, v1")
    a(f"v_add_u32 v11, {L_ZERO}, v11")
    a("v_lshrrev_b32 v12, 2, v2")
    for tt in range(4):
        a(f"v_cmp_eq_u32 vcc, {tt}, v12")
        a(f"v_cndmask_b32 v{60+tt}, v11, v10, vcc")
    spin_lds(F_3, 2, "v3", "v5")
    spin_lds(F_LC, 96, "v3", "v5")
    stamp(4)
    def qk_reads(tt, base):
        for t in range(4):
            a(f"ds_read_b128 v[{base+4*t}:{base+4*t+3}], v{60+tt} offset:{64*t}")
        for t in range(4):
            a(f"ds_read_b128 v[{base+16+4*t}:{base+16+4*t+3}], v{56+t} offset:{4096*tt}")
    bases = [16, 64 + 4, 16, 64 + 4]
    qk_reads(0, bases[0])
    for tt in range(4):
        if tt < 3:
            qk_reads(tt + 1, bases[tt + 1])
            a("s_waitcnt lgkmcnt(8)")
        else:
            a("s_waitcnt lgkmcnt(0)")
        b = bases[tt]
        for t in range(4):
            c = "0" if (tt == 0 and t == 0) else "v[48:51]"
            a(f"v_mfma_f32_16x16x32_bf16 v[48:51], v[{b+4*t}:{b+4*t+3}], v[{b+16+4*t}:{b+16+4*t+3}], {c}")
    arrive(F_KC, "v3", "v4")
    a(f"s_mov_b32 s94, {SCALE:#x}")
    bf16r2("v16", "v17", "v48", "v49", "v20")
    bf16r2("v18", "v19", "v50", "v51", "v21")
    for r in range(4): a(f"v_mul_f32 v{16+r}, s94, v{16+r}")
    bf16r2("v16", "v17", "v16", "v17", "v20")
    bf16r2("v18", "v19", "v18", "v19", "v21")
    for r in range(4): a(f"v_mov_b32 v{24+r}, v{16+r}")
    allreduce(["v24", "v25", "v26", "v27"], "v_max_f32", ["v28", "v29", "v30", "v31"], FULL)
    a(f"s_lshl_b32 s90, {S_W}, 4")
    a("v_mov_b32 v10, s90")
    a("s_mov_b64 s[92:93], exec")
    a("s_mov_b64 exec, 1")
    a(f"ds_write_b128 v10, v[24:27] offset:{L_MX}")
    a(f"ds_add_u32 v3, v4 offset:{F_MB1}")
    a("s_mov_b64 exec, s[92:93]")
    spin_lds(F_MB1, 4, "v3", "v5", sleep=False)
    for w in range(4):
        a(f"ds_read_b128 v[{32+4*w}:{35+4*w}], v3 offset:{L_MX+16*w}")
    a("s_waitcnt lgkmcnt(0)")
    for r in range(4):
        a(f"v_max_f32 v{24+r}, v{32+r}, v{36+r}")
        a(f"v_max_f32 v{28+r}, v{40+r}, v{44+r}")
    for r in range(4):
        a(f"v_max_f32 v{24+r}, v{24+r}, v{28+r}")
    a(f"s_mov_b32 s94, {LOG2E:#x}")
    for r in range(4): a(f"v_sub_f32 v{16+r}, v{16+r}, v{24+r}")
    for r in range(4): a(f"v_mul_f32 v{16+r}, s94, v{16+r}")
    for r in range(4): a(f"v_exp_f32 v{16+r}, v{16+r}")
    a("v_cvt_pk_bf16_f32 v20, v16, v17")
    a("v_cvt_pk_bf16_f32 v21, v18, v19")
    a(f"s_lshl_b32 s90, {S_W}, 7")
    a(f"s_add_u32 s90, s90, {L_P}")
    a("v_lshl_add_u32 v10, v0, 1, s90")
    a("ds_write_b16 v10, v20")
    a(f"ds_write_b16_d16_hi v10, v20 offset:{PPITCH}")
    a(f"ds_write_b16 v10, v21 offset:{2*PPITCH}")
    a(f"ds_write_b16_d16_hi v10, v21 offset:{3*PPITCH}")
    allreduce(["v16", "v17", "v18", "v19"], "v_add_f32", ["v28", "v29", "v30", "v31"], FULL)
    a(f"s_lshl_b32 s90, {S_W}, 4")
    a("v_mov_b32 v10, s90")
    a("s_mov_b64 s[92:93], exec")
    a("s_mov_b64 exec, 1")
    a(f"ds_write_b128 v10, v[16:19] offset:{L_LS}")
    a(f"ds_add_u32 v3, v4 offset:{F_MB2}")
    a("s_mov_b64 exec, s[92:93]")
    spin_lds(F_MB2, 4, "v3", "v5", sleep=False)
    a(f"s_cmp_lg_u32 {S_W}, 0")
    a("s_cbranch_scc1 L_m_pv")
    a("v_lshlrev_b32 v10, 2, v0")
    a("s_mov_b64 exec, 15")
    for w in range(4):
        a(f"ds_read_b32 v{16+w}, v10 offset:{L_LS+16*w}")
        a(f"ds_read_b32 v{20+w}, v10 offset:{L_MX+16*w}")
    a("s_waitcnt lgkmcnt(0)")
    a("v_add_f32 v16, v16, v17")
    a("v_add_f32 v18, v18, v19")
    a("v_max_f32 v20, v20, v21")
    a("v_max_f32 v22, v22, v23")
    a("v_add_f32 v26, v16, v18")
    a("v_max_f32 v24, v20, v22")
    a(f"v_mov_b32 v25, {S_TAG}")
    a(f"v_mov_b32 v27, {S_TAG}")
    a(f"s_lshl_b32 s90, {S_X}, 1")
    a(f"s_add_u32 s90, s90, {S_B}")
    a("s_lshl_b32 s90, s90, 10")
    a(f"s_lshl_b32 s94, {S_SPL}, 4")
    a("s_add_u32 s90, s90, s94")
    a(f"s_add_u32 s90, s90, {W_ST}")
    a("v_lshlrev_b32 v10, 8, v0")
    a(f"buffer_store_dwordx4 v[24:27], v10, {WSRD}, s90 offen{SC1}")
    a("s_mov_b64 exec, -1")
    a.label("L_m_pv")
    stamp(5)
    a("v_lshrrev_b32 v10, 2, v2")
    a(f"v_mul_u32_u24 v10, {PPITCH}, v10")
    a("v_lshl_add_u32 v10, v1, 4, v10")
    a(f"v_add_u32 v60, {L_P}, v10")
    a("v_bfe_u32 v10, v0, 2, 2")
    a("v_and_b32 v11, 3, v0")
    a("v_lshl_add_u32 v12, v1, 3, v10")
    a("v_lshlrev_b32 v12, 8, v12")
    a("v_and_b32 v13, 1, v1")
    a("v_lshl_or_b32 v13, v13, 2, v10")
    a("v_lshlrev_b32 v13, 1, v13")
    a("v_lshrrev_b32 v14, 1, v11")
    a(f"s_lshl_b32 s90, {S_W}, 2")
    a("v_add_u32 v14, s90, v14")
    a("v_xor_b32 v15, v14, v13")
    a("v_lshl_add_u32 v15, v15, 4, v12")
    a("v_and_b32 v11, 1, v11")
    a("v_lshl_add_u32 v15, v11, 3, v15")
    a(f"v_add_u32 v61, {L_V}, v15")
    a("v_add_u32 v14, 2, v14")
    a("v_xor_b32 v15, v14, v13")
    a("v_lshl_add_u32 v15, v15, 4, v12")
    a("v_lshl_add_u32 v15, v11, 3, v15")
    a(f"v_add_u32 v62, {L_V}, v15")
    for r in range(8): a(f"v_mov_b32 v{48+r}, 0")
    a("s_mov_b32 s95, 104")
    a("s_mov_b32 s96, -1000")
    Lpv = "L_pv_loop"
    a.label(Lpv)
    a("s_cmp_ge_i32 s96, s95")
    a("s_cbranch_scc1 L_pv_go")
    a.label("L_pv_spin")
    a(f"ds_read_b32 v5, v3 offset:{F_LC}")
    a("s_waitcnt lgkmcnt(0)")
    a("v_readfirstlane_b32 s96, v5")
    a("s_cmp_ge_i32 s96, s95")
    a("s_cbranch_scc1 L_pv_go")
    timeout()
    a("s_branch L_pv_spin")
    a.label("L_pv_go")
    a("ds_read_b128 v[16:19], v60")
    a("ds_read_b64_tr_b16 v[20:21], v61")
    a("ds_read_b64_tr_b16 v[22:23], v61 offset:1024")
    a("ds_read_b64_tr_b16 v[24:25], v62")
    a("ds_read_b64_tr_b16 v[26:27], v62 offset:1024")
    a("v_add_u32 v60, 64, v60")
    a("v_add_u32 v61, 0x2000, v61")
    a("v_add_u32 v62, 0x2000, v62")
    a("s_add_u32 s95, s95, 8")
    a("s_waitcnt lgkmcnt(0)")
    a("v_mfma_f32_16x16x32_bf16 v[48:51], v[16:19], v[20:23], v[48:51]")
    a("v_mfma_f32_16x16x32_bf16 v[52:55], v[16:19], v[24:27], v[52:55]")
    a("s_cmp_le_i32 s95, 160")
    a(f"s_cbranch_scc1 {Lpv}")
    stamp(6)
    spin_lds(F_4, 1, "v3", "v5", sleep=False)
    a("v_lshlrev_b32 v10, 2, v1")
    a(f"ds_read_b32 v16, v10 offset:{L_FAC}")
    a(f"s_lshl_b32 s90, {S_X}, 16")
    a(f"s_lshl_b32 s94, {S_B}, 13")
    a("s_add_u32 s90, s90, s94")
    a(f"s_lshl_b32 s94, {S_SPL}, 9")
    a("s_add_u32 s90, s90, s94")
    a(f"s_lshl_b32 s94, {S_W}, 7")
    a("s_add_u32 s90, s90, s94")
    a(f"s_add_u32 s90, s90, {W_O}")
    a("v_lshl_add_u32 v10, v1, 14, v9")
    a("s_waitcnt lgkmcnt(0)")
    a("v_mul_f32 v17, v48, v16")
    a("v_mul_f32 v18, v52, v16")
    a("v_cvt_pk_bf16_f32 v20, v17, v18")
    a(f"v_mov_b32 v21, {S_TAG}")
    a(f"buffer_store_dwordx2 v[20:21], v10, {WSRD}, s90 offen{SC1}")
    stamp(7)
    spin_lds(F_LC, 176, "v3", "v5")
    a(f"v_add_u32 v10, {L_WO}, v7")
    loadB("v10", 4, 4096, 512)
    a("s_waitcnt lgkmcnt(0)")
    a("s_barrier")
    gemv(L_ACT4, 4)
    def soff_a4(base):
        a(f"s_lshl_b32 s90, {S_CB}, 2")
        a(f"s_add_u32 s90, s90, {S_W}")
        a("s_lshl_b32 s90, s90, 13")
        a(f"s_lshl_b32 s94, {S_X}, 2")
        a(f"s_add_u32 s94, s94, {S_KQ}")
        a("s_lshl_b32 s94, s94, 7")
        a("s_add_u32 s90, s90, s94")
        a(f"s_add_u32 s90, s90, {base}")
    soff_a4(W_A4)
    publish(12, "s90")
    stamp(8)
    spin_lds(F_LATE, 1, "v3", "v5")
    a(f"v_add_u32 v10, {L_DN}, v7")
    loadB("v10", 2, 4096, 512, base=64)
    a("v_bfe_u32 v11, v0, 2, 2")
    a("v_lshl_add_u32 v11, v1, 3, v11")
    a("v_lshlrev_b32 v11, 6, v11")
    a("v_bfe_u32 v12, v0, 1, 1")
    a(f"s_and_b32 s90, {S_W}, 1")
    a("s_lshl_b32 s90, s90, 1")
    a("v_add_u32 v12, s90, v12")
    a("v_and_b32 v13, 1, v1")
    a("v_lshlrev_b32 v13, 1, v13")
    a("v_xor_b32 v12, v12, v13")
    a("v_lshl_add_u32 v11, v12, 4, v11")
    a("v_and_b32 v13, 1, v0")
    a("v_lshl_add_u32 v11, v13, 3, v11")
    a(f"s_lshr_b32 s90, {S_W}, 1")
    a("s_lshl_b32 s90, s90, 13")
    a(f"s_add_u32 s90, s90, {L_G}")
    a("v_add_u32 v11, s90, v11")
    loadB("v11", 4, 2048, 256)
    a("s_waitcnt lgkmcnt(0)")
    a("s_barrier")
    a(f"s_cmp_eq_u32 {S_CB}, 7")
    a("s_cbranch_scc1 L_m_s7")
    gemv(L_ACT6, 4)
    a(f"s_lshl_b32 s90, {S_X}, 15")
    a(f"s_lshr_b32 s94, {S_W}, 1")
    a("s_lshl_b32 s94, s94, 14")
    a("s_add_u32 s90, s90, s94")
    a(f"s_lshl_b32 s94, {S_KQ}, 11")
    a("s_add_u32 s90, s90, s94")
    a(f"s_lshl_b32 s94, {S_CB}, 8")
    a("s_add_u32 s90, s90, s94")
    a(f"s_and_b32 s94, {S_W}, 1")
    a("s_lshl_b32 s94, s94, 7")
    a("s_add_u32 s90, s90, s94")
    a(f"s_add_u32 s90, s90, {W_GU}")
    publish(13, "s90")
    a.label("L_m_s7")
    stamp(9)
    a("s_barrier")
    gemv(L_ACT7, 2, bbase=64)
    soff_a4(W_DN)
    publish(12, "s90")
    stamp(10)
    dump_stamps(11)
    a("s_endpgm")

    a.label("L_gwave")
    a(f"s_cmp_eq_u32 {S_W}, 4")
    a("s_cbranch_scc1 L_slice")
    a(f"s_cmp_eq_u32 {S_W}, 7")
    a("s_cbranch_scc1 L_aux")

    SB = "s97"
    a(f"s_sub_u32 {SB}, {S_W}, 5")
    srd(44, 16, 2048)
    srd(48, 34, 2048)
    a("v_lshlrev_b32 v1, 4, v0")
    a("v_lshlrev_b32 v2, 2, v0")
    a(f"s_lshl_b32 s90, {SB}, 10")
    a("buffer_load_dwordx4 v[4:7], v1, s[44:47], s90 offen")
    a(f"s_lshl_b32 s94, {S_KQ}, 8")
    a("s_add_u32 s94, s94, s90")
    a("buffer_load_dword v8, v2, s[44:47], s94 offen")
    a(f"s_and_b32 s94, {S_WG}, 3")
    a("s_lshl_b32 s94, s94, 8")
    a("s_add_u32 s94, s94, s90")
    a("buffer_load_dword v9, v2, s[48:51], s94 offen")
    a("v_mov_b32 v10, 1")
    a("s_waitcnt vmcnt(0)")
    get_tag()
    a("v_mov_b32 v3, 0")
    a("s_barrier")
    stamp(1)
    a("v_lshlrev_b32 v12, 16, v9")
    a("v_and_b32 v13, 0xffff0000, v9")
    a(f"s_mov_b32 s94, {LOG2E:#x}")
    for r in (12, 13):
        a(f"v_mul_f32 v{r+2}, s94, v{r}")
    for r in (12, 13):
        a(f"v_exp_f32 v{r+2}, -v{r+2}")
    for r in (12, 13):
        a(f"v_add_f32 v{r+2}, 1.0, v{r+2}")
    for r in (12, 13):
        a(f"v_rcp_f32 v{r+2}, v{r+2}")
    for r in (12, 13):
        a(f"v_mul_f32 v{r}, v{r}, v{r+2}")
    a("v_cvt_pk_bf16_f32 v12, v12, v13")
    a(f"s_mul_i32 s98, {SB}, {APITCH}")
    a("v_add_u32 v11, s98, v2")
    a(f"ds_write_b32 v11, v12 offset:{L_ACT1}")
    arrive(F_1, "v3", "v10")
    for i in range(4):
        a(f"v_lshlrev_b32 v{16+2*i}, 16, v{4+i}")
        a(f"v_and_b32 v{17+2*i}, 0xffff0000, v{4+i}")
    a("v_add_f32 v24, v16, v17")
    a("v_add_f32 v25, v18, v19")
    a("v_add_f32 v26, v20, v21")
    a("v_add_f32 v27, v22, v23")
    a("v_add_f32 v24, v24, v25")
    a("v_add_f32 v26, v26, v27")
    a("v_add_f32 v24, v24, v26")
    allreduce(["v24"], "v_add_f32", ["v28"], FULL)
    a(f"s_mov_b32 s94, {INV512:#x}")
    a("v_mul_f32 v24, s94, v24")
    for i in range(8): a(f"v_sub_f32 v{16+i}, v{16+i}, v24")
    a("v_mul_f32 v25, v16, v16")
    for i in range(1, 8): a(f"v_fmac_f32 v25, v{16+i}, v{16+i}")
    allreduce(["v25"], "v_add_f32", ["v28"], FULL)
    a("v_mul_f32 v25, s94, v25")

    def ln_finish(mean, var, x0, x1, t0, t1, tmp):
        bf16r2(mean, var, mean, var, tmp)
        a(f"s_mov_b32 s94, {EPS:#x}")
        a(f"v_add_f32 {var}, s94, {var}")
        bf16r1(var, var)
        a(f"v_sqrt_f32 {var}, {var}")
        bf16r1(var, var)
        a(f"v_rcp_f32 {var}, {var}")
        a(f"v_sub_f32 {x0}, {x0}, {mean}")
        a(f"v_sub_f32 {x1}, {x1}, {mean}")
        bf16r2(x0, x1, x0, x1, tmp)
        a(f"v_mul_f32 {x0}, {x0}, {var}")
        a(f"v_mul_f32 {x1}, {x1}, {var}")
        bf16r2(x0, x1, x0, x1, tmp)
    a("v_lshlrev_b32 v12, 16, v8")
    a("v_and_b32 v13, 0xffff0000, v8")
    ln_finish("v24", "v25", "v12", "v13", "v26", "v27", "v28")

    def quarter_gather(chunkA, chunkB):
        for (ch, sreg) in ((chunkA, "s90"), (chunkB, "s94")):
            a(f"s_lshl_b32 {sreg}, {SB}, 2")
            a(f"s_add_u32 {sreg}, {sreg}, {S_KQ}")
            a(f"s_lshl_b32 {sreg}, {sreg}, 12")
            a(f"s_add_u32 {sreg}, {sreg}, {W_MOD + ch*32768}")
        loads = []; tags = []
        for i in range(4):
            loads.append(f"buffer_load_dwordx4 v[{16+4*i}:{19+4*i}], v1, {WSRD}, s90 offen offset:{1024*i} sc1")
            loads.append(f"buffer_load_dwordx4 v[{32+4*i}:{35+4*i}], v1, {WSRD}, s94 offen offset:{1024*i} sc1")
            tags += [f"v{17+4*i}", f"v{19+4*i}", f"v{33+4*i}", f"v{35+4*i}"]
        poll(loads, tags, "v50")
        for (base, d0, d1) in ((16, "v14", "v15"), (32, "v48", "v49")):
            a(f"v_add_f32 {d0}, v{base}, v{base+4}")
            a(f"v_add_f32 {d1}, v{base+2}, v{base+6}")
            a(f"v_add_f32 v50, v{base+8}, v{base+12}")
            a(f"v_add_f32 v51, v{base+10}, v{base+14}")
            a(f"v_add_f32 {d0}, {d0}, v50")
            a(f"v_add_f32 {d1}, {d1}, v51")
            bf16r2(d0, d1, d0, d1, "v50")

    def modulate(x0, x1, sc0, sc1, sh0, sh1, dst, tmp):
        a(f"v_mul_f32 {x0}, {x0}, {sc0}")
        a(f"v_mul_f32 {x1}, {x1}, {sc1}")
        bf16r2(x0, x1, x0, x1, tmp)
        a(f"v_add_f32 {x0}, {x0}, {sh0}")
        a(f"v_add_f32 {x1}, {x1}, {sh1}")
        a(f"v_cvt_pk_bf16_f32 {dst}, {x0}, {x1}")

    quarter_gather(0, 1)
    a("v_add_f32 v48, 1.0, v48")
    a("v_add_f32 v49, 1.0, v49")
    bf16r2("v48", "v49", "v48", "v49", "v50")
    modulate("v12", "v13", "v48", "v49", "v14", "v15", "v16", "v50")
    a(f"ds_write_b32 v11, v16 offset:{L_ACT2}")
    arrive(F_2, "v3", "v10")
    stamp(2)
    a(f"s_lshl_b32 s90, {S_X}, 1")
    a(f"s_add_u32 s90, s90, {S_B}")
    a("s_lshl_b32 s90, s90, 14")
    a(f"s_lshl_b32 s94, {SB}, 13")
    a("s_add_u32 s90, s90, s94")
    a(f"s_add_u32 s90, s90, {W_Q}")
    a("s_add_u32 s94, s90, 4096")
    loads = []; tags = []
    for i in range(4):
        loads.append(f"buffer_load_dwordx4 v[{16+4*i}:{19+4*i}], v1, {WSRD}, s90 offen offset:{1024*i} sc1")
        loads.append(f"buffer_load_dwordx4 v[{32+4*i}:{35+4*i}], v1, {WSRD}, s94 offen offset:{1024*i} sc1")
        tags += [f"v{17+4*i}", f"v{19+4*i}", f"v{33+4*i}", f"v{35+4*i}"]
    poll(loads, tags, "v50")
    for (base, hh) in ((16, 0), (32, 1)):
        a(f"v_add_f32 v48, v{base}, v{base+4}")
        a(f"v_add_f32 v49, v{base+2}, v{base+6}")
        a(f"v_add_f32 v50, v{base+8}, v{base+12}")
        a(f"v_add_f32 v51, v{base+10}, v{base+14}")
        a("v_add_f32 v48, v48, v50")
        a("v_add_f32 v49, v49, v51")
        a(f"v_cvt_pk_bf16_f32 v{52+hh}, v48, v49")
    a(f"s_mul_i32 s90, {SB}, {2*APITCH}")
    a("v_add_u32 v54, s90, v2")
    a(f"ds_write_b32 v54, v52 offset:{L_Q}")
    a(f"ds_write_b32 v54, v53 offset:{L_Q+APITCH}")
    arrive(F_3, "v3", "v10")
    stamp(3)
    quarter_gather(3, 4)
    a("v_add_f32 v48, 1.0, v48")
    a("v_add_f32 v49, 1.0, v49")
    bf16r2("v56", "v57", "v48", "v49", "v50")
    a("v_mov_b32 v58, v14")
    a("v_mov_b32 v59, v15")
    stamp(4)
    a(f"s_lshl_b32 s90, {S_X}, 2")
    a(f"s_add_u32 s90, s90, {S_KQ}")
    a("s_lshl_b32 s90, s90, 1")
    a(f"s_add_u32 s90, s90, {SB}")
    a("s_lshl_b32 s90, s90, 13")
    a(f"s_add_u32 s90, s90, {W_O}")
    a("s_add_u32 s94, s90, 4096")
    loads = []; tags = []
    for i in range(8):
        sr = "s90" if i < 4 else "s94"
        loads.append(f"buffer_load_dwordx4 v[{16+4*i}:{19+4*i}], v1, {WSRD}, {sr} offen offset:{1024*(i&3)} sc1")
        tags += [f"v{17+4*i}", f"v{19+4*i}"]
    a("v_mov_b32 v52, 0x3f80")
    a("v_mov_b32 v53, 0x3f800000")
    poll(loads, tags, "v50")
    for r in range(4): a(f"v_mov_b32 v{60+r}, 0")
    for i in range(8):
        a(f"v_dot2_f32_bf16 v60, v{16+4*i}, v52, v60")
        a(f"v_dot2_f32_bf16 v61, v{18+4*i}, v52, v61")
        a(f"v_dot2_f32_bf16 v62, v{16+4*i}, v53, v62")
        a(f"v_dot2_f32_bf16 v63, v{18+4*i}, v53, v63")
    allreduce(["v60", "v61", "v62", "v63"], "v_add_f32", ["v16", "v17", "v18", "v19"], ["x32"])
    a("v_cvt_pk_bf16_f32 v16, v60, v61")
    a("v_cvt_pk_bf16_f32 v17, v62, v63")
    a("v_bfe_u32 v18, v0, 3, 2")
    a("v_lshlrev_b32 v18, 6, v18")
    a("v_and_b32 v19, 7, v0")
    a("v_lshl_add_u32 v18, v19, 2, v18")
    a("v_add_u32 v18, s98, v18")
    a(f"ds_write_b32 v18, v16 offset:{L_ACT4}")
    a(f"ds_write_b32 v18, v17 offset:{L_ACT4+32}")
    a("s_waitcnt lgkmcnt(0)")
    stamp(5)
    a("s_barrier")
    a(f"s_lshl_b32 s90, {S_X}, 1")
    a(f"s_add_u32 s90, s90, {SB}")
    a("s_lshl_b32 s94, s90, 9")
    a(f"s_add_u32 s94, s94, {W_X1S}")
    a("s_lshl_b32 s90, s90, 11")
    a(f"s_lshl_b32 s99, {S_KQ}, 9")
    a("s_add_u32 s90, s90, s99")
    a(f"s_add_u32 s90, s90, {W_X1P}")
    a("v_lshlrev_b32 v16, 3, v0")
    a("v_and_b32 v17, 31, v0")
    a("v_lshlrev_b32 v17, 4, v17")
    poll([f"buffer_load_dwordx2 v[20:21], v16, {WSRD}, s90 offen sc1",
          f"buffer_load_dwordx4 v[24:27], v17, {WSRD}, s94 offen sc1"], ["v21", "v25", "v27"], "v50")
    allreduce(["v24", "v26"], "v_add_f32", ["v28", "v29"], ["x1", "x2", "x4", "x8", "x16"])
    a(f"s_mov_b32 s94, {INV512:#x}")
    a("v_mul_f32 v24, s94, v24")
    a("v_mul_f32 v26, s94, v26")
    a("v_fma_f32 v26, -v24, v24, v26")
    a("v_max_f32 v26, 0, v26")
    a("v_lshlrev_b32 v12, 16, v20")
    a("v_and_b32 v13, 0xffff0000, v20")
    ln_finish("v24", "v26", "v12", "v13", "v28", "v29", "v30")
    modulate("v12", "v13", "v56", "v57", "v58", "v59", "v16", "v30")
    a(f"ds_write_b32 v11, v16 offset:{L_ACT6}")
    a("s_waitcnt lgkmcnt(0)")
    stamp(6)
    a("s_barrier")
    a(f"s_lshl_b32 s90, {S_X}, 15")
    a(f"s_lshl_b32 s94, {SB}, 13")
    a("s_add_u32 s90, s90, s94")
    a(f"s_mul_i32 s94, {S_KQ}, 448")
    a("s_add_u32 s90, s90, s94")
    a(f"s_add_u32 s90, s90, {W_GU}")
    a("s_add_u32 s94, s90, 4096")
    a("s_add_u32 s99, s90, 16384")
    a("s_add_u32 s100, s90, 20480")
    a("v_lshlrev_b32 v16, 3, v0")
    a("v_mov_b32 v40, 0")
    a("s_mov_b32 exec_lo, -1")
    a("s_mov_b32 exec_hi, 0x00ffffff")
    loads = []; tags = []
    for wh in range(2):
        for k6 in range(4):
            sr = [["s90", "s94"], ["s99", "s100"]][wh][k6 >> 1]
            rb = 20 + 8*wh + 2*k6
            loads.append(f"buffer_load_dwordx2 v[{rb}:{rb+1}], v16, {WSRD}, {sr} offen offset:{2048*(k6&1)} sc1")
            tags.append(f"v{rb+1}")
    poll(loads, tags, "v50")
    a("v_add_f32 v36, v20, v22")
    a("v_add_f32 v37, v24, v26")
    a("v_add_f32 v38, v28, v30")
    a("v_add_f32 v39, v32, v34")
    a("v_add_f32 v36, v36, v37")
    a("v_add_f32 v38, v38, v39")
    bf16r2("v36", "v38", "v36", "v38", "v50")
    a("v_mul_f32 v36, v36, v38")
    a("v_cvt_pk_bf16_f32 v40, v36, v36")
    a("s_mov_b64 exec, -1")
    a("v_lshlrev_b32 v17, 1, v0")
    a("v_add_u32 v17, s98, v17")
    a(f"ds_write_b16 v17, v40 offset:{L_ACT7}")
    a("s_waitcnt lgkmcnt(0)")
    stamp(7)
    a("s_barrier")
    dump_stamps(8)
    a("s_endpgm")

    a.label("L_slice")
    srd(44, 16, 2048)
    srd(48, 38, 2048)
    a("v_and_b32 v1, 7, v0")
    a("v_lshlrev_b32 v2, 2, v1")
    a(f"s_lshl_b32 s90, {S_LOC}, 5")
    a("buffer_load_dword v4, v2, s[44:47], s90 offen")
    a("buffer_load_dword v5, v2, s[44:47], s90 offen offset:1024")
    a("s_waitcnt vmcnt(0)")
    get_tag()
    a("v_mov_b32 v3, 0")
    a("s_barrier")
    stamp(1)
    def slice_gather(chunk, d):
        a(f"s_lshr_b32 s90, {S_LOC}, 3")
        a("s_lshl_b32 s90, s90, 12")
        a(f"s_and_b32 s94, {S_LOC}, 7")
        a("s_lshl_b32 s94, s94, 7")
        a("s_add_u32 s90, s90, s94")
        a(f"s_add_u32 s90, s90, {W_MOD + chunk*32768}")
        a("s_add_u32 s94, s90, 16384")
        a("v_lshlrev_b32 v6, 4, v1")
        loads = []; tags = []
        for b in range(2):
            for i in range(4):
                rb = 16 + 16*b + 4*i
                loads.append(f"buffer_load_dwordx4 v[{rb}:{rb+3}], v6, {WSRD}, {'s90' if b == 0 else 's94'} offen offset:{1024*i} sc1")
                tags += [f"v{rb+1}", f"v{rb+3}"]
        poll(loads, tags, "v50")
        for b in range(2):
            base = 16 + 16*b
            d0, d1 = d[2*b], d[2*b+1]
            a(f"v_add_f32 {d0}, v{base}, v{base+4}")
            a(f"v_add_f32 {d1}, v{base+2}, v{base+6}")
            a(f"v_add_f32 v50, v{base+8}, v{base+12}")
            a(f"v_add_f32 v51, v{base+10}, v{base+14}")
            a(f"v_add_f32 {d0}, {d0}, v50")
            a(f"v_add_f32 {d1}, {d1}, v51")
            bf16r2(d0, d1, d0, d1, "v50")
    slice_gather(2, ["v52", "v53", "v54", "v55"])
    slice_gather(5, ["v56", "v57", "v58", "v59"])
    stamp(2)
    a("s_barrier")

    def part_gather(base):
        a(f"s_lshl_b32 s90, {S_LOC}, 13")
        a(f"s_add_u32 s90, s90, {base}")
        a("s_add_u32 s94, s90, 4096")
        a("v_lshlrev_b32 v6, 4, v0")
        loads = []; tags = []
        for i in range(8):
            rb = 16 + 4*i
            loads.append(f"buffer_load_dwordx4 v[{rb}:{rb+3}], v6, {WSRD}, {'s90' if i < 4 else 's94'} offen offset:{1024*(i&3)} sc1")
            tags += [f"v{rb+1}", f"v{rb+3}"]
        poll(loads, tags, "v50")
        for b in range(2):
            bs = 16 + 16*b
            d0, d1 = f"v{60+2*b}", f"v{61+2*b}"
            a(f"v_add_f32 {d0}, v{bs}, v{bs+4}")
            a(f"v_add_f32 {d1}, v{bs+2}, v{bs+6}")
            a(f"v_add_f32 v50, v{bs+8}, v{bs+12}")
            a(f"v_add_f32 v51, v{bs+10}, v{bs+14}")
            a(f"v_add_f32 {d0}, {d0}, v50")
            a(f"v_add_f32 {d1}, {d1}, v51")
        allreduce(["v60", "v61", "v62", "v63"], "v_add_f32", ["v16", "v17", "v18", "v19"], ["r8", "x16", "x32"])

    def resid(gate, xin, xout):
        bf16r2("v60", "v61", "v60", "v61", "v50")
        bf16r2("v62", "v63", "v62", "v63", "v50")
        for k in range(4): a(f"v_mul_f32 v{60+k}, v{60+k}, {gate[k]}")
        bf16r2("v60", "v61", "v60", "v61", "v50")
        bf16r2("v62", "v63", "v62", "v63", "v50")
        for k in range(4): a(f"v_add_f32 {xout[k]}, {xin[k]}, v{60+k}")

    part_gather(W_A4)
    stamp(3)
    a("v_lshlrev_b32 v8, 16, v4")
    a("v_and_b32 v9, 0xffff0000, v4")
    a("v_lshlrev_b32 v10, 16, v5")
    a("v_and_b32 v11, 0xffff0000, v5")
    resid(["v52", "v53", "v54", "v55"], ["v8", "v9", "v10", "v11"], ["v8", "v9", "v10", "v11"])
    a("v_cvt_pk_bf16_f32 v12, v8, v9")
    a("v_cvt_pk_bf16_f32 v13, v10, v11")
    a("v_lshlrev_b32 v8, 16, v12")
    a("v_and_b32 v9, 0xffff0000, v12")
    a("v_lshlrev_b32 v10, 16, v13")
    a("v_and_b32 v11, 0xffff0000, v13")
    a("v_add_f32 v16, v8, v9")
    a("v_add_f32 v18, v10, v11")
    a("v_mul_f32 v17, v8, v8")
    a("v_fmac_f32 v17, v9, v9")
    a("v_mul_f32 v19, v10, v10")
    a("v_fmac_f32 v19, v11, v11")
    allreduce(["v16", "v17", "v18", "v19"], "v_add_f32", [], ["x1", "x2", "x4"])
    a("v_bfe_u32 v20, v0, 3, 1")
    a("v_cmp_eq_u32 vcc, 1, v20")
    a("v_cndmask_b32 v24, v12, v13, vcc")
    a(f"v_mov_b32 v25, {S_TAG}")
    a("v_cndmask_b32 v28, v16, v18, vcc")
    a(f"v_mov_b32 v29, {S_TAG}")
    a("v_cndmask_b32 v30, v17, v19, vcc")
    a(f"v_mov_b32 v31, {S_TAG}")
    a("v_lshlrev_b32 v21, 11, v20")
    a("v_lshl_add_u32 v21, v1, 3, v21")
    a(f"s_lshl_b32 s90, {S_X}, 12")
    a(f"s_lshl_b32 s94, {S_LOC}, 6")
    a("s_add_u32 s90, s90, s94")
    a(f"s_add_u32 s90, s90, {W_X1P}")
    a("v_lshlrev_b32 v22, 9, v20")
    a(f"s_lshl_b32 s94, {S_X}, 10")
    a(f"s_lshl_b32 s99, {S_LOC}, 4")
    a("s_add_u32 s94, s94, s99")
    a(f"s_add_u32 s94, s94, {W_X1S}")
    a("s_mov_b64 exec, 0xffff")
    a(f"buffer_store_dwordx2 v[24:25], v21, {WSRD}, s90 offen{SC1}")
    a("s_mov_b64 exec, 0x0101")
    a(f"buffer_store_dwordx4 v[28:31], v22, {WSRD}, s94 offen{SC1}")
    a("s_mov_b64 exec, -1")
    stamp(4)
    a("s_barrier")
    a("s_barrier")
    a(f"s_and_b32 s90, {S_LOC}, 7")
    a(f"s_cmp_lg_u32 s90, {S_X}")
    a("s_cbranch_scc1 L_slice_end")
    part_gather(W_DN)
    resid(["v56", "v57", "v58", "v59"], ["v8", "v9", "v10", "v11"], ["v8", "v9", "v10", "v11"])
    a("v_cvt_pk_bf16_f32 v12, v8, v9")
    a("v_cvt_pk_bf16_f32 v13, v10, v11")
    a("v_bfe_u32 v20, v0, 3, 1")
    a("v_cmp_eq_u32 vcc, 1, v20")
    a("v_cndmask_b32 v24, v12, v13, vcc")
    a("v_lshlrev_b32 v21, 10, v20")
    a("v_lshl_add_u32 v21, v1, 2, v21")
    a(f"s_lshl_b32 s90, {S_LOC}, 5")
    a("s_mov_b64 exec, 0xffff")
    a("buffer_store_dword v24, v21, s[48:51], s90 offen")
    a(f"s_cmp_lg_u32 {S_WG}, 0")
    a("s_cbranch_scc1 L_slice_end")
    a("s_mov_b64 exec, 1")
    a(f"v_mov_b32 v24, {S_EP}")
    a("v_mov_b32 v21, 0")
    a(f"buffer_store_dword v24, v21, {WSRD}, 0 offen sc1")
    a.label("L_slice_end")
    a("s_mov_b64 exec, -1")
    stamp(5)
    dump_stamps(6)
    a("s_endpgm")

    a.label("L_aux")
    srd(44, 28, 512*1792*2)
    srd(48, 30, 512*1792*2)
    srd(52, 32, 1792*512*2)
    a("v_mov_b32 v10, 1")
    a("s_waitcnt vmcnt(0)")
    get_tag()
    a("v_mov_b32 v3, 0")
    a("s_barrier")
    stamp(1)
    a("v_lshlrev_b32 v1, 4, v0")
    a(f"s_lshl_b32 s90, {S_X}, 1")
    a(f"s_add_u32 s90, s90, {S_B}")
    a("s_lshl_b32 s90, s90, 10")
    a(f"s_add_u32 s90, s90, {W_ST}")
    poll([f"buffer_load_dwordx4 v[16:19], v1, {WSRD}, s90 offen sc1"], ["v17", "v19"], "v50", sleep=4)
    a("v_mov_b32 v20, v16")
    allreduce(["v20"], "v_max_f32", [], ["x1", "x2", "x4", "x8"])
    a(f"s_mov_b32 s94, {LOG2E:#x}")
    a("v_sub_f32 v21, v16, v20")
    a("v_mul_f32 v21, s94, v21")
    a("v_exp_f32 v21, v21")
    a("v_mul_f32 v22, v21, v18")
    allreduce(["v22"], "v_add_f32", [], ["x1", "x2", "x4", "x8"])
    a("v_rcp_f32 v22, v22")
    a("v_mul_f32 v21, v21, v22")
    a("v_and_b32 v23, 15, v0")
    a(f"v_cmp_eq_u32 vcc, {S_SPL}, v23")
    a("v_lshrrev_b32 v24, 4, v0")
    a("v_lshlrev_b32 v24, 2, v24")
    a("s_and_saveexec_b64 s[92:93], vcc")
    a(f"ds_write_b32 v24, v21 offset:{L_FAC}")
    a("s_mov_b64 exec, s[92:93]")
    arrive(F_4, "v3", "v10")
    stamp(2)
    a("v_lshrrev_b32 v20, 2, v0")
    a("v_mul_u32_u24 v21, 3584, v20")
    a("v_bfe_u32 v22, v0, 5, 1")
    a("v_lshlrev_b32 v22, 1, v22")
    a("v_and_b32 v23, 3, v0")
    a("v_xor_b32 v22, v22, v23")
    a("v_lshl_add_u32 v21, v22, 4, v21")
    a("v_lshrrev_b32 v24, 3, v0")
    a("v_lshlrev_b32 v24, 10, v24")
    a("v_bfe_u32 v25, v0, 4, 1")
    a("v_lshlrev_b32 v25, 1, v25")
    a("v_and_b32 v26, 7, v0")
    a("v_xor_b32 v25, v25, v26")
    a("v_lshl_add_u32 v24, v25, 4, v24")
    a("v_xor_b32 v25, 64, v24")
    a("s_barrier")
    a(f"s_mul_i32 s90, {S_X}, {224*1024}")
    a(f"s_mul_i32 s94, {S_KQ}, {56*1024}")
    a("s_add_u32 s90, s90, s94")
    a(f"s_lshl_b32 s94, {S_CB}, 7")
    a("s_add_u32 s90, s90, s94")
    a(f"s_cmp_eq_u32 {S_CB}, 7")
    a("s_cbranch_scc1 L_aux_dn")
    a(f"s_mul_i32 s94, {S_KQ}, {128*3584}")
    a(f"s_mul_i32 s99, {S_X}, 448")
    a("s_add_u32 s94, s94, s99")
    a(f"s_lshl_b32 s99, {S_CB}, 6")
    a("s_add_u32 s94, s94, s99")
    a(f"s_mov_b32 m0, {L_G}")
    a("s_mov_b32 s99, 8")
    a.label("L_aux_gu")
    a("buffer_load_dwordx4 v21, s[44:47], s94 offen nt lds")
    a("s_add_u32 m0, m0, 0x2000")
    a("s_nop 0")
    a("buffer_load_dwordx4 v21, s[48:51], s94 offen nt lds")
    a("s_sub_u32 m0, m0, 0x1c00")
    a(f"s_add_u32 s94, s94, {16*3584}")
    a("s_sub_u32 s99, s99, 1")
    a("s_cmp_lg_u32 s99, 0")
    a("s_cbranch_scc1 L_aux_gu")
    a.label("L_aux_dn")
    a(f"s_mov_b32 m0, {L_DN}")
    for i in range(8):
        a(f"buffer_load_dwordx4 v{24 + (i&1)}, s[52:55], s90 offen nt lds")
        a("s_add_u32 m0, m0, 0x400")
        a("s_add_u32 s90, s90, 0x2000")
    a("s_waitcnt vmcnt(0)")
    arrive(F_LATE, "v3", "v10")
    stamp(3)
    a("s_barrier")
    a("s_barrier")
    dump_stamps(4)
    a("s_endpgm")

    a.label("L_loader")
    srd(44, 36, 512*3072*2)
    srd(48, 22, 512*4096*2)
    srd(52, 18, 2*8*32768*128*2)
    srd(56, 20, 2*8*32768*128*2)
    srd(60, 24, 4096*512*2)
    a("v_mov_b32 v10, 0")
    for r in range(12, 16): a(f"v_mov_b32 v{r}, 0")
    a("v_lshlrev_b32 v1, 2, v0")
    a("v_lshlrev_b32 v2, 4, v0")
    a("ds_write_b32 v1, v10")
    a(f"ds_write_b128 v2, v[12:15] offset:{L_ZERO}")
    SLC = "s95"; SOFF = "s96"
    a(f"s_mov_b32 {SLC}, {1 - D}")
    a(f"s_cmp_lt_u32 {S_WG}, 192")
    a(f"s_cselect_b32 s90, 0, 16")
    a(f"s_add_u32 {SLC}, {SLC}, s90")
    a(f"v_mov_b32 v11, {SLC}")
    a(f"ds_write_b32 v10, v11 offset:{F_LC}")
    a("v_lshrrev_b32 v3, 3, v0")
    a("v_bfe_u32 v4, v0, 4, 1")
    a("v_lshlrev_b32 v4, 1, v4")
    a("v_and_b32 v5, 7, v0")
    a("v_xor_b32 v4, v4, v5")
    a("v_lshlrev_b32 v4, 4, v4")
    a("v_xor_b32 v5, 64, v4")
    a("v_mul_u32_u24 v6, 6144, v3")
    a("v_add_u32 v20, v6, v4")
    a("v_add_u32 v21, v6, v5")
    a("v_lshlrev_b32 v6, 13, v3")
    a("v_add_u32 v22, v6, v4")
    a("v_add_u32 v23, v6, v5")
    a("v_lshlrev_b32 v6, 10, v3")
    a("v_add_u32 v24, v6, v4")
    a("v_add_u32 v25, v6, v5")
    a("v_lshrrev_b32 v3, 4, v0")
    a("v_and_b32 v4, 15, v0")
    a("v_xor_b32 v5, v4, v3")
    a("v_lshlrev_b32 v5, 4, v5")
    a("v_lshl_add_u32 v26, v3, 8, v5")
    a("v_xor_b32 v27, 64, v26")
    a("v_xor_b32 v28, 0x80, v26")
    a("v_xor_b32 v29, 0xc0, v26")
    a("v_lshlrev_b32 v5, 1, v3")
    a("v_xor_b32 v5, v4, v5")
    a("v_lshlrev_b32 v5, 4, v5")
    a("v_lshl_add_u32 v30, v3, 8, v5")
    a("v_xor_b32 v31, 0x80, v30")

    def dma(voff, srdn, step):
        a(f"buffer_load_dwordx4 {voff}, s[{srdn}:{srdn+3}], {SOFF} offen nt lds")
        a(f"s_add_u32 {SOFF}, {SOFF}, {step}")
        a("s_add_u32 m0, m0, 0x400")
        a(f"s_waitcnt vmcnt({D-1})")
        a(f"s_add_u32 {SLC}, {SLC}, 1")
        a(f"v_mov_b32 v11, {SLC}")
        a(f"ds_write_b32 v10, v11 offset:{F_LC}")

    def seg(name, variants, srdn, step, iters, ldsbase=None):
        if ldsbase is not None: a(f"s_mov_b32 m0, {ldsbase}")
        a(f"s_mov_b32 s97, {iters}")
        a.label(name)
        for v in variants: dma(v, srdn, step)
        a("s_sub_u32 s97, s97, 1")
        a("s_cmp_lg_u32 s97, 0")
        a(f"s_cbranch_scc1 {name}")

    a(f"s_cmp_ge_u32 {S_WG}, 192")
    a("s_cbranch_scc1 L_ld_nomod")
    a(f"s_and_b32 s90, {S_WG}, 3")
    a(f"s_mul_i32 {SOFF}, s90, {128*6144}")
    a(f"s_lshr_b32 s90, {S_WG}, 2")
    a("s_lshl_b32 s90, s90, 7")
    a(f"s_add_u32 {SOFF}, {SOFF}, s90")
    seg("L_ld_mod", ["v20", "v21"], 44, 8*6144, 8, L_MODW)
    a.label("L_ld_nomod")
    a("s_waitcnt lgkmcnt(0)")
    a("s_barrier")
    stamp(1)
    a(f"s_lshl_b32 {SOFF}, {S_KQ}, 20")
    a(f"s_lshl_b32 s90, {S_X}, 10")
    a(f"s_add_u32 {SOFF}, {SOFF}, s90")
    a(f"s_lshl_b32 s90, {S_CB}, 7")
    a(f"s_add_u32 {SOFF}, {SOFF}, s90")
    seg("L_ld_wq", ["v22", "v23"], 48, 8*8192, 8, L_WQW)
    a(f"s_lshl_b32 s98, {S_B}, 3")
    a(f"s_add_u32 s98, s98, {S_X}")
    a("s_lshl_b32 s98, s98, 23")
    a(f"s_lshl_b32 s90, {S_SPL}, 16")
    a("s_add_u32 s98, s98, s90")
    a(f"s_add_u32 s98, s98, {28672*256}")
    a(f"s_mov_b32 {SOFF}, s98")
    seg("L_ld_k", ["v26", "v27", "v28", "v29"], 52, 1024, 16, L_K)
    stamp(2)
    a(f"s_mov_b32 {SOFF}, s98")
    seg("L_ld_v1", ["v30", "v30", "v31", "v31"], 56, 1024, 8, L_V)
    spin_lds(F_EC, 4, "v10", "v12")
    seg("L_ld_v2", ["v30", "v30", "v31", "v31"], 56, 1024, 8)
    stamp(3)
    spin_lds(F_KC, 4, "v10", "v12")
    a(f"s_lshl_b32 {SOFF}, {S_X}, 19")
    a(f"s_lshl_b32 s90, {S_KQ}, 17")
    a(f"s_add_u32 {SOFF}, {SOFF}, s90")
    a(f"s_lshl_b32 s90, {S_CB}, 7")
    a(f"s_add_u32 {SOFF}, {SOFF}, s90")
    seg("L_ld_wo", ["v24", "v25"], 60, 8192, 8, L_WO)
    stamp(4)
    for k in list(range(D - 2, 15, -1)) + [0]:
        a(f"s_waitcnt vmcnt({k})")
        a(f"v_mov_b32 v11, {176 - k}")
        a(f"ds_write_b32 v10, v11 offset:{F_LC}")
        if k == 16: stamp(5)
    stamp(6)
    dump_stamps(7)
    a("s_endpgm")

    a.label("L_abort")
    a("s_mov_b64 exec, 1")
    a("v_mov_b32 v1, 0")
    a(f"v_mov_b32 v2, {S_W}")
    a("v_add_u32 v2, 0xdead0000, v2")
    a("s_mov_b32 s44, s40")
    a("s_and_b32 s45, s41, 0xffff")
    a("s_mov_b32 s46, 256")
    a("s_mov_b32 s47, 0x20000")
    a("buffer_store_dword v2, v1, s[44:47], 0 offen")
    a.label("L_end")
    a("s_endpgm")

    hdr = open(f"cdna_kernels/{NAME}.s.ref").read().split("; Override launch")[0]
    out = hdr
    out += f"; @launch grid=(256,1,1) block=(576,1,1) lds={L_TOTAL}\n"
    out += '.amdgcn_target "amdgcn-amd-amdhsa--gfx950"\n.text\n'
    out += f".globl {NAME}_kernel\n.p2align 8\n.type {NAME}_kernel,@function\n"
    out += a.text()
    out += f""".section .rodata,"a"
.p2align 6
.amdhsa_kernel {NAME}_kernel
  .amdhsa_next_free_vgpr 128
  .amdhsa_next_free_sgpr 102
  .amdhsa_accum_offset 128
  .amdhsa_group_segment_fixed_size 0
  .amdhsa_kernarg_size 112
  .amdhsa_user_sgpr_count 2
  .amdhsa_user_sgpr_kernarg_segment_ptr 1
  .amdhsa_system_sgpr_workgroup_id_x 1
.end_amdhsa_kernel
"""
    return out

if __name__ == "__main__":
    cfg = Cfg()
    outp = sys.argv[1]
    for arg in sys.argv[2:]:
        k, v = arg.split("=")
        setattr(cfg, k, type(getattr(cfg, k))(int(v)) if not isinstance(getattr(cfg, k), bool) else bool(int(v)))
    open(outp, "w").write(gen(cfg))
    print("wrote", outp)
```

```python
import sys
from asmlib import Asm

NAME = "adaLN_cond__sliding_block_cached__glu_gated_bilinear__decode"

class Cfg:
    D = 40
    stamps = 0
    spin = 1 << 20
    rsl = 1
    local = 2
    touch = 1
    d_h = 4
    d_q = 1
    d_r1 = 1
    d_s5 = 8
    d_x1 = 1
    d_gu = 1
    d_s8 = 8
    site = 0

(F_LC, F_1, F_2, F_3, F_EC, F_KC, F_MB1, F_MB2, F_LATE, F_PO, F_PA, F_PX, F_PG, F_PD,
 F_PM, F_PQ, F_XC, F_WQ, F_WOL, F_MRL, F_LM, F_XP) = [4*i for i in range(22)]
L_MX = 128; L_LS = 192; L_ZERO = 256
L_ACT1 = 768; L_ACT2 = 1344; L_ACT4 = 1920; L_ACT6 = 2496; L_ACT7 = 3072
L_Q = 3648
L_P = 4736
L_X = 8192; L_C = 10240
L_K = 12288; L_V = L_K + 65536; L_MR = L_V + 65536; L_TOTAL = L_MR + 16384
L_MODB = L_K; L_WQ = L_V
L_WO = L_K; L_G = L_K + 16384; L_U = L_K + 24576; L_DN = L_K + 32768
APITCH = 272; PPITCH = 528

W_EPOCH = 0
W_MOD = 0x1000
W_XC = 0x38000
W_Q = 0x40000
W_ST = 0x80000
W_O = 0x90000
W_A4 = 0x110000
W_X1P = 0x150000
W_X1S = 0x158000
W_GU = 0x160000
W_DN = 0x1A0000
W_STAMP = 0x200000
W_USED = 0x300000

LOG2E = 0x3fb8aa3b
SCALE = 0x3db504f3
EPS = 0x3727c5ac
INV512 = 0x3b000000

S_WG, S_W, S_X, S_LOC, S_B, S_SPL, S_KQ, S_CB, S_TAG, S_SPIN = "s2", "s3", "s4", "s5", "s6", "s7", "s8", "s9", "s10", "s11"
WSRD = "s[12:15]"
S_EP = "s89"
S_LM = "s88"
PX = "s[42:43]"
S_PH = "s101"
KB_B = 8

def gen(cfg):
    a = Asm()
    D = cfg.D

    def srd(dst, plo, size):
        a(f"s_mov_b32 s{dst}, s{plo}")
        a(f"s_and_b32 s{dst+1}, s{plo+1}, 0xffff")
        a(f"s_mov_b32 s{dst+2}, {size}")
        a(f"s_mov_b32 s{dst+3}, 0x20000")

    def stamp(k):
        if cfg.stamps: a(f"s_memrealtime s[{64+2*k}:{65+2*k}]")

    def dump_stamps(n):
        if not cfg.stamps: return
        a("s_waitcnt lgkmcnt(0)")
        a(f"s_mul_i32 s90, {S_WG}, 9")
        a(f"s_add_u32 s90, s90, {S_W}")
        a("s_lshl_b32 s90, s90, 7")
        a(f"s_add_u32 s90, s90, {W_STAMP}")
        a("s_mov_b64 exec, 1")
        a("v_mov_b32 v1, 0")
        for k in range(n):
            a(f"v_mov_b32 v2, s{64+2*k}")
            a(f"v_mov_b32 v3, s{65+2*k}")
            a(f"buffer_store_dwordx2 v[2:3], v1, {WSRD}, s90 offen offset:{8*k}")
            a("s_nop 1")
        a("s_waitcnt vmcnt(0)")

    sites = [0]
    def timeout():
        if cfg.site:
            sites[0] += 1
            a(f"s_mov_b32 s1, {sites[0]}")
        a(f"s_sub_u32 {S_SPIN}, {S_SPIN}, 1")
        a("s_cbranch_scc1 L_abort")

    def spin_lds(off, n, vz, vt, sleep=True):
        L = a.newlabel("Lsp"); E = a.newlabel("Lspe")
        a.label(L)
        a(f"ds_read_b32 {vt}, {vz} offset:{off}")
        a("s_waitcnt lgkmcnt(0)")
        a(f"v_readfirstlane_b32 s91, {vt}")
        a(f"s_cmp_ge_i32 s91, {n}")
        a(f"s_cbranch_scc1 {E}")
        timeout()
        if sleep: a("s_sleep 1")
        a(f"s_branch {L}")
        a.label(E)

    def arrive(off, vz, vone):
        a("s_mov_b64 s[92:93], exec")
        a("s_mov_b64 exec, 1")
        a(f"ds_add_u32 {vz}, {vone} offset:{off}")
        a("s_mov_b64 exec, s[92:93]")

    def poll(loads, tags, vacc, sleep=None, sample=False):
        if sleep is None: sleep = cfg.rsl
        L = a.newlabel("Lpl"); E = a.newlabel("Lple"); R = a.newlabel("Lplr")
        a(f"s_mov_b64 {PX}, exec")
        if sample:
            a(f"s_mov_b32 {S_PH}, 0")
            a("s_mov_b64 exec, 1")
        a.label(L)
        for ld in loads: a(ld)
        a("s_waitcnt vmcnt(0)")
        a(f"v_xor_b32 {vacc}, {S_TAG}, {tags[0]}")
        for t in tags[1:]:
            a(f"v_bitop3_b32 {vacc}, {vacc}, {t}, {S_TAG} bitop3:0xf6")
        a(f"v_cmp_ne_u32 vcc, 0, {vacc}")
        if sample:
            a(f"s_cbranch_vccnz {R}")
            a(f"s_cmp_lg_u32 {S_PH}, 0")
            a(f"s_cbranch_scc1 {E}")
            a(f"s_mov_b32 {S_PH}, 1")
            a(f"s_mov_b64 exec, {PX}")
            a(f"s_branch {L}")
            a.label(R)
        else:
            a(f"s_cbranch_vccz {E}")
        a("s_mov_b64 exec, vcc")
        timeout()
        if sleep: a(f"s_sleep {sleep}")
        a(f"s_branch {L}")
        a.label(E)
        a(f"s_mov_b64 exec, {PX}")

    def after_own(flag, n, vz, vt, dly):
        spin_lds(flag, n, vz, vt, sleep=False)
        if dly: a(f"s_sleep {dly}")

    def get_mode(vz, vt):
        if cfg.local == 2:
            spin_lds(F_LM, 1, vz, vt)
            a(f"s_mov_b32 {S_LM}, s91")

    def store_loc(text):
        if cfg.local == 0: a(text + " sc1")
        elif cfg.local == 1: a(text)
        else:
            P = a.newlabel("Lst"); E = a.newlabel("Lste")
            a(f"s_cmp_eq_u32 {S_LM}, 1")
            a(f"s_cbranch_scc1 {P}")
            a(text + " sc1")
            a(f"s_branch {E}")
            a.label(P)
            a(text)
            a.label(E)

    def bf16r2(d0, d1, s0, s1, tmp):
        a(f"v_cvt_pk_bf16_f32 {tmp}, {s0}, {s1}")
        a(f"v_lshlrev_b32 {d0}, 16, {tmp}")
        a(f"v_and_b32 {d1}, 0xffff0000, {tmp}")

    def bf16r1(d, s):
        a(f"v_cvt_pk_bf16_f32 {d}, {s}, {s}")
        a(f"v_lshlrev_b32 {d}, 16, {d}")

    def allreduce(regs, op, tmps, steps):
        dpp = {"x1": "quad_perm:[1,0,3,2]", "x2": "quad_perm:[2,3,0,1]", "x4": "row_half_mirror", "x8": "row_mirror", "r8": "row_ror:8", "r4": "row_ror:4"}
        for s in steps:
            if s in dpp:
                for r in regs:
                    a(f"{op}_dpp {r}, {r}, {r} {dpp[s]} row_mask:0xf bank_mask:0xf")
            else:
                ins = "v_permlane16_swap_b32" if s == "x16" else "v_permlane32_swap_b32"
                for r, t in zip(regs, tmps): a(f"v_mov_b32 {t}, {r}")
                for r, t in zip(regs, tmps): a(f"{ins} {r}, {t}")
                for r, t in zip(regs, tmps): a(f"{op} {r}, {r}, {t}")
    FULL = ["x1", "x2", "x4", "x8", "x16", "x32"]

    def sexpr(dst, terms, const=0, tmp="s94"):
        first = True
        for (reg, kind, n) in terms:
            tgt = dst if first else tmp
            if kind == "shl":
                if n == 0: a(f"s_mov_b32 {tgt}, {reg}")
                else: a(f"s_lshl_b32 {tgt}, {reg}, {n}")
            else: a(f"s_mul_i32 {tgt}, {reg}, {n}")
            if not first: a(f"s_add_u32 {dst}, {dst}, {tmp}")
            first = False
        if const: a(f"s_add_u32 {dst}, {dst}, {const}")

    def get_tag():
        a(f"v_readfirstlane_b32 {S_EP}, v3")
        a(f"s_add_u32 {S_EP}, {S_EP}, 1")
        a(f"s_mul_i32 {S_TAG}, {S_EP}, 0x9E3779B1")

    def unit_voffs(pitch_shift=None, pitch=None, d0="v24", d1="v25"):
        a("v_lshrrev_b32 v3, 3, v0")
        a("v_bfe_u32 v4, v0, 4, 1")
        a("v_lshlrev_b32 v4, 1, v4")
        a("v_and_b32 v5, 7, v0")
        a("v_xor_b32 v4, v4, v5")
        a("v_lshlrev_b32 v4, 4, v4")
        if pitch_shift is not None: a(f"v_lshlrev_b32 v6, {pitch_shift}, v3")
        else: a(f"v_mul_u32_u24 v6, {pitch}, v3")
        a(f"v_add_u32 {d0}, v6, v4")
        a(f"v_xor_b32 {d1}, 64, {d0}")

    def strip_voff(pitch, d):
        a("v_lshrrev_b32 v6, 2, v0")
        a(f"v_mul_u32_u24 {d}, {pitch}, v6")
        a("v_bfe_u32 v6, v0, 5, 1")
        a("v_lshlrev_b32 v6, 1, v6")
        a("v_and_b32 v7, 3, v0")
        a("v_xor_b32 v6, v6, v7")
        a(f"v_lshl_add_u32 {d}, v6, 4, {d}")

    a.label(f"{NAME}_kernel")
    a(f"s_cmp_ge_u32 {S_WG}, 256")
    a("s_cbranch_scc1 L_end")
    a("s_load_dwordx16 s[16:31], s[0:1], 0")
    a("s_load_dwordx8 s[32:39], s[0:1], 64")
    a("s_load_dwordx4 s[40:43], s[0:1], 96")
    stamp(0)
    a("v_lshrrev_b32 v1, 6, v0")
    a("v_and_b32 v0, 63, v0")
    a(f"v_readfirstlane_b32 {S_W}, v1")
    a(f"s_and_b32 {S_X}, {S_WG}, 7")
    a(f"s_lshr_b32 {S_LOC}, {S_WG}, 3")
    a(f"s_lshr_b32 {S_B}, {S_LOC}, 4")
    a(f"s_xor_b32 {S_B}, {S_B}, 1")
    a(f"s_and_b32 {S_SPL}, {S_LOC}, 15")
    a(f"s_lshr_b32 {S_KQ}, {S_LOC}, 3")
    a(f"s_and_b32 {S_CB}, {S_LOC}, 7")
    a(f"s_mov_b32 {S_SPIN}, {cfg.spin}")
    a(f"s_mov_b32 {S_LM}, {1 if cfg.local == 1 else 2}")
    a(f"s_cmp_lg_u32 {S_W}, 8")
    a("s_cbranch_scc1 L_worker")

    SLC = "s95"; SOFF = "s96"
    a("v_lshlrev_b32 v1, 4, v0")
    strip_voff(6144, "v20")
    a(f"s_and_b32 s90, {S_SPL}, 3")
    a(f"s_mul_i32 {SOFF}, s90, {128*6144}")
    a(f"s_lshr_b32 s90, {S_X}, 2")
    a("s_lshl_b32 s90, s90, 10")
    a(f"s_add_u32 {SOFF}, {SOFF}, s90")
    a(f"s_and_b32 s90, {S_X}, 3")
    a("s_lshl_b32 s90, s90, 8")
    a(f"s_add_u32 {SOFF}, {SOFF}, s90")
    a(f"s_lshr_b32 s90, {S_SPL}, 2")
    a("s_lshl_b32 s90, s90, 6")
    a(f"s_add_u32 {SOFF}, {SOFF}, s90")
    a(f"s_mov_b32 m0, {L_C}")
    a("s_waitcnt lgkmcnt(0)")
    if cfg.touch:
        a("s_load_dword s78, s[16:17], 0")
        a(f"s_load_dword s79, s[36:37], {SOFF}")
        a("s_load_dword s80, s[34:35], 0")
    srd(48, 34, 2048)
    srd(44, 16, 2048)
    a("buffer_load_dwordx4 v1, s[48:51], 0 offen nt lds")
    a("buffer_load_dwordx4 v1, s[48:51], 0 offen offset:1024 nt lds")
    a(f"s_mov_b32 m0, {L_X}")
    a("s_nop 0")
    a("buffer_load_dwordx4 v1, s[44:47], 0 offen nt lds")
    a("buffer_load_dwordx4 v1, s[44:47], 0 offen offset:1024 nt lds")
    srd(44, 36, 512*3072*2)
    a(f"s_cmp_eq_u32 {S_B}, 0")
    a("s_cbranch_scc1 L_ld_nomod")
    a(f"s_mov_b32 m0, {L_MODB}")
    a("s_nop 0")
    for i in range(8):
        a(f"buffer_load_dwordx4 v20, s[44:47], {SOFF} offen nt lds")
        if i < 7:
            a(f"s_add_u32 {SOFF}, {SOFF}, {16*6144}")
            a("s_add_u32 m0, m0, 0x400")
    a.label("L_ld_nomod")
    a("s_barrier")
    stamp(1)
    srd(12, 42, W_USED)
    srd(52, 18, 2*8*32768*128*2)
    srd(56, 20, 2*8*32768*128*2)
    srd(60, 24, 4096*512*2)
    a("v_mov_b32 v10, 0")
    a("v_lshrrev_b32 v3, 4, v0")
    a("v_and_b32 v4, 15, v0")
    a("v_xor_b32 v5, v4, v3")
    a("v_lshlrev_b32 v5, 4, v5")
    a("v_lshl_add_u32 v26, v3, 8, v5")
    a("v_xor_b32 v27, 64, v26")
    a("v_xor_b32 v28, 0x80, v26")
    a("v_xor_b32 v29, 0xc0, v26")
    a("v_lshlrev_b32 v5, 1, v3")
    a("v_xor_b32 v5, v4, v5")
    a("v_lshlrev_b32 v5, 4, v5")
    a("v_lshl_add_u32 v30, v3, 8, v5")
    a("v_xor_b32 v31, 0x80, v30")
    sexpr("s98", [(S_B, "shl", 26), (S_X, "shl", 23), (S_SPL, "shl", 16)], 28672*256)
    unit_voffs(pitch_shift=10)

    def lc_write(val, off=F_LC):
        a(f"v_mov_b32 v11, {val}")
        a(f"ds_write_b32 v10, v11 offset:{off}")
    def seg(name, variants, srdn, step, iters, ldsbase):
        a(f"s_mov_b32 m0, {ldsbase}")
        a(f"s_mov_b32 s97, {iters}")
        a.label(name)
        for v in variants:
            a(f"buffer_load_dwordx4 {v}, s[{srdn}:{srdn+3}], {SOFF} offen nt lds")
            a(f"s_add_u32 {SOFF}, {SOFF}, {step}")
            a("s_add_u32 m0, m0, 0x400")
        a("s_sub_u32 s97, s97, 1")
        a("s_cmp_lg_u32 s97, 0")
        a(f"s_cbranch_scc1 {name}")
    def drain(end, ks):
        for k in ks:
            a(f"s_waitcnt vmcnt({k})")
            lc_write(end - k)
    def seg4(name, variants, srdn, iters, ldsbase):
        a(f"s_mov_b32 m0, {ldsbase}")
        a(f"s_mov_b32 s97, {iters}")
        a.label(name)
        for i, v in enumerate(variants):
            a(f"buffer_load_dwordx4 {v}, s[{srdn}:{srdn+3}], {SOFF} offen offset:{1024*i} nt lds")
        a(f"s_add_u32 {SOFF}, {SOFF}, 0x1000")
        a("s_add_u32 m0, m0, 0x1000")
        a(f"s_add_u32 {SLC}, {SLC}, 4")
        a(f"v_mov_b32 v11, {SLC}")
        a(f"s_waitcnt vmcnt({D-4})")
        a(f"ds_write_b32 v10, v11 offset:{F_LC}")
        a("s_sub_u32 s97, s97, 1")
        a("s_cmp_lg_u32 s97, 0")
        a(f"s_cbranch_scc1 {name}")
    WO_OFF = [(S_X, "shl", 19), (S_KQ, "shl", 17), (S_CB, "shl", 7)]

    a(f"s_cmp_eq_u32 {S_B}, 0")
    a("s_cbranch_scc1 L_ld_A")
    a("s_waitcnt vmcnt(8)")
    lc_write(1, F_XC)
    a("s_waitcnt vmcnt(0)")
    lc_write(KB_B)
    spin_lds(F_EC, 4, "v10", "v12")
    spin_lds(F_3, 2, "v10", "v12", sleep=False)
    stamp(2)
    a(f"s_mov_b32 {SLC}, {KB_B - (D - 4)}")
    a(f"s_mov_b32 {SOFF}, s98")
    seg4("L_ld_kB", ["v26", "v27", "v28", "v29"], 52, 16, L_K)
    a(f"s_mov_b32 {SOFF}, s98")
    seg4("L_ld_vB", ["v30", "v30", "v31", "v31"], 56, 16, L_V)
    stamp(3)
    sexpr(SOFF, WO_OFF)
    a(f"ds_read_b32 v12, v10 offset:{F_KC}")
    a("s_waitcnt lgkmcnt(0)")
    a("v_readfirstlane_b32 s91, v12")
    a("s_cmp_ge_i32 s91, 4")
    a("s_cbranch_scc0 L_ld_Bslow")
    seg("L_ld_woB", ["v24", "v25"], 60, 8192, 8, L_WO)
    drain(KB_B + 144, [k for k in (48, 40, 32, 24, 16) if k < D + 12])
    stamp(4)
    a("s_branch L_ld_fin")
    a.label("L_ld_Bslow")
    drain(KB_B + 128, [k for k in (32, 24, 16, 8) if k < D - 4] + [0])
    stamp(4)
    spin_lds(F_KC, 4, "v10", "v12")
    seg("L_ld_woB2", ["v24", "v25"], 60, 8192, 8, L_WO)
    a.label("L_ld_fin")
    a("s_waitcnt vmcnt(0)")
    lc_write(1, F_WOL)
    stamp(5)
    dump_stamps(6)
    a("s_endpgm")
    a.label("L_ld_A")
    a("s_waitcnt vmcnt(0)")
    lc_write(1, F_XC)
    a(f"s_mov_b32 {SLC}, {-(D - 4)}")
    a(f"s_mov_b32 {SOFF}, s98")
    seg4("L_ld_kA", ["v26", "v27", "v28", "v29"], 52, 16, L_K)
    stamp(2)
    a(f"s_mov_b32 {SOFF}, s98")
    seg4("L_ld_vA", ["v30", "v30", "v31", "v31"], 56, 16, L_V)
    stamp(3)
    unit_voffs(pitch=6144, d0="v20", d1="v21")
    a(f"s_and_b32 s90, {S_SPL}, 3")
    a(f"s_mul_i32 {SOFF}, s90, {128*6144}")
    a(f"s_lshr_b32 s90, {S_SPL}, 2")
    a(f"s_lshl_b32 s94, {S_X}, 2")
    a("s_add_u32 s90, s90, s94")
    a("s_add_u32 s90, s90, 16")
    a("s_lshl_b32 s90, s90, 7")
    a(f"s_add_u32 {SOFF}, {SOFF}, s90")
    seg("L_ld_mr", ["v20", "v21"], 44, 8*6144, 8, L_MR)
    drain(144, [k for k in (48, 40, 32, 24, 16) if k < D + 12])
    stamp(4)
    a("s_waitcnt vmcnt(0)")
    lc_write(1, F_MRL)
    spin_lds(F_KC, 4, "v10", "v12")
    sexpr(SOFF, WO_OFF)
    seg("L_ld_woA", ["v24", "v25"], 60, 8192, 8, L_WO)
    a("s_branch L_ld_fin")

    a.label("L_worker")
    a(f"s_cmp_lg_u32 {S_W}, 4")
    a("s_cbranch_scc1 L_wk2")
    a("v_mov_b32 v10, 0")
    for r in range(12, 16): a(f"v_mov_b32 v{r}, 0")
    a("v_lshlrev_b32 v1, 2, v0")
    a("v_lshlrev_b32 v2, 4, v0")
    a("ds_write_b32 v1, v10")
    a(f"ds_write_b128 v2, v[12:15] offset:{L_ZERO}")
    if cfg.local == 1:
        a("v_mov_b32 v11, 1")
        a(f"ds_write_b32 v10, v11 offset:{F_LM}")
    a.label("L_wk2")
    a("v_mov_b32 v2, 0")
    a("s_waitcnt lgkmcnt(0)")
    srd(12, 42, W_USED)
    a(f"buffer_load_dword v3, v2, {WSRD}, 0 offen sc1")
    a(f"s_cmp_lg_u32 {S_W}, 7")
    a("s_cbranch_scc1 L_wk3")
    if cfg.local == 2:
        srd(60, 40, 256)
        a("s_getreg_b32 s90, hwreg(HW_REG_XCC_ID)")
        a("s_and_b32 s90, s90, 7")
        a("s_mul_i32 s90, s90, 6")
        a("s_lshl_b64 s[26:27], 1, s90")
        a(f"s_lshl_b32 s91, {S_X}, 5")
        a("s_add_u32 s91, s91, 8")
        a("v_mov_b32 v18, s91")
        a("v_mov_b32 v16, s26")
        a("v_mov_b32 v17, s27")
        a("s_mov_b64 exec, 1")
        a("buffer_atomic_add_x2 v[16:17], v18, s[60:63], 0 offen sc1")
        a("s_mov_b64 exec, -1")
    if cfg.touch:
        sexpr("s90", [(S_B, "shl", 26), (S_X, "shl", 23), (S_SPL, "shl", 16)], 28672*256)
        a("s_load_dword s78, s[18:19], s90")
        a("s_load_dword s79, s[20:21], s90")
        a(f"s_lshr_b32 s91, {S_SPL}, 2")
        a("s_lshl_b32 s91, s91, 20")
        a("s_load_dword s80, s[22:23], s91")
        sexpr("s91", [(S_X, "shl", 19), (S_KQ, "shl", 17)])
        a("s_load_dword s81, s[24:25], s91")
        a(f"s_mul_i32 s91, {S_KQ}, {128*3584}")
        a("s_load_dword s82, s[28:29], s91")
        a("s_load_dword s83, s[30:31], s91")
        a(f"s_mul_i32 s91, {S_X}, {224*1024}")
        a("s_load_dword s84, s[32:33], s91")
        a("s_load_dword s85, s[38:39], 0")
    a.label("L_wk3")
    a("s_barrier")
    a(f"s_cmp_ge_u32 {S_W}, 4")
    a("s_cbranch_scc1 L_gwave")

    a.label("L_mwave")
    srd(56, 22, 512*4096*2)
    a("v_lshrrev_b32 v1, 4, v0")
    a("v_and_b32 v2, 15, v0")
    a("v_mov_b32 v4, 1")
    a("v_lshlrev_b32 v22, 1, v1")
    a("v_xor_b32 v22, v2, v22")
    a("v_lshlrev_b32 v22, 4, v22")
    a("v_lshl_add_u32 v26, v1, 13, v22")
    a("v_xor_b32 v27, 0x80, v26")
    a(f"s_lshr_b32 s90, {S_SPL}, 2")
    a(f"s_and_b32 s91, {S_SPL}, 3")
    sexpr("s96", [("s90", "shl", 20), (S_X, "shl", 10), ("s91", "shl", 8), (S_W, "shl", 18)])
    a("v_bfe_u32 v6, v2, 2, 1")
    a(f"v_mul_u32_u24 v6, {APITCH}, v6")
    a("v_lshl_add_u32 v6, v1, 4, v6")
    a("v_bfe_u32 v16, v0, 2, 2")
    a("v_and_b32 v17, 3, v0")
    a("v_lshl_add_u32 v18, v1, 3, v16")
    a("v_lshrrev_b32 v19, 1, v17")
    a("v_and_b32 v20, 1, v17")
    a("v_and_b32 v21, 1, v1")
    a("v_lshrrev_b32 v22, 1, v16")
    a("v_lshl_or_b32 v22, v21, 1, v22")
    a("v_lshlrev_b32 v22, 1, v22")
    a(f"s_lshl_b32 s90, {S_W}, 1")
    a("v_add_u32 v23, s90, v19")
    a("v_xor_b32 v23, v23, v22")
    a("v_lshlrev_b32 v7, 7, v18")
    a("v_lshl_add_u32 v7, v23, 4, v7")
    a("v_lshl_add_u32 v7, v20, 3, v7")
    a(f"s_and_b32 s90, {S_W}, 1")
    a("s_lshl_b32 s90, s90, 1")
    a("v_add_u32 v23, s90, v19")
    a("v_lshlrev_b32 v22, 1, v21")
    a("v_xor_b32 v23, v23, v22")
    a("v_lshlrev_b32 v12, 6, v18")
    a("v_lshl_add_u32 v12, v23, 4, v12")
    a("v_lshl_add_u32 v12, v20, 3, v12")
    a("v_lshl_or_b32 v22, v21, 2, v16")
    a("v_lshlrev_b32 v22, 1, v22")
    a(f"s_lshl_b32 s90, {S_W}, 2")
    a("v_add_u32 v23, s90, v19")
    a("v_xor_b32 v24, v23, v22")
    a("v_lshlrev_b32 v25, 8, v18")
    a("v_lshl_add_u32 v25, v20, 3, v25")
    a("v_lshl_add_u32 v13, v24, 4, v25")
    a("v_add_u32 v23, 2, v23")
    a("v_xor_b32 v24, v23, v22")
    a("v_lshl_add_u32 v14, v24, 4, v25")
    a("v_bfe_u32 v8, v0, 4, 1")
    a("v_lshlrev_b32 v9, 3, v2")
    O_MOD, O_Q, O_O, O_A4, O_GU, O_DN, O_ST, T_K, T_V = "s16", "s17", "s18", "s19", "s20", "s21", "s24", "s25", "s26"
    a(f"s_mul_i32 {T_K}, {S_B}, {KB_B}")
    a(f"s_add_u32 {T_V}, {T_K}, 128")
    a(f"s_add_u32 {T_K}, {T_K}, 64")
    sexpr(O_O, [(S_X, "shl", 16), (S_B, "shl", 13), (S_SPL, "shl", 9), (S_W, "shl", 7)], W_O)
    sexpr(O_A4, [(S_CB, "shl", 14), (S_W, "shl", 12), (S_X, "shl", 8), (S_KQ, "shl", 6)], W_A4)
    a(f"s_add_u32 {O_DN}, {O_A4}, {W_DN - W_A4}")
    a(f"s_lshr_b32 s90, {S_W}, 1")
    a(f"s_and_b32 s91, {S_W}, 1")
    sexpr(O_GU, [(S_X, "shl", 15), ("s90", "shl", 14), (S_KQ, "shl", 11), (S_CB, "shl", 8), ("s91", "shl", 7)], W_GU)
    sexpr(O_ST, [(S_X, "shl", 11), (S_B, "shl", 10), (S_SPL, "shl", 4)], W_ST)
    a(f"s_and_b32 s90, {S_SPL}, 3")
    a(f"s_lshr_b32 s91, {S_SPL}, 2")
    sexpr(O_Q, [(S_X, "shl", 15), ("s90", "shl", 12), ("s91", "shl", 10), (S_W, "shl", 8)], W_Q)
    a(f"s_cmp_eq_u32 {S_B}, 0")
    a("s_cbranch_scc1 L_m_offA")
    a(f"s_lshr_b32 s90, {S_X}, 2")
    a(f"s_and_b32 s91, {S_X}, 3")
    a(f"s_lshr_b32 s97, {S_SPL}, 2")
    a(f"s_and_b32 s98, {S_SPL}, 3")
    a(f"s_and_b32 s99, {S_W}, 1")
    sexpr(O_MOD, [("s90", "shl", 15), ("s91", "shl", 12), ("s98", "shl", 10), ("s97", "shl", 8), ("s99", "shl", 7)], W_MOD)
    a("s_branch L_m_offE")
    a.label("L_m_offA")
    a(f"s_lshr_b32 s90, {S_X}, 1")
    a(f"s_and_b32 s91, {S_X}, 1")
    a("s_lshl_b32 s91, s91, 2")
    a(f"s_lshr_b32 s97, {S_SPL}, 2")
    a("s_add_u32 s91, s91, s97")
    a("s_lshr_b32 s97, s91, 1")
    a("s_and_b32 s91, s91, 1")
    a(f"s_and_b32 s98, {S_SPL}, 3")
    sexpr(O_MOD, [("s90", "shl", 15), ("s97", "shl", 12), ("s98", "shl", 10), ("s91", "shl", 9), (S_W, "shl", 7)], W_MOD + 2*32768)
    a.label("L_m_offE")
    a("s_waitcnt vmcnt(0)")
    get_tag()
    a("v_mov_b32 v3, 0")
    stamp(1)

    def loadB(vaddr, nk, kstride, hoff, base=16):
        for t in range(nk):
            a(f"ds_read_b64_tr_b16 v[{base+4*t}:{base+4*t+1}], {vaddr} offset:{t*kstride}")
            a(f"ds_read_b64_tr_b16 v[{base+4*t+2}:{base+4*t+3}], {vaddr} offset:{t*kstride+hoff}")

    def gemv(act_off, nk, bbase=16, second=None):
        for t in range(nk):
            a(f"ds_read_b128 v[{32+4*t}:{35+4*t}], v6 offset:{act_off+64*t}")
        for t in range(nk):
            a(f"s_waitcnt lgkmcnt({nk-1-t})")
            c = "0" if t == 0 else "v[48:51]"
            a(f"v_mfma_f32_16x16x32_bf16 v[48:51], v[{32+4*t}:{35+4*t}], v[{bbase+4*t}:{bbase+4*t+3}], {c}")
            if second is not None:
                c = "0" if t == 0 else "v[56:59]"
                a(f"v_mfma_f32_16x16x32_bf16 v[56:59], v[{32+4*t}:{35+4*t}], v[{second+4*t}:{second+4*t+3}], {c}")

    def publish(shift, soff, local=False, second=False):
        a(f"v_lshl_add_u32 v54, v8, {shift}, v9")
        a(f"v_mov_b32 v53, {S_TAG}")
        if second: a(f"v_mov_b32 v61, {S_TAG}")
        a("v_mov_b32 v52, v48")
        if second: a("v_mov_b32 v60, v56")
        a("s_mov_b32 exec_hi, 0")
        t1 = f"buffer_store_dwordx2 v[52:53], v54, {WSRD}, {soff} offen"
        t2 = f"buffer_store_dwordx2 v[60:61], v54, {WSRD}, {soff} offen offset:128"
        if local:
            store_loc(t1)
            if second: store_loc(t2)
        else:
            a(t1 + " sc1")
            if second: a(t2 + " sc1")
        a("s_mov_b32 exec_hi, -1")

    def publish_pair(soff):
        a("v_lshlrev_b32 v54, 11, v8")
        a("v_lshl_add_u32 v54, v2, 2, v54")
        a(f"v_mov_b32 v53, {S_TAG}")
        a("v_mov_b32_dpp v52, v48 quad_perm:[1,0,3,2] row_mask:0xf bank_mask:0xf")
        a("s_mov_b32 exec_lo, 0x55555555")
        a("s_mov_b32 exec_hi, 0")
        a("v_cvt_pk_bf16_f32 v52, v48, v52")
        a(f"buffer_store_dwordx2 v[52:53], v54, {WSRD}, {soff} offen sc1")
        a("s_mov_b64 exec, -1")

    a(f"s_cmp_eq_u32 {S_B}, 0")
    a("s_cbranch_scc1 L_m_s3")
    a(f"s_lshl_b32 s90, {S_W}, 13")
    a(f"s_add_u32 m0, s90, {L_WQ}")
    a(f"s_cmp_lt_u32 {S_W}, 2")
    a("s_cbranch_scc1 L_m_s1")
    def wq_issue():
        for i in range(8):
            a(f"buffer_load_dwordx4 {'v26' if (i & 2) == 0 else 'v27'}, s[56:59], s96 offen nt lds")
            if i < 7:
                a(f"s_add_u32 s96, s96, {4*8192}")
                a("s_add_u32 m0, m0, 0x400")
    wq_issue()
    a("s_branch L_m_s2")
    a.label("L_m_s1")
    wq_issue()
    spin_lds(F_1, 2, "v3", "v5", sleep=False)
    spin_lds(F_LC, KB_B, "v3", "v5", sleep=False)
    a(f"v_add_u32 v10, {L_MODB}, v12")
    loadB("v10", 4, 2048, 256)
    gemv(L_ACT1, 4)
    publish(14, O_MOD)
    arrive(F_PM, "v3", "v4")
    stamp(2)
    a.label("L_m_s2")
    a("s_waitcnt vmcnt(0)")
    arrive(F_WQ, "v3", "v4")
    spin_lds(F_WQ, 4, "v3", "v5", sleep=False)
    a(f"v_add_u32 v10, {L_WQ}, v13")
    a(f"v_add_u32 v11, {L_WQ}, v14")
    loadB("v10", 4, 8192, 1024, base=16)
    loadB("v11", 4, 8192, 1024, base=64)
    get_mode("v3", "v5")
    a("s_waitcnt lgkmcnt(0)")
    arrive(F_EC, "v3", "v4")
    spin_lds(F_2, 2, "v3", "v5", sleep=False)
    gemv(L_ACT2, 4, bbase=16, second=64)
    publish(14, O_Q, local=True, second=True)
    arrive(F_PQ, "v3", "v4")
    stamp(3)
    a.label("L_m_s3")
    get_mode("v3", "v5")
    a("v_xor_b32 v10, v1, v2")
    a("v_lshlrev_b32 v10, 4, v10")
    a("v_lshl_add_u32 v10, v2, 8, v10")
    a(f"s_lshl_b32 s90, {S_W}, 14")
    a(f"s_add_u32 s90, s90, {L_K}")
    a("v_add_u32 v56, s90, v10")
    a("v_xor_b32 v57, 64, v56")
    a("v_xor_b32 v58, 0x80, v56")
    a("v_xor_b32 v59, 0xc0, v56")
    a("v_and_b32 v10, 3, v2")
    a(f"v_mul_u32_u24 v10, {APITCH}, v10")
    a("v_lshl_add_u32 v10, v1, 4, v10")
    a(f"v_add_u32 v10, {L_Q}, v10")
    a("v_lshlrev_b32 v11, 4, v1")
    a(f"v_add_u32 v11, {L_ZERO}, v11")
    a("v_lshrrev_b32 v15, 2, v2")
    for tt in range(4):
        a(f"v_cmp_eq_u32 vcc, {tt}, v15")
        a(f"v_cndmask_b32 v{60+tt}, v11, v10, vcc")
    spin_lds(F_3, 2, "v3", "v5")
    spin_lds(F_LC, T_K, "v3", "v5", sleep=False)
    stamp(4)
    def qk_reads(tt, base):
        for t in range(4):
            a(f"ds_read_b128 v[{base+4*t}:{base+4*t+3}], v{60+tt} offset:{64*t}")
            a(f"ds_read_b128 v[{base+16+4*t}:{base+16+4*t+3}], v{56+t} offset:{4096*tt}")
    bases = [16, 68, 16, 68]
    qk_reads(0, bases[0])
    for tt in range(4):
        if tt < 3:
            qk_reads(tt + 1, bases[tt + 1])
            a("s_waitcnt lgkmcnt(8)")
        else:
            a("s_waitcnt lgkmcnt(0)")
        b = bases[tt]
        for t in range(4):
            c = "0" if (tt == 0 and t == 0) else "v[48:51]"
            a(f"v_mfma_f32_16x16x32_bf16 v[48:51], v[{b+4*t}:{b+4*t+3}], v[{b+16+4*t}:{b+16+4*t+3}], {c}")
    arrive(F_KC, "v3", "v4")
    a(f"s_mov_b32 s94, {SCALE:#x}")
    bf16r2("v16", "v17", "v48", "v49", "v20")
    bf16r2("v18", "v19", "v50", "v51", "v21")
    for r in range(4): a(f"v_mul_f32 v{16+r}, s94, v{16+r}")
    bf16r2("v16", "v17", "v16", "v17", "v20")
    bf16r2("v18", "v19", "v18", "v19", "v21")
    for r in range(4): a(f"v_mov_b32 v{24+r}, v{16+r}")
    allreduce(["v24", "v25", "v26", "v27"], "v_max_f32", ["v28", "v29", "v30", "v31"], FULL)
    a(f"s_lshl_b32 s90, {S_W}, 4")
    a("v_mov_b32 v10, s90")
    a("s_mov_b64 s[92:93], exec")
    a("s_mov_b64 exec, 1")
    a(f"ds_write_b128 v10, v[24:27] offset:{L_MX}")
    a(f"ds_add_u32 v3, v4 offset:{F_MB1}")
    a("s_mov_b64 exec, s[92:93]")
    spin_lds(F_MB1, 4, "v3", "v5", sleep=False)
    for w in range(4):
        a(f"ds_read_b128 v[{32+4*w}:{35+4*w}], v3 offset:{L_MX+16*w}")
    a("s_waitcnt lgkmcnt(0)")
    for r in range(4):
        a(f"v_max_f32 v{24+r}, v{32+r}, v{36+r}")
        a(f"v_max_f32 v{28+r}, v{40+r}, v{44+r}")
    for r in range(4):
        a(f"v_max_f32 v{24+r}, v{24+r}, v{28+r}")
    a(f"s_mov_b32 s94, {LOG2E:#x}")
    for r in range(4): a(f"v_sub_f32 v{16+r}, v{16+r}, v{24+r}")
    for r in range(4): a(f"v_mul_f32 v{16+r}, s94, v{16+r}")
    for r in range(4): a(f"v_exp_f32 v{16+r}, v{16+r}")
    a("v_cvt_pk_bf16_f32 v20, v16, v17")
    a("v_cvt_pk_bf16_f32 v21, v18, v19")
    a(f"s_lshl_b32 s90, {S_W}, 7")
    a(f"s_add_u32 s90, s90, {L_P}")
    a("v_lshl_add_u32 v10, v0, 1, s90")
    a("ds_write_b16 v10, v20")
    a(f"ds_write_b16_d16_hi v10, v20 offset:{PPITCH}")
    a(f"ds_write_b16 v10, v21 offset:{2*PPITCH}")
    a(f"ds_write_b16_d16_hi v10, v21 offset:{3*PPITCH}")
    allreduce(["v16", "v17", "v18", "v19"], "v_add_f32", ["v28", "v29", "v30", "v31"], FULL)
    a(f"s_lshl_b32 s90, {S_W}, 4")
    a("v_mov_b32 v10, s90")
    a("s_mov_b64 s[92:93], exec")
    a("s_mov_b64 exec, 1")
    a(f"ds_write_b128 v10, v[16:19] offset:{L_LS}")
    a(f"ds_add_u32 v3, v4 offset:{F_MB2}")
    a("s_mov_b64 exec, s[92:93]")
    spin_lds(F_MB2, 4, "v3", "v5", sleep=False)
    a(f"s_cmp_lg_u32 {S_W}, 0")
    a("s_cbranch_scc1 L_m_pv")
    a("v_lshlrev_b32 v10, 2, v0")
    a("s_mov_b64 exec, 15")
    for w in range(4):
        a(f"ds_read_b32 v{16+w}, v10 offset:{L_LS+16*w}")
        a(f"ds_read_b32 v{20+w}, v10 offset:{L_MX+16*w}")
    a("s_waitcnt lgkmcnt(0)")
    a("v_add_f32 v16, v16, v17")
    a("v_add_f32 v18, v18, v19")
    a("v_max_f32 v20, v20, v21")
    a("v_max_f32 v22, v22, v23")
    a("v_add_f32 v26, v16, v18")
    a("v_max_f32 v24, v20, v22")
    a(f"v_mov_b32 v25, {S_TAG}")
    a(f"v_mov_b32 v27, {S_TAG}")
    a("v_lshlrev_b32 v10, 8, v0")
    store_loc(f"buffer_store_dwordx4 v[24:27], v10, {WSRD}, {O_ST} offen")
    a("s_mov_b64 exec, -1")
    a.label("L_m_pv")
    stamp(5)
    a("v_lshrrev_b32 v10, 2, v2")
    a(f"v_mul_u32_u24 v10, {PPITCH}, v10")
    a("v_lshl_add_u32 v10, v1, 4, v10")
    a(f"v_add_u32 v60, {L_P}, v10")
    a(f"v_add_u32 v61, {L_V}, v13")
    a(f"v_add_u32 v62, {L_V}, v14")
    a("v_lshl_add_u32 v63, v1, 14, v9")
    a(f"v_mov_b32 v65, {S_TAG}")
    for r in range(8): a(f"v_mov_b32 v{48+r}, 0")
    a(f"s_add_u32 s95, {T_K}, 8")
    a("s_mov_b32 s96, -1000")
    a.label("L_pv_loop")
    a("s_cmp_ge_i32 s96, s95")
    a("s_cbranch_scc1 L_pv_go")
    a.label("L_pv_spin")
    a(f"ds_read_b32 v5, v3 offset:{F_LC}")
    a("s_waitcnt lgkmcnt(0)")
    a("v_readfirstlane_b32 s96, v5")
    a("s_cmp_ge_i32 s96, s95")
    a("s_cbranch_scc1 L_pv_go")
    timeout()
    a("s_branch L_pv_spin")
    a.label("L_pv_go")
    a("ds_read_b128 v[16:19], v60")
    a("ds_read_b64_tr_b16 v[20:21], v61")
    a("ds_read_b64_tr_b16 v[22:23], v61 offset:1024")
    a("ds_read_b64_tr_b16 v[24:25], v62")
    a("ds_read_b64_tr_b16 v[26:27], v62 offset:1024")
    a("v_add_u32 v60, 64, v60")
    a("v_add_u32 v61, 0x2000, v61")
    a("v_add_u32 v62, 0x2000, v62")
    a("s_add_u32 s95, s95, 8")
    a("s_waitcnt lgkmcnt(2)")
    a("v_mfma_f32_16x16x32_bf16 v[48:51], v[16:19], v[20:23], v[48:51]")
    a("s_waitcnt lgkmcnt(0)")
    a("v_mfma_f32_16x16x32_bf16 v[52:55], v[16:19], v[24:27], v[52:55]")
    a(f"s_cmp_le_i32 s95, {T_V}")
    a("s_cbranch_scc1 L_pv_loop")
    stamp(6)
    a("s_nop 4")
    a("v_cvt_pk_bf16_f32 v64, v48, v52")
    store_loc(f"buffer_store_dwordx2 v[64:65], v63, {WSRD}, {O_O} offen")
    arrive(F_PO, "v3", "v4")
    stamp(7)
    a(f"s_cmp_lg_u32 {S_B}, 0")
    a("s_cbranch_scc1 L_m_s4")
    spin_lds(F_MRL, 1, "v3", "v5")
    a(f"v_add_u32 v10, {L_MR}, v7")
    loadB("v10", 4, 4096, 512)
    gemv(L_ACT1, 4)
    publish(14, O_MOD)
    a.label("L_m_s4")
    spin_lds(F_WOL, 1, "v3", "v5", sleep=False)
    a(f"v_add_u32 v10, {L_WO}, v7")
    loadB("v10", 4, 4096, 512)
    a("s_waitcnt lgkmcnt(0)")
    a("s_barrier")
    gemv(L_ACT4, 4)
    publish_pair(O_A4)
    arrive(F_PA, "v3", "v4")
    stamp(8)
    spin_lds(F_LATE, 1, "v3", "v5")
    a(f"v_add_u32 v10, {L_DN}, v7")
    loadB("v10", 2, 4096, 512, base=64)
    a(f"s_lshr_b32 s90, {S_W}, 1")
    a("s_lshl_b32 s90, s90, 13")
    a(f"s_add_u32 s90, s90, {L_G}")
    a("v_add_u32 v11, s90, v12")
    loadB("v11", 4, 2048, 256)
    a("s_waitcnt lgkmcnt(0)")
    a("s_barrier")
    a(f"s_cmp_eq_u32 {S_CB}, 7")
    a("s_cbranch_scc1 L_m_s7")
    gemv(L_ACT6, 4)
    publish(13, O_GU, local=True)
    a.label("L_m_s7")
    arrive(F_PG, "v3", "v4")
    stamp(9)
    a("s_barrier")
    gemv(L_ACT7, 2, bbase=64)
    publish_pair(O_DN)
    arrive(F_PD, "v3", "v4")
    stamp(10)
    dump_stamps(11)
    a("s_endpgm")

    a.label("L_gwave")
    a(f"s_cmp_eq_u32 {S_W}, 4")
    a("s_cbranch_scc1 L_slice")
    a(f"s_cmp_eq_u32 {S_W}, 7")
    a("s_cbranch_scc1 L_aux")

    SB = "s97"
    a(f"s_sub_u32 {SB}, {S_W}, 5")
    a("v_lshlrev_b32 v1, 4, v0")
    a("v_lshlrev_b32 v2, 2, v0")
    a(f"s_lshl_b32 s90, {SB}, 10")
    a(f"s_and_b32 s94, {S_SPL}, 3")
    a("s_lshl_b32 s94, s94, 8")
    a("s_add_u32 s94, s94, s90")
    a("v_add_u32 v16, s94, v2")
    a("v_add_u32 v17, s90, v1")
    a(f"s_lshr_b32 s94, {S_SPL}, 2")
    a("s_lshl_b32 s94, s94, 8")
    a("s_add_u32 s94, s94, s90")
    a("v_add_u32 v18, s94, v2")
    a("v_mov_b32 v10, 1")
    a(f"s_mul_i32 s98, {SB}, {APITCH}")
    a("v_add_u32 v11, s98, v2")
    a("v_mov_b32 v19, 0")
    spin_lds(F_XC, 1, "v19", "v20", sleep=False)
    a(f"ds_read_b32 v9, v16 offset:{L_C}")
    a(f"ds_read_b128 v[4:7], v17 offset:{L_X}")
    a(f"ds_read_b32 v8, v18 offset:{L_X}")
    a("s_waitcnt lgkmcnt(2)")
    stamp(1)
    a("v_lshlrev_b32 v12, 16, v9")
    a("v_and_b32 v13, 0xffff0000, v9")
    a(f"s_mov_b32 s94, {LOG2E:#x}")
    for r in (12, 13): a(f"v_mul_f32 v{r+2}, s94, v{r}")
    for r in (12, 13): a(f"v_exp_f32 v{r+2}, -v{r+2}")
    for r in (12, 13): a(f"v_add_f32 v{r+2}, 1.0, v{r+2}")
    for r in (12, 13): a(f"v_rcp_f32 v{r+2}, v{r+2}")
    for r in (12, 13): a(f"v_mul_f32 v{r}, v{r}, v{r+2}")
    a("v_cvt_pk_bf16_f32 v12, v12, v13")
    a(f"ds_write_b32 v11, v12 offset:{L_ACT1}")
    arrive(F_1, "v19", "v10")
    a("s_waitcnt vmcnt(0) lgkmcnt(0)")
    get_tag()
    a("v_mov_b32 v3, 0")

    def ln_finish(mean, var, x0, x1, tmp):
        bf16r2(mean, var, mean, var, tmp)
        a(f"s_mov_b32 s94, {EPS:#x}")
        a(f"v_add_f32 {var}, s94, {var}")
        bf16r1(var, var)
        a(f"v_sqrt_f32 {var}, {var}")
        a(f"v_sub_f32 {x0}, {x0}, {mean}")
        a(f"v_sub_f32 {x1}, {x1}, {mean}")
        bf16r1(var, var)
        a(f"v_rcp_f32 {var}, {var}")
        bf16r2(x0, x1, x0, x1, tmp)
        a(f"v_mul_f32 {x0}, {x0}, {var}")
        a(f"v_mul_f32 {x1}, {x1}, {var}")
        bf16r2(x0, x1, x0, x1, tmp)

    def quarter_gather(chunkA, chunkB, qreg, pre=None, sample=False):
        for (ch, sreg) in ((chunkA, "s90"), (chunkB, "s99")):
            sexpr(sreg, [(SB, "shl", 14), (qreg, "shl", 12)], W_MOD + ch*32768)
        loads = []; tags = []
        for i in range(4):
            loads.append(f"buffer_load_dwordx4 v[{16+4*i}:{19+4*i}], v1, {WSRD}, s90 offen offset:{1024*i} sc1")
            loads.append(f"buffer_load_dwordx4 v[{32+4*i}:{35+4*i}], v1, {WSRD}, s99 offen offset:{1024*i} sc1")
            tags += [f"v{17+4*i}", f"v{19+4*i}", f"v{33+4*i}", f"v{35+4*i}"]
        if pre: pre()
        poll(loads, tags, "v50", sample=sample)
        for (base, d0, d1) in ((16, "v14", "v15"), (32, "v48", "v49")):
            a(f"v_add_f32 {d0}, v{base}, v{base+4}")
            a(f"v_add_f32 {d1}, v{base+2}, v{base+6}")
            a(f"v_add_f32 v50, v{base+8}, v{base+12}")
            a(f"v_add_f32 v51, v{base+10}, v{base+14}")
            a(f"v_add_f32 {d0}, {d0}, v50")
            a(f"v_add_f32 {d1}, {d1}, v51")
            bf16r2(d0, d1, d0, d1, "v50")

    def modulate(x0, x1, sc0, sc1, sh0, sh1, dst, tmp):
        a(f"v_mul_f32 {x0}, {x0}, {sc0}")
        a(f"v_mul_f32 {x1}, {x1}, {sc1}")
        bf16r2(x0, x1, x0, x1, tmp)
        a(f"v_add_f32 {x0}, {x0}, {sh0}")
        a(f"v_add_f32 {x1}, {x1}, {sh1}")
        a(f"v_cvt_pk_bf16_f32 {dst}, {x0}, {x1}")

    a(f"s_cmp_eq_u32 {S_B}, 0")
    a("s_cbranch_scc1 L_q_qg")
    for i in range(4):
        a(f"v_lshlrev_b32 v{16+2*i}, 16, v{4+i}")
        a(f"v_and_b32 v{17+2*i}, 0xffff0000, v{4+i}")
    a("v_add_f32 v24, v16, v17")
    a("v_add_f32 v25, v18, v19")
    a("v_add_f32 v26, v20, v21")
    a("v_add_f32 v27, v22, v23")
    a("v_add_f32 v24, v24, v25")
    a("v_add_f32 v26, v26, v27")
    a("v_add_f32 v24, v24, v26")
    allreduce(["v24"], "v_add_f32", ["v28"], FULL)
    a(f"s_mov_b32 s94, {INV512:#x}")
    a("v_mul_f32 v24, s94, v24")
    for i in range(8): a(f"v_sub_f32 v{16+i}, v{16+i}, v24")
    a("v_mul_f32 v25, v16, v16")
    for i in range(1, 8): a(f"v_fmac_f32 v25, v{16+i}, v{16+i}")
    allreduce(["v25"], "v_add_f32", ["v28"], FULL)
    a("v_mul_f32 v25, s94, v25")
    a("v_lshlrev_b32 v12, 16, v8")
    a("v_and_b32 v13, 0xffff0000, v8")
    ln_finish("v24", "v25", "v12", "v13", "v28")
    a(f"s_lshr_b32 s100, {S_SPL}, 2")
    quarter_gather(0, 1, "s100", pre=lambda: after_own(F_PM, 2, "v3", "v50", cfg.d_h))
    a("v_add_f32 v48, 1.0, v48")
    a("v_add_f32 v49, 1.0, v49")
    bf16r2("v48", "v49", "v48", "v49", "v50")
    modulate("v12", "v13", "v48", "v49", "v14", "v15", "v16", "v50")
    a(f"ds_write_b32 v11, v16 offset:{L_ACT2}")
    arrive(F_2, "v3", "v10")
    stamp(2)
    a.label("L_q_qg")
    sexpr("s90", [(S_X, "shl", 15), (S_B, "shl", 14), (SB, "shl", 13)], W_Q)
    a("s_add_u32 s99, s90, 4096")
    a(f"s_mul_i32 s100, {SB}, {2*APITCH}")
    a("v_add_u32 v54, s100, v2")
    loads = []; tags = []
    for i in range(4):
        loads.append(f"buffer_load_dwordx4 v[{16+4*i}:{19+4*i}], v1, {WSRD}, s90 offen offset:{1024*i} sc1")
        loads.append(f"buffer_load_dwordx4 v[{32+4*i}:{35+4*i}], v1, {WSRD}, s99 offen offset:{1024*i} sc1")
        tags += [f"v{17+4*i}", f"v{19+4*i}", f"v{33+4*i}", f"v{35+4*i}"]
    a(f"s_cmp_eq_u32 {S_B}, 0")
    a("s_cbranch_scc1 L_q_qA")
    after_own(F_PQ, 4, "v3", "v50", cfg.d_q)
    poll(loads, tags, "v50")
    a("s_branch L_q_qE")
    a.label("L_q_qA")
    poll(loads, tags, "v50", sample=True, sleep=4)
    a.label("L_q_qE")
    for (base, hh) in ((16, 0), (32, 1)):
        a(f"v_add_f32 v48, v{base}, v{base+4}")
        a(f"v_add_f32 v49, v{base+2}, v{base+6}")
        a(f"v_add_f32 v50, v{base+8}, v{base+12}")
        a(f"v_add_f32 v51, v{base+10}, v{base+14}")
        a("v_add_f32 v48, v48, v50")
        a("v_add_f32 v49, v49, v51")
        a(f"v_cvt_pk_bf16_f32 v{52+hh}, v48, v49")
    a(f"ds_write_b32 v54, v52 offset:{L_Q}")
    a(f"ds_write_b32 v54, v53 offset:{L_Q+APITCH}")
    arrive(F_3, "v3", "v10")
    stamp(3)
    sexpr("s90", [(S_X, "shl", 16), (S_KQ, "shl", 14), (SB, "shl", 13)], W_O)
    a("s_add_u32 s99, s90, 4096")
    sexpr("s100", [(S_X, "shl", 11), (SB, "shl", 10), (S_KQ, "shl", 8)], W_ST)
    a("v_lshlrev_b32 v54, 3, v0")
    a("v_and_b32 v55, 15, v0")
    a("v_lshlrev_b32 v55, 4, v55")
    loads = [f"buffer_load_dwordx4 v[48:51], v55, {WSRD}, s100 offen sc1"]; tags = ["v49", "v51"]
    for i in range(16):
        sr = "s90" if i < 8 else "s99"
        loads.append(f"buffer_load_dwordx2 v[{16+2*i}:{17+2*i}], v54, {WSRD}, {sr} offen offset:{512*(i&7)} sc1")
        tags.append(f"v{17+2*i}")
    a("v_lshrrev_b32 v56, 4, v0")
    a("v_lshlrev_b32 v56, 6, v56")
    a("v_and_b32 v57, 15, v0")
    a("v_lshl_add_u32 v56, v57, 1, v56")
    a("v_add_u32 v56, s98, v56")
    after_own(F_PO, 4, "v3", "v52", cfg.d_r1)
    stamp(4)
    a(f"s_cmp_eq_u32 {S_B}, 0")
    a("s_cbranch_scc1 L_q_r1A")
    poll(loads, tags, "v52")
    a("s_branch L_q_r1E")
    a.label("L_q_r1A")
    poll(loads, tags, "v52", sample=True, sleep=1)
    a.label("L_q_r1E")
    stamp(10)
    a("v_mov_b32 v58, v48")
    allreduce(["v58"], "v_max_f32", [], ["x1", "x2", "x4", "x8"])
    a(f"s_mov_b32 s94, {LOG2E:#x}")
    a("v_sub_f32 v59, v48, v58")
    a("v_mul_f32 v59, s94, v59")
    a("v_exp_f32 v59, v59")
    a("s_nop 0")
    a("v_mul_f32 v60, v59, v50")
    allreduce(["v60"], "v_add_f32", [], ["x1", "x2", "x4", "x8"])
    a("v_rcp_f32 v60, v60")
    a("s_nop 0")
    a("v_mul_f32 v59, v59, v60")
    for i in range(16): a(f"v_readlane_b32 s{16+i}, v59, {i}")
    for i in range(16):
        a(f"v_lshlrev_b32 v{60 + (i&1)*2}, 16, v{16+2*i}")
        a(f"v_and_b32 v{61 + (i&1)*2}, 0xffff0000, v{16+2*i}")
        if i < 2:
            a(f"v_mul_f32 v{52+2*i - (0 if i == 0 else 0)}, s{16+i}, v{60 + (i&1)*2}") if False else None
        if i == 0:
            a("v_mul_f32 v52, s16, v60"); a("v_mul_f32 v53, s16, v61")
        elif i == 1:
            a("v_mul_f32 v48, s17, v62"); a("v_mul_f32 v49, s17, v63")
        elif i & 1 == 0:
            a(f"v_fmac_f32 v52, s{16+i}, v60"); a(f"v_fmac_f32 v53, s{16+i}, v61")
        else:
            a(f"v_fmac_f32 v48, s{16+i}, v62"); a(f"v_fmac_f32 v49, s{16+i}, v63")
    a("v_add_f32 v52, v52, v48")
    a("v_add_f32 v53, v53, v49")
    a("v_cvt_pk_bf16_f32 v52, v52, v53")
    a(f"ds_write_b16 v56, v52 offset:{L_ACT4}")
    a(f"ds_write_b16_d16_hi v56, v52 offset:{L_ACT4+32}")
    a("s_waitcnt lgkmcnt(0)")
    stamp(5)
    a("s_barrier")
    quarter_gather(3, 4, S_KQ)
    a("v_add_f32 v48, 1.0, v48")
    a("v_add_f32 v49, 1.0, v49")
    bf16r2("v56", "v57", "v48", "v49", "v50")
    a("v_mov_b32 v58, v14")
    a("v_mov_b32 v59, v15")
    sexpr("s99", [(S_X, "shl", 10), (SB, "shl", 9)], W_X1S)
    sexpr("s90", [(S_X, "shl", 12), (SB, "shl", 11), (S_KQ, "shl", 9)], W_X1P)
    a("v_lshlrev_b32 v16, 3, v0")
    a("v_and_b32 v17, 31, v0")
    a("v_lshlrev_b32 v17, 4, v17")
    after_own(F_PX, 1, "v3", "v50", cfg.d_x1)
    stamp(8)
    poll([f"buffer_load_dwordx4 v[24:27], v17, {WSRD}, s99 offen sc1",
          f"buffer_load_dwordx2 v[20:21], v16, {WSRD}, s90 offen sc1"], ["v21", "v25", "v27"], "v50")
    stamp(9)
    allreduce(["v24", "v26"], "v_add_f32", ["v28", "v29"], ["x1", "x2", "x4", "x8", "x16"])
    a(f"s_mov_b32 s94, {INV512:#x}")
    a("v_mul_f32 v24, s94, v24")
    a("v_mul_f32 v26, s94, v26")
    a("v_lshlrev_b32 v12, 16, v20")
    a("v_fma_f32 v26, -v24, v24, v26")
    a("v_and_b32 v13, 0xffff0000, v20")
    a("v_max_f32 v26, 0, v26")
    ln_finish("v24", "v26", "v12", "v13", "v30")
    modulate("v12", "v13", "v56", "v57", "v58", "v59", "v16", "v30")
    a(f"ds_write_b32 v11, v16 offset:{L_ACT6}")
    a(f"s_mul_i32 s94, {S_KQ}, 448")
    sexpr("s90", [(S_X, "shl", 15), (SB, "shl", 13), ("s94", "shl", 0)], W_GU, tmp="s99")
    a("s_add_u32 s94, s90, 4096")
    a("s_add_u32 s99, s90, 16384")
    a("s_add_u32 s100, s90, 20480")
    a("s_waitcnt lgkmcnt(0)")
    stamp(6)
    a("s_barrier")
    a("v_lshlrev_b32 v16, 3, v0")
    a("v_mov_b32 v40, 0")
    a("v_lshlrev_b32 v17, 1, v0")
    a("v_add_u32 v17, s98, v17")
    a("s_mov_b32 exec_lo, -1")
    a("s_mov_b32 exec_hi, 0x00ffffff")
    loads = []; tags = []
    for wh in range(2):
        for k6 in range(4):
            sr = [["s90", "s94"], ["s99", "s100"]][wh][k6 >> 1]
            rb = 20 + 8*wh + 2*k6
            loads.append(f"buffer_load_dwordx2 v[{rb}:{rb+1}], v16, {WSRD}, {sr} offen offset:{2048*(k6&1)} sc1")
            tags.append(f"v{rb+1}")
    after_own(F_PG, 4, "v3", "v50", cfg.d_gu)
    poll(loads, tags, "v50")
    a("v_add_f32 v36, v20, v22")
    a("v_add_f32 v37, v24, v26")
    a("v_add_f32 v38, v28, v30")
    a("v_add_f32 v39, v32, v34")
    a("v_add_f32 v36, v36, v37")
    a("v_add_f32 v38, v38, v39")
    bf16r2("v36", "v38", "v36", "v38", "v50")
    a("v_mul_f32 v36, v36, v38")
    a("v_cvt_pk_bf16_f32 v40, v36, v36")
    a("s_mov_b64 exec, -1")
    a(f"ds_write_b16 v17, v40 offset:{L_ACT7}")
    a("s_waitcnt lgkmcnt(0)")
    stamp(7)
    a("s_barrier")
    dump_stamps(11)
    a("s_endpgm")

    a.label("L_slice")
    srd(48, 38, 2048)
    a("v_and_b32 v1, 3, v0")
    a("v_lshlrev_b32 v7, 4, v0")
    a("v_mov_b32 v19, 0")
    a("v_lshlrev_b32 v2, 3, v1")
    a(f"s_lshl_b32 s90, {S_LOC}, 5")
    a("v_add_u32 v2, s90, v2")
    a("v_lshlrev_b32 v6, 5, v1")
    a(f"s_lshr_b32 s90, {S_LOC}, 3")
    a(f"s_and_b32 s91, {S_LOC}, 7")
    sexpr("s16", [("s90", "shl", 12), ("s91", "shl", 7)], W_MOD)
    a(f"s_lshl_b32 s17, {S_LOC}, 12")
    spin_lds(F_XC, 1, "v19", "v20")
    a(f"ds_read_b64 v[4:5], v2 offset:{L_X}")
    a(f"ds_read_b64 v[12:13], v2 offset:{L_X+1024}")
    a("s_waitcnt vmcnt(0) lgkmcnt(0)")
    get_tag()
    a("v_mov_b32 v3, 0")
    for (src, dst) in ((4, 100), (5, 102), (12, 104), (13, 106)):
        a(f"v_lshlrev_b32 v{dst}, 16, v{src}")
        a(f"v_and_b32 v{dst+1}, 0xffff0000, v{src}")
    get_mode("v3", "v20")
    stamp(1)

    def mod_loads(chunk, rb0):
        a(f"s_add_u32 s18, s16, {chunk*32768}")
        a(f"s_add_u32 s19, s18, 16384")
        loads = []; tags = []
        for b in range(2):
            for i in range(4):
                for hh in range(2):
                    rb = rb0 + 32*b + 8*i + 4*hh
                    loads.append(f"buffer_load_dwordx4 v[{rb}:{rb+3}], v6, {WSRD}, {'s18' if b == 0 else 's19'} offen offset:{1024*i + 16*hh} sc1")
                    tags += [f"v{rb+1}", f"v{rb+3}"]
        return loads, tags
    def mod_sum(rb0, d):
        for b in range(2):
            for c in range(4):
                r = rb0 + 32*b + 4*(c >> 1) + 2*(c & 1)
                a(f"v_add_f32 v{r}, v{r}, v{r+8}")
                a(f"v_add_f32 v{r+16}, v{r+16}, v{r+24}")
            for c in range(4):
                r = rb0 + 32*b + 4*(c >> 1) + 2*(c & 1)
                a(f"v_add_f32 {d[4*b+c]}, v{r}, v{r+16}")
        for k in range(0, 8, 2): bf16r2(d[k], d[k+1], d[k], d[k+1], "v14")
    def part_loads(base):
        a(f"s_add_u32 s20, s17, {base}")
        loads = []; tags = []
        for i in range(4):
            rb = 16 + 4*i
            loads.append(f"buffer_load_dwordx4 v[{rb}:{rb+3}], v7, {WSRD}, s20 offen offset:{1024*i} sc1")
            tags += [f"v{rb+1}", f"v{rb+3}"]
        return loads, tags
    def part_sum():
        a("v_mov_b32 v8, 0x3f80")
        a("v_mov_b32 v9, 0x3f800000")
        for b in range(2):
            for (k, (off, sel)) in enumerate(((0, "v8"), (0, "v9"), (2, "v8"), (2, "v9"))):
                d = f"v{108+4*b+k}"
                r0 = 16 + 8*b + off
                a(f"v_dot2_f32_bf16 {d}, v{r0}, {sel}, 0")
                a(f"v_dot2_f32_bf16 {d}, v{r0+4}, {sel}, {d}")
        regs = [f"v{108+k}" for k in range(8)]
        allreduce(regs, "v_add_f32", [f"v{16+k}" for k in range(8)], ["r4", "r8", "x16", "x32"])
    def resid(gate, xio):
        regs = [f"v{108+k}" for k in range(8)]
        for k in range(0, 8, 2): bf16r2(regs[k], regs[k+1], regs[k], regs[k+1], "v14")
        for k in range(8): a(f"v_mul_f32 {regs[k]}, {regs[k]}, {gate[k]}")
        for k in range(0, 8, 2): bf16r2(regs[k], regs[k+1], regs[k], regs[k+1], "v14")
        for k in range(8): a(f"v_add_f32 {xio[k]}, {xio[k]}, {regs[k]}")
    XR = [f"v{100+k}" for k in range(8)]
    GA = [f"v{116+k}" for k in range(8)]

    l1, t1 = part_loads(W_A4)
    a("v_bfe_u32 v10, v0, 2, 1")
    a("v_lshlrev_b32 v98, 11, v10")
    a("v_lshl_add_u32 v98, v1, 4, v98")
    a("v_lshlrev_b32 v99, 9, v10")
    sexpr("s22", [(S_X, "shl", 12), (S_LOC, "shl", 6)], W_X1P)
    sexpr("s23", [(S_X, "shl", 10), (S_LOC, "shl", 4)], W_X1S)
    a("s_barrier")
    l2, t2 = mod_loads(2, 32)
    poll(l2, t2, "v15")
    mod_sum(32, GA)
    after_own(F_PA, 4, "v3", "v15", cfg.d_s5)
    stamp(2)
    poll(l1, t1, "v15")
    stamp(3)
    part_sum()
    resid(GA, XR)
    for k in range(4): a(f"v_cvt_pk_bf16_f32 v{20+k}, {XR[2*k]}, {XR[2*k+1]}")
    for k in range(4):
        a(f"v_lshlrev_b32 {XR[2*k]}, 16, v{20+k}")
        a(f"v_and_b32 {XR[2*k+1]}, 0xffff0000, v{20+k}")
    a("v_cmp_eq_u32 vcc, 1, v10")
    a(f"v_mov_b32 v25, {S_TAG}")
    a(f"v_mov_b32 v27, {S_TAG}")
    a("v_cndmask_b32 v24, v20, v22, vcc")
    a("v_cndmask_b32 v26, v21, v23, vcc")
    a("s_mov_b64 exec, 0xff")
    store_loc(f"buffer_store_dwordx4 v[24:27], v98, {WSRD}, s22 offen")
    a("s_mov_b64 exec, -1")
    a(f"v_add_f32 v16, {XR[0]}, {XR[1]}")
    a(f"v_add_f32 v18, {XR[4]}, {XR[5]}")
    a(f"v_mul_f32 v17, {XR[0]}, {XR[0]}")
    a(f"v_mul_f32 v19, {XR[4]}, {XR[4]}")
    a(f"v_add_f32 v16, v16, {XR[2]}")
    a(f"v_add_f32 v18, v18, {XR[6]}")
    for k in (1, 2, 3):
        a(f"v_fmac_f32 v17, {XR[k]}, {XR[k]}")
        a(f"v_fmac_f32 v19, {XR[4+k]}, {XR[4+k]}")
    a(f"v_add_f32 v16, v16, {XR[3]}")
    a(f"v_add_f32 v18, v18, {XR[7]}")
    allreduce(["v16", "v17", "v18", "v19"], "v_add_f32", [], ["x1", "x2"])
    a(f"v_mov_b32 v29, {S_TAG}")
    a(f"v_mov_b32 v31, {S_TAG}")
    a("v_cndmask_b32 v28, v16, v18, vcc")
    a("v_cndmask_b32 v30, v17, v19, vcc")
    a("s_mov_b64 exec, 0x11")
    store_loc(f"buffer_store_dwordx4 v[28:31], v99, {WSRD}, s23 offen")
    a("s_mov_b64 exec, -1")
    a("v_mov_b32 v15, 1")
    arrive(F_PX, "v3", "v15")
    stamp(4)
    a(f"s_and_b32 s90, {S_LOC}, 7")
    a(f"s_cmp_lg_u32 s90, {S_X}")
    a("s_cbranch_scc1 L_slice_nf")
    l2, t2 = mod_loads(5, 32)
    poll(l2, t2, "v15")
    mod_sum(32, GA)
    a("s_barrier")
    a("s_barrier")
    l1, t1 = part_loads(W_DN)
    a("v_lshlrev_b32 v98, 10, v10")
    a("v_lshl_add_u32 v98, v1, 3, v98")
    a(f"s_lshl_b32 s22, {S_LOC}, 5")
    after_own(F_PD, 4, "v3", "v15", cfg.d_s8)
    poll(l1, t1, "v15")
    part_sum()
    resid(GA, XR)
    for k in range(4): a(f"v_cvt_pk_bf16_f32 v{20+k}, {XR[2*k]}, {XR[2*k+1]}")
    a("v_cmp_eq_u32 vcc, 1, v10")
    a("v_cndmask_b32 v24, v20, v22, vcc")
    a("v_cndmask_b32 v25, v21, v23, vcc")
    a("s_mov_b64 exec, 0xff")
    a("buffer_store_dwordx2 v[24:25], v98, s[48:51], s22 offen")
    a(f"s_cmp_lg_u32 {S_WG}, 0")
    a("s_cbranch_scc1 L_slice_end")
    a("s_mov_b64 exec, 1")
    a(f"v_mov_b32 v24, {S_EP}")
    a("v_mov_b32 v21, 0")
    a(f"buffer_store_dword v24, v21, {WSRD}, 0 offen sc1")
    a.label("L_slice_end")
    a("s_mov_b64 exec, -1")
    stamp(5)
    dump_stamps(6)
    a("s_endpgm")
    a.label("L_slice_nf")
    a("s_barrier")
    a("s_barrier")
    dump_stamps(5)
    a("s_endpgm")

    a.label("L_aux")
    srd(44, 28, 512*1792*2)
    srd(48, 30, 512*1792*2)
    srd(52, 32, 1792*512*2)
    a("v_mov_b32 v10, 1")
    sexpr("s18", [(S_X, "mul", 224*1024), (S_KQ, "mul", 56*1024), (S_CB, "shl", 7)])
    sexpr("s19", [(S_KQ, "mul", 128*3584), (S_X, "mul", 448), (S_CB, "shl", 6)])
    a("s_waitcnt vmcnt(0)")
    get_tag()
    strip_voff(3584, "v31")
    unit_voffs(pitch_shift=10, d0="v32", d1="v33")
    a("v_mov_b32 v3, 0")
    stamp(1)
    if cfg.local == 2:
        L = a.newlabel("Lxc"); E = a.newlabel("Lxce")
        srd(60, 40, 256)
        a(f"s_lshl_b32 s91, {S_X}, 5")
        a("s_add_u32 s91, s91, 8")
        a("v_mov_b32 v18, s91")
        a("s_getreg_b32 s90, hwreg(HW_REG_XCC_ID)")
        a("s_and_b32 s90, s90, 7")
        a("s_mul_i32 s90, s90, 6")
        a("s_lshl_b64 s[26:27], 1, s90")
        a("s_mov_b64 exec, 1")
        a.label(L)
        a("buffer_load_dwordx2 v[20:21], v18, s[60:63], 0 offen sc1")
        a("s_waitcnt vmcnt(0)")
        a("v_readfirstlane_b32 s20, v20")
        a("v_readfirstlane_b32 s21, v21")
        a("s_mov_b64 s[22:23], s[20:21]")
        a("s_mov_b32 s90, 0")
        for k in range(8):
            a("s_and_b32 s91, s22, 63")
            a("s_add_u32 s90, s90, s91")
            if k < 7: a("s_lshr_b64 s[22:23], s[22:23], 6")
        a("s_cmp_ge_u32 s90, 32")
        a(f"s_cbranch_scc1 {E}")
        timeout()
        a("s_sleep 2")
        a(f"s_branch {L}")
        a.label(E)
        a("s_lshl_b64 s[22:23], s[26:27], 5")
        a("s_cmp_eq_u64 s[20:21], s[22:23]")
        a("s_cselect_b32 s90, 1, 2")
        a("v_mov_b32 v16, s90")
        a(f"ds_write_b32 v3, v16 offset:{F_LM}")
        a("s_mov_b64 exec, -1")
    stamp(2)
    a("s_barrier")
    a(f"s_cmp_eq_u32 {S_CB}, 7")
    a("s_cbranch_scc1 L_aux_dn")
    a(f"s_mov_b32 m0, {L_G}")
    a("s_mov_b32 s99, 8")
    a.label("L_aux_gu")
    a("buffer_load_dwordx4 v31, s[44:47], s19 offen nt lds")
    a("s_add_u32 m0, m0, 0x2000")
    a("s_nop 0")
    a("buffer_load_dwordx4 v31, s[48:51], s19 offen nt lds")
    a("s_sub_u32 m0, m0, 0x1c00")
    a(f"s_add_u32 s19, s19, {16*3584}")
    a("s_sub_u32 s99, s99, 1")
    a("s_cmp_lg_u32 s99, 0")
    a("s_cbranch_scc1 L_aux_gu")
    a.label("L_aux_dn")
    a(f"s_mov_b32 m0, {L_DN}")
    a("s_nop 0")
    for i in range(8):
        a(f"buffer_load_dwordx4 v{32 + (i&1)}, s[52:55], s18 offen nt lds")
        a("s_add_u32 m0, m0, 0x400")
        a("s_add_u32 s18, s18, 0x2000")
    a("s_waitcnt vmcnt(0)")
    arrive(F_LATE, "v3", "v10")
    stamp(3)
    a("s_barrier")
    a("s_barrier")
    dump_stamps(4)
    a("s_endpgm")

    a.label("L_abort")
    a("s_mov_b64 exec, 1")
    a("v_mov_b32 v1, 0")
    a(f"s_lshl_b32 s90, {S_WG}, 16")
    a("s_or_b32 s90, s90, s1") if cfg.site else None
    a("v_mov_b32 v2, s90")
    a(f"s_and_b32 s90, {S_W}, 1")
    a("s_lshl_b32 s90, s90, 2")
    a("v_mov_b32 v1, s90")
    a("v_or_b32 v2, 0xde000000, v2")
    a("s_mov_b32 s44, s40")
    a("s_and_b32 s45, s41, 0xffff")
    a("s_mov_b32 s46, 256")
    a("s_mov_b32 s47, 0x20000")
    a("buffer_store_dword v2, v1, s[44:47], 0 offen")
    a.label("L_end")
    a("s_endpgm")

    hdr = open(f"cdna_kernels/{NAME}.s.ref").read().split("; Override launch")[0]
    out = hdr
    out += f"; @launch grid=(256,1,1) block=(576,1,1) lds={L_TOTAL}\n"
    out += '.amdgcn_target "amdgcn-amd-amdhsa--gfx950"\n.text\n'
    out += f".globl {NAME}_kernel\n.p2align 8\n.type {NAME}_kernel,@function\n"
    out += a.text()
    out += f""".section .rodata,"a"
.p2align 6
.amdhsa_kernel {NAME}_kernel
  .amdhsa_next_free_vgpr 128
  .amdhsa_next_free_sgpr 102
  .amdhsa_accum_offset 128
  .amdhsa_group_segment_fixed_size 0
  .amdhsa_kernarg_size 112
  .amdhsa_user_sgpr_count 2
  .amdhsa_user_sgpr_kernarg_segment_ptr 1
  .amdhsa_system_sgpr_workgroup_id_x 1
.end_amdhsa_kernel
"""
    return out

if __name__ == "__main__":
    cfg = Cfg()
    outp = sys.argv[1]
    for arg in sys.argv[2:]:
        k, v = arg.split("=")
        assert hasattr(cfg, k), k
        setattr(cfg, k, int(v))
    open(outp, "w").write(gen(cfg))
    print("wrote", outp)
```

```python
import sys
from asmlib import Asm

NAME = "adaLN_cond__sliding_block_cached__glu_gated_bilinear__decode"

class Cfg:
    D = 40
    stamps = 0
    spin = 1 << 20
    rsl = 1
    local = 2
    touch = 1
    d_h = 4
    d_q = 1
    d_r1 = 1
    d_s5 = 8
    d_x1 = 1
    d_gu = 1
    d_s8 = 8
    probe = 0
    site = 0

(F_LC, F_1, F_2, F_3, F_EC, F_KC, F_MB1, F_MB2, F_LATE, F_PO, F_PA, F_PX, F_PG, F_PD,
 F_PM, F_PQ, F_XC, F_WQ, F_WOL, F_MRL, F_LM, F_XP) = [4*i for i in range(22)]
L_MX = 128; L_LS = 192; L_ZERO = 256
L_ACT1 = 768; L_ACT2 = 1344; L_ACT4 = 1920; L_ACT6 = 2496; L_ACT7 = 3072
L_Q = 3648
L_P = 4736
L_X = 8192; L_C = 10240
L_K = 12288; L_V = L_K + 65536; L_MR = L_V + 65536; L_TOTAL = L_MR + 16384
L_MODB = L_K; L_WQ = L_V
L_WO = L_K; L_G = L_K + 16384; L_U = L_K + 24576; L_DN = L_K + 32768
APITCH = 272; PPITCH = 528

W_EPOCH = 0
W_MOD = 0x1000
W_XC = 0x38000
W_Q = 0x40000
W_ST = 0x80000
W_O = 0x90000
W_A4 = 0x110000
W_X1P = 0x150000
W_X1S = 0x158000
W_GU = 0x160000
W_DN = 0x1A0000
W_STAMP = 0x200000
W_USED = 0x300000

LOG2E = 0x3fb8aa3b
SCALE = 0x3db504f3
EPS = 0x3727c5ac
INV512 = 0x3b000000

S_WG, S_W, S_X, S_LOC, S_B, S_SPL, S_KQ, S_CB, S_TAG, S_SPIN = "s2", "s3", "s4", "s5", "s6", "s7", "s8", "s9", "s10", "s11"
WSRD = "s[12:15]"
S_EP = "s89"
S_LM = "s88"
PX = "s[42:43]"
S_PH = "s101"
KB_B = 8

def gen(cfg):
    a = Asm()
    D = cfg.D

    def srd(dst, plo, size):
        a(f"s_mov_b32 s{dst}, s{plo}")
        a(f"s_and_b32 s{dst+1}, s{plo+1}, 0xffff")
        a(f"s_mov_b32 s{dst+2}, {size}")
        a(f"s_mov_b32 s{dst+3}, 0x20000")

    def stamp(k):
        if cfg.stamps: a(f"s_memrealtime s[{64+2*k}:{65+2*k}]")

    def dump_stamps(n):
        if not cfg.stamps: return
        a("s_waitcnt lgkmcnt(0)")
        a(f"s_mul_i32 s90, {S_WG}, 9")
        a(f"s_add_u32 s90, s90, {S_W}")
        a("s_lshl_b32 s90, s90, 7")
        a(f"s_add_u32 s90, s90, {W_STAMP}")
        a("s_mov_b64 exec, 1")
        a("v_mov_b32 v1, 0")
        for k in range(n):
            a(f"v_mov_b32 v2, s{64+2*k}")
            a(f"v_mov_b32 v3, s{65+2*k}")
            a(f"buffer_store_dwordx2 v[2:3], v1, {WSRD}, s90 offen offset:{8*k}")
            a("s_nop 1")
        a("s_waitcnt vmcnt(0)")

    sites = [0]
    def timeout():
        if cfg.site:
            sites[0] += 1
            a(f"s_mov_b32 s1, {sites[0]}")
        a(f"s_sub_u32 {S_SPIN}, {S_SPIN}, 1")
        a("s_cbranch_scc1 L_abort")

    def spin_lds(off, n, vz, vt, sleep=True):
        L = a.newlabel("Lsp"); E = a.newlabel("Lspe")
        a.label(L)
        a(f"ds_read_b32 {vt}, {vz} offset:{off}")
        a("s_waitcnt lgkmcnt(0)")
        a(f"v_readfirstlane_b32 s91, {vt}")
        a(f"s_cmp_ge_i32 s91, {n}")
        a(f"s_cbranch_scc1 {E}")
        timeout()
        if sleep: a("s_sleep 1")
        a(f"s_branch {L}")
        a.label(E)

    def arrive(off, vz, vone):
        a("s_mov_b64 s[92:93], exec")
        a("s_mov_b64 exec, 1")
        a(f"ds_add_u32 {vz}, {vone} offset:{off}")
        a("s_mov_b64 exec, s[92:93]")

    def poll(loads, tags, vacc, sleep=None, sample=False):
        if sleep is None: sleep = cfg.rsl
        L = a.newlabel("Lpl"); E = a.newlabel("Lple"); R = a.newlabel("Lplr")
        a(f"s_mov_b64 {PX}, exec")
        if sample:
            a(f"s_mov_b32 {S_PH}, 0")
            a("s_mov_b64 exec, 1")
        a.label(L)
        for ld in loads: a(ld)
        a("s_waitcnt vmcnt(0)")
        a(f"v_xor_b32 {vacc}, {S_TAG}, {tags[0]}")
        for t in tags[1:]:
            a(f"v_bitop3_b32 {vacc}, {vacc}, {t}, {S_TAG} bitop3:0xf6")
        a(f"v_cmp_ne_u32 vcc, 0, {vacc}")
        if sample:
            a(f"s_cbranch_vccnz {R}")
            a(f"s_cmp_lg_u32 {S_PH}, 0")
            a(f"s_cbranch_scc1 {E}")
            a(f"s_mov_b32 {S_PH}, 1")
            a(f"s_mov_b64 exec, {PX}")
            a(f"s_branch {L}")
            a.label(R)
        else:
            a(f"s_cbranch_vccz {E}")
        a("s_mov_b64 exec, vcc")
        timeout()
        if sleep: a(f"s_sleep {sleep}")
        a(f"s_branch {L}")
        a.label(E)
        a(f"s_mov_b64 exec, {PX}")

    def after_own(flag, n, vz, vt, dly):
        spin_lds(flag, n, vz, vt, sleep=False)
        if dly: a(f"s_sleep {dly}")

    def get_mode(vz, vt):
        if cfg.local == 2:
            spin_lds(F_LM, 1, vz, vt)
            a(f"s_mov_b32 {S_LM}, s91")

    def store_loc(text):
        if cfg.local == 0: a(text + " sc1")
        elif cfg.local == 1: a(text)
        else:
            P = a.newlabel("Lst"); E = a.newlabel("Lste")
            a(f"s_cmp_eq_u32 {S_LM}, 1")
            a(f"s_cbranch_scc1 {P}")
            a(text + " sc1")
            a(f"s_branch {E}")
            a.label(P)
            a(text)
            a.label(E)

    def bf16r2(d0, d1, s0, s1, tmp):
        a(f"v_cvt_pk_bf16_f32 {tmp}, {s0}, {s1}")
        a(f"v_lshlrev_b32 {d0}, 16, {tmp}")
        a(f"v_and_b32 {d1}, 0xffff0000, {tmp}")

    def bf16r1(d, s):
        a(f"v_cvt_pk_bf16_f32 {d}, {s}, {s}")
        a(f"v_lshlrev_b32 {d}, 16, {d}")

    def allreduce(regs, op, tmps, steps):
        dpp = {"x1": "quad_perm:[1,0,3,2]", "x2": "quad_perm:[2,3,0,1]", "x4": "row_half_mirror", "x8": "row_mirror", "r8": "row_ror:8", "r4": "row_ror:4"}
        for s in steps:
            if s in dpp:
                for r in regs:
                    a(f"{op}_dpp {r}, {r}, {r} {dpp[s]} row_mask:0xf bank_mask:0xf")
            else:
                ins = "v_permlane16_swap_b32" if s == "x16" else "v_permlane32_swap_b32"
                for r, t in zip(regs, tmps): a(f"v_mov_b32 {t}, {r}")
                for r, t in zip(regs, tmps): a(f"{ins} {r}, {t}")
                for r, t in zip(regs, tmps): a(f"{op} {r}, {r}, {t}")
    FULL = ["x1", "x2", "x4", "x8", "x16", "x32"]

    def sexpr(dst, terms, const=0, tmp="s94"):
        first = True
        for (reg, kind, n) in terms:
            tgt = dst if first else tmp
            if kind == "shl":
                if n == 0: a(f"s_mov_b32 {tgt}, {reg}")
                else: a(f"s_lshl_b32 {tgt}, {reg}, {n}")
            else: a(f"s_mul_i32 {tgt}, {reg}, {n}")
            if not first: a(f"s_add_u32 {dst}, {dst}, {tmp}")
            first = False
        if const: a(f"s_add_u32 {dst}, {dst}, {const}")

    def get_tag():
        a(f"v_readfirstlane_b32 {S_EP}, v3")
        a(f"s_add_u32 {S_EP}, {S_EP}, 1")
        a(f"s_mul_i32 {S_TAG}, {S_EP}, 0x9E3779B1")

    def unit_voffs(pitch_shift=None, pitch=None, d0="v24", d1="v25"):
        a("v_lshrrev_b32 v3, 3, v0")
        a("v_bfe_u32 v4, v0, 4, 1")
        a("v_lshlrev_b32 v4, 1, v4")
        a("v_and_b32 v5, 7, v0")
        a("v_xor_b32 v4, v4, v5")
        a("v_lshlrev_b32 v4, 4, v4")
        if pitch_shift is not None: a(f"v_lshlrev_b32 v6, {pitch_shift}, v3")
        else: a(f"v_mul_u32_u24 v6, {pitch}, v3")
        a(f"v_add_u32 {d0}, v6, v4")
        a(f"v_xor_b32 {d1}, 64, {d0}")

    def strip_voff(pitch, d):
        a("v_lshrrev_b32 v6, 2, v0")
        a(f"v_mul_u32_u24 {d}, {pitch}, v6")
        a("v_bfe_u32 v6, v0, 5, 1")
        a("v_lshlrev_b32 v6, 1, v6")
        a("v_and_b32 v7, 3, v0")
        a("v_xor_b32 v6, v6, v7")
        a(f"v_lshl_add_u32 {d}, v6, 4, {d}")

    a.label(f"{NAME}_kernel")
    a(f"s_cmp_ge_u32 {S_WG}, 256")
    a("s_cbranch_scc1 L_end")
    a("s_load_dwordx16 s[16:31], s[0:1], 0")
    a("s_load_dwordx8 s[32:39], s[0:1], 64")
    a("s_load_dwordx4 s[40:43], s[0:1], 96")
    stamp(0)
    a("v_lshrrev_b32 v1, 6, v0")
    a("v_and_b32 v0, 63, v0")
    a(f"v_readfirstlane_b32 {S_W}, v1")
    a(f"s_and_b32 {S_X}, {S_WG}, 7")
    a(f"s_lshr_b32 {S_LOC}, {S_WG}, 3")
    a(f"s_lshr_b32 {S_B}, {S_LOC}, 4")
    a(f"s_xor_b32 {S_B}, {S_B}, 1")
    a(f"s_and_b32 {S_SPL}, {S_LOC}, 15")
    a(f"s_lshr_b32 {S_KQ}, {S_LOC}, 3")
    a(f"s_and_b32 {S_CB}, {S_LOC}, 7")
    a(f"s_mov_b32 {S_SPIN}, {cfg.spin}")
    a(f"s_mov_b32 {S_LM}, {1 if cfg.local == 1 else 2}")
    a(f"s_cmp_lg_u32 {S_W}, 8")
    a("s_cbranch_scc1 L_worker")

    SLC = "s95"; SOFF = "s96"
    a("v_lshlrev_b32 v1, 4, v0")
    strip_voff(6144, "v20")
    a(f"s_and_b32 s90, {S_SPL}, 3")
    a(f"s_mul_i32 {SOFF}, s90, {128*6144}")
    a(f"s_lshr_b32 s90, {S_X}, 2")
    a("s_lshl_b32 s90, s90, 10")
    a(f"s_add_u32 {SOFF}, {SOFF}, s90")
    a(f"s_and_b32 s90, {S_X}, 3")
    a("s_lshl_b32 s90, s90, 8")
    a(f"s_add_u32 {SOFF}, {SOFF}, s90")
    a(f"s_lshr_b32 s90, {S_SPL}, 2")
    a("s_lshl_b32 s90, s90, 6")
    a(f"s_add_u32 {SOFF}, {SOFF}, s90")
    a(f"s_mov_b32 m0, {L_C}")
    a("s_waitcnt lgkmcnt(0)")
    if cfg.touch:
        a("s_load_dword s78, s[16:17], 0")
        a(f"s_load_dword s79, s[36:37], {SOFF}")
        a("s_load_dword s80, s[34:35], 0")
    srd(48, 34, 2048)
    srd(44, 16, 2048)
    a("buffer_load_dwordx4 v1, s[48:51], 0 offen nt lds")
    a("buffer_load_dwordx4 v1, s[48:51], 0 offen offset:1024 nt lds")
    a(f"s_mov_b32 m0, {L_X}")
    a("s_nop 0")
    a("buffer_load_dwordx4 v1, s[44:47], 0 offen nt lds")
    a("buffer_load_dwordx4 v1, s[44:47], 0 offen offset:1024 nt lds")
    srd(44, 36, 512*3072*2)
    a(f"s_cmp_eq_u32 {S_B}, 0")
    a("s_cbranch_scc1 L_ld_nomod")
    a(f"s_mov_b32 m0, {L_MODB}")
    a("s_nop 0")
    for i in range(8):
        a(f"buffer_load_dwordx4 v20, s[44:47], {SOFF} offen nt lds")
        if i < 7:
            a(f"s_add_u32 {SOFF}, {SOFF}, {16*6144}")
            a("s_add_u32 m0, m0, 0x400")
    a.label("L_ld_nomod")
    a("s_barrier")
    stamp(1)
    srd(12, 42, W_USED)
    srd(52, 18, 2*8*32768*128*2)
    srd(56, 20, 2*8*32768*128*2)
    srd(60, 24, 4096*512*2)
    a("v_mov_b32 v10, 0")
    a("v_lshrrev_b32 v3, 4, v0")
    a("v_and_b32 v4, 15, v0")
    a("v_xor_b32 v5, v4, v3")
    a("v_lshlrev_b32 v5, 4, v5")
    a("v_lshl_add_u32 v26, v3, 8, v5")
    a("v_xor_b32 v27, 64, v26")
    a("v_xor_b32 v28, 0x80, v26")
    a("v_xor_b32 v29, 0xc0, v26")
    a("v_lshlrev_b32 v5, 1, v3")
    a("v_xor_b32 v5, v4, v5")
    a("v_lshlrev_b32 v5, 4, v5")
    a("v_lshl_add_u32 v30, v3, 8, v5")
    a("v_xor_b32 v31, 0x80, v30")
    sexpr("s98", [(S_B, "shl", 26), (S_X, "shl", 23), (S_SPL, "shl", 16)], 28672*256)
    unit_voffs(pitch_shift=10)

    def lc_write(val, off=F_LC):
        a(f"v_mov_b32 v11, {val}")
        a(f"ds_write_b32 v10, v11 offset:{off}")
    def seg(name, variants, srdn, step, iters, ldsbase):
        a(f"s_mov_b32 m0, {ldsbase}")
        a(f"s_mov_b32 s97, {iters}")
        a.label(name)
        for v in variants:
            a(f"buffer_load_dwordx4 {v}, s[{srdn}:{srdn+3}], {SOFF} offen nt lds")
            a(f"s_add_u32 {SOFF}, {SOFF}, {step}")
            a("s_add_u32 m0, m0, 0x400")
        a("s_sub_u32 s97, s97, 1")
        a("s_cmp_lg_u32 s97, 0")
        a(f"s_cbranch_scc1 {name}")
    def drain(end, ks):
        for k in ks:
            a(f"s_waitcnt vmcnt({k})")
            lc_write(end - k)
    def seg4(name, variants, srdn, iters, ldsbase):
        a(f"s_mov_b32 m0, {ldsbase}")
        a(f"s_mov_b32 s97, {iters}")
        a.label(name)
        for i, v in enumerate(variants):
            a(f"buffer_load_dwordx4 {v}, s[{srdn}:{srdn+3}], {SOFF} offen offset:{1024*i} nt lds")
        a(f"s_add_u32 {SOFF}, {SOFF}, 0x1000")
        a("s_add_u32 m0, m0, 0x1000")
        a(f"s_add_u32 {SLC}, {SLC}, 4")
        a(f"v_mov_b32 v11, {SLC}")
        a(f"s_waitcnt vmcnt({D-4})")
        a(f"ds_write_b32 v10, v11 offset:{F_LC}")
        a("s_sub_u32 s97, s97, 1")
        a("s_cmp_lg_u32 s97, 0")
        a(f"s_cbranch_scc1 {name}")
    WO_OFF = [(S_X, "shl", 19), (S_KQ, "shl", 17), (S_CB, "shl", 7)]

    a(f"s_cmp_eq_u32 {S_B}, 0")
    a("s_cbranch_scc1 L_ld_A")
    a("s_waitcnt vmcnt(8)")
    lc_write(1, F_XC)
    a("s_waitcnt vmcnt(0)")
    lc_write(KB_B)
    spin_lds(F_EC, 4, "v10", "v12")
    spin_lds(F_3, 2, "v10", "v12", sleep=False)
    stamp(2)
    a(f"s_mov_b32 {SLC}, {KB_B - (D - 4)}")
    a(f"s_mov_b32 {SOFF}, s98")
    seg4("L_ld_kB", ["v26", "v27", "v28", "v29"], 52, 16, L_K)
    a(f"s_mov_b32 {SOFF}, s98")
    seg4("L_ld_vB", ["v30", "v30", "v31", "v31"], 56, 16, L_V)
    stamp(3)
    sexpr(SOFF, WO_OFF)
    a(f"ds_read_b32 v12, v10 offset:{F_KC}")
    a("s_waitcnt lgkmcnt(0)")
    a("v_readfirstlane_b32 s91, v12")
    a("s_cmp_ge_i32 s91, 4")
    a("s_cbranch_scc0 L_ld_Bslow")
    seg("L_ld_woB", ["v24", "v25"], 60, 8192, 8, L_WO)
    drain(KB_B + 144, [k for k in (48, 40, 32, 24, 16) if k < D + 12])
    stamp(4)
    a("s_branch L_ld_fin")
    a.label("L_ld_Bslow")
    drain(KB_B + 128, [k for k in (32, 24, 16, 8) if k < D - 4] + [0])
    stamp(4)
    spin_lds(F_KC, 4, "v10", "v12")
    seg("L_ld_woB2", ["v24", "v25"], 60, 8192, 8, L_WO)
    a.label("L_ld_fin")
    a("s_waitcnt vmcnt(0)")
    lc_write(1, F_WOL)
    stamp(5)
    dump_stamps(6)
    a("s_endpgm")
    a.label("L_ld_A")
    a("s_waitcnt vmcnt(0)")
    lc_write(1, F_XC)
    a(f"s_mov_b32 {SLC}, {-(D - 4)}")
    a(f"s_mov_b32 {SOFF}, s98")
    seg4("L_ld_kA", ["v26", "v27", "v28", "v29"], 52, 16, L_K)
    stamp(2)
    a(f"s_mov_b32 {SOFF}, s98")
    seg4("L_ld_vA", ["v30", "v30", "v31", "v31"], 56, 16, L_V)
    stamp(3)
    unit_voffs(pitch=6144, d0="v20", d1="v21")
    a(f"s_and_b32 s90, {S_SPL}, 3")
    a(f"s_mul_i32 {SOFF}, s90, {128*6144}")
    a(f"s_lshr_b32 s90, {S_SPL}, 2")
    a(f"s_lshl_b32 s94, {S_X}, 2")
    a("s_add_u32 s90, s90, s94")
    a("s_add_u32 s90, s90, 16")
    a("s_lshl_b32 s90, s90, 7")
    a(f"s_add_u32 {SOFF}, {SOFF}, s90")
    seg("L_ld_mr", ["v20", "v21"], 44, 8*6144, 8, L_MR)
    drain(144, [k for k in (48, 40, 32, 24, 16) if k < D + 12])
    stamp(4)
    a("s_waitcnt vmcnt(0)")
    lc_write(1, F_MRL)
    spin_lds(F_KC, 4, "v10", "v12")
    sexpr(SOFF, WO_OFF)
    seg("L_ld_woA", ["v24", "v25"], 60, 8192, 8, L_WO)
    a("s_branch L_ld_fin")

    a.label("L_worker")
    a(f"s_cmp_lg_u32 {S_W}, 4")
    a("s_cbranch_scc1 L_wk2")
    a("v_mov_b32 v10, 0")
    for r in range(12, 16): a(f"v_mov_b32 v{r}, 0")
    a("v_lshlrev_b32 v1, 2, v0")
    a("v_lshlrev_b32 v2, 4, v0")
    a("ds_write_b32 v1, v10")
    a(f"ds_write_b128 v2, v[12:15] offset:{L_ZERO}")
    if cfg.local == 1:
        a("v_mov_b32 v11, 1")
        a(f"ds_write_b32 v10, v11 offset:{F_LM}")
    a.label("L_wk2")
    a("v_mov_b32 v2, 0")
    a("s_waitcnt lgkmcnt(0)")
    srd(12, 42, W_USED)
    a(f"buffer_load_dword v3, v2, {WSRD}, 0 offen sc1")
    a(f"s_cmp_lg_u32 {S_W}, 7")
    a("s_cbranch_scc1 L_wk3")
    if cfg.local == 2:
        srd(60, 40, 256)
        a("s_getreg_b32 s90, hwreg(HW_REG_XCC_ID)")
        a("s_and_b32 s90, s90, 7")
        a("s_mul_i32 s90, s90, 6")
        a("s_lshl_b64 s[26:27], 1, s90")
        a(f"s_lshl_b32 s91, {S_X}, 5")
        a("s_add_u32 s91, s91, 8")
        a("v_mov_b32 v18, s91")
        a("v_mov_b32 v16, s26")
        a("v_mov_b32 v17, s27")
        a("s_mov_b64 exec, 1")
        a("buffer_atomic_add_x2 v[16:17], v18, s[60:63], 0 offen sc1")
        a("s_mov_b64 exec, -1")
    if cfg.touch:
        sexpr("s90", [(S_B, "shl", 26), (S_X, "shl", 23), (S_SPL, "shl", 16)], 28672*256)
        a("s_load_dword s78, s[18:19], s90")
        a("s_load_dword s79, s[20:21], s90")
        a(f"s_lshr_b32 s91, {S_SPL}, 2")
        a("s_lshl_b32 s91, s91, 20")
        a("s_load_dword s80, s[22:23], s91")
        sexpr("s91", [(S_X, "shl", 19), (S_KQ, "shl", 17)])
        a("s_load_dword s81, s[24:25], s91")
        a(f"s_mul_i32 s91, {S_KQ}, {128*3584}")
        a("s_load_dword s82, s[28:29], s91")
        a("s_load_dword s83, s[30:31], s91")
        a(f"s_mul_i32 s91, {S_X}, {224*1024}")
        a("s_load_dword s84, s[32:33], s91")
        a("s_load_dword s85, s[38:39], 0")
    a.label("L_wk3")
    a("s_barrier")
    a(f"s_cmp_ge_u32 {S_W}, 4")
    a("s_cbranch_scc1 L_gwave")

    a.label("L_mwave")
    srd(56, 22, 512*4096*2)
    a("v_lshrrev_b32 v1, 4, v0")
    a("v_and_b32 v2, 15, v0")
    a("v_mov_b32 v4, 1")
    a("v_lshlrev_b32 v22, 1, v1")
    a("v_xor_b32 v22, v2, v22")
    a("v_lshlrev_b32 v22, 4, v22")
    a("v_lshl_add_u32 v26, v1, 13, v22")
    a("v_xor_b32 v27, 0x80, v26")
    a(f"s_lshr_b32 s90, {S_SPL}, 2")
    a(f"s_and_b32 s91, {S_SPL}, 3")
    sexpr("s96", [("s90", "shl", 20), (S_X, "shl", 10), ("s91", "shl", 8), (S_W, "shl", 18)])
    a("v_bfe_u32 v6, v2, 2, 1")
    a(f"v_mul_u32_u24 v6, {APITCH}, v6")
    a("v_lshl_add_u32 v6, v1, 4, v6")
    a("v_bfe_u32 v16, v0, 2, 2")
    a("v_and_b32 v17, 3, v0")
    a("v_lshl_add_u32 v18, v1, 3, v16")
    a("v_lshrrev_b32 v19, 1, v17")
    a("v_and_b32 v20, 1, v17")
    a("v_and_b32 v21, 1, v1")
    a("v_lshrrev_b32 v22, 1, v16")
    a("v_lshl_or_b32 v22, v21, 1, v22")
    a("v_lshlrev_b32 v22, 1, v22")
    a(f"s_lshl_b32 s90, {S_W}, 1")
    a("v_add_u32 v23, s90, v19")
    a("v_xor_b32 v23, v23, v22")
    a("v_lshlrev_b32 v7, 7, v18")
    a("v_lshl_add_u32 v7, v23, 4, v7")
    a("v_lshl_add_u32 v7, v20, 3, v7")
    a(f"s_and_b32 s90, {S_W}, 1")
    a("s_lshl_b32 s90, s90, 1")
    a("v_add_u32 v23, s90, v19")
    a("v_lshlrev_b32 v22, 1, v21")
    a("v_xor_b32 v23, v23, v22")
    a("v_lshlrev_b32 v12, 6, v18")
    a("v_lshl_add_u32 v12, v23, 4, v12")
    a("v_lshl_add_u32 v12, v20, 3, v12")
    a("v_lshl_or_b32 v22, v21, 2, v16")
    a("v_lshlrev_b32 v22, 1, v22")
    a(f"s_lshl_b32 s90, {S_W}, 2")
    a("v_add_u32 v23, s90, v19")
    a("v_xor_b32 v24, v23, v22")
    a("v_lshlrev_b32 v25, 8, v18")
    a("v_lshl_add_u32 v25, v20, 3, v25")
    a("v_lshl_add_u32 v13, v24, 4, v25")
    a("v_add_u32 v23, 2, v23")
    a("v_xor_b32 v24, v23, v22")
    a("v_lshl_add_u32 v14, v24, 4, v25")
    a("v_bfe_u32 v8, v0, 4, 1")
    a("v_lshlrev_b32 v9, 3, v2")
    O_MOD, O_Q, O_O, O_A4, O_GU, O_DN, O_ST, T_K, T_V = "s16", "s17", "s18", "s19", "s20", "s21", "s24", "s25", "s26"
    a(f"s_mul_i32 {T_K}, {S_B}, {KB_B}")
    a(f"s_add_u32 {T_V}, {T_K}, 128")
    a(f"s_add_u32 {T_K}, {T_K}, 64")
    sexpr(O_O, [(S_X, "shl", 16), (S_B, "shl", 13), (S_SPL, "shl", 9), (S_W, "shl", 7)], W_O)
    sexpr(O_A4, [(S_CB, "shl", 14), (S_W, "shl", 12), (S_X, "shl", 8), (S_KQ, "shl", 6)], W_A4)
    a(f"s_add_u32 {O_DN}, {O_A4}, {W_DN - W_A4}")
    a(f"s_lshr_b32 s90, {S_W}, 1")
    a(f"s_and_b32 s91, {S_W}, 1")
    sexpr(O_GU, [(S_X, "shl", 15), ("s90", "shl", 14), (S_KQ, "shl", 11), (S_CB, "shl", 8), ("s91", "shl", 7)], W_GU)
    sexpr(O_ST, [(S_X, "shl", 11), (S_B, "shl", 10), (S_SPL, "shl", 4)], W_ST)
    a(f"s_and_b32 s90, {S_SPL}, 3")
    a(f"s_lshr_b32 s91, {S_SPL}, 2")
    sexpr(O_Q, [(S_X, "shl", 15), ("s90", "shl", 12), ("s91", "shl", 10), (S_W, "shl", 8)], W_Q)
    a(f"s_cmp_eq_u32 {S_B}, 0")
    a("s_cbranch_scc1 L_m_offA")
    a(f"s_lshr_b32 s90, {S_X}, 2")
    a(f"s_and_b32 s91, {S_X}, 3")
    a(f"s_lshr_b32 s97, {S_SPL}, 2")
    a(f"s_and_b32 s98, {S_SPL}, 3")
    a(f"s_and_b32 s99, {S_W}, 1")
    sexpr(O_MOD, [("s90", "shl", 15), ("s91", "shl", 12), ("s98", "shl", 10), ("s97", "shl", 8), ("s99", "shl", 7)], W_MOD)
    a("s_branch L_m_offE")
    a.label("L_m_offA")
    a(f"s_lshr_b32 s90, {S_X}, 1")
    a(f"s_and_b32 s91, {S_X}, 1")
    a("s_lshl_b32 s91, s91, 2")
    a(f"s_lshr_b32 s97, {S_SPL}, 2")
    a("s_add_u32 s91, s91, s97")
    a("s_lshr_b32 s97, s91, 1")
    a("s_and_b32 s91, s91, 1")
    a(f"s_and_b32 s98, {S_SPL}, 3")
    sexpr(O_MOD, [("s90", "shl", 15), ("s97", "shl", 12), ("s98", "shl", 10), ("s91", "shl", 9), (S_W, "shl", 7)], W_MOD + 2*32768)
    a.label("L_m_offE")
    a("s_waitcnt vmcnt(0)")
    get_tag()
    a("v_mov_b32 v3, 0")
    stamp(1)

    def loadB(vaddr, nk, kstride, hoff, base=16):
        for t in range(nk):
            a(f"ds_read_b64_tr_b16 v[{base+4*t}:{base+4*t+1}], {vaddr} offset:{t*kstride}")
            a(f"ds_read_b64_tr_b16 v[{base+4*t+2}:{base+4*t+3}], {vaddr} offset:{t*kstride+hoff}")

    def gemv(act_off, nk, bbase=16, second=None):
        for t in range(nk):
            a(f"ds_read_b128 v[{32+4*t}:{35+4*t}], v6 offset:{act_off+64*t}")
        for t in range(nk):
            a(f"s_waitcnt lgkmcnt({nk-1-t})")
            c = "0" if t == 0 else "v[48:51]"
            a(f"v_mfma_f32_16x16x32_bf16 v[48:51], v[{32+4*t}:{35+4*t}], v[{bbase+4*t}:{bbase+4*t+3}], {c}")
            if second is not None:
                c = "0" if t == 0 else "v[56:59]"
                a(f"v_mfma_f32_16x16x32_bf16 v[56:59], v[{32+4*t}:{35+4*t}], v[{second+4*t}:{second+4*t+3}], {c}")

    def publish(shift, soff, local=False, second=False):
        a(f"v_lshl_add_u32 v54, v8, {shift}, v9")
        a(f"v_mov_b32 v53, {S_TAG}")
        if second: a(f"v_mov_b32 v61, {S_TAG}")
        a("v_mov_b32 v52, v48")
        if second: a("v_mov_b32 v60, v56")
        a("s_mov_b32 exec_hi, 0")
        t1 = f"buffer_store_dwordx2 v[52:53], v54, {WSRD}, {soff} offen"
        t2 = f"buffer_store_dwordx2 v[60:61], v54, {WSRD}, {soff} offen offset:128"
        if local:
            store_loc(t1)
            if second: store_loc(t2)
        else:
            a(t1 + " sc1")
            if second: a(t2 + " sc1")
        a("s_mov_b32 exec_hi, -1")

    def publish_pair(soff):
        a("v_lshlrev_b32 v54, 11, v8")
        a("v_lshl_add_u32 v54, v2, 2, v54")
        a(f"v_mov_b32 v53, {S_TAG}")
        a("v_mov_b32_dpp v52, v48 quad_perm:[1,0,3,2] row_mask:0xf bank_mask:0xf")
        a("s_mov_b32 exec_lo, 0x55555555")
        a("s_mov_b32 exec_hi, 0")
        a("v_cvt_pk_bf16_f32 v52, v48, v52")
        a(f"buffer_store_dwordx2 v[52:53], v54, {WSRD}, {soff} offen sc1")
        a("s_mov_b64 exec, -1")

    a(f"s_cmp_eq_u32 {S_B}, 0")
    a("s_cbranch_scc1 L_m_s3")
    a(f"s_lshl_b32 s90, {S_W}, 13")
    a(f"s_add_u32 m0, s90, {L_WQ}")
    a(f"s_cmp_lt_u32 {S_W}, 2")
    a("s_cbranch_scc1 L_m_s1")
    def wq_issue():
        for i in range(8):
            a(f"buffer_load_dwordx4 {'v26' if (i & 2) == 0 else 'v27'}, s[56:59], s96 offen nt lds")
            if i < 7:
                a(f"s_add_u32 s96, s96, {4*8192}")
                a("s_add_u32 m0, m0, 0x400")
    wq_issue()
    a("s_branch L_m_s2")
    a.label("L_m_s1")
    wq_issue()
    spin_lds(F_1, 2, "v3", "v5", sleep=False)
    spin_lds(F_LC, KB_B, "v3", "v5", sleep=False)
    a(f"v_add_u32 v10, {L_MODB}, v12")
    loadB("v10", 4, 2048, 256)
    gemv(L_ACT1, 4)
    publish(14, O_MOD)
    arrive(F_PM, "v3", "v4")
    stamp(2)
    a.label("L_m_s2")
    a("s_waitcnt vmcnt(0)")
    arrive(F_WQ, "v3", "v4")
    spin_lds(F_WQ, 4, "v3", "v5", sleep=False)
    a(f"v_add_u32 v10, {L_WQ}, v13")
    a(f"v_add_u32 v11, {L_WQ}, v14")
    loadB("v10", 4, 8192, 1024, base=16)
    loadB("v11", 4, 8192, 1024, base=64)
    get_mode("v3", "v5")
    a("s_waitcnt lgkmcnt(0)")
    arrive(F_EC, "v3", "v4")
    spin_lds(F_2, 2, "v3", "v5", sleep=False)
    gemv(L_ACT2, 4, bbase=16, second=64)
    publish(14, O_Q, local=True, second=True)
    arrive(F_PQ, "v3", "v4")
    stamp(3)
    a.label("L_m_s3")
    get_mode("v3", "v5")
    a("v_xor_b32 v10, v1, v2")
    a("v_lshlrev_b32 v10, 4, v10")
    a("v_lshl_add_u32 v10, v2, 8, v10")
    a(f"s_lshl_b32 s90, {S_W}, 14")
    a(f"s_add_u32 s90, s90, {L_K}")
    a("v_add_u32 v56, s90, v10")
    a("v_xor_b32 v57, 64, v56")
    a("v_xor_b32 v58, 0x80, v56")
    a("v_xor_b32 v59, 0xc0, v56")
    a("v_and_b32 v10, 3, v2")
    a(f"v_mul_u32_u24 v10, {APITCH}, v10")
    a("v_lshl_add_u32 v10, v1, 4, v10")
    a(f"v_add_u32 v10, {L_Q}, v10")
    a("v_lshlrev_b32 v11, 4, v1")
    a(f"v_add_u32 v11, {L_ZERO}, v11")
    a("v_lshrrev_b32 v15, 2, v2")
    for tt in range(4):
        a(f"v_cmp_eq_u32 vcc, {tt}, v15")
        a(f"v_cndmask_b32 v{60+tt}, v11, v10, vcc")
    spin_lds(F_3, 2, "v3", "v5")
    spin_lds(F_LC, T_K, "v3", "v5", sleep=False)
    stamp(4)
    def qk_reads(tt, base):
        for t in range(4):
            a(f"ds_read_b128 v[{base+4*t}:{base+4*t+3}], v{60+tt} offset:{64*t}")
            a(f"ds_read_b128 v[{base+16+4*t}:{base+16+4*t+3}], v{56+t} offset:{4096*tt}")
    bases = [16, 68, 16, 68]
    qk_reads(0, bases[0])
    for tt in range(4):
        if tt < 3:
            qk_reads(tt + 1, bases[tt + 1])
            a("s_waitcnt lgkmcnt(8)")
        else:
            a("s_waitcnt lgkmcnt(0)")
        b = bases[tt]
        for t in range(4):
            c = "0" if (tt == 0 and t == 0) else "v[48:51]"
            a(f"v_mfma_f32_16x16x32_bf16 v[48:51], v[{b+4*t}:{b+4*t+3}], v[{b+16+4*t}:{b+16+4*t+3}], {c}")
    arrive(F_KC, "v3", "v4")
    a(f"s_mov_b32 s94, {SCALE:#x}")
    bf16r2("v16", "v17", "v48", "v49", "v20")
    bf16r2("v18", "v19", "v50", "v51", "v21")
    for r in range(4): a(f"v_mul_f32 v{16+r}, s94, v{16+r}")
    bf16r2("v16", "v17", "v16", "v17", "v20")
    bf16r2("v18", "v19", "v18", "v19", "v21")
    for r in range(4): a(f"v_mov_b32 v{24+r}, v{16+r}")
    allreduce(["v24", "v25", "v26", "v27"], "v_max_f32", ["v28", "v29", "v30", "v31"], FULL)
    a(f"s_lshl_b32 s90, {S_W}, 4")
    a("v_mov_b32 v10, s90")
    a("s_mov_b64 s[92:93], exec")
    a("s_mov_b64 exec, 1")
    a(f"ds_write_b128 v10, v[24:27] offset:{L_MX}")
    a(f"ds_add_u32 v3, v4 offset:{F_MB1}")
    a("s_mov_b64 exec, s[92:93]")
    spin_lds(F_MB1, 4, "v3", "v5", sleep=False)
    for w in range(4):
        a(f"ds_read_b128 v[{32+4*w}:{35+4*w}], v3 offset:{L_MX+16*w}")
    a("s_waitcnt lgkmcnt(0)")
    for r in range(4):
        a(f"v_max_f32 v{24+r}, v{32+r}, v{36+r}")
        a(f"v_max_f32 v{28+r}, v{40+r}, v{44+r}")
    for r in range(4):
        a(f"v_max_f32 v{24+r}, v{24+r}, v{28+r}")
    a(f"s_mov_b32 s94, {LOG2E:#x}")
    for r in range(4): a(f"v_sub_f32 v{16+r}, v{16+r}, v{24+r}")
    for r in range(4): a(f"v_mul_f32 v{16+r}, s94, v{16+r}")
    for r in range(4): a(f"v_exp_f32 v{16+r}, v{16+r}")
    a("v_cvt_pk_bf16_f32 v20, v16, v17")
    a("v_cvt_pk_bf16_f32 v21, v18, v19")
    a(f"s_lshl_b32 s90, {S_W}, 7")
    a(f"s_add_u32 s90, s90, {L_P}")
    a("v_lshl_add_u32 v10, v0, 1, s90")
    a("ds_write_b16 v10, v20")
    a(f"ds_write_b16_d16_hi v10, v20 offset:{PPITCH}")
    a(f"ds_write_b16 v10, v21 offset:{2*PPITCH}")
    a(f"ds_write_b16_d16_hi v10, v21 offset:{3*PPITCH}")
    allreduce(["v16", "v17", "v18", "v19"], "v_add_f32", ["v28", "v29", "v30", "v31"], FULL)
    a(f"s_lshl_b32 s90, {S_W}, 4")
    a("v_mov_b32 v10, s90")
    a("s_mov_b64 s[92:93], exec")
    a("s_mov_b64 exec, 1")
    a(f"ds_write_b128 v10, v[16:19] offset:{L_LS}")
    a(f"ds_add_u32 v3, v4 offset:{F_MB2}")
    a("s_mov_b64 exec, s[92:93]")
    spin_lds(F_MB2, 4, "v3", "v5", sleep=False)
    a(f"s_cmp_lg_u32 {S_W}, 0")
    a("s_cbranch_scc1 L_m_pv")
    a("v_lshlrev_b32 v10, 2, v0")
    a("s_mov_b64 exec, 15")
    for w in range(4):
        a(f"ds_read_b32 v{16+w}, v10 offset:{L_LS+16*w}")
        a(f"ds_read_b32 v{20+w}, v10 offset:{L_MX+16*w}")
    a("s_waitcnt lgkmcnt(0)")
    a("v_add_f32 v16, v16, v17")
    a("v_add_f32 v18, v18, v19")
    a("v_max_f32 v20, v20, v21")
    a("v_max_f32 v22, v22, v23")
    a("v_add_f32 v26, v16, v18")
    a("v_max_f32 v24, v20, v22")
    a(f"v_mov_b32 v25, {S_TAG}")
    a(f"v_mov_b32 v27, {S_TAG}")
    a("v_lshlrev_b32 v10, 8, v0")
    store_loc(f"buffer_store_dwordx4 v[24:27], v10, {WSRD}, {O_ST} offen")
    a("s_mov_b64 exec, -1")
    a.label("L_m_pv")
    stamp(5)
    a("v_lshrrev_b32 v10, 2, v2")
    a(f"v_mul_u32_u24 v10, {PPITCH}, v10")
    a("v_lshl_add_u32 v10, v1, 4, v10")
    a(f"v_add_u32 v60, {L_P}, v10")
    a(f"v_add_u32 v61, {L_V}, v13")
    a(f"v_add_u32 v62, {L_V}, v14")
    a("v_lshl_add_u32 v63, v1, 14, v9")
    a(f"v_mov_b32 v65, {S_TAG}")
    for r in range(8): a(f"v_mov_b32 v{48+r}, 0")
    a(f"s_add_u32 s95, {T_K}, 8")
    a("s_mov_b32 s96, -1000")
    a.label("L_pv_loop")
    a("s_cmp_ge_i32 s96, s95")
    a("s_cbranch_scc1 L_pv_go")
    a.label("L_pv_spin")
    a(f"ds_read_b32 v5, v3 offset:{F_LC}")
    a("s_waitcnt lgkmcnt(0)")
    a("v_readfirstlane_b32 s96, v5")
    a("s_cmp_ge_i32 s96, s95")
    a("s_cbranch_scc1 L_pv_go")
    timeout()
    a("s_branch L_pv_spin")
    a.label("L_pv_go")
    a("ds_read_b128 v[16:19], v60")
    a("ds_read_b64_tr_b16 v[20:21], v61")
    a("ds_read_b64_tr_b16 v[22:23], v61 offset:1024")
    a("ds_read_b64_tr_b16 v[24:25], v62")
    a("ds_read_b64_tr_b16 v[26:27], v62 offset:1024")
    a("v_add_u32 v60, 64, v60")
    a("v_add_u32 v61, 0x2000, v61")
    a("v_add_u32 v62, 0x2000, v62")
    a("s_add_u32 s95, s95, 8")
    a("s_waitcnt lgkmcnt(2)")
    a("v_mfma_f32_16x16x32_bf16 v[48:51], v[16:19], v[20:23], v[48:51]")
    a("s_waitcnt lgkmcnt(0)")
    a("v_mfma_f32_16x16x32_bf16 v[52:55], v[16:19], v[24:27], v[52:55]")
    a(f"s_cmp_le_i32 s95, {T_V}")
    a("s_cbranch_scc1 L_pv_loop")
    stamp(6)
    a("s_nop 4")
    a("v_cvt_pk_bf16_f32 v64, v48, v52")
    store_loc(f"buffer_store_dwordx2 v[64:65], v63, {WSRD}, {O_O} offen")
    arrive(F_PO, "v3", "v4")
    stamp(7)
    a(f"s_cmp_lg_u32 {S_B}, 0")
    a("s_cbranch_scc1 L_m_s4")
    spin_lds(F_MRL, 1, "v3", "v5")
    a(f"v_add_u32 v10, {L_MR}, v7")
    loadB("v10", 4, 4096, 512)
    gemv(L_ACT1, 4)
    publish(14, O_MOD)
    a.label("L_m_s4")
    spin_lds(F_WOL, 1, "v3", "v5", sleep=False)
    a(f"v_add_u32 v10, {L_WO}, v7")
    loadB("v10", 4, 4096, 512)
    a("s_waitcnt lgkmcnt(0)")
    a("s_barrier")
    gemv(L_ACT4, 4)
    publish_pair(O_A4)
    arrive(F_PA, "v3", "v4")
    stamp(8)
    spin_lds(F_LATE, 1, "v3", "v5")
    a(f"v_add_u32 v10, {L_DN}, v7")
    loadB("v10", 2, 4096, 512, base=64)
    a(f"s_lshr_b32 s90, {S_W}, 1")
    a("s_lshl_b32 s90, s90, 13")
    a(f"s_add_u32 s90, s90, {L_G}")
    a("v_add_u32 v11, s90, v12")
    loadB("v11", 4, 2048, 256)
    a("s_waitcnt lgkmcnt(0)")
    a("s_barrier")
    a(f"s_cmp_eq_u32 {S_CB}, 7")
    a("s_cbranch_scc1 L_m_s7")
    gemv(L_ACT6, 4)
    publish(13, O_GU, local=True)
    a.label("L_m_s7")
    arrive(F_PG, "v3", "v4")
    stamp(9)
    a("s_barrier")
    gemv(L_ACT7, 2, bbase=64)
    publish_pair(O_DN)
    arrive(F_PD, "v3", "v4")
    stamp(10)
    dump_stamps(11)
    a("s_endpgm")

    a.label("L_gwave")
    a(f"s_cmp_eq_u32 {S_W}, 4")
    a("s_cbranch_scc1 L_slice")
    a(f"s_cmp_eq_u32 {S_W}, 7")
    a("s_cbranch_scc1 L_aux")

    SB = "s97"
    a(f"s_sub_u32 {SB}, {S_W}, 5")
    a("v_lshlrev_b32 v1, 4, v0")
    a("v_lshlrev_b32 v2, 2, v0")
    a(f"s_lshl_b32 s90, {SB}, 10")
    a(f"s_and_b32 s94, {S_SPL}, 3")
    a("s_lshl_b32 s94, s94, 8")
    a("s_add_u32 s94, s94, s90")
    a("v_add_u32 v16, s94, v2")
    a("v_add_u32 v17, s90, v1")
    a(f"s_lshr_b32 s94, {S_SPL}, 2")
    a("s_lshl_b32 s94, s94, 8")
    a("s_add_u32 s94, s94, s90")
    a("v_add_u32 v18, s94, v2")
    a("v_mov_b32 v10, 1")
    a(f"s_mul_i32 s98, {SB}, {APITCH}")
    a("v_add_u32 v11, s98, v2")
    a("v_mov_b32 v19, 0")
    spin_lds(F_XC, 1, "v19", "v20", sleep=False)
    a(f"ds_read_b32 v9, v16 offset:{L_C}")
    a(f"ds_read_b128 v[4:7], v17 offset:{L_X}")
    a(f"ds_read_b32 v8, v18 offset:{L_X}")
    a("s_waitcnt lgkmcnt(2)")
    stamp(1)
    a("v_lshlrev_b32 v12, 16, v9")
    a("v_and_b32 v13, 0xffff0000, v9")
    a(f"s_mov_b32 s94, {LOG2E:#x}")
    for r in (12, 13): a(f"v_mul_f32 v{r+2}, s94, v{r}")
    for r in (12, 13): a(f"v_exp_f32 v{r+2}, -v{r+2}")
    for r in (12, 13): a(f"v_add_f32 v{r+2}, 1.0, v{r+2}")
    for r in (12, 13): a(f"v_rcp_f32 v{r+2}, v{r+2}")
    for r in (12, 13): a(f"v_mul_f32 v{r}, v{r}, v{r+2}")
    a("v_cvt_pk_bf16_f32 v12, v12, v13")
    a(f"ds_write_b32 v11, v12 offset:{L_ACT1}")
    arrive(F_1, "v19", "v10")
    a("s_waitcnt vmcnt(0) lgkmcnt(0)")
    get_tag()
    a("v_mov_b32 v3, 0")

    def ln_finish(mean, var, x0, x1, tmp):
        bf16r2(mean, var, mean, var, tmp)
        a(f"s_mov_b32 s94, {EPS:#x}")
        a(f"v_add_f32 {var}, s94, {var}")
        bf16r1(var, var)
        a(f"v_sqrt_f32 {var}, {var}")
        a(f"v_sub_f32 {x0}, {x0}, {mean}")
        a(f"v_sub_f32 {x1}, {x1}, {mean}")
        bf16r1(var, var)
        a(f"v_rcp_f32 {var}, {var}")
        bf16r2(x0, x1, x0, x1, tmp)
        a(f"v_mul_f32 {x0}, {x0}, {var}")
        a(f"v_mul_f32 {x1}, {x1}, {var}")
        bf16r2(x0, x1, x0, x1, tmp)

    def quarter_gather(chunkA, chunkB, qreg, pre=None, sample=False):
        for (ch, sreg) in ((chunkA, "s90"), (chunkB, "s99")):
            sexpr(sreg, [(SB, "shl", 14), (qreg, "shl", 12)], W_MOD + ch*32768)
        loads = []; tags = []
        for i in range(4):
            loads.append(f"buffer_load_dwordx4 v[{16+4*i}:{19+4*i}], v1, {WSRD}, s90 offen offset:{1024*i} sc1")
            loads.append(f"buffer_load_dwordx4 v[{32+4*i}:{35+4*i}], v1, {WSRD}, s99 offen offset:{1024*i} sc1")
            tags += [f"v{17+4*i}", f"v{19+4*i}", f"v{33+4*i}", f"v{35+4*i}"]
        if pre: pre()
        poll(loads, tags, "v50", sample=sample)
        for (base, d0, d1) in ((16, "v14", "v15"), (32, "v48", "v49")):
            a(f"v_add_f32 {d0}, v{base}, v{base+4}")
            a(f"v_add_f32 {d1}, v{base+2}, v{base+6}")
            a(f"v_add_f32 v50, v{base+8}, v{base+12}")
            a(f"v_add_f32 v51, v{base+10}, v{base+14}")
            a(f"v_add_f32 {d0}, {d0}, v50")
            a(f"v_add_f32 {d1}, {d1}, v51")
            bf16r2(d0, d1, d0, d1, "v50")

    def modulate(x0, x1, sc0, sc1, sh0, sh1, dst, tmp):
        a(f"v_mul_f32 {x0}, {x0}, {sc0}")
        a(f"v_mul_f32 {x1}, {x1}, {sc1}")
        bf16r2(x0, x1, x0, x1, tmp)
        a(f"v_add_f32 {x0}, {x0}, {sh0}")
        a(f"v_add_f32 {x1}, {x1}, {sh1}")
        a(f"v_cvt_pk_bf16_f32 {dst}, {x0}, {x1}")

    a(f"s_cmp_eq_u32 {S_B}, 0")
    a("s_cbranch_scc1 L_q_qg")
    for i in range(4):
        a(f"v_lshlrev_b32 v{16+2*i}, 16, v{4+i}")
        a(f"v_and_b32 v{17+2*i}, 0xffff0000, v{4+i}")
    a("v_add_f32 v24, v16, v17")
    a("v_add_f32 v25, v18, v19")
    a("v_add_f32 v26, v20, v21")
    a("v_add_f32 v27, v22, v23")
    a("v_add_f32 v24, v24, v25")
    a("v_add_f32 v26, v26, v27")
    a("v_add_f32 v24, v24, v26")
    allreduce(["v24"], "v_add_f32", ["v28"], FULL)
    a(f"s_mov_b32 s94, {INV512:#x}")
    a("v_mul_f32 v24, s94, v24")
    for i in range(8): a(f"v_sub_f32 v{16+i}, v{16+i}, v24")
    a("v_mul_f32 v25, v16, v16")
    for i in range(1, 8): a(f"v_fmac_f32 v25, v{16+i}, v{16+i}")
    allreduce(["v25"], "v_add_f32", ["v28"], FULL)
    a("v_mul_f32 v25, s94, v25")
    a("v_lshlrev_b32 v12, 16, v8")
    a("v_and_b32 v13, 0xffff0000, v8")
    ln_finish("v24", "v25", "v12", "v13", "v28")
    a(f"s_lshr_b32 s100, {S_SPL}, 2")
    quarter_gather(0, 1, "s100", pre=lambda: after_own(F_PM, 2, "v3", "v50", cfg.d_h))
    a("v_add_f32 v48, 1.0, v48")
    a("v_add_f32 v49, 1.0, v49")
    bf16r2("v48", "v49", "v48", "v49", "v50")
    modulate("v12", "v13", "v48", "v49", "v14", "v15", "v16", "v50")
    a(f"ds_write_b32 v11, v16 offset:{L_ACT2}")
    arrive(F_2, "v3", "v10")
    stamp(2)
    a.label("L_q_qg")
    sexpr("s90", [(S_X, "shl", 15), (S_B, "shl", 14), (SB, "shl", 13)], W_Q)
    a("s_add_u32 s99, s90, 4096")
    a(f"s_mul_i32 s100, {SB}, {2*APITCH}")
    a("v_add_u32 v54, s100, v2")
    loads = []; tags = []
    for i in range(4):
        loads.append(f"buffer_load_dwordx4 v[{16+4*i}:{19+4*i}], v1, {WSRD}, s90 offen offset:{1024*i} sc1")
        loads.append(f"buffer_load_dwordx4 v[{32+4*i}:{35+4*i}], v1, {WSRD}, s99 offen offset:{1024*i} sc1")
        tags += [f"v{17+4*i}", f"v{19+4*i}", f"v{33+4*i}", f"v{35+4*i}"]
    a(f"s_cmp_eq_u32 {S_B}, 0")
    a("s_cbranch_scc1 L_q_qA")
    after_own(F_PQ, 4, "v3", "v50", cfg.d_q)
    poll(loads, tags, "v50")
    a("s_branch L_q_qE")
    a.label("L_q_qA")
    poll(loads, tags, "v50", sample=True, sleep=4)
    a.label("L_q_qE")
    for (base, hh) in ((16, 0), (32, 1)):
        a(f"v_add_f32 v48, v{base}, v{base+4}")
        a(f"v_add_f32 v49, v{base+2}, v{base+6}")
        a(f"v_add_f32 v50, v{base+8}, v{base+12}")
        a(f"v_add_f32 v51, v{base+10}, v{base+14}")
        a("v_add_f32 v48, v48, v50")
        a("v_add_f32 v49, v49, v51")
        a(f"v_cvt_pk_bf16_f32 v{52+hh}, v48, v49")
    a(f"ds_write_b32 v54, v52 offset:{L_Q}")
    a(f"ds_write_b32 v54, v53 offset:{L_Q+APITCH}")
    arrive(F_3, "v3", "v10")
    stamp(3)
    sexpr("s90", [(S_X, "shl", 16), (S_KQ, "shl", 14), (SB, "shl", 13)], W_O)
    a("s_add_u32 s99, s90, 4096")
    sexpr("s100", [(S_X, "shl", 11), (SB, "shl", 10), (S_KQ, "shl", 8)], W_ST)
    a("v_lshlrev_b32 v54, 3, v0")
    a("v_and_b32 v55, 15, v0")
    a("v_lshlrev_b32 v55, 4, v55")
    loads = [f"buffer_load_dwordx4 v[48:51], v55, {WSRD}, s100 offen sc1"]; tags = ["v49", "v51"]
    for i in range(16):
        sr = "s90" if i < 8 else "s99"
        loads.append(f"buffer_load_dwordx2 v[{16+2*i}:{17+2*i}], v54, {WSRD}, {sr} offen offset:{512*(i&7)} sc1")
        tags.append(f"v{17+2*i}")
    a("v_lshrrev_b32 v56, 4, v0")
    a("v_lshlrev_b32 v56, 6, v56")
    a("v_and_b32 v57, 15, v0")
    a("v_lshl_add_u32 v56, v57, 1, v56")
    a("v_add_u32 v56, s98, v56")
    after_own(F_PO, 4, "v3", "v52", cfg.d_r1)
    stamp(4)
    a(f"s_cmp_eq_u32 {S_B}, 0")
    a("s_cbranch_scc1 L_q_r1A")
    poll(loads, tags, "v52")
    a("s_branch L_q_r1E")
    a.label("L_q_r1A")
    poll(loads, tags, "v52", sample=True, sleep=1)
    a.label("L_q_r1E")
    stamp(10)
    a("v_mov_b32 v58, v48")
    allreduce(["v58"], "v_max_f32", [], ["x1", "x2", "x4", "x8"])
    a(f"s_mov_b32 s94, {LOG2E:#x}")
    a("v_sub_f32 v59, v48, v58")
    a("v_mul_f32 v59, s94, v59")
    a("v_exp_f32 v59, v59")
    a("s_nop 0")
    a("v_mul_f32 v60, v59, v50")
    allreduce(["v60"], "v_add_f32", [], ["x1", "x2", "x4", "x8"])
    a("v_rcp_f32 v60, v60")
    a("s_nop 0")
    a("v_mul_f32 v59, v59, v60")
    for i in range(16): a(f"v_readlane_b32 s{16+i}, v59, {i}")
    for i in range(16):
        a(f"v_lshlrev_b32 v{60 + (i&1)*2}, 16, v{16+2*i}")
        a(f"v_and_b32 v{61 + (i&1)*2}, 0xffff0000, v{16+2*i}")
        if i < 2:
            a(f"v_mul_f32 v{52+2*i - (0 if i == 0 else 0)}, s{16+i}, v{60 + (i&1)*2}") if False else None
        if i == 0:
            a("v_mul_f32 v52, s16, v60"); a("v_mul_f32 v53, s16, v61")
        elif i == 1:
            a("v_mul_f32 v48, s17, v62"); a("v_mul_f32 v49, s17, v63")
        elif i & 1 == 0:
            a(f"v_fmac_f32 v52, s{16+i}, v60"); a(f"v_fmac_f32 v53, s{16+i}, v61")
        else:
            a(f"v_fmac_f32 v48, s{16+i}, v62"); a(f"v_fmac_f32 v49, s{16+i}, v63")
    a("v_add_f32 v52, v52, v48")
    a("v_add_f32 v53, v53, v49")
    a("v_cvt_pk_bf16_f32 v52, v52, v53")
    a(f"ds_write_b16 v56, v52 offset:{L_ACT4}")
    a(f"ds_write_b16_d16_hi v56, v52 offset:{L_ACT4+32}")
    a("s_waitcnt lgkmcnt(0)")
    stamp(5)
    a("s_barrier")
    quarter_gather(3, 4, S_KQ)
    a("v_add_f32 v48, 1.0, v48")
    a("v_add_f32 v49, 1.0, v49")
    bf16r2("v56", "v57", "v48", "v49", "v50")
    a("v_mov_b32 v58, v14")
    a("v_mov_b32 v59, v15")
    sexpr("s99", [(S_X, "shl", 10), (SB, "shl", 9)], W_X1S)
    sexpr("s90", [(S_X, "shl", 12), (SB, "shl", 11), (S_KQ, "shl", 9)], W_X1P)
    a("v_lshlrev_b32 v16, 3, v0")
    a("v_and_b32 v17, 31, v0")
    a("v_lshlrev_b32 v17, 4, v17")
    after_own(F_PX, 1, "v3", "v50", cfg.d_x1)
    stamp(8)
    poll([f"buffer_load_dwordx4 v[24:27], v17, {WSRD}, s99 offen sc1",
          f"buffer_load_dwordx2 v[20:21], v16, {WSRD}, s90 offen sc1"], ["v21", "v25", "v27"], "v50")
    stamp(9)
    allreduce(["v24", "v26"], "v_add_f32", ["v28", "v29"], ["x1", "x2", "x4", "x8", "x16"])
    a(f"s_mov_b32 s94, {INV512:#x}")
    a("v_mul_f32 v24, s94, v24")
    a("v_mul_f32 v26, s94, v26")
    a("v_lshlrev_b32 v12, 16, v20")
    a("v_fma_f32 v26, -v24, v24, v26")
    a("v_and_b32 v13, 0xffff0000, v20")
    a("v_max_f32 v26, 0, v26")
    ln_finish("v24", "v26", "v12", "v13", "v30")
    modulate("v12", "v13", "v56", "v57", "v58", "v59", "v16", "v30")
    a(f"ds_write_b32 v11, v16 offset:{L_ACT6}")
    a(f"s_mul_i32 s94, {S_KQ}, 448")
    sexpr("s90", [(S_X, "shl", 15), (SB, "shl", 13), ("s94", "shl", 0)], W_GU, tmp="s99")
    a("s_add_u32 s94, s90, 4096")
    a("s_add_u32 s99, s90, 16384")
    a("s_add_u32 s100, s90, 20480")
    a("s_waitcnt lgkmcnt(0)")
    stamp(6)
    a("s_barrier")
    a("v_lshlrev_b32 v16, 3, v0")
    a("v_mov_b32 v40, 0")
    a("v_lshlrev_b32 v17, 1, v0")
    a("v_add_u32 v17, s98, v17")
    a("s_mov_b32 exec_lo, -1")
    a("s_mov_b32 exec_hi, 0x00ffffff")
    loads = []; tags = []
    for wh in range(2):
        for k6 in range(4):
            sr = [["s90", "s94"], ["s99", "s100"]][wh][k6 >> 1]
            rb = 20 + 8*wh + 2*k6
            loads.append(f"buffer_load_dwordx2 v[{rb}:{rb+1}], v16, {WSRD}, {sr} offen offset:{2048*(k6&1)} sc1")
            tags.append(f"v{rb+1}")
    after_own(F_PG, 4, "v3", "v50", cfg.d_gu)
    poll(loads, tags, "v50")
    a("v_add_f32 v36, v20, v22")
    a("v_add_f32 v37, v24, v26")
    a("v_add_f32 v38, v28, v30")
    a("v_add_f32 v39, v32, v34")
    a("v_add_f32 v36, v36, v37")
    a("v_add_f32 v38, v38, v39")
    bf16r2("v36", "v38", "v36", "v38", "v50")
    a("v_mul_f32 v36, v36, v38")
    a("v_cvt_pk_bf16_f32 v40, v36, v36")
    a("s_mov_b64 exec, -1")
    a(f"ds_write_b16 v17, v40 offset:{L_ACT7}")
    a("s_waitcnt lgkmcnt(0)")
    stamp(7)
    a("s_barrier")
    dump_stamps(11)
    a("s_endpgm")

    a.label("L_slice")
    srd(48, 38, 2048)
    a("v_and_b32 v1, 3, v0")
    a("v_lshlrev_b32 v7, 4, v0")
    a("v_mov_b32 v19, 0")
    a("v_lshlrev_b32 v2, 3, v1")
    a(f"s_lshl_b32 s90, {S_LOC}, 5")
    a("v_add_u32 v2, s90, v2")
    a("v_lshlrev_b32 v6, 5, v1")
    a(f"s_lshr_b32 s90, {S_LOC}, 3")
    a(f"s_and_b32 s91, {S_LOC}, 7")
    sexpr("s16", [("s90", "shl", 12), ("s91", "shl", 7)], W_MOD)
    a(f"s_lshl_b32 s17, {S_LOC}, 12")
    spin_lds(F_XC, 1, "v19", "v20")
    a(f"ds_read_b64 v[4:5], v2 offset:{L_X}")
    a(f"ds_read_b64 v[12:13], v2 offset:{L_X+1024}")
    a("s_waitcnt vmcnt(0) lgkmcnt(0)")
    get_tag()
    a("v_mov_b32 v3, 0")
    for (src, dst) in ((4, 100), (5, 102), (12, 104), (13, 106)):
        a(f"v_lshlrev_b32 v{dst}, 16, v{src}")
        a(f"v_and_b32 v{dst+1}, 0xffff0000, v{src}")
    get_mode("v3", "v20")
    stamp(1)

    def mod_loads(chunk, rb0):
        a(f"s_add_u32 s18, s16, {chunk*32768}")
        a(f"s_add_u32 s19, s18, 16384")
        loads = []; tags = []
        for b in range(2):
            for i in range(4):
                for hh in range(2):
                    rb = rb0 + 32*b + 8*i + 4*hh
                    loads.append(f"buffer_load_dwordx4 v[{rb}:{rb+3}], v6, {WSRD}, {'s18' if b == 0 else 's19'} offen offset:{1024*i + 16*hh} sc1")
                    tags += [f"v{rb+1}", f"v{rb+3}"]
        return loads, tags
    def mod_sum(rb0, d):
        for b in range(2):
            for c in range(4):
                r = rb0 + 32*b + 4*(c >> 1) + 2*(c & 1)
                a(f"v_add_f32 v{r}, v{r}, v{r+8}")
                a(f"v_add_f32 v{r+16}, v{r+16}, v{r+24}")
            for c in range(4):
                r = rb0 + 32*b + 4*(c >> 1) + 2*(c & 1)
                a(f"v_add_f32 {d[4*b+c]}, v{r}, v{r+16}")
        for k in range(0, 8, 2): bf16r2(d[k], d[k+1], d[k], d[k+1], "v14")
    def part_loads(base):
        a(f"s_add_u32 s20, s17, {base}")
        loads = []; tags = []
        for i in range(4):
            rb = 16 + 4*i
            loads.append(f"buffer_load_dwordx4 v[{rb}:{rb+3}], v7, {WSRD}, s20 offen offset:{1024*i} sc1")
            tags += [f"v{rb+1}", f"v{rb+3}"]
        return loads, tags
    def part_sum():
        a("v_mov_b32 v8, 0x3f80")
        a("v_mov_b32 v9, 0x3f800000")
        for b in range(2):
            for (k, (off, sel)) in enumerate(((0, "v8"), (0, "v9"), (2, "v8"), (2, "v9"))):
                d = f"v{108+4*b+k}"
                r0 = 16 + 8*b + off
                a(f"v_dot2_f32_bf16 {d}, v{r0}, {sel}, 0")
                a(f"v_dot2_f32_bf16 {d}, v{r0+4}, {sel}, {d}")
        regs = [f"v{108+k}" for k in range(8)]
        allreduce(regs, "v_add_f32", [f"v{16+k}" for k in range(8)], ["r4", "r8", "x16", "x32"])
    def resid(gate, xio):
        regs = [f"v{108+k}" for k in range(8)]
        for k in range(0, 8, 2): bf16r2(regs[k], regs[k+1], regs[k], regs[k+1], "v14")
        for k in range(8): a(f"v_mul_f32 {regs[k]}, {regs[k]}, {gate[k]}")
        for k in range(0, 8, 2): bf16r2(regs[k], regs[k+1], regs[k], regs[k+1], "v14")
        for k in range(8): a(f"v_add_f32 {xio[k]}, {xio[k]}, {regs[k]}")
    XR = [f"v{100+k}" for k in range(8)]
    GA = [f"v{116+k}" for k in range(8)]

    l1, t1 = part_loads(W_A4)
    a("v_bfe_u32 v10, v0, 2, 1")
    a("v_lshlrev_b32 v98, 11, v10")
    a("v_lshl_add_u32 v98, v1, 4, v98")
    a("v_lshlrev_b32 v99, 9, v10")
    sexpr("s22", [(S_X, "shl", 12), (S_LOC, "shl", 6)], W_X1P)
    sexpr("s23", [(S_X, "shl", 10), (S_LOC, "shl", 4)], W_X1S)
    a("s_barrier")
    l2, t2 = mod_loads(2, 32)
    poll(l2, t2, "v15")
    mod_sum(32, GA)
    after_own(F_PA, 4, "v3", "v15", cfg.d_s5)
    stamp(2)
    poll(l1, t1, "v15")
    stamp(3)
    part_sum()
    resid(GA, XR)
    for k in range(4): a(f"v_cvt_pk_bf16_f32 v{20+k}, {XR[2*k]}, {XR[2*k+1]}")
    for k in range(4):
        a(f"v_lshlrev_b32 {XR[2*k]}, 16, v{20+k}")
        a(f"v_and_b32 {XR[2*k+1]}, 0xffff0000, v{20+k}")
    a("v_cmp_eq_u32 vcc, 1, v10")
    a(f"v_mov_b32 v25, {S_TAG}")
    a(f"v_mov_b32 v27, {S_TAG}")
    a("v_cndmask_b32 v24, v20, v22, vcc")
    a("v_cndmask_b32 v26, v21, v23, vcc")
    a("s_mov_b64 exec, 0xff")
    store_loc(f"buffer_store_dwordx4 v[24:27], v98, {WSRD}, s22 offen")
    a("s_mov_b64 exec, -1")
    a(f"v_add_f32 v16, {XR[0]}, {XR[1]}")
    a(f"v_add_f32 v18, {XR[4]}, {XR[5]}")
    a(f"v_mul_f32 v17, {XR[0]}, {XR[0]}")
    a(f"v_mul_f32 v19, {XR[4]}, {XR[4]}")
    a(f"v_add_f32 v16, v16, {XR[2]}")
    a(f"v_add_f32 v18, v18, {XR[6]}")
    for k in (1, 2, 3):
        a(f"v_fmac_f32 v17, {XR[k]}, {XR[k]}")
        a(f"v_fmac_f32 v19, {XR[4+k]}, {XR[4+k]}")
    a(f"v_add_f32 v16, v16, {XR[3]}")
    a(f"v_add_f32 v18, v18, {XR[7]}")
    allreduce(["v16", "v17", "v18", "v19"], "v_add_f32", [], ["x1", "x2"])
    a(f"v_mov_b32 v29, {S_TAG}")
    a(f"v_mov_b32 v31, {S_TAG}")
    a("v_cndmask_b32 v28, v16, v18, vcc")
    a("v_cndmask_b32 v30, v17, v19, vcc")
    a("s_mov_b64 exec, 0x11")
    store_loc(f"buffer_store_dwordx4 v[28:31], v99, {WSRD}, s23 offen")
    a("s_mov_b64 exec, -1")
    a("v_mov_b32 v15, 1")
    arrive(F_PX, "v3", "v15")
    stamp(4)
    a(f"s_and_b32 s90, {S_LOC}, 7")
    a(f"s_cmp_lg_u32 s90, {S_X}")
    a("s_cbranch_scc1 L_slice_nf")
    l2, t2 = mod_loads(5, 32)
    poll(l2, t2, "v15")
    mod_sum(32, GA)
    a("s_barrier")
    a("s_barrier")
    l1, t1 = part_loads(W_DN)
    a("v_lshlrev_b32 v98, 10, v10")
    a("v_lshl_add_u32 v98, v1, 3, v98")
    a(f"s_lshl_b32 s22, {S_LOC}, 5")
    after_own(F_PD, 4, "v3", "v15", cfg.d_s8)
    poll(l1, t1, "v15")
    part_sum()
    resid(GA, XR)
    for k in range(4): a(f"v_cvt_pk_bf16_f32 v{20+k}, {XR[2*k]}, {XR[2*k+1]}")
    a("v_cmp_eq_u32 vcc, 1, v10")
    a("v_cndmask_b32 v24, v20, v22, vcc")
    a("v_cndmask_b32 v25, v21, v23, vcc")
    a("s_mov_b64 exec, 0xff")
    a("buffer_store_dwordx2 v[24:25], v98, s[48:51], s22 offen")
    a(f"s_cmp_lg_u32 {S_WG}, 0")
    a("s_cbranch_scc1 L_slice_end")
    a("s_mov_b64 exec, 1")
    a(f"v_mov_b32 v24, {S_EP}")
    a("v_mov_b32 v21, 0")
    a(f"buffer_store_dword v24, v21, {WSRD}, 0 offen sc1")
    a.label("L_slice_end")
    if cfg.probe == 1:
        a("s_sleep 94")
        a("s_sleep 94")
    if cfg.probe == 2:
        a("s_memrealtime s[20:21]")
        a("s_waitcnt lgkmcnt(0)")
        a("s_add_u32 s22, s20, 500")
        a.label("L_probe")
        a("s_memrealtime s[20:21]")
        a("s_waitcnt lgkmcnt(0)")
        a("s_sub_u32 s23, s20, s22")
        a("s_cmp_lt_i32 s23, 0")
        a("s_cbranch_scc1 L_probe")
    a("s_mov_b64 exec, -1")
    stamp(5)
    dump_stamps(6)
    a("s_endpgm")
    a.label("L_slice_nf")
    a("s_barrier")
    a("s_barrier")
    dump_stamps(5)
    a("s_endpgm")

    a.label("L_aux")
    srd(44, 28, 512*1792*2)
    srd(48, 30, 512*1792*2)
    srd(52, 32, 1792*512*2)
    a("v_mov_b32 v10, 1")
    sexpr("s18", [(S_X, "mul", 224*1024), (S_KQ, "mul", 56*1024), (S_CB, "shl", 7)])
    sexpr("s19", [(S_KQ, "mul", 128*3584), (S_X, "mul", 448), (S_CB, "shl", 6)])
    a("s_waitcnt vmcnt(0)")
    get_tag()
    strip_voff(3584, "v31")
    unit_voffs(pitch_shift=10, d0="v32", d1="v33")
    a("v_mov_b32 v3, 0")
    stamp(1)
    if cfg.local == 2:
        L = a.newlabel("Lxc"); E = a.newlabel("Lxce")
        srd(60, 40, 256)
        a(f"s_lshl_b32 s91, {S_X}, 5")
        a("s_add_u32 s91, s91, 8")
        a("v_mov_b32 v18, s91")
        a("s_getreg_b32 s90, hwreg(HW_REG_XCC_ID)")
        a("s_and_b32 s90, s90, 7")
        a("s_mul_i32 s90, s90, 6")
        a("s_lshl_b64 s[26:27], 1, s90")
        a("s_mov_b64 exec, 1")
        a.label(L)
        a("buffer_load_dwordx2 v[20:21], v18, s[60:63], 0 offen sc1")
        a("s_waitcnt vmcnt(0)")
        a("v_readfirstlane_b32 s20, v20")
        a("v_readfirstlane_b32 s21, v21")
        a("s_mov_b64 s[22:23], s[20:21]")
        a("s_mov_b32 s90, 0")
        for k in range(8):
            a("s_and_b32 s91, s22, 63")
            a("s_add_u32 s90, s90, s91")
            if k < 7: a("s_lshr_b64 s[22:23], s[22:23], 6")
        a("s_cmp_ge_u32 s90, 32")
        a(f"s_cbranch_scc1 {E}")
        timeout()
        a("s_sleep 2")
        a(f"s_branch {L}")
        a.label(E)
        a("s_lshl_b64 s[22:23], s[26:27], 5")
        a("s_cmp_eq_u64 s[20:21], s[22:23]")
        a("s_cselect_b32 s90, 1, 2")
        a("v_mov_b32 v16, s90")
        a(f"ds_write_b32 v3, v16 offset:{F_LM}")
        a("s_mov_b64 exec, -1")
    stamp(2)
    a("s_barrier")
    a(f"s_cmp_eq_u32 {S_CB}, 7")
    a("s_cbranch_scc1 L_aux_dn")
    a(f"s_mov_b32 m0, {L_G}")
    a("s_mov_b32 s99, 8")
    a.label("L_aux_gu")
    a("buffer_load_dwordx4 v31, s[44:47], s19 offen nt lds")
    a("s_add_u32 m0, m0, 0x2000")
    a("s_nop 0")
    a("buffer_load_dwordx4 v31, s[48:51], s19 offen nt lds")
    a("s_sub_u32 m0, m0, 0x1c00")
    a(f"s_add_u32 s19, s19, {16*3584}")
    a("s_sub_u32 s99, s99, 1")
    a("s_cmp_lg_u32 s99, 0")
    a("s_cbranch_scc1 L_aux_gu")
    a.label("L_aux_dn")
    a(f"s_mov_b32 m0, {L_DN}")
    a("s_nop 0")
    for i in range(8):
        a(f"buffer_load_dwordx4 v{32 + (i&1)}, s[52:55], s18 offen nt lds")
        a("s_add_u32 m0, m0, 0x400")
        a("s_add_u32 s18, s18, 0x2000")
    a("s_waitcnt vmcnt(0)")
    arrive(F_LATE, "v3", "v10")
    stamp(3)
    a("s_barrier")
    a("s_barrier")
    dump_stamps(4)
    a("s_endpgm")

    a.label("L_abort")
    a("s_mov_b64 exec, 1")
    a("v_mov_b32 v1, 0")
    a(f"s_lshl_b32 s90, {S_WG}, 16")
    a("s_or_b32 s90, s90, s1") if cfg.site else None
    a("v_mov_b32 v2, s90")
    a(f"s_and_b32 s90, {S_W}, 1")
    a("s_lshl_b32 s90, s90, 2")
    a("v_mov_b32 v1, s90")
    a("v_or_b32 v2, 0xde000000, v2")
    a("s_mov_b32 s44, s40")
    a("s_and_b32 s45, s41, 0xffff")
    a("s_mov_b32 s46, 256")
    a("s_mov_b32 s47, 0x20000")
    a("buffer_store_dword v2, v1, s[44:47], 0 offen")
    a.label("L_end")
    a("s_endpgm")

    hdr = open(f"cdna_kernels/{NAME}.s.ref").read().split("; Override launch")[0]
    out = hdr
    out += f"; @launch grid=(256,1,1) block=(576,1,1) lds={L_TOTAL}\n"
    out += '.amdgcn_target "amdgcn-amd-amdhsa--gfx950"\n.text\n'
    out += f".globl {NAME}_kernel\n.p2align 8\n.type {NAME}_kernel,@function\n"
    out += a.text()
    out += f""".section .rodata,"a"
.p2align 6
.amdhsa_kernel {NAME}_kernel
  .amdhsa_next_free_vgpr 128
  .amdhsa_next_free_sgpr 102
  .amdhsa_accum_offset 128
  .amdhsa_group_segment_fixed_size 0
  .amdhsa_kernarg_size 112
  .amdhsa_user_sgpr_count 2
  .amdhsa_user_sgpr_kernarg_segment_ptr 1
  .amdhsa_system_sgpr_workgroup_id_x 1
.end_amdhsa_kernel
"""
    return out

if __name__ == "__main__":
    cfg = Cfg()
    outp = sys.argv[1]
    for arg in sys.argv[2:]:
        k, v = arg.split("=")
        assert hasattr(cfg, k), k
        setattr(cfg, k, int(v))
    open(outp, "w").write(gen(cfg))
    print("wrote", outp)
```

```python
import sys
from asmlib import Asm

NAME = "adaLN_cond__sliding_block_cached__glu_gated_bilinear__decode"

class Cfg:
    D = 40
    DA = 28
    stamps = 0
    spin = 1 << 20
    rsl = 1
    local = 2
    touch = 1
    quiet = 0
    prio = 0
    qsl = 4
    kstart = 1
    d_h = 4
    d_q = 1
    d_r1 = 1
    d_s5 = 8
    d_x1 = 1
    d_gu = 1
    d_s8 = 2
    atom8 = 1
    probe = 0
    site = 0

(F_LC, F_1, F_2, F_3, F_EC, F_KC, F_MB1, F_MB2, F_LATE, F_PO, F_PA, F_PX, F_PG, F_PD,
 F_PM, F_PQ, F_XC, F_WQ, F_WOL, F_MRL, F_LM, F_GA) = [4*i for i in range(22)]
L_MX = 128; L_LS = 192; L_ZERO = 256
L_ACT1 = 768; L_ACT2 = 1344; L_ACT4 = 1920; L_ACT6 = 2496; L_ACT7 = 3072
L_GA = 7168; L_GB = 7296
L_Q = 3648
L_P = 4736
L_X = 8192; L_C = 10240
L_K = 12288; L_V = L_K + 73728; L_TOTAL = L_V + 73728; L_MR = L_V + 57344
NK_A = 288; NK_B = 224
L_MODB = L_K; L_WQ = L_V
L_WO = L_K; L_G = L_K + 16384; L_U = L_K + 24576; L_DN = L_K + 32768
APITCH = 272; PPITCH = 592

W_EPOCH = 0
W_MOD = 0x1000
W_MODF = 0x38000
W_Q = 0x40000
W_ST = 0x80000
W_O = 0x90000
W_A4 = 0x110000
W_X1P = 0x150000
W_X1S = 0x158000
W_GU = 0x160000
W_DN = 0x1A0000
W_STAMP = 0x200000
W_USED = 0x300000

LOG2E = 0x3fb8aa3b
SCALE = 0x3db504f3
EPS = 0x3727c5ac
INV512 = 0x3b000000

S_WG, S_W, S_X, S_LOC, S_B, S_SPL, S_KQ, S_CB, S_TAG, S_SPIN = "s2", "s3", "s4", "s5", "s6", "s7", "s8", "s9", "s10", "s11"
S_U = "s7"
S_BT = "s86"
S_SP = "s87"
WSRD = "s[12:15]"
S_EP = "s89"
S_LM = "s88"
PX = "s[42:43]"
S_PH = "s101"
KB_B = 8

def gen(cfg):
    a = Asm()
    D = cfg.D

    def srd(dst, plo, size):
        a(f"s_mov_b32 s{dst}, s{plo}")
        a(f"s_and_b32 s{dst+1}, s{plo+1}, 0xffff")
        a(f"s_mov_b32 s{dst+2}, {size}")
        a(f"s_mov_b32 s{dst+3}, 0x20000")

    def stamp(k):
        if cfg.stamps: a(f"s_memrealtime s[{64+2*k}:{65+2*k}]")

    def dump_stamps(n):
        if not cfg.stamps: return
        a("s_waitcnt lgkmcnt(0)")
        a(f"s_mul_i32 s90, {S_WG}, 9")
        a(f"s_add_u32 s90, s90, {S_W}")
        a("s_lshl_b32 s90, s90, 7")
        a(f"s_add_u32 s90, s90, {W_STAMP}")
        a("s_mov_b64 exec, 1")
        a("v_mov_b32 v1, 0")
        for k in range(n):
            a(f"v_mov_b32 v2, s{64+2*k}")
            a(f"v_mov_b32 v3, s{65+2*k}")
            a(f"buffer_store_dwordx2 v[2:3], v1, {WSRD}, s90 offen offset:{8*k}")
            a("s_nop 1")
        a("s_waitcnt vmcnt(0)")

    sites = [0]
    def timeout():
        if cfg.site:
            sites[0] += 1
            a(f"s_mov_b32 s1, {sites[0]}")
        a(f"s_sub_u32 {S_SPIN}, {S_SPIN}, 1")
        a("s_cbranch_scc1 L_abort")

    def spin_lds(off, n, vz, vt, sleep=True):
        L = a.newlabel("Lsp"); E = a.newlabel("Lspe")
        a.label(L)
        a(f"ds_read_b32 {vt}, {vz} offset:{off}")
        a("s_waitcnt lgkmcnt(0)")
        a(f"v_readfirstlane_b32 s91, {vt}")
        a(f"s_cmp_ge_i32 s91, {n}")
        a(f"s_cbranch_scc1 {E}")
        timeout()
        if sleep: a("s_sleep 1")
        a(f"s_branch {L}")
        a.label(E)

    def arrive(off, vz, vone):
        a("s_mov_b64 s[92:93], exec")
        a("s_mov_b64 exec, 1")
        a(f"ds_add_u32 {vz}, {vone} offset:{off}")
        a("s_mov_b64 exec, s[92:93]")

    def poll(loads, tags, vacc, sleep=None, sample=False):
        if sleep is None: sleep = cfg.rsl
        L = a.newlabel("Lpl"); E = a.newlabel("Lple"); R = a.newlabel("Lplr")
        a(f"s_mov_b64 {PX}, exec")
        if sample:
            a(f"s_mov_b32 {S_PH}, 0")
            a("s_mov_b64 exec, 1")
        a.label(L)
        for ld in loads: a(ld)
        a("s_waitcnt vmcnt(0)")
        a(f"v_xor_b32 {vacc}, {S_TAG}, {tags[0]}")
        for t in tags[1:]:
            a(f"v_bitop3_b32 {vacc}, {vacc}, {t}, {S_TAG} bitop3:0xf6")
        a(f"v_cmp_ne_u32 vcc, 0, {vacc}")
        if sample:
            a(f"s_cbranch_vccnz {R}")
            a(f"s_cmp_lg_u32 {S_PH}, 0")
            a(f"s_cbranch_scc1 {E}")
            a(f"s_mov_b32 {S_PH}, 1")
            a(f"s_mov_b64 exec, {PX}")
            a(f"s_branch {L}")
            a.label(R)
        else:
            a(f"s_cbranch_vccz {E}")
        a("s_mov_b64 exec, vcc")
        timeout()
        if sleep: a(f"s_sleep {sleep}")
        a(f"s_branch {L}")
        a.label(E)
        a(f"s_mov_b64 exec, {PX}")

    def after_own(flag, n, vz, vt, dly):
        spin_lds(flag, n, vz, vt, sleep=False)
        if dly: a(f"s_sleep {dly}")

    def get_mode(vz, vt):
        if cfg.local == 2:
            spin_lds(F_LM, 1, vz, vt)
            a(f"s_mov_b32 {S_LM}, s91")

    def store_loc(text):
        if cfg.local == 0: a(text + " sc1")
        elif cfg.local == 1: a(text)
        else:
            P = a.newlabel("Lst"); E = a.newlabel("Lste")
            a(f"s_cmp_eq_u32 {S_LM}, 1")
            a(f"s_cbranch_scc1 {P}")
            a(text + " sc1")
            a(f"s_branch {E}")
            a.label(P)
            a(text)
            a.label(E)

    def bf16r2(d0, d1, s0, s1, tmp):
        a(f"v_cvt_pk_bf16_f32 {tmp}, {s0}, {s1}")
        a(f"v_lshlrev_b32 {d0}, 16, {tmp}")
        a(f"v_and_b32 {d1}, 0xffff0000, {tmp}")

    def bf16r1(d, s):
        a(f"v_cvt_pk_bf16_f32 {d}, {s}, {s}")
        a(f"v_lshlrev_b32 {d}, 16, {d}")

    def allreduce(regs, op, tmps, steps):
        dpp = {"x1": "quad_perm:[1,0,3,2]", "x2": "quad_perm:[2,3,0,1]", "x4": "row_half_mirror", "x8": "row_mirror", "r8": "row_ror:8", "r4": "row_ror:4"}
        for s in steps:
            if s in dpp:
                for r in regs:
                    a(f"{op}_dpp {r}, {r}, {r} {dpp[s]} row_mask:0xf bank_mask:0xf")
            else:
                ins = "v_permlane16_swap_b32" if s == "x16" else "v_permlane32_swap_b32"
                for r, t in zip(regs, tmps): a(f"v_mov_b32 {t}, {r}")
                for r, t in zip(regs, tmps): a(f"{ins} {r}, {t}")
                for r, t in zip(regs, tmps): a(f"{op} {r}, {r}, {t}")
    FULL = ["x1", "x2", "x4", "x8", "x16", "x32"]

    def sexpr(dst, terms, const=0, tmp="s94"):
        first = True
        for (reg, kind, n) in terms:
            tgt = dst if first else tmp
            if kind == "shl":
                if n == 0: a(f"s_mov_b32 {tgt}, {reg}")
                else: a(f"s_lshl_b32 {tgt}, {reg}, {n}")
            else: a(f"s_mul_i32 {tgt}, {reg}, {n}")
            if not first: a(f"s_add_u32 {dst}, {dst}, {tmp}")
            first = False
        if const: a(f"s_add_u32 {dst}, {dst}, {const}")

    def get_tag():
        a(f"v_readfirstlane_b32 {S_EP}, v3")
        a(f"s_add_u32 {S_EP}, {S_EP}, 1")
        a(f"s_mul_i32 {S_TAG}, {S_EP}, 0x9E3779B1")

    def unit_voffs(pitch_shift=None, pitch=None, d0="v24", d1="v25"):
        a("v_lshrrev_b32 v3, 3, v0")
        a("v_bfe_u32 v4, v0, 4, 1")
        a("v_lshlrev_b32 v4, 1, v4")
        a("v_and_b32 v5, 7, v0")
        a("v_xor_b32 v4, v4, v5")
        a("v_lshlrev_b32 v4, 4, v4")
        if pitch_shift is not None: a(f"v_lshlrev_b32 v6, {pitch_shift}, v3")
        else: a(f"v_mul_u32_u24 v6, {pitch}, v3")
        a(f"v_add_u32 {d0}, v6, v4")
        a(f"v_xor_b32 {d1}, 64, {d0}")

    def strip_voff(pitch, d):
        a("v_lshrrev_b32 v6, 2, v0")
        a(f"v_mul_u32_u24 {d}, {pitch}, v6")
        a("v_bfe_u32 v6, v0, 5, 1")
        a("v_lshlrev_b32 v6, 1, v6")
        a("v_and_b32 v7, 3, v0")
        a("v_xor_b32 v6, v6, v7")
        a(f"v_lshl_add_u32 {d}, v6, 4, {d}")

    a.label(f"{NAME}_kernel")
    a(f"s_cmp_ge_u32 {S_WG}, 256")
    a("s_cbranch_scc1 L_end")
    a("s_load_dwordx16 s[16:31], s[0:1], 0")
    a("s_load_dwordx8 s[32:39], s[0:1], 64")
    a("s_load_dwordx4 s[40:43], s[0:1], 96")
    stamp(0)
    if cfg.probe == 3: a("s_memrealtime s[62:63]")
    a("v_lshrrev_b32 v1, 6, v0")
    a("v_and_b32 v0, 63, v0")
    a(f"v_readfirstlane_b32 {S_W}, v1")
    a(f"s_and_b32 {S_X}, {S_WG}, 7")
    a(f"s_lshr_b32 {S_LOC}, {S_WG}, 3")
    a(f"s_lshr_b32 {S_B}, {S_LOC}, 4")
    a(f"s_xor_b32 {S_B}, {S_B}, 1")
    a(f"s_and_b32 {S_SPL}, {S_LOC}, 15")
    a(f"s_bfe_u32 {S_BT}, {S_LOC}, 0x10003")
    a(f"s_and_b32 {S_SP}, {S_LOC}, 7")
    a(f"s_lshl_b32 s90, {S_B}, 3")
    a(f"s_xor_b32 s90, s90, 8")
    a(f"s_add_u32 {S_SP}, {S_SP}, s90")
    a(f"s_lshr_b32 {S_KQ}, {S_LOC}, 3")
    a(f"s_and_b32 {S_CB}, {S_LOC}, 7")
    a(f"s_mov_b32 {S_SPIN}, {cfg.spin}")
    a(f"s_mov_b32 {S_LM}, {1 if cfg.local == 1 else 2}")
    a(f"s_cmp_lg_u32 {S_W}, 8")
    a("s_cbranch_scc1 L_worker")

    SLC = "s95"; SOFF = "s96"
    strip_voff(6144, "v20")
    a(f"s_and_b32 s90, {S_SPL}, 3")
    a(f"s_mul_i32 {SOFF}, s90, {128*6144}")
    a(f"s_lshr_b32 s90, {S_X}, 2")
    a("s_lshl_b32 s90, s90, 10")
    a(f"s_add_u32 {SOFF}, {SOFF}, s90")
    a(f"s_and_b32 s90, {S_X}, 3")
    a("s_lshl_b32 s90, s90, 8")
    a(f"s_add_u32 {SOFF}, {SOFF}, s90")
    a(f"s_lshr_b32 s90, {S_SPL}, 2")
    a("s_lshl_b32 s90, s90, 6")
    a(f"s_add_u32 {SOFF}, {SOFF}, s90")
    a(f"s_mov_b32 m0, {L_MODB}")
    a("s_waitcnt lgkmcnt(0)")
    srd(44, 36, 512*3072*2)
    a(f"s_cmp_eq_u32 {S_B}, 0")
    a("s_cbranch_scc1 L_ld_nomod")
    for i in range(8):
        a(f"buffer_load_dwordx4 v20, s[44:47], {SOFF} offen nt lds")
        if i < 7:
            a(f"s_add_u32 {SOFF}, {SOFF}, {16*6144}")
            a("s_add_u32 m0, m0, 0x400")
    a.label("L_ld_nomod")
    if cfg.prio: a("s_setprio 3")
    a("s_barrier")
    stamp(1)
    srd(12, 42, W_USED)
    srd(52, 18, 2*8*32768*128*2)
    srd(56, 20, 2*8*32768*128*2)
    srd(60, 24, 4096*512*2)
    a("v_mov_b32 v10, 0")
    a("v_lshrrev_b32 v3, 4, v0")
    a("v_and_b32 v4, 15, v0")
    a("v_xor_b32 v5, v4, v3")
    a("v_lshlrev_b32 v5, 4, v5")
    a("v_lshl_add_u32 v26, v3, 8, v5")
    a("v_xor_b32 v27, 64, v26")
    a("v_xor_b32 v28, 0x80, v26")
    a("v_xor_b32 v29, 0xc0, v26")
    a("v_lshlrev_b32 v5, 1, v3")
    a("v_xor_b32 v5, v4, v5")
    a("v_lshlrev_b32 v5, 4, v5")
    a("v_lshl_add_u32 v30, v3, 8, v5")
    a("v_xor_b32 v31, 0x80, v30")
    a(f"s_and_b32 s90, {S_LOC}, 7")
    a(f"s_mul_i32 s91, {S_B}, {(NK_B - NK_A) * 256}")
    a(f"s_add_u32 s91, s91, {NK_A * 256}")
    a("s_mul_i32 s90, s90, s91")
    a(f"s_mul_i32 s91, {S_B}, {-1792 * 256}")
    a("s_add_u32 s90, s90, s91")
    sexpr("s98", [(S_BT, "shl", 26), (S_X, "shl", 23), ("s90", "shl", 0)], (28672 + 1792) * 256)
    unit_voffs(pitch_shift=10)

    def lc_write(val, off=F_LC):
        a(f"v_mov_b32 v11, {val}")
        a(f"ds_write_b32 v10, v11 offset:{off}")
    def seg(name, variants, srdn, step, iters, ldsbase):
        a(f"s_mov_b32 m0, {ldsbase}")
        a(f"s_mov_b32 s97, {iters}")
        a.label(name)
        for v in variants:
            a(f"buffer_load_dwordx4 {v}, s[{srdn}:{srdn+3}], {SOFF} offen nt lds")
            a(f"s_add_u32 {SOFF}, {SOFF}, {step}")
            a("s_add_u32 m0, m0, 0x400")
        a("s_sub_u32 s97, s97, 1")
        a("s_cmp_lg_u32 s97, 0")
        a(f"s_cbranch_scc1 {name}")
    def drain(end, ks):
        for k in ks:
            a(f"s_waitcnt vmcnt({k})")
            lc_write(end - k)
    def seg4(name, variants, srdn, iters, ldsbase, D=D):
        if ldsbase is not None: a(f"s_mov_b32 m0, {ldsbase}")
        a(f"s_mov_b32 s97, {iters}")
        a.label(name)
        for i, v in enumerate(variants):
            a(f"buffer_load_dwordx4 {v}, s[{srdn}:{srdn+3}], {SOFF} offen offset:{1024*i} nt lds")
        a(f"s_add_u32 {SOFF}, {SOFF}, 0x1000")
        a("s_add_u32 m0, m0, 0x1000")
        a(f"s_add_u32 {SLC}, {SLC}, 4")
        a(f"v_mov_b32 v11, {SLC}")
        a(f"s_waitcnt vmcnt({D-4})")
        a(f"ds_write_b32 v10, v11 offset:{F_LC}")
        a("s_sub_u32 s97, s97, 1")
        a("s_cmp_lg_u32 s97, 0")
        a(f"s_cbranch_scc1 {name}")
    WO_OFF = [(S_X, "shl", 19), (S_KQ, "shl", 17), (S_CB, "shl", 7)]

    a(f"s_cmp_eq_u32 {S_B}, 0")
    a("s_cbranch_scc1 L_ld_A")
    a("s_waitcnt vmcnt(0)")
    lc_write(KB_B)
    if cfg.kstart == 0:
        spin_lds(F_EC, 4, "v10", "v12")
        spin_lds(F_3, 2, "v10", "v12", sleep=False)
    elif cfg.kstart == 1:
        spin_lds(F_PQ, 4, "v10", "v12", sleep=False)
    else:
        pass
    stamp(2)
    a(f"s_mov_b32 {SLC}, {KB_B - (D - 4)}")
    a(f"s_mov_b32 {SOFF}, s98")
    seg4("L_ld_kB", ["v26", "v27", "v28", "v29"], 52, NK_B // 16, L_K)
    a(f"s_mov_b32 {SOFF}, s98")
    seg4("L_ld_vB", ["v30", "v30", "v31", "v31"], 56, NK_B // 16, L_V)
    stamp(3)
    sexpr(SOFF, WO_OFF)
    a(f"ds_read_b32 v12, v10 offset:{F_KC}")
    a("s_waitcnt lgkmcnt(0)")
    a("v_readfirstlane_b32 s91, v12")
    a("s_cmp_ge_i32 s91, 4")
    a("s_cbranch_scc0 L_ld_Bslow")
    seg("L_ld_woB", ["v24", "v25"], 60, 8192, 8, L_WO)
    drain(KB_B + NK_B // 2 + 16, [k for k in (48, 40, 32, 24, 16) if k < D + 12])
    stamp(4)
    a("s_branch L_ld_fin")
    a.label("L_ld_Bslow")
    drain(KB_B + NK_B // 2, [k for k in (32, 24, 16, 8) if k < D - 4] + [0])
    stamp(4)
    spin_lds(F_KC, 4, "v10", "v12")
    seg("L_ld_woB2", ["v24", "v25"], 60, 8192, 8, L_WO)
    a.label("L_ld_fin")
    a("s_waitcnt vmcnt(0)")
    lc_write(1, F_WOL)
    stamp(5)
    dump_stamps(6)
    a("s_endpgm")
    a.label("L_ld_A")
    DA = cfg.DA
    unit_voffs(pitch=6144, d0="v20", d1="v21")
    a(f"s_and_b32 s90, {S_SPL}, 3")
    a(f"s_mul_i32 {SOFF}, s90, {128*6144}")
    a(f"s_lshr_b32 s90, {S_SPL}, 2")
    a(f"s_lshl_b32 s94, {S_X}, 2")
    a("s_add_u32 s90, s90, s94")
    a("s_add_u32 s90, s90, 16")
    a("s_lshl_b32 s90, s90, 7")
    a(f"s_add_u32 {SOFF}, {SOFF}, s90")
    spin_lds(F_1, 2, "v10", "v12", sleep=False)
    seg("L_ld_mr", ["v20", "v21"], 44, 8*6144, 8, L_MR)
    a(f"s_mov_b32 {SLC}, {-(DA - 4)}")
    a(f"s_mov_b32 {SOFF}, s98")
    n0 = (DA - 4 + 3) // 4
    assert 0 < n0 < NK_A // 16
    seg4("L_ld_kA0", ["v26", "v27", "v28", "v29"], 52, n0, L_K, DA)
    lc_write(1, F_MRL)
    seg4("L_ld_kA", ["v26", "v27", "v28", "v29"], 52, NK_A // 16 - n0, None, DA)
    stamp(2)
    a(f"s_mov_b32 {SOFF}, s98")
    seg4("L_ld_vA", ["v30", "v30", "v31", "v31"], 56, NK_A // 16 - 4, L_V, DA)
    spin_lds(F_EC, 4, "v10", "v12")
    seg4("L_ld_vA2", ["v30", "v30", "v31", "v31"], 56, 4, None, DA)
    stamp(3)
    drain(NK_A // 2, [k for k in (32, 24, 16, 8) if k < DA - 4] + [0])
    stamp(4)
    spin_lds(F_KC, 4, "v10", "v12")
    sexpr(SOFF, WO_OFF)
    seg("L_ld_woA", ["v24", "v25"], 60, 8192, 8, L_WO)
    a("s_branch L_ld_fin")

    a.label("L_worker")
    a(f"s_cmp_lg_u32 {S_W}, 4")
    a("s_cbranch_scc1 L_wk2")
    a("v_mov_b32 v10, 0")
    for r in range(12, 16): a(f"v_mov_b32 v{r}, 0")
    a("v_lshlrev_b32 v1, 2, v0")
    a("v_lshlrev_b32 v2, 4, v0")
    a("ds_write_b32 v1, v10")
    a(f"ds_write_b128 v2, v[12:15] offset:{L_ZERO}")
    if cfg.local == 1:
        a("v_mov_b32 v11, 1")
        a(f"ds_write_b32 v10, v11 offset:{F_LM}")
    a.label("L_wk2")
    a("s_waitcnt lgkmcnt(0)")
    srd(12, 42, W_USED)
    srd(44, 16, 2048)
    srd(48, 34, 2048)
    a(f"s_sub_u32 s97, {S_W}, 5")
    a("s_and_b32 s97, s97, 1")
    a("s_lshl_b32 s90, s97, 10")
    a(f"s_and_b32 s94, {S_SPL}, 3")
    a("s_lshl_b32 s94, s94, 8")
    a("s_add_u32 s94, s94, s90")
    a("v_lshlrev_b32 v1, 4, v0")
    a("v_lshlrev_b32 v2, 2, v0")
    a(f"s_cmp_lt_u32 {S_W}, 5")
    a("s_cbranch_scc1 L_wk2b")
    a(f"s_cmp_eq_u32 {S_W}, 7")
    a("s_cbranch_scc1 L_wk2b")
    a("buffer_load_dword v9, v2, s[48:51], s94 offen")
    a("buffer_load_dwordx4 v[4:7], v1, s[44:47], s90 offen")
    a(f"s_lshr_b32 s94, {S_SPL}, 2")
    a("s_lshl_b32 s94, s94, 8")
    a("s_add_u32 s94, s94, s90")
    a("buffer_load_dword v8, v2, s[44:47], s94 offen")
    a.label("L_wk2b")
    a("v_mov_b32 v2, 0")
    a(f"buffer_load_dword v3, v2, {WSRD}, 0 offen sc1")
    a(f"s_cmp_lg_u32 {S_W}, 7")
    a("s_cbranch_scc1 L_wk3")
    if cfg.local == 2:
        srd(60, 40, 256)
        a("s_getreg_b32 s90, hwreg(HW_REG_XCC_ID)")
        a("s_and_b32 s90, s90, 7")
        a("s_mul_i32 s90, s90, 6")
        a("s_lshl_b64 s[26:27], 1, s90")
        a(f"s_lshl_b32 s91, {S_X}, 5")
        a("s_add_u32 s91, s91, 8")
        a("v_mov_b32 v18, s91")
        a("v_mov_b32 v16, s26")
        a("v_mov_b32 v17, s27")
        a("s_mov_b64 exec, 1")
        a("buffer_atomic_add_x2 v[16:17], v18, s[60:63], 0 offen sc1")
        a("s_mov_b64 exec, -1")
    if cfg.touch:
        sexpr("s90", [(S_BT, "shl", 26), (S_X, "shl", 23), (S_SP, "shl", 16)], 28672*256)
        a("s_load_dword s78, s[18:19], s90")
        a("s_load_dword s79, s[20:21], s90")
        a(f"s_lshr_b32 s91, {S_SPL}, 2")
        a("s_lshl_b32 s91, s91, 20")
        a("s_load_dword s80, s[22:23], s91")
        sexpr("s91", [(S_X, "shl", 19), (S_KQ, "shl", 17)])
        a("s_load_dword s81, s[24:25], s91")
        a(f"s_mul_i32 s91, {S_KQ}, {128*3584}")
        a("s_load_dword s82, s[28:29], s91")
        a("s_load_dword s83, s[30:31], s91")
        a(f"s_mul_i32 s91, {S_X}, {224*1024}")
        a("s_load_dword s84, s[32:33], s91")
        a("s_load_dword s85, s[38:39], 0")
    a.label("L_wk3")
    a("s_barrier")
    a(f"s_cmp_ge_u32 {S_W}, 4")
    a("s_cbranch_scc1 L_gwave")

    a.label("L_mwave")
    srd(56, 22, 512*4096*2)
    a("v_lshrrev_b32 v1, 4, v0")
    a("v_and_b32 v2, 15, v0")
    a("v_mov_b32 v4, 1")
    a("v_lshlrev_b32 v22, 1, v1")
    a("v_xor_b32 v22, v2, v22")
    a("v_lshlrev_b32 v22, 4, v22")
    a("v_lshl_add_u32 v26, v1, 13, v22")
    a("v_xor_b32 v27, 0x80, v26")
    a(f"s_lshr_b32 s90, {S_SPL}, 2")
    a(f"s_and_b32 s91, {S_SPL}, 3")
    sexpr("s96", [("s90", "shl", 20), (S_X, "shl", 10), ("s91", "shl", 8), (S_W, "shl", 18)])
    a("v_bfe_u32 v6, v2, 2, 1")
    a(f"v_mul_u32_u24 v6, {APITCH}, v6")
    a("v_lshl_add_u32 v6, v1, 4, v6")
    a("v_bfe_u32 v16, v0, 2, 2")
    a("v_and_b32 v17, 3, v0")
    a("v_lshl_add_u32 v18, v1, 3, v16")
    a("v_lshrrev_b32 v19, 1, v17")
    a("v_and_b32 v20, 1, v17")
    a("v_and_b32 v21, 1, v1")
    a("v_lshrrev_b32 v22, 1, v16")
    a("v_lshl_or_b32 v22, v21, 1, v22")
    a("v_lshlrev_b32 v22, 1, v22")
    a(f"s_lshl_b32 s90, {S_W}, 1")
    a("v_add_u32 v23, s90, v19")
    a("v_xor_b32 v23, v23, v22")
    a("v_lshlrev_b32 v7, 7, v18")
    a("v_lshl_add_u32 v7, v23, 4, v7")
    a("v_lshl_add_u32 v7, v20, 3, v7")
    a(f"s_and_b32 s90, {S_W}, 1")
    a("s_lshl_b32 s90, s90, 1")
    a("v_add_u32 v23, s90, v19")
    a("v_lshlrev_b32 v22, 1, v21")
    a("v_xor_b32 v23, v23, v22")
    a("v_lshlrev_b32 v12, 6, v18")
    a("v_lshl_add_u32 v12, v23, 4, v12")
    a("v_lshl_add_u32 v12, v20, 3, v12")
    a("v_lshl_or_b32 v22, v21, 2, v16")
    a("v_lshlrev_b32 v22, 1, v22")
    a(f"s_lshl_b32 s90, {S_W}, 2")
    a("v_add_u32 v23, s90, v19")
    a("v_xor_b32 v24, v23, v22")
    a("v_lshlrev_b32 v25, 8, v18")
    a("v_lshl_add_u32 v25, v20, 3, v25")
    a("v_lshl_add_u32 v13, v24, 4, v25")
    a("v_add_u32 v23, 2, v23")
    a("v_xor_b32 v24, v23, v22")
    a("v_lshl_add_u32 v14, v24, 4, v25")
    a("v_bfe_u32 v8, v0, 4, 1")
    a("v_lshlrev_b32 v9, 3, v2")
    O_MOD, O_Q, O_O, O_A4, O_GU, O_DN, O_ST, T_K, T_V = "s16", "s17", "s18", "s19", "s20", "s21", "s24", "s25", "s26"
    a(f"s_mul_i32 {T_K}, {S_B}, {KB_B + NK_B // 4 - NK_A // 4}")
    a(f"s_add_u32 {T_K}, {T_K}, {NK_A // 4}")
    a(f"s_mul_i32 {T_V}, {S_B}, {KB_B + NK_B // 2 - NK_A // 2}")
    a(f"s_add_u32 {T_V}, {T_V}, {NK_A // 2}")
    sexpr(O_O, [(S_X, "shl", 16), (S_BT, "shl", 13), (S_SP, "shl", 9), (S_W, "shl", 7)], W_O)
    sexpr(O_A4, [(S_CB, "shl", 14), (S_W, "shl", 12), (S_X, "shl", 8), (S_KQ, "shl", 6)], W_A4)
    a(f"s_add_u32 {O_DN}, {O_A4}, {W_DN - W_A4}")
    a(f"s_lshr_b32 s90, {S_W}, 1")
    a(f"s_and_b32 s91, {S_W}, 1")
    sexpr(O_GU, [(S_X, "shl", 15), ("s90", "shl", 14), (S_KQ, "shl", 11), (S_CB, "shl", 8), ("s91", "shl", 7)], W_GU)
    sexpr(O_ST, [(S_X, "shl", 11), (S_BT, "shl", 10), (S_SP, "shl", 4)], W_ST)
    a(f"s_and_b32 s90, {S_SPL}, 3")
    a(f"s_lshr_b32 s91, {S_SPL}, 2")
    sexpr(O_Q, [(S_X, "shl", 15), ("s90", "shl", 12), ("s91", "shl", 10), (S_W, "shl", 8)], W_Q)
    a(f"s_cmp_eq_u32 {S_B}, 0")
    a("s_cbranch_scc1 L_m_offA")
    a(f"s_lshr_b32 s90, {S_X}, 2")
    a(f"s_and_b32 s91, {S_X}, 3")
    a(f"s_lshr_b32 s97, {S_SPL}, 2")
    a(f"s_and_b32 s98, {S_SPL}, 3")
    a(f"s_and_b32 s99, {S_W}, 1")
    sexpr(O_MOD, [("s90", "shl", 15), ("s91", "shl", 12), ("s98", "shl", 10), ("s97", "shl", 8), ("s99", "shl", 7)], W_MOD)
    a("s_branch L_m_offE")
    a.label("L_m_offA")
    a(f"s_lshr_b32 s90, {S_X}, 1")
    a(f"s_and_b32 s91, {S_X}, 1")
    a("s_lshl_b32 s91, s91, 2")
    a(f"s_lshr_b32 s97, {S_SPL}, 2")
    a("s_add_u32 s91, s91, s97")
    a("s_lshr_b32 s97, s91, 1")
    a("s_and_b32 s91, s91, 1")
    a(f"s_and_b32 s98, {S_SPL}, 3")
    sexpr(O_MOD, [("s90", "shl", 15), ("s97", "shl", 12), ("s98", "shl", 10), ("s91", "shl", 9), (S_W, "shl", 7)], W_MOD + 2*32768)
    a.label("L_m_offE")
    a("s_waitcnt vmcnt(0)")
    get_tag()
    a("v_mov_b32 v3, 0")
    stamp(1)

    def loadB(vaddr, nk, kstride, hoff, base=16):
        for t in range(nk):
            a(f"ds_read_b64_tr_b16 v[{base+4*t}:{base+4*t+1}], {vaddr} offset:{t*kstride}")
            a(f"ds_read_b64_tr_b16 v[{base+4*t+2}:{base+4*t+3}], {vaddr} offset:{t*kstride+hoff}")

    def gemv(act_off, nk, bbase=16, second=None):
        for t in range(nk):
            a(f"ds_read_b128 v[{32+4*t}:{35+4*t}], v6 offset:{act_off+64*t}")
        for t in range(nk):
            a(f"s_waitcnt lgkmcnt({nk-1-t})")
            c = "0" if t == 0 else "v[48:51]"
            a(f"v_mfma_f32_16x16x32_bf16 v[48:51], v[{32+4*t}:{35+4*t}], v[{bbase+4*t}:{bbase+4*t+3}], {c}")
            if second is not None:
                c = "0" if t == 0 else "v[56:59]"
                a(f"v_mfma_f32_16x16x32_bf16 v[56:59], v[{32+4*t}:{35+4*t}], v[{second+4*t}:{second+4*t+3}], {c}")

    def publish(shift, soff, local=False, second=False):
        a(f"v_lshl_add_u32 v54, v8, {shift}, v9")
        a(f"v_mov_b32 v53, {S_TAG}")
        if second: a(f"v_mov_b32 v61, {S_TAG}")
        a("v_mov_b32 v52, v48")
        if second: a("v_mov_b32 v60, v56")
        a("s_mov_b32 exec_hi, 0")
        t1 = f"buffer_store_dwordx2 v[52:53], v54, {WSRD}, {soff} offen"
        t2 = f"buffer_store_dwordx2 v[60:61], v54, {WSRD}, {soff} offen offset:128"
        if local:
            store_loc(t1)
            if second: store_loc(t2)
        else:
            a(t1 + " sc1")
            if second: a(t2 + " sc1")
        a("s_mov_b32 exec_hi, -1")

    def publish_pair(soff):
        a("v_lshlrev_b32 v54, 11, v8")
        a("v_lshl_add_u32 v54, v2, 2, v54")
        a(f"v_mov_b32 v53, {S_TAG}")
        a("v_mov_b32_dpp v52, v48 quad_perm:[1,0,3,2] row_mask:0xf bank_mask:0xf")
        a("s_mov_b32 exec_lo, 0x55555555")
        a("s_mov_b32 exec_hi, 0")
        a("v_cvt_pk_bf16_f32 v52, v48, v52")
        a(f"buffer_store_dwordx2 v[52:53], v54, {WSRD}, {soff} offen sc1")
        a("s_mov_b64 exec, -1")

    a(f"s_cmp_lg_u32 {S_B}, 0")
    a("s_cbranch_scc1 L_m_B")
    spin_lds(F_1, 2, "v3", "v5")
    spin_lds(F_MRL, 1, "v3", "v5")
    a(f"v_add_u32 v10, {L_MR}, v7")
    loadB("v10", 4, 4096, 512)
    gemv(L_ACT1, 4)
    arrive(F_EC, "v3", "v4")
    publish(14, O_MOD)
    a("s_branch L_m_s3")
    a.label("L_m_B")
    a(f"s_lshl_b32 s90, {S_W}, 13")
    a(f"s_add_u32 m0, s90, {L_WQ}")
    a(f"s_cmp_lt_u32 {S_W}, 2")
    a("s_cbranch_scc1 L_m_s1")
    def wq_issue():
        for i in range(8):
            a(f"buffer_load_dwordx4 {'v26' if (i & 2) == 0 else 'v27'}, s[56:59], s96 offen nt lds")
            if i < 7:
                a(f"s_add_u32 s96, s96, {4*8192}")
                a("s_add_u32 m0, m0, 0x400")
    wq_issue()
    a("s_branch L_m_s2")
    a.label("L_m_s1")
    wq_issue()
    spin_lds(F_1, 2, "v3", "v5", sleep=False)
    spin_lds(F_LC, KB_B, "v3", "v5", sleep=False)
    a(f"v_add_u32 v10, {L_MODB}, v12")
    loadB("v10", 4, 2048, 256)
    gemv(L_ACT1, 4)
    publish(14, O_MOD)
    arrive(F_PM, "v3", "v4")
    stamp(2)
    a.label("L_m_s2")
    a("s_waitcnt vmcnt(0)")
    arrive(F_WQ, "v3", "v4")
    spin_lds(F_WQ, 4, "v3", "v5", sleep=False)
    a(f"v_add_u32 v10, {L_WQ}, v13")
    a(f"v_add_u32 v11, {L_WQ}, v14")
    loadB("v10", 4, 8192, 1024, base=16)
    loadB("v11", 4, 8192, 1024, base=64)
    get_mode("v3", "v5")
    a("s_waitcnt lgkmcnt(0)")
    arrive(F_EC, "v3", "v4")
    spin_lds(F_2, 2, "v3", "v5", sleep=False)
    gemv(L_ACT2, 4, bbase=16, second=64)
    publish(14, O_Q, local=True, second=True)
    arrive(F_PQ, "v3", "v4")
    stamp(3)
    a.label("L_m_s3")
    get_mode("v3", "v5")
    T_ST, T_N = "s27", "s28"
    a(f"s_sub_u32 s90, 4, {S_B}")
    a(f"s_mul_i32 {T_ST}, {S_W}, s90")
    a(f"s_min_u32 s91, {S_W}, 2")
    a(f"s_add_u32 {T_ST}, {T_ST}, s91")
    a(f"s_cmp_lt_u32 {S_W}, 2")
    a(f"s_addc_u32 {T_N}, s90, 0")
    a("s_mov_b64 s[30:31], -1")
    a(f"s_cmp_eq_u32 {T_N}, 3")
    a("s_cselect_b32 s31, 0xffff, s31")
    a("s_mov_b32 s33, 0")
    a(f"s_cmp_eq_u32 {T_N}, 5")
    a("s_cselect_b32 s32, 0xffff, 0")
    a("v_xor_b32 v10, v1, v2")
    a("v_lshlrev_b32 v10, 4, v10")
    a("v_lshl_add_u32 v10, v2, 8, v10")
    a(f"s_lshl_b32 s90, {T_ST}, 12")
    a(f"s_add_u32 s90, s90, {L_K}")
    a("v_add_u32 v56, s90, v10")
    a("v_xor_b32 v57, 64, v56")
    a("v_xor_b32 v58, 0x80, v56")
    a("v_xor_b32 v59, 0xc0, v56")
    a("v_and_b32 v10, 3, v2")
    a(f"v_mul_u32_u24 v10, {APITCH}, v10")
    a("v_lshl_add_u32 v10, v1, 4, v10")
    a(f"v_add_u32 v10, {L_Q}, v10")
    a("v_lshlrev_b32 v11, 4, v1")
    a(f"v_add_u32 v11, {L_ZERO}, v11")
    a("v_lshrrev_b32 v15, 2, v2")
    for tt in range(4):
        a(f"v_cmp_eq_u32 vcc, {tt}, v15")
        a(f"v_cndmask_b32 v{60+tt}, v11, v10, vcc")
    for r in range(4): a(f"v_mov_b32 v{52+r}, 0")
    NEG = "s29"
    a(f"s_mov_b32 {NEG}, 0xff800000")
    spin_lds(F_3, 2, "v3", "v5")
    spin_lds(F_LC, T_K, "v3", "v5", sleep=False)
    stamp(4)
    def qk_reads(tt, base, slot=None):
        slot = tt if slot is None else slot
        for t in range(4):
            a(f"ds_read_b128 v[{base+4*t}:{base+4*t+3}], v{60+slot} offset:{64*t}")
            a(f"ds_read_b128 v[{base+16+4*t}:{base+16+4*t+3}], v{56+t} offset:{4096*tt}")
    def qk_mfma(b, acc, first):
        for t in range(4):
            c = "0" if (first and t == 0) else acc
            a(f"v_mfma_f32_16x16x32_bf16 {acc}, v[{b+4*t}:{b+4*t+3}], v[{b+16+4*t}:{b+16+4*t+3}], {c}")
    qk_reads(0, 16)
    qk_reads(1, 68)
    a("s_waitcnt lgkmcnt(8)")
    qk_mfma(16, "v[48:51]", True)
    qk_reads(2, 16)
    a("s_waitcnt lgkmcnt(8)")
    qk_mfma(68, "v[48:51]", False)
    a(f"s_cmp_eq_u32 {T_N}, 3")
    a("s_cbranch_scc1 L_qk_n3")
    qk_reads(3, 68)
    a("s_waitcnt lgkmcnt(8)")
    qk_mfma(16, "v[48:51]", False)
    a(f"s_cmp_eq_u32 {T_N}, 5")
    a("s_cbranch_scc1 L_qk_n5")
    a("s_waitcnt lgkmcnt(0)")
    qk_mfma(68, "v[48:51]", False)
    a("s_branch L_qk_done")
    a.label("L_qk_n5")
    qk_reads(4, 16, slot=0)
    a("s_waitcnt lgkmcnt(8)")
    qk_mfma(68, "v[48:51]", False)
    a("s_waitcnt lgkmcnt(0)")
    qk_mfma(16, "v[52:55]", True)
    a("s_branch L_qk_done")
    a.label("L_qk_n3")
    a("s_waitcnt lgkmcnt(0)")
    qk_mfma(16, "v[48:51]", False)
    a.label("L_qk_done")
    arrive(F_KC, "v3", "v4")
    a("s_nop 7")
    a(f"s_mov_b32 s94, {SCALE:#x}")
    for (d, sr) in ((16, 48), (20, 52)):
        bf16r2(f"v{d}", f"v{d+1}", f"v{sr}", f"v{sr+1}", "v32")
        bf16r2(f"v{d+2}", f"v{d+3}", f"v{sr+2}", f"v{sr+3}", "v33")
    for r in range(8): a(f"v_mul_f32 v{16+r}, s94, v{16+r}")
    for d in (16, 20):
        bf16r2(f"v{d}", f"v{d+1}", f"v{d}", f"v{d+1}", "v32")
        bf16r2(f"v{d+2}", f"v{d+3}", f"v{d+2}", f"v{d+3}", "v33")
    a(f"v_mov_b32 v34, {NEG}")
    for r in range(4): a(f"v_cndmask_b32 v{16+r}, v34, v{16+r}, s[30:31]")
    for r in range(4): a(f"v_cndmask_b32 v{20+r}, v34, v{20+r}, s[32:33]")
    for r in range(4): a(f"v_max_f32 v{24+r}, v{16+r}, v{20+r}")
    allreduce(["v24", "v25", "v26", "v27"], "v_max_f32", ["v28", "v29", "v30", "v31"], FULL)
    a(f"s_lshl_b32 s90, {S_W}, 4")
    a("v_mov_b32 v10, s90")
    a("s_mov_b64 s[92:93], exec")
    a("s_mov_b64 exec, 1")
    a(f"ds_write_b128 v10, v[24:27] offset:{L_MX}")
    a(f"ds_add_u32 v3, v4 offset:{F_MB1}")
    a("s_mov_b64 exec, s[92:93]")
    spin_lds(F_MB1, 4, "v3", "v5", sleep=False)
    for w in range(4):
        a(f"ds_read_b128 v[{32+4*w}:{35+4*w}], v3 offset:{L_MX+16*w}")
    a("s_waitcnt lgkmcnt(0)")
    for r in range(4):
        a(f"v_max_f32 v{24+r}, v{32+r}, v{36+r}")
        a(f"v_max_f32 v{28+r}, v{40+r}, v{44+r}")
    for r in range(4):
        a(f"v_max_f32 v{24+r}, v{24+r}, v{28+r}")
    a(f"s_mov_b32 s94, {LOG2E:#x}")
    for r in range(8): a(f"v_sub_f32 v{16+r}, v{16+r}, v{24+(r&3)}")
    for r in range(8): a(f"v_mul_f32 v{16+r}, s94, v{16+r}")
    for r in range(8): a(f"v_exp_f32 v{16+r}, v{16+r}")
    a("v_cvt_pk_bf16_f32 v28, v16, v17")
    a("v_cvt_pk_bf16_f32 v29, v18, v19")
    a("v_cvt_pk_bf16_f32 v30, v20, v21")
    a("v_cvt_pk_bf16_f32 v31, v22, v23")
    a(f"s_lshl_b32 s90, {T_ST}, 5")
    a(f"s_add_u32 s90, s90, {L_P}")
    a("v_lshl_add_u32 v10, v0, 1, s90")
    a("s_mov_b64 exec, s[30:31]")
    a("ds_write_b16 v10, v28")
    a(f"ds_write_b16_d16_hi v10, v28 offset:{PPITCH}")
    a(f"ds_write_b16 v10, v29 offset:{2*PPITCH}")
    a(f"ds_write_b16_d16_hi v10, v29 offset:{3*PPITCH}")
    a(f"s_cmp_lg_u32 {T_N}, 5")
    a("s_cbranch_scc1 L_p_w1")
    a("s_mov_b64 exec, s[32:33]")
    a("ds_write_b16 v10, v30 offset:128")
    a(f"ds_write_b16_d16_hi v10, v30 offset:{PPITCH+128}")
    a(f"ds_write_b16 v10, v31 offset:{2*PPITCH+128}")
    a(f"ds_write_b16_d16_hi v10, v31 offset:{3*PPITCH+128}")
    a.label("L_p_w1")
    a("s_mov_b64 exec, -1")
    for r in range(4): a(f"v_add_f32 v{16+r}, v{16+r}, v{20+r}")
    allreduce(["v16", "v17", "v18", "v19"], "v_add_f32", ["v28", "v29", "v30", "v31"], FULL)
    a(f"s_lshl_b32 s90, {S_W}, 4")
    a("v_mov_b32 v10, s90")
    a("s_mov_b64 s[92:93], exec")
    a("s_mov_b64 exec, 1")
    a(f"ds_write_b128 v10, v[16:19] offset:{L_LS}")
    a(f"ds_add_u32 v3, v4 offset:{F_MB2}")
    a("s_mov_b64 exec, s[92:93]")
    spin_lds(F_MB2, 4, "v3", "v5", sleep=False)
    a(f"s_cmp_lg_u32 {S_W}, 0")
    a("s_cbranch_scc1 L_m_pv")
    a("v_lshlrev_b32 v10, 2, v0")
    a("s_mov_b64 exec, 15")
    for w in range(4):
        a(f"ds_read_b32 v{16+w}, v10 offset:{L_LS+16*w}")
        a(f"ds_read_b32 v{20+w}, v10 offset:{L_MX+16*w}")
    a("s_waitcnt lgkmcnt(0)")
    a("v_add_f32 v16, v16, v17")
    a("v_add_f32 v18, v18, v19")
    a("v_max_f32 v20, v20, v21")
    a("v_max_f32 v22, v22, v23")
    a("v_add_f32 v26, v16, v18")
    a("v_max_f32 v24, v20, v22")
    a(f"v_mov_b32 v25, {S_TAG}")
    a(f"v_mov_b32 v27, {S_TAG}")
    a("v_lshlrev_b32 v10, 8, v0")
    store_loc(f"buffer_store_dwordx4 v[24:27], v10, {WSRD}, {O_ST} offen")
    a("s_mov_b64 exec, -1")
    a.label("L_m_pv")
    stamp(5)
    a("v_lshrrev_b32 v10, 2, v2")
    a(f"v_mul_u32_u24 v10, {PPITCH}, v10")
    a("v_lshl_add_u32 v10, v1, 4, v10")
    a(f"v_add_u32 v60, {L_P}, v10")
    a(f"v_add_u32 v61, {L_V}, v13")
    a(f"v_add_u32 v62, {L_V}, v14")
    a("v_lshl_add_u32 v63, v1, 14, v9")
    a(f"v_mov_b32 v65, {S_TAG}")
    for r in range(8): a(f"v_mov_b32 v{48+r}, 0")
    a(f"s_add_u32 s95, {T_K}, 8")
    a("s_mov_b32 s96, -1000")
    a.label("L_pv_loop")
    a("s_cmp_ge_i32 s96, s95")
    a("s_cbranch_scc1 L_pv_go")
    a.label("L_pv_spin")
    a(f"ds_read_b32 v5, v3 offset:{F_LC}")
    a("s_waitcnt lgkmcnt(0)")
    a("v_readfirstlane_b32 s96, v5")
    a("s_cmp_ge_i32 s96, s95")
    a("s_cbranch_scc1 L_pv_go")
    timeout()
    a("s_branch L_pv_spin")
    a.label("L_pv_go")
    a("ds_read_b128 v[16:19], v60")
    a("ds_read_b64_tr_b16 v[20:21], v61")
    a("ds_read_b64_tr_b16 v[22:23], v61 offset:1024")
    a("ds_read_b64_tr_b16 v[24:25], v62")
    a("ds_read_b64_tr_b16 v[26:27], v62 offset:1024")
    a("v_add_u32 v60, 64, v60")
    a("v_add_u32 v61, 0x2000, v61")
    a("v_add_u32 v62, 0x2000, v62")
    a("s_add_u32 s95, s95, 8")
    a("s_waitcnt lgkmcnt(2)")
    a("v_mfma_f32_16x16x32_bf16 v[48:51], v[16:19], v[20:23], v[48:51]")
    a("s_waitcnt lgkmcnt(0)")
    a("v_mfma_f32_16x16x32_bf16 v[52:55], v[16:19], v[24:27], v[52:55]")
    a(f"s_cmp_le_i32 s95, {T_V}")
    a("s_cbranch_scc1 L_pv_loop")
    stamp(6)
    a("s_nop 4")
    a("v_cvt_pk_bf16_f32 v64, v48, v52")
    store_loc(f"buffer_store_dwordx2 v[64:65], v63, {WSRD}, {O_O} offen")
    arrive(F_PO, "v3", "v4")
    stamp(7)
    spin_lds(F_WOL, 1, "v3", "v5", sleep=False)
    a(f"v_add_u32 v10, {L_WO}, v7")
    loadB("v10", 4, 4096, 512)
    a("s_waitcnt lgkmcnt(0)")
    a("s_barrier")
    gemv(L_ACT4, 4)
    publish_pair(O_A4)
    arrive(F_PA, "v3", "v4")
    stamp(8)
    spin_lds(F_LATE, 1, "v3", "v5")
    a(f"v_add_u32 v10, {L_DN}, v7")
    loadB("v10", 2, 4096, 512, base=64)
    a(f"s_lshr_b32 s90, {S_W}, 1")
    a("s_lshl_b32 s90, s90, 13")
    a(f"s_add_u32 s90, s90, {L_G}")
    a("v_add_u32 v11, s90, v12")
    loadB("v11", 4, 2048, 256)
    a("s_waitcnt lgkmcnt(0)")
    a("s_barrier")
    a(f"s_cmp_eq_u32 {S_CB}, 7")
    a("s_cbranch_scc1 L_m_s7")
    gemv(L_ACT6, 4)
    publish(13, O_GU, local=True)
    a.label("L_m_s7")
    arrive(F_PG, "v3", "v4")
    stamp(9)
    a("s_barrier")
    gemv(L_ACT7, 2, bbase=64)
    publish_pair(O_DN)
    arrive(F_PD, "v3", "v4")
    stamp(10)
    dump_stamps(11)
    a("s_endpgm")

    a.label("L_gwave")
    a(f"s_cmp_eq_u32 {S_W}, 4")
    a("s_cbranch_scc1 L_slice")
    a(f"s_cmp_eq_u32 {S_W}, 7")
    a("s_cbranch_scc1 L_aux")

    SB = "s97"
    a("v_lshlrev_b32 v2, 2, v0")
    a("v_mov_b32 v10, 1")
    a(f"s_mul_i32 s98, {SB}, {APITCH}")
    a("v_add_u32 v11, s98, v2")
    a("v_mov_b32 v19, 0")
    a("s_waitcnt vmcnt(0)")
    stamp(1)
    a("v_lshlrev_b32 v12, 16, v9")
    a("v_and_b32 v13, 0xffff0000, v9")
    a(f"s_mov_b32 s94, {LOG2E:#x}")
    for r in (12, 13): a(f"v_mul_f32 v{r+2}, s94, v{r}")
    for r in (12, 13): a(f"v_exp_f32 v{r+2}, -v{r+2}")
    for r in (12, 13): a(f"v_add_f32 v{r+2}, 1.0, v{r+2}")
    for r in (12, 13): a(f"v_rcp_f32 v{r+2}, v{r+2}")
    for r in (12, 13): a(f"v_mul_f32 v{r}, v{r}, v{r+2}")
    a("v_cvt_pk_bf16_f32 v12, v12, v13")
    a(f"ds_write_b32 v11, v12 offset:{L_ACT1}")
    arrive(F_1, "v19", "v10")
    get_tag()
    a("v_mov_b32 v3, 0")

    def ln_finish(mean, var, x0, x1, tmp):
        bf16r2(mean, var, mean, var, tmp)
        a(f"s_mov_b32 s94, {EPS:#x}")
        a(f"v_add_f32 {var}, s94, {var}")
        bf16r1(var, var)
        a(f"v_sqrt_f32 {var}, {var}")
        a(f"v_sub_f32 {x0}, {x0}, {mean}")
        a(f"v_sub_f32 {x1}, {x1}, {mean}")
        bf16r1(var, var)
        a(f"v_rcp_f32 {var}, {var}")
        bf16r2(x0, x1, x0, x1, tmp)
        a(f"v_mul_f32 {x0}, {x0}, {var}")
        a(f"v_mul_f32 {x1}, {x1}, {var}")
        bf16r2(x0, x1, x0, x1, tmp)

    def quarter_gather(chunkA, chunkB, qreg, pre=None, sample=False):
        for (ch, sreg) in ((chunkA, "s90"), (chunkB, "s99")):
            sexpr(sreg, [(SB, "shl", 14), (qreg, "shl", 12)], W_MOD + ch*32768)
        loads = []; tags = []
        for i in range(4):
            loads.append(f"buffer_load_dwordx4 v[{16+4*i}:{19+4*i}], v1, {WSRD}, s90 offen offset:{1024*i} sc1")
            loads.append(f"buffer_load_dwordx4 v[{32+4*i}:{35+4*i}], v1, {WSRD}, s99 offen offset:{1024*i} sc1")
            tags += [f"v{17+4*i}", f"v{19+4*i}", f"v{33+4*i}", f"v{35+4*i}"]
        if pre: pre()
        poll(loads, tags, "v50", sample=sample)
        for (base, d0, d1) in ((16, "v14", "v15"), (32, "v48", "v49")):
            a(f"v_add_f32 {d0}, v{base}, v{base+4}")
            a(f"v_add_f32 {d1}, v{base+2}, v{base+6}")
            a(f"v_add_f32 v50, v{base+8}, v{base+12}")
            a(f"v_add_f32 v51, v{base+10}, v{base+14}")
            a(f"v_add_f32 {d0}, {d0}, v50")
            a(f"v_add_f32 {d1}, {d1}, v51")
            bf16r2(d0, d1, d0, d1, "v50")

    def modulate(x0, x1, sc0, sc1, sh0, sh1, dst, tmp):
        a(f"v_mul_f32 {x0}, {x0}, {sc0}")
        a(f"v_mul_f32 {x1}, {x1}, {sc1}")
        bf16r2(x0, x1, x0, x1, tmp)
        a(f"v_add_f32 {x0}, {x0}, {sh0}")
        a(f"v_add_f32 {x1}, {x1}, {sh1}")
        a(f"v_cvt_pk_bf16_f32 {dst}, {x0}, {x1}")

    a(f"s_cmp_eq_u32 {S_B}, 0")
    a("s_cbranch_scc1 L_q_qg")
    for i in range(4):
        a(f"v_lshlrev_b32 v{16+2*i}, 16, v{4+i}")
        a(f"v_and_b32 v{17+2*i}, 0xffff0000, v{4+i}")
    a("v_add_f32 v24, v16, v17")
    a("v_add_f32 v25, v18, v19")
    a("v_add_f32 v26, v20, v21")
    a("v_add_f32 v27, v22, v23")
    a("v_add_f32 v24, v24, v25")
    a("v_add_f32 v26, v26, v27")
    a("v_add_f32 v24, v24, v26")
    allreduce(["v24"], "v_add_f32", ["v28"], FULL)
    a(f"s_mov_b32 s94, {INV512:#x}")
    a("v_mul_f32 v24, s94, v24")
    for i in range(8): a(f"v_sub_f32 v{16+i}, v{16+i}, v24")
    a("v_mul_f32 v25, v16, v16")
    for i in range(1, 8): a(f"v_fmac_f32 v25, v{16+i}, v{16+i}")
    allreduce(["v25"], "v_add_f32", ["v28"], FULL)
    a("v_mul_f32 v25, s94, v25")
    a("v_lshlrev_b32 v12, 16, v8")
    a("v_and_b32 v13, 0xffff0000, v8")
    ln_finish("v24", "v25", "v12", "v13", "v28")
    a(f"s_lshr_b32 s100, {S_SPL}, 2")
    quarter_gather(0, 1, "s100", pre=lambda: after_own(F_PM, 2, "v3", "v50", cfg.d_h))
    a("v_add_f32 v48, 1.0, v48")
    a("v_add_f32 v49, 1.0, v49")
    bf16r2("v48", "v49", "v48", "v49", "v50")
    modulate("v12", "v13", "v48", "v49", "v14", "v15", "v16", "v50")
    a(f"ds_write_b32 v11, v16 offset:{L_ACT2}")
    arrive(F_2, "v3", "v10")
    stamp(2)
    a.label("L_q_qg")
    sexpr("s90", [(S_X, "shl", 15), (S_BT, "shl", 14), (SB, "shl", 13)], W_Q)
    a("s_add_u32 s99, s90, 4096")
    a(f"s_mul_i32 s100, {SB}, {2*APITCH}")
    a("v_add_u32 v54, s100, v2")
    loads = []; tags = []
    for i in range(4):
        loads.append(f"buffer_load_dwordx4 v[{16+4*i}:{19+4*i}], v1, {WSRD}, s90 offen offset:{1024*i} sc1")
        loads.append(f"buffer_load_dwordx4 v[{32+4*i}:{35+4*i}], v1, {WSRD}, s99 offen offset:{1024*i} sc1")
        tags += [f"v{17+4*i}", f"v{19+4*i}", f"v{33+4*i}", f"v{35+4*i}"]
    a(f"s_cmp_eq_u32 {S_B}, 0")
    a("s_cbranch_scc1 L_q_qA")
    after_own(F_PQ, 4, "v3", "v50", cfg.d_q)
    poll(loads, tags, "v50")
    a("s_branch L_q_qE")
    a.label("L_q_qA")
    if cfg.quiet: spin_lds(F_LC, cfg.quiet, "v3", "v50")
    poll(loads, tags, "v50", sample=(not cfg.quiet), sleep=cfg.qsl)
    a.label("L_q_qE")
    for (base, hh) in ((16, 0), (32, 1)):
        a(f"v_add_f32 v48, v{base}, v{base+4}")
        a(f"v_add_f32 v49, v{base+2}, v{base+6}")
        a(f"v_add_f32 v50, v{base+8}, v{base+12}")
        a(f"v_add_f32 v51, v{base+10}, v{base+14}")
        a("v_add_f32 v48, v48, v50")
        a("v_add_f32 v49, v49, v51")
        a(f"v_cvt_pk_bf16_f32 v{52+hh}, v48, v49")
    a(f"ds_write_b32 v54, v52 offset:{L_Q}")
    a(f"ds_write_b32 v54, v53 offset:{L_Q+APITCH}")
    arrive(F_3, "v3", "v10")
    stamp(3)
    sexpr("s90", [(SB, "shl", 11), (S_KQ, "shl", 9)], W_MODF + 3*4096)
    a("s_add_u32 s99, s90, 4096")
    a("v_lshlrev_b32 v54, 3, v0")
    poll([f"buffer_load_dwordx2 v[16:17], v54, {WSRD}, s90 offen sc1",
          f"buffer_load_dwordx2 v[18:19], v54, {WSRD}, s99 offen sc1"], ["v17", "v19"], "v50", sleep=8)
    a("v_lshlrev_b32 v66, 16, v16")
    a("v_and_b32 v67, 0xffff0000, v16")
    a("v_lshlrev_b32 v48, 16, v18")
    a("v_and_b32 v49, 0xffff0000, v18")
    a("v_add_f32 v48, 1.0, v48")
    a("v_add_f32 v49, 1.0, v49")
    bf16r2("v64", "v65", "v48", "v49", "v50")
    sexpr("s90", [(S_X, "shl", 16), (S_KQ, "shl", 14), (SB, "shl", 13)], W_O)
    a("s_add_u32 s99, s90, 4096")
    sexpr("s100", [(S_X, "shl", 11), (SB, "shl", 10), (S_KQ, "shl", 8)], W_ST)
    a("v_lshlrev_b32 v54, 3, v0")
    a("v_and_b32 v55, 15, v0")
    a("v_lshlrev_b32 v55, 4, v55")
    loads = [f"buffer_load_dwordx4 v[48:51], v55, {WSRD}, s100 offen sc1"]; tags = ["v49", "v51"]
    for i in range(16):
        sr = "s90" if i < 8 else "s99"
        loads.append(f"buffer_load_dwordx2 v[{16+2*i}:{17+2*i}], v54, {WSRD}, {sr} offen offset:{512*(i&7)} sc1")
        tags.append(f"v{17+2*i}")
    a("v_lshrrev_b32 v56, 4, v0")
    a("v_lshlrev_b32 v56, 6, v56")
    a("v_and_b32 v57, 15, v0")
    a("v_lshl_add_u32 v56, v57, 1, v56")
    a("v_add_u32 v56, s98, v56")
    after_own(F_PO, 4, "v3", "v52", cfg.d_r1)
    stamp(4)
    a(f"s_cmp_eq_u32 {S_B}, 0")
    a("s_cbranch_scc1 L_q_r1A")
    poll(loads, tags, "v52")
    a("s_branch L_q_r1E")
    a.label("L_q_r1A")
    poll(loads, tags, "v52", sample=True, sleep=1)
    a.label("L_q_r1E")
    stamp(10)
    a("v_mov_b32 v58, v48")
    allreduce(["v58"], "v_max_f32", [], ["x1", "x2", "x4", "x8"])
    a(f"s_mov_b32 s94, {LOG2E:#x}")
    a("v_sub_f32 v59, v48, v58")
    a("v_mul_f32 v59, s94, v59")
    a("v_exp_f32 v59, v59")
    a("s_nop 0")
    a("v_mul_f32 v60, v59, v50")
    allreduce(["v60"], "v_add_f32", [], ["x1", "x2", "x4", "x8"])
    a("v_rcp_f32 v60, v60")
    a("s_nop 0")
    a("v_mul_f32 v59, v59, v60")
    for i in range(16): a(f"v_readlane_b32 s{16+i}, v59, {i}")
    for i in range(16):
        a(f"v_lshlrev_b32 v{60 + (i&1)*2}, 16, v{16+2*i}")
        a(f"v_and_b32 v{61 + (i&1)*2}, 0xffff0000, v{16+2*i}")
        if i < 2:
            a(f"v_mul_f32 v{52+2*i - (0 if i == 0 else 0)}, s{16+i}, v{60 + (i&1)*2}") if False else None
        if i == 0:
            a("v_mul_f32 v52, s16, v60"); a("v_mul_f32 v53, s16, v61")
        elif i == 1:
            a("v_mul_f32 v48, s17, v62"); a("v_mul_f32 v49, s17, v63")
        elif i & 1 == 0:
            a(f"v_fmac_f32 v52, s{16+i}, v60"); a(f"v_fmac_f32 v53, s{16+i}, v61")
        else:
            a(f"v_fmac_f32 v48, s{16+i}, v62"); a(f"v_fmac_f32 v49, s{16+i}, v63")
    a("v_add_f32 v52, v52, v48")
    a("v_add_f32 v53, v53, v49")
    a("v_cvt_pk_bf16_f32 v52, v52, v53")
    a(f"ds_write_b16 v56, v52 offset:{L_ACT4}")
    a(f"ds_write_b16_d16_hi v56, v52 offset:{L_ACT4+32}")
    a("s_waitcnt lgkmcnt(0)")
    stamp(5)
    a("s_barrier")
    sexpr("s99", [(S_X, "shl", 10), (SB, "shl", 9)], W_X1S)
    sexpr("s90", [(S_X, "shl", 12), (SB, "shl", 11), (S_KQ, "shl", 9)], W_X1P)
    a("v_lshlrev_b32 v16, 3, v0")
    a("v_and_b32 v17, 31, v0")
    a("v_lshlrev_b32 v17, 4, v17")
    after_own(F_PX, 1, "v3", "v50", cfg.d_x1)
    stamp(8)
    poll([f"buffer_load_dwordx4 v[24:27], v17, {WSRD}, s99 offen sc1",
          f"buffer_load_dwordx2 v[20:21], v16, {WSRD}, s90 offen sc1"], ["v21", "v25", "v27"], "v50")
    stamp(9)
    allreduce(["v24", "v26"], "v_add_f32", ["v28", "v29"], ["x1", "x2", "x4", "x8", "x16"])
    a(f"s_mov_b32 s94, {INV512:#x}")
    a("v_mul_f32 v24, s94, v24")
    a("v_mul_f32 v26, s94, v26")
    a("v_lshlrev_b32 v12, 16, v20")
    a("v_fma_f32 v26, -v24, v24, v26")
    a("v_and_b32 v13, 0xffff0000, v20")
    a("v_max_f32 v26, 0, v26")
    ln_finish("v24", "v26", "v12", "v13", "v30")
    modulate("v12", "v13", "v64", "v65", "v66", "v67", "v16", "v30")
    a(f"ds_write_b32 v11, v16 offset:{L_ACT6}")
    a(f"s_mul_i32 s94, {S_KQ}, 448")
    sexpr("s90", [(S_X, "shl", 15), (SB, "shl", 13), ("s94", "shl", 0)], W_GU, tmp="s99")
    a("s_add_u32 s94, s90, 4096")
    a("s_add_u32 s99, s90, 16384")
    a("s_add_u32 s100, s90, 20480")
    a("s_waitcnt lgkmcnt(0)")
    stamp(6)
    a("s_barrier")
    a("v_lshlrev_b32 v16, 3, v0")
    a("v_mov_b32 v40, 0")
    a("v_lshlrev_b32 v17, 1, v0")
    a("v_add_u32 v17, s98, v17")
    a("s_mov_b32 exec_lo, -1")
    a("s_mov_b32 exec_hi, 0x00ffffff")
    loads = []; tags = []
    for wh in range(2):
        for k6 in range(4):
            sr = [["s90", "s94"], ["s99", "s100"]][wh][k6 >> 1]
            rb = 20 + 8*wh + 2*k6
            loads.append(f"buffer_load_dwordx2 v[{rb}:{rb+1}], v16, {WSRD}, {sr} offen offset:{2048*(k6&1)} sc1")
            tags.append(f"v{rb+1}")
    after_own(F_PG, 4, "v3", "v50", cfg.d_gu)
    poll(loads, tags, "v50")
    a("v_add_f32 v36, v20, v22")
    a("v_add_f32 v37, v24, v26")
    a("v_add_f32 v38, v28, v30")
    a("v_add_f32 v39, v32, v34")
    a("v_add_f32 v36, v36, v37")
    a("v_add_f32 v38, v38, v39")
    bf16r2("v36", "v38", "v36", "v38", "v50")
    a("v_mul_f32 v36, v36, v38")
    a("v_cvt_pk_bf16_f32 v40, v36, v36")
    a("s_mov_b64 exec, -1")
    a(f"ds_write_b16 v17, v40 offset:{L_ACT7}")
    a("s_waitcnt lgkmcnt(0)")
    stamp(7)
    a("s_barrier")
    dump_stamps(11)
    a("s_endpgm")

    a.label("L_slice")
    srd(48, 38, 2048)
    a("v_and_b32 v1, 3, v0")
    a("v_lshlrev_b32 v7, 4, v0")
    a("v_mov_b32 v19, 0")
    a("v_lshlrev_b32 v2, 3, v1")
    a(f"s_lshl_b32 s90, {S_LOC}, 5")
    a("v_add_u32 v2, s90, v2")
    a("v_lshlrev_b32 v6, 4, v1")
    a(f"s_lshl_b32 s17, {S_LOC}, 12")
    a("buffer_load_dwordx2 v[4:5], v2, s[44:47], 0 offen")
    a("buffer_load_dwordx2 v[12:13], v2, s[44:47], 0 offen offset:1024")
    a("s_waitcnt vmcnt(0)")
    get_tag()
    a("v_mov_b32 v3, 0")
    for (src, dst) in ((4, 100), (5, 102), (12, 104), (13, 106)):
        a(f"v_lshlrev_b32 v{dst}, 16, v{src}")
        a(f"v_and_b32 v{dst+1}, 0xffff0000, v{src}")
    get_mode("v3", "v20")
    stamp(1)

    def gate_read(off, d):
        base = int(d[0][1:])
        a(f"ds_read_b128 v[{base}:{base+3}], v6 offset:{off}")
        a(f"ds_read_b128 v[{base+4}:{base+7}], v6 offset:{off+64}")
    def part_loads(base):
        a(f"s_add_u32 s20, s17, {base}")
        loads = []; tags = []
        for i in range(4):
            rb = 16 + 4*i
            loads.append(f"buffer_load_dwordx4 v[{rb}:{rb+3}], v7, {WSRD}, s20 offen offset:{1024*i} sc1")
            tags += [f"v{rb+1}", f"v{rb+3}"]
        return loads, tags
    def part_loads_atomic(base):
        a(f"s_add_u32 s20, s17, {base}")
        loads = []; tags = []
        for r in range(16, 32): loads.append(f"v_mov_b32 v{r}, 0")
        for i in range(4):
            rb = 16 + 4*i
            for hh in range(2):
                loads.append(f"buffer_atomic_add_x2 v[{rb+2*hh}:{rb+2*hh+1}], v7, {WSRD}, s20 offen offset:{1024*i + 8*hh} sc0 sc1")
            tags += [f"v{rb+1}", f"v{rb+3}"]
        return loads, tags
    def part_sum():
        a("v_mov_b32 v8, 0x3f80")
        a("v_mov_b32 v9, 0x3f800000")
        for b in range(2):
            for (k, (off, sel)) in enumerate(((0, "v8"), (0, "v9"), (2, "v8"), (2, "v9"))):
                d = f"v{108+4*b+k}"
                r0 = 16 + 8*b + off
                a(f"v_dot2_f32_bf16 {d}, v{r0}, {sel}, 0")
                a(f"v_dot2_f32_bf16 {d}, v{r0+4}, {sel}, {d}")
        regs = [f"v{108+k}" for k in range(8)]
        allreduce(regs, "v_add_f32", [f"v{16+k}" for k in range(8)], ["r4", "r8", "x16", "x32"])
    def resid(gate, xio):
        regs = [f"v{108+k}" for k in range(8)]
        for k in range(0, 8, 2): bf16r2(regs[k], regs[k+1], regs[k], regs[k+1], "v14")
        for k in range(8): a(f"v_mul_f32 {regs[k]}, {regs[k]}, {gate[k]}")
        for k in range(0, 8, 2): bf16r2(regs[k], regs[k+1], regs[k], regs[k+1], "v14")
        for k in range(8): a(f"v_add_f32 {xio[k]}, {xio[k]}, {regs[k]}")
    XR = [f"v{100+k}" for k in range(8)]
    GA = [f"v{116+k}" for k in range(8)]
    GB = [f"v{88+k}" for k in range(8)]

    l1, t1 = part_loads(W_A4)
    a("v_bfe_u32 v10, v0, 2, 1")
    a("v_lshlrev_b32 v98, 11, v10")
    a("v_lshl_add_u32 v98, v1, 4, v98")
    a("v_lshlrev_b32 v99, 9, v10")
    sexpr("s22", [(S_X, "shl", 12), (S_LOC, "shl", 6)], W_X1P)
    sexpr("s23", [(S_X, "shl", 10), (S_LOC, "shl", 4)], W_X1S)
    spin_lds(F_GA, 1, "v3", "v15")
    gate_read(L_GA, GA)
    gate_read(L_GB, GB)
    a("s_waitcnt lgkmcnt(0)")
    a("s_barrier")
    after_own(F_PA, 4, "v3", "v15", cfg.d_s5)
    stamp(2)
    poll(l1, t1, "v15")
    stamp(3)
    part_sum()
    resid(GA, XR)
    for k in range(4): a(f"v_cvt_pk_bf16_f32 v{20+k}, {XR[2*k]}, {XR[2*k+1]}")
    for k in range(4):
        a(f"v_lshlrev_b32 {XR[2*k]}, 16, v{20+k}")
        a(f"v_and_b32 {XR[2*k+1]}, 0xffff0000, v{20+k}")
    a("v_cmp_eq_u32 vcc, 1, v10")
    a(f"v_mov_b32 v25, {S_TAG}")
    a(f"v_mov_b32 v27, {S_TAG}")
    a("v_cndmask_b32 v24, v20, v22, vcc")
    a("v_cndmask_b32 v26, v21, v23, vcc")
    a("s_mov_b64 exec, 0xff")
    store_loc(f"buffer_store_dwordx4 v[24:27], v98, {WSRD}, s22 offen")
    a("s_mov_b64 exec, -1")
    a(f"v_add_f32 v16, {XR[0]}, {XR[1]}")
    a(f"v_add_f32 v18, {XR[4]}, {XR[5]}")
    a(f"v_mul_f32 v17, {XR[0]}, {XR[0]}")
    a(f"v_mul_f32 v19, {XR[4]}, {XR[4]}")
    a(f"v_add_f32 v16, v16, {XR[2]}")
    a(f"v_add_f32 v18, v18, {XR[6]}")
    for k in (1, 2, 3):
        a(f"v_fmac_f32 v17, {XR[k]}, {XR[k]}")
        a(f"v_fmac_f32 v19, {XR[4+k]}, {XR[4+k]}")
    a(f"v_add_f32 v16, v16, {XR[3]}")
    a(f"v_add_f32 v18, v18, {XR[7]}")
    allreduce(["v16", "v17", "v18", "v19"], "v_add_f32", [], ["x1", "x2"])
    a(f"v_mov_b32 v29, {S_TAG}")
    a(f"v_mov_b32 v31, {S_TAG}")
    a("v_cndmask_b32 v28, v16, v18, vcc")
    a("v_cndmask_b32 v30, v17, v19, vcc")
    a("s_mov_b64 exec, 0x11")
    store_loc(f"buffer_store_dwordx4 v[28:31], v99, {WSRD}, s23 offen")
    a("s_mov_b64 exec, -1")
    a("v_mov_b32 v15, 1")
    arrive(F_PX, "v3", "v15")
    stamp(4)
    a(f"s_and_b32 s90, {S_LOC}, 7")
    a(f"s_cmp_lg_u32 s90, {S_X}")
    a("s_cbranch_scc1 L_slice_nf")
    a("s_barrier")
    a("s_barrier")
    l1, t1 = part_loads_atomic(W_DN) if cfg.atom8 else part_loads(W_DN)
    a("v_lshlrev_b32 v98, 10, v10")
    a("v_lshl_add_u32 v98, v1, 3, v98")
    a(f"s_lshl_b32 s22, {S_LOC}, 5")
    after_own(F_PD, 4, "v3", "v15", cfg.d_s8)
    poll(l1, t1, "v15")
    part_sum()
    resid(GB, XR)
    for k in range(4): a(f"v_cvt_pk_bf16_f32 v{20+k}, {XR[2*k]}, {XR[2*k+1]}")
    a("v_cmp_eq_u32 vcc, 1, v10")
    a("v_cndmask_b32 v24, v20, v22, vcc")
    a("v_cndmask_b32 v25, v21, v23, vcc")
    a("s_mov_b64 exec, 0xff")
    a("buffer_store_dwordx2 v[24:25], v98, s[48:51], s22 offen")
    a(f"s_cmp_lg_u32 {S_WG}, 0")
    a("s_cbranch_scc1 L_slice_end")
    a("s_mov_b64 exec, 1")
    a(f"v_mov_b32 v24, {S_EP}")
    a("v_mov_b32 v21, 0")
    a(f"buffer_store_dword v24, v21, {WSRD}, 0 offen sc1")
    a.label("L_slice_end")
    if cfg.probe == 1:
        a("s_sleep 94")
        a("s_sleep 94")
    if cfg.probe == 3:
        a("s_add_u32 s22, s62, 2500")
        a.label("L_probe")
        a("s_memrealtime s[20:21]")
        a("s_waitcnt lgkmcnt(0)")
        a("s_sub_u32 s23, s20, s22")
        a("s_cmp_lt_i32 s23, 0")
        a("s_cbranch_scc1 L_probe")
    if cfg.probe == 2:
        a("s_memrealtime s[20:21]")
        a("s_waitcnt lgkmcnt(0)")
        a("s_add_u32 s22, s20, 500")
        a.label("L_probe")
        a("s_memrealtime s[20:21]")
        a("s_waitcnt lgkmcnt(0)")
        a("s_sub_u32 s23, s20, s22")
        a("s_cmp_lt_i32 s23, 0")
        a("s_cbranch_scc1 L_probe")
    a("s_mov_b64 exec, -1")
    stamp(5)
    dump_stamps(6)
    a("s_endpgm")
    a.label("L_slice_nf")
    a("s_barrier")
    a("s_barrier")
    dump_stamps(5)
    a("s_endpgm")

    a.label("L_aux")
    srd(44, 28, 512*1792*2)
    srd(48, 30, 512*1792*2)
    srd(52, 32, 1792*512*2)
    a("v_mov_b32 v10, 1")
    sexpr("s18", [(S_X, "mul", 224*1024), (S_KQ, "mul", 56*1024), (S_CB, "shl", 7)])
    sexpr("s19", [(S_KQ, "mul", 128*3584), (S_X, "mul", 448), (S_CB, "shl", 6)])
    a("s_waitcnt vmcnt(0)")
    get_tag()
    strip_voff(3584, "v31")
    unit_voffs(pitch_shift=10, d0="v32", d1="v33")
    a("v_mov_b32 v3, 0")
    stamp(1)
    if cfg.quiet:
        Lq = a.newlabel("Lquiet")
        a(f"s_cmp_lg_u32 {S_B}, 0")
        a(f"s_cbranch_scc1 {Lq}")
        spin_lds(F_LC, cfg.quiet, "v3", "v50")
        a.label(Lq)
    if cfg.local == 2:
        L = a.newlabel("Lxc"); E = a.newlabel("Lxce")
        srd(60, 40, 256)
        a(f"s_lshl_b32 s91, {S_X}, 5")
        a("s_add_u32 s91, s91, 8")
        a("v_mov_b32 v18, s91")
        a("s_getreg_b32 s90, hwreg(HW_REG_XCC_ID)")
        a("s_and_b32 s90, s90, 7")
        a("s_mul_i32 s90, s90, 6")
        a("s_lshl_b64 s[26:27], 1, s90")
        a("s_mov_b64 exec, 1")
        a.label(L)
        a("buffer_load_dwordx2 v[20:21], v18, s[60:63], 0 offen sc1")
        a("s_waitcnt vmcnt(0)")
        a("v_readfirstlane_b32 s20, v20")
        a("v_readfirstlane_b32 s21, v21")
        a("s_mov_b64 s[22:23], s[20:21]")
        a("s_mov_b32 s90, 0")
        for k in range(8):
            a("s_and_b32 s91, s22, 63")
            a("s_add_u32 s90, s90, s91")
            if k < 7: a("s_lshr_b64 s[22:23], s[22:23], 6")
        a("s_cmp_ge_u32 s90, 32")
        a(f"s_cbranch_scc1 {E}")
        timeout()
        a("s_sleep 2")
        a(f"s_branch {L}")
        a.label(E)
        a("s_lshl_b64 s[22:23], s[26:27], 5")
        a("s_cmp_eq_u64 s[20:21], s[22:23]")
        a("s_cselect_b32 s90, 1, 2")
        a("v_mov_b32 v16, s90")
        a(f"ds_write_b32 v3, v16 offset:{F_LM}")
        a("s_mov_b64 exec, -1")
    stamp(2)
    a(f"s_cmp_lg_u32 {S_B}, 0")
    a("s_cbranch_scc1 L_aux_ga")
    a(f"s_lshr_b32 s90, {S_X}, 1")
    a(f"s_and_b32 s91, {S_X}, 1")
    a(f"s_lshr_b32 s22, {S_SPL}, 2")
    a(f"s_and_b32 s23, {S_SPL}, 3")
    sexpr("s20", [("s90", "shl", 15), ("s91", "shl", 14), ("s22", "shl", 12), ("s23", "shl", 8)], W_MOD + 2*32768)
    sexpr("s21", [("s90", "shl", 12), ("s91", "shl", 11), (S_SPL, "shl", 7)], W_MODF + 2*4096)
    a("v_lshlrev_b32 v18, 3, v0")
    a("s_mov_b32 exec_hi, 0")
    loads = []; tags = []
    for i in range(4):
        loads.append(f"buffer_load_dwordx2 v[{40+2*i}:{41+2*i}], v18, {WSRD}, s20 offen offset:{1024*i} sc1")
        tags.append(f"v{41+2*i}")
    poll(loads, tags, "v60", sleep=6, sample=True)
    a("v_add_f32 v40, v40, v42")
    a("v_add_f32 v44, v44, v46")
    a("v_add_f32 v40, v40, v44")
    a("v_lshlrev_b32 v18, 2, v0")
    a(f"v_mov_b32 v43, {S_TAG}")
    a("v_mov_b32_dpp v42, v40 quad_perm:[1,0,3,2] row_mask:0xf bank_mask:0xf")
    a("s_mov_b32 exec_lo, 0x55555555")
    a("v_cvt_pk_bf16_f32 v42, v40, v42")
    a(f"buffer_store_dwordx2 v[42:43], v18, {WSRD}, s21 offen sc1")
    a("s_mov_b64 exec, -1")
    a.label("L_aux_ga")
    sexpr("s20", [(S_LOC, "shl", 6)], W_MODF + 2*4096)
    a(f"s_add_u32 s21, s20, {3*4096}")
    a("v_bfe_u32 v16, v0, 3, 1")
    a("v_and_b32 v17, 7, v0")
    a("v_lshlrev_b32 v18, 11, v16")
    a("v_lshl_add_u32 v18, v17, 3, v18")
    a("v_and_b32 v19, 15, v0")
    a("v_lshlrev_b32 v19, 3, v19")
    a("s_mov_b64 exec, 0xffff")
    poll([f"buffer_load_dwordx2 v[40:41], v18, {WSRD}, s20 offen sc1",
          f"buffer_load_dwordx2 v[42:43], v18, {WSRD}, s21 offen sc1"], ["v41", "v43"], "v60", sleep=8)
    a("v_lshlrev_b32 v44, 16, v40")
    a("v_and_b32 v45, 0xffff0000, v40")
    a("v_lshlrev_b32 v46, 16, v42")
    a("v_and_b32 v47, 0xffff0000, v42")
    a(f"ds_write_b64 v19, v[44:45] offset:{L_GA}")
    a(f"ds_write_b64 v19, v[46:47] offset:{L_GB}")
    a("s_mov_b64 exec, -1")
    arrive(F_GA, "v3", "v10")
    a("s_barrier")
    spin_lds(F_PA, 4, "v3", "v50", sleep=False)
    a(f"s_cmp_eq_u32 {S_CB}, 7")
    a("s_cbranch_scc1 L_aux_dn")
    a(f"s_mov_b32 m0, {L_G}")
    a("s_mov_b32 s99, 8")
    a.label("L_aux_gu")
    a("buffer_load_dwordx4 v31, s[44:47], s19 offen nt lds")
    a("s_add_u32 m0, m0, 0x2000")
    a("s_nop 0")
    a("buffer_load_dwordx4 v31, s[48:51], s19 offen nt lds")
    a("s_sub_u32 m0, m0, 0x1c00")
    a(f"s_add_u32 s19, s19, {16*3584}")
    a("s_sub_u32 s99, s99, 1")
    a("s_cmp_lg_u32 s99, 0")
    a("s_cbranch_scc1 L_aux_gu")
    a.label("L_aux_dn")
    a(f"s_mov_b32 m0, {L_DN}")
    a("s_nop 0")
    for i in range(8):
        a(f"buffer_load_dwordx4 v{32 + (i&1)}, s[52:55], s18 offen nt lds")
        a("s_add_u32 m0, m0, 0x400")
        a("s_add_u32 s18, s18, 0x2000")
    a("s_waitcnt vmcnt(0)")
    arrive(F_LATE, "v3", "v10")
    stamp(3)
    a("s_barrier")
    a("s_barrier")
    dump_stamps(4)
    a("s_endpgm")

    a.label("L_abort")
    a("s_mov_b64 exec, 1")
    a("v_mov_b32 v1, 0")
    a(f"s_lshl_b32 s90, {S_WG}, 16")
    a("s_or_b32 s90, s90, s1") if cfg.site else None
    a("v_mov_b32 v2, s90")
    a(f"s_and_b32 s90, {S_W}, 1")
    a("s_lshl_b32 s90, s90, 2")
    a("v_mov_b32 v1, s90")
    a("v_or_b32 v2, 0xde000000, v2")
    a("s_mov_b32 s44, s40")
    a("s_and_b32 s45, s41, 0xffff")
    a("s_mov_b32 s46, 256")
    a("s_mov_b32 s47, 0x20000")
    a("buffer_store_dword v2, v1, s[44:47], 0 offen")
    a.label("L_end")
    a("s_endpgm")

    hdr = open(f"cdna_kernels/{NAME}.s.ref").read().split("; Override launch")[0]
    out = hdr
    out += f"; @launch grid=(256,1,1) block=(576,1,1) lds={L_TOTAL}\n"
    out += '.amdgcn_target "amdgcn-amd-amdhsa--gfx950"\n.text\n'
    out += f".globl {NAME}_kernel\n.p2align 8\n.type {NAME}_kernel,@function\n"
    out += a.text()
    out += f""".section .rodata,"a"
.p2align 6
.amdhsa_kernel {NAME}_kernel
  .amdhsa_next_free_vgpr 128
  .amdhsa_next_free_sgpr 102
  .amdhsa_accum_offset 128
  .amdhsa_group_segment_fixed_size 0
  .amdhsa_kernarg_size 112
  .amdhsa_user_sgpr_count 2
  .amdhsa_user_sgpr_kernarg_segment_ptr 1
  .amdhsa_system_sgpr_workgroup_id_x 1
.end_amdhsa_kernel
"""
    return out

if __name__ == "__main__":
    cfg = Cfg()
    outp = sys.argv[1]
    for arg in sys.argv[2:]:
        k, v = arg.split("=")
        assert hasattr(cfg, k), k
        setattr(cfg, k, int(v))
    open(outp, "w").write(gen(cfg))
    print("wrote", outp)
```

```python
import sys
from asmlib import Asm

NAME = "adaLN_cond__sliding_block_cached__glu_gated_bilinear__decode"

class Cfg:
    D = 40
    DA = 28
    stamps = 0
    spin = 1 << 20
    rsl = 1
    local = 2
    touch = 1
    quiet = 0
    prio = 0
    qsl = 4
    kstart = 1
    d_h = 4
    d_q = 1
    d_r1 = 1
    d_s5 = 8
    d_x1 = 1
    d_gu = 1
    d_s8 = 2
    atom8 = 1
    probe = 0
    site = 0

(F_LC, F_1, F_2, F_3, F_EC, F_KC, F_MB1, F_MB2, F_LATE, F_PO, F_PA, F_PX, F_PG, F_PD,
 F_PM, F_PQ, F_XC, F_WQ, F_WOL, F_MRL, F_LM, F_GA) = [4*i for i in range(22)]
L_MX = 128; L_LS = 192; L_ZERO = 256
L_ACT1 = 768; L_ACT2 = 1344; L_ACT4 = 1920; L_ACT6 = 2496; L_ACT7 = 3072
L_PRB = 7424
L_GA = 7168; L_GB = 7296
L_Q = 3648
L_P = 4736
L_X = 8192; L_C = 10240
L_K = 12288; L_V = L_K + 73728; L_TOTAL = L_V + 73728; L_MR = L_V + 57344
NK_A = 288; NK_B = 224
L_MODB = L_K; L_WQ = L_V
L_WO = L_K; L_G = L_K + 16384; L_U = L_K + 24576; L_DN = L_K + 32768
APITCH = 272; PPITCH = 592

W_EPOCH = 0
W_MOD = 0x1000
W_MODF = 0x38000
W_Q = 0x40000
W_ST = 0x80000
W_O = 0x90000
W_A4 = 0x110000
W_X1P = 0x150000
W_X1S = 0x158000
W_GU = 0x160000
W_DN = 0x1A0000
W_STAMP = 0x200000
W_USED = 0x300000

LOG2E = 0x3fb8aa3b
SCALE = 0x3db504f3
EPS = 0x3727c5ac
INV512 = 0x3b000000

S_WG, S_W, S_X, S_LOC, S_B, S_SPL, S_KQ, S_CB, S_TAG, S_SPIN = "s2", "s3", "s4", "s5", "s6", "s7", "s8", "s9", "s10", "s11"
S_U = "s7"
S_BT = "s86"
S_SP = "s87"
WSRD = "s[12:15]"
S_EP = "s89"
S_LM = "s88"
PX = "s[42:43]"
S_PH = "s101"
KB_B = 8

def gen(cfg):
    a = Asm()
    D = cfg.D

    def srd(dst, plo, size):
        a(f"s_mov_b32 s{dst}, s{plo}")
        a(f"s_and_b32 s{dst+1}, s{plo+1}, 0xffff")
        a(f"s_mov_b32 s{dst+2}, {size}")
        a(f"s_mov_b32 s{dst+3}, 0x20000")

    def stamp(k):
        if cfg.stamps: a(f"s_memrealtime s[{64+2*k}:{65+2*k}]")

    def mark(pid, vz):
        if cfg.probe == pid:
            a("s_memrealtime s[62:63]")
            a("s_waitcnt lgkmcnt(0)")
            a("v_mov_b32 v127, s62")
            a(f"ds_max_u32 {vz}, v127 offset:{L_PRB}")

    def dump_stamps(n):
        if not cfg.stamps: return
        a("s_waitcnt lgkmcnt(0)")
        a(f"s_mul_i32 s90, {S_WG}, 9")
        a(f"s_add_u32 s90, s90, {S_W}")
        a("s_lshl_b32 s90, s90, 7")
        a(f"s_add_u32 s90, s90, {W_STAMP}")
        a("s_mov_b64 exec, 1")
        a("v_mov_b32 v1, 0")
        for k in range(n):
            a(f"v_mov_b32 v2, s{64+2*k}")
            a(f"v_mov_b32 v3, s{65+2*k}")
            a(f"buffer_store_dwordx2 v[2:3], v1, {WSRD}, s90 offen offset:{8*k}")
            a("s_nop 1")
        a("s_waitcnt vmcnt(0)")

    sites = [0]
    def timeout():
        if cfg.site:
            sites[0] += 1
            a(f"s_mov_b32 s1, {sites[0]}")
        a(f"s_sub_u32 {S_SPIN}, {S_SPIN}, 1")
        a("s_cbranch_scc1 L_abort")

    def spin_lds(off, n, vz, vt, sleep=True):
        L = a.newlabel("Lsp"); E = a.newlabel("Lspe")
        a.label(L)
        a(f"ds_read_b32 {vt}, {vz} offset:{off}")
        a("s_waitcnt lgkmcnt(0)")
        a(f"v_readfirstlane_b32 s91, {vt}")
        a(f"s_cmp_ge_i32 s91, {n}")
        a(f"s_cbranch_scc1 {E}")
        timeout()
        if sleep: a("s_sleep 1")
        a(f"s_branch {L}")
        a.label(E)

    def arrive(off, vz, vone):
        a("s_mov_b64 s[92:93], exec")
        a("s_mov_b64 exec, 1")
        a(f"ds_add_u32 {vz}, {vone} offset:{off}")
        a("s_mov_b64 exec, s[92:93]")

    def poll(loads, tags, vacc, sleep=None, sample=False):
        if sleep is None: sleep = cfg.rsl
        L = a.newlabel("Lpl"); E = a.newlabel("Lple"); R = a.newlabel("Lplr")
        a(f"s_mov_b64 {PX}, exec")
        if sample:
            a(f"s_mov_b32 {S_PH}, 0")
            a("s_mov_b64 exec, 1")
        a.label(L)
        for ld in loads: a(ld)
        a("s_waitcnt vmcnt(0)")
        a(f"v_xor_b32 {vacc}, {S_TAG}, {tags[0]}")
        for t in tags[1:]:
            a(f"v_bitop3_b32 {vacc}, {vacc}, {t}, {S_TAG} bitop3:0xf6")
        a(f"v_cmp_ne_u32 vcc, 0, {vacc}")
        if sample:
            a(f"s_cbranch_vccnz {R}")
            a(f"s_cmp_lg_u32 {S_PH}, 0")
            a(f"s_cbranch_scc1 {E}")
            a(f"s_mov_b32 {S_PH}, 1")
            a(f"s_mov_b64 exec, {PX}")
            a(f"s_branch {L}")
            a.label(R)
        else:
            a(f"s_cbranch_vccz {E}")
        a("s_mov_b64 exec, vcc")
        timeout()
        if sleep: a(f"s_sleep {sleep}")
        a(f"s_branch {L}")
        a.label(E)
        a(f"s_mov_b64 exec, {PX}")

    def after_own(flag, n, vz, vt, dly):
        spin_lds(flag, n, vz, vt, sleep=False)
        if dly: a(f"s_sleep {dly}")

    def get_mode(vz, vt):
        if cfg.local == 2:
            spin_lds(F_LM, 1, vz, vt)
            a(f"s_mov_b32 {S_LM}, s91")

    def store_loc(text):
        if cfg.local == 0: a(text + " sc1")
        elif cfg.local == 1: a(text)
        else:
            P = a.newlabel("Lst"); E = a.newlabel("Lste")
            a(f"s_cmp_eq_u32 {S_LM}, 1")
            a(f"s_cbranch_scc1 {P}")
            a(text + " sc1")
            a(f"s_branch {E}")
            a.label(P)
            a(text)
            a.label(E)

    def bf16r2(d0, d1, s0, s1, tmp):
        a(f"v_cvt_pk_bf16_f32 {tmp}, {s0}, {s1}")
        a(f"v_lshlrev_b32 {d0}, 16, {tmp}")
        a(f"v_and_b32 {d1}, 0xffff0000, {tmp}")

    def bf16r1(d, s):
        a(f"v_cvt_pk_bf16_f32 {d}, {s}, {s}")
        a(f"v_lshlrev_b32 {d}, 16, {d}")

    def allreduce(regs, op, tmps, steps):
        dpp = {"x1": "quad_perm:[1,0,3,2]", "x2": "quad_perm:[2,3,0,1]", "x4": "row_half_mirror", "x8": "row_mirror", "r8": "row_ror:8", "r4": "row_ror:4"}
        for s in steps:
            if s in dpp:
                for r in regs:
                    a(f"{op}_dpp {r}, {r}, {r} {dpp[s]} row_mask:0xf bank_mask:0xf")
            else:
                ins = "v_permlane16_swap_b32" if s == "x16" else "v_permlane32_swap_b32"
                for r, t in zip(regs, tmps): a(f"v_mov_b32 {t}, {r}")
                for r, t in zip(regs, tmps): a(f"{ins} {r}, {t}")
                for r, t in zip(regs, tmps): a(f"{op} {r}, {r}, {t}")
    FULL = ["x1", "x2", "x4", "x8", "x16", "x32"]

    def sexpr(dst, terms, const=0, tmp="s94"):
        first = True
        for (reg, kind, n) in terms:
            tgt = dst if first else tmp
            if kind == "shl":
                if n == 0: a(f"s_mov_b32 {tgt}, {reg}")
                else: a(f"s_lshl_b32 {tgt}, {reg}, {n}")
            else: a(f"s_mul_i32 {tgt}, {reg}, {n}")
            if not first: a(f"s_add_u32 {dst}, {dst}, {tmp}")
            first = False
        if const: a(f"s_add_u32 {dst}, {dst}, {const}")

    def get_tag():
        a(f"v_readfirstlane_b32 {S_EP}, v3")
        a(f"s_add_u32 {S_EP}, {S_EP}, 1")
        a(f"s_mul_i32 {S_TAG}, {S_EP}, 0x9E3779B1")

    def unit_voffs(pitch_shift=None, pitch=None, d0="v24", d1="v25"):
        a("v_lshrrev_b32 v3, 3, v0")
        a("v_bfe_u32 v4, v0, 4, 1")
        a("v_lshlrev_b32 v4, 1, v4")
        a("v_and_b32 v5, 7, v0")
        a("v_xor_b32 v4, v4, v5")
        a("v_lshlrev_b32 v4, 4, v4")
        if pitch_shift is not None: a(f"v_lshlrev_b32 v6, {pitch_shift}, v3")
        else: a(f"v_mul_u32_u24 v6, {pitch}, v3")
        a(f"v_add_u32 {d0}, v6, v4")
        a(f"v_xor_b32 {d1}, 64, {d0}")

    def strip_voff(pitch, d):
        a("v_lshrrev_b32 v6, 2, v0")
        a(f"v_mul_u32_u24 {d}, {pitch}, v6")
        a("v_bfe_u32 v6, v0, 5, 1")
        a("v_lshlrev_b32 v6, 1, v6")
        a("v_and_b32 v7, 3, v0")
        a("v_xor_b32 v6, v6, v7")
        a(f"v_lshl_add_u32 {d}, v6, 4, {d}")

    a.label(f"{NAME}_kernel")
    a(f"s_cmp_ge_u32 {S_WG}, 256")
    a("s_cbranch_scc1 L_end")
    a("s_load_dwordx16 s[16:31], s[0:1], 0")
    a("s_load_dwordx8 s[32:39], s[0:1], 64")
    a("s_load_dwordx4 s[40:43], s[0:1], 96")
    stamp(0)
    if cfg.probe == 3: a("s_memrealtime s[62:63]")
    a("v_lshrrev_b32 v1, 6, v0")
    a("v_and_b32 v0, 63, v0")
    a(f"v_readfirstlane_b32 {S_W}, v1")
    a(f"s_and_b32 {S_X}, {S_WG}, 7")
    a(f"s_lshr_b32 {S_LOC}, {S_WG}, 3")
    a(f"s_lshr_b32 {S_B}, {S_LOC}, 4")
    a(f"s_xor_b32 {S_B}, {S_B}, 1")
    a(f"s_and_b32 {S_SPL}, {S_LOC}, 15")
    a(f"s_bfe_u32 {S_BT}, {S_LOC}, 0x10003")
    a(f"s_and_b32 {S_SP}, {S_LOC}, 7")
    a(f"s_lshl_b32 s90, {S_B}, 3")
    a(f"s_xor_b32 s90, s90, 8")
    a(f"s_add_u32 {S_SP}, {S_SP}, s90")
    a(f"s_lshr_b32 {S_KQ}, {S_LOC}, 3")
    a(f"s_and_b32 {S_CB}, {S_LOC}, 7")
    a(f"s_mov_b32 {S_SPIN}, {cfg.spin}")
    a(f"s_mov_b32 {S_LM}, {1 if cfg.local == 1 else 2}")
    a(f"s_cmp_lg_u32 {S_W}, 8")
    a("s_cbranch_scc1 L_worker")

    SLC = "s95"; SOFF = "s96"
    strip_voff(6144, "v20")
    a(f"s_and_b32 s90, {S_SPL}, 3")
    a(f"s_mul_i32 {SOFF}, s90, {128*6144}")
    a(f"s_lshr_b32 s90, {S_X}, 2")
    a("s_lshl_b32 s90, s90, 10")
    a(f"s_add_u32 {SOFF}, {SOFF}, s90")
    a(f"s_and_b32 s90, {S_X}, 3")
    a("s_lshl_b32 s90, s90, 8")
    a(f"s_add_u32 {SOFF}, {SOFF}, s90")
    a(f"s_lshr_b32 s90, {S_SPL}, 2")
    a("s_lshl_b32 s90, s90, 6")
    a(f"s_add_u32 {SOFF}, {SOFF}, s90")
    a(f"s_mov_b32 m0, {L_MODB}")
    a("s_waitcnt lgkmcnt(0)")
    srd(44, 36, 512*3072*2)
    a(f"s_cmp_eq_u32 {S_B}, 0")
    a("s_cbranch_scc1 L_ld_nomod")
    for i in range(8):
        a(f"buffer_load_dwordx4 v20, s[44:47], {SOFF} offen nt lds")
        if i < 7:
            a(f"s_add_u32 {SOFF}, {SOFF}, {16*6144}")
            a("s_add_u32 m0, m0, 0x400")
    a.label("L_ld_nomod")
    if cfg.prio: a("s_setprio 3")
    a("s_barrier")
    stamp(1)
    srd(12, 42, W_USED)
    srd(52, 18, 2*8*32768*128*2)
    srd(56, 20, 2*8*32768*128*2)
    srd(60, 24, 4096*512*2)
    a("v_mov_b32 v10, 0")
    a("v_lshrrev_b32 v3, 4, v0")
    a("v_and_b32 v4, 15, v0")
    a("v_xor_b32 v5, v4, v3")
    a("v_lshlrev_b32 v5, 4, v5")
    a("v_lshl_add_u32 v26, v3, 8, v5")
    a("v_xor_b32 v27, 64, v26")
    a("v_xor_b32 v28, 0x80, v26")
    a("v_xor_b32 v29, 0xc0, v26")
    a("v_lshlrev_b32 v5, 1, v3")
    a("v_xor_b32 v5, v4, v5")
    a("v_lshlrev_b32 v5, 4, v5")
    a("v_lshl_add_u32 v30, v3, 8, v5")
    a("v_xor_b32 v31, 0x80, v30")
    a(f"s_and_b32 s90, {S_LOC}, 7")
    a(f"s_mul_i32 s91, {S_B}, {(NK_B - NK_A) * 256}")
    a(f"s_add_u32 s91, s91, {NK_A * 256}")
    a("s_mul_i32 s90, s90, s91")
    a(f"s_mul_i32 s91, {S_B}, {-1792 * 256}")
    a("s_add_u32 s90, s90, s91")
    sexpr("s98", [(S_BT, "shl", 26), (S_X, "shl", 23), ("s90", "shl", 0)], (28672 + 1792) * 256)
    unit_voffs(pitch_shift=10)

    def lc_write(val, off=F_LC):
        a(f"v_mov_b32 v11, {val}")
        a(f"ds_write_b32 v10, v11 offset:{off}")
    def seg(name, variants, srdn, step, iters, ldsbase):
        a(f"s_mov_b32 m0, {ldsbase}")
        a(f"s_mov_b32 s97, {iters}")
        a.label(name)
        for v in variants:
            a(f"buffer_load_dwordx4 {v}, s[{srdn}:{srdn+3}], {SOFF} offen nt lds")
            a(f"s_add_u32 {SOFF}, {SOFF}, {step}")
            a("s_add_u32 m0, m0, 0x400")
        a("s_sub_u32 s97, s97, 1")
        a("s_cmp_lg_u32 s97, 0")
        a(f"s_cbranch_scc1 {name}")
    def drain(end, ks):
        for k in ks:
            a(f"s_waitcnt vmcnt({k})")
            lc_write(end - k)
    def seg4(name, variants, srdn, iters, ldsbase, D=D):
        if ldsbase is not None: a(f"s_mov_b32 m0, {ldsbase}")
        a(f"s_mov_b32 s97, {iters}")
        a.label(name)
        for i, v in enumerate(variants):
            a(f"buffer_load_dwordx4 {v}, s[{srdn}:{srdn+3}], {SOFF} offen offset:{1024*i} nt lds")
        a(f"s_add_u32 {SOFF}, {SOFF}, 0x1000")
        a("s_add_u32 m0, m0, 0x1000")
        a(f"s_add_u32 {SLC}, {SLC}, 4")
        a(f"v_mov_b32 v11, {SLC}")
        a(f"s_waitcnt vmcnt({D-4})")
        a(f"ds_write_b32 v10, v11 offset:{F_LC}")
        a("s_sub_u32 s97, s97, 1")
        a("s_cmp_lg_u32 s97, 0")
        a(f"s_cbranch_scc1 {name}")
    WO_OFF = [(S_X, "shl", 19), (S_KQ, "shl", 17), (S_CB, "shl", 7)]

    a(f"s_cmp_eq_u32 {S_B}, 0")
    a("s_cbranch_scc1 L_ld_A")
    a("s_waitcnt vmcnt(0)")
    lc_write(KB_B)
    if cfg.kstart == 0:
        spin_lds(F_EC, 4, "v10", "v12")
        spin_lds(F_3, 2, "v10", "v12", sleep=False)
    elif cfg.kstart == 1:
        spin_lds(F_PQ, 4, "v10", "v12", sleep=False)
    else:
        pass
    stamp(2)
    a(f"s_mov_b32 {SLC}, {KB_B - (D - 4)}")
    a(f"s_mov_b32 {SOFF}, s98")
    seg4("L_ld_kB", ["v26", "v27", "v28", "v29"], 52, NK_B // 16, L_K)
    a(f"s_mov_b32 {SOFF}, s98")
    seg4("L_ld_vB", ["v30", "v30", "v31", "v31"], 56, NK_B // 16, L_V)
    stamp(3)
    sexpr(SOFF, WO_OFF)
    a(f"ds_read_b32 v12, v10 offset:{F_KC}")
    a("s_waitcnt lgkmcnt(0)")
    a("v_readfirstlane_b32 s91, v12")
    a("s_cmp_ge_i32 s91, 4")
    a("s_cbranch_scc0 L_ld_Bslow")
    seg("L_ld_woB", ["v24", "v25"], 60, 8192, 8, L_WO)
    drain(KB_B + NK_B // 2 + 16, [k for k in (48, 40, 32, 24, 16) if k < D + 12])
    stamp(4)
    a("s_branch L_ld_fin")
    a.label("L_ld_Bslow")
    drain(KB_B + NK_B // 2, [k for k in (32, 24, 16, 8) if k < D - 4] + [0])
    stamp(4)
    spin_lds(F_KC, 4, "v10", "v12")
    seg("L_ld_woB2", ["v24", "v25"], 60, 8192, 8, L_WO)
    a.label("L_ld_fin")
    a("s_waitcnt vmcnt(0)")
    lc_write(1, F_WOL)
    stamp(5)
    dump_stamps(6)
    a("s_endpgm")
    a.label("L_ld_A")
    DA = cfg.DA
    unit_voffs(pitch=6144, d0="v20", d1="v21")
    a(f"s_and_b32 s90, {S_SPL}, 3")
    a(f"s_mul_i32 {SOFF}, s90, {128*6144}")
    a(f"s_lshr_b32 s90, {S_SPL}, 2")
    a(f"s_lshl_b32 s94, {S_X}, 2")
    a("s_add_u32 s90, s90, s94")
    a("s_add_u32 s90, s90, 16")
    a("s_lshl_b32 s90, s90, 7")
    a(f"s_add_u32 {SOFF}, {SOFF}, s90")
    spin_lds(F_1, 2, "v10", "v12", sleep=False)
    seg("L_ld_mr", ["v20", "v21"], 44, 8*6144, 8, L_MR)
    a(f"s_mov_b32 {SLC}, {-(DA - 4)}")
    a(f"s_mov_b32 {SOFF}, s98")
    n0 = (DA - 4 + 3) // 4
    assert 0 < n0 < NK_A // 16
    seg4("L_ld_kA0", ["v26", "v27", "v28", "v29"], 52, n0, L_K, DA)
    lc_write(1, F_MRL)
    seg4("L_ld_kA", ["v26", "v27", "v28", "v29"], 52, NK_A // 16 - n0, None, DA)
    stamp(2)
    a(f"s_mov_b32 {SOFF}, s98")
    seg4("L_ld_vA", ["v30", "v30", "v31", "v31"], 56, NK_A // 16 - 4, L_V, DA)
    spin_lds(F_EC, 4, "v10", "v12")
    seg4("L_ld_vA2", ["v30", "v30", "v31", "v31"], 56, 4, None, DA)
    stamp(3)
    drain(NK_A // 2, [k for k in (32, 24, 16, 8) if k < DA - 4] + [0])
    stamp(4)
    spin_lds(F_KC, 4, "v10", "v12")
    sexpr(SOFF, WO_OFF)
    seg("L_ld_woA", ["v24", "v25"], 60, 8192, 8, L_WO)
    a("s_branch L_ld_fin")

    a.label("L_worker")
    a(f"s_cmp_lg_u32 {S_W}, 4")
    a("s_cbranch_scc1 L_wk2")
    a("v_mov_b32 v10, 0")
    for r in range(12, 16): a(f"v_mov_b32 v{r}, 0")
    a("v_lshlrev_b32 v1, 2, v0")
    a("v_lshlrev_b32 v2, 4, v0")
    a("ds_write_b32 v1, v10")
    a(f"ds_write_b128 v2, v[12:15] offset:{L_ZERO}")
    if cfg.probe >= 10: a(f"ds_write_b32 v10, v10 offset:{L_PRB}")
    if cfg.local == 1:
        a("v_mov_b32 v11, 1")
        a(f"ds_write_b32 v10, v11 offset:{F_LM}")
    a.label("L_wk2")
    a("s_waitcnt lgkmcnt(0)")
    srd(12, 42, W_USED)
    srd(44, 16, 2048)
    srd(48, 34, 2048)
    a(f"s_sub_u32 s97, {S_W}, 5")
    a("s_and_b32 s97, s97, 1")
    a("s_lshl_b32 s90, s97, 10")
    a(f"s_and_b32 s94, {S_SPL}, 3")
    a("s_lshl_b32 s94, s94, 8")
    a("s_add_u32 s94, s94, s90")
    a("v_lshlrev_b32 v1, 4, v0")
    a("v_lshlrev_b32 v2, 2, v0")
    a(f"s_cmp_lt_u32 {S_W}, 5")
    a("s_cbranch_scc1 L_wk2b")
    a(f"s_cmp_eq_u32 {S_W}, 7")
    a("s_cbranch_scc1 L_wk2b")
    a("buffer_load_dword v9, v2, s[48:51], s94 offen")
    a("buffer_load_dwordx4 v[4:7], v1, s[44:47], s90 offen")
    a(f"s_lshr_b32 s94, {S_SPL}, 2")
    a("s_lshl_b32 s94, s94, 8")
    a("s_add_u32 s94, s94, s90")
    a("buffer_load_dword v8, v2, s[44:47], s94 offen")
    a.label("L_wk2b")
    a("v_mov_b32 v2, 0")
    a(f"buffer_load_dword v3, v2, {WSRD}, 0 offen sc1")
    a(f"s_cmp_lg_u32 {S_W}, 7")
    a("s_cbranch_scc1 L_wk3")
    if cfg.local == 2:
        srd(60, 40, 256)
        a("s_getreg_b32 s90, hwreg(HW_REG_XCC_ID)")
        a("s_and_b32 s90, s90, 7")
        a("s_mul_i32 s90, s90, 6")
        a("s_lshl_b64 s[26:27], 1, s90")
        a(f"s_lshl_b32 s91, {S_X}, 5")
        a("s_add_u32 s91, s91, 8")
        a("v_mov_b32 v18, s91")
        a("v_mov_b32 v16, s26")
        a("v_mov_b32 v17, s27")
        a("s_mov_b64 exec, 1")
        a("buffer_atomic_add_x2 v[16:17], v18, s[60:63], 0 offen sc1")
        a("s_mov_b64 exec, -1")
    if cfg.touch:
        sexpr("s90", [(S_BT, "shl", 26), (S_X, "shl", 23), (S_SP, "shl", 16)], 28672*256)
        a("s_load_dword s78, s[18:19], s90")
        a("s_load_dword s79, s[20:21], s90")
        a(f"s_lshr_b32 s91, {S_SPL}, 2")
        a("s_lshl_b32 s91, s91, 20")
        a("s_load_dword s80, s[22:23], s91")
        sexpr("s91", [(S_X, "shl", 19), (S_KQ, "shl", 17)])
        a("s_load_dword s81, s[24:25], s91")
        a(f"s_mul_i32 s91, {S_KQ}, {128*3584}")
        a("s_load_dword s82, s[28:29], s91")
        a("s_load_dword s83, s[30:31], s91")
        a(f"s_mul_i32 s91, {S_X}, {224*1024}")
        a("s_load_dword s84, s[32:33], s91")
        a("s_load_dword s85, s[38:39], 0")
    a.label("L_wk3")
    a("s_barrier")
    a(f"s_cmp_ge_u32 {S_W}, 4")
    a("s_cbranch_scc1 L_gwave")

    a.label("L_mwave")
    srd(56, 22, 512*4096*2)
    a("v_lshrrev_b32 v1, 4, v0")
    a("v_and_b32 v2, 15, v0")
    a("v_mov_b32 v4, 1")
    a("v_lshlrev_b32 v22, 1, v1")
    a("v_xor_b32 v22, v2, v22")
    a("v_lshlrev_b32 v22, 4, v22")
    a("v_lshl_add_u32 v26, v1, 13, v22")
    a("v_xor_b32 v27, 0x80, v26")
    a(f"s_lshr_b32 s90, {S_SPL}, 2")
    a(f"s_and_b32 s91, {S_SPL}, 3")
    sexpr("s96", [("s90", "shl", 20), (S_X, "shl", 10), ("s91", "shl", 8), (S_W, "shl", 18)])
    a("v_bfe_u32 v6, v2, 2, 1")
    a(f"v_mul_u32_u24 v6, {APITCH}, v6")
    a("v_lshl_add_u32 v6, v1, 4, v6")
    a("v_bfe_u32 v16, v0, 2, 2")
    a("v_and_b32 v17, 3, v0")
    a("v_lshl_add_u32 v18, v1, 3, v16")
    a("v_lshrrev_b32 v19, 1, v17")
    a("v_and_b32 v20, 1, v17")
    a("v_and_b32 v21, 1, v1")
    a("v_lshrrev_b32 v22, 1, v16")
    a("v_lshl_or_b32 v22, v21, 1, v22")
    a("v_lshlrev_b32 v22, 1, v22")
    a(f"s_lshl_b32 s90, {S_W}, 1")
    a("v_add_u32 v23, s90, v19")
    a("v_xor_b32 v23, v23, v22")
    a("v_lshlrev_b32 v7, 7, v18")
    a("v_lshl_add_u32 v7, v23, 4, v7")
    a("v_lshl_add_u32 v7, v20, 3, v7")
    a(f"s_and_b32 s90, {S_W}, 1")
    a("s_lshl_b32 s90, s90, 1")
    a("v_add_u32 v23, s90, v19")
    a("v_lshlrev_b32 v22, 1, v21")
    a("v_xor_b32 v23, v23, v22")
    a("v_lshlrev_b32 v12, 6, v18")
    a("v_lshl_add_u32 v12, v23, 4, v12")
    a("v_lshl_add_u32 v12, v20, 3, v12")
    a("v_lshl_or_b32 v22, v21, 2, v16")
    a("v_lshlrev_b32 v22, 1, v22")
    a(f"s_lshl_b32 s90, {S_W}, 2")
    a("v_add_u32 v23, s90, v19")
    a("v_xor_b32 v24, v23, v22")
    a("v_lshlrev_b32 v25, 8, v18")
    a("v_lshl_add_u32 v25, v20, 3, v25")
    a("v_lshl_add_u32 v13, v24, 4, v25")
    a("v_add_u32 v23, 2, v23")
    a("v_xor_b32 v24, v23, v22")
    a("v_lshl_add_u32 v14, v24, 4, v25")
    a("v_bfe_u32 v8, v0, 4, 1")
    a("v_lshlrev_b32 v9, 3, v2")
    O_MOD, O_Q, O_O, O_A4, O_GU, O_DN, O_ST, T_K, T_V = "s16", "s17", "s18", "s19", "s20", "s21", "s24", "s25", "s26"
    a(f"s_mul_i32 {T_K}, {S_B}, {KB_B + NK_B // 4 - NK_A // 4}")
    a(f"s_add_u32 {T_K}, {T_K}, {NK_A // 4}")
    a(f"s_mul_i32 {T_V}, {S_B}, {KB_B + NK_B // 2 - NK_A // 2}")
    a(f"s_add_u32 {T_V}, {T_V}, {NK_A // 2}")
    sexpr(O_O, [(S_X, "shl", 16), (S_BT, "shl", 13), (S_SP, "shl", 9), (S_W, "shl", 7)], W_O)
    sexpr(O_A4, [(S_CB, "shl", 14), (S_W, "shl", 12), (S_X, "shl", 8), (S_KQ, "shl", 6)], W_A4)
    a(f"s_add_u32 {O_DN}, {O_A4}, {W_DN - W_A4}")
    a(f"s_lshr_b32 s90, {S_W}, 1")
    a(f"s_and_b32 s91, {S_W}, 1")
    sexpr(O_GU, [(S_X, "shl", 15), ("s90", "shl", 14), (S_KQ, "shl", 11), (S_CB, "shl", 8), ("s91", "shl", 7)], W_GU)
    sexpr(O_ST, [(S_X, "shl", 11), (S_BT, "shl", 10), (S_SP, "shl", 4)], W_ST)
    a(f"s_and_b32 s90, {S_SPL}, 3")
    a(f"s_lshr_b32 s91, {S_SPL}, 2")
    sexpr(O_Q, [(S_X, "shl", 15), ("s90", "shl", 12), ("s91", "shl", 10), (S_W, "shl", 8)], W_Q)
    a(f"s_cmp_eq_u32 {S_B}, 0")
    a("s_cbranch_scc1 L_m_offA")
    a(f"s_lshr_b32 s90, {S_X}, 2")
    a(f"s_and_b32 s91, {S_X}, 3")
    a(f"s_lshr_b32 s97, {S_SPL}, 2")
    a(f"s_and_b32 s98, {S_SPL}, 3")
    a(f"s_and_b32 s99, {S_W}, 1")
    sexpr(O_MOD, [("s90", "shl", 15), ("s91", "shl", 12), ("s98", "shl", 10), ("s97", "shl", 8), ("s99", "shl", 7)], W_MOD)
    a("s_branch L_m_offE")
    a.label("L_m_offA")
    a(f"s_lshr_b32 s90, {S_X}, 1")
    a(f"s_and_b32 s91, {S_X}, 1")
    a("s_lshl_b32 s91, s91, 2")
    a(f"s_lshr_b32 s97, {S_SPL}, 2")
    a("s_add_u32 s91, s91, s97")
    a("s_lshr_b32 s97, s91, 1")
    a("s_and_b32 s91, s91, 1")
    a(f"s_and_b32 s98, {S_SPL}, 3")
    sexpr(O_MOD, [("s90", "shl", 15), ("s97", "shl", 12), ("s98", "shl", 10), ("s91", "shl", 9), (S_W, "shl", 7)], W_MOD + 2*32768)
    a.label("L_m_offE")
    a("s_waitcnt vmcnt(0)")
    get_tag()
    a("v_mov_b32 v3, 0")
    stamp(1)

    def loadB(vaddr, nk, kstride, hoff, base=16):
        for t in range(nk):
            a(f"ds_read_b64_tr_b16 v[{base+4*t}:{base+4*t+1}], {vaddr} offset:{t*kstride}")
            a(f"ds_read_b64_tr_b16 v[{base+4*t+2}:{base+4*t+3}], {vaddr} offset:{t*kstride+hoff}")

    def gemv(act_off, nk, bbase=16, second=None):
        for t in range(nk):
            a(f"ds_read_b128 v[{32+4*t}:{35+4*t}], v6 offset:{act_off+64*t}")
        for t in range(nk):
            a(f"s_waitcnt lgkmcnt({nk-1-t})")
            c = "0" if t == 0 else "v[48:51]"
            a(f"v_mfma_f32_16x16x32_bf16 v[48:51], v[{32+4*t}:{35+4*t}], v[{bbase+4*t}:{bbase+4*t+3}], {c}")
            if second is not None:
                c = "0" if t == 0 else "v[56:59]"
                a(f"v_mfma_f32_16x16x32_bf16 v[56:59], v[{32+4*t}:{35+4*t}], v[{second+4*t}:{second+4*t+3}], {c}")

    def publish(shift, soff, local=False, second=False):
        a(f"v_lshl_add_u32 v54, v8, {shift}, v9")
        a(f"v_mov_b32 v53, {S_TAG}")
        if second: a(f"v_mov_b32 v61, {S_TAG}")
        a("v_mov_b32 v52, v48")
        if second: a("v_mov_b32 v60, v56")
        a("s_mov_b32 exec_hi, 0")
        t1 = f"buffer_store_dwordx2 v[52:53], v54, {WSRD}, {soff} offen"
        t2 = f"buffer_store_dwordx2 v[60:61], v54, {WSRD}, {soff} offen offset:128"
        if local:
            store_loc(t1)
            if second: store_loc(t2)
        else:
            a(t1 + " sc1")
            if second: a(t2 + " sc1")
        a("s_mov_b32 exec_hi, -1")

    def publish_pair(soff):
        a("v_lshlrev_b32 v54, 11, v8")
        a("v_lshl_add_u32 v54, v2, 2, v54")
        a(f"v_mov_b32 v53, {S_TAG}")
        a("v_mov_b32_dpp v52, v48 quad_perm:[1,0,3,2] row_mask:0xf bank_mask:0xf")
        a("s_mov_b32 exec_lo, 0x55555555")
        a("s_mov_b32 exec_hi, 0")
        a("v_cvt_pk_bf16_f32 v52, v48, v52")
        a(f"buffer_store_dwordx2 v[52:53], v54, {WSRD}, {soff} offen sc1")
        a("s_mov_b64 exec, -1")

    a(f"s_cmp_lg_u32 {S_B}, 0")
    a("s_cbranch_scc1 L_m_B")
    spin_lds(F_1, 2, "v3", "v5")
    spin_lds(F_MRL, 1, "v3", "v5")
    a(f"v_add_u32 v10, {L_MR}, v7")
    loadB("v10", 4, 4096, 512)
    gemv(L_ACT1, 4)
    arrive(F_EC, "v3", "v4")
    publish(14, O_MOD)
    a("s_branch L_m_s3")
    a.label("L_m_B")
    a(f"s_lshl_b32 s90, {S_W}, 13")
    a(f"s_add_u32 m0, s90, {L_WQ}")
    a(f"s_cmp_lt_u32 {S_W}, 2")
    a("s_cbranch_scc1 L_m_s1")
    def wq_issue():
        for i in range(8):
            a(f"buffer_load_dwordx4 {'v26' if (i & 2) == 0 else 'v27'}, s[56:59], s96 offen nt lds")
            if i < 7:
                a(f"s_add_u32 s96, s96, {4*8192}")
                a("s_add_u32 m0, m0, 0x400")
    wq_issue()
    a("s_branch L_m_s2")
    a.label("L_m_s1")
    wq_issue()
    spin_lds(F_1, 2, "v3", "v5", sleep=False)
    spin_lds(F_LC, KB_B, "v3", "v5", sleep=False)
    a(f"v_add_u32 v10, {L_MODB}, v12")
    loadB("v10", 4, 2048, 256)
    gemv(L_ACT1, 4)
    publish(14, O_MOD)
    arrive(F_PM, "v3", "v4")
    stamp(2)
    a.label("L_m_s2")
    a("s_waitcnt vmcnt(0)")
    arrive(F_WQ, "v3", "v4")
    spin_lds(F_WQ, 4, "v3", "v5", sleep=False)
    a(f"v_add_u32 v10, {L_WQ}, v13")
    a(f"v_add_u32 v11, {L_WQ}, v14")
    loadB("v10", 4, 8192, 1024, base=16)
    loadB("v11", 4, 8192, 1024, base=64)
    get_mode("v3", "v5")
    a("s_waitcnt lgkmcnt(0)")
    arrive(F_EC, "v3", "v4")
    spin_lds(F_2, 2, "v3", "v5", sleep=False)
    gemv(L_ACT2, 4, bbase=16, second=64)
    publish(14, O_Q, local=True, second=True)
    arrive(F_PQ, "v3", "v4")
    stamp(3)
    mark(10, "v3")
    a.label("L_m_s3")
    get_mode("v3", "v5")
    T_ST, T_N = "s27", "s28"
    a(f"s_sub_u32 s90, 4, {S_B}")
    a(f"s_mul_i32 {T_ST}, {S_W}, s90")
    a(f"s_min_u32 s91, {S_W}, 2")
    a(f"s_add_u32 {T_ST}, {T_ST}, s91")
    a(f"s_cmp_lt_u32 {S_W}, 2")
    a(f"s_addc_u32 {T_N}, s90, 0")
    a("s_mov_b64 s[30:31], -1")
    a(f"s_cmp_eq_u32 {T_N}, 3")
    a("s_cselect_b32 s31, 0xffff, s31")
    a("s_mov_b32 s33, 0")
    a(f"s_cmp_eq_u32 {T_N}, 5")
    a("s_cselect_b32 s32, 0xffff, 0")
    a("v_xor_b32 v10, v1, v2")
    a("v_lshlrev_b32 v10, 4, v10")
    a("v_lshl_add_u32 v10, v2, 8, v10")
    a(f"s_lshl_b32 s90, {T_ST}, 12")
    a(f"s_add_u32 s90, s90, {L_K}")
    a("v_add_u32 v56, s90, v10")
    a("v_xor_b32 v57, 64, v56")
    a("v_xor_b32 v58, 0x80, v56")
    a("v_xor_b32 v59, 0xc0, v56")
    a("v_and_b32 v10, 3, v2")
    a(f"v_mul_u32_u24 v10, {APITCH}, v10")
    a("v_lshl_add_u32 v10, v1, 4, v10")
    a(f"v_add_u32 v10, {L_Q}, v10")
    a("v_lshlrev_b32 v11, 4, v1")
    a(f"v_add_u32 v11, {L_ZERO}, v11")
    a("v_lshrrev_b32 v15, 2, v2")
    for tt in range(4):
        a(f"v_cmp_eq_u32 vcc, {tt}, v15")
        a(f"v_cndmask_b32 v{60+tt}, v11, v10, vcc")
    for r in range(4): a(f"v_mov_b32 v{52+r}, 0")
    NEG = "s29"
    a(f"s_mov_b32 {NEG}, 0xff800000")
    spin_lds(F_3, 2, "v3", "v5")
    spin_lds(F_LC, T_K, "v3", "v5", sleep=False)
    stamp(4)
    mark(11, "v3")
    def qk_reads(tt, base, slot=None):
        slot = tt if slot is None else slot
        for t in range(4):
            a(f"ds_read_b128 v[{base+4*t}:{base+4*t+3}], v{60+slot} offset:{64*t}")
            a(f"ds_read_b128 v[{base+16+4*t}:{base+16+4*t+3}], v{56+t} offset:{4096*tt}")
    def qk_mfma(b, acc, first):
        for t in range(4):
            c = "0" if (first and t == 0) else acc
            a(f"v_mfma_f32_16x16x32_bf16 {acc}, v[{b+4*t}:{b+4*t+3}], v[{b+16+4*t}:{b+16+4*t+3}], {c}")
    qk_reads(0, 16)
    qk_reads(1, 68)
    a("s_waitcnt lgkmcnt(8)")
    qk_mfma(16, "v[48:51]", True)
    qk_reads(2, 16)
    a("s_waitcnt lgkmcnt(8)")
    qk_mfma(68, "v[48:51]", False)
    a(f"s_cmp_eq_u32 {T_N}, 3")
    a("s_cbranch_scc1 L_qk_n3")
    qk_reads(3, 68)
    a("s_waitcnt lgkmcnt(8)")
    qk_mfma(16, "v[48:51]", False)
    a(f"s_cmp_eq_u32 {T_N}, 5")
    a("s_cbranch_scc1 L_qk_n5")
    a("s_waitcnt lgkmcnt(0)")
    qk_mfma(68, "v[48:51]", False)
    a("s_branch L_qk_done")
    a.label("L_qk_n5")
    qk_reads(4, 16, slot=0)
    a("s_waitcnt lgkmcnt(8)")
    qk_mfma(68, "v[48:51]", False)
    a("s_waitcnt lgkmcnt(0)")
    qk_mfma(16, "v[52:55]", True)
    a("s_branch L_qk_done")
    a.label("L_qk_n3")
    a("s_waitcnt lgkmcnt(0)")
    qk_mfma(16, "v[48:51]", False)
    a.label("L_qk_done")
    arrive(F_KC, "v3", "v4")
    a("s_nop 7")
    a(f"s_mov_b32 s94, {SCALE:#x}")
    for (d, sr) in ((16, 48), (20, 52)):
        bf16r2(f"v{d}", f"v{d+1}", f"v{sr}", f"v{sr+1}", "v32")
        bf16r2(f"v{d+2}", f"v{d+3}", f"v{sr+2}", f"v{sr+3}", "v33")
    for r in range(8): a(f"v_mul_f32 v{16+r}, s94, v{16+r}")
    for d in (16, 20):
        bf16r2(f"v{d}", f"v{d+1}", f"v{d}", f"v{d+1}", "v32")
        bf16r2(f"v{d+2}", f"v{d+3}", f"v{d+2}", f"v{d+3}", "v33")
    a(f"v_mov_b32 v34, {NEG}")
    for r in range(4): a(f"v_cndmask_b32 v{16+r}, v34, v{16+r}, s[30:31]")
    for r in range(4): a(f"v_cndmask_b32 v{20+r}, v34, v{20+r}, s[32:33]")
    for r in range(4): a(f"v_max_f32 v{24+r}, v{16+r}, v{20+r}")
    allreduce(["v24", "v25", "v26", "v27"], "v_max_f32", ["v28", "v29", "v30", "v31"], FULL)
    a(f"s_lshl_b32 s90, {S_W}, 4")
    a("v_mov_b32 v10, s90")
    a("s_mov_b64 s[92:93], exec")
    a("s_mov_b64 exec, 1")
    a(f"ds_write_b128 v10, v[24:27] offset:{L_MX}")
    a(f"ds_add_u32 v3, v4 offset:{F_MB1}")
    a("s_mov_b64 exec, s[92:93]")
    spin_lds(F_MB1, 4, "v3", "v5", sleep=False)
    for w in range(4):
        a(f"ds_read_b128 v[{32+4*w}:{35+4*w}], v3 offset:{L_MX+16*w}")
    a("s_waitcnt lgkmcnt(0)")
    for r in range(4):
        a(f"v_max_f32 v{24+r}, v{32+r}, v{36+r}")
        a(f"v_max_f32 v{28+r}, v{40+r}, v{44+r}")
    for r in range(4):
        a(f"v_max_f32 v{24+r}, v{24+r}, v{28+r}")
    a(f"s_mov_b32 s94, {LOG2E:#x}")
    for r in range(8): a(f"v_sub_f32 v{16+r}, v{16+r}, v{24+(r&3)}")
    for r in range(8): a(f"v_mul_f32 v{16+r}, s94, v{16+r}")
    for r in range(8): a(f"v_exp_f32 v{16+r}, v{16+r}")
    a("v_cvt_pk_bf16_f32 v28, v16, v17")
    a("v_cvt_pk_bf16_f32 v29, v18, v19")
    a("v_cvt_pk_bf16_f32 v30, v20, v21")
    a("v_cvt_pk_bf16_f32 v31, v22, v23")
    a(f"s_lshl_b32 s90, {T_ST}, 5")
    a(f"s_add_u32 s90, s90, {L_P}")
    a("v_lshl_add_u32 v10, v0, 1, s90")
    a("s_mov_b64 exec, s[30:31]")
    a("ds_write_b16 v10, v28")
    a(f"ds_write_b16_d16_hi v10, v28 offset:{PPITCH}")
    a(f"ds_write_b16 v10, v29 offset:{2*PPITCH}")
    a(f"ds_write_b16_d16_hi v10, v29 offset:{3*PPITCH}")
    a(f"s_cmp_lg_u32 {T_N}, 5")
    a("s_cbranch_scc1 L_p_w1")
    a("s_mov_b64 exec, s[32:33]")
    a("ds_write_b16 v10, v30 offset:128")
    a(f"ds_write_b16_d16_hi v10, v30 offset:{PPITCH+128}")
    a(f"ds_write_b16 v10, v31 offset:{2*PPITCH+128}")
    a(f"ds_write_b16_d16_hi v10, v31 offset:{3*PPITCH+128}")
    a.label("L_p_w1")
    a("s_mov_b64 exec, -1")
    for r in range(4): a(f"v_add_f32 v{16+r}, v{16+r}, v{20+r}")
    allreduce(["v16", "v17", "v18", "v19"], "v_add_f32", ["v28", "v29", "v30", "v31"], FULL)
    a(f"s_lshl_b32 s90, {S_W}, 4")
    a("v_mov_b32 v10, s90")
    a("s_mov_b64 s[92:93], exec")
    a("s_mov_b64 exec, 1")
    a(f"ds_write_b128 v10, v[16:19] offset:{L_LS}")
    a(f"ds_add_u32 v3, v4 offset:{F_MB2}")
    a("s_mov_b64 exec, s[92:93]")
    spin_lds(F_MB2, 4, "v3", "v5", sleep=False)
    a(f"s_cmp_lg_u32 {S_W}, 0")
    a("s_cbranch_scc1 L_m_pv")
    a("v_lshlrev_b32 v10, 2, v0")
    a("s_mov_b64 exec, 15")
    for w in range(4):
        a(f"ds_read_b32 v{16+w}, v10 offset:{L_LS+16*w}")
        a(f"ds_read_b32 v{20+w}, v10 offset:{L_MX+16*w}")
    a("s_waitcnt lgkmcnt(0)")
    a("v_add_f32 v16, v16, v17")
    a("v_add_f32 v18, v18, v19")
    a("v_max_f32 v20, v20, v21")
    a("v_max_f32 v22, v22, v23")
    a("v_add_f32 v26, v16, v18")
    a("v_max_f32 v24, v20, v22")
    a(f"v_mov_b32 v25, {S_TAG}")
    a(f"v_mov_b32 v27, {S_TAG}")
    a("v_lshlrev_b32 v10, 8, v0")
    store_loc(f"buffer_store_dwordx4 v[24:27], v10, {WSRD}, {O_ST} offen")
    a("s_mov_b64 exec, -1")
    a.label("L_m_pv")
    stamp(5)
    a("v_lshrrev_b32 v10, 2, v2")
    a(f"v_mul_u32_u24 v10, {PPITCH}, v10")
    a("v_lshl_add_u32 v10, v1, 4, v10")
    a(f"v_add_u32 v60, {L_P}, v10")
    a(f"v_add_u32 v61, {L_V}, v13")
    a(f"v_add_u32 v62, {L_V}, v14")
    a("v_lshl_add_u32 v63, v1, 14, v9")
    a(f"v_mov_b32 v65, {S_TAG}")
    for r in range(8): a(f"v_mov_b32 v{48+r}, 0")
    a(f"s_add_u32 s95, {T_K}, 8")
    a("s_mov_b32 s96, -1000")
    a.label("L_pv_loop")
    a("s_cmp_ge_i32 s96, s95")
    a("s_cbranch_scc1 L_pv_go")
    a.label("L_pv_spin")
    a(f"ds_read_b32 v5, v3 offset:{F_LC}")
    a("s_waitcnt lgkmcnt(0)")
    a("v_readfirstlane_b32 s96, v5")
    a("s_cmp_ge_i32 s96, s95")
    a("s_cbranch_scc1 L_pv_go")
    timeout()
    a("s_branch L_pv_spin")
    a.label("L_pv_go")
    a("ds_read_b128 v[16:19], v60")
    a("ds_read_b64_tr_b16 v[20:21], v61")
    a("ds_read_b64_tr_b16 v[22:23], v61 offset:1024")
    a("ds_read_b64_tr_b16 v[24:25], v62")
    a("ds_read_b64_tr_b16 v[26:27], v62 offset:1024")
    a("v_add_u32 v60, 64, v60")
    a("v_add_u32 v61, 0x2000, v61")
    a("v_add_u32 v62, 0x2000, v62")
    a("s_add_u32 s95, s95, 8")
    a("s_waitcnt lgkmcnt(2)")
    a("v_mfma_f32_16x16x32_bf16 v[48:51], v[16:19], v[20:23], v[48:51]")
    a("s_waitcnt lgkmcnt(0)")
    a("v_mfma_f32_16x16x32_bf16 v[52:55], v[16:19], v[24:27], v[52:55]")
    a(f"s_cmp_le_i32 s95, {T_V}")
    a("s_cbranch_scc1 L_pv_loop")
    stamp(6)
    a("s_nop 4")
    a("v_cvt_pk_bf16_f32 v64, v48, v52")
    store_loc(f"buffer_store_dwordx2 v[64:65], v63, {WSRD}, {O_O} offen")
    arrive(F_PO, "v3", "v4")
    stamp(7)
    mark(12, "v3")
    spin_lds(F_WOL, 1, "v3", "v5", sleep=False)
    a(f"v_add_u32 v10, {L_WO}, v7")
    loadB("v10", 4, 4096, 512)
    a("s_waitcnt lgkmcnt(0)")
    a("s_barrier")
    gemv(L_ACT4, 4)
    publish_pair(O_A4)
    arrive(F_PA, "v3", "v4")
    stamp(8)
    mark(13, "v3")
    spin_lds(F_LATE, 1, "v3", "v5")
    a(f"v_add_u32 v10, {L_DN}, v7")
    loadB("v10", 2, 4096, 512, base=64)
    a(f"s_lshr_b32 s90, {S_W}, 1")
    a("s_lshl_b32 s90, s90, 13")
    a(f"s_add_u32 s90, s90, {L_G}")
    a("v_add_u32 v11, s90, v12")
    loadB("v11", 4, 2048, 256)
    a("s_waitcnt lgkmcnt(0)")
    a("s_barrier")
    a(f"s_cmp_eq_u32 {S_CB}, 7")
    a("s_cbranch_scc1 L_m_s7")
    gemv(L_ACT6, 4)
    publish(13, O_GU, local=True)
    a.label("L_m_s7")
    arrive(F_PG, "v3", "v4")
    stamp(9)
    a("s_barrier")
    gemv(L_ACT7, 2, bbase=64)
    publish_pair(O_DN)
    arrive(F_PD, "v3", "v4")
    stamp(10)
    mark(15, "v3")
    dump_stamps(11)
    a("s_endpgm")

    a.label("L_gwave")
    a(f"s_cmp_eq_u32 {S_W}, 4")
    a("s_cbranch_scc1 L_slice")
    a(f"s_cmp_eq_u32 {S_W}, 7")
    a("s_cbranch_scc1 L_aux")

    SB = "s97"
    a("v_lshlrev_b32 v2, 2, v0")
    a("v_mov_b32 v10, 1")
    a(f"s_mul_i32 s98, {SB}, {APITCH}")
    a("v_add_u32 v11, s98, v2")
    a("v_mov_b32 v19, 0")
    a("s_waitcnt vmcnt(0)")
    stamp(1)
    a("v_lshlrev_b32 v12, 16, v9")
    a("v_and_b32 v13, 0xffff0000, v9")
    a(f"s_mov_b32 s94, {LOG2E:#x}")
    for r in (12, 13): a(f"v_mul_f32 v{r+2}, s94, v{r}")
    for r in (12, 13): a(f"v_exp_f32 v{r+2}, -v{r+2}")
    for r in (12, 13): a(f"v_add_f32 v{r+2}, 1.0, v{r+2}")
    for r in (12, 13): a(f"v_rcp_f32 v{r+2}, v{r+2}")
    for r in (12, 13): a(f"v_mul_f32 v{r}, v{r}, v{r+2}")
    a("v_cvt_pk_bf16_f32 v12, v12, v13")
    a(f"ds_write_b32 v11, v12 offset:{L_ACT1}")
    arrive(F_1, "v19", "v10")
    get_tag()
    a("v_mov_b32 v3, 0")

    def ln_finish(mean, var, x0, x1, tmp):
        bf16r2(mean, var, mean, var, tmp)
        a(f"s_mov_b32 s94, {EPS:#x}")
        a(f"v_add_f32 {var}, s94, {var}")
        bf16r1(var, var)
        a(f"v_sqrt_f32 {var}, {var}")
        a(f"v_sub_f32 {x0}, {x0}, {mean}")
        a(f"v_sub_f32 {x1}, {x1}, {mean}")
        bf16r1(var, var)
        a(f"v_rcp_f32 {var}, {var}")
        bf16r2(x0, x1, x0, x1, tmp)
        a(f"v_mul_f32 {x0}, {x0}, {var}")
        a(f"v_mul_f32 {x1}, {x1}, {var}")
        bf16r2(x0, x1, x0, x1, tmp)

    def quarter_gather(chunkA, chunkB, qreg, pre=None, sample=False):
        for (ch, sreg) in ((chunkA, "s90"), (chunkB, "s99")):
            sexpr(sreg, [(SB, "shl", 14), (qreg, "shl", 12)], W_MOD + ch*32768)
        loads = []; tags = []
        for i in range(4):
            loads.append(f"buffer_load_dwordx4 v[{16+4*i}:{19+4*i}], v1, {WSRD}, s90 offen offset:{1024*i} sc1")
            loads.append(f"buffer_load_dwordx4 v[{32+4*i}:{35+4*i}], v1, {WSRD}, s99 offen offset:{1024*i} sc1")
            tags += [f"v{17+4*i}", f"v{19+4*i}", f"v{33+4*i}", f"v{35+4*i}"]
        if pre: pre()
        poll(loads, tags, "v50", sample=sample)
        for (base, d0, d1) in ((16, "v14", "v15"), (32, "v48", "v49")):
            a(f"v_add_f32 {d0}, v{base}, v{base+4}")
            a(f"v_add_f32 {d1}, v{base+2}, v{base+6}")
            a(f"v_add_f32 v50, v{base+8}, v{base+12}")
            a(f"v_add_f32 v51, v{base+10}, v{base+14}")
            a(f"v_add_f32 {d0}, {d0}, v50")
            a(f"v_add_f32 {d1}, {d1}, v51")
            bf16r2(d0, d1, d0, d1, "v50")

    def modulate(x0, x1, sc0, sc1, sh0, sh1, dst, tmp):
        a(f"v_mul_f32 {x0}, {x0}, {sc0}")
        a(f"v_mul_f32 {x1}, {x1}, {sc1}")
        bf16r2(x0, x1, x0, x1, tmp)
        a(f"v_add_f32 {x0}, {x0}, {sh0}")
        a(f"v_add_f32 {x1}, {x1}, {sh1}")
        a(f"v_cvt_pk_bf16_f32 {dst}, {x0}, {x1}")

    a(f"s_cmp_eq_u32 {S_B}, 0")
    a("s_cbranch_scc1 L_q_qg")
    for i in range(4):
        a(f"v_lshlrev_b32 v{16+2*i}, 16, v{4+i}")
        a(f"v_and_b32 v{17+2*i}, 0xffff0000, v{4+i}")
    a("v_add_f32 v24, v16, v17")
    a("v_add_f32 v25, v18, v19")
    a("v_add_f32 v26, v20, v21")
    a("v_add_f32 v27, v22, v23")
    a("v_add_f32 v24, v24, v25")
    a("v_add_f32 v26, v26, v27")
    a("v_add_f32 v24, v24, v26")
    allreduce(["v24"], "v_add_f32", ["v28"], FULL)
    a(f"s_mov_b32 s94, {INV512:#x}")
    a("v_mul_f32 v24, s94, v24")
    for i in range(8): a(f"v_sub_f32 v{16+i}, v{16+i}, v24")
    a("v_mul_f32 v25, v16, v16")
    for i in range(1, 8): a(f"v_fmac_f32 v25, v{16+i}, v{16+i}")
    allreduce(["v25"], "v_add_f32", ["v28"], FULL)
    a("v_mul_f32 v25, s94, v25")
    a("v_lshlrev_b32 v12, 16, v8")
    a("v_and_b32 v13, 0xffff0000, v8")
    ln_finish("v24", "v25", "v12", "v13", "v28")
    a(f"s_lshr_b32 s100, {S_SPL}, 2")
    quarter_gather(0, 1, "s100", pre=lambda: after_own(F_PM, 2, "v3", "v50", cfg.d_h))
    a("v_add_f32 v48, 1.0, v48")
    a("v_add_f32 v49, 1.0, v49")
    bf16r2("v48", "v49", "v48", "v49", "v50")
    modulate("v12", "v13", "v48", "v49", "v14", "v15", "v16", "v50")
    a(f"ds_write_b32 v11, v16 offset:{L_ACT2}")
    arrive(F_2, "v3", "v10")
    stamp(2)
    a.label("L_q_qg")
    sexpr("s90", [(S_X, "shl", 15), (S_BT, "shl", 14), (SB, "shl", 13)], W_Q)
    a("s_add_u32 s99, s90, 4096")
    a(f"s_mul_i32 s100, {SB}, {2*APITCH}")
    a("v_add_u32 v54, s100, v2")
    loads = []; tags = []
    for i in range(4):
        loads.append(f"buffer_load_dwordx4 v[{16+4*i}:{19+4*i}], v1, {WSRD}, s90 offen offset:{1024*i} sc1")
        loads.append(f"buffer_load_dwordx4 v[{32+4*i}:{35+4*i}], v1, {WSRD}, s99 offen offset:{1024*i} sc1")
        tags += [f"v{17+4*i}", f"v{19+4*i}", f"v{33+4*i}", f"v{35+4*i}"]
    a(f"s_cmp_eq_u32 {S_B}, 0")
    a("s_cbranch_scc1 L_q_qA")
    after_own(F_PQ, 4, "v3", "v50", cfg.d_q)
    poll(loads, tags, "v50")
    a("s_branch L_q_qE")
    a.label("L_q_qA")
    if cfg.quiet: spin_lds(F_LC, cfg.quiet, "v3", "v50")
    poll(loads, tags, "v50", sample=(not cfg.quiet), sleep=cfg.qsl)
    a.label("L_q_qE")
    for (base, hh) in ((16, 0), (32, 1)):
        a(f"v_add_f32 v48, v{base}, v{base+4}")
        a(f"v_add_f32 v49, v{base+2}, v{base+6}")
        a(f"v_add_f32 v50, v{base+8}, v{base+12}")
        a(f"v_add_f32 v51, v{base+10}, v{base+14}")
        a("v_add_f32 v48, v48, v50")
        a("v_add_f32 v49, v49, v51")
        a(f"v_cvt_pk_bf16_f32 v{52+hh}, v48, v49")
    a(f"ds_write_b32 v54, v52 offset:{L_Q}")
    a(f"ds_write_b32 v54, v53 offset:{L_Q+APITCH}")
    arrive(F_3, "v3", "v10")
    stamp(3)
    sexpr("s90", [(SB, "shl", 11), (S_KQ, "shl", 9)], W_MODF + 3*4096)
    a("s_add_u32 s99, s90, 4096")
    a("v_lshlrev_b32 v54, 3, v0")
    poll([f"buffer_load_dwordx2 v[16:17], v54, {WSRD}, s90 offen sc1",
          f"buffer_load_dwordx2 v[18:19], v54, {WSRD}, s99 offen sc1"], ["v17", "v19"], "v50", sleep=8)
    a("v_lshlrev_b32 v66, 16, v16")
    a("v_and_b32 v67, 0xffff0000, v16")
    a("v_lshlrev_b32 v48, 16, v18")
    a("v_and_b32 v49, 0xffff0000, v18")
    a("v_add_f32 v48, 1.0, v48")
    a("v_add_f32 v49, 1.0, v49")
    bf16r2("v64", "v65", "v48", "v49", "v50")
    sexpr("s90", [(S_X, "shl", 16), (S_KQ, "shl", 14), (SB, "shl", 13)], W_O)
    a("s_add_u32 s99, s90, 4096")
    sexpr("s100", [(S_X, "shl", 11), (SB, "shl", 10), (S_KQ, "shl", 8)], W_ST)
    a("v_lshlrev_b32 v54, 3, v0")
    a("v_and_b32 v55, 15, v0")
    a("v_lshlrev_b32 v55, 4, v55")
    loads = [f"buffer_load_dwordx4 v[48:51], v55, {WSRD}, s100 offen sc1"]; tags = ["v49", "v51"]
    for i in range(16):
        sr = "s90" if i < 8 else "s99"
        loads.append(f"buffer_load_dwordx2 v[{16+2*i}:{17+2*i}], v54, {WSRD}, {sr} offen offset:{512*(i&7)} sc1")
        tags.append(f"v{17+2*i}")
    a("v_lshrrev_b32 v56, 4, v0")
    a("v_lshlrev_b32 v56, 6, v56")
    a("v_and_b32 v57, 15, v0")
    a("v_lshl_add_u32 v56, v57, 1, v56")
    a("v_add_u32 v56, s98, v56")
    after_own(F_PO, 4, "v3", "v52", cfg.d_r1)
    stamp(4)
    a(f"s_cmp_eq_u32 {S_B}, 0")
    a("s_cbranch_scc1 L_q_r1A")
    poll(loads, tags, "v52")
    a("s_branch L_q_r1E")
    a.label("L_q_r1A")
    poll(loads, tags, "v52", sample=True, sleep=1)
    a.label("L_q_r1E")
    stamp(10)
    a("v_mov_b32 v58, v48")
    allreduce(["v58"], "v_max_f32", [], ["x1", "x2", "x4", "x8"])
    a(f"s_mov_b32 s94, {LOG2E:#x}")
    a("v_sub_f32 v59, v48, v58")
    a("v_mul_f32 v59, s94, v59")
    a("v_exp_f32 v59, v59")
    a("s_nop 0")
    a("v_mul_f32 v60, v59, v50")
    allreduce(["v60"], "v_add_f32", [], ["x1", "x2", "x4", "x8"])
    a("v_rcp_f32 v60, v60")
    a("s_nop 0")
    a("v_mul_f32 v59, v59, v60")
    for i in range(16): a(f"v_readlane_b32 s{16+i}, v59, {i}")
    for i in range(16):
        a(f"v_lshlrev_b32 v{60 + (i&1)*2}, 16, v{16+2*i}")
        a(f"v_and_b32 v{61 + (i&1)*2}, 0xffff0000, v{16+2*i}")
        if i < 2:
            a(f"v_mul_f32 v{52+2*i - (0 if i == 0 else 0)}, s{16+i}, v{60 + (i&1)*2}") if False else None
        if i == 0:
            a("v_mul_f32 v52, s16, v60"); a("v_mul_f32 v53, s16, v61")
        elif i == 1:
            a("v_mul_f32 v48, s17, v62"); a("v_mul_f32 v49, s17, v63")
        elif i & 1 == 0:
            a(f"v_fmac_f32 v52, s{16+i}, v60"); a(f"v_fmac_f32 v53, s{16+i}, v61")
        else:
            a(f"v_fmac_f32 v48, s{16+i}, v62"); a(f"v_fmac_f32 v49, s{16+i}, v63")
    a("v_add_f32 v52, v52, v48")
    a("v_add_f32 v53, v53, v49")
    a("v_cvt_pk_bf16_f32 v52, v52, v53")
    a(f"ds_write_b16 v56, v52 offset:{L_ACT4}")
    a(f"ds_write_b16_d16_hi v56, v52 offset:{L_ACT4+32}")
    a("s_waitcnt lgkmcnt(0)")
    stamp(5)
    a("s_barrier")
    sexpr("s99", [(S_X, "shl", 10), (SB, "shl", 9)], W_X1S)
    sexpr("s90", [(S_X, "shl", 12), (SB, "shl", 11), (S_KQ, "shl", 9)], W_X1P)
    a("v_lshlrev_b32 v16, 3, v0")
    a("v_and_b32 v17, 31, v0")
    a("v_lshlrev_b32 v17, 4, v17")
    after_own(F_PX, 1, "v3", "v50", cfg.d_x1)
    stamp(8)
    poll([f"buffer_load_dwordx4 v[24:27], v17, {WSRD}, s99 offen sc1",
          f"buffer_load_dwordx2 v[20:21], v16, {WSRD}, s90 offen sc1"], ["v21", "v25", "v27"], "v50")
    stamp(9)
    allreduce(["v24", "v26"], "v_add_f32", ["v28", "v29"], ["x1", "x2", "x4", "x8", "x16"])
    a(f"s_mov_b32 s94, {INV512:#x}")
    a("v_mul_f32 v24, s94, v24")
    a("v_mul_f32 v26, s94, v26")
    a("v_lshlrev_b32 v12, 16, v20")
    a("v_fma_f32 v26, -v24, v24, v26")
    a("v_and_b32 v13, 0xffff0000, v20")
    a("v_max_f32 v26, 0, v26")
    ln_finish("v24", "v26", "v12", "v13", "v30")
    modulate("v12", "v13", "v64", "v65", "v66", "v67", "v16", "v30")
    a(f"ds_write_b32 v11, v16 offset:{L_ACT6}")
    a(f"s_mul_i32 s94, {S_KQ}, 448")
    sexpr("s90", [(S_X, "shl", 15), (SB, "shl", 13), ("s94", "shl", 0)], W_GU, tmp="s99")
    a("s_add_u32 s94, s90, 4096")
    a("s_add_u32 s99, s90, 16384")
    a("s_add_u32 s100, s90, 20480")
    a("s_waitcnt lgkmcnt(0)")
    stamp(6)
    a("s_barrier")
    a("v_lshlrev_b32 v16, 3, v0")
    a("v_mov_b32 v40, 0")
    a("v_lshlrev_b32 v17, 1, v0")
    a("v_add_u32 v17, s98, v17")
    a("s_mov_b32 exec_lo, -1")
    a("s_mov_b32 exec_hi, 0x00ffffff")
    loads = []; tags = []
    for wh in range(2):
        for k6 in range(4):
            sr = [["s90", "s94"], ["s99", "s100"]][wh][k6 >> 1]
            rb = 20 + 8*wh + 2*k6
            loads.append(f"buffer_load_dwordx2 v[{rb}:{rb+1}], v16, {WSRD}, {sr} offen offset:{2048*(k6&1)} sc1")
            tags.append(f"v{rb+1}")
    after_own(F_PG, 4, "v3", "v50", cfg.d_gu)
    poll(loads, tags, "v50")
    a("v_add_f32 v36, v20, v22")
    a("v_add_f32 v37, v24, v26")
    a("v_add_f32 v38, v28, v30")
    a("v_add_f32 v39, v32, v34")
    a("v_add_f32 v36, v36, v37")
    a("v_add_f32 v38, v38, v39")
    bf16r2("v36", "v38", "v36", "v38", "v50")
    a("v_mul_f32 v36, v36, v38")
    a("v_cvt_pk_bf16_f32 v40, v36, v36")
    a("s_mov_b64 exec, -1")
    a(f"ds_write_b16 v17, v40 offset:{L_ACT7}")
    a("s_waitcnt lgkmcnt(0)")
    stamp(7)
    a("s_barrier")
    dump_stamps(11)
    a("s_endpgm")

    a.label("L_slice")
    srd(48, 38, 2048)
    a("v_and_b32 v1, 3, v0")
    a("v_lshlrev_b32 v7, 4, v0")
    a("v_mov_b32 v19, 0")
    a("v_lshlrev_b32 v2, 3, v1")
    a(f"s_lshl_b32 s90, {S_LOC}, 5")
    a("v_add_u32 v2, s90, v2")
    a("v_lshlrev_b32 v6, 4, v1")
    a(f"s_lshl_b32 s17, {S_LOC}, 12")
    a("buffer_load_dwordx2 v[4:5], v2, s[44:47], 0 offen")
    a("buffer_load_dwordx2 v[12:13], v2, s[44:47], 0 offen offset:1024")
    a("s_waitcnt vmcnt(0)")
    get_tag()
    a("v_mov_b32 v3, 0")
    for (src, dst) in ((4, 100), (5, 102), (12, 104), (13, 106)):
        a(f"v_lshlrev_b32 v{dst}, 16, v{src}")
        a(f"v_and_b32 v{dst+1}, 0xffff0000, v{src}")
    get_mode("v3", "v20")
    stamp(1)

    def gate_read(off, d):
        base = int(d[0][1:])
        a(f"ds_read_b128 v[{base}:{base+3}], v6 offset:{off}")
        a(f"ds_read_b128 v[{base+4}:{base+7}], v6 offset:{off+64}")
    def part_loads(base):
        a(f"s_add_u32 s20, s17, {base}")
        loads = []; tags = []
        for i in range(4):
            rb = 16 + 4*i
            loads.append(f"buffer_load_dwordx4 v[{rb}:{rb+3}], v7, {WSRD}, s20 offen offset:{1024*i} sc1")
            tags += [f"v{rb+1}", f"v{rb+3}"]
        return loads, tags
    def part_loads_atomic(base):
        a(f"s_add_u32 s20, s17, {base}")
        loads = []; tags = []
        for r in range(16, 32): loads.append(f"v_mov_b32 v{r}, 0")
        for i in range(4):
            rb = 16 + 4*i
            for hh in range(2):
                loads.append(f"buffer_atomic_add_x2 v[{rb+2*hh}:{rb+2*hh+1}], v7, {WSRD}, s20 offen offset:{1024*i + 8*hh} sc0 sc1")
            tags += [f"v{rb+1}", f"v{rb+3}"]
        return loads, tags
    def part_sum():
        a("v_mov_b32 v8, 0x3f80")
        a("v_mov_b32 v9, 0x3f800000")
        for b in range(2):
            for (k, (off, sel)) in enumerate(((0, "v8"), (0, "v9"), (2, "v8"), (2, "v9"))):
                d = f"v{108+4*b+k}"
                r0 = 16 + 8*b + off
                a(f"v_dot2_f32_bf16 {d}, v{r0}, {sel}, 0")
                a(f"v_dot2_f32_bf16 {d}, v{r0+4}, {sel}, {d}")
        regs = [f"v{108+k}" for k in range(8)]
        allreduce(regs, "v_add_f32", [f"v{16+k}" for k in range(8)], ["r4", "r8", "x16", "x32"])
    def resid(gate, xio):
        regs = [f"v{108+k}" for k in range(8)]
        for k in range(0, 8, 2): bf16r2(regs[k], regs[k+1], regs[k], regs[k+1], "v14")
        for k in range(8): a(f"v_mul_f32 {regs[k]}, {regs[k]}, {gate[k]}")
        for k in range(0, 8, 2): bf16r2(regs[k], regs[k+1], regs[k], regs[k+1], "v14")
        for k in range(8): a(f"v_add_f32 {xio[k]}, {xio[k]}, {regs[k]}")
    XR = [f"v{100+k}" for k in range(8)]
    GA = [f"v{116+k}" for k in range(8)]
    GB = [f"v{88+k}" for k in range(8)]

    l1, t1 = part_loads(W_A4)
    a("v_bfe_u32 v10, v0, 2, 1")
    a("v_lshlrev_b32 v98, 11, v10")
    a("v_lshl_add_u32 v98, v1, 4, v98")
    a("v_lshlrev_b32 v99, 9, v10")
    sexpr("s22", [(S_X, "shl", 12), (S_LOC, "shl", 6)], W_X1P)
    sexpr("s23", [(S_X, "shl", 10), (S_LOC, "shl", 4)], W_X1S)
    spin_lds(F_GA, 1, "v3", "v15")
    gate_read(L_GA, GA)
    gate_read(L_GB, GB)
    a("s_waitcnt lgkmcnt(0)")
    a("s_barrier")
    after_own(F_PA, 4, "v3", "v15", cfg.d_s5)
    stamp(2)
    poll(l1, t1, "v15")
    stamp(3)
    part_sum()
    resid(GA, XR)
    for k in range(4): a(f"v_cvt_pk_bf16_f32 v{20+k}, {XR[2*k]}, {XR[2*k+1]}")
    for k in range(4):
        a(f"v_lshlrev_b32 {XR[2*k]}, 16, v{20+k}")
        a(f"v_and_b32 {XR[2*k+1]}, 0xffff0000, v{20+k}")
    a("v_cmp_eq_u32 vcc, 1, v10")
    a(f"v_mov_b32 v25, {S_TAG}")
    a(f"v_mov_b32 v27, {S_TAG}")
    a("v_cndmask_b32 v24, v20, v22, vcc")
    a("v_cndmask_b32 v26, v21, v23, vcc")
    a("s_mov_b64 exec, 0xff")
    store_loc(f"buffer_store_dwordx4 v[24:27], v98, {WSRD}, s22 offen")
    a("s_mov_b64 exec, -1")
    a(f"v_add_f32 v16, {XR[0]}, {XR[1]}")
    a(f"v_add_f32 v18, {XR[4]}, {XR[5]}")
    a(f"v_mul_f32 v17, {XR[0]}, {XR[0]}")
    a(f"v_mul_f32 v19, {XR[4]}, {XR[4]}")
    a(f"v_add_f32 v16, v16, {XR[2]}")
    a(f"v_add_f32 v18, v18, {XR[6]}")
    for k in (1, 2, 3):
        a(f"v_fmac_f32 v17, {XR[k]}, {XR[k]}")
        a(f"v_fmac_f32 v19, {XR[4+k]}, {XR[4+k]}")
    a(f"v_add_f32 v16, v16, {XR[3]}")
    a(f"v_add_f32 v18, v18, {XR[7]}")
    allreduce(["v16", "v17", "v18", "v19"], "v_add_f32", [], ["x1", "x2"])
    a(f"v_mov_b32 v29, {S_TAG}")
    a(f"v_mov_b32 v31, {S_TAG}")
    a("v_cndmask_b32 v28, v16, v18, vcc")
    a("v_cndmask_b32 v30, v17, v19, vcc")
    a("s_mov_b64 exec, 0x11")
    store_loc(f"buffer_store_dwordx4 v[28:31], v99, {WSRD}, s23 offen")
    a("s_mov_b64 exec, -1")
    a("v_mov_b32 v15, 1")
    arrive(F_PX, "v3", "v15")
    stamp(4)
    mark(14, "v3")
    a(f"s_and_b32 s90, {S_LOC}, 7")
    a(f"s_cmp_lg_u32 s90, {S_X}")
    a("s_cbranch_scc1 L_slice_nf")
    a("s_barrier")
    a("s_barrier")
    l1, t1 = part_loads_atomic(W_DN) if cfg.atom8 else part_loads(W_DN)
    a("v_lshlrev_b32 v98, 10, v10")
    a("v_lshl_add_u32 v98, v1, 3, v98")
    a(f"s_lshl_b32 s22, {S_LOC}, 5")
    after_own(F_PD, 4, "v3", "v15", cfg.d_s8)
    poll(l1, t1, "v15")
    part_sum()
    resid(GB, XR)
    for k in range(4): a(f"v_cvt_pk_bf16_f32 v{20+k}, {XR[2*k]}, {XR[2*k+1]}")
    a("v_cmp_eq_u32 vcc, 1, v10")
    a("v_cndmask_b32 v24, v20, v22, vcc")
    a("v_cndmask_b32 v25, v21, v23, vcc")
    a("s_mov_b64 exec, 0xff")
    a("buffer_store_dwordx2 v[24:25], v98, s[48:51], s22 offen")
    a(f"s_cmp_lg_u32 {S_WG}, 0")
    a("s_cbranch_scc1 L_slice_end")
    a("s_mov_b64 exec, 1")
    a(f"v_mov_b32 v24, {S_EP}")
    a("v_mov_b32 v21, 0")
    a(f"buffer_store_dword v24, v21, {WSRD}, 0 offen sc1")
    a.label("L_slice_end")
    if cfg.probe == 1:
        a("s_sleep 94")
        a("s_sleep 94")
    if cfg.probe >= 10:
        a(f"ds_read_b32 v20, v3 offset:{L_PRB}")
        a("s_waitcnt lgkmcnt(0)")
        a("v_readfirstlane_b32 s22, v20")
        a("s_mov_b32 s24, 100000")
        a.label("L_probe")
        a("s_memrealtime s[20:21]")
        a("s_waitcnt lgkmcnt(0)")
        a("s_sub_u32 s24, s24, 1")
        a("s_cbranch_scc1 L_probe_e")
        a("s_sub_u32 s23, s20, s22")
        a("s_cmp_lt_u32 s23, 2000")
        a("s_cbranch_scc1 L_probe")
        a.label("L_probe_e")
    if cfg.probe == 3:
        a("s_add_u32 s22, s62, 2500")
        a.label("L_probe")
        a("s_memrealtime s[20:21]")
        a("s_waitcnt lgkmcnt(0)")
        a("s_sub_u32 s23, s20, s22")
        a("s_cmp_lt_i32 s23, 0")
        a("s_cbranch_scc1 L_probe")
    if cfg.probe == 2:
        a("s_memrealtime s[20:21]")
        a("s_waitcnt lgkmcnt(0)")
        a("s_add_u32 s22, s20, 500")
        a.label("L_probe")
        a("s_memrealtime s[20:21]")
        a("s_waitcnt lgkmcnt(0)")
        a("s_sub_u32 s23, s20, s22")
        a("s_cmp_lt_i32 s23, 0")
        a("s_cbranch_scc1 L_probe")
    a("s_mov_b64 exec, -1")
    stamp(5)
    dump_stamps(6)
    a("s_endpgm")
    a.label("L_slice_nf")
    a("s_barrier")
    a("s_barrier")
    dump_stamps(5)
    a("s_endpgm")

    a.label("L_aux")
    srd(44, 28, 512*1792*2)
    srd(48, 30, 512*1792*2)
    srd(52, 32, 1792*512*2)
    a("v_mov_b32 v10, 1")
    sexpr("s18", [(S_X, "mul", 224*1024), (S_KQ, "mul", 56*1024), (S_CB, "shl", 7)])
    sexpr("s19", [(S_KQ, "mul", 128*3584), (S_X, "mul", 448), (S_CB, "shl", 6)])
    a("s_waitcnt vmcnt(0)")
    get_tag()
    strip_voff(3584, "v31")
    unit_voffs(pitch_shift=10, d0="v32", d1="v33")
    a("v_mov_b32 v3, 0")
    stamp(1)
    if cfg.quiet:
        Lq = a.newlabel("Lquiet")
        a(f"s_cmp_lg_u32 {S_B}, 0")
        a(f"s_cbranch_scc1 {Lq}")
        spin_lds(F_LC, cfg.quiet, "v3", "v50")
        a.label(Lq)
    if cfg.local == 2:
        L = a.newlabel("Lxc"); E = a.newlabel("Lxce")
        srd(60, 40, 256)
        a(f"s_lshl_b32 s91, {S_X}, 5")
        a("s_add_u32 s91, s91, 8")
        a("v_mov_b32 v18, s91")
        a("s_getreg_b32 s90, hwreg(HW_REG_XCC_ID)")
        a("s_and_b32 s90, s90, 7")
        a("s_mul_i32 s90, s90, 6")
        a("s_lshl_b64 s[26:27], 1, s90")
        a("s_mov_b64 exec, 1")
        a.label(L)
        a("buffer_load_dwordx2 v[20:21], v18, s[60:63], 0 offen sc1")
        a("s_waitcnt vmcnt(0)")
        a("v_readfirstlane_b32 s20, v20")
        a("v_readfirstlane_b32 s21, v21")
        a("s_mov_b64 s[22:23], s[20:21]")
        a("s_mov_b32 s90, 0")
        for k in range(8):
            a("s_and_b32 s91, s22, 63")
            a("s_add_u32 s90, s90, s91")
            if k < 7: a("s_lshr_b64 s[22:23], s[22:23], 6")
        a("s_cmp_ge_u32 s90, 32")
        a(f"s_cbranch_scc1 {E}")
        timeout()
        a("s_sleep 2")
        a(f"s_branch {L}")
        a.label(E)
        a("s_lshl_b64 s[22:23], s[26:27], 5")
        a("s_cmp_eq_u64 s[20:21], s[22:23]")
        a("s_cselect_b32 s90, 1, 2")
        a("v_mov_b32 v16, s90")
        a(f"ds_write_b32 v3, v16 offset:{F_LM}")
        a("s_mov_b64 exec, -1")
    stamp(2)
    a(f"s_cmp_lg_u32 {S_B}, 0")
    a("s_cbranch_scc1 L_aux_ga")
    a(f"s_lshr_b32 s90, {S_X}, 1")
    a(f"s_and_b32 s91, {S_X}, 1")
    a(f"s_lshr_b32 s22, {S_SPL}, 2")
    a(f"s_and_b32 s23, {S_SPL}, 3")
    sexpr("s20", [("s90", "shl", 15), ("s91", "shl", 14), ("s22", "shl", 12), ("s23", "shl", 8)], W_MOD + 2*32768)
    sexpr("s21", [("s90", "shl", 12), ("s91", "shl", 11), (S_SPL, "shl", 7)], W_MODF + 2*4096)
    a("v_lshlrev_b32 v18, 3, v0")
    a("s_mov_b32 exec_hi, 0")
    loads = []; tags = []
    for i in range(4):
        loads.append(f"buffer_load_dwordx2 v[{40+2*i}:{41+2*i}], v18, {WSRD}, s20 offen offset:{1024*i} sc1")
        tags.append(f"v{41+2*i}")
    poll(loads, tags, "v60", sleep=6, sample=True)
    a("v_add_f32 v40, v40, v42")
    a("v_add_f32 v44, v44, v46")
    a("v_add_f32 v40, v40, v44")
    a("v_lshlrev_b32 v18, 2, v0")
    a(f"v_mov_b32 v43, {S_TAG}")
    a("v_mov_b32_dpp v42, v40 quad_perm:[1,0,3,2] row_mask:0xf bank_mask:0xf")
    a("s_mov_b32 exec_lo, 0x55555555")
    a("v_cvt_pk_bf16_f32 v42, v40, v42")
    a(f"buffer_store_dwordx2 v[42:43], v18, {WSRD}, s21 offen sc1")
    a("s_mov_b64 exec, -1")
    a.label("L_aux_ga")
    sexpr("s20", [(S_LOC, "shl", 6)], W_MODF + 2*4096)
    a(f"s_add_u32 s21, s20, {3*4096}")
    a("v_bfe_u32 v16, v0, 3, 1")
    a("v_and_b32 v17, 7, v0")
    a("v_lshlrev_b32 v18, 11, v16")
    a("v_lshl_add_u32 v18, v17, 3, v18")
    a("v_and_b32 v19, 15, v0")
    a("v_lshlrev_b32 v19, 3, v19")
    a("s_mov_b64 exec, 0xffff")
    poll([f"buffer_load_dwordx2 v[40:41], v18, {WSRD}, s20 offen sc1",
          f"buffer_load_dwordx2 v[42:43], v18, {WSRD}, s21 offen sc1"], ["v41", "v43"], "v60", sleep=8)
    a("v_lshlrev_b32 v44, 16, v40")
    a("v_and_b32 v45, 0xffff0000, v40")
    a("v_lshlrev_b32 v46, 16, v42")
    a("v_and_b32 v47, 0xffff0000, v42")
    a(f"ds_write_b64 v19, v[44:45] offset:{L_GA}")
    a(f"ds_write_b64 v19, v[46:47] offset:{L_GB}")
    a("s_mov_b64 exec, -1")
    arrive(F_GA, "v3", "v10")
    a("s_barrier")
    spin_lds(F_PA, 4, "v3", "v50", sleep=False)
    a(f"s_cmp_eq_u32 {S_CB}, 7")
    a("s_cbranch_scc1 L_aux_dn")
    a(f"s_mov_b32 m0, {L_G}")
    a("s_mov_b32 s99, 8")
    a.label("L_aux_gu")
    a("buffer_load_dwordx4 v31, s[44:47], s19 offen nt lds")
    a("s_add_u32 m0, m0, 0x2000")
    a("s_nop 0")
    a("buffer_load_dwordx4 v31, s[48:51], s19 offen nt lds")
    a("s_sub_u32 m0, m0, 0x1c00")
    a(f"s_add_u32 s19, s19, {16*3584}")
    a("s_sub_u32 s99, s99, 1")
    a("s_cmp_lg_u32 s99, 0")
    a("s_cbranch_scc1 L_aux_gu")
    a.label("L_aux_dn")
    a(f"s_mov_b32 m0, {L_DN}")
    a("s_nop 0")
    for i in range(8):
        a(f"buffer_load_dwordx4 v{32 + (i&1)}, s[52:55], s18 offen nt lds")
        a("s_add_u32 m0, m0, 0x400")
        a("s_add_u32 s18, s18, 0x2000")
    a("s_waitcnt vmcnt(0)")
    arrive(F_LATE, "v3", "v10")
    stamp(3)
    a("s_barrier")
    a("s_barrier")
    dump_stamps(4)
    a("s_endpgm")

    a.label("L_abort")
    a("s_mov_b64 exec, 1")
    a("v_mov_b32 v1, 0")
    a(f"s_lshl_b32 s90, {S_WG}, 16")
    a("s_or_b32 s90, s90, s1") if cfg.site else None
    a("v_mov_b32 v2, s90")
    a(f"s_and_b32 s90, {S_W}, 1")
    a("s_lshl_b32 s90, s90, 2")
    a("v_mov_b32 v1, s90")
    a("v_or_b32 v2, 0xde000000, v2")
    a("s_mov_b32 s44, s40")
    a("s_and_b32 s45, s41, 0xffff")
    a("s_mov_b32 s46, 256")
    a("s_mov_b32 s47, 0x20000")
    a("buffer_store_dword v2, v1, s[44:47], 0 offen")
    a.label("L_end")
    a("s_endpgm")

    hdr = open(f"cdna_kernels/{NAME}.s.ref").read().split("; Override launch")[0]
    out = hdr
    out += f"; @launch grid=(256,1,1) block=(576,1,1) lds={L_TOTAL}\n"
    out += '.amdgcn_target "amdgcn-amd-amdhsa--gfx950"\n.text\n'
    out += f".globl {NAME}_kernel\n.p2align 8\n.type {NAME}_kernel,@function\n"
    out += a.text()
    out += f""".section .rodata,"a"
.p2align 6
.amdhsa_kernel {NAME}_kernel
  .amdhsa_next_free_vgpr 128
  .amdhsa_next_free_sgpr 102
  .amdhsa_accum_offset 128
  .amdhsa_group_segment_fixed_size 0
  .amdhsa_kernarg_size 112
  .amdhsa_user_sgpr_count 2
  .amdhsa_user_sgpr_kernarg_segment_ptr 1
  .amdhsa_system_sgpr_workgroup_id_x 1
.end_amdhsa_kernel
"""
    return out

if __name__ == "__main__":
    cfg = Cfg()
    outp = sys.argv[1]
    for arg in sys.argv[2:]:
        k, v = arg.split("=")
        assert hasattr(cfg, k), k
        setattr(cfg, k, int(v))
    open(outp, "w").write(gen(cfg))
    print("wrote", outp)
```

```python
import sys
from asmlib import Asm

NAME = "adaLN_cond__sliding_block_cached__glu_gated_bilinear__decode"

class Cfg:
    D = 40
    DA = 28
    stamps = 0
    spin = 1 << 20
    rsl = 1
    local = 2
    touch = 1
    quiet = 0
    prio = 0
    qsl = 4
    kstart = 1
    d_h = 4
    d_q = 1
    d_r1 = 1
    d_s5 = 8
    d_x1 = 1
    d_gu = 1
    d_s8 = 2
    atom8 = 1
    probe = 0
    site = 0

(F_LC, F_1, F_2, F_3, F_EC, F_KC, F_MB1, F_MB2, F_LATE, F_PO, F_PA, F_PX, F_PG, F_PD,
 F_PM, F_PQ, F_XC, F_WQ, F_WOL, F_MRL, F_LM, F_GA) = [4*i for i in range(22)]
L_MX = 128; L_LS = 192; L_ZERO = 256
L_ACT1 = 768; L_ACT2 = 1344; L_ACT4 = 1920; L_ACT6 = 2496; L_ACT7 = 3072
L_PRB = 7424
L_GA = 7168; L_GB = 7296
L_Q = 3648
L_P = 4736
L_X = 8192; L_C = 10240
L_K = 12288; L_V = L_K + 73728; L_TOTAL = L_V + 73728; L_MR = L_V + 57344
NK_A = 288; NK_B = 224
L_MODB = L_K; L_WQ = L_V
L_WO = L_K; L_G = L_K + 16384; L_U = L_K + 24576; L_DN = L_K + 32768
APITCH = 272; PPITCH = 592

W_EPOCH = 0
W_MOD = 0x1000
W_MODF = 0x38000
W_Q = 0x40000
W_ST = 0x80000
W_O = 0x90000
W_A4 = 0x110000
W_X1P = 0x150000
W_X1S = 0x158000
W_GU = 0x160000
W_DN = 0x1A0000
W_STAMP = 0x200000
W_USED = 0x300000

LOG2E = 0x3fb8aa3b
SCALE = 0x3db504f3
EPS = 0x3727c5ac
INV512 = 0x3b000000

S_WG, S_W, S_X, S_LOC, S_B, S_SPL, S_KQ, S_CB, S_TAG, S_SPIN = "s2", "s3", "s4", "s5", "s6", "s7", "s8", "s9", "s10", "s11"
S_U = "s7"
S_BT = "s86"
S_SP = "s87"
WSRD = "s[12:15]"
S_EP = "s89"
S_LM = "s88"
PX = "s[42:43]"
S_PH = "s101"
KB_B = 8

def gen(cfg):
    a = Asm()
    D = cfg.D

    def srd(dst, plo, size):
        a(f"s_mov_b32 s{dst}, s{plo}")
        a(f"s_and_b32 s{dst+1}, s{plo+1}, 0xffff")
        a(f"s_mov_b32 s{dst+2}, {size}")
        a(f"s_mov_b32 s{dst+3}, 0x20000")

    def stamp(k):
        if cfg.stamps: a(f"s_memrealtime s[{64+2*k}:{65+2*k}]")

    def mark(pid, vz):
        if cfg.probe == pid:
            a("s_memrealtime s[62:63]")
            a("s_waitcnt lgkmcnt(0)")
            a("v_mov_b32 v127, s62")
            a(f"ds_max_u32 {vz}, v127 offset:{L_PRB}")

    def dump_stamps(n):
        if not cfg.stamps: return
        a("s_waitcnt lgkmcnt(0)")
        a(f"s_mul_i32 s90, {S_WG}, 9")
        a(f"s_add_u32 s90, s90, {S_W}")
        a("s_lshl_b32 s90, s90, 7")
        a(f"s_add_u32 s90, s90, {W_STAMP}")
        a("s_mov_b64 exec, 1")
        a("v_mov_b32 v1, 0")
        for k in range(n):
            a(f"v_mov_b32 v2, s{64+2*k}")
            a(f"v_mov_b32 v3, s{65+2*k}")
            a(f"buffer_store_dwordx2 v[2:3], v1, {WSRD}, s90 offen offset:{8*k}")
            a("s_nop 1")
        a("s_waitcnt vmcnt(0)")

    sites = [0]
    def timeout():
        if cfg.site:
            sites[0] += 1
            a(f"s_mov_b32 s1, {sites[0]}")
        a(f"s_sub_u32 {S_SPIN}, {S_SPIN}, 1")
        a("s_cbranch_scc1 L_abort")

    def spin_lds(off, n, vz, vt, sleep=True):
        L = a.newlabel("Lsp"); E = a.newlabel("Lspe")
        a.label(L)
        a(f"ds_read_b32 {vt}, {vz} offset:{off}")
        a("s_waitcnt lgkmcnt(0)")
        a(f"v_readfirstlane_b32 s91, {vt}")
        a(f"s_cmp_ge_i32 s91, {n}")
        a(f"s_cbranch_scc1 {E}")
        timeout()
        if sleep: a("s_sleep 1")
        a(f"s_branch {L}")
        a.label(E)

    def arrive(off, vz, vone):
        a("s_mov_b64 s[92:93], exec")
        a("s_mov_b64 exec, 1")
        a(f"ds_add_u32 {vz}, {vone} offset:{off}")
        a("s_mov_b64 exec, s[92:93]")

    def poll(loads, tags, vacc, sleep=None, sample=False):
        if sleep is None: sleep = cfg.rsl
        L = a.newlabel("Lpl"); E = a.newlabel("Lple"); R = a.newlabel("Lplr")
        a(f"s_mov_b64 {PX}, exec")
        if sample:
            a(f"s_mov_b32 {S_PH}, 0")
            a("s_mov_b64 exec, 1")
        a.label(L)
        for ld in loads: a(ld)
        a("s_waitcnt vmcnt(0)")
        a(f"v_xor_b32 {vacc}, {S_TAG}, {tags[0]}")
        for t in tags[1:]:
            a(f"v_bitop3_b32 {vacc}, {vacc}, {t}, {S_TAG} bitop3:0xf6")
        a(f"v_cmp_ne_u32 vcc, 0, {vacc}")
        if sample:
            a(f"s_cbranch_vccnz {R}")
            a(f"s_cmp_lg_u32 {S_PH}, 0")
            a(f"s_cbranch_scc1 {E}")
            a(f"s_mov_b32 {S_PH}, 1")
            a(f"s_mov_b64 exec, {PX}")
            a(f"s_branch {L}")
            a.label(R)
        else:
            a(f"s_cbranch_vccz {E}")
        a("s_mov_b64 exec, vcc")
        timeout()
        if sleep: a(f"s_sleep {sleep}")
        a(f"s_branch {L}")
        a.label(E)
        a(f"s_mov_b64 exec, {PX}")

    def after_own(flag, n, vz, vt, dly):
        spin_lds(flag, n, vz, vt, sleep=False)
        if dly: a(f"s_sleep {dly}")

    def get_mode(vz, vt):
        if cfg.local == 2:
            spin_lds(F_LM, 1, vz, vt)
            a(f"s_mov_b32 {S_LM}, s91")

    def store_loc(text):
        if cfg.local == 0: a(text + " sc1")
        elif cfg.local == 1: a(text)
        else:
            P = a.newlabel("Lst"); E = a.newlabel("Lste")
            a(f"s_cmp_eq_u32 {S_LM}, 1")
            a(f"s_cbranch_scc1 {P}")
            a(text + " sc1")
            a(f"s_branch {E}")
            a.label(P)
            a(text)
            a.label(E)

    def bf16r2(d0, d1, s0, s1, tmp):
        a(f"v_cvt_pk_bf16_f32 {tmp}, {s0}, {s1}")
        a(f"v_lshlrev_b32 {d0}, 16, {tmp}")
        a(f"v_and_b32 {d1}, 0xffff0000, {tmp}")

    def bf16r1(d, s):
        a(f"v_cvt_pk_bf16_f32 {d}, {s}, {s}")
        a(f"v_lshlrev_b32 {d}, 16, {d}")

    def allreduce(regs, op, tmps, steps):
        dpp = {"x1": "quad_perm:[1,0,3,2]", "x2": "quad_perm:[2,3,0,1]", "x4": "row_half_mirror", "x8": "row_mirror", "r8": "row_ror:8", "r4": "row_ror:4"}
        for s in steps:
            if s in dpp:
                for r in regs:
                    a(f"{op}_dpp {r}, {r}, {r} {dpp[s]} row_mask:0xf bank_mask:0xf")
            else:
                ins = "v_permlane16_swap_b32" if s == "x16" else "v_permlane32_swap_b32"
                for r, t in zip(regs, tmps): a(f"v_mov_b32 {t}, {r}")
                for r, t in zip(regs, tmps): a(f"{ins} {r}, {t}")
                for r, t in zip(regs, tmps): a(f"{op} {r}, {r}, {t}")
    FULL = ["x1", "x2", "x4", "x8", "x16", "x32"]

    def sexpr(dst, terms, const=0, tmp="s94"):
        first = True
        for (reg, kind, n) in terms:
            tgt = dst if first else tmp
            if kind == "shl":
                if n == 0: a(f"s_mov_b32 {tgt}, {reg}")
                else: a(f"s_lshl_b32 {tgt}, {reg}, {n}")
            else: a(f"s_mul_i32 {tgt}, {reg}, {n}")
            if not first: a(f"s_add_u32 {dst}, {dst}, {tmp}")
            first = False
        if const: a(f"s_add_u32 {dst}, {dst}, {const}")

    def get_tag():
        a(f"v_readfirstlane_b32 {S_EP}, v3")
        a(f"s_add_u32 {S_EP}, {S_EP}, 1")
        a(f"s_mul_i32 {S_TAG}, {S_EP}, 0x9E3779B1")

    def unit_voffs(pitch_shift=None, pitch=None, d0="v24", d1="v25"):
        a("v_lshrrev_b32 v3, 3, v0")
        a("v_bfe_u32 v4, v0, 4, 1")
        a("v_lshlrev_b32 v4, 1, v4")
        a("v_and_b32 v5, 7, v0")
        a("v_xor_b32 v4, v4, v5")
        a("v_lshlrev_b32 v4, 4, v4")
        if pitch_shift is not None: a(f"v_lshlrev_b32 v6, {pitch_shift}, v3")
        else: a(f"v_mul_u32_u24 v6, {pitch}, v3")
        a(f"v_add_u32 {d0}, v6, v4")
        a(f"v_xor_b32 {d1}, 64, {d0}")

    def strip_voff(pitch, d):
        a("v_lshrrev_b32 v6, 2, v0")
        a(f"v_mul_u32_u24 {d}, {pitch}, v6")
        a("v_bfe_u32 v6, v0, 5, 1")
        a("v_lshlrev_b32 v6, 1, v6")
        a("v_and_b32 v7, 3, v0")
        a("v_xor_b32 v6, v6, v7")
        a(f"v_lshl_add_u32 {d}, v6, 4, {d}")

    a.label(f"{NAME}_kernel")
    a(f"s_cmp_ge_u32 {S_WG}, 256")
    a("s_cbranch_scc1 L_end")
    a("s_load_dwordx16 s[16:31], s[0:1], 0")
    a("s_load_dwordx8 s[32:39], s[0:1], 64")
    a("s_load_dwordx4 s[40:43], s[0:1], 96")
    stamp(0)
    if cfg.probe == 3: a("s_memrealtime s[62:63]")
    a("v_lshrrev_b32 v1, 6, v0")
    a("v_and_b32 v0, 63, v0")
    a(f"v_readfirstlane_b32 {S_W}, v1")
    a(f"s_and_b32 {S_X}, {S_WG}, 7")
    a(f"s_lshr_b32 {S_LOC}, {S_WG}, 3")
    a(f"s_lshr_b32 {S_B}, {S_LOC}, 4")
    a(f"s_xor_b32 {S_B}, {S_B}, 1")
    a(f"s_and_b32 {S_SPL}, {S_LOC}, 15")
    a(f"s_bfe_u32 {S_BT}, {S_LOC}, 0x10003")
    a(f"s_and_b32 {S_SP}, {S_LOC}, 7")
    a(f"s_lshl_b32 s90, {S_B}, 3")
    a(f"s_xor_b32 s90, s90, 8")
    a(f"s_add_u32 {S_SP}, {S_SP}, s90")
    a(f"s_lshr_b32 {S_KQ}, {S_LOC}, 3")
    a(f"s_and_b32 {S_CB}, {S_LOC}, 7")
    a(f"s_mov_b32 {S_SPIN}, {cfg.spin}")
    a(f"s_mov_b32 {S_LM}, {1 if cfg.local == 1 else 2}")
    a(f"s_cmp_lg_u32 {S_W}, 8")
    a("s_cbranch_scc1 L_worker")

    SLC = "s95"; SOFF = "s96"
    strip_voff(6144, "v20")
    a(f"s_and_b32 s90, {S_SPL}, 3")
    a(f"s_mul_i32 {SOFF}, s90, {128*6144}")
    a(f"s_lshr_b32 s90, {S_X}, 2")
    a("s_lshl_b32 s90, s90, 10")
    a(f"s_add_u32 {SOFF}, {SOFF}, s90")
    a(f"s_and_b32 s90, {S_X}, 3")
    a("s_lshl_b32 s90, s90, 8")
    a(f"s_add_u32 {SOFF}, {SOFF}, s90")
    a(f"s_lshr_b32 s90, {S_SPL}, 2")
    a("s_lshl_b32 s90, s90, 6")
    a(f"s_add_u32 {SOFF}, {SOFF}, s90")
    a(f"s_mov_b32 m0, {L_MODB}")
    a("s_waitcnt lgkmcnt(0)")
    srd(44, 36, 512*3072*2)
    a(f"s_cmp_eq_u32 {S_B}, 0")
    a("s_cbranch_scc1 L_ld_nomod")
    for i in range(8):
        a(f"buffer_load_dwordx4 v20, s[44:47], {SOFF} offen nt lds")
        if i < 7:
            a(f"s_add_u32 {SOFF}, {SOFF}, {16*6144}")
            a("s_add_u32 m0, m0, 0x400")
    a.label("L_ld_nomod")
    if cfg.prio: a("s_setprio 3")
    a("s_barrier")
    stamp(1)
    srd(12, 42, W_USED)
    srd(52, 18, 2*8*32768*128*2)
    srd(56, 20, 2*8*32768*128*2)
    srd(60, 24, 4096*512*2)
    a("v_mov_b32 v10, 0")
    a("v_lshrrev_b32 v3, 4, v0")
    a("v_and_b32 v4, 15, v0")
    a("v_xor_b32 v5, v4, v3")
    a("v_lshlrev_b32 v5, 4, v5")
    a("v_lshl_add_u32 v26, v3, 8, v5")
    a("v_xor_b32 v27, 64, v26")
    a("v_xor_b32 v28, 0x80, v26")
    a("v_xor_b32 v29, 0xc0, v26")
    a("v_lshlrev_b32 v5, 1, v3")
    a("v_xor_b32 v5, v4, v5")
    a("v_lshlrev_b32 v5, 4, v5")
    a("v_lshl_add_u32 v30, v3, 8, v5")
    a("v_xor_b32 v31, 0x80, v30")
    a(f"s_and_b32 s90, {S_LOC}, 7")
    a(f"s_mul_i32 s91, {S_B}, {(NK_B - NK_A) * 256}")
    a(f"s_add_u32 s91, s91, {NK_A * 256}")
    a("s_mul_i32 s90, s90, s91")
    a(f"s_mul_i32 s91, {S_B}, {-1792 * 256}")
    a("s_add_u32 s90, s90, s91")
    sexpr("s98", [(S_BT, "shl", 26), (S_X, "shl", 23), ("s90", "shl", 0)], (28672 + 1792) * 256)
    unit_voffs(pitch_shift=10)

    def lc_write(val, off=F_LC):
        a(f"v_mov_b32 v11, {val}")
        a(f"ds_write_b32 v10, v11 offset:{off}")
    def seg(name, variants, srdn, step, iters, ldsbase):
        a(f"s_mov_b32 m0, {ldsbase}")
        a(f"s_mov_b32 s97, {iters}")
        a.label(name)
        for v in variants:
            a(f"buffer_load_dwordx4 {v}, s[{srdn}:{srdn+3}], {SOFF} offen nt lds")
            a(f"s_add_u32 {SOFF}, {SOFF}, {step}")
            a("s_add_u32 m0, m0, 0x400")
        a("s_sub_u32 s97, s97, 1")
        a("s_cmp_lg_u32 s97, 0")
        a(f"s_cbranch_scc1 {name}")
    def drain(end, ks):
        for k in ks:
            a(f"s_waitcnt vmcnt({k})")
            lc_write(end - k)
    def seg4(name, variants, srdn, iters, ldsbase, D=D):
        if ldsbase is not None: a(f"s_mov_b32 m0, {ldsbase}")
        a(f"s_mov_b32 s97, {iters}")
        a.label(name)
        for i, v in enumerate(variants):
            a(f"buffer_load_dwordx4 {v}, s[{srdn}:{srdn+3}], {SOFF} offen offset:{1024*i} nt lds")
        a(f"s_add_u32 {SOFF}, {SOFF}, 0x1000")
        a("s_add_u32 m0, m0, 0x1000")
        a(f"s_add_u32 {SLC}, {SLC}, 4")
        a(f"v_mov_b32 v11, {SLC}")
        a(f"s_waitcnt vmcnt({D-4})")
        a(f"ds_write_b32 v10, v11 offset:{F_LC}")
        a("s_sub_u32 s97, s97, 1")
        a("s_cmp_lg_u32 s97, 0")
        a(f"s_cbranch_scc1 {name}")
    WO_OFF = [(S_X, "shl", 19), (S_KQ, "shl", 17), (S_CB, "shl", 7)]

    a(f"s_cmp_eq_u32 {S_B}, 0")
    a("s_cbranch_scc1 L_ld_A")
    a("s_waitcnt vmcnt(0)")
    lc_write(KB_B)
    if cfg.kstart == 0:
        spin_lds(F_EC, 4, "v10", "v12")
        spin_lds(F_3, 2, "v10", "v12", sleep=False)
    elif cfg.kstart == 1:
        spin_lds(F_PQ, 4, "v10", "v12", sleep=False)
    else:
        pass
    stamp(2)
    a(f"s_mov_b32 {SLC}, {KB_B - (D - 4)}")
    a(f"s_mov_b32 {SOFF}, s98")
    seg4("L_ld_kB", ["v26", "v27", "v28", "v29"], 52, NK_B // 16, L_K)
    a(f"s_mov_b32 {SOFF}, s98")
    seg4("L_ld_vB", ["v30", "v30", "v31", "v31"], 56, NK_B // 16, L_V)
    stamp(3)
    sexpr(SOFF, WO_OFF)
    a(f"ds_read_b32 v12, v10 offset:{F_KC}")
    a("s_waitcnt lgkmcnt(0)")
    a("v_readfirstlane_b32 s91, v12")
    a("s_cmp_ge_i32 s91, 4")
    a("s_cbranch_scc0 L_ld_Bslow")
    seg("L_ld_woB", ["v24", "v25"], 60, 8192, 8, L_WO)
    drain(KB_B + NK_B // 2 + 16, [k for k in (48, 40, 32, 24, 16) if k < D + 12])
    stamp(4)
    a("s_branch L_ld_fin")
    a.label("L_ld_Bslow")
    drain(KB_B + NK_B // 2, [k for k in (32, 24, 16, 8) if k < D - 4] + [0])
    stamp(4)
    spin_lds(F_KC, 4, "v10", "v12")
    seg("L_ld_woB2", ["v24", "v25"], 60, 8192, 8, L_WO)
    a.label("L_ld_fin")
    a("s_waitcnt vmcnt(0)")
    lc_write(1, F_WOL)
    stamp(5)
    dump_stamps(6)
    a("s_endpgm")
    a.label("L_ld_A")
    DA = cfg.DA
    unit_voffs(pitch=6144, d0="v20", d1="v21")
    a(f"s_and_b32 s90, {S_SPL}, 3")
    a(f"s_mul_i32 {SOFF}, s90, {128*6144}")
    a(f"s_lshr_b32 s90, {S_SPL}, 2")
    a(f"s_lshl_b32 s94, {S_X}, 2")
    a("s_add_u32 s90, s90, s94")
    a("s_add_u32 s90, s90, 16")
    a("s_lshl_b32 s90, s90, 7")
    a(f"s_add_u32 {SOFF}, {SOFF}, s90")
    spin_lds(F_1, 2, "v10", "v12", sleep=False)
    seg("L_ld_mr", ["v20", "v21"], 44, 8*6144, 8, L_MR)
    a(f"s_mov_b32 {SLC}, {-(DA - 4)}")
    a(f"s_mov_b32 {SOFF}, s98")
    n0 = (DA - 4 + 3) // 4
    assert 0 < n0 < NK_A // 16
    seg4("L_ld_kA0", ["v26", "v27", "v28", "v29"], 52, n0, L_K, DA)
    lc_write(1, F_MRL)
    seg4("L_ld_kA", ["v26", "v27", "v28", "v29"], 52, NK_A // 16 - n0, None, DA)
    stamp(2)
    a(f"s_mov_b32 {SOFF}, s98")
    seg4("L_ld_vA", ["v30", "v30", "v31", "v31"], 56, NK_A // 16 - 4, L_V, DA)
    spin_lds(F_EC, 4, "v10", "v12")
    seg4("L_ld_vA2", ["v30", "v30", "v31", "v31"], 56, 4, None, DA)
    stamp(3)
    drain(NK_A // 2, [k for k in (32, 24, 16, 8) if k < DA - 4] + [0])
    stamp(4)
    spin_lds(F_KC, 4, "v10", "v12")
    sexpr(SOFF, WO_OFF)
    seg("L_ld_woA", ["v24", "v25"], 60, 8192, 8, L_WO)
    a("s_branch L_ld_fin")

    a.label("L_worker")
    a(f"s_cmp_lg_u32 {S_W}, 4")
    a("s_cbranch_scc1 L_wk2")
    a("v_mov_b32 v10, 0")
    for r in range(12, 16): a(f"v_mov_b32 v{r}, 0")
    a("v_lshlrev_b32 v1, 2, v0")
    a("v_lshlrev_b32 v2, 4, v0")
    a("ds_write_b32 v1, v10")
    a(f"ds_write_b128 v2, v[12:15] offset:{L_ZERO}")
    if cfg.probe >= 10: a(f"ds_write_b32 v10, v10 offset:{L_PRB}")
    if cfg.local == 1:
        a("v_mov_b32 v11, 1")
        a(f"ds_write_b32 v10, v11 offset:{F_LM}")
    a.label("L_wk2")
    a("s_waitcnt lgkmcnt(0)")
    srd(12, 42, W_USED)
    srd(44, 16, 2048)
    srd(48, 34, 2048)
    a(f"s_sub_u32 s97, {S_W}, 5")
    a("s_and_b32 s97, s97, 1")
    a("s_lshl_b32 s90, s97, 10")
    a(f"s_and_b32 s94, {S_SPL}, 3")
    a("s_lshl_b32 s94, s94, 8")
    a("s_add_u32 s94, s94, s90")
    a("v_lshlrev_b32 v1, 4, v0")
    a("v_lshlrev_b32 v2, 2, v0")
    a(f"s_cmp_lt_u32 {S_W}, 5")
    a("s_cbranch_scc1 L_wk2b")
    a(f"s_cmp_eq_u32 {S_W}, 7")
    a("s_cbranch_scc1 L_wk2b")
    a("buffer_load_dword v9, v2, s[48:51], s94 offen")
    a("buffer_load_dwordx4 v[4:7], v1, s[44:47], s90 offen")
    a(f"s_lshr_b32 s94, {S_SPL}, 2")
    a("s_lshl_b32 s94, s94, 8")
    a("s_add_u32 s94, s94, s90")
    a("buffer_load_dword v8, v2, s[44:47], s94 offen")
    a.label("L_wk2b")
    a("v_mov_b32 v2, 0")
    a(f"buffer_load_dword v3, v2, {WSRD}, 0 offen sc1")
    a(f"s_cmp_lg_u32 {S_W}, 7")
    a("s_cbranch_scc1 L_wk3")
    if cfg.local == 2:
        srd(60, 40, 256)
        a("s_getreg_b32 s90, hwreg(HW_REG_XCC_ID)")
        a("s_and_b32 s90, s90, 7")
        a("s_mul_i32 s90, s90, 6")
        a("s_lshl_b64 s[26:27], 1, s90")
        a(f"s_lshl_b32 s91, {S_X}, 5")
        a("s_add_u32 s91, s91, 8")
        a("v_mov_b32 v18, s91")
        a("v_mov_b32 v16, s26")
        a("v_mov_b32 v17, s27")
        a("s_mov_b64 exec, 1")
        a("buffer_atomic_add_x2 v[16:17], v18, s[60:63], 0 offen sc1")
        a("s_mov_b64 exec, -1")
    if cfg.touch:
        sexpr("s90", [(S_BT, "shl", 26), (S_X, "shl", 23), (S_SP, "shl", 16)], 28672*256)
        a("s_load_dword s78, s[18:19], s90")
        a("s_load_dword s79, s[20:21], s90")
        a(f"s_lshr_b32 s91, {S_SPL}, 2")
        a("s_lshl_b32 s91, s91, 20")
        a("s_load_dword s80, s[22:23], s91")
        sexpr("s91", [(S_X, "shl", 19), (S_KQ, "shl", 17)])
        a("s_load_dword s81, s[24:25], s91")
        a(f"s_mul_i32 s91, {S_KQ}, {128*3584}")
        a("s_load_dword s82, s[28:29], s91")
        a("s_load_dword s83, s[30:31], s91")
        a(f"s_mul_i32 s91, {S_X}, {224*1024}")
        a("s_load_dword s84, s[32:33], s91")
        a("s_load_dword s85, s[38:39], 0")
    a.label("L_wk3")
    a("s_barrier")
    a(f"s_cmp_ge_u32 {S_W}, 4")
    a("s_cbranch_scc1 L_gwave")

    a.label("L_mwave")
    srd(56, 22, 512*4096*2)
    a("v_lshrrev_b32 v1, 4, v0")
    a("v_and_b32 v2, 15, v0")
    a("v_mov_b32 v4, 1")
    a("v_lshlrev_b32 v22, 1, v1")
    a("v_xor_b32 v22, v2, v22")
    a("v_lshlrev_b32 v22, 4, v22")
    a("v_lshl_add_u32 v26, v1, 13, v22")
    a("v_xor_b32 v27, 0x80, v26")
    a(f"s_lshr_b32 s90, {S_SPL}, 2")
    a(f"s_and_b32 s91, {S_SPL}, 3")
    sexpr("s96", [("s90", "shl", 20), (S_X, "shl", 10), ("s91", "shl", 8), (S_W, "shl", 18)])
    a("v_bfe_u32 v6, v2, 2, 1")
    a(f"v_mul_u32_u24 v6, {APITCH}, v6")
    a("v_lshl_add_u32 v6, v1, 4, v6")
    a("v_bfe_u32 v16, v0, 2, 2")
    a("v_and_b32 v17, 3, v0")
    a("v_lshl_add_u32 v18, v1, 3, v16")
    a("v_lshrrev_b32 v19, 1, v17")
    a("v_and_b32 v20, 1, v17")
    a("v_and_b32 v21, 1, v1")
    a("v_lshrrev_b32 v22, 1, v16")
    a("v_lshl_or_b32 v22, v21, 1, v22")
    a("v_lshlrev_b32 v22, 1, v22")
    a(f"s_lshl_b32 s90, {S_W}, 1")
    a("v_add_u32 v23, s90, v19")
    a("v_xor_b32 v23, v23, v22")
    a("v_lshlrev_b32 v7, 7, v18")
    a("v_lshl_add_u32 v7, v23, 4, v7")
    a("v_lshl_add_u32 v7, v20, 3, v7")
    a(f"s_and_b32 s90, {S_W}, 1")
    a("s_lshl_b32 s90, s90, 1")
    a("v_add_u32 v23, s90, v19")
    a("v_lshlrev_b32 v22, 1, v21")
    a("v_xor_b32 v23, v23, v22")
    a("v_lshlrev_b32 v12, 6, v18")
    a("v_lshl_add_u32 v12, v23, 4, v12")
    a("v_lshl_add_u32 v12, v20, 3, v12")
    a("v_lshl_or_b32 v22, v21, 2, v16")
    a("v_lshlrev_b32 v22, 1, v22")
    a(f"s_lshl_b32 s90, {S_W}, 2")
    a("v_add_u32 v23, s90, v19")
    a("v_xor_b32 v24, v23, v22")
    a("v_lshlrev_b32 v25, 8, v18")
    a("v_lshl_add_u32 v25, v20, 3, v25")
    a("v_lshl_add_u32 v13, v24, 4, v25")
    a("v_add_u32 v23, 2, v23")
    a("v_xor_b32 v24, v23, v22")
    a("v_lshl_add_u32 v14, v24, 4, v25")
    a("v_bfe_u32 v8, v0, 4, 1")
    a("v_lshlrev_b32 v9, 3, v2")
    O_MOD, O_Q, O_O, O_A4, O_GU, O_DN, O_ST, T_K, T_V = "s16", "s17", "s18", "s19", "s20", "s21", "s24", "s25", "s26"
    a(f"s_mul_i32 {T_K}, {S_B}, {KB_B + NK_B // 4 - NK_A // 4}")
    a(f"s_add_u32 {T_K}, {T_K}, {NK_A // 4}")
    a(f"s_mul_i32 {T_V}, {S_B}, {KB_B + NK_B // 2 - NK_A // 2}")
    a(f"s_add_u32 {T_V}, {T_V}, {NK_A // 2}")
    sexpr(O_O, [(S_X, "shl", 16), (S_BT, "shl", 13), (S_SP, "shl", 9), (S_W, "shl", 7)], W_O)
    sexpr(O_A4, [(S_CB, "shl", 14), (S_W, "shl", 12), (S_X, "shl", 8), (S_KQ, "shl", 6)], W_A4)
    a(f"s_add_u32 {O_DN}, {O_A4}, {W_DN - W_A4}")
    a(f"s_lshr_b32 s90, {S_W}, 1")
    a(f"s_and_b32 s91, {S_W}, 1")
    sexpr(O_GU, [(S_X, "shl", 15), ("s90", "shl", 14), (S_KQ, "shl", 11), (S_CB, "shl", 8), ("s91", "shl", 7)], W_GU)
    sexpr(O_ST, [(S_X, "shl", 11), (S_BT, "shl", 10), (S_SP, "shl", 4)], W_ST)
    a(f"s_and_b32 s90, {S_SPL}, 3")
    a(f"s_lshr_b32 s91, {S_SPL}, 2")
    sexpr(O_Q, [(S_X, "shl", 15), ("s90", "shl", 12), ("s91", "shl", 10), (S_W, "shl", 8)], W_Q)
    a(f"s_cmp_eq_u32 {S_B}, 0")
    a("s_cbranch_scc1 L_m_offA")
    a(f"s_lshr_b32 s90, {S_X}, 2")
    a(f"s_and_b32 s91, {S_X}, 3")
    a(f"s_lshr_b32 s97, {S_SPL}, 2")
    a(f"s_and_b32 s98, {S_SPL}, 3")
    a(f"s_and_b32 s99, {S_W}, 1")
    sexpr(O_MOD, [("s90", "shl", 15), ("s91", "shl", 12), ("s98", "shl", 10), ("s97", "shl", 8), ("s99", "shl", 7)], W_MOD)
    a("s_branch L_m_offE")
    a.label("L_m_offA")
    a(f"s_lshr_b32 s90, {S_X}, 1")
    a(f"s_and_b32 s91, {S_X}, 1")
    a("s_lshl_b32 s91, s91, 2")
    a(f"s_lshr_b32 s97, {S_SPL}, 2")
    a("s_add_u32 s91, s91, s97")
    a("s_lshr_b32 s97, s91, 1")
    a("s_and_b32 s91, s91, 1")
    a(f"s_and_b32 s98, {S_SPL}, 3")
    sexpr(O_MOD, [("s90", "shl", 15), ("s97", "shl", 12), ("s98", "shl", 10), ("s91", "shl", 9), (S_W, "shl", 7)], W_MOD + 2*32768)
    a.label("L_m_offE")
    a("s_waitcnt vmcnt(0)")
    get_tag()
    a("v_mov_b32 v3, 0")
    stamp(1)

    def loadB(vaddr, nk, kstride, hoff, base=16):
        for t in range(nk):
            a(f"ds_read_b64_tr_b16 v[{base+4*t}:{base+4*t+1}], {vaddr} offset:{t*kstride}")
            a(f"ds_read_b64_tr_b16 v[{base+4*t+2}:{base+4*t+3}], {vaddr} offset:{t*kstride+hoff}")

    def gemv(act_off, nk, bbase=16, second=None):
        for t in range(nk):
            a(f"ds_read_b128 v[{32+4*t}:{35+4*t}], v6 offset:{act_off+64*t}")
        for t in range(nk):
            a(f"s_waitcnt lgkmcnt({nk-1-t})")
            c = "0" if t == 0 else "v[48:51]"
            a(f"v_mfma_f32_16x16x32_bf16 v[48:51], v[{32+4*t}:{35+4*t}], v[{bbase+4*t}:{bbase+4*t+3}], {c}")
            if second is not None:
                c = "0" if t == 0 else "v[56:59]"
                a(f"v_mfma_f32_16x16x32_bf16 v[56:59], v[{32+4*t}:{35+4*t}], v[{second+4*t}:{second+4*t+3}], {c}")

    def publish(shift, soff, local=False, second=False):
        a(f"v_lshl_add_u32 v54, v8, {shift}, v9")
        a(f"v_mov_b32 v53, {S_TAG}")
        if second: a(f"v_mov_b32 v61, {S_TAG}")
        a("v_mov_b32 v52, v48")
        if second: a("v_mov_b32 v60, v56")
        a("s_mov_b32 exec_hi, 0")
        t1 = f"buffer_store_dwordx2 v[52:53], v54, {WSRD}, {soff} offen"
        t2 = f"buffer_store_dwordx2 v[60:61], v54, {WSRD}, {soff} offen offset:128"
        if local:
            store_loc(t1)
            if second: store_loc(t2)
        else:
            a(t1 + " sc1")
            if second: a(t2 + " sc1")
        a("s_mov_b32 exec_hi, -1")

    def publish_pair(soff):
        a("v_lshlrev_b32 v54, 11, v8")
        a("v_lshl_add_u32 v54, v2, 2, v54")
        a(f"v_mov_b32 v53, {S_TAG}")
        a("v_mov_b32_dpp v52, v48 quad_perm:[1,0,3,2] row_mask:0xf bank_mask:0xf")
        a("s_mov_b32 exec_lo, 0x55555555")
        a("s_mov_b32 exec_hi, 0")
        a("v_cvt_pk_bf16_f32 v52, v48, v52")
        a(f"buffer_store_dwordx2 v[52:53], v54, {WSRD}, {soff} offen sc1")
        a("s_mov_b64 exec, -1")

    a(f"s_cmp_lg_u32 {S_B}, 0")
    a("s_cbranch_scc1 L_m_B")
    spin_lds(F_1, 2, "v3", "v5")
    spin_lds(F_MRL, 1, "v3", "v5")
    a(f"v_add_u32 v10, {L_MR}, v7")
    loadB("v10", 4, 4096, 512)
    gemv(L_ACT1, 4)
    arrive(F_EC, "v3", "v4")
    publish(14, O_MOD)
    a("s_branch L_m_s3")
    a.label("L_m_B")
    a(f"s_lshl_b32 s90, {S_W}, 13")
    a(f"s_add_u32 m0, s90, {L_WQ}")
    a(f"s_cmp_lt_u32 {S_W}, 2")
    a("s_cbranch_scc1 L_m_s1")
    def wq_issue():
        for i in range(8):
            a(f"buffer_load_dwordx4 {'v26' if (i & 2) == 0 else 'v27'}, s[56:59], s96 offen nt lds")
            if i < 7:
                a(f"s_add_u32 s96, s96, {4*8192}")
                a("s_add_u32 m0, m0, 0x400")
    wq_issue()
    a("s_branch L_m_s2")
    a.label("L_m_s1")
    wq_issue()
    spin_lds(F_1, 2, "v3", "v5", sleep=False)
    spin_lds(F_LC, KB_B, "v3", "v5", sleep=False)
    a(f"v_add_u32 v10, {L_MODB}, v12")
    loadB("v10", 4, 2048, 256)
    gemv(L_ACT1, 4)
    publish(14, O_MOD)
    arrive(F_PM, "v3", "v4")
    stamp(2)
    a.label("L_m_s2")
    a("s_waitcnt vmcnt(0)")
    arrive(F_WQ, "v3", "v4")
    spin_lds(F_WQ, 4, "v3", "v5", sleep=False)
    a(f"v_add_u32 v10, {L_WQ}, v13")
    a(f"v_add_u32 v11, {L_WQ}, v14")
    loadB("v10", 4, 8192, 1024, base=16)
    loadB("v11", 4, 8192, 1024, base=64)
    get_mode("v3", "v5")
    a("s_waitcnt lgkmcnt(0)")
    arrive(F_EC, "v3", "v4")
    spin_lds(F_2, 2, "v3", "v5", sleep=False)
    gemv(L_ACT2, 4, bbase=16, second=64)
    publish(14, O_Q, local=True, second=True)
    arrive(F_PQ, "v3", "v4")
    stamp(3)
    mark(10, "v3")
    a.label("L_m_s3")
    get_mode("v3", "v5")
    T_ST, T_N = "s27", "s28"
    a(f"s_sub_u32 s90, 4, {S_B}")
    a(f"s_mul_i32 {T_ST}, {S_W}, s90")
    a(f"s_min_u32 s91, {S_W}, 2")
    a(f"s_add_u32 {T_ST}, {T_ST}, s91")
    a(f"s_cmp_lt_u32 {S_W}, 2")
    a(f"s_addc_u32 {T_N}, s90, 0")
    a("s_mov_b64 s[30:31], -1")
    a(f"s_cmp_eq_u32 {T_N}, 3")
    a("s_cselect_b32 s31, 0xffff, s31")
    a("s_mov_b32 s33, 0")
    a(f"s_cmp_eq_u32 {T_N}, 5")
    a("s_cselect_b32 s32, 0xffff, 0")
    a("v_xor_b32 v10, v1, v2")
    a("v_lshlrev_b32 v10, 4, v10")
    a("v_lshl_add_u32 v10, v2, 8, v10")
    a(f"s_lshl_b32 s90, {T_ST}, 12")
    a(f"s_add_u32 s90, s90, {L_K}")
    a("v_add_u32 v56, s90, v10")
    a("v_xor_b32 v57, 64, v56")
    a("v_xor_b32 v58, 0x80, v56")
    a("v_xor_b32 v59, 0xc0, v56")
    a("v_and_b32 v10, 3, v2")
    a(f"v_mul_u32_u24 v10, {APITCH}, v10")
    a("v_lshl_add_u32 v10, v1, 4, v10")
    a(f"v_add_u32 v10, {L_Q}, v10")
    a("v_lshlrev_b32 v11, 4, v1")
    a(f"v_add_u32 v11, {L_ZERO}, v11")
    a("v_lshrrev_b32 v15, 2, v2")
    for tt in range(4):
        a(f"v_cmp_eq_u32 vcc, {tt}, v15")
        a(f"v_cndmask_b32 v{60+tt}, v11, v10, vcc")
    for r in range(4): a(f"v_mov_b32 v{52+r}, 0")
    NEG = "s29"
    a(f"s_mov_b32 {NEG}, 0xff800000")
    spin_lds(F_3, 2, "v3", "v5")
    spin_lds(F_LC, T_K, "v3", "v5", sleep=False)
    stamp(4)
    mark(11, "v3")
    def qk_reads(tt, base, slot=None):
        slot = tt if slot is None else slot
        for t in range(4):
            a(f"ds_read_b128 v[{base+4*t}:{base+4*t+3}], v{60+slot} offset:{64*t}")
            a(f"ds_read_b128 v[{base+16+4*t}:{base+16+4*t+3}], v{56+t} offset:{4096*tt}")
    def qk_mfma(b, acc, first):
        for t in range(4):
            c = "0" if (first and t == 0) else acc
            a(f"v_mfma_f32_16x16x32_bf16 {acc}, v[{b+4*t}:{b+4*t+3}], v[{b+16+4*t}:{b+16+4*t+3}], {c}")
    qk_reads(0, 16)
    qk_reads(1, 68)
    a("s_waitcnt lgkmcnt(8)")
    qk_mfma(16, "v[48:51]", True)
    qk_reads(2, 16)
    a("s_waitcnt lgkmcnt(8)")
    qk_mfma(68, "v[48:51]", False)
    a(f"s_cmp_eq_u32 {T_N}, 3")
    a("s_cbranch_scc1 L_qk_n3")
    qk_reads(3, 68)
    a("s_waitcnt lgkmcnt(8)")
    qk_mfma(16, "v[48:51]", False)
    a(f"s_cmp_eq_u32 {T_N}, 5")
    a("s_cbranch_scc1 L_qk_n5")
    a("s_waitcnt lgkmcnt(0)")
    qk_mfma(68, "v[48:51]", False)
    a("s_branch L_qk_done")
    a.label("L_qk_n5")
    qk_reads(4, 16, slot=0)
    a("s_waitcnt lgkmcnt(8)")
    qk_mfma(68, "v[48:51]", False)
    a("s_waitcnt lgkmcnt(0)")
    qk_mfma(16, "v[52:55]", True)
    a("s_branch L_qk_done")
    a.label("L_qk_n3")
    a("s_waitcnt lgkmcnt(0)")
    qk_mfma(16, "v[48:51]", False)
    a.label("L_qk_done")
    arrive(F_KC, "v3", "v4")
    a("s_nop 7")
    a(f"s_mov_b32 s94, {SCALE:#x}")
    for (d, sr) in ((16, 48), (20, 52)):
        bf16r2(f"v{d}", f"v{d+1}", f"v{sr}", f"v{sr+1}", "v32")
        bf16r2(f"v{d+2}", f"v{d+3}", f"v{sr+2}", f"v{sr+3}", "v33")
    for r in range(8): a(f"v_mul_f32 v{16+r}, s94, v{16+r}")
    for d in (16, 20):
        bf16r2(f"v{d}", f"v{d+1}", f"v{d}", f"v{d+1}", "v32")
        bf16r2(f"v{d+2}", f"v{d+3}", f"v{d+2}", f"v{d+3}", "v33")
    a(f"v_mov_b32 v34, {NEG}")
    for r in range(4): a(f"v_cndmask_b32 v{16+r}, v34, v{16+r}, s[30:31]")
    for r in range(4): a(f"v_cndmask_b32 v{20+r}, v34, v{20+r}, s[32:33]")
    for r in range(4): a(f"v_max_f32 v{24+r}, v{16+r}, v{20+r}")
    allreduce(["v24", "v25", "v26", "v27"], "v_max_f32", ["v28", "v29", "v30", "v31"], FULL)
    a(f"s_lshl_b32 s90, {S_W}, 4")
    a("v_mov_b32 v10, s90")
    a("s_mov_b64 s[92:93], exec")
    a("s_mov_b64 exec, 1")
    a(f"ds_write_b128 v10, v[24:27] offset:{L_MX}")
    a(f"ds_add_u32 v3, v4 offset:{F_MB1}")
    a("s_mov_b64 exec, s[92:93]")
    spin_lds(F_MB1, 4, "v3", "v5", sleep=False)
    for w in range(4):
        a(f"ds_read_b128 v[{32+4*w}:{35+4*w}], v3 offset:{L_MX+16*w}")
    a("s_waitcnt lgkmcnt(0)")
    for r in range(4):
        a(f"v_max_f32 v{24+r}, v{32+r}, v{36+r}")
        a(f"v_max_f32 v{28+r}, v{40+r}, v{44+r}")
    for r in range(4):
        a(f"v_max_f32 v{24+r}, v{24+r}, v{28+r}")
    a(f"s_mov_b32 s94, {LOG2E:#x}")
    for r in range(8): a(f"v_sub_f32 v{16+r}, v{16+r}, v{24+(r&3)}")
    for r in range(8): a(f"v_mul_f32 v{16+r}, s94, v{16+r}")
    for r in range(8): a(f"v_exp_f32 v{16+r}, v{16+r}")
    a("v_cvt_pk_bf16_f32 v28, v16, v17")
    a("v_cvt_pk_bf16_f32 v29, v18, v19")
    a("v_cvt_pk_bf16_f32 v30, v20, v21")
    a("v_cvt_pk_bf16_f32 v31, v22, v23")
    a(f"s_lshl_b32 s90, {T_ST}, 5")
    a(f"s_add_u32 s90, s90, {L_P}")
    a("v_lshl_add_u32 v10, v0, 1, s90")
    a("s_mov_b64 exec, s[30:31]")
    a("ds_write_b16 v10, v28")
    a(f"ds_write_b16_d16_hi v10, v28 offset:{PPITCH}")
    a(f"ds_write_b16 v10, v29 offset:{2*PPITCH}")
    a(f"ds_write_b16_d16_hi v10, v29 offset:{3*PPITCH}")
    a(f"s_cmp_lg_u32 {T_N}, 5")
    a("s_cbranch_scc1 L_p_w1")
    a("s_mov_b64 exec, s[32:33]")
    a("ds_write_b16 v10, v30 offset:128")
    a(f"ds_write_b16_d16_hi v10, v30 offset:{PPITCH+128}")
    a(f"ds_write_b16 v10, v31 offset:{2*PPITCH+128}")
    a(f"ds_write_b16_d16_hi v10, v31 offset:{3*PPITCH+128}")
    a.label("L_p_w1")
    a("s_mov_b64 exec, -1")
    for r in range(4): a(f"v_add_f32 v{16+r}, v{16+r}, v{20+r}")
    allreduce(["v16", "v17", "v18", "v19"], "v_add_f32", ["v28", "v29", "v30", "v31"], FULL)
    a(f"s_lshl_b32 s90, {S_W}, 4")
    a("v_mov_b32 v10, s90")
    a("s_mov_b64 s[92:93], exec")
    a("s_mov_b64 exec, 1")
    a(f"ds_write_b128 v10, v[16:19] offset:{L_LS}")
    a(f"ds_add_u32 v3, v4 offset:{F_MB2}")
    a("s_mov_b64 exec, s[92:93]")
    spin_lds(F_MB2, 4, "v3", "v5", sleep=False)
    a(f"s_cmp_lg_u32 {S_W}, 0")
    a("s_cbranch_scc1 L_m_pv")
    a("v_lshlrev_b32 v10, 2, v0")
    a("s_mov_b64 exec, 15")
    for w in range(4):
        a(f"ds_read_b32 v{16+w}, v10 offset:{L_LS+16*w}")
        a(f"ds_read_b32 v{20+w}, v10 offset:{L_MX+16*w}")
    a("s_waitcnt lgkmcnt(0)")
    a("v_add_f32 v16, v16, v17")
    a("v_add_f32 v18, v18, v19")
    a("v_max_f32 v20, v20, v21")
    a("v_max_f32 v22, v22, v23")
    a("v_add_f32 v26, v16, v18")
    a("v_max_f32 v24, v20, v22")
    a(f"v_mov_b32 v25, {S_TAG}")
    a(f"v_mov_b32 v27, {S_TAG}")
    a("v_lshlrev_b32 v10, 8, v0")
    store_loc(f"buffer_store_dwordx4 v[24:27], v10, {WSRD}, {O_ST} offen")
    a("s_mov_b64 exec, -1")
    a.label("L_m_pv")
    stamp(5)
    a("v_lshrrev_b32 v10, 2, v2")
    a(f"v_mul_u32_u24 v10, {PPITCH}, v10")
    a("v_lshl_add_u32 v10, v1, 4, v10")
    a(f"v_add_u32 v60, {L_P}, v10")
    a(f"v_add_u32 v61, {L_V}, v13")
    a(f"v_add_u32 v62, {L_V}, v14")
    a("v_lshl_add_u32 v63, v1, 14, v9")
    a(f"v_mov_b32 v65, {S_TAG}")
    for r in range(8): a(f"v_mov_b32 v{48+r}, 0")
    a(f"s_add_u32 s95, {T_K}, 8")
    a("s_mov_b32 s96, -1000")
    a.label("L_pv_loop")
    a("s_cmp_ge_i32 s96, s95")
    a("s_cbranch_scc1 L_pv_go")
    a.label("L_pv_spin")
    a(f"ds_read_b32 v5, v3 offset:{F_LC}")
    a("s_waitcnt lgkmcnt(0)")
    a("v_readfirstlane_b32 s96, v5")
    a("s_cmp_ge_i32 s96, s95")
    a("s_cbranch_scc1 L_pv_go")
    timeout()
    a("s_branch L_pv_spin")
    a.label("L_pv_go")
    a("ds_read_b128 v[16:19], v60")
    a("ds_read_b64_tr_b16 v[20:21], v61")
    a("ds_read_b64_tr_b16 v[22:23], v61 offset:1024")
    a("ds_read_b64_tr_b16 v[24:25], v62")
    a("ds_read_b64_tr_b16 v[26:27], v62 offset:1024")
    a("v_add_u32 v60, 64, v60")
    a("v_add_u32 v61, 0x2000, v61")
    a("v_add_u32 v62, 0x2000, v62")
    a("s_add_u32 s95, s95, 8")
    a("s_waitcnt lgkmcnt(2)")
    a("v_mfma_f32_16x16x32_bf16 v[48:51], v[16:19], v[20:23], v[48:51]")
    a("s_waitcnt lgkmcnt(0)")
    a("v_mfma_f32_16x16x32_bf16 v[52:55], v[16:19], v[24:27], v[52:55]")
    a(f"s_cmp_le_i32 s95, {T_V}")
    a("s_cbranch_scc1 L_pv_loop")
    stamp(6)
    a("s_nop 4")
    a("v_cvt_pk_bf16_f32 v64, v48, v52")
    store_loc(f"buffer_store_dwordx2 v[64:65], v63, {WSRD}, {O_O} offen")
    arrive(F_PO, "v3", "v4")
    stamp(7)
    mark(12, "v3")
    spin_lds(F_WOL, 1, "v3", "v5", sleep=False)
    a(f"v_add_u32 v10, {L_WO}, v7")
    loadB("v10", 4, 4096, 512)
    a("s_waitcnt lgkmcnt(0)")
    a("s_barrier")
    gemv(L_ACT4, 4)
    publish_pair(O_A4)
    arrive(F_PA, "v3", "v4")
    stamp(8)
    mark(13, "v3")
    spin_lds(F_LATE, 1, "v3", "v5")
    a(f"v_add_u32 v10, {L_DN}, v7")
    loadB("v10", 2, 4096, 512, base=64)
    a(f"s_lshr_b32 s90, {S_W}, 1")
    a("s_lshl_b32 s90, s90, 13")
    a(f"s_add_u32 s90, s90, {L_G}")
    a("v_add_u32 v11, s90, v12")
    loadB("v11", 4, 2048, 256)
    a("s_waitcnt lgkmcnt(0)")
    a("s_barrier")
    a(f"s_cmp_eq_u32 {S_CB}, 7")
    a("s_cbranch_scc1 L_m_s7")
    gemv(L_ACT6, 4)
    publish(13, O_GU, local=True)
    a.label("L_m_s7")
    arrive(F_PG, "v3", "v4")
    stamp(9)
    a("s_barrier")
    gemv(L_ACT7, 2, bbase=64)
    publish_pair(O_DN)
    arrive(F_PD, "v3", "v4")
    stamp(10)
    mark(15, "v3")
    dump_stamps(11)
    a("s_endpgm")

    def r1_block(uid, vz):
        a(f"s_sub_u32 s90, {S_W}, 4")
        a("s_lshr_b32 s91, s90, 1")
        a("s_and_b32 s94, s90, 1")
        a("s_lshl_b32 s99, s94, 8")
        a(f"s_lshl_b32 s100, {S_X}, 16")
        a("s_add_u32 s99, s99, s100")
        a(f"s_lshl_b32 s100, {S_KQ}, 14")
        a("s_add_u32 s99, s99, s100")
        a("s_lshl_b32 s100, s91, 13")
        a("s_add_u32 s99, s99, s100")
        a(f"s_add_u32 s99, s99, {W_O}")
        a(f"s_lshl_b32 s100, {S_X}, 11")
        a("s_lshl_b32 s90, s91, 10")
        a("s_add_u32 s100, s100, s90")
        a(f"s_lshl_b32 s90, {S_KQ}, 8")
        a("s_add_u32 s100, s100, s90")
        a(f"s_add_u32 s100, s100, {W_ST}")
        a("v_lshrrev_b32 v48, 5, v0")
        a("v_and_b32 v49, 31, v0")
        a("v_lshlrev_b32 v50, 12, v48")
        a("v_lshl_add_u32 v50, v49, 3, v50")
        a("v_and_b32 v51, 7, v0")
        a("v_lshl_add_u32 v51, v48, 3, v51")
        a("v_lshlrev_b32 v51, 4, v51")
        a(f"s_mul_i32 s91, s91, {APITCH}")
        a("s_lshl_b32 s94, s94, 7")
        a("s_add_u32 s91, s91, s94")
        a("v_bfe_u32 v52, v0, 4, 1")
        a("v_lshlrev_b32 v52, 6, v52")
        a("v_and_b32 v53, 15, v0")
        a("v_lshl_add_u32 v52, v53, 1, v52")
        a("v_lshl_add_u32 v52, v48, 5, v52")
        a("v_add_u32 v52, s91, v52")
        loads = [f"buffer_load_dwordx4 v[32:35], v51, {WSRD}, s100 offen sc1"]; tags = ["v33", "v35"]
        for i in range(8):
            loads.append(f"buffer_load_dwordx2 v[{16+2*i}:{17+2*i}], v50, {WSRD}, s99 offen offset:{512*i} sc1")
            tags.append(f"v{17+2*i}")
        after_own(F_PO, 4, vz, "v54", cfg.d_r1)
        stamp(7 if uid != "q" else 4)
        poll(loads, tags, "v54")
        if uid == "q": stamp(10)
        a("v_mov_b32 v55, v32")
        allreduce(["v55"], "v_max_f32", ["v56"], ["x1", "x2", "x4", "x32"])
        a(f"s_mov_b32 s94, {LOG2E:#x}")
        a("v_sub_f32 v56, v32, v55")
        for i in range(4): a(f"v_lshlrev_b32 v{36+2*i}, 16, v{16+2*i}"); a(f"v_and_b32 v{37+2*i}, 0xffff0000, v{16+2*i}")
        a("v_mul_f32 v56, s94, v56")
        a("v_exp_f32 v56, v56")
        for i in range(4, 8): a(f"v_lshlrev_b32 v{36+2*i}, 16, v{16+2*i}"); a(f"v_and_b32 v{37+2*i}, 0xffff0000, v{16+2*i}")
        a("v_mul_f32 v57, v56, v34")
        allreduce(["v57"], "v_add_f32", ["v58"], ["x1", "x2", "x4", "x32"])
        a("v_rcp_f32 v57, v57")
        a("v_mov_b32 v58, 0")
        a("v_mov_b32 v59, 0")
        a("v_mul_f32 v56, v56, v57")
        for i in range(8):
            a(f"v_fmac_f32_dpp v58, v56, v{36+2*i} row_newbcast:{i} row_mask:0xf bank_mask:0xf")
            a(f"v_fmac_f32_dpp v59, v56, v{37+2*i} row_newbcast:{i} row_mask:0xf bank_mask:0xf")
        a("v_permlane32_swap_b32 v58, v59")
        a("v_add_f32 v58, v58, v59")
        a("v_cvt_pk_bf16_f32 v58, v58, v58")
        a(f"ds_write_b16 v52, v58 offset:{L_ACT4}")
        a("s_waitcnt lgkmcnt(0)")

    a.label("L_gwave")
    a(f"s_cmp_eq_u32 {S_W}, 4")
    a("s_cbranch_scc1 L_slice")
    a(f"s_cmp_eq_u32 {S_W}, 7")
    a("s_cbranch_scc1 L_aux")

    SB = "s97"
    a("v_lshlrev_b32 v2, 2, v0")
    a("v_mov_b32 v10, 1")
    a(f"s_mul_i32 s98, {SB}, {APITCH}")
    a("v_add_u32 v11, s98, v2")
    a("v_mov_b32 v19, 0")
    a("s_waitcnt vmcnt(0)")
    stamp(1)
    a("v_lshlrev_b32 v12, 16, v9")
    a("v_and_b32 v13, 0xffff0000, v9")
    a(f"s_mov_b32 s94, {LOG2E:#x}")
    for r in (12, 13): a(f"v_mul_f32 v{r+2}, s94, v{r}")
    for r in (12, 13): a(f"v_exp_f32 v{r+2}, -v{r+2}")
    for r in (12, 13): a(f"v_add_f32 v{r+2}, 1.0, v{r+2}")
    for r in (12, 13): a(f"v_rcp_f32 v{r+2}, v{r+2}")
    for r in (12, 13): a(f"v_mul_f32 v{r}, v{r}, v{r+2}")
    a("v_cvt_pk_bf16_f32 v12, v12, v13")
    a(f"ds_write_b32 v11, v12 offset:{L_ACT1}")
    arrive(F_1, "v19", "v10")
    get_tag()
    a("v_mov_b32 v3, 0")

    def ln_finish(mean, var, x0, x1, tmp):
        bf16r2(mean, var, mean, var, tmp)
        a(f"s_mov_b32 s94, {EPS:#x}")
        a(f"v_add_f32 {var}, s94, {var}")
        bf16r1(var, var)
        a(f"v_sqrt_f32 {var}, {var}")
        a(f"v_sub_f32 {x0}, {x0}, {mean}")
        a(f"v_sub_f32 {x1}, {x1}, {mean}")
        bf16r1(var, var)
        a(f"v_rcp_f32 {var}, {var}")
        bf16r2(x0, x1, x0, x1, tmp)
        a(f"v_mul_f32 {x0}, {x0}, {var}")
        a(f"v_mul_f32 {x1}, {x1}, {var}")
        bf16r2(x0, x1, x0, x1, tmp)

    def quarter_gather(chunkA, chunkB, qreg, pre=None, sample=False):
        for (ch, sreg) in ((chunkA, "s90"), (chunkB, "s99")):
            sexpr(sreg, [(SB, "shl", 14), (qreg, "shl", 12)], W_MOD + ch*32768)
        loads = []; tags = []
        for i in range(4):
            loads.append(f"buffer_load_dwordx4 v[{16+4*i}:{19+4*i}], v1, {WSRD}, s90 offen offset:{1024*i} sc1")
            loads.append(f"buffer_load_dwordx4 v[{32+4*i}:{35+4*i}], v1, {WSRD}, s99 offen offset:{1024*i} sc1")
            tags += [f"v{17+4*i}", f"v{19+4*i}", f"v{33+4*i}", f"v{35+4*i}"]
        if pre: pre()
        poll(loads, tags, "v50", sample=sample)
        for (base, d0, d1) in ((16, "v14", "v15"), (32, "v48", "v49")):
            a(f"v_add_f32 {d0}, v{base}, v{base+4}")
            a(f"v_add_f32 {d1}, v{base+2}, v{base+6}")
            a(f"v_add_f32 v50, v{base+8}, v{base+12}")
            a(f"v_add_f32 v51, v{base+10}, v{base+14}")
            a(f"v_add_f32 {d0}, {d0}, v50")
            a(f"v_add_f32 {d1}, {d1}, v51")
            bf16r2(d0, d1, d0, d1, "v50")

    def modulate(x0, x1, sc0, sc1, sh0, sh1, dst, tmp):
        a(f"v_mul_f32 {x0}, {x0}, {sc0}")
        a(f"v_mul_f32 {x1}, {x1}, {sc1}")
        bf16r2(x0, x1, x0, x1, tmp)
        a(f"v_add_f32 {x0}, {x0}, {sh0}")
        a(f"v_add_f32 {x1}, {x1}, {sh1}")
        a(f"v_cvt_pk_bf16_f32 {dst}, {x0}, {x1}")

    a(f"s_cmp_eq_u32 {S_B}, 0")
    a("s_cbranch_scc1 L_q_qg")
    for i in range(4):
        a(f"v_lshlrev_b32 v{16+2*i}, 16, v{4+i}")
        a(f"v_and_b32 v{17+2*i}, 0xffff0000, v{4+i}")
    a("v_add_f32 v24, v16, v17")
    a("v_add_f32 v25, v18, v19")
    a("v_add_f32 v26, v20, v21")
    a("v_add_f32 v27, v22, v23")
    a("v_add_f32 v24, v24, v25")
    a("v_add_f32 v26, v26, v27")
    a("v_add_f32 v24, v24, v26")
    allreduce(["v24"], "v_add_f32", ["v28"], FULL)
    a(f"s_mov_b32 s94, {INV512:#x}")
    a("v_mul_f32 v24, s94, v24")
    for i in range(8): a(f"v_sub_f32 v{16+i}, v{16+i}, v24")
    a("v_mul_f32 v25, v16, v16")
    for i in range(1, 8): a(f"v_fmac_f32 v25, v{16+i}, v{16+i}")
    allreduce(["v25"], "v_add_f32", ["v28"], FULL)
    a("v_mul_f32 v25, s94, v25")
    a("v_lshlrev_b32 v12, 16, v8")
    a("v_and_b32 v13, 0xffff0000, v8")
    ln_finish("v24", "v25", "v12", "v13", "v28")
    a(f"s_lshr_b32 s100, {S_SPL}, 2")
    quarter_gather(0, 1, "s100", pre=lambda: after_own(F_PM, 2, "v3", "v50", cfg.d_h))
    a("v_add_f32 v48, 1.0, v48")
    a("v_add_f32 v49, 1.0, v49")
    bf16r2("v48", "v49", "v48", "v49", "v50")
    modulate("v12", "v13", "v48", "v49", "v14", "v15", "v16", "v50")
    a(f"ds_write_b32 v11, v16 offset:{L_ACT2}")
    arrive(F_2, "v3", "v10")
    stamp(2)
    a.label("L_q_qg")
    sexpr("s90", [(S_X, "shl", 15), (S_BT, "shl", 14), (SB, "shl", 13)], W_Q)
    a("s_add_u32 s99, s90, 4096")
    a(f"s_mul_i32 s100, {SB}, {2*APITCH}")
    a("v_add_u32 v54, s100, v2")
    loads = []; tags = []
    for i in range(4):
        loads.append(f"buffer_load_dwordx4 v[{16+4*i}:{19+4*i}], v1, {WSRD}, s90 offen offset:{1024*i} sc1")
        loads.append(f"buffer_load_dwordx4 v[{32+4*i}:{35+4*i}], v1, {WSRD}, s99 offen offset:{1024*i} sc1")
        tags += [f"v{17+4*i}", f"v{19+4*i}", f"v{33+4*i}", f"v{35+4*i}"]
    a(f"s_cmp_eq_u32 {S_B}, 0")
    a("s_cbranch_scc1 L_q_qA")
    after_own(F_PQ, 4, "v3", "v50", cfg.d_q)
    poll(loads, tags, "v50")
    a("s_branch L_q_qE")
    a.label("L_q_qA")
    if cfg.quiet: spin_lds(F_LC, cfg.quiet, "v3", "v50")
    poll(loads, tags, "v50", sample=(not cfg.quiet), sleep=cfg.qsl)
    a.label("L_q_qE")
    for (base, hh) in ((16, 0), (32, 1)):
        a(f"v_add_f32 v48, v{base}, v{base+4}")
        a(f"v_add_f32 v49, v{base+2}, v{base+6}")
        a(f"v_add_f32 v50, v{base+8}, v{base+12}")
        a(f"v_add_f32 v51, v{base+10}, v{base+14}")
        a("v_add_f32 v48, v48, v50")
        a("v_add_f32 v49, v49, v51")
        a(f"v_cvt_pk_bf16_f32 v{52+hh}, v48, v49")
    a(f"ds_write_b32 v54, v52 offset:{L_Q}")
    a(f"ds_write_b32 v54, v53 offset:{L_Q+APITCH}")
    arrive(F_3, "v3", "v10")
    stamp(3)
    sexpr("s90", [(SB, "shl", 11), (S_KQ, "shl", 9)], W_MODF + 3*4096)
    a("s_add_u32 s99, s90, 4096")
    a("v_lshlrev_b32 v54, 3, v0")
    poll([f"buffer_load_dwordx2 v[16:17], v54, {WSRD}, s90 offen sc1",
          f"buffer_load_dwordx2 v[18:19], v54, {WSRD}, s99 offen sc1"], ["v17", "v19"], "v50", sleep=8)
    a("v_lshlrev_b32 v66, 16, v16")
    a("v_and_b32 v67, 0xffff0000, v16")
    a("v_lshlrev_b32 v48, 16, v18")
    a("v_and_b32 v49, 0xffff0000, v18")
    a("v_add_f32 v48, 1.0, v48")
    a("v_add_f32 v49, 1.0, v49")
    bf16r2("v64", "v65", "v48", "v49", "v50")
    r1_block("q", "v3")
    stamp(5)
    a("s_barrier")
    sexpr("s99", [(S_X, "shl", 10), (SB, "shl", 9)], W_X1S)
    sexpr("s90", [(S_X, "shl", 12), (SB, "shl", 11), (S_KQ, "shl", 9)], W_X1P)
    a("v_lshlrev_b32 v16, 3, v0")
    a("v_and_b32 v17, 31, v0")
    a("v_lshlrev_b32 v17, 4, v17")
    after_own(F_PX, 1, "v3", "v50", cfg.d_x1)
    stamp(8)
    poll([f"buffer_load_dwordx4 v[24:27], v17, {WSRD}, s99 offen sc1",
          f"buffer_load_dwordx2 v[20:21], v16, {WSRD}, s90 offen sc1"], ["v21", "v25", "v27"], "v50")
    stamp(9)
    allreduce(["v24", "v26"], "v_add_f32", ["v28", "v29"], ["x1", "x2", "x4", "x8", "x16"])
    a(f"s_mov_b32 s94, {INV512:#x}")
    a("v_mul_f32 v24, s94, v24")
    a("v_mul_f32 v26, s94, v26")
    a("v_lshlrev_b32 v12, 16, v20")
    a("v_fma_f32 v26, -v24, v24, v26")
    a("v_and_b32 v13, 0xffff0000, v20")
    a("v_max_f32 v26, 0, v26")
    ln_finish("v24", "v26", "v12", "v13", "v30")
    modulate("v12", "v13", "v64", "v65", "v66", "v67", "v16", "v30")
    a(f"ds_write_b32 v11, v16 offset:{L_ACT6}")
    a(f"s_mul_i32 s94, {S_KQ}, 448")
    sexpr("s90", [(S_X, "shl", 15), (SB, "shl", 13), ("s94", "shl", 0)], W_GU, tmp="s99")
    a("s_add_u32 s94, s90, 4096")
    a("s_add_u32 s99, s90, 16384")
    a("s_add_u32 s100, s90, 20480")
    a("s_waitcnt lgkmcnt(0)")
    stamp(6)
    a("s_barrier")
    a("v_lshlrev_b32 v16, 3, v0")
    a("v_mov_b32 v40, 0")
    a("v_lshlrev_b32 v17, 1, v0")
    a("v_add_u32 v17, s98, v17")
    a("s_mov_b32 exec_lo, -1")
    a("s_mov_b32 exec_hi, 0x00ffffff")
    loads = []; tags = []
    for wh in range(2):
        for k6 in range(4):
            sr = [["s90", "s94"], ["s99", "s100"]][wh][k6 >> 1]
            rb = 20 + 8*wh + 2*k6
            loads.append(f"buffer_load_dwordx2 v[{rb}:{rb+1}], v16, {WSRD}, {sr} offen offset:{2048*(k6&1)} sc1")
            tags.append(f"v{rb+1}")
    after_own(F_PG, 4, "v3", "v50", cfg.d_gu)
    poll(loads, tags, "v50")
    a("v_add_f32 v36, v20, v22")
    a("v_add_f32 v37, v24, v26")
    a("v_add_f32 v38, v28, v30")
    a("v_add_f32 v39, v32, v34")
    a("v_add_f32 v36, v36, v37")
    a("v_add_f32 v38, v38, v39")
    bf16r2("v36", "v38", "v36", "v38", "v50")
    a("v_mul_f32 v36, v36, v38")
    a("v_cvt_pk_bf16_f32 v40, v36, v36")
    a("s_mov_b64 exec, -1")
    a(f"ds_write_b16 v17, v40 offset:{L_ACT7}")
    a("s_waitcnt lgkmcnt(0)")
    stamp(7)
    a("s_barrier")
    dump_stamps(11)
    a("s_endpgm")

    a.label("L_slice")
    srd(48, 38, 2048)
    a("v_lshlrev_b32 v7, 4, v0")
    a("v_and_b32 v1, 3, v0")
    a("v_bfe_u32 v2, v0, 4, 1")
    a("v_bfe_u32 v4, v0, 3, 1")
    a("v_lshrrev_b32 v5, 5, v0")
    a("v_lshlrev_b32 v6, 2, v1")
    a("v_lshl_add_u32 v6, v2, 1, v6")
    a("v_add_u32 v6, v6, v4")
    a("v_lshlrev_b32 v8, 10, v5")
    a("v_lshl_add_u32 v8, v6, 1, v8")
    a(f"s_lshl_b32 s90, {S_LOC}, 5")
    a("buffer_load_ushort v9, v8, s[44:47], s90 offen")
    a("v_lshlrev_b32 v10, 4, v5")
    a("v_add_u32 v10, v10, v6")
    a("v_lshlrev_b32 v10, 2, v10")
    a("v_lshlrev_b32 v11, 1, v1")
    a("v_add_u32 v11, v11, v2")
    a("v_lshlrev_b32 v12, 11, v5")
    a("v_lshl_add_u32 v98, v11, 3, v12")
    a("v_lshlrev_b32 v99, 9, v5")
    a("v_lshlrev_b32 v12, 10, v5")
    a("v_lshl_add_u32 v97, v11, 2, v12")
    sexpr("s22", [(S_X, "shl", 12), (S_LOC, "shl", 6)], W_X1P)
    sexpr("s23", [(S_X, "shl", 10), (S_LOC, "shl", 4)], W_X1S)
    a(f"s_lshl_b32 s24, {S_LOC}, 5")
    a(f"s_lshl_b32 s17, {S_LOC}, 12")
    a("v_cmp_eq_u32 s[26:27], 1, v4")
    a("v_mov_b32 v100, 0x3f80")
    a("v_mov_b32 v101, 0x3f800000")
    a("s_waitcnt vmcnt(0)")
    get_tag()
    a("v_mov_b32 v3, 0")
    a("v_lshlrev_b32 v102, 16, v9")
    get_mode("v3", "v20")
    stamp(1)

    def part_loads(base):
        a(f"s_add_u32 s20, s17, {base}")
        loads = []; tags = []
        for i in range(4):
            rb = 16 + 4*i
            loads.append(f"buffer_load_dwordx4 v[{rb}:{rb+3}], v7, {WSRD}, s20 offen offset:{1024*i} sc1")
            tags += [f"v{rb+1}", f"v{rb+3}"]
        return loads, tags
    def part_loads_atomic(base):
        a(f"s_add_u32 s20, s17, {base}")
        loads = []; tags = []
        for r in range(16, 32): loads.append(f"v_mov_b32 v{r}, 0")
        for i in range(4):
            rb = 16 + 4*i
            for hh in range(2):
                loads.append(f"buffer_atomic_add_x2 v[{rb+2*hh}:{rb+2*hh+1}], v7, {WSRD}, s20 offen offset:{1024*i + 8*hh} sc0 sc1")
            tags += [f"v{rb+1}", f"v{rb+3}"]
        return loads, tags
    def part_sum():
        for b in range(2):
            for (k, (off, sel)) in enumerate(((0, "v100"), (0, "v101"), (2, "v100"), (2, "v101"))):
                a(f"v_dot2_f32_bf16 v{32+4*b+k}, v{16+8*b+off}, {sel}, 0")
        for b in range(2):
            for (k, (off, sel)) in enumerate(((0, "v100"), (0, "v101"), (2, "v100"), (2, "v101"))):
                a(f"v_dot2_f32_bf16 v{32+4*b+k}, v{20+8*b+off}, {sel}, v{32+4*b+k}")
        for c in range(4): a(f"v_permlane32_swap_b32 v{32+c}, v{36+c}")
        for c in range(4): a(f"v_add_f32 v{32+c}, v{32+c}, v{36+c}")
        a("v_permlane16_swap_b32 v32, v34")
        a("v_permlane16_swap_b32 v33, v35")
        a("v_add_f32 v32, v32, v34")
        a("v_add_f32 v33, v33, v35")
        a("v_cndmask_b32 v36, v32, v33, s[26:27]")
        a("v_cndmask_b32 v37, v33, v32, s[26:27]")
        a("v_add_f32_dpp v36, v37, v36 row_ror:8 row_mask:0xf bank_mask:0xf")
        a("v_add_f32_dpp v40, v36, v36 row_shl:4 row_mask:0xf bank_mask:0x5")
        a("v_add_f32_dpp v40, v36, v36 row_shr:4 row_mask:0xf bank_mask:0xa")
    def resid(gate):
        bf16r1("v40", "v40")
        a(f"v_mul_f32 v40, v40, {gate}")
        bf16r1("v40", "v40")
        a("v_add_f32 v102, v102, v40")
        bf16r1("v102", "v102")
    def make_pair(dst):
        a("v_mov_b32_dpp v41, v102 row_ror:8 row_mask:0xf bank_mask:0xf")
        a(f"v_cvt_pk_bf16_f32 {dst}, v102, v41")
    PUBM = "0x000f000f"

    l1, t1 = part_loads(W_A4)
    spin_lds(F_GA, 1, "v3", "v15")
    a(f"ds_read_b32 v103, v10 offset:{L_GA}")
    a(f"ds_read_b32 v104, v10 offset:{L_GB}")
    a("s_waitcnt lgkmcnt(0)")
    r1_block("s", "v3")
    a(f"v_mov_b32 v43, {S_TAG}")
    a(f"v_mov_b32 v45, {S_TAG}")
    a(f"v_mov_b32 v47, {S_TAG}")
    a("s_barrier")
    after_own(F_PA, 4, "v3", "v15", cfg.d_s5)
    stamp(2)
    poll(l1, t1, "v15")
    stamp(3)
    part_sum()
    resid("v103")
    make_pair("v42")
    a("v_mul_f32 v46, v102, v102")
    a("v_mov_b32 v44, v102")
    a(f"s_mov_b32 exec_lo, {PUBM}")
    a(f"s_mov_b32 exec_hi, {PUBM}")
    store_loc(f"buffer_store_dwordx2 v[42:43], v98, {WSRD}, s22 offen")
    a("s_mov_b64 exec, -1")
    allreduce(["v44", "v46"], "v_add_f32", ["v48", "v49"], ["x1", "x2", "r8", "x16"])
    a("s_mov_b32 exec_lo, 1")
    a("s_mov_b32 exec_hi, 1")
    store_loc(f"buffer_store_dwordx4 v[44:47], v99, {WSRD}, s23 offen")
    a("s_mov_b64 exec, -1")
    a("v_mov_b32 v15, 1")
    arrive(F_PX, "v3", "v15")
    stamp(4)
    mark(14, "v3")
    a(f"s_and_b32 s90, {S_LOC}, 7")
    a(f"s_cmp_lg_u32 s90, {S_X}")
    a("s_cbranch_scc1 L_slice_nf")
    a("s_barrier")
    a("s_barrier")
    l1, t1 = part_loads_atomic(W_DN) if cfg.atom8 else part_loads(W_DN)
    after_own(F_PD, 4, "v3", "v15", cfg.d_s8)
    poll(l1, t1, "v15")
    part_sum()
    resid("v104")
    make_pair("v42")
    a(f"s_mov_b32 exec_lo, {PUBM}")
    a(f"s_mov_b32 exec_hi, {PUBM}")
    a("buffer_store_dword v42, v97, s[48:51], s24 offen")
    a(f"s_cmp_lg_u32 {S_WG}, 0")
    a("s_cbranch_scc1 L_slice_end")
    a("s_mov_b64 exec, 1")
    a(f"v_mov_b32 v24, {S_EP}")
    a("v_mov_b32 v21, 0")
    a(f"buffer_store_dword v24, v21, {WSRD}, 0 offen sc1")
    a.label("L_slice_end")
    if cfg.probe == 1:
        a("s_sleep 94")
        a("s_sleep 94")
    if cfg.probe >= 10:
        a(f"ds_read_b32 v20, v3 offset:{L_PRB}")
        a("s_waitcnt lgkmcnt(0)")
        a("v_readfirstlane_b32 s22, v20")
        a("s_mov_b32 s24, 100000")
        a.label("L_probe")
        a("s_memrealtime s[20:21]")
        a("s_waitcnt lgkmcnt(0)")
        a("s_sub_u32 s24, s24, 1")
        a("s_cbranch_scc1 L_probe_e")
        a("s_sub_u32 s23, s20, s22")
        a("s_cmp_lt_u32 s23, 2000")
        a("s_cbranch_scc1 L_probe")
        a.label("L_probe_e")
    if cfg.probe == 3:
        a("s_add_u32 s22, s62, 2500")
        a.label("L_probe")
        a("s_memrealtime s[20:21]")
        a("s_waitcnt lgkmcnt(0)")
        a("s_sub_u32 s23, s20, s22")
        a("s_cmp_lt_i32 s23, 0")
        a("s_cbranch_scc1 L_probe")
    if cfg.probe == 2:
        a("s_memrealtime s[20:21]")
        a("s_waitcnt lgkmcnt(0)")
        a("s_add_u32 s22, s20, 500")
        a.label("L_probe")
        a("s_memrealtime s[20:21]")
        a("s_waitcnt lgkmcnt(0)")
        a("s_sub_u32 s23, s20, s22")
        a("s_cmp_lt_i32 s23, 0")
        a("s_cbranch_scc1 L_probe")
    a("s_mov_b64 exec, -1")
    stamp(5)
    dump_stamps(6)
    a("s_endpgm")
    a.label("L_slice_nf")
    a("s_barrier")
    a("s_barrier")
    dump_stamps(5)
    a("s_endpgm")

    a.label("L_aux")
    srd(44, 28, 512*1792*2)
    srd(48, 30, 512*1792*2)
    srd(52, 32, 1792*512*2)
    a("v_mov_b32 v10, 1")
    sexpr("s18", [(S_X, "mul", 224*1024), (S_KQ, "mul", 56*1024), (S_CB, "shl", 7)])
    sexpr("s19", [(S_KQ, "mul", 128*3584), (S_X, "mul", 448), (S_CB, "shl", 6)])
    a("s_waitcnt vmcnt(0)")
    get_tag()
    strip_voff(3584, "v64")
    unit_voffs(pitch_shift=10, d0="v66", d1="v67")
    a("v_mov_b32 v3, 0")
    stamp(1)
    if cfg.local == 2:
        L = a.newlabel("Lxc"); E = a.newlabel("Lxce")
        srd(60, 40, 256)
        a(f"s_lshl_b32 s91, {S_X}, 5")
        a("s_add_u32 s91, s91, 8")
        a("v_mov_b32 v18, s91")
        a("s_getreg_b32 s90, hwreg(HW_REG_XCC_ID)")
        a("s_and_b32 s90, s90, 7")
        a("s_mul_i32 s90, s90, 6")
        a("s_lshl_b64 s[26:27], 1, s90")
        a("s_mov_b64 exec, 1")
        a.label(L)
        a("buffer_load_dwordx2 v[20:21], v18, s[60:63], 0 offen sc1")
        a("s_waitcnt vmcnt(0)")
        a("v_readfirstlane_b32 s20, v20")
        a("v_readfirstlane_b32 s21, v21")
        a("s_mov_b64 s[22:23], s[20:21]")
        a("s_mov_b32 s90, 0")
        for k in range(8):
            a("s_and_b32 s91, s22, 63")
            a("s_add_u32 s90, s90, s91")
            if k < 7: a("s_lshr_b64 s[22:23], s[22:23], 6")
        a("s_cmp_ge_u32 s90, 32")
        a(f"s_cbranch_scc1 {E}")
        timeout()
        a("s_sleep 2")
        a(f"s_branch {L}")
        a.label(E)
        a("s_lshl_b64 s[22:23], s[26:27], 5")
        a("s_cmp_eq_u64 s[20:21], s[22:23]")
        a("s_cselect_b32 s90, 1, 2")
        a("v_mov_b32 v16, s90")
        a(f"ds_write_b32 v3, v16 offset:{F_LM}")
        a("s_mov_b64 exec, -1")
    stamp(2)
    a(f"s_cmp_lg_u32 {S_B}, 0")
    a("s_cbranch_scc1 L_aux_ga")
    a(f"s_lshr_b32 s90, {S_X}, 1")
    a(f"s_and_b32 s91, {S_X}, 1")
    a(f"s_lshr_b32 s22, {S_SPL}, 2")
    a(f"s_and_b32 s23, {S_SPL}, 3")
    sexpr("s20", [("s90", "shl", 15), ("s91", "shl", 14), ("s22", "shl", 12), ("s23", "shl", 8)], W_MOD + 2*32768)
    sexpr("s21", [("s90", "shl", 12), ("s91", "shl", 11), (S_SPL, "shl", 7)], W_MODF + 2*4096)
    a("v_lshlrev_b32 v18, 3, v0")
    a("s_mov_b32 exec_hi, 0")
    loads = []; tags = []
    for i in range(4):
        loads.append(f"buffer_load_dwordx2 v[{40+2*i}:{41+2*i}], v18, {WSRD}, s20 offen offset:{1024*i} sc1")
        tags.append(f"v{41+2*i}")
    poll(loads, tags, "v60", sleep=6, sample=True)
    a("v_add_f32 v40, v40, v42")
    a("v_add_f32 v44, v44, v46")
    a("v_add_f32 v40, v40, v44")
    a("v_lshlrev_b32 v18, 2, v0")
    a(f"v_mov_b32 v43, {S_TAG}")
    a("v_mov_b32_dpp v42, v40 quad_perm:[1,0,3,2] row_mask:0xf bank_mask:0xf")
    a("s_mov_b32 exec_lo, 0x55555555")
    a("v_cvt_pk_bf16_f32 v42, v40, v42")
    a(f"buffer_store_dwordx2 v[42:43], v18, {WSRD}, s21 offen sc1")
    a("s_mov_b64 exec, -1")
    a.label("L_aux_ga")
    sexpr("s20", [(S_LOC, "shl", 6)], W_MODF + 2*4096)
    a(f"s_add_u32 s21, s20, {3*4096}")
    a("v_bfe_u32 v16, v0, 3, 1")
    a("v_and_b32 v17, 7, v0")
    a("v_lshlrev_b32 v18, 11, v16")
    a("v_lshl_add_u32 v18, v17, 3, v18")
    a("v_and_b32 v19, 15, v0")
    a("v_lshlrev_b32 v19, 3, v19")
    a("s_mov_b64 exec, 0xffff")
    poll([f"buffer_load_dwordx2 v[40:41], v18, {WSRD}, s20 offen sc1",
          f"buffer_load_dwordx2 v[42:43], v18, {WSRD}, s21 offen sc1"], ["v41", "v43"], "v60", sleep=8)
    a("v_lshlrev_b32 v44, 16, v40")
    a("v_and_b32 v45, 0xffff0000, v40")
    a("v_lshlrev_b32 v46, 16, v42")
    a("v_and_b32 v47, 0xffff0000, v42")
    a(f"ds_write_b64 v19, v[44:45] offset:{L_GA}")
    a(f"ds_write_b64 v19, v[46:47] offset:{L_GB}")
    a("s_mov_b64 exec, -1")
    arrive(F_GA, "v3", "v10")
    r1_block("a", "v3")
    a("s_barrier")
    spin_lds(F_PA, 4, "v3", "v50", sleep=False)
    a(f"s_cmp_eq_u32 {S_CB}, 7")
    a("s_cbranch_scc1 L_aux_dn")
    a(f"s_mov_b32 m0, {L_G}")
    a("s_mov_b32 s99, 8")
    a.label("L_aux_gu")
    a("buffer_load_dwordx4 v64, s[44:47], s19 offen nt lds")
    a("s_add_u32 m0, m0, 0x2000")
    a("s_nop 0")
    a("buffer_load_dwordx4 v64, s[48:51], s19 offen nt lds")
    a("s_sub_u32 m0, m0, 0x1c00")
    a(f"s_add_u32 s19, s19, {16*3584}")
    a("s_sub_u32 s99, s99, 1")
    a("s_cmp_lg_u32 s99, 0")
    a("s_cbranch_scc1 L_aux_gu")
    a.label("L_aux_dn")
    a(f"s_mov_b32 m0, {L_DN}")
    a("s_nop 0")
    for i in range(8):
        a(f"buffer_load_dwordx4 v{66 + (i&1)}, s[52:55], s18 offen nt lds")
        a("s_add_u32 m0, m0, 0x400")
        a("s_add_u32 s18, s18, 0x2000")
    a("s_waitcnt vmcnt(0)")
    arrive(F_LATE, "v3", "v10")
    stamp(3)
    a("s_barrier")
    a("s_barrier")
    dump_stamps(4)
    a("s_endpgm")

    a.label("L_abort")
    a("s_mov_b64 exec, 1")
    a("v_mov_b32 v1, 0")
    a(f"s_lshl_b32 s90, {S_WG}, 16")
    a("s_or_b32 s90, s90, s1") if cfg.site else None
    a("v_mov_b32 v2, s90")
    a(f"s_and_b32 s90, {S_W}, 1")
    a("s_lshl_b32 s90, s90, 2")
    a("v_mov_b32 v1, s90")
    a("v_or_b32 v2, 0xde000000, v2")
    a("s_mov_b32 s44, s40")
    a("s_and_b32 s45, s41, 0xffff")
    a("s_mov_b32 s46, 256")
    a("s_mov_b32 s47, 0x20000")
    a("buffer_store_dword v2, v1, s[44:47], 0 offen")
    a.label("L_end")
    a("s_endpgm")

    hdr = open(f"cdna_kernels/{NAME}.s.ref").read().split("; Override launch")[0]
    out = hdr
    out += f"; @launch grid=(256,1,1) block=(576,1,1) lds={L_TOTAL}\n"
    out += '.amdgcn_target "amdgcn-amd-amdhsa--gfx950"\n.text\n'
    out += f".globl {NAME}_kernel\n.p2align 8\n.type {NAME}_kernel,@function\n"
    out += a.text()
    out += f""".section .rodata,"a"
.p2align 6
.amdhsa_kernel {NAME}_kernel
  .amdhsa_next_free_vgpr 128
  .amdhsa_next_free_sgpr 102
  .amdhsa_accum_offset 128
  .amdhsa_group_segment_fixed_size 0
  .amdhsa_kernarg_size 112
  .amdhsa_user_sgpr_count 2
  .amdhsa_user_sgpr_kernarg_segment_ptr 1
  .amdhsa_system_sgpr_workgroup_id_x 1
.end_amdhsa_kernel
"""
    return out

if __name__ == "__main__":
    cfg = Cfg()
    outp = sys.argv[1]
    for arg in sys.argv[2:]:
        k, v = arg.split("=")
        assert hasattr(cfg, k), k
        setattr(cfg, k, int(v))
    open(outp, "w").write(gen(cfg))
    print("wrote", outp)
```

```python
import sys
from asmlib import Asm

NAME = "adaLN_cond__sliding_block_cached__glu_gated_bilinear__decode"

class Cfg:
    D = 40
    DA = 28
    stamps = 0
    spin = 1 << 20
    rsl = 1
    local = 2
    touch = 1
    wq1 = 4
    quiet = 0
    prio = 0
    qsl = 4
    kstart = 1
    d_h = 4
    d_q = 1
    d_r1 = 1
    d_s5 = 8
    d_x1 = 1
    d_gu = 1
    d_s8 = 2
    atom8 = 1
    probe = 0
    site = 0

(F_LC, F_1, F_2, F_3, F_EC, F_KC, F_MB1, F_MB2, F_LATE, F_PO, F_PA, F_PX, F_PG, F_PD,
 F_PM, F_PQ, F_XC, F_WQ, F_WOL, F_MRL, F_LM, F_GA) = [4*i for i in range(22)]
L_MX = 128; L_LS = 192; L_ZERO = 256
L_ACT1 = 768; L_ACT2 = 1344; L_ACT4 = 1920; L_ACT6 = 2496; L_ACT7 = 3072
L_PRB = 7424
L_GA = 7168; L_GB = 7296
L_Q = 3648
L_P = 4736
L_X = 8192; L_C = 10240
L_K = 12288; L_V = L_K + 73728; L_TOTAL = L_V + 73728; L_MR = L_V + 57344
NK_A = 288; NK_B = 160
L_MODB = L_K; L_WQ = L_V
L_WO = L_K; L_G = L_K + 16384; L_U = L_K + 24576; L_DN = L_K + 32768
APITCH = 272; PPITCH = 592

W_EPOCH = 0
W_MOD = 0x1000
W_MODF = 0x38000
W_Q = 0x40000
W_ST = 0x80000
W_O = 0x90000
W_A4 = 0x110000
W_X1P = 0x150000
W_X1S = 0x158000
W_GU = 0x160000
W_DN = 0x1A0000
W_STAMP = 0x200000
W_USED = 0x300000

LOG2E = 0x3fb8aa3b
SCALE = 0x3db504f3
EPS = 0x3727c5ac
INV512 = 0x3b000000

S_WG, S_W, S_X, S_LOC, S_B, S_SPL, S_KQ, S_CB, S_TAG, S_SPIN = "s2", "s3", "s4", "s5", "s6", "s7", "s8", "s9", "s10", "s11"
S_U = "s7"
S_BT = "s86"
S_SP = "s87"
WSRD = "s[12:15]"
S_EP = "s89"
S_LM = "s88"
PX = "s[42:43]"
S_PH = "s101"
KB_B = 16

def gen(cfg):
    a = Asm()
    D = cfg.D

    def srd(dst, plo, size):
        a(f"s_mov_b32 s{dst}, s{plo}")
        a(f"s_and_b32 s{dst+1}, s{plo+1}, 0xffff")
        a(f"s_mov_b32 s{dst+2}, {size}")
        a(f"s_mov_b32 s{dst+3}, 0x20000")

    def stamp(k):
        if cfg.stamps: a(f"s_memrealtime s[{64+2*k}:{65+2*k}]")

    def mark(pid, vz):
        if cfg.probe == pid:
            a("s_memrealtime s[62:63]")
            a("s_waitcnt lgkmcnt(0)")
            a("v_mov_b32 v127, s62")
            a(f"ds_max_u32 {vz}, v127 offset:{L_PRB}")

    def dump_stamps(n):
        if not cfg.stamps: return
        a("s_waitcnt lgkmcnt(0)")
        a(f"s_mul_i32 s90, {S_WG}, 9")
        a(f"s_add_u32 s90, s90, {S_W}")
        a("s_lshl_b32 s90, s90, 7")
        a(f"s_add_u32 s90, s90, {W_STAMP}")
        a("s_mov_b64 exec, 1")
        a("v_mov_b32 v1, 0")
        for k in range(n):
            a(f"v_mov_b32 v2, s{64+2*k}")
            a(f"v_mov_b32 v3, s{65+2*k}")
            a(f"buffer_store_dwordx2 v[2:3], v1, {WSRD}, s90 offen offset:{8*k}")
            a("s_nop 1")
        a("s_waitcnt vmcnt(0)")

    sites = [0]
    def timeout():
        if cfg.site:
            sites[0] += 1
            a(f"s_mov_b32 s1, {sites[0]}")
        a(f"s_sub_u32 {S_SPIN}, {S_SPIN}, 1")
        a("s_cbranch_scc1 L_abort")

    def spin_lds(off, n, vz, vt, sleep=True):
        L = a.newlabel("Lsp"); E = a.newlabel("Lspe")
        a.label(L)
        a(f"ds_read_b32 {vt}, {vz} offset:{off}")
        a("s_waitcnt lgkmcnt(0)")
        a(f"v_readfirstlane_b32 s91, {vt}")
        a(f"s_cmp_ge_i32 s91, {n}")
        a(f"s_cbranch_scc1 {E}")
        timeout()
        if sleep: a("s_sleep 1")
        a(f"s_branch {L}")
        a.label(E)

    def arrive(off, vz, vone):
        a("s_mov_b64 s[92:93], exec")
        a("s_mov_b64 exec, 1")
        a(f"ds_add_u32 {vz}, {vone} offset:{off}")
        a("s_mov_b64 exec, s[92:93]")

    def poll(loads, tags, vacc, sleep=None, sample=False):
        if sleep is None: sleep = cfg.rsl
        L = a.newlabel("Lpl"); E = a.newlabel("Lple"); R = a.newlabel("Lplr")
        a(f"s_mov_b64 {PX}, exec")
        if sample:
            a(f"s_mov_b32 {S_PH}, 0")
            a("s_mov_b64 exec, 1")
        a.label(L)
        for ld in loads: a(ld)
        a("s_waitcnt vmcnt(0)")
        a(f"v_xor_b32 {vacc}, {S_TAG}, {tags[0]}")
        for t in tags[1:]:
            a(f"v_bitop3_b32 {vacc}, {vacc}, {t}, {S_TAG} bitop3:0xf6")
        a(f"v_cmp_ne_u32 vcc, 0, {vacc}")
        if sample:
            a(f"s_cbranch_vccnz {R}")
            a(f"s_cmp_lg_u32 {S_PH}, 0")
            a(f"s_cbranch_scc1 {E}")
            a(f"s_mov_b32 {S_PH}, 1")
            a(f"s_mov_b64 exec, {PX}")
            a(f"s_branch {L}")
            a.label(R)
        else:
            a(f"s_cbranch_vccz {E}")
        a("s_mov_b64 exec, vcc")
        timeout()
        if sleep: a(f"s_sleep {sleep}")
        a(f"s_branch {L}")
        a.label(E)
        a(f"s_mov_b64 exec, {PX}")

    def after_own(flag, n, vz, vt, dly):
        spin_lds(flag, n, vz, vt, sleep=False)
        if dly: a(f"s_sleep {dly}")

    def get_mode(vz, vt):
        if cfg.local == 2:
            spin_lds(F_LM, 1, vz, vt)
            a(f"s_mov_b32 {S_LM}, s91")

    def store_loc(text):
        if cfg.local == 0: a(text + " sc1")
        elif cfg.local == 1: a(text)
        else:
            P = a.newlabel("Lst"); E = a.newlabel("Lste")
            a(f"s_cmp_eq_u32 {S_LM}, 1")
            a(f"s_cbranch_scc1 {P}")
            a(text + " sc1")
            a(f"s_branch {E}")
            a.label(P)
            a(text)
            a.label(E)

    def bf16r2(d0, d1, s0, s1, tmp):
        a(f"v_cvt_pk_bf16_f32 {tmp}, {s0}, {s1}")
        a(f"v_lshlrev_b32 {d0}, 16, {tmp}")
        a(f"v_and_b32 {d1}, 0xffff0000, {tmp}")

    def bf16r1(d, s):
        a(f"v_cvt_pk_bf16_f32 {d}, {s}, {s}")
        a(f"v_lshlrev_b32 {d}, 16, {d}")

    def allreduce(regs, op, tmps, steps):
        dpp = {"x1": "quad_perm:[1,0,3,2]", "x2": "quad_perm:[2,3,0,1]", "x4": "row_half_mirror", "x8": "row_mirror", "r8": "row_ror:8", "r4": "row_ror:4"}
        for s in steps:
            if s in dpp:
                for r in regs:
                    a(f"{op}_dpp {r}, {r}, {r} {dpp[s]} row_mask:0xf bank_mask:0xf")
            else:
                ins = "v_permlane16_swap_b32" if s == "x16" else "v_permlane32_swap_b32"
                for r, t in zip(regs, tmps): a(f"v_mov_b32 {t}, {r}")
                for r, t in zip(regs, tmps): a(f"{ins} {r}, {t}")
                for r, t in zip(regs, tmps): a(f"{op} {r}, {r}, {t}")
    FULL = ["x1", "x2", "x4", "x8", "x16", "x32"]

    def sexpr(dst, terms, const=0, tmp="s94"):
        first = True
        for (reg, kind, n) in terms:
            tgt = dst if first else tmp
            if kind == "shl":
                if n == 0: a(f"s_mov_b32 {tgt}, {reg}")
                else: a(f"s_lshl_b32 {tgt}, {reg}, {n}")
            else: a(f"s_mul_i32 {tgt}, {reg}, {n}")
            if not first: a(f"s_add_u32 {dst}, {dst}, {tmp}")
            first = False
        if const: a(f"s_add_u32 {dst}, {dst}, {const}")

    def get_tag():
        a(f"v_readfirstlane_b32 {S_EP}, v3")
        a(f"s_add_u32 {S_EP}, {S_EP}, 1")
        a(f"s_mul_i32 {S_TAG}, {S_EP}, 0x9E3779B1")

    def unit_voffs(pitch_shift=None, pitch=None, d0="v24", d1="v25"):
        a("v_lshrrev_b32 v3, 3, v0")
        a("v_bfe_u32 v4, v0, 4, 1")
        a("v_lshlrev_b32 v4, 1, v4")
        a("v_and_b32 v5, 7, v0")
        a("v_xor_b32 v4, v4, v5")
        a("v_lshlrev_b32 v4, 4, v4")
        if pitch_shift is not None: a(f"v_lshlrev_b32 v6, {pitch_shift}, v3")
        else: a(f"v_mul_u32_u24 v6, {pitch}, v3")
        a(f"v_add_u32 {d0}, v6, v4")
        a(f"v_xor_b32 {d1}, 64, {d0}")

    def strip_voff(pitch, d):
        a("v_lshrrev_b32 v6, 2, v0")
        a(f"v_mul_u32_u24 {d}, {pitch}, v6")
        a("v_bfe_u32 v6, v0, 5, 1")
        a("v_lshlrev_b32 v6, 1, v6")
        a("v_and_b32 v7, 3, v0")
        a("v_xor_b32 v6, v6, v7")
        a(f"v_lshl_add_u32 {d}, v6, 4, {d}")

    a.label(f"{NAME}_kernel")
    a(f"s_cmp_ge_u32 {S_WG}, 256")
    a("s_cbranch_scc1 L_end")
    a("s_load_dwordx16 s[16:31], s[0:1], 0")
    a("s_load_dwordx8 s[32:39], s[0:1], 64")
    a("s_load_dwordx4 s[40:43], s[0:1], 96")
    stamp(0)
    if cfg.probe == 3: a("s_memrealtime s[62:63]")
    a("v_lshrrev_b32 v1, 6, v0")
    a("v_and_b32 v0, 63, v0")
    a(f"v_readfirstlane_b32 {S_W}, v1")
    a(f"s_and_b32 {S_X}, {S_WG}, 7")
    a(f"s_lshr_b32 {S_LOC}, {S_WG}, 3")
    a(f"s_cmp_lt_u32 {S_LOC}, 8")
    a(f"s_cselect_b32 {S_B}, 1, 0")
    a(f"s_cselect_b32 s90, 0, 8")
    a(f"s_sub_u32 {S_SPL}, {S_LOC}, s90")
    a(f"s_cselect_b32 s91, 4, 12") if False else None
    a(f"s_cmp_lt_u32 {S_LOC}, 8")
    a(f"s_cselect_b32 s91, 4, 12")
    a(f"s_cselect_b32 s94, 0, 4")
    a(f"s_cmp_ge_u32 {S_SPL}, s91")
    a(f"s_cselect_b32 {S_BT}, 1, 0")
    a(f"s_mul_i32 s90, {S_BT}, s91")
    a(f"s_sub_u32 {S_SP}, {S_SPL}, s90")
    a(f"s_add_u32 {S_SP}, {S_SP}, s94")
    a(f"s_lshr_b32 {S_KQ}, {S_LOC}, 3")
    a(f"s_and_b32 {S_CB}, {S_LOC}, 7")
    a(f"s_mov_b32 {S_SPIN}, {cfg.spin}")
    a(f"s_mov_b32 {S_LM}, {1 if cfg.local == 1 else 2}")
    a(f"s_cmp_lg_u32 {S_W}, 8")
    a("s_cbranch_scc1 L_worker")

    SLC = "s95"; SOFF = "s96"
    unit_voffs(pitch=6144, d0="v20", d1="v21")
    a(f"s_and_b32 s90, {S_SPL}, 3")
    a(f"s_mul_i32 {SOFF}, s90, {128*6144}")
    a(f"s_lshl_b32 s90, {S_X}, 8")
    a(f"s_add_u32 {SOFF}, {SOFF}, s90")
    a(f"s_lshr_b32 s90, {S_SPL}, 2")
    a("s_lshl_b32 s90, s90, 7")
    a(f"s_add_u32 {SOFF}, {SOFF}, s90")
    a(f"s_mov_b32 m0, {L_MODB}")
    a("s_waitcnt lgkmcnt(0)")
    srd(44, 36, 512*3072*2)
    a(f"s_cmp_eq_u32 {S_B}, 0")
    a("s_cbranch_scc1 L_ld_nomod")
    for i in range(16):
        a(f"buffer_load_dwordx4 v{20 + (i&1)}, s[44:47], {SOFF} offen nt lds")
        if i < 15:
            a(f"s_add_u32 {SOFF}, {SOFF}, {8*6144}")
            a("s_add_u32 m0, m0, 0x400")
    a.label("L_ld_nomod")
    if cfg.prio: a("s_setprio 3")
    a("s_barrier")
    stamp(1)
    srd(12, 42, W_USED)
    srd(52, 18, 2*8*32768*128*2)
    srd(56, 20, 2*8*32768*128*2)
    srd(60, 24, 4096*512*2)
    a("v_mov_b32 v10, 0")
    a("v_lshrrev_b32 v3, 4, v0")
    a("v_and_b32 v4, 15, v0")
    a("v_xor_b32 v5, v4, v3")
    a("v_lshlrev_b32 v5, 4, v5")
    a("v_lshl_add_u32 v26, v3, 8, v5")
    a("v_xor_b32 v27, 64, v26")
    a("v_xor_b32 v28, 0x80, v26")
    a("v_xor_b32 v29, 0xc0, v26")
    a("v_lshlrev_b32 v5, 1, v3")
    a("v_xor_b32 v5, v4, v5")
    a("v_lshlrev_b32 v5, 4, v5")
    a("v_lshl_add_u32 v30, v3, 8, v5")
    a("v_xor_b32 v31, 0x80, v30")
    a(f"s_mul_i32 s91, {S_B}, {(NK_B - NK_A) * 256}")
    a(f"s_add_u32 s91, s91, {NK_A * 256}")
    a(f"s_mul_i32 s90, {S_SP}, s91")
    a(f"s_mul_i32 s91, {S_B}, {512 * 256}")
    a("s_add_u32 s90, s90, s91")
    sexpr("s98", [(S_BT, "shl", 26), (S_X, "shl", 23), ("s90", "shl", 0)], (28672 - 512) * 256)
    unit_voffs(pitch_shift=10)

    def lc_write(val, off=F_LC):
        a(f"v_mov_b32 v11, {val}")
        a(f"ds_write_b32 v10, v11 offset:{off}")
    def seg(name, variants, srdn, step, iters, ldsbase):
        a(f"s_mov_b32 m0, {ldsbase}")
        a(f"s_mov_b32 s97, {iters}")
        a.label(name)
        for v in variants:
            a(f"buffer_load_dwordx4 {v}, s[{srdn}:{srdn+3}], {SOFF} offen nt lds")
            a(f"s_add_u32 {SOFF}, {SOFF}, {step}")
            a("s_add_u32 m0, m0, 0x400")
        a("s_sub_u32 s97, s97, 1")
        a("s_cmp_lg_u32 s97, 0")
        a(f"s_cbranch_scc1 {name}")
    def drain(end, ks):
        for k in ks:
            a(f"s_waitcnt vmcnt({k})")
            lc_write(end - k)
    def seg4(name, variants, srdn, iters, ldsbase, D=D):
        if ldsbase is not None: a(f"s_mov_b32 m0, {ldsbase}")
        a(f"s_mov_b32 s97, {iters}")
        a.label(name)
        for i, v in enumerate(variants):
            a(f"buffer_load_dwordx4 {v}, s[{srdn}:{srdn+3}], {SOFF} offen offset:{1024*i} nt lds")
        a(f"s_add_u32 {SOFF}, {SOFF}, 0x1000")
        a("s_add_u32 m0, m0, 0x1000")
        a(f"s_add_u32 {SLC}, {SLC}, 4")
        a(f"v_mov_b32 v11, {SLC}")
        a(f"s_waitcnt vmcnt({D-4})")
        a(f"ds_write_b32 v10, v11 offset:{F_LC}")
        a("s_sub_u32 s97, s97, 1")
        a("s_cmp_lg_u32 s97, 0")
        a(f"s_cbranch_scc1 {name}")
    WO_OFF = [(S_X, "shl", 19), (S_KQ, "shl", 17), (S_CB, "shl", 7)]

    a(f"s_cmp_eq_u32 {S_B}, 0")
    a("s_cbranch_scc1 L_ld_A")
    a("s_waitcnt vmcnt(0)")
    lc_write(KB_B)
    if cfg.kstart == 0:
        spin_lds(F_EC, 4, "v10", "v12")
        spin_lds(F_3, 2, "v10", "v12", sleep=False)
    elif cfg.kstart == 1:
        spin_lds(F_PQ, 4, "v10", "v12", sleep=False)
    else:
        pass
    stamp(2)
    a(f"s_mov_b32 {SLC}, {KB_B - (D - 4)}")
    a(f"s_mov_b32 {SOFF}, s98")
    seg4("L_ld_kB", ["v26", "v27", "v28", "v29"], 52, NK_B // 16, L_K)
    a(f"s_mov_b32 {SOFF}, s98")
    seg4("L_ld_vB", ["v30", "v30", "v31", "v31"], 56, NK_B // 16, L_V)
    stamp(3)
    sexpr(SOFF, WO_OFF)
    a(f"ds_read_b32 v12, v10 offset:{F_KC}")
    a("s_waitcnt lgkmcnt(0)")
    a("v_readfirstlane_b32 s91, v12")
    a("s_cmp_ge_i32 s91, 4")
    a("s_cbranch_scc0 L_ld_Bslow")
    seg("L_ld_woB", ["v24", "v25"], 60, 8192, 8, L_WO)
    drain(KB_B + NK_B // 2 + 16, [k for k in (48, 40, 32, 24, 16) if k < D + 12])
    stamp(4)
    a("s_branch L_ld_fin")
    a.label("L_ld_Bslow")
    drain(KB_B + NK_B // 2, [k for k in (32, 24, 16, 8) if k < D - 4] + [0])
    stamp(4)
    spin_lds(F_KC, 4, "v10", "v12")
    seg("L_ld_woB2", ["v24", "v25"], 60, 8192, 8, L_WO)
    a.label("L_ld_fin")
    a("s_waitcnt vmcnt(0)")
    lc_write(1, F_WOL)
    stamp(5)
    dump_stamps(6)
    a("s_endpgm")
    a.label("L_ld_A")
    DA = cfg.DA
    a(f"s_and_b32 s90, {S_SPL}, 3")
    a(f"s_mul_i32 {SOFF}, s90, {128*6144}")
    a(f"s_lshr_b32 s90, {S_SPL}, 2")
    a(f"s_lshl_b32 s94, {S_X}, 2")
    a("s_add_u32 s90, s90, s94")
    a("s_add_u32 s90, s90, 16")
    a("s_lshl_b32 s90, s90, 7")
    a(f"s_add_u32 {SOFF}, {SOFF}, s90")
    spin_lds(F_1, 2, "v10", "v12", sleep=False)
    a(f"s_cmp_ge_u32 {S_SPL}, 16")
    a("s_cbranch_scc1 L_ld_nomr")
    seg("L_ld_mr", ["v20", "v21"], 44, 8*6144, 8, L_MR)
    a.label("L_ld_nomr")
    a(f"s_mov_b32 {SLC}, {-(DA - 4)}")
    a(f"s_mov_b32 {SOFF}, s98")
    n0 = (DA - 4 + 3) // 4
    assert 0 < n0 < NK_A // 16
    seg4("L_ld_kA0", ["v26", "v27", "v28", "v29"], 52, n0, L_K, DA)
    lc_write(1, F_MRL)
    seg4("L_ld_kA", ["v26", "v27", "v28", "v29"], 52, NK_A // 16 - n0, None, DA)
    stamp(2)
    a(f"s_mov_b32 {SOFF}, s98")
    seg4("L_ld_vA", ["v30", "v30", "v31", "v31"], 56, NK_A // 16 - 4, L_V, DA)
    spin_lds(F_EC, 4, "v10", "v12")
    seg4("L_ld_vA2", ["v30", "v30", "v31", "v31"], 56, 4, None, DA)
    stamp(3)
    drain(NK_A // 2, [k for k in (32, 24, 16, 8) if k < DA - 4] + [0])
    stamp(4)
    spin_lds(F_KC, 4, "v10", "v12")
    sexpr(SOFF, WO_OFF)
    seg("L_ld_woA", ["v24", "v25"], 60, 8192, 8, L_WO)
    a("s_branch L_ld_fin")

    a.label("L_worker")
    a(f"s_cmp_lg_u32 {S_W}, 4")
    a("s_cbranch_scc1 L_wk2")
    a("v_mov_b32 v10, 0")
    for r in range(12, 16): a(f"v_mov_b32 v{r}, 0")
    a("v_lshlrev_b32 v1, 2, v0")
    a("v_lshlrev_b32 v2, 4, v0")
    a("ds_write_b32 v1, v10")
    a(f"ds_write_b128 v2, v[12:15] offset:{L_ZERO}")
    if cfg.probe >= 10: a(f"ds_write_b32 v10, v10 offset:{L_PRB}")
    if cfg.local == 1:
        a("v_mov_b32 v11, 1")
        a(f"ds_write_b32 v10, v11 offset:{F_LM}")
    a.label("L_wk2")
    a("s_waitcnt lgkmcnt(0)")
    srd(12, 42, W_USED)
    srd(44, 16, 2048)
    srd(48, 34, 2048)
    a(f"s_sub_u32 s97, {S_W}, 5")
    a("s_and_b32 s97, s97, 1")
    a("s_lshl_b32 s90, s97, 10")
    a(f"s_and_b32 s94, {S_SPL}, 3")
    a("s_lshl_b32 s94, s94, 8")
    a("s_add_u32 s94, s94, s90")
    a("v_lshlrev_b32 v1, 4, v0")
    a("v_lshlrev_b32 v2, 2, v0")
    a(f"s_cmp_lt_u32 {S_W}, 5")
    a("s_cbranch_scc1 L_wk2b")
    a(f"s_cmp_eq_u32 {S_W}, 7")
    a("s_cbranch_scc1 L_wk2b")
    a("buffer_load_dword v9, v2, s[48:51], s94 offen")
    a("buffer_load_dwordx4 v[4:7], v1, s[44:47], s90 offen")
    a(f"s_lshr_b32 s94, {S_SPL}, 1")
    a("s_and_b32 s94, s94, 3")
    a("s_lshl_b32 s94, s94, 8")
    a("s_add_u32 s94, s94, s90")
    a("buffer_load_dword v8, v2, s[44:47], s94 offen")
    a.label("L_wk2b")
    a("v_mov_b32 v2, 0")
    a(f"buffer_load_dword v3, v2, {WSRD}, 0 offen sc1")
    a(f"s_cmp_lg_u32 {S_W}, 7")
    a("s_cbranch_scc1 L_wk3")
    if cfg.local == 2:
        srd(60, 40, 256)
        a("s_getreg_b32 s90, hwreg(HW_REG_XCC_ID)")
        a("s_and_b32 s90, s90, 7")
        a("s_mul_i32 s90, s90, 6")
        a("s_lshl_b64 s[26:27], 1, s90")
        a(f"s_lshl_b32 s91, {S_X}, 5")
        a("s_add_u32 s91, s91, 8")
        a("v_mov_b32 v18, s91")
        a("v_mov_b32 v16, s26")
        a("v_mov_b32 v17, s27")
        a("s_mov_b64 exec, 1")
        a("buffer_atomic_add_x2 v[16:17], v18, s[60:63], 0 offen sc1")
        a("s_mov_b64 exec, -1")
    if cfg.touch:
        sexpr("s90", [(S_BT, "shl", 26), (S_X, "shl", 23), (S_SP, "shl", 16)], 28672*256)
        a("s_load_dword s78, s[18:19], s90")
        a("s_load_dword s79, s[20:21], s90")
        a(f"s_lshr_b32 s91, {S_SPL}, 1")
        a("s_and_b32 s91, s91, 3")
        a("s_lshl_b32 s91, s91, 20")
        a("s_load_dword s80, s[22:23], s91")
        sexpr("s91", [(S_X, "shl", 19), (S_KQ, "shl", 17)])
        a("s_load_dword s81, s[24:25], s91")
        a(f"s_mul_i32 s91, {S_KQ}, {128*3584}")
        a("s_load_dword s82, s[28:29], s91")
        a("s_load_dword s83, s[30:31], s91")
        a(f"s_mul_i32 s91, {S_X}, {224*1024}")
        a("s_load_dword s84, s[32:33], s91")
        a("s_load_dword s85, s[38:39], 0")
    a.label("L_wk3")
    a("s_barrier")
    a(f"s_cmp_ge_u32 {S_W}, 4")
    a("s_cbranch_scc1 L_gwave")

    a.label("L_mwave")
    srd(56, 22, 512*4096*2)
    a("v_lshrrev_b32 v1, 4, v0")
    a("v_and_b32 v2, 15, v0")
    a("v_mov_b32 v4, 1")
    a("v_lshlrev_b32 v22, 1, v1")
    a("v_xor_b32 v22, v2, v22")
    a("v_lshlrev_b32 v22, 4, v22")
    a("v_lshl_add_u32 v56, v1, 13, v22")
    a("v_xor_b32 v57, 0x80, v56")
    a(f"s_lshr_b32 s90, {S_SPL}, 1")
    a(f"s_and_b32 s91, {S_SPL}, 1")
    sexpr("s96", [("s90", "shl", 20), (S_X, "shl", 10), ("s91", "shl", 9), (S_W, "shl", 18)])
    a("v_bfe_u32 v6, v2, 2, 1")
    a(f"v_mul_u32_u24 v6, {APITCH}, v6")
    a("v_lshl_add_u32 v6, v1, 4, v6")
    a("v_bfe_u32 v16, v0, 2, 2")
    a("v_and_b32 v17, 3, v0")
    a("v_lshl_add_u32 v18, v1, 3, v16")
    a("v_lshrrev_b32 v19, 1, v17")
    a("v_and_b32 v20, 1, v17")
    a("v_and_b32 v21, 1, v1")
    a("v_lshrrev_b32 v22, 1, v16")
    a("v_lshl_or_b32 v22, v21, 1, v22")
    a("v_lshlrev_b32 v22, 1, v22")
    a(f"s_lshl_b32 s90, {S_W}, 1")
    a("v_add_u32 v23, s90, v19")
    a("v_xor_b32 v23, v23, v22")
    a("v_lshlrev_b32 v7, 7, v18")
    a("v_lshl_add_u32 v7, v23, 4, v7")
    a("v_lshl_add_u32 v7, v20, 3, v7")
    a(f"s_and_b32 s90, {S_W}, 1")
    a("s_lshl_b32 s90, s90, 1")
    a("v_add_u32 v23, s90, v19")
    a("v_lshlrev_b32 v22, 1, v21")
    a("v_xor_b32 v23, v23, v22")
    a("v_lshlrev_b32 v12, 6, v18")
    a("v_lshl_add_u32 v12, v23, 4, v12")
    a("v_lshl_add_u32 v12, v20, 3, v12")
    a("v_lshl_or_b32 v22, v21, 2, v16")
    a("v_lshlrev_b32 v22, 1, v22")
    a(f"s_lshl_b32 s90, {S_W}, 2")
    a("v_add_u32 v23, s90, v19")
    a("v_xor_b32 v24, v23, v22")
    a("v_lshlrev_b32 v25, 8, v18")
    a("v_lshl_add_u32 v25, v20, 3, v25")
    a("v_lshl_add_u32 v13, v24, 4, v25")
    a("v_add_u32 v23, 2, v23")
    a("v_xor_b32 v24, v23, v22")
    a("v_lshl_add_u32 v14, v24, 4, v25")
    a("v_bfe_u32 v8, v0, 4, 1")
    a("v_lshlrev_b32 v9, 3, v2")
    O_MOD, O_Q, O_O, O_A4, O_GU, O_DN, O_ST, T_K, T_V = "s16", "s17", "s18", "s19", "s20", "s21", "s24", "s25", "s26"
    a(f"s_mul_i32 {T_K}, {S_B}, {KB_B + NK_B // 4 - NK_A // 4}")
    a(f"s_add_u32 {T_K}, {T_K}, {NK_A // 4}")
    a(f"s_mul_i32 {T_V}, {S_B}, {KB_B + NK_B // 2 - NK_A // 2}")
    a(f"s_add_u32 {T_V}, {T_V}, {NK_A // 2}")
    sexpr(O_O, [(S_X, "shl", 16), (S_BT, "shl", 13), (S_SP, "shl", 9), (S_W, "shl", 7)], W_O)
    sexpr(O_A4, [(S_CB, "shl", 14), (S_W, "shl", 12), (S_X, "shl", 8), (S_KQ, "shl", 6)], W_A4)
    a(f"s_add_u32 {O_DN}, {O_A4}, {W_DN - W_A4}")
    a(f"s_lshr_b32 s90, {S_W}, 1")
    a(f"s_and_b32 s91, {S_W}, 1")
    sexpr(O_GU, [(S_X, "shl", 15), ("s90", "shl", 14), (S_KQ, "shl", 11), (S_CB, "shl", 8), ("s91", "shl", 7)], W_GU)
    sexpr(O_ST, [(S_X, "shl", 11), (S_BT, "shl", 10), (S_SP, "shl", 4)], W_ST)
    a(f"s_and_b32 s90, {S_SPL}, 1")
    a("s_lshl_b32 s90, s90, 1")
    a(f"s_lshr_b32 s91, {S_W}, 1")
    a("s_add_u32 s90, s90, s91")
    a(f"s_lshr_b32 s91, {S_SPL}, 1")
    a(f"s_and_b32 s97, {S_W}, 1")
    sexpr(O_Q, [(S_X, "shl", 15), ("s90", "shl", 12), ("s91", "shl", 10), ("s97", "shl", 9)], W_Q)
    a(f"s_cmp_eq_u32 {S_B}, 0")
    a("s_cbranch_scc1 L_m_offA")
    a(f"s_lshr_b32 s90, {S_X}, 2")
    a(f"s_and_b32 s91, {S_X}, 3")
    a(f"s_lshr_b32 s97, {S_SPL}, 2")
    a(f"s_and_b32 s98, {S_SPL}, 3")
    sexpr(O_MOD, [("s90", "shl", 15), ("s91", "shl", 12), ("s98", "shl", 10), ("s97", "shl", 9), (S_W, "shl", 7)], W_MOD)
    a("s_branch L_m_offE")
    a.label("L_m_offA")
    a(f"s_lshr_b32 s90, {S_X}, 1")
    a(f"s_and_b32 s91, {S_X}, 1")
    a("s_lshl_b32 s91, s91, 2")
    a(f"s_lshr_b32 s97, {S_SPL}, 2")
    a("s_add_u32 s91, s91, s97")
    a("s_lshr_b32 s97, s91, 1")
    a("s_and_b32 s91, s91, 1")
    a(f"s_and_b32 s98, {S_SPL}, 3")
    sexpr(O_MOD, [("s90", "shl", 15), ("s97", "shl", 12), ("s98", "shl", 10), ("s91", "shl", 9), (S_W, "shl", 7)], W_MOD + 2*32768)
    a.label("L_m_offE")
    a("s_waitcnt vmcnt(0)")
    get_tag()
    a("v_mov_b32 v3, 0")
    stamp(1)

    def loadB(vaddr, nk, kstride, hoff, base=16):
        for t in range(nk):
            a(f"ds_read_b64_tr_b16 v[{base+4*t}:{base+4*t+1}], {vaddr} offset:{t*kstride}")
            a(f"ds_read_b64_tr_b16 v[{base+4*t+2}:{base+4*t+3}], {vaddr} offset:{t*kstride+hoff}")

    def gemv(act_off, nk, bbase=16, second=None):
        for t in range(nk):
            a(f"ds_read_b128 v[{32+4*t}:{35+4*t}], v6 offset:{act_off+64*t}")
        for t in range(nk):
            a(f"s_waitcnt lgkmcnt({nk-1-t})")
            c = "0" if t == 0 else "v[48:51]"
            a(f"v_mfma_f32_16x16x32_bf16 v[48:51], v[{32+4*t}:{35+4*t}], v[{bbase+4*t}:{bbase+4*t+3}], {c}")
            if second is not None:
                c = "0" if t == 0 else "v[56:59]"
                a(f"v_mfma_f32_16x16x32_bf16 v[56:59], v[{32+4*t}:{35+4*t}], v[{second+4*t}:{second+4*t+3}], {c}")

    def publish(shift, soff, local=False, second=False):
        a(f"v_lshl_add_u32 v54, v8, {shift}, v9")
        a(f"v_mov_b32 v53, {S_TAG}")
        if second: a(f"v_mov_b32 v61, {S_TAG}")
        a("v_mov_b32 v52, v48")
        if second: a("v_mov_b32 v60, v56")
        a("s_mov_b32 exec_hi, 0")
        t1 = f"buffer_store_dwordx2 v[52:53], v54, {WSRD}, {soff} offen"
        t2 = f"buffer_store_dwordx2 v[60:61], v54, {WSRD}, {soff} offen offset:128"
        if local:
            store_loc(t1)
            if second: store_loc(t2)
        else:
            a(t1 + " sc1")
            if second: a(t2 + " sc1")
        a("s_mov_b32 exec_hi, -1")

    def publish_pair(soff):
        a("v_lshlrev_b32 v54, 11, v8")
        a("v_lshl_add_u32 v54, v2, 2, v54")
        a(f"v_mov_b32 v53, {S_TAG}")
        a("v_mov_b32_dpp v52, v48 quad_perm:[1,0,3,2] row_mask:0xf bank_mask:0xf")
        a("s_mov_b32 exec_lo, 0x55555555")
        a("s_mov_b32 exec_hi, 0")
        a("v_cvt_pk_bf16_f32 v52, v48, v52")
        a(f"buffer_store_dwordx2 v[52:53], v54, {WSRD}, {soff} offen sc1")
        a("s_mov_b64 exec, -1")

    a(f"s_cmp_lg_u32 {S_B}, 0")
    a("s_cbranch_scc1 L_m_B")
    a(f"s_cmp_ge_u32 {S_SPL}, 16")
    a("s_cbranch_scc1 L_m_nomr")
    spin_lds(F_1, 2, "v3", "v5")
    spin_lds(F_MRL, 1, "v3", "v5")
    a(f"v_add_u32 v10, {L_MR}, v7")
    loadB("v10", 4, 4096, 512)
    gemv(L_ACT1, 4)
    arrive(F_EC, "v3", "v4")
    publish(14, O_MOD)
    a("s_branch L_m_s3")
    a.label("L_m_nomr")
    arrive(F_EC, "v3", "v4")
    a("s_branch L_m_s3")
    a.label("L_m_B")
    a("s_add_u32 s97, s96, 256")
    def wq_loads(lo, hi):
        for k in range(lo, hi):
            bb, i = k >> 3, k & 7
            sr = "s96" if bb == 0 else "s97"
            if k == lo or i == 0:
                a(f"s_lshl_b32 s90, {S_W}, 13")
                a(f"s_add_u32 m0, s90, {L_WQ + 32768*bb + 1024*i}")
                a("s_nop 0")
            a(f"buffer_load_dwordx4 {'v56' if (i & 2) == 0 else 'v57'}, s[56:59], {sr} offen nt lds")
            a(f"s_add_u32 {sr}, {sr}, {4*8192}")
            a("s_add_u32 m0, m0, 0x400")
    wq_loads(0, cfg.wq1)
    spin_lds(F_1, 2, "v3", "v5", sleep=False)
    spin_lds(F_LC, KB_B, "v3", "v5", sleep=False)
    a(f"v_add_u32 v10, {L_MODB}, v7")
    loadB("v10", 4, 4096, 512)
    gemv(L_ACT1, 4)
    publish(14, O_MOD)
    arrive(F_PM, "v3", "v4")
    stamp(2)
    wq_loads(cfg.wq1, 16)
    a("s_waitcnt vmcnt(0)")
    arrive(F_WQ, "v3", "v4")
    a("v_bfe_u32 v16, v0, 2, 2")
    a("v_and_b32 v17, 3, v0")
    a("v_lshl_add_u32 v18, v1, 3, v16")
    a("v_lshrrev_b32 v19, 1, v17")
    a("v_and_b32 v20, 1, v17")
    a("v_and_b32 v21, 1, v1")
    a("v_lshl_or_b32 v22, v21, 2, v16")
    a("v_lshlrev_b32 v22, 1, v22")
    a("v_lshlrev_b32 v25, 8, v18")
    a("v_lshl_add_u32 v25, v20, 3, v25")
    a(f"s_lshr_b32 s90, {S_W}, 1")
    a("s_lshl_b32 s90, s90, 15")
    a(f"s_add_u32 s90, s90, {L_WQ}")
    a("v_add_u32 v25, s90, v25")
    a(f"s_and_b32 s91, {S_W}, 1")
    a("s_lshl_b32 s91, s91, 3")
    a("v_add_u32 v19, s91, v19")
    for e in range(4):
        a(f"v_add_u32 v23, {2*e}, v19")
        a("v_xor_b32 v23, v23, v22")
        a(f"v_lshl_add_u32 v{28+e}, v23, 4, v25")
    spin_lds(F_WQ, 4, "v3", "v5", sleep=False)
    for e in range(4):
        loadB(f"v{28+e}", 4, 8192, 1024, base=64 + 16*e)
    get_mode("v3", "v5")
    a("s_waitcnt lgkmcnt(0)")
    arrive(F_EC, "v3", "v4")
    a("v_lshl_add_u32 v54, v8, 14, v9")
    a(f"v_mov_b32 v53, {S_TAG}")
    spin_lds(F_2, 2, "v3", "v5", sleep=False)
    for t in range(4):
        a(f"ds_read_b128 v[{32+4*t}:{35+4*t}], v6 offset:{L_ACT2+64*t}")
    for t in range(4):
        a(f"s_waitcnt lgkmcnt({3-t})")
        for e in range(4):
            c = "0" if t == 0 else f"v[{16+4*e}:{19+4*e}]"
            a(f"v_mfma_f32_16x16x32_bf16 v[{16+4*e}:{19+4*e}], v[{32+4*t}:{35+4*t}], v[{64+16*e+4*t}:{67+16*e+4*t}], {c}")
    a("s_mov_b32 exec_hi, 0")
    for e in range(4):
        a(f"v_mov_b32 v{56+2*e}, v{16+4*e}")
        a(f"v_mov_b32 v{57+2*e}, v53")
    if cfg.local == 2:
        P = a.newlabel("Lst"); E = a.newlabel("Lste")
        a(f"s_cmp_eq_u32 {S_LM}, 1")
        a(f"s_cbranch_scc1 {P}")
        for e in range(4): a(f"buffer_store_dwordx2 v[{56+2*e}:{57+2*e}], v54, {WSRD}, {O_Q} offen offset:{128*e} sc1")
        a(f"s_branch {E}")
        a.label(P)
        for e in range(4): a(f"buffer_store_dwordx2 v[{56+2*e}:{57+2*e}], v54, {WSRD}, {O_Q} offen offset:{128*e}")
        a.label(E)
    else:
        for e in range(4): a(f"buffer_store_dwordx2 v[{56+2*e}:{57+2*e}], v54, {WSRD}, {O_Q} offen offset:{128*e}" + (" sc1" if cfg.local == 0 else ""))
    a("s_mov_b32 exec_hi, -1")
    arrive(F_PQ, "v3", "v4")
    stamp(3)
    mark(10, "v3")
    a.label("L_m_s3")
    get_mode("v3", "v5")
    T_ST, T_N = "s27", "s28"
    a(f"s_lshl_b32 s90, {S_B}, 1")
    a(f"s_sub_u32 s90, 4, s90")
    a(f"s_mul_i32 {T_ST}, {S_W}, s90")
    a(f"s_min_u32 s91, {S_W}, 2")
    a(f"s_add_u32 {T_ST}, {T_ST}, s91")
    a(f"s_cmp_lt_u32 {S_W}, 2")
    a(f"s_addc_u32 {T_N}, s90, 0")
    a("s_mov_b64 s[30:31], -1")
    a(f"s_cmp_eq_u32 {T_N}, 3")
    a("s_cselect_b32 s31, 0xffff, s31")
    a(f"s_cmp_eq_u32 {T_N}, 2")
    a("s_cselect_b32 s31, 0, s31")
    a("s_mov_b32 s33, 0")
    a(f"s_cmp_eq_u32 {T_N}, 5")
    a("s_cselect_b32 s32, 0xffff, 0")
    a("v_xor_b32 v10, v1, v2")
    a("v_lshlrev_b32 v10, 4, v10")
    a("v_lshl_add_u32 v10, v2, 8, v10")
    a(f"s_lshl_b32 s90, {T_ST}, 12")
    a(f"s_add_u32 s90, s90, {L_K}")
    a("v_add_u32 v56, s90, v10")
    a("v_xor_b32 v57, 64, v56")
    a("v_xor_b32 v58, 0x80, v56")
    a("v_xor_b32 v59, 0xc0, v56")
    a("v_and_b32 v10, 3, v2")
    a(f"v_mul_u32_u24 v10, {APITCH}, v10")
    a("v_lshl_add_u32 v10, v1, 4, v10")
    a(f"v_add_u32 v10, {L_Q}, v10")
    a("v_lshlrev_b32 v11, 4, v1")
    a(f"v_add_u32 v11, {L_ZERO}, v11")
    a("v_lshrrev_b32 v15, 2, v2")
    for tt in range(4):
        a(f"v_cmp_eq_u32 vcc, {tt}, v15")
        a(f"v_cndmask_b32 v{60+tt}, v11, v10, vcc")
    for r in range(4): a(f"v_mov_b32 v{52+r}, 0")
    NEG = "s29"
    a(f"s_mov_b32 {NEG}, 0xff800000")
    spin_lds(F_3, 2, "v3", "v5")
    spin_lds(F_LC, T_K, "v3", "v5", sleep=False)
    stamp(4)
    mark(11, "v3")
    def qk_reads(tt, base, slot=None):
        slot = tt if slot is None else slot
        for t in range(4):
            a(f"ds_read_b128 v[{base+4*t}:{base+4*t+3}], v{60+slot} offset:{64*t}")
            a(f"ds_read_b128 v[{base+16+4*t}:{base+16+4*t+3}], v{56+t} offset:{4096*tt}")
    def qk_mfma(b, acc, first):
        for t in range(4):
            c = "0" if (first and t == 0) else acc
            a(f"v_mfma_f32_16x16x32_bf16 {acc}, v[{b+4*t}:{b+4*t+3}], v[{b+16+4*t}:{b+16+4*t+3}], {c}")
    qk_reads(0, 16)
    qk_reads(1, 68)
    a("s_waitcnt lgkmcnt(8)")
    qk_mfma(16, "v[48:51]", True)
    a(f"s_cmp_lg_u32 {T_N}, 2")
    a("s_cbranch_scc1 L_qk_n3p")
    a("s_waitcnt lgkmcnt(0)")
    qk_mfma(68, "v[48:51]", False)
    a("s_branch L_qk_done")
    a.label("L_qk_n3p")
    qk_reads(2, 16)
    a("s_waitcnt lgkmcnt(8)")
    qk_mfma(68, "v[48:51]", False)
    a(f"s_cmp_eq_u32 {T_N}, 3")
    a("s_cbranch_scc1 L_qk_n3")
    qk_reads(3, 68)
    a("s_waitcnt lgkmcnt(8)")
    qk_mfma(16, "v[48:51]", False)
    a(f"s_cmp_eq_u32 {T_N}, 5")
    a("s_cbranch_scc1 L_qk_n5")
    a("s_waitcnt lgkmcnt(0)")
    qk_mfma(68, "v[48:51]", False)
    a("s_branch L_qk_done")
    a.label("L_qk_n5")
    qk_reads(4, 16, slot=0)
    a("s_waitcnt lgkmcnt(8)")
    qk_mfma(68, "v[48:51]", False)
    a("s_waitcnt lgkmcnt(0)")
    qk_mfma(16, "v[52:55]", True)
    a("s_branch L_qk_done")
    a.label("L_qk_n3")
    a("s_waitcnt lgkmcnt(0)")
    qk_mfma(16, "v[48:51]", False)
    a.label("L_qk_done")
    arrive(F_KC, "v3", "v4")
    a("s_nop 7")
    a(f"s_mov_b32 s94, {SCALE:#x}")
    for (d, sr) in ((16, 48), (20, 52)):
        bf16r2(f"v{d}", f"v{d+1}", f"v{sr}", f"v{sr+1}", "v32")
        bf16r2(f"v{d+2}", f"v{d+3}", f"v{sr+2}", f"v{sr+3}", "v33")
    for r in range(8): a(f"v_mul_f32 v{16+r}, s94, v{16+r}")
    for d in (16, 20):
        bf16r2(f"v{d}", f"v{d+1}", f"v{d}", f"v{d+1}", "v32")
        bf16r2(f"v{d+2}", f"v{d+3}", f"v{d+2}", f"v{d+3}", "v33")
    a(f"v_mov_b32 v34, {NEG}")
    for r in range(4): a(f"v_cndmask_b32 v{16+r}, v34, v{16+r}, s[30:31]")
    for r in range(4): a(f"v_cndmask_b32 v{20+r}, v34, v{20+r}, s[32:33]")
    for r in range(4): a(f"v_max_f32 v{24+r}, v{16+r}, v{20+r}")
    allreduce(["v24", "v25", "v26", "v27"], "v_max_f32", ["v28", "v29", "v30", "v31"], FULL)
    a(f"s_lshl_b32 s90, {S_W}, 4")
    a("v_mov_b32 v10, s90")
    a("s_mov_b64 s[92:93], exec")
    a("s_mov_b64 exec, 1")
    a(f"ds_write_b128 v10, v[24:27] offset:{L_MX}")
    a(f"ds_add_u32 v3, v4 offset:{F_MB1}")
    a("s_mov_b64 exec, s[92:93]")
    spin_lds(F_MB1, 4, "v3", "v5", sleep=False)
    for w in range(4):
        a(f"ds_read_b128 v[{32+4*w}:{35+4*w}], v3 offset:{L_MX+16*w}")
    a("s_waitcnt lgkmcnt(0)")
    for r in range(4):
        a(f"v_max_f32 v{24+r}, v{32+r}, v{36+r}")
        a(f"v_max_f32 v{28+r}, v{40+r}, v{44+r}")
    for r in range(4):
        a(f"v_max_f32 v{24+r}, v{24+r}, v{28+r}")
    a(f"s_mov_b32 s94, {LOG2E:#x}")
    for r in range(8): a(f"v_sub_f32 v{16+r}, v{16+r}, v{24+(r&3)}")
    for r in range(8): a(f"v_mul_f32 v{16+r}, s94, v{16+r}")
    for r in range(8): a(f"v_exp_f32 v{16+r}, v{16+r}")
    a("v_cvt_pk_bf16_f32 v28, v16, v17")
    a("v_cvt_pk_bf16_f32 v29, v18, v19")
    a("v_cvt_pk_bf16_f32 v30, v20, v21")
    a("v_cvt_pk_bf16_f32 v31, v22, v23")
    a(f"s_lshl_b32 s90, {T_ST}, 5")
    a(f"s_add_u32 s90, s90, {L_P}")
    a("v_lshl_add_u32 v10, v0, 1, s90")
    a("s_mov_b64 exec, s[30:31]")
    a("ds_write_b16 v10, v28")
    a(f"ds_write_b16_d16_hi v10, v28 offset:{PPITCH}")
    a(f"ds_write_b16 v10, v29 offset:{2*PPITCH}")
    a(f"ds_write_b16_d16_hi v10, v29 offset:{3*PPITCH}")
    a(f"s_cmp_lg_u32 {T_N}, 5")
    a("s_cbranch_scc1 L_p_w1")
    a("s_mov_b64 exec, s[32:33]")
    a("ds_write_b16 v10, v30 offset:128")
    a(f"ds_write_b16_d16_hi v10, v30 offset:{PPITCH+128}")
    a(f"ds_write_b16 v10, v31 offset:{2*PPITCH+128}")
    a(f"ds_write_b16_d16_hi v10, v31 offset:{3*PPITCH+128}")
    a.label("L_p_w1")
    a("s_mov_b64 exec, -1")
    for r in range(4): a(f"v_add_f32 v{16+r}, v{16+r}, v{20+r}")
    allreduce(["v16", "v17", "v18", "v19"], "v_add_f32", ["v28", "v29", "v30", "v31"], FULL)
    a(f"s_lshl_b32 s90, {S_W}, 4")
    a("v_mov_b32 v10, s90")
    a("s_mov_b64 s[92:93], exec")
    a("s_mov_b64 exec, 1")
    a(f"ds_write_b128 v10, v[16:19] offset:{L_LS}")
    a(f"ds_add_u32 v3, v4 offset:{F_MB2}")
    a("s_mov_b64 exec, s[92:93]")
    spin_lds(F_MB2, 4, "v3", "v5", sleep=False)
    a(f"s_cmp_lg_u32 {S_W}, 0")
    a("s_cbranch_scc1 L_m_pv")
    a("v_lshlrev_b32 v10, 2, v0")
    a("s_mov_b64 exec, 15")
    for w in range(4):
        a(f"ds_read_b32 v{16+w}, v10 offset:{L_LS+16*w}")
        a(f"ds_read_b32 v{20+w}, v10 offset:{L_MX+16*w}")
    a("s_waitcnt lgkmcnt(0)")
    a("v_add_f32 v16, v16, v17")
    a("v_add_f32 v18, v18, v19")
    a("v_max_f32 v20, v20, v21")
    a("v_max_f32 v22, v22, v23")
    a("v_add_f32 v26, v16, v18")
    a("v_max_f32 v24, v20, v22")
    a(f"v_mov_b32 v25, {S_TAG}")
    a(f"v_mov_b32 v27, {S_TAG}")
    a("v_lshlrev_b32 v10, 8, v0")
    store_loc(f"buffer_store_dwordx4 v[24:27], v10, {WSRD}, {O_ST} offen")
    a("s_mov_b64 exec, -1")
    a.label("L_m_pv")
    stamp(5)
    a("v_lshrrev_b32 v10, 2, v2")
    a(f"v_mul_u32_u24 v10, {PPITCH}, v10")
    a("v_lshl_add_u32 v10, v1, 4, v10")
    a(f"v_add_u32 v60, {L_P}, v10")
    a(f"v_add_u32 v61, {L_V}, v13")
    a(f"v_add_u32 v62, {L_V}, v14")
    a("v_lshl_add_u32 v63, v1, 14, v9")
    a(f"v_mov_b32 v65, {S_TAG}")
    for r in range(8): a(f"v_mov_b32 v{48+r}, 0")
    a(f"s_add_u32 s95, {T_K}, 8")
    a("s_mov_b32 s96, -1000")
    a.label("L_pv_loop")
    a("s_cmp_ge_i32 s96, s95")
    a("s_cbranch_scc1 L_pv_go")
    a.label("L_pv_spin")
    a(f"ds_read_b32 v5, v3 offset:{F_LC}")
    a("s_waitcnt lgkmcnt(0)")
    a("v_readfirstlane_b32 s96, v5")
    a("s_cmp_ge_i32 s96, s95")
    a("s_cbranch_scc1 L_pv_go")
    timeout()
    a("s_branch L_pv_spin")
    a.label("L_pv_go")
    a("ds_read_b128 v[16:19], v60")
    a("ds_read_b64_tr_b16 v[20:21], v61")
    a("ds_read_b64_tr_b16 v[22:23], v61 offset:1024")
    a("ds_read_b64_tr_b16 v[24:25], v62")
    a("ds_read_b64_tr_b16 v[26:27], v62 offset:1024")
    a("v_add_u32 v60, 64, v60")
    a("v_add_u32 v61, 0x2000, v61")
    a("v_add_u32 v62, 0x2000, v62")
    a("s_add_u32 s95, s95, 8")
    a("s_waitcnt lgkmcnt(2)")
    a("v_mfma_f32_16x16x32_bf16 v[48:51], v[16:19], v[20:23], v[48:51]")
    a("s_waitcnt lgkmcnt(0)")
    a("v_mfma_f32_16x16x32_bf16 v[52:55], v[16:19], v[24:27], v[52:55]")
    a(f"s_cmp_le_i32 s95, {T_V}")
    a("s_cbranch_scc1 L_pv_loop")
    stamp(6)
    a("s_nop 4")
    a("v_cvt_pk_bf16_f32 v64, v48, v52")
    store_loc(f"buffer_store_dwordx2 v[64:65], v63, {WSRD}, {O_O} offen")
    arrive(F_PO, "v3", "v4")
    stamp(7)
    mark(12, "v3")
    spin_lds(F_WOL, 1, "v3", "v5", sleep=False)
    a(f"v_add_u32 v10, {L_WO}, v7")
    loadB("v10", 4, 4096, 512)
    a("s_waitcnt lgkmcnt(0)")
    a("s_barrier")
    gemv(L_ACT4, 4)
    publish_pair(O_A4)
    arrive(F_PA, "v3", "v4")
    stamp(8)
    mark(13, "v3")
    spin_lds(F_LATE, 1, "v3", "v5")
    a(f"v_add_u32 v10, {L_DN}, v7")
    loadB("v10", 2, 4096, 512, base=64)
    a(f"s_lshr_b32 s90, {S_W}, 1")
    a("s_lshl_b32 s90, s90, 13")
    a(f"s_add_u32 s90, s90, {L_G}")
    a("v_add_u32 v11, s90, v12")
    loadB("v11", 4, 2048, 256)
    a("s_waitcnt lgkmcnt(0)")
    a("s_barrier")
    a(f"s_cmp_eq_u32 {S_CB}, 7")
    a("s_cbranch_scc1 L_m_s7")
    gemv(L_ACT6, 4)
    publish(13, O_GU, local=True)
    a.label("L_m_s7")
    arrive(F_PG, "v3", "v4")
    stamp(9)
    a("s_barrier")
    gemv(L_ACT7, 2, bbase=64)
    publish_pair(O_DN)
    arrive(F_PD, "v3", "v4")
    stamp(10)
    mark(15, "v3")
    dump_stamps(11)
    a("s_endpgm")

    def r1_block(uid, vz):
        a(f"s_sub_u32 s90, {S_W}, 4")
        a("s_lshr_b32 s91, s90, 1")
        a("s_and_b32 s94, s90, 1")
        a("s_lshl_b32 s99, s94, 8")
        a(f"s_lshl_b32 s100, {S_X}, 16")
        a("s_add_u32 s99, s99, s100")
        a(f"s_lshl_b32 s100, {S_KQ}, 14")
        a("s_add_u32 s99, s99, s100")
        a("s_lshl_b32 s100, s91, 13")
        a("s_add_u32 s99, s99, s100")
        a(f"s_add_u32 s99, s99, {W_O}")
        a(f"s_lshl_b32 s100, {S_X}, 11")
        a("s_lshl_b32 s90, s91, 10")
        a("s_add_u32 s100, s100, s90")
        a(f"s_lshl_b32 s90, {S_KQ}, 8")
        a("s_add_u32 s100, s100, s90")
        a(f"s_add_u32 s100, s100, {W_ST}")
        a("v_lshrrev_b32 v48, 5, v0")
        a("v_and_b32 v49, 31, v0")
        a("v_lshlrev_b32 v50, 12, v48")
        a("v_lshl_add_u32 v50, v49, 3, v50")
        a("v_and_b32 v51, 7, v0")
        a("v_lshl_add_u32 v51, v48, 3, v51")
        a("v_lshlrev_b32 v51, 4, v51")
        a(f"s_mul_i32 s91, s91, {APITCH}")
        a("s_lshl_b32 s94, s94, 7")
        a("s_add_u32 s91, s91, s94")
        a("v_bfe_u32 v52, v0, 4, 1")
        a("v_lshlrev_b32 v52, 6, v52")
        a("v_and_b32 v53, 15, v0")
        a("v_lshl_add_u32 v52, v53, 1, v52")
        a("v_lshl_add_u32 v52, v48, 5, v52")
        a("v_add_u32 v52, s91, v52")
        loads = [f"buffer_load_dwordx4 v[32:35], v51, {WSRD}, s100 offen sc1"]; tags = ["v33", "v35"]
        for i in range(8):
            loads.append(f"buffer_load_dwordx2 v[{16+2*i}:{17+2*i}], v50, {WSRD}, s99 offen offset:{512*i} sc1")
            tags.append(f"v{17+2*i}")
        after_own(F_PO, 4, vz, "v54", cfg.d_r1)
        stamp(7 if uid != "q" else 4)
        poll(loads, tags, "v54")
        if uid == "q": stamp(10)
        a("v_mov_b32 v55, v32")
        allreduce(["v55"], "v_max_f32", ["v56"], ["x1", "x2", "x4", "x32"])
        a(f"s_mov_b32 s94, {LOG2E:#x}")
        a("v_sub_f32 v56, v32, v55")
        for i in range(4): a(f"v_lshlrev_b32 v{36+2*i}, 16, v{16+2*i}"); a(f"v_and_b32 v{37+2*i}, 0xffff0000, v{16+2*i}")
        a("v_mul_f32 v56, s94, v56")
        a("v_exp_f32 v56, v56")
        for i in range(4, 8): a(f"v_lshlrev_b32 v{36+2*i}, 16, v{16+2*i}"); a(f"v_and_b32 v{37+2*i}, 0xffff0000, v{16+2*i}")
        a("v_mul_f32 v57, v56, v34")
        allreduce(["v57"], "v_add_f32", ["v58"], ["x1", "x2", "x4", "x32"])
        a("v_rcp_f32 v57, v57")
        a("v_mov_b32 v58, 0")
        a("v_mov_b32 v59, 0")
        a("v_mul_f32 v56, v56, v57")
        for i in range(8):
            a(f"v_fmac_f32_dpp v58, v56, v{36+2*i} row_newbcast:{i} row_mask:0xf bank_mask:0xf")
            a(f"v_fmac_f32_dpp v59, v56, v{37+2*i} row_newbcast:{i} row_mask:0xf bank_mask:0xf")
        a("v_permlane32_swap_b32 v58, v59")
        a("v_add_f32 v58, v58, v59")
        a("v_cvt_pk_bf16_f32 v58, v58, v58")
        a(f"ds_write_b16 v52, v58 offset:{L_ACT4}")
        a("s_waitcnt lgkmcnt(0)")

    a.label("L_gwave")
    a(f"s_cmp_eq_u32 {S_W}, 4")
    a("s_cbranch_scc1 L_slice")
    a(f"s_cmp_eq_u32 {S_W}, 7")
    a("s_cbranch_scc1 L_aux")

    SB = "s97"
    a("v_lshlrev_b32 v2, 2, v0")
    a("v_mov_b32 v10, 1")
    a(f"s_mul_i32 s98, {SB}, {APITCH}")
    a("v_add_u32 v11, s98, v2")
    a("v_mov_b32 v19, 0")
    a("s_waitcnt vmcnt(0)")
    stamp(1)
    a("v_lshlrev_b32 v12, 16, v9")
    a("v_and_b32 v13, 0xffff0000, v9")
    a(f"s_mov_b32 s94, {LOG2E:#x}")
    for r in (12, 13): a(f"v_mul_f32 v{r+2}, s94, v{r}")
    for r in (12, 13): a(f"v_exp_f32 v{r+2}, -v{r+2}")
    for r in (12, 13): a(f"v_add_f32 v{r+2}, 1.0, v{r+2}")
    for r in (12, 13): a(f"v_rcp_f32 v{r+2}, v{r+2}")
    for r in (12, 13): a(f"v_mul_f32 v{r}, v{r}, v{r+2}")
    a("v_cvt_pk_bf16_f32 v12, v12, v13")
    a(f"ds_write_b32 v11, v12 offset:{L_ACT1}")
    arrive(F_1, "v19", "v10")
    get_tag()
    a("v_mov_b32 v3, 0")

    def ln_finish(mean, var, x0, x1, tmp):
        bf16r2(mean, var, mean, var, tmp)
        a(f"s_mov_b32 s94, {EPS:#x}")
        a(f"v_add_f32 {var}, s94, {var}")
        bf16r1(var, var)
        a(f"v_sqrt_f32 {var}, {var}")
        a(f"v_sub_f32 {x0}, {x0}, {mean}")
        a(f"v_sub_f32 {x1}, {x1}, {mean}")
        bf16r1(var, var)
        a(f"v_rcp_f32 {var}, {var}")
        bf16r2(x0, x1, x0, x1, tmp)
        a(f"v_mul_f32 {x0}, {x0}, {var}")
        a(f"v_mul_f32 {x1}, {x1}, {var}")
        bf16r2(x0, x1, x0, x1, tmp)

    def quarter_gather(chunkA, chunkB, qreg, pre=None, sample=False):
        for (ch, sreg) in ((chunkA, "s90"), (chunkB, "s99")):
            sexpr(sreg, [(SB, "shl", 14), (qreg, "shl", 12)], W_MOD + ch*32768)
        loads = []; tags = []
        for i in range(4):
            loads.append(f"buffer_load_dwordx4 v[{16+4*i}:{19+4*i}], v1, {WSRD}, s90 offen offset:{1024*i} sc1")
            loads.append(f"buffer_load_dwordx4 v[{32+4*i}:{35+4*i}], v1, {WSRD}, s99 offen offset:{1024*i} sc1")
            tags += [f"v{17+4*i}", f"v{19+4*i}", f"v{33+4*i}", f"v{35+4*i}"]
        if pre: pre()
        poll(loads, tags, "v50", sample=sample)
        for (base, d0, d1) in ((16, "v14", "v15"), (32, "v48", "v49")):
            a(f"v_add_f32 {d0}, v{base}, v{base+4}")
            a(f"v_add_f32 {d1}, v{base+2}, v{base+6}")
            a(f"v_add_f32 v50, v{base+8}, v{base+12}")
            a(f"v_add_f32 v51, v{base+10}, v{base+14}")
            a(f"v_add_f32 {d0}, {d0}, v50")
            a(f"v_add_f32 {d1}, {d1}, v51")
            bf16r2(d0, d1, d0, d1, "v50")

    def modulate(x0, x1, sc0, sc1, sh0, sh1, dst, tmp):
        a(f"v_mul_f32 {x0}, {x0}, {sc0}")
        a(f"v_mul_f32 {x1}, {x1}, {sc1}")
        bf16r2(x0, x1, x0, x1, tmp)
        a(f"v_add_f32 {x0}, {x0}, {sh0}")
        a(f"v_add_f32 {x1}, {x1}, {sh1}")
        a(f"v_cvt_pk_bf16_f32 {dst}, {x0}, {x1}")

    a(f"s_cmp_eq_u32 {S_B}, 0")
    a("s_cbranch_scc1 L_q_qg")
    for i in range(4):
        a(f"v_lshlrev_b32 v{16+2*i}, 16, v{4+i}")
        a(f"v_and_b32 v{17+2*i}, 0xffff0000, v{4+i}")
    a("v_add_f32 v24, v16, v17")
    a("v_add_f32 v25, v18, v19")
    a("v_add_f32 v26, v20, v21")
    a("v_add_f32 v27, v22, v23")
    a("v_add_f32 v24, v24, v25")
    a("v_add_f32 v26, v26, v27")
    a("v_add_f32 v24, v24, v26")
    allreduce(["v24"], "v_add_f32", ["v28"], FULL)
    a(f"s_mov_b32 s94, {INV512:#x}")
    a("v_mul_f32 v24, s94, v24")
    for i in range(8): a(f"v_sub_f32 v{16+i}, v{16+i}, v24")
    a("v_mul_f32 v25, v16, v16")
    for i in range(1, 8): a(f"v_fmac_f32 v25, v{16+i}, v{16+i}")
    allreduce(["v25"], "v_add_f32", ["v28"], FULL)
    a("v_mul_f32 v25, s94, v25")
    a("v_lshlrev_b32 v12, 16, v8")
    a("v_and_b32 v13, 0xffff0000, v8")
    ln_finish("v24", "v25", "v12", "v13", "v28")
    a(f"s_lshr_b32 s100, {S_SPL}, 1")
    quarter_gather(0, 1, "s100", pre=lambda: after_own(F_PM, 4, "v3", "v50", cfg.d_h))
    a("v_add_f32 v48, 1.0, v48")
    a("v_add_f32 v49, 1.0, v49")
    bf16r2("v48", "v49", "v48", "v49", "v50")
    modulate("v12", "v13", "v48", "v49", "v14", "v15", "v16", "v50")
    a(f"ds_write_b32 v11, v16 offset:{L_ACT2}")
    arrive(F_2, "v3", "v10")
    stamp(2)
    a.label("L_q_qg")
    sexpr("s90", [(S_X, "shl", 15), (S_BT, "shl", 14), (SB, "shl", 13)], W_Q)
    a("s_add_u32 s99, s90, 4096")
    a(f"s_mul_i32 s100, {SB}, {2*APITCH}")
    a("v_add_u32 v54, s100, v2")
    loads = []; tags = []
    for i in range(4):
        loads.append(f"buffer_load_dwordx4 v[{16+4*i}:{19+4*i}], v1, {WSRD}, s90 offen offset:{1024*i} sc1")
        loads.append(f"buffer_load_dwordx4 v[{32+4*i}:{35+4*i}], v1, {WSRD}, s99 offen offset:{1024*i} sc1")
        tags += [f"v{17+4*i}", f"v{19+4*i}", f"v{33+4*i}", f"v{35+4*i}"]
    a(f"s_cmp_eq_u32 {S_B}, 0")
    a("s_cbranch_scc1 L_q_qA")
    after_own(F_PQ, 4, "v3", "v50", cfg.d_q)
    poll(loads, tags, "v50")
    a("s_branch L_q_qE")
    a.label("L_q_qA")
    if cfg.quiet: spin_lds(F_LC, cfg.quiet, "v3", "v50")
    poll(loads, tags, "v50", sample=(not cfg.quiet), sleep=cfg.qsl)
    a.label("L_q_qE")
    for (base, hh) in ((16, 0), (32, 1)):
        a(f"v_add_f32 v48, v{base}, v{base+4}")
        a(f"v_add_f32 v49, v{base+2}, v{base+6}")
        a(f"v_add_f32 v50, v{base+8}, v{base+12}")
        a(f"v_add_f32 v51, v{base+10}, v{base+14}")
        a("v_add_f32 v48, v48, v50")
        a("v_add_f32 v49, v49, v51")
        a(f"v_cvt_pk_bf16_f32 v{52+hh}, v48, v49")
    a(f"ds_write_b32 v54, v52 offset:{L_Q}")
    a(f"ds_write_b32 v54, v53 offset:{L_Q+APITCH}")
    arrive(F_3, "v3", "v10")
    stamp(3)
    sexpr("s90", [(SB, "shl", 11), (S_KQ, "shl", 9)], W_MODF + 3*4096)
    a("s_add_u32 s99, s90, 4096")
    a("v_lshlrev_b32 v54, 3, v0")
    poll([f"buffer_load_dwordx2 v[16:17], v54, {WSRD}, s90 offen sc1",
          f"buffer_load_dwordx2 v[18:19], v54, {WSRD}, s99 offen sc1"], ["v17", "v19"], "v50", sleep=8)
    a("v_lshlrev_b32 v66, 16, v16")
    a("v_and_b32 v67, 0xffff0000, v16")
    a("v_lshlrev_b32 v48, 16, v18")
    a("v_and_b32 v49, 0xffff0000, v18")
    a("v_add_f32 v48, 1.0, v48")
    a("v_add_f32 v49, 1.0, v49")
    bf16r2("v64", "v65", "v48", "v49", "v50")
    r1_block("q", "v3")
    stamp(5)
    a("s_barrier")
    sexpr("s99", [(S_X, "shl", 10), (SB, "shl", 9)], W_X1S)
    sexpr("s90", [(S_X, "shl", 12), (SB, "shl", 11), (S_KQ, "shl", 9)], W_X1P)
    a("v_lshlrev_b32 v16, 3, v0")
    a("v_and_b32 v17, 31, v0")
    a("v_lshlrev_b32 v17, 4, v17")
    after_own(F_PX, 1, "v3", "v50", cfg.d_x1)
    stamp(8)
    poll([f"buffer_load_dwordx4 v[24:27], v17, {WSRD}, s99 offen sc1",
          f"buffer_load_dwordx2 v[20:21], v16, {WSRD}, s90 offen sc1"], ["v21", "v25", "v27"], "v50")
    stamp(9)
    allreduce(["v24", "v26"], "v_add_f32", ["v28", "v29"], ["x1", "x2", "x4", "x8", "x16"])
    a(f"s_mov_b32 s94, {INV512:#x}")
    a("v_mul_f32 v24, s94, v24")
    a("v_mul_f32 v26, s94, v26")
    a("v_lshlrev_b32 v12, 16, v20")
    a("v_fma_f32 v26, -v24, v24, v26")
    a("v_and_b32 v13, 0xffff0000, v20")
    a("v_max_f32 v26, 0, v26")
    ln_finish("v24", "v26", "v12", "v13", "v30")
    modulate("v12", "v13", "v64", "v65", "v66", "v67", "v16", "v30")
    a(f"ds_write_b32 v11, v16 offset:{L_ACT6}")
    a(f"s_mul_i32 s94, {S_KQ}, 448")
    sexpr("s90", [(S_X, "shl", 15), (SB, "shl", 13), ("s94", "shl", 0)], W_GU, tmp="s99")
    a("s_add_u32 s94, s90, 4096")
    a("s_add_u32 s99, s90, 16384")
    a("s_add_u32 s100, s90, 20480")
    a("s_waitcnt lgkmcnt(0)")
    stamp(6)
    a("s_barrier")
    a("v_lshlrev_b32 v16, 3, v0")
    a("v_mov_b32 v40, 0")
    a("v_lshlrev_b32 v17, 1, v0")
    a("v_add_u32 v17, s98, v17")
    a("s_mov_b32 exec_lo, -1")
    a("s_mov_b32 exec_hi, 0x00ffffff")
    loads = []; tags = []
    for wh in range(2):
        for k6 in range(4):
            sr = [["s90", "s94"], ["s99", "s100"]][wh][k6 >> 1]
            rb = 20 + 8*wh + 2*k6
            loads.append(f"buffer_load_dwordx2 v[{rb}:{rb+1}], v16, {WSRD}, {sr} offen offset:{2048*(k6&1)} sc1")
            tags.append(f"v{rb+1}")
    after_own(F_PG, 4, "v3", "v50", cfg.d_gu)
    poll(loads, tags, "v50")
    a("v_add_f32 v36, v20, v22")
    a("v_add_f32 v37, v24, v26")
    a("v_add_f32 v38, v28, v30")
    a("v_add_f32 v39, v32, v34")
    a("v_add_f32 v36, v36, v37")
    a("v_add_f32 v38, v38, v39")
    bf16r2("v36", "v38", "v36", "v38", "v50")
    a("v_mul_f32 v36, v36, v38")
    a("v_cvt_pk_bf16_f32 v40, v36, v36")
    a("s_mov_b64 exec, -1")
    a(f"ds_write_b16 v17, v40 offset:{L_ACT7}")
    a("s_waitcnt lgkmcnt(0)")
    stamp(7)
    a("s_barrier")
    dump_stamps(11)
    a("s_endpgm")

    a.label("L_slice")
    srd(48, 38, 2048)
    a("v_lshlrev_b32 v7, 4, v0")
    a("v_and_b32 v1, 3, v0")
    a("v_bfe_u32 v2, v0, 4, 1")
    a("v_bfe_u32 v4, v0, 3, 1")
    a("v_lshrrev_b32 v5, 5, v0")
    a("v_lshlrev_b32 v6, 2, v1")
    a("v_lshl_add_u32 v6, v2, 1, v6")
    a("v_add_u32 v6, v6, v4")
    a("v_lshlrev_b32 v8, 10, v5")
    a("v_lshl_add_u32 v8, v6, 1, v8")
    a(f"s_lshl_b32 s90, {S_LOC}, 5")
    a("buffer_load_ushort v9, v8, s[44:47], s90 offen")
    a("v_lshlrev_b32 v10, 4, v5")
    a("v_add_u32 v10, v10, v6")
    a("v_lshlrev_b32 v10, 2, v10")
    a("v_lshlrev_b32 v11, 1, v1")
    a("v_add_u32 v11, v11, v2")
    a("v_lshlrev_b32 v12, 11, v5")
    a("v_lshl_add_u32 v98, v11, 3, v12")
    a("v_lshlrev_b32 v99, 9, v5")
    a("v_lshlrev_b32 v12, 10, v5")
    a("v_lshl_add_u32 v97, v11, 2, v12")
    sexpr("s22", [(S_X, "shl", 12), (S_LOC, "shl", 6)], W_X1P)
    sexpr("s23", [(S_X, "shl", 10), (S_LOC, "shl", 4)], W_X1S)
    a(f"s_lshl_b32 s24, {S_LOC}, 5")
    a(f"s_lshl_b32 s17, {S_LOC}, 12")
    a("v_cmp_eq_u32 s[26:27], 1, v4")
    a("v_mov_b32 v100, 0x3f80")
    a("v_mov_b32 v101, 0x3f800000")
    a("s_waitcnt vmcnt(0)")
    get_tag()
    a("v_mov_b32 v3, 0")
    a("v_lshlrev_b32 v102, 16, v9")
    get_mode("v3", "v20")
    stamp(1)

    def part_loads(base):
        a(f"s_add_u32 s20, s17, {base}")
        loads = []; tags = []
        for i in range(4):
            rb = 16 + 4*i
            loads.append(f"buffer_load_dwordx4 v[{rb}:{rb+3}], v7, {WSRD}, s20 offen offset:{1024*i} sc1")
            tags += [f"v{rb+1}", f"v{rb+3}"]
        return loads, tags
    def part_loads_atomic(base):
        a(f"s_add_u32 s20, s17, {base}")
        loads = []; tags = []
        for r in range(16, 32): loads.append(f"v_mov_b32 v{r}, 0")
        for i in range(4):
            rb = 16 + 4*i
            for hh in range(2):
                loads.append(f"buffer_atomic_add_x2 v[{rb+2*hh}:{rb+2*hh+1}], v7, {WSRD}, s20 offen offset:{1024*i + 8*hh} sc0 sc1")
            tags += [f"v{rb+1}", f"v{rb+3}"]
        return loads, tags
    def part_sum():
        for b in range(2):
            for (k, (off, sel)) in enumerate(((0, "v100"), (0, "v101"), (2, "v100"), (2, "v101"))):
                a(f"v_dot2_f32_bf16 v{32+4*b+k}, v{16+8*b+off}, {sel}, 0")
        for b in range(2):
            for (k, (off, sel)) in enumerate(((0, "v100"), (0, "v101"), (2, "v100"), (2, "v101"))):
                a(f"v_dot2_f32_bf16 v{32+4*b+k}, v{20+8*b+off}, {sel}, v{32+4*b+k}")
        for c in range(4): a(f"v_permlane32_swap_b32 v{32+c}, v{36+c}")
        for c in range(4): a(f"v_add_f32 v{32+c}, v{32+c}, v{36+c}")
        a("v_permlane16_swap_b32 v32, v34")
        a("v_permlane16_swap_b32 v33, v35")
        a("v_add_f32 v32, v32, v34")
        a("v_add_f32 v33, v33, v35")
        a("v_cndmask_b32 v36, v32, v33, s[26:27]")
        a("v_cndmask_b32 v37, v33, v32, s[26:27]")
        a("v_add_f32_dpp v36, v37, v36 row_ror:8 row_mask:0xf bank_mask:0xf")
        a("v_add_f32_dpp v40, v36, v36 row_shl:4 row_mask:0xf bank_mask:0x5")
        a("v_add_f32_dpp v40, v36, v36 row_shr:4 row_mask:0xf bank_mask:0xa")
    def resid(gate):
        bf16r1("v40", "v40")
        a(f"v_mul_f32 v40, v40, {gate}")
        bf16r1("v40", "v40")
        a("v_add_f32 v102, v102, v40")
        bf16r1("v102", "v102")
    def make_pair(dst):
        a("v_mov_b32_dpp v41, v102 row_ror:8 row_mask:0xf bank_mask:0xf")
        a(f"v_cvt_pk_bf16_f32 {dst}, v102, v41")
    PUBM = "0x000f000f"

    l1, t1 = part_loads(W_A4)
    spin_lds(F_GA, 1, "v3", "v15")
    a(f"ds_read_b32 v103, v10 offset:{L_GA}")
    a(f"ds_read_b32 v104, v10 offset:{L_GB}")
    a("s_waitcnt lgkmcnt(0)")
    r1_block("s", "v3")
    a(f"v_mov_b32 v43, {S_TAG}")
    a(f"v_mov_b32 v45, {S_TAG}")
    a(f"v_mov_b32 v47, {S_TAG}")
    a("s_barrier")
    after_own(F_PA, 4, "v3", "v15", cfg.d_s5)
    stamp(2)
    poll(l1, t1, "v15")
    stamp(3)
    part_sum()
    resid("v103")
    make_pair("v42")
    a("v_mul_f32 v46, v102, v102")
    a("v_mov_b32 v44, v102")
    a(f"s_mov_b32 exec_lo, {PUBM}")
    a(f"s_mov_b32 exec_hi, {PUBM}")
    store_loc(f"buffer_store_dwordx2 v[42:43], v98, {WSRD}, s22 offen")
    a("s_mov_b64 exec, -1")
    allreduce(["v44", "v46"], "v_add_f32", ["v48", "v49"], ["x1", "x2", "r8", "x16"])
    a("s_mov_b32 exec_lo, 1")
    a("s_mov_b32 exec_hi, 1")
    store_loc(f"buffer_store_dwordx4 v[44:47], v99, {WSRD}, s23 offen")
    a("s_mov_b64 exec, -1")
    a("v_mov_b32 v15, 1")
    arrive(F_PX, "v3", "v15")
    stamp(4)
    mark(14, "v3")
    a(f"s_and_b32 s90, {S_LOC}, 7")
    a(f"s_cmp_lg_u32 s90, {S_X}")
    a("s_cbranch_scc1 L_slice_nf")
    a("s_barrier")
    a("s_barrier")
    l1, t1 = part_loads_atomic(W_DN) if cfg.atom8 else part_loads(W_DN)
    after_own(F_PD, 4, "v3", "v15", cfg.d_s8)
    poll(l1, t1, "v15")
    part_sum()
    resid("v104")
    make_pair("v42")
    a(f"s_mov_b32 exec_lo, {PUBM}")
    a(f"s_mov_b32 exec_hi, {PUBM}")
    a("buffer_store_dword v42, v97, s[48:51], s24 offen")
    a(f"s_cmp_lg_u32 {S_WG}, 0")
    a("s_cbranch_scc1 L_slice_end")
    a("s_mov_b64 exec, 1")
    a(f"v_mov_b32 v24, {S_EP}")
    a("v_mov_b32 v21, 0")
    a(f"buffer_store_dword v24, v21, {WSRD}, 0 offen sc1")
    a.label("L_slice_end")
    if cfg.probe == 1:
        a("s_sleep 94")
        a("s_sleep 94")
    if cfg.probe >= 10:
        a(f"ds_read_b32 v20, v3 offset:{L_PRB}")
        a("s_waitcnt lgkmcnt(0)")
        a("v_readfirstlane_b32 s22, v20")
        a("s_mov_b32 s24, 100000")
        a.label("L_probe")
        a("s_memrealtime s[20:21]")
        a("s_waitcnt lgkmcnt(0)")
        a("s_sub_u32 s24, s24, 1")
        a("s_cbranch_scc1 L_probe_e")
        a("s_sub_u32 s23, s20, s22")
        a("s_cmp_lt_u32 s23, 2000")
        a("s_cbranch_scc1 L_probe")
        a.label("L_probe_e")
    if cfg.probe == 3:
        a("s_add_u32 s22, s62, 2500")
        a.label("L_probe")
        a("s_memrealtime s[20:21]")
        a("s_waitcnt lgkmcnt(0)")
        a("s_sub_u32 s23, s20, s22")
        a("s_cmp_lt_i32 s23, 0")
        a("s_cbranch_scc1 L_probe")
    if cfg.probe == 2:
        a("s_memrealtime s[20:21]")
        a("s_waitcnt lgkmcnt(0)")
        a("s_add_u32 s22, s20, 500")
        a.label("L_probe")
        a("s_memrealtime s[20:21]")
        a("s_waitcnt lgkmcnt(0)")
        a("s_sub_u32 s23, s20, s22")
        a("s_cmp_lt_i32 s23, 0")
        a("s_cbranch_scc1 L_probe")
    a("s_mov_b64 exec, -1")
    stamp(5)
    dump_stamps(6)
    a("s_endpgm")
    a.label("L_slice_nf")
    a("s_barrier")
    a("s_barrier")
    dump_stamps(5)
    a("s_endpgm")

    a.label("L_aux")
    srd(44, 28, 512*1792*2)
    srd(48, 30, 512*1792*2)
    srd(52, 32, 1792*512*2)
    a("v_mov_b32 v10, 1")
    sexpr("s18", [(S_X, "mul", 224*1024), (S_KQ, "mul", 56*1024), (S_CB, "shl", 7)])
    sexpr("s19", [(S_KQ, "mul", 128*3584), (S_X, "mul", 448), (S_CB, "shl", 6)])
    a("s_waitcnt vmcnt(0)")
    get_tag()
    strip_voff(3584, "v64")
    unit_voffs(pitch_shift=10, d0="v66", d1="v67")
    a("v_mov_b32 v3, 0")
    stamp(1)
    if cfg.local == 2:
        L = a.newlabel("Lxc"); E = a.newlabel("Lxce")
        srd(60, 40, 256)
        a(f"s_lshl_b32 s91, {S_X}, 5")
        a("s_add_u32 s91, s91, 8")
        a("v_mov_b32 v18, s91")
        a("s_getreg_b32 s90, hwreg(HW_REG_XCC_ID)")
        a("s_and_b32 s90, s90, 7")
        a("s_mul_i32 s90, s90, 6")
        a("s_lshl_b64 s[26:27], 1, s90")
        a("s_mov_b64 exec, 1")
        a.label(L)
        a("buffer_load_dwordx2 v[20:21], v18, s[60:63], 0 offen sc1")
        a("s_waitcnt vmcnt(0)")
        a("v_readfirstlane_b32 s20, v20")
        a("v_readfirstlane_b32 s21, v21")
        a("s_mov_b64 s[22:23], s[20:21]")
        a("s_mov_b32 s90, 0")
        for k in range(8):
            a("s_and_b32 s91, s22, 63")
            a("s_add_u32 s90, s90, s91")
            if k < 7: a("s_lshr_b64 s[22:23], s[22:23], 6")
        a("s_cmp_ge_u32 s90, 32")
        a(f"s_cbranch_scc1 {E}")
        timeout()
        a("s_sleep 2")
        a(f"s_branch {L}")
        a.label(E)
        a("s_lshl_b64 s[22:23], s[26:27], 5")
        a("s_cmp_eq_u64 s[20:21], s[22:23]")
        a("s_cselect_b32 s90, 1, 2")
        a("v_mov_b32 v16, s90")
        a(f"ds_write_b32 v3, v16 offset:{F_LM}")
        a("s_mov_b64 exec, -1")
    stamp(2)
    a(f"s_cmp_lg_u32 {S_B}, 0")
    a("s_cbranch_scc1 L_aux_ga")
    a(f"s_cmp_ge_u32 {S_SPL}, 16")
    a("s_cbranch_scc1 L_aux_ga")
    a(f"s_lshr_b32 s90, {S_X}, 1")
    a(f"s_and_b32 s91, {S_X}, 1")
    a(f"s_lshr_b32 s22, {S_SPL}, 2")
    a(f"s_and_b32 s23, {S_SPL}, 3")
    sexpr("s20", [("s90", "shl", 15), ("s91", "shl", 14), ("s22", "shl", 12), ("s23", "shl", 8)], W_MOD + 2*32768)
    sexpr("s21", [("s90", "shl", 12), ("s91", "shl", 11), (S_SPL, "shl", 7)], W_MODF + 2*4096)
    a("v_lshlrev_b32 v18, 3, v0")
    a("s_mov_b32 exec_hi, 0")
    loads = []; tags = []
    for i in range(4):
        loads.append(f"buffer_load_dwordx2 v[{40+2*i}:{41+2*i}], v18, {WSRD}, s20 offen offset:{1024*i} sc1")
        tags.append(f"v{41+2*i}")
    poll(loads, tags, "v60", sleep=6, sample=True)
    a("v_add_f32 v40, v40, v42")
    a("v_add_f32 v44, v44, v46")
    a("v_add_f32 v40, v40, v44")
    a("v_lshlrev_b32 v18, 2, v0")
    a(f"v_mov_b32 v43, {S_TAG}")
    a("v_mov_b32_dpp v42, v40 quad_perm:[1,0,3,2] row_mask:0xf bank_mask:0xf")
    a("s_mov_b32 exec_lo, 0x55555555")
    a("v_cvt_pk_bf16_f32 v42, v40, v42")
    a(f"buffer_store_dwordx2 v[42:43], v18, {WSRD}, s21 offen sc1")
    a("s_mov_b64 exec, -1")
    a.label("L_aux_ga")
    sexpr("s20", [(S_LOC, "shl", 6)], W_MODF + 2*4096)
    a(f"s_add_u32 s21, s20, {3*4096}")
    a("v_bfe_u32 v16, v0, 3, 1")
    a("v_and_b32 v17, 7, v0")
    a("v_lshlrev_b32 v18, 11, v16")
    a("v_lshl_add_u32 v18, v17, 3, v18")
    a("v_and_b32 v19, 15, v0")
    a("v_lshlrev_b32 v19, 3, v19")
    a("s_mov_b64 exec, 0xffff")
    poll([f"buffer_load_dwordx2 v[40:41], v18, {WSRD}, s20 offen sc1",
          f"buffer_load_dwordx2 v[42:43], v18, {WSRD}, s21 offen sc1"], ["v41", "v43"], "v60", sleep=8)
    a("v_lshlrev_b32 v44, 16, v40")
    a("v_and_b32 v45, 0xffff0000, v40")
    a("v_lshlrev_b32 v46, 16, v42")
    a("v_and_b32 v47, 0xffff0000, v42")
    a(f"ds_write_b64 v19, v[44:45] offset:{L_GA}")
    a(f"ds_write_b64 v19, v[46:47] offset:{L_GB}")
    a("s_mov_b64 exec, -1")
    arrive(F_GA, "v3", "v10")
    r1_block("a", "v3")
    a("s_barrier")
    spin_lds(F_PA, 4, "v3", "v50", sleep=False)
    a(f"s_cmp_eq_u32 {S_CB}, 7")
    a("s_cbranch_scc1 L_aux_dn")
    a(f"s_mov_b32 m0, {L_G}")
    a("s_mov_b32 s99, 8")
    a.label("L_aux_gu")
    a("buffer_load_dwordx4 v64, s[44:47], s19 offen nt lds")
    a("s_add_u32 m0, m0, 0x2000")
    a("s_nop 0")
    a("buffer_load_dwordx4 v64, s[48:51], s19 offen nt lds")
    a("s_sub_u32 m0, m0, 0x1c00")
    a(f"s_add_u32 s19, s19, {16*3584}")
    a("s_sub_u32 s99, s99, 1")
    a("s_cmp_lg_u32 s99, 0")
    a("s_cbranch_scc1 L_aux_gu")
    a.label("L_aux_dn")
    a(f"s_mov_b32 m0, {L_DN}")
    a("s_nop 0")
    for i in range(8):
        a(f"buffer_load_dwordx4 v{66 + (i&1)}, s[52:55], s18 offen nt lds")
        a("s_add_u32 m0, m0, 0x400")
        a("s_add_u32 s18, s18, 0x2000")
    a("s_waitcnt vmcnt(0)")
    arrive(F_LATE, "v3", "v10")
    stamp(3)
    a("s_barrier")
    a("s_barrier")
    dump_stamps(4)
    a("s_endpgm")

    a.label("L_abort")
    a("s_mov_b64 exec, 1")
    a("v_mov_b32 v1, 0")
    a(f"s_lshl_b32 s90, {S_WG}, 16")
    a("s_or_b32 s90, s90, s1") if cfg.site else None
    a("v_mov_b32 v2, s90")
    a(f"s_and_b32 s90, {S_W}, 1")
    a("s_lshl_b32 s90, s90, 2")
    a("v_mov_b32 v1, s90")
    a("v_or_b32 v2, 0xde000000, v2")
    a("s_mov_b32 s44, s40")
    a("s_and_b32 s45, s41, 0xffff")
    a("s_mov_b32 s46, 256")
    a("s_mov_b32 s47, 0x20000")
    a("buffer_store_dword v2, v1, s[44:47], 0 offen")
    a.label("L_end")
    a("s_endpgm")

    hdr = open(f"cdna_kernels/{NAME}.s.ref").read().split("; Override launch")[0]
    out = hdr
    out += f"; @launch grid=(256,1,1) block=(576,1,1) lds={L_TOTAL}\n"
    out += '.amdgcn_target "amdgcn-amd-amdhsa--gfx950"\n.text\n'
    out += f".globl {NAME}_kernel\n.p2align 8\n.type {NAME}_kernel,@function\n"
    out += a.text()
    out += f""".section .rodata,"a"
.p2align 6
.amdhsa_kernel {NAME}_kernel
  .amdhsa_next_free_vgpr 128
  .amdhsa_next_free_sgpr 102
  .amdhsa_accum_offset 128
  .amdhsa_group_segment_fixed_size 0
  .amdhsa_kernarg_size 112
  .amdhsa_user_sgpr_count 2
  .amdhsa_user_sgpr_kernarg_segment_ptr 1
  .amdhsa_system_sgpr_workgroup_id_x 1
.end_amdhsa_kernel
"""
    return out

if __name__ == "__main__":
    cfg = Cfg()
    outp = sys.argv[1]
    for arg in sys.argv[2:]:
        k, v = arg.split("=")
        assert hasattr(cfg, k), k
        setattr(cfg, k, int(v))
    open(outp, "w").write(gen(cfg))
    print("wrote", outp)
```

```python
import sys
from asmlib import Asm

NAME = "adaLN_cond__sliding_block_cached__glu_gated_bilinear__decode"

class Cfg:
    D = 40
    DA = 28
    DA1 = 0
    stamps = 0
    spin = 1 << 20
    rsl = 1
    local = 2
    touch = 1
    wq1 = 4
    quiet = 0
    prio = 0
    qsl = 4
    kstart = 1
    d_h = 4
    d_q = 1
    d_r1 = 1
    d_s5 = 8
    d_x1 = 1
    d_gu = 1
    d_s8 = 2
    atom8 = 1
    probe = 0
    site = 0

(F_LC, F_1, F_2, F_3, F_EC, F_KC, F_MB1, F_MB2, F_LATE, F_PO, F_PA, F_PX, F_PG, F_PD,
 F_PM, F_PQ, F_XC, F_WQ, F_WOL, F_MRL, F_LM, F_GA) = [4*i for i in range(22)]
L_MX = 128; L_LS = 192; L_ZERO = 256
L_ACT1 = 768; L_ACT2 = 1344; L_ACT4 = 1920; L_ACT6 = 2496; L_ACT7 = 3072
L_PRB = 7424
L_GA = 7168; L_GB = 7296
L_Q = 3648
L_P = 4736
L_X = 8192; L_C = 10240
L_K = 12288; L_V = L_K + 73728; L_TOTAL = L_V + 73728; L_MR = L_V + 57344
NK_A = 288; NK_B = 160
L_MODB = L_K; L_WQ = L_V
L_WO = L_K; L_G = L_K + 16384; L_U = L_K + 24576; L_DN = L_K + 32768
APITCH = 272; PPITCH = 592

W_EPOCH = 0
W_MOD = 0x1000
W_MODF = 0x38000
W_Q = 0x40000
W_ST = 0x80000
W_O = 0x90000
W_A4 = 0x110000
W_X1P = 0x150000
W_X1S = 0x158000
W_GU = 0x160000
W_DN = 0x1A0000
W_STAMP = 0x200000
W_USED = 0x300000

LOG2E = 0x3fb8aa3b
SCALE = 0x3db504f3
EPS = 0x3727c5ac
INV512 = 0x3b000000

S_WG, S_W, S_X, S_LOC, S_B, S_SPL, S_KQ, S_CB, S_TAG, S_SPIN = "s2", "s3", "s4", "s5", "s6", "s7", "s8", "s9", "s10", "s11"
S_U = "s7"
S_BT = "s86"
S_SP = "s87"
WSRD = "s[12:15]"
S_EP = "s89"
S_LM = "s88"
PX = "s[42:43]"
S_PH = "s101"
KB_B = 16

def gen(cfg):
    a = Asm()
    D = cfg.D

    def srd(dst, plo, size):
        a(f"s_mov_b32 s{dst}, s{plo}")
        a(f"s_and_b32 s{dst+1}, s{plo+1}, 0xffff")
        a(f"s_mov_b32 s{dst+2}, {size}")
        a(f"s_mov_b32 s{dst+3}, 0x20000")

    def stamp(k):
        if cfg.stamps: a(f"s_memrealtime s[{64+2*k}:{65+2*k}]")

    def mark(pid, vz):
        if cfg.probe == pid:
            a("s_memrealtime s[62:63]")
            a("s_waitcnt lgkmcnt(0)")
            a("v_mov_b32 v127, s62")
            a(f"ds_max_u32 {vz}, v127 offset:{L_PRB}")

    def dump_stamps(n):
        if not cfg.stamps: return
        a("s_waitcnt lgkmcnt(0)")
        a(f"s_mul_i32 s90, {S_WG}, 9")
        a(f"s_add_u32 s90, s90, {S_W}")
        a("s_lshl_b32 s90, s90, 7")
        a(f"s_add_u32 s90, s90, {W_STAMP}")
        a("s_mov_b64 exec, 1")
        a("v_mov_b32 v1, 0")
        for k in range(n):
            a(f"v_mov_b32 v2, s{64+2*k}")
            a(f"v_mov_b32 v3, s{65+2*k}")
            a(f"buffer_store_dwordx2 v[2:3], v1, {WSRD}, s90 offen offset:{8*k}")
            a("s_nop 1")
        a("s_waitcnt vmcnt(0)")

    sites = [0]
    def timeout():
        if cfg.site:
            sites[0] += 1
            a(f"s_mov_b32 s1, {sites[0]}")
        a(f"s_sub_u32 {S_SPIN}, {S_SPIN}, 1")
        a("s_cbranch_scc1 L_abort")

    def spin_lds(off, n, vz, vt, sleep=True):
        L = a.newlabel("Lsp"); E = a.newlabel("Lspe")
        a.label(L)
        a(f"ds_read_b32 {vt}, {vz} offset:{off}")
        a("s_waitcnt lgkmcnt(0)")
        a(f"v_readfirstlane_b32 s91, {vt}")
        a(f"s_cmp_ge_i32 s91, {n}")
        a(f"s_cbranch_scc1 {E}")
        timeout()
        if sleep: a("s_sleep 1")
        a(f"s_branch {L}")
        a.label(E)

    def arrive(off, vz, vone):
        a("s_mov_b64 s[92:93], exec")
        a("s_mov_b64 exec, 1")
        a(f"ds_add_u32 {vz}, {vone} offset:{off}")
        a("s_mov_b64 exec, s[92:93]")

    def poll(loads, tags, vacc, sleep=None, sample=False):
        if sleep is None: sleep = cfg.rsl
        L = a.newlabel("Lpl"); E = a.newlabel("Lple"); R = a.newlabel("Lplr")
        a(f"s_mov_b64 {PX}, exec")
        if sample:
            a(f"s_mov_b32 {S_PH}, 0")
            a("s_mov_b64 exec, 1")
        a.label(L)
        for ld in loads: a(ld)
        a("s_waitcnt vmcnt(0)")
        a(f"v_xor_b32 {vacc}, {S_TAG}, {tags[0]}")
        for t in tags[1:]:
            a(f"v_bitop3_b32 {vacc}, {vacc}, {t}, {S_TAG} bitop3:0xf6")
        a(f"v_cmp_ne_u32 vcc, 0, {vacc}")
        if sample:
            a(f"s_cbranch_vccnz {R}")
            a(f"s_cmp_lg_u32 {S_PH}, 0")
            a(f"s_cbranch_scc1 {E}")
            a(f"s_mov_b32 {S_PH}, 1")
            a(f"s_mov_b64 exec, {PX}")
            a(f"s_branch {L}")
            a.label(R)
        else:
            a(f"s_cbranch_vccz {E}")
        a("s_mov_b64 exec, vcc")
        timeout()
        if sleep: a(f"s_sleep {sleep}")
        a(f"s_branch {L}")
        a.label(E)
        a(f"s_mov_b64 exec, {PX}")

    def after_own(flag, n, vz, vt, dly):
        spin_lds(flag, n, vz, vt, sleep=False)
        if dly: a(f"s_sleep {dly}")

    def get_mode(vz, vt):
        if cfg.local == 2:
            spin_lds(F_LM, 1, vz, vt)
            a(f"s_mov_b32 {S_LM}, s91")

    def store_loc(text):
        if cfg.local == 0: a(text + " sc1")
        elif cfg.local == 1: a(text)
        else:
            P = a.newlabel("Lst"); E = a.newlabel("Lste")
            a(f"s_cmp_eq_u32 {S_LM}, 1")
            a(f"s_cbranch_scc1 {P}")
            a(text + " sc1")
            a(f"s_branch {E}")
            a.label(P)
            a(text)
            a.label(E)

    def bf16r2(d0, d1, s0, s1, tmp):
        a(f"v_cvt_pk_bf16_f32 {tmp}, {s0}, {s1}")
        a(f"v_lshlrev_b32 {d0}, 16, {tmp}")
        a(f"v_and_b32 {d1}, 0xffff0000, {tmp}")

    def bf16r1(d, s):
        a(f"v_cvt_pk_bf16_f32 {d}, {s}, {s}")
        a(f"v_lshlrev_b32 {d}, 16, {d}")

    def allreduce(regs, op, tmps, steps):
        dpp = {"x1": "quad_perm:[1,0,3,2]", "x2": "quad_perm:[2,3,0,1]", "x4": "row_half_mirror", "x8": "row_mirror", "r8": "row_ror:8", "r4": "row_ror:4"}
        for s in steps:
            if s in dpp:
                for r in regs:
                    a(f"{op}_dpp {r}, {r}, {r} {dpp[s]} row_mask:0xf bank_mask:0xf")
            else:
                ins = "v_permlane16_swap_b32" if s == "x16" else "v_permlane32_swap_b32"
                for r, t in zip(regs, tmps): a(f"v_mov_b32 {t}, {r}")
                for r, t in zip(regs, tmps): a(f"{ins} {r}, {t}")
                for r, t in zip(regs, tmps): a(f"{op} {r}, {r}, {t}")
    FULL = ["x1", "x2", "x4", "x8", "x16", "x32"]

    def sexpr(dst, terms, const=0, tmp="s94"):
        first = True
        for (reg, kind, n) in terms:
            tgt = dst if first else tmp
            if kind == "shl":
                if n == 0: a(f"s_mov_b32 {tgt}, {reg}")
                else: a(f"s_lshl_b32 {tgt}, {reg}, {n}")
            else: a(f"s_mul_i32 {tgt}, {reg}, {n}")
            if not first: a(f"s_add_u32 {dst}, {dst}, {tmp}")
            first = False
        if const: a(f"s_add_u32 {dst}, {dst}, {const}")

    def get_tag():
        a(f"v_readfirstlane_b32 {S_EP}, v3")
        a(f"s_add_u32 {S_EP}, {S_EP}, 1")
        a(f"s_mul_i32 {S_TAG}, {S_EP}, 0x9E3779B1")

    def unit_voffs(pitch_shift=None, pitch=None, d0="v24", d1="v25"):
        a("v_lshrrev_b32 v3, 3, v0")
        a("v_bfe_u32 v4, v0, 4, 1")
        a("v_lshlrev_b32 v4, 1, v4")
        a("v_and_b32 v5, 7, v0")
        a("v_xor_b32 v4, v4, v5")
        a("v_lshlrev_b32 v4, 4, v4")
        if pitch_shift is not None: a(f"v_lshlrev_b32 v6, {pitch_shift}, v3")
        else: a(f"v_mul_u32_u24 v6, {pitch}, v3")
        a(f"v_add_u32 {d0}, v6, v4")
        a(f"v_xor_b32 {d1}, 64, {d0}")

    def strip_voff(pitch, d):
        a("v_lshrrev_b32 v6, 2, v0")
        a(f"v_mul_u32_u24 {d}, {pitch}, v6")
        a("v_bfe_u32 v6, v0, 5, 1")
        a("v_lshlrev_b32 v6, 1, v6")
        a("v_and_b32 v7, 3, v0")
        a("v_xor_b32 v6, v6, v7")
        a(f"v_lshl_add_u32 {d}, v6, 4, {d}")

    a.label(f"{NAME}_kernel")
    a(f"s_cmp_ge_u32 {S_WG}, 256")
    a("s_cbranch_scc1 L_end")
    a("s_load_dwordx16 s[16:31], s[0:1], 0")
    a("s_load_dwordx8 s[32:39], s[0:1], 64")
    a("s_load_dwordx4 s[40:43], s[0:1], 96")
    stamp(0)
    if cfg.probe == 3: a("s_memrealtime s[62:63]")
    a("v_lshrrev_b32 v1, 6, v0")
    a("v_and_b32 v0, 63, v0")
    a(f"v_readfirstlane_b32 {S_W}, v1")
    a(f"s_and_b32 {S_X}, {S_WG}, 7")
    a(f"s_lshr_b32 {S_LOC}, {S_WG}, 3")
    a(f"s_cmp_lt_u32 {S_LOC}, 8")
    a(f"s_cselect_b32 {S_B}, 1, 0")
    a(f"s_cselect_b32 s90, 0, 8")
    a(f"s_sub_u32 {S_SPL}, {S_LOC}, s90")
    a(f"s_cselect_b32 s91, 4, 12") if False else None
    a(f"s_cmp_lt_u32 {S_LOC}, 8")
    a(f"s_cselect_b32 s91, 4, 12")
    a(f"s_cselect_b32 s94, 0, 4")
    a(f"s_cmp_ge_u32 {S_SPL}, s91")
    a(f"s_cselect_b32 {S_BT}, 1, 0")
    a(f"s_mul_i32 s90, {S_BT}, s91")
    a(f"s_sub_u32 {S_SP}, {S_SPL}, s90")
    a(f"s_add_u32 {S_SP}, {S_SP}, s94")
    a(f"s_lshr_b32 {S_KQ}, {S_LOC}, 3")
    a(f"s_and_b32 {S_CB}, {S_LOC}, 7")
    a(f"s_mov_b32 {S_SPIN}, {cfg.spin}")
    a(f"s_mov_b32 {S_LM}, {1 if cfg.local == 1 else 2}")
    a(f"s_cmp_lg_u32 {S_W}, 8")
    a("s_cbranch_scc1 L_worker")

    SLC = "s95"; SOFF = "s96"
    unit_voffs(pitch=6144, d0="v20", d1="v21")
    a(f"s_and_b32 s90, {S_SPL}, 3")
    a(f"s_mul_i32 {SOFF}, s90, {128*6144}")
    a(f"s_lshl_b32 s90, {S_X}, 8")
    a(f"s_add_u32 {SOFF}, {SOFF}, s90")
    a(f"s_lshr_b32 s90, {S_SPL}, 2")
    a("s_lshl_b32 s90, s90, 7")
    a(f"s_add_u32 {SOFF}, {SOFF}, s90")
    a(f"s_mov_b32 m0, {L_MODB}")
    a("s_waitcnt lgkmcnt(0)")
    srd(44, 36, 512*3072*2)
    a(f"s_cmp_eq_u32 {S_B}, 0")
    a("s_cbranch_scc1 L_ld_nomod")
    for i in range(16):
        a(f"buffer_load_dwordx4 v{20 + (i&1)}, s[44:47], {SOFF} offen nt lds")
        if i < 15:
            a(f"s_add_u32 {SOFF}, {SOFF}, {8*6144}")
            a("s_add_u32 m0, m0, 0x400")
    a.label("L_ld_nomod")
    if cfg.prio: a("s_setprio 3")
    a("s_barrier")
    stamp(1)
    srd(12, 42, W_USED)
    srd(52, 18, 2*8*32768*128*2)
    srd(56, 20, 2*8*32768*128*2)
    srd(60, 24, 4096*512*2)
    a("v_mov_b32 v10, 0")
    a("v_lshrrev_b32 v3, 4, v0")
    a("v_and_b32 v4, 15, v0")
    a("v_xor_b32 v5, v4, v3")
    a("v_lshlrev_b32 v5, 4, v5")
    a("v_lshl_add_u32 v26, v3, 8, v5")
    a("v_xor_b32 v27, 64, v26")
    a("v_xor_b32 v28, 0x80, v26")
    a("v_xor_b32 v29, 0xc0, v26")
    a("v_lshlrev_b32 v5, 1, v3")
    a("v_xor_b32 v5, v4, v5")
    a("v_lshlrev_b32 v5, 4, v5")
    a("v_lshl_add_u32 v30, v3, 8, v5")
    a("v_xor_b32 v31, 0x80, v30")
    a(f"s_mul_i32 s91, {S_B}, {(NK_B - NK_A) * 256}")
    a(f"s_add_u32 s91, s91, {NK_A * 256}")
    a(f"s_mul_i32 s90, {S_SP}, s91")
    a(f"s_mul_i32 s91, {S_B}, {512 * 256}")
    a("s_add_u32 s90, s90, s91")
    sexpr("s98", [(S_BT, "shl", 26), (S_X, "shl", 23), ("s90", "shl", 0)], (28672 - 512) * 256)
    unit_voffs(pitch_shift=10)

    def lc_write(val, off=F_LC):
        a(f"v_mov_b32 v11, {val}")
        a(f"ds_write_b32 v10, v11 offset:{off}")
    def seg(name, variants, srdn, step, iters, ldsbase):
        a(f"s_mov_b32 m0, {ldsbase}")
        a(f"s_mov_b32 s97, {iters}")
        a.label(name)
        for v in variants:
            a(f"buffer_load_dwordx4 {v}, s[{srdn}:{srdn+3}], {SOFF} offen nt lds")
            a(f"s_add_u32 {SOFF}, {SOFF}, {step}")
            a("s_add_u32 m0, m0, 0x400")
        a("s_sub_u32 s97, s97, 1")
        a("s_cmp_lg_u32 s97, 0")
        a(f"s_cbranch_scc1 {name}")
    def drain(end, ks):
        for k in ks:
            a(f"s_waitcnt vmcnt({k})")
            lc_write(end - k)
    def seg4(name, variants, srdn, iters, ldsbase, D=D):
        if ldsbase is not None: a(f"s_mov_b32 m0, {ldsbase}")
        a(f"s_mov_b32 s97, {iters}")
        a.label(name)
        for i, v in enumerate(variants):
            a(f"buffer_load_dwordx4 {v}, s[{srdn}:{srdn+3}], {SOFF} offen offset:{1024*i} nt lds")
        a(f"s_add_u32 {SOFF}, {SOFF}, 0x1000")
        a("s_add_u32 m0, m0, 0x1000")
        a(f"s_add_u32 {SLC}, {SLC}, 4")
        a(f"v_mov_b32 v11, {SLC}")
        a(f"s_waitcnt vmcnt({D-4})")
        a(f"ds_write_b32 v10, v11 offset:{F_LC}")
        a("s_sub_u32 s97, s97, 1")
        a("s_cmp_lg_u32 s97, 0")
        a(f"s_cbranch_scc1 {name}")
    WO_OFF = [(S_X, "shl", 19), (S_KQ, "shl", 17), (S_CB, "shl", 7)]

    a(f"s_cmp_eq_u32 {S_B}, 0")
    a("s_cbranch_scc1 L_ld_A")
    a("s_waitcnt vmcnt(0)")
    lc_write(KB_B)
    if cfg.kstart == 0:
        spin_lds(F_EC, 4, "v10", "v12")
        spin_lds(F_3, 2, "v10", "v12", sleep=False)
    elif cfg.kstart == 1:
        spin_lds(F_PQ, 4, "v10", "v12", sleep=False)
    else:
        pass
    stamp(2)
    a(f"s_mov_b32 {SLC}, {KB_B - (D - 4)}")
    a(f"s_mov_b32 {SOFF}, s98")
    seg4("L_ld_kB", ["v26", "v27", "v28", "v29"], 52, NK_B // 16, L_K)
    a(f"s_mov_b32 {SOFF}, s98")
    seg4("L_ld_vB", ["v30", "v30", "v31", "v31"], 56, NK_B // 16, L_V)
    stamp(3)
    sexpr(SOFF, WO_OFF)
    a(f"ds_read_b32 v12, v10 offset:{F_KC}")
    a("s_waitcnt lgkmcnt(0)")
    a("v_readfirstlane_b32 s91, v12")
    a("s_cmp_ge_i32 s91, 4")
    a("s_cbranch_scc0 L_ld_Bslow")
    seg("L_ld_woB", ["v24", "v25"], 60, 8192, 8, L_WO)
    drain(KB_B + NK_B // 2 + 16, [k for k in (48, 40, 32, 24, 16) if k < D + 12])
    stamp(4)
    a("s_branch L_ld_fin")
    a.label("L_ld_Bslow")
    drain(KB_B + NK_B // 2, [k for k in (32, 24, 16, 8) if k < D - 4] + [0])
    stamp(4)
    spin_lds(F_KC, 4, "v10", "v12")
    seg("L_ld_woB2", ["v24", "v25"], 60, 8192, 8, L_WO)
    a.label("L_ld_fin")
    a("s_waitcnt vmcnt(0)")
    lc_write(1, F_WOL)
    stamp(5)
    dump_stamps(6)
    a("s_endpgm")
    a.label("L_ld_A")
    DA = cfg.DA
    a(f"s_and_b32 s90, {S_SPL}, 3")
    a(f"s_mul_i32 {SOFF}, s90, {128*6144}")
    a(f"s_lshr_b32 s90, {S_SPL}, 2")
    a(f"s_lshl_b32 s94, {S_X}, 2")
    a("s_add_u32 s90, s90, s94")
    a("s_add_u32 s90, s90, 16")
    a("s_lshl_b32 s90, s90, 7")
    a(f"s_add_u32 {SOFF}, {SOFF}, s90")
    spin_lds(F_1, 2, "v10", "v12", sleep=False)
    a(f"s_cmp_ge_u32 {S_SPL}, 16")
    a("s_cbranch_scc1 L_ld_nomr")
    seg("L_ld_mr", ["v20", "v21"], 44, 8*6144, 8, L_MR)
    a.label("L_ld_nomr")
    DA1 = cfg.DA1 or DA
    a(f"s_mov_b32 {SLC}, {-(DA1 - 4)}")
    a(f"s_mov_b32 {SOFF}, s98")
    n0 = (DA1 - 4 + 3) // 4
    assert 0 < n0 < NK_A // 16
    seg4("L_ld_kA0", ["v26", "v27", "v28", "v29"], 52, n0, L_K, DA1)
    lc_write(1, F_MRL)
    seg4("L_ld_kA", ["v26", "v27", "v28", "v29"], 52, NK_A // 16 - n0, None, DA1)
    stamp(2)
    a(f"s_mov_b32 {SOFF}, s98")
    if DA > DA1:
        assert (DA - DA1) % 4 == 0
        a(f"s_mov_b32 m0, {L_V}")
        a("s_nop 0")
        for it in range((DA - DA1) // 4):
            for i, v in enumerate(["v30", "v30", "v31", "v31"]):
                a(f"buffer_load_dwordx4 {v}, s[56:59], {SOFF} offen offset:{1024*i} nt lds")
            a(f"s_add_u32 {SOFF}, {SOFF}, 0x1000")
            a("s_add_u32 m0, m0, 0x1000")
        seg4("L_ld_vA", ["v30", "v30", "v31", "v31"], 56, NK_A // 16 - 4 - (DA - DA1) // 4, None, DA)
    else:
        seg4("L_ld_vA", ["v30", "v30", "v31", "v31"], 56, NK_A // 16 - 4, L_V, DA)
    spin_lds(F_EC, 4, "v10", "v12")
    seg4("L_ld_vA2", ["v30", "v30", "v31", "v31"], 56, 4, None, DA)
    stamp(3)
    drain(NK_A // 2, [k for k in (32, 24, 16, 8) if k < DA - 4] + [0])
    stamp(4)
    spin_lds(F_KC, 4, "v10", "v12")
    sexpr(SOFF, WO_OFF)
    seg("L_ld_woA", ["v24", "v25"], 60, 8192, 8, L_WO)
    a("s_branch L_ld_fin")

    a.label("L_worker")
    a(f"s_cmp_lg_u32 {S_W}, 4")
    a("s_cbranch_scc1 L_wk2")
    a("v_mov_b32 v10, 0")
    for r in range(12, 16): a(f"v_mov_b32 v{r}, 0")
    a("v_lshlrev_b32 v1, 2, v0")
    a("v_lshlrev_b32 v2, 4, v0")
    a("ds_write_b32 v1, v10")
    a(f"ds_write_b128 v2, v[12:15] offset:{L_ZERO}")
    if cfg.probe >= 10: a(f"ds_write_b32 v10, v10 offset:{L_PRB}")
    if cfg.local == 1:
        a("v_mov_b32 v11, 1")
        a(f"ds_write_b32 v10, v11 offset:{F_LM}")
    a.label("L_wk2")
    a("s_waitcnt lgkmcnt(0)")
    srd(12, 42, W_USED)
    srd(44, 16, 2048)
    srd(48, 34, 2048)
    a(f"s_sub_u32 s97, {S_W}, 5")
    a("s_and_b32 s97, s97, 1")
    a("s_lshl_b32 s90, s97, 10")
    a(f"s_and_b32 s94, {S_SPL}, 3")
    a("s_lshl_b32 s94, s94, 8")
    a("s_add_u32 s94, s94, s90")
    a("v_lshlrev_b32 v1, 4, v0")
    a("v_lshlrev_b32 v2, 2, v0")
    a(f"s_cmp_lt_u32 {S_W}, 5")
    a("s_cbranch_scc1 L_wk2b")
    a(f"s_cmp_eq_u32 {S_W}, 7")
    a("s_cbranch_scc1 L_wk2b")
    a("buffer_load_dword v9, v2, s[48:51], s94 offen")
    a("buffer_load_dwordx4 v[4:7], v1, s[44:47], s90 offen")
    a(f"s_lshr_b32 s94, {S_SPL}, 1")
    a("s_and_b32 s94, s94, 3")
    a("s_lshl_b32 s94, s94, 8")
    a("s_add_u32 s94, s94, s90")
    a("buffer_load_dword v8, v2, s[44:47], s94 offen")
    a.label("L_wk2b")
    a("v_mov_b32 v2, 0")
    a(f"buffer_load_dword v3, v2, {WSRD}, 0 offen sc1")
    a(f"s_cmp_lg_u32 {S_W}, 7")
    a("s_cbranch_scc1 L_wk3")
    if cfg.local == 2:
        srd(60, 40, 256)
        a("s_getreg_b32 s90, hwreg(HW_REG_XCC_ID)")
        a("s_and_b32 s90, s90, 7")
        a("s_mul_i32 s90, s90, 6")
        a("s_lshl_b64 s[26:27], 1, s90")
        a(f"s_lshl_b32 s91, {S_X}, 5")
        a("s_add_u32 s91, s91, 8")
        a("v_mov_b32 v18, s91")
        a("v_mov_b32 v16, s26")
        a("v_mov_b32 v17, s27")
        a("s_mov_b64 exec, 1")
        a("buffer_atomic_add_x2 v[16:17], v18, s[60:63], 0 offen sc1")
        a("s_mov_b64 exec, -1")
    if cfg.touch:
        sexpr("s90", [(S_BT, "shl", 26), (S_X, "shl", 23), (S_SP, "shl", 16)], 28672*256)
        a("s_load_dword s78, s[18:19], s90")
        a("s_load_dword s79, s[20:21], s90")
        a(f"s_lshr_b32 s91, {S_SPL}, 1")
        a("s_and_b32 s91, s91, 3")
        a("s_lshl_b32 s91, s91, 20")
        a("s_load_dword s80, s[22:23], s91")
        sexpr("s91", [(S_X, "shl", 19), (S_KQ, "shl", 17)])
        a("s_load_dword s81, s[24:25], s91")
        a(f"s_mul_i32 s91, {S_KQ}, {128*3584}")
        a("s_load_dword s82, s[28:29], s91")
        a("s_load_dword s83, s[30:31], s91")
        a(f"s_mul_i32 s91, {S_X}, {224*1024}")
        a("s_load_dword s84, s[32:33], s91")
        a("s_load_dword s85, s[38:39], 0")
    a.label("L_wk3")
    a("s_barrier")
    a(f"s_cmp_ge_u32 {S_W}, 4")
    a("s_cbranch_scc1 L_gwave")

    a.label("L_mwave")
    srd(56, 22, 512*4096*2)
    a("v_lshrrev_b32 v1, 4, v0")
    a("v_and_b32 v2, 15, v0")
    a("v_mov_b32 v4, 1")
    a("v_lshlrev_b32 v22, 1, v1")
    a("v_xor_b32 v22, v2, v22")
    a("v_lshlrev_b32 v22, 4, v22")
    a("v_lshl_add_u32 v56, v1, 13, v22")
    a("v_xor_b32 v57, 0x80, v56")
    a(f"s_lshr_b32 s90, {S_SPL}, 1")
    a(f"s_and_b32 s91, {S_SPL}, 1")
    sexpr("s96", [("s90", "shl", 20), (S_X, "shl", 10), ("s91", "shl", 9), (S_W, "shl", 18)])
    a("v_bfe_u32 v6, v2, 2, 1")
    a(f"v_mul_u32_u24 v6, {APITCH}, v6")
    a("v_lshl_add_u32 v6, v1, 4, v6")
    a("v_bfe_u32 v16, v0, 2, 2")
    a("v_and_b32 v17, 3, v0")
    a("v_lshl_add_u32 v18, v1, 3, v16")
    a("v_lshrrev_b32 v19, 1, v17")
    a("v_and_b32 v20, 1, v17")
    a("v_and_b32 v21, 1, v1")
    a("v_lshrrev_b32 v22, 1, v16")
    a("v_lshl_or_b32 v22, v21, 1, v22")
    a("v_lshlrev_b32 v22, 1, v22")
    a(f"s_lshl_b32 s90, {S_W}, 1")
    a("v_add_u32 v23, s90, v19")
    a("v_xor_b32 v23, v23, v22")
    a("v_lshlrev_b32 v7, 7, v18")
    a("v_lshl_add_u32 v7, v23, 4, v7")
    a("v_lshl_add_u32 v7, v20, 3, v7")
    a(f"s_and_b32 s90, {S_W}, 1")
    a("s_lshl_b32 s90, s90, 1")
    a("v_add_u32 v23, s90, v19")
    a("v_lshlrev_b32 v22, 1, v21")
    a("v_xor_b32 v23, v23, v22")
    a("v_lshlrev_b32 v12, 6, v18")
    a("v_lshl_add_u32 v12, v23, 4, v12")
    a("v_lshl_add_u32 v12, v20, 3, v12")
    a("v_lshl_or_b32 v22, v21, 2, v16")
    a("v_lshlrev_b32 v22, 1, v22")
    a(f"s_lshl_b32 s90, {S_W}, 2")
    a("v_add_u32 v23, s90, v19")
    a("v_xor_b32 v24, v23, v22")
    a("v_lshlrev_b32 v25, 8, v18")
    a("v_lshl_add_u32 v25, v20, 3, v25")
    a("v_lshl_add_u32 v13, v24, 4, v25")
    a("v_add_u32 v23, 2, v23")
    a("v_xor_b32 v24, v23, v22")
    a("v_lshl_add_u32 v14, v24, 4, v25")
    a("v_bfe_u32 v8, v0, 4, 1")
    a("v_lshlrev_b32 v9, 3, v2")
    O_MOD, O_Q, O_O, O_A4, O_GU, O_DN, O_ST, T_K, T_V = "s16", "s17", "s18", "s19", "s20", "s21", "s24", "s25", "s26"
    a(f"s_mul_i32 {T_K}, {S_B}, {KB_B + NK_B // 4 - NK_A // 4}")
    a(f"s_add_u32 {T_K}, {T_K}, {NK_A // 4}")
    a(f"s_mul_i32 {T_V}, {S_B}, {KB_B + NK_B // 2 - NK_A // 2}")
    a(f"s_add_u32 {T_V}, {T_V}, {NK_A // 2}")
    sexpr(O_O, [(S_X, "shl", 16), (S_BT, "shl", 13), (S_SP, "shl", 9), (S_W, "shl", 7)], W_O)
    sexpr(O_A4, [(S_CB, "shl", 14), (S_W, "shl", 12), (S_X, "shl", 8), (S_KQ, "shl", 6)], W_A4)
    a(f"s_add_u32 {O_DN}, {O_A4}, {W_DN - W_A4}")
    a(f"s_lshr_b32 s90, {S_W}, 1")
    a(f"s_and_b32 s91, {S_W}, 1")
    sexpr(O_GU, [(S_X, "shl", 15), ("s90", "shl", 14), (S_KQ, "shl", 11), (S_CB, "shl", 8), ("s91", "shl", 7)], W_GU)
    sexpr(O_ST, [(S_X, "shl", 11), (S_BT, "shl", 10), (S_SP, "shl", 4)], W_ST)
    a(f"s_and_b32 s90, {S_SPL}, 1")
    a("s_lshl_b32 s90, s90, 1")
    a(f"s_lshr_b32 s91, {S_W}, 1")
    a("s_add_u32 s90, s90, s91")
    a(f"s_lshr_b32 s91, {S_SPL}, 1")
    a(f"s_and_b32 s97, {S_W}, 1")
    sexpr(O_Q, [(S_X, "shl", 15), ("s90", "shl", 12), ("s91", "shl", 10), ("s97", "shl", 9)], W_Q)
    a(f"s_cmp_eq_u32 {S_B}, 0")
    a("s_cbranch_scc1 L_m_offA")
    a(f"s_lshr_b32 s90, {S_X}, 2")
    a(f"s_and_b32 s91, {S_X}, 3")
    a(f"s_lshr_b32 s97, {S_SPL}, 2")
    a(f"s_and_b32 s98, {S_SPL}, 3")
    sexpr(O_MOD, [("s90", "shl", 15), ("s91", "shl", 12), ("s98", "shl", 10), ("s97", "shl", 9), (S_W, "shl", 7)], W_MOD)
    a("s_branch L_m_offE")
    a.label("L_m_offA")
    a(f"s_lshr_b32 s90, {S_X}, 1")
    a(f"s_and_b32 s91, {S_X}, 1")
    a("s_lshl_b32 s91, s91, 2")
    a(f"s_lshr_b32 s97, {S_SPL}, 2")
    a("s_add_u32 s91, s91, s97")
    a("s_lshr_b32 s97, s91, 1")
    a("s_and_b32 s91, s91, 1")
    a(f"s_and_b32 s98, {S_SPL}, 3")
    sexpr(O_MOD, [("s90", "shl", 15), ("s97", "shl", 12), ("s98", "shl", 10), ("s91", "shl", 9), (S_W, "shl", 7)], W_MOD + 2*32768)
    a.label("L_m_offE")
    a("s_waitcnt vmcnt(0)")
    get_tag()
    a("v_mov_b32 v3, 0")
    stamp(1)

    def loadB(vaddr, nk, kstride, hoff, base=16):
        for t in range(nk):
            a(f"ds_read_b64_tr_b16 v[{base+4*t}:{base+4*t+1}], {vaddr} offset:{t*kstride}")
            a(f"ds_read_b64_tr_b16 v[{base+4*t+2}:{base+4*t+3}], {vaddr} offset:{t*kstride+hoff}")

    def gemv(act_off, nk, bbase=16, second=None):
        for t in range(nk):
            a(f"ds_read_b128 v[{32+4*t}:{35+4*t}], v6 offset:{act_off+64*t}")
        for t in range(nk):
            a(f"s_waitcnt lgkmcnt({nk-1-t})")
            c = "0" if t == 0 else "v[48:51]"
            a(f"v_mfma_f32_16x16x32_bf16 v[48:51], v[{32+4*t}:{35+4*t}], v[{bbase+4*t}:{bbase+4*t+3}], {c}")
            if second is not None:
                c = "0" if t == 0 else "v[56:59]"
                a(f"v_mfma_f32_16x16x32_bf16 v[56:59], v[{32+4*t}:{35+4*t}], v[{second+4*t}:{second+4*t+3}], {c}")

    def publish(shift, soff, local=False, second=False):
        a(f"v_lshl_add_u32 v54, v8, {shift}, v9")
        a(f"v_mov_b32 v53, {S_TAG}")
        if second: a(f"v_mov_b32 v61, {S_TAG}")
        a("v_mov_b32 v52, v48")
        if second: a("v_mov_b32 v60, v56")
        a("s_mov_b32 exec_hi, 0")
        t1 = f"buffer_store_dwordx2 v[52:53], v54, {WSRD}, {soff} offen"
        t2 = f"buffer_store_dwordx2 v[60:61], v54, {WSRD}, {soff} offen offset:128"
        if local:
            store_loc(t1)
            if second: store_loc(t2)
        else:
            a(t1 + " sc1")
            if second: a(t2 + " sc1")
        a("s_mov_b32 exec_hi, -1")

    def publish_pair(soff):
        a("v_lshlrev_b32 v54, 11, v8")
        a("v_lshl_add_u32 v54, v2, 2, v54")
        a(f"v_mov_b32 v53, {S_TAG}")
        a("v_mov_b32_dpp v52, v48 quad_perm:[1,0,3,2] row_mask:0xf bank_mask:0xf")
        a("s_mov_b32 exec_lo, 0x55555555")
        a("s_mov_b32 exec_hi, 0")
        a("v_cvt_pk_bf16_f32 v52, v48, v52")
        a(f"buffer_store_dwordx2 v[52:53], v54, {WSRD}, {soff} offen sc1")
        a("s_mov_b64 exec, -1")

    a(f"s_cmp_lg_u32 {S_B}, 0")
    a("s_cbranch_scc1 L_m_B")
    a(f"s_cmp_ge_u32 {S_SPL}, 16")
    a("s_cbranch_scc1 L_m_nomr")
    spin_lds(F_1, 2, "v3", "v5")
    spin_lds(F_MRL, 1, "v3", "v5")
    a(f"v_add_u32 v10, {L_MR}, v7")
    loadB("v10", 4, 4096, 512)
    gemv(L_ACT1, 4)
    arrive(F_EC, "v3", "v4")
    publish(14, O_MOD)
    a("s_branch L_m_s3")
    a.label("L_m_nomr")
    arrive(F_EC, "v3", "v4")
    a("s_branch L_m_s3")
    a.label("L_m_B")
    a("s_add_u32 s97, s96, 256")
    def wq_loads(lo, hi):
        for k in range(lo, hi):
            bb, i = k >> 3, k & 7
            sr = "s96" if bb == 0 else "s97"
            if k == lo or i == 0:
                a(f"s_lshl_b32 s90, {S_W}, 13")
                a(f"s_add_u32 m0, s90, {L_WQ + 32768*bb + 1024*i}")
                a("s_nop 0")
            a(f"buffer_load_dwordx4 {'v56' if (i & 2) == 0 else 'v57'}, s[56:59], {sr} offen nt lds")
            a(f"s_add_u32 {sr}, {sr}, {4*8192}")
            a("s_add_u32 m0, m0, 0x400")
    wq_loads(0, cfg.wq1)
    spin_lds(F_1, 2, "v3", "v5", sleep=False)
    spin_lds(F_LC, KB_B, "v3", "v5", sleep=False)
    a(f"v_add_u32 v10, {L_MODB}, v7")
    loadB("v10", 4, 4096, 512)
    gemv(L_ACT1, 4)
    publish(14, O_MOD)
    arrive(F_PM, "v3", "v4")
    stamp(2)
    wq_loads(cfg.wq1, 16)
    a("s_waitcnt vmcnt(0)")
    arrive(F_WQ, "v3", "v4")
    a("v_bfe_u32 v16, v0, 2, 2")
    a("v_and_b32 v17, 3, v0")
    a("v_lshl_add_u32 v18, v1, 3, v16")
    a("v_lshrrev_b32 v19, 1, v17")
    a("v_and_b32 v20, 1, v17")
    a("v_and_b32 v21, 1, v1")
    a("v_lshl_or_b32 v22, v21, 2, v16")
    a("v_lshlrev_b32 v22, 1, v22")
    a("v_lshlrev_b32 v25, 8, v18")
    a("v_lshl_add_u32 v25, v20, 3, v25")
    a(f"s_lshr_b32 s90, {S_W}, 1")
    a("s_lshl_b32 s90, s90, 15")
    a(f"s_add_u32 s90, s90, {L_WQ}")
    a("v_add_u32 v25, s90, v25")
    a(f"s_and_b32 s91, {S_W}, 1")
    a("s_lshl_b32 s91, s91, 3")
    a("v_add_u32 v19, s91, v19")
    for e in range(4):
        a(f"v_add_u32 v23, {2*e}, v19")
        a("v_xor_b32 v23, v23, v22")
        a(f"v_lshl_add_u32 v{28+e}, v23, 4, v25")
    spin_lds(F_WQ, 4, "v3", "v5", sleep=False)
    for e in range(4):
        loadB(f"v{28+e}", 4, 8192, 1024, base=64 + 16*e)
    get_mode("v3", "v5")
    a("s_waitcnt lgkmcnt(0)")
    arrive(F_EC, "v3", "v4")
    a("v_lshl_add_u32 v54, v8, 14, v9")
    a(f"v_mov_b32 v53, {S_TAG}")
    spin_lds(F_2, 2, "v3", "v5", sleep=False)
    for t in range(4):
        a(f"ds_read_b128 v[{32+4*t}:{35+4*t}], v6 offset:{L_ACT2+64*t}")
    for t in range(4):
        a(f"s_waitcnt lgkmcnt({3-t})")
        for e in range(4):
            c = "0" if t == 0 else f"v[{16+4*e}:{19+4*e}]"
            a(f"v_mfma_f32_16x16x32_bf16 v[{16+4*e}:{19+4*e}], v[{32+4*t}:{35+4*t}], v[{64+16*e+4*t}:{67+16*e+4*t}], {c}")
    a("s_mov_b32 exec_hi, 0")
    for e in range(4):
        a(f"v_mov_b32 v{56+2*e}, v{16+4*e}")
        a(f"v_mov_b32 v{57+2*e}, v53")
    if cfg.local == 2:
        P = a.newlabel("Lst"); E = a.newlabel("Lste")
        a(f"s_cmp_eq_u32 {S_LM}, 1")
        a(f"s_cbranch_scc1 {P}")
        for e in range(4): a(f"buffer_store_dwordx2 v[{56+2*e}:{57+2*e}], v54, {WSRD}, {O_Q} offen offset:{128*e} sc1")
        a(f"s_branch {E}")
        a.label(P)
        for e in range(4): a(f"buffer_store_dwordx2 v[{56+2*e}:{57+2*e}], v54, {WSRD}, {O_Q} offen offset:{128*e}")
        a.label(E)
    else:
        for e in range(4): a(f"buffer_store_dwordx2 v[{56+2*e}:{57+2*e}], v54, {WSRD}, {O_Q} offen offset:{128*e}" + (" sc1" if cfg.local == 0 else ""))
    a("s_mov_b32 exec_hi, -1")
    arrive(F_PQ, "v3", "v4")
    stamp(3)
    mark(10, "v3")
    a.label("L_m_s3")
    get_mode("v3", "v5")
    T_ST, T_N = "s27", "s28"
    a(f"s_lshl_b32 s90, {S_B}, 1")
    a(f"s_sub_u32 s90, 4, s90")
    a(f"s_mul_i32 {T_ST}, {S_W}, s90")
    a(f"s_min_u32 s91, {S_W}, 2")
    a(f"s_add_u32 {T_ST}, {T_ST}, s91")
    a(f"s_cmp_lt_u32 {S_W}, 2")
    a(f"s_addc_u32 {T_N}, s90, 0")
    a("s_mov_b64 s[30:31], -1")
    a(f"s_cmp_eq_u32 {T_N}, 3")
    a("s_cselect_b32 s31, 0xffff, s31")
    a(f"s_cmp_eq_u32 {T_N}, 2")
    a("s_cselect_b32 s31, 0, s31")
    a("s_mov_b32 s33, 0")
    a(f"s_cmp_eq_u32 {T_N}, 5")
    a("s_cselect_b32 s32, 0xffff, 0")
    a("v_xor_b32 v10, v1, v2")
    a("v_lshlrev_b32 v10, 4, v10")
    a("v_lshl_add_u32 v10, v2, 8, v10")
    a(f"s_lshl_b32 s90, {T_ST}, 12")
    a(f"s_add_u32 s90, s90, {L_K}")
    a("v_add_u32 v56, s90, v10")
    a("v_xor_b32 v57, 64, v56")
    a("v_xor_b32 v58, 0x80, v56")
    a("v_xor_b32 v59, 0xc0, v56")
    a("v_and_b32 v10, 3, v2")
    a(f"v_mul_u32_u24 v10, {APITCH}, v10")
    a("v_lshl_add_u32 v10, v1, 4, v10")
    a(f"v_add_u32 v10, {L_Q}, v10")
    a("v_lshlrev_b32 v11, 4, v1")
    a(f"v_add_u32 v11, {L_ZERO}, v11")
    a("v_lshrrev_b32 v15, 2, v2")
    for tt in range(4):
        a(f"v_cmp_eq_u32 vcc, {tt}, v15")
        a(f"v_cndmask_b32 v{60+tt}, v11, v10, vcc")
    for r in range(4): a(f"v_mov_b32 v{52+r}, 0")
    NEG = "s29"
    a(f"s_mov_b32 {NEG}, 0xff800000")
    spin_lds(F_3, 2, "v3", "v5")
    spin_lds(F_LC, T_K, "v3", "v5", sleep=False)
    stamp(4)
    mark(11, "v3")
    def qk_reads(tt, base, slot=None):
        slot = tt if slot is None else slot
        for t in range(4):
            a(f"ds_read_b128 v[{base+4*t}:{base+4*t+3}], v{60+slot} offset:{64*t}")
            a(f"ds_read_b128 v[{base+16+4*t}:{base+16+4*t+3}], v{56+t} offset:{4096*tt}")
    def qk_mfma(b, acc, first):
        for t in range(4):
            c = "0" if (first and t == 0) else acc
            a(f"v_mfma_f32_16x16x32_bf16 {acc}, v[{b+4*t}:{b+4*t+3}], v[{b+16+4*t}:{b+16+4*t+3}], {c}")
    qk_reads(0, 16)
    qk_reads(1, 68)
    a("s_waitcnt lgkmcnt(8)")
    qk_mfma(16, "v[48:51]", True)
    a(f"s_cmp_lg_u32 {T_N}, 2")
    a("s_cbranch_scc1 L_qk_n3p")
    a("s_waitcnt lgkmcnt(0)")
    qk_mfma(68, "v[48:51]", False)
    a("s_branch L_qk_done")
    a.label("L_qk_n3p")
    qk_reads(2, 16)
    a("s_waitcnt lgkmcnt(8)")
    qk_mfma(68, "v[48:51]", False)
    a(f"s_cmp_eq_u32 {T_N}, 3")
    a("s_cbranch_scc1 L_qk_n3")
    qk_reads(3, 68)
    a("s_waitcnt lgkmcnt(8)")
    qk_mfma(16, "v[48:51]", False)
    a(f"s_cmp_eq_u32 {T_N}, 5")
    a("s_cbranch_scc1 L_qk_n5")
    a("s_waitcnt lgkmcnt(0)")
    qk_mfma(68, "v[48:51]", False)
    a("s_branch L_qk_done")
    a.label("L_qk_n5")
    qk_reads(4, 16, slot=0)
    a("s_waitcnt lgkmcnt(8)")
    qk_mfma(68, "v[48:51]", False)
    a("s_waitcnt lgkmcnt(0)")
    qk_mfma(16, "v[52:55]", True)
    a("s_branch L_qk_done")
    a.label("L_qk_n3")
    a("s_waitcnt lgkmcnt(0)")
    qk_mfma(16, "v[48:51]", False)
    a.label("L_qk_done")
    arrive(F_KC, "v3", "v4")
    a("s_nop 7")
    a(f"s_mov_b32 s94, {SCALE:#x}")
    for (d, sr) in ((16, 48), (20, 52)):
        bf16r2(f"v{d}", f"v{d+1}", f"v{sr}", f"v{sr+1}", "v32")
        bf16r2(f"v{d+2}", f"v{d+3}", f"v{sr+2}", f"v{sr+3}", "v33")
    for r in range(8): a(f"v_mul_f32 v{16+r}, s94, v{16+r}")
    for d in (16, 20):
        bf16r2(f"v{d}", f"v{d+1}", f"v{d}", f"v{d+1}", "v32")
        bf16r2(f"v{d+2}", f"v{d+3}", f"v{d+2}", f"v{d+3}", "v33")
    a(f"v_mov_b32 v34, {NEG}")
    for r in range(4): a(f"v_cndmask_b32 v{16+r}, v34, v{16+r}, s[30:31]")
    for r in range(4): a(f"v_cndmask_b32 v{20+r}, v34, v{20+r}, s[32:33]")
    for r in range(4): a(f"v_max_f32 v{24+r}, v{16+r}, v{20+r}")
    allreduce(["v24", "v25", "v26", "v27"], "v_max_f32", ["v28", "v29", "v30", "v31"], FULL)
    a(f"s_lshl_b32 s90, {S_W}, 4")
    a("v_mov_b32 v10, s90")
    a("s_mov_b64 s[92:93], exec")
    a("s_mov_b64 exec, 1")
    a(f"ds_write_b128 v10, v[24:27] offset:{L_MX}")
    a(f"ds_add_u32 v3, v4 offset:{F_MB1}")
    a("s_mov_b64 exec, s[92:93]")
    spin_lds(F_MB1, 4, "v3", "v5", sleep=False)
    for w in range(4):
        a(f"ds_read_b128 v[{32+4*w}:{35+4*w}], v3 offset:{L_MX+16*w}")
    a("s_waitcnt lgkmcnt(0)")
    for r in range(4):
        a(f"v_max_f32 v{24+r}, v{32+r}, v{36+r}")
        a(f"v_max_f32 v{28+r}, v{40+r}, v{44+r}")
    for r in range(4):
        a(f"v_max_f32 v{24+r}, v{24+r}, v{28+r}")
    a(f"s_mov_b32 s94, {LOG2E:#x}")
    for r in range(8): a(f"v_sub_f32 v{16+r}, v{16+r}, v{24+(r&3)}")
    for r in range(8): a(f"v_mul_f32 v{16+r}, s94, v{16+r}")
    for r in range(8): a(f"v_exp_f32 v{16+r}, v{16+r}")
    a("v_cvt_pk_bf16_f32 v28, v16, v17")
    a("v_cvt_pk_bf16_f32 v29, v18, v19")
    a("v_cvt_pk_bf16_f32 v30, v20, v21")
    a("v_cvt_pk_bf16_f32 v31, v22, v23")
    a(f"s_lshl_b32 s90, {T_ST}, 5")
    a(f"s_add_u32 s90, s90, {L_P}")
    a("v_lshl_add_u32 v10, v0, 1, s90")
    a("s_mov_b64 exec, s[30:31]")
    a("ds_write_b16 v10, v28")
    a(f"ds_write_b16_d16_hi v10, v28 offset:{PPITCH}")
    a(f"ds_write_b16 v10, v29 offset:{2*PPITCH}")
    a(f"ds_write_b16_d16_hi v10, v29 offset:{3*PPITCH}")
    a(f"s_cmp_lg_u32 {T_N}, 5")
    a("s_cbranch_scc1 L_p_w1")
    a("s_mov_b64 exec, s[32:33]")
    a("ds_write_b16 v10, v30 offset:128")
    a(f"ds_write_b16_d16_hi v10, v30 offset:{PPITCH+128}")
    a(f"ds_write_b16 v10, v31 offset:{2*PPITCH+128}")
    a(f"ds_write_b16_d16_hi v10, v31 offset:{3*PPITCH+128}")
    a.label("L_p_w1")
    a("s_mov_b64 exec, -1")
    for r in range(4): a(f"v_add_f32 v{16+r}, v{16+r}, v{20+r}")
    allreduce(["v16", "v17", "v18", "v19"], "v_add_f32", ["v28", "v29", "v30", "v31"], FULL)
    a(f"s_lshl_b32 s90, {S_W}, 4")
    a("v_mov_b32 v10, s90")
    a("s_mov_b64 s[92:93], exec")
    a("s_mov_b64 exec, 1")
    a(f"ds_write_b128 v10, v[16:19] offset:{L_LS}")
    a(f"ds_add_u32 v3, v4 offset:{F_MB2}")
    a("s_mov_b64 exec, s[92:93]")
    spin_lds(F_MB2, 4, "v3", "v5", sleep=False)
    a(f"s_cmp_lg_u32 {S_W}, 0")
    a("s_cbranch_scc1 L_m_pv")
    a("v_lshlrev_b32 v10, 2, v0")
    a("s_mov_b64 exec, 15")
    for w in range(4):
        a(f"ds_read_b32 v{16+w}, v10 offset:{L_LS+16*w}")
        a(f"ds_read_b32 v{20+w}, v10 offset:{L_MX+16*w}")
    a("s_waitcnt lgkmcnt(0)")
    a("v_add_f32 v16, v16, v17")
    a("v_add_f32 v18, v18, v19")
    a("v_max_f32 v20, v20, v21")
    a("v_max_f32 v22, v22, v23")
    a("v_add_f32 v26, v16, v18")
    a("v_max_f32 v24, v20, v22")
    a(f"v_mov_b32 v25, {S_TAG}")
    a(f"v_mov_b32 v27, {S_TAG}")
    a("v_lshlrev_b32 v10, 8, v0")
    store_loc(f"buffer_store_dwordx4 v[24:27], v10, {WSRD}, {O_ST} offen")
    a("s_mov_b64 exec, -1")
    a.label("L_m_pv")
    stamp(5)
    a("v_lshrrev_b32 v10, 2, v2")
    a(f"v_mul_u32_u24 v10, {PPITCH}, v10")
    a("v_lshl_add_u32 v10, v1, 4, v10")
    a(f"v_add_u32 v60, {L_P}, v10")
    a(f"v_add_u32 v61, {L_V}, v13")
    a(f"v_add_u32 v62, {L_V}, v14")
    a("v_lshl_add_u32 v63, v1, 14, v9")
    a(f"v_mov_b32 v65, {S_TAG}")
    for r in range(8): a(f"v_mov_b32 v{48+r}, 0")
    a(f"s_add_u32 s95, {T_K}, 8")
    a("s_mov_b32 s96, -1000")
    a.label("L_pv_loop")
    a("s_cmp_ge_i32 s96, s95")
    a("s_cbranch_scc1 L_pv_go")
    a.label("L_pv_spin")
    a(f"ds_read_b32 v5, v3 offset:{F_LC}")
    a("s_waitcnt lgkmcnt(0)")
    a("v_readfirstlane_b32 s96, v5")
    a("s_cmp_ge_i32 s96, s95")
    a("s_cbranch_scc1 L_pv_go")
    timeout()
    a("s_branch L_pv_spin")
    a.label("L_pv_go")
    a("ds_read_b128 v[16:19], v60")
    a("ds_read_b64_tr_b16 v[20:21], v61")
    a("ds_read_b64_tr_b16 v[22:23], v61 offset:1024")
    a("ds_read_b64_tr_b16 v[24:25], v62")
    a("ds_read_b64_tr_b16 v[26:27], v62 offset:1024")
    a("v_add_u32 v60, 64, v60")
    a("v_add_u32 v61, 0x2000, v61")
    a("v_add_u32 v62, 0x2000, v62")
    a("s_add_u32 s95, s95, 8")
    a("s_waitcnt lgkmcnt(2)")
    a("v_mfma_f32_16x16x32_bf16 v[48:51], v[16:19], v[20:23], v[48:51]")
    a("s_waitcnt lgkmcnt(0)")
    a("v_mfma_f32_16x16x32_bf16 v[52:55], v[16:19], v[24:27], v[52:55]")
    a(f"s_cmp_le_i32 s95, {T_V}")
    a("s_cbranch_scc1 L_pv_loop")
    stamp(6)
    a("s_nop 4")
    a("v_cvt_pk_bf16_f32 v64, v48, v52")
    store_loc(f"buffer_store_dwordx2 v[64:65], v63, {WSRD}, {O_O} offen")
    arrive(F_PO, "v3", "v4")
    stamp(7)
    mark(12, "v3")
    spin_lds(F_WOL, 1, "v3", "v5", sleep=False)
    a(f"v_add_u32 v10, {L_WO}, v7")
    loadB("v10", 4, 4096, 512)
    a("s_waitcnt lgkmcnt(0)")
    a("s_barrier")
    gemv(L_ACT4, 4)
    publish_pair(O_A4)
    arrive(F_PA, "v3", "v4")
    stamp(8)
    mark(13, "v3")
    spin_lds(F_LATE, 1, "v3", "v5")
    a(f"v_add_u32 v10, {L_DN}, v7")
    loadB("v10", 2, 4096, 512, base=64)
    a(f"s_lshr_b32 s90, {S_W}, 1")
    a("s_lshl_b32 s90, s90, 13")
    a(f"s_add_u32 s90, s90, {L_G}")
    a("v_add_u32 v11, s90, v12")
    loadB("v11", 4, 2048, 256)
    a("s_waitcnt lgkmcnt(0)")
    a("s_barrier")
    a(f"s_cmp_eq_u32 {S_CB}, 7")
    a("s_cbranch_scc1 L_m_s7")
    gemv(L_ACT6, 4)
    publish(13, O_GU, local=True)
    a.label("L_m_s7")
    arrive(F_PG, "v3", "v4")
    stamp(9)
    a("s_barrier")
    gemv(L_ACT7, 2, bbase=64)
    publish_pair(O_DN)
    arrive(F_PD, "v3", "v4")
    stamp(10)
    mark(15, "v3")
    dump_stamps(11)
    a("s_endpgm")

    def r1_block(uid, vz):
        a(f"s_sub_u32 s90, {S_W}, 4")
        a("s_lshr_b32 s91, s90, 1")
        a("s_and_b32 s94, s90, 1")
        a("s_lshl_b32 s99, s94, 8")
        a(f"s_lshl_b32 s100, {S_X}, 16")
        a("s_add_u32 s99, s99, s100")
        a(f"s_lshl_b32 s100, {S_KQ}, 14")
        a("s_add_u32 s99, s99, s100")
        a("s_lshl_b32 s100, s91, 13")
        a("s_add_u32 s99, s99, s100")
        a(f"s_add_u32 s99, s99, {W_O}")
        a(f"s_lshl_b32 s100, {S_X}, 11")
        a("s_lshl_b32 s90, s91, 10")
        a("s_add_u32 s100, s100, s90")
        a(f"s_lshl_b32 s90, {S_KQ}, 8")
        a("s_add_u32 s100, s100, s90")
        a(f"s_add_u32 s100, s100, {W_ST}")
        a("v_lshrrev_b32 v48, 5, v0")
        a("v_and_b32 v49, 31, v0")
        a("v_lshlrev_b32 v50, 12, v48")
        a("v_lshl_add_u32 v50, v49, 3, v50")
        a("v_and_b32 v51, 7, v0")
        a("v_lshl_add_u32 v51, v48, 3, v51")
        a("v_lshlrev_b32 v51, 4, v51")
        a(f"s_mul_i32 s91, s91, {APITCH}")
        a("s_lshl_b32 s94, s94, 7")
        a("s_add_u32 s91, s91, s94")
        a("v_bfe_u32 v52, v0, 4, 1")
        a("v_lshlrev_b32 v52, 6, v52")
        a("v_and_b32 v53, 15, v0")
        a("v_lshl_add_u32 v52, v53, 1, v52")
        a("v_lshl_add_u32 v52, v48, 5, v52")
        a("v_add_u32 v52, s91, v52")
        loads = [f"buffer_load_dwordx4 v[32:35], v51, {WSRD}, s100 offen sc1"]; tags = ["v33", "v35"]
        for i in range(8):
            loads.append(f"buffer_load_dwordx2 v[{16+2*i}:{17+2*i}], v50, {WSRD}, s99 offen offset:{512*i} sc1")
            tags.append(f"v{17+2*i}")
        after_own(F_PO, 4, vz, "v54", cfg.d_r1)
        stamp(7 if uid != "q" else 4)
        poll(loads, tags, "v54")
        if uid == "q": stamp(10)
        a("v_mov_b32 v55, v32")
        allreduce(["v55"], "v_max_f32", ["v56"], ["x1", "x2", "x4", "x32"])
        a(f"s_mov_b32 s94, {LOG2E:#x}")
        a("v_sub_f32 v56, v32, v55")
        for i in range(4): a(f"v_lshlrev_b32 v{36+2*i}, 16, v{16+2*i}"); a(f"v_and_b32 v{37+2*i}, 0xffff0000, v{16+2*i}")
        a("v_mul_f32 v56, s94, v56")
        a("v_exp_f32 v56, v56")
        for i in range(4, 8): a(f"v_lshlrev_b32 v{36+2*i}, 16, v{16+2*i}"); a(f"v_and_b32 v{37+2*i}, 0xffff0000, v{16+2*i}")
        a("v_mul_f32 v57, v56, v34")
        allreduce(["v57"], "v_add_f32", ["v58"], ["x1", "x2", "x4", "x32"])
        a("v_rcp_f32 v57, v57")
        a("v_mov_b32 v58, 0")
        a("v_mov_b32 v59, 0")
        a("v_mul_f32 v56, v56, v57")
        for i in range(8):
            a(f"v_fmac_f32_dpp v58, v56, v{36+2*i} row_newbcast:{i} row_mask:0xf bank_mask:0xf")
            a(f"v_fmac_f32_dpp v59, v56, v{37+2*i} row_newbcast:{i} row_mask:0xf bank_mask:0xf")
        a("v_permlane32_swap_b32 v58, v59")
        a("v_add_f32 v58, v58, v59")
        a("v_cvt_pk_bf16_f32 v58, v58, v58")
        a(f"ds_write_b16 v52, v58 offset:{L_ACT4}")
        a("s_waitcnt lgkmcnt(0)")

    a.label("L_gwave")
    a(f"s_cmp_eq_u32 {S_W}, 4")
    a("s_cbranch_scc1 L_slice")
    a(f"s_cmp_eq_u32 {S_W}, 7")
    a("s_cbranch_scc1 L_aux")

    SB = "s97"
    a("v_lshlrev_b32 v2, 2, v0")
    a("v_mov_b32 v10, 1")
    a(f"s_mul_i32 s98, {SB}, {APITCH}")
    a("v_add_u32 v11, s98, v2")
    a("v_mov_b32 v19, 0")
    a("s_waitcnt vmcnt(0)")
    stamp(1)
    a("v_lshlrev_b32 v12, 16, v9")
    a("v_and_b32 v13, 0xffff0000, v9")
    a(f"s_mov_b32 s94, {LOG2E:#x}")
    for r in (12, 13): a(f"v_mul_f32 v{r+2}, s94, v{r}")
    for r in (12, 13): a(f"v_exp_f32 v{r+2}, -v{r+2}")
    for r in (12, 13): a(f"v_add_f32 v{r+2}, 1.0, v{r+2}")
    for r in (12, 13): a(f"v_rcp_f32 v{r+2}, v{r+2}")
    for r in (12, 13): a(f"v_mul_f32 v{r}, v{r}, v{r+2}")
    a("v_cvt_pk_bf16_f32 v12, v12, v13")
    a(f"ds_write_b32 v11, v12 offset:{L_ACT1}")
    arrive(F_1, "v19", "v10")
    get_tag()
    a("v_mov_b32 v3, 0")

    def ln_finish(mean, var, x0, x1, tmp):
        bf16r2(mean, var, mean, var, tmp)
        a(f"s_mov_b32 s94, {EPS:#x}")
        a(f"v_add_f32 {var}, s94, {var}")
        bf16r1(var, var)
        a(f"v_sqrt_f32 {var}, {var}")
        a(f"v_sub_f32 {x0}, {x0}, {mean}")
        a(f"v_sub_f32 {x1}, {x1}, {mean}")
        bf16r1(var, var)
        a(f"v_rcp_f32 {var}, {var}")
        bf16r2(x0, x1, x0, x1, tmp)
        a(f"v_mul_f32 {x0}, {x0}, {var}")
        a(f"v_mul_f32 {x1}, {x1}, {var}")
        bf16r2(x0, x1, x0, x1, tmp)

    def quarter_gather(chunkA, chunkB, qreg, pre=None, sample=False):
        for (ch, sreg) in ((chunkA, "s90"), (chunkB, "s99")):
            sexpr(sreg, [(SB, "shl", 14), (qreg, "shl", 12)], W_MOD + ch*32768)
        loads = []; tags = []
        for i in range(4):
            loads.append(f"buffer_load_dwordx4 v[{16+4*i}:{19+4*i}], v1, {WSRD}, s90 offen offset:{1024*i} sc1")
            loads.append(f"buffer_load_dwordx4 v[{32+4*i}:{35+4*i}], v1, {WSRD}, s99 offen offset:{1024*i} sc1")
            tags += [f"v{17+4*i}", f"v{19+4*i}", f"v{33+4*i}", f"v{35+4*i}"]
        if pre: pre()
        poll(loads, tags, "v50", sample=sample)
        for (base, d0, d1) in ((16, "v14", "v15"), (32, "v48", "v49")):
            a(f"v_add_f32 {d0}, v{base}, v{base+4}")
            a(f"v_add_f32 {d1}, v{base+2}, v{base+6}")
            a(f"v_add_f32 v50, v{base+8}, v{base+12}")
            a(f"v_add_f32 v51, v{base+10}, v{base+14}")
            a(f"v_add_f32 {d0}, {d0}, v50")
            a(f"v_add_f32 {d1}, {d1}, v51")
            bf16r2(d0, d1, d0, d1, "v50")

    def modulate(x0, x1, sc0, sc1, sh0, sh1, dst, tmp):
        a(f"v_mul_f32 {x0}, {x0}, {sc0}")
        a(f"v_mul_f32 {x1}, {x1}, {sc1}")
        bf16r2(x0, x1, x0, x1, tmp)
        a(f"v_add_f32 {x0}, {x0}, {sh0}")
        a(f"v_add_f32 {x1}, {x1}, {sh1}")
        a(f"v_cvt_pk_bf16_f32 {dst}, {x0}, {x1}")

    a(f"s_cmp_eq_u32 {S_B}, 0")
    a("s_cbranch_scc1 L_q_qg")
    for i in range(4):
        a(f"v_lshlrev_b32 v{16+2*i}, 16, v{4+i}")
        a(f"v_and_b32 v{17+2*i}, 0xffff0000, v{4+i}")
    a("v_add_f32 v24, v16, v17")
    a("v_add_f32 v25, v18, v19")
    a("v_add_f32 v26, v20, v21")
    a("v_add_f32 v27, v22, v23")
    a("v_add_f32 v24, v24, v25")
    a("v_add_f32 v26, v26, v27")
    a("v_add_f32 v24, v24, v26")
    allreduce(["v24"], "v_add_f32", ["v28"], FULL)
    a(f"s_mov_b32 s94, {INV512:#x}")
    a("v_mul_f32 v24, s94, v24")
    for i in range(8): a(f"v_sub_f32 v{16+i}, v{16+i}, v24")
    a("v_mul_f32 v25, v16, v16")
    for i in range(1, 8): a(f"v_fmac_f32 v25, v{16+i}, v{16+i}")
    allreduce(["v25"], "v_add_f32", ["v28"], FULL)
    a("v_mul_f32 v25, s94, v25")
    a("v_lshlrev_b32 v12, 16, v8")
    a("v_and_b32 v13, 0xffff0000, v8")
    ln_finish("v24", "v25", "v12", "v13", "v28")
    a(f"s_lshr_b32 s100, {S_SPL}, 1")
    quarter_gather(0, 1, "s100", pre=lambda: after_own(F_PM, 4, "v3", "v50", cfg.d_h))
    a("v_add_f32 v48, 1.0, v48")
    a("v_add_f32 v49, 1.0, v49")
    bf16r2("v48", "v49", "v48", "v49", "v50")
    modulate("v12", "v13", "v48", "v49", "v14", "v15", "v16", "v50")
    a(f"ds_write_b32 v11, v16 offset:{L_ACT2}")
    arrive(F_2, "v3", "v10")
    stamp(2)
    a.label("L_q_qg")
    sexpr("s90", [(S_X, "shl", 15), (S_BT, "shl", 14), (SB, "shl", 13)], W_Q)
    a("s_add_u32 s99, s90, 4096")
    a(f"s_mul_i32 s100, {SB}, {2*APITCH}")
    a("v_add_u32 v54, s100, v2")
    loads = []; tags = []
    for i in range(4):
        loads.append(f"buffer_load_dwordx4 v[{16+4*i}:{19+4*i}], v1, {WSRD}, s90 offen offset:{1024*i} sc1")
        loads.append(f"buffer_load_dwordx4 v[{32+4*i}:{35+4*i}], v1, {WSRD}, s99 offen offset:{1024*i} sc1")
        tags += [f"v{17+4*i}", f"v{19+4*i}", f"v{33+4*i}", f"v{35+4*i}"]
    a(f"s_cmp_eq_u32 {S_B}, 0")
    a("s_cbranch_scc1 L_q_qA")
    after_own(F_PQ, 4, "v3", "v50", cfg.d_q)
    poll(loads, tags, "v50")
    a("s_branch L_q_qE")
    a.label("L_q_qA")
    if cfg.quiet: spin_lds(F_LC, cfg.quiet, "v3", "v50")
    poll(loads, tags, "v50", sample=(not cfg.quiet), sleep=cfg.qsl)
    a.label("L_q_qE")
    for (base, hh) in ((16, 0), (32, 1)):
        a(f"v_add_f32 v48, v{base}, v{base+4}")
        a(f"v_add_f32 v49, v{base+2}, v{base+6}")
        a(f"v_add_f32 v50, v{base+8}, v{base+12}")
        a(f"v_add_f32 v51, v{base+10}, v{base+14}")
        a("v_add_f32 v48, v48, v50")
        a("v_add_f32 v49, v49, v51")
        a(f"v_cvt_pk_bf16_f32 v{52+hh}, v48, v49")
    a(f"ds_write_b32 v54, v52 offset:{L_Q}")
    a(f"ds_write_b32 v54, v53 offset:{L_Q+APITCH}")
    arrive(F_3, "v3", "v10")
    stamp(3)
    sexpr("s90", [(SB, "shl", 11), (S_KQ, "shl", 9)], W_MODF + 3*4096)
    a("s_add_u32 s99, s90, 4096")
    a("v_lshlrev_b32 v54, 3, v0")
    poll([f"buffer_load_dwordx2 v[16:17], v54, {WSRD}, s90 offen sc1",
          f"buffer_load_dwordx2 v[18:19], v54, {WSRD}, s99 offen sc1"], ["v17", "v19"], "v50", sleep=8)
    a("v_lshlrev_b32 v66, 16, v16")
    a("v_and_b32 v67, 0xffff0000, v16")
    a("v_lshlrev_b32 v48, 16, v18")
    a("v_and_b32 v49, 0xffff0000, v18")
    a("v_add_f32 v48, 1.0, v48")
    a("v_add_f32 v49, 1.0, v49")
    bf16r2("v64", "v65", "v48", "v49", "v50")
    r1_block("q", "v3")
    stamp(5)
    a("s_barrier")
    sexpr("s99", [(S_X, "shl", 10), (SB, "shl", 9)], W_X1S)
    sexpr("s90", [(S_X, "shl", 12), (SB, "shl", 11), (S_KQ, "shl", 9)], W_X1P)
    a("v_lshlrev_b32 v16, 3, v0")
    a("v_and_b32 v17, 31, v0")
    a("v_lshlrev_b32 v17, 4, v17")
    after_own(F_PX, 1, "v3", "v50", cfg.d_x1)
    stamp(8)
    poll([f"buffer_load_dwordx4 v[24:27], v17, {WSRD}, s99 offen sc1",
          f"buffer_load_dwordx2 v[20:21], v16, {WSRD}, s90 offen sc1"], ["v21", "v25", "v27"], "v50")
    stamp(9)
    allreduce(["v24", "v26"], "v_add_f32", ["v28", "v29"], ["x1", "x2", "x4", "x8", "x16"])
    a(f"s_mov_b32 s94, {INV512:#x}")
    a("v_mul_f32 v24, s94, v24")
    a("v_mul_f32 v26, s94, v26")
    a("v_lshlrev_b32 v12, 16, v20")
    a("v_fma_f32 v26, -v24, v24, v26")
    a("v_and_b32 v13, 0xffff0000, v20")
    a("v_max_f32 v26, 0, v26")
    ln_finish("v24", "v26", "v12", "v13", "v30")
    modulate("v12", "v13", "v64", "v65", "v66", "v67", "v16", "v30")
    a(f"ds_write_b32 v11, v16 offset:{L_ACT6}")
    a(f"s_mul_i32 s94, {S_KQ}, 448")
    sexpr("s90", [(S_X, "shl", 15), (SB, "shl", 13), ("s94", "shl", 0)], W_GU, tmp="s99")
    a("s_add_u32 s94, s90, 4096")
    a("s_add_u32 s99, s90, 16384")
    a("s_add_u32 s100, s90, 20480")
    a("s_waitcnt lgkmcnt(0)")
    stamp(6)
    a("s_barrier")
    a("v_lshlrev_b32 v16, 3, v0")
    a("v_mov_b32 v40, 0")
    a("v_lshlrev_b32 v17, 1, v0")
    a("v_add_u32 v17, s98, v17")
    a("s_mov_b32 exec_lo, -1")
    a("s_mov_b32 exec_hi, 0x00ffffff")
    loads = []; tags = []
    for wh in range(2):
        for k6 in range(4):
            sr = [["s90", "s94"], ["s99", "s100"]][wh][k6 >> 1]
            rb = 20 + 8*wh + 2*k6
            loads.append(f"buffer_load_dwordx2 v[{rb}:{rb+1}], v16, {WSRD}, {sr} offen offset:{2048*(k6&1)} sc1")
            tags.append(f"v{rb+1}")
    after_own(F_PG, 4, "v3", "v50", cfg.d_gu)
    poll(loads, tags, "v50")
    a("v_add_f32 v36, v20, v22")
    a("v_add_f32 v37, v24, v26")
    a("v_add_f32 v38, v28, v30")
    a("v_add_f32 v39, v32, v34")
    a("v_add_f32 v36, v36, v37")
    a("v_add_f32 v38, v38, v39")
    bf16r2("v36", "v38", "v36", "v38", "v50")
    a("v_mul_f32 v36, v36, v38")
    a("v_cvt_pk_bf16_f32 v40, v36, v36")
    a("s_mov_b64 exec, -1")
    a(f"ds_write_b16 v17, v40 offset:{L_ACT7}")
    a("s_waitcnt lgkmcnt(0)")
    stamp(7)
    a("s_barrier")
    dump_stamps(11)
    a("s_endpgm")

    a.label("L_slice")
    srd(48, 38, 2048)
    a("v_lshlrev_b32 v7, 4, v0")
    a("v_and_b32 v1, 3, v0")
    a("v_bfe_u32 v2, v0, 4, 1")
    a("v_bfe_u32 v4, v0, 3, 1")
    a("v_lshrrev_b32 v5, 5, v0")
    a("v_lshlrev_b32 v6, 2, v1")
    a("v_lshl_add_u32 v6, v2, 1, v6")
    a("v_add_u32 v6, v6, v4")
    a("v_lshlrev_b32 v8, 10, v5")
    a("v_lshl_add_u32 v8, v6, 1, v8")
    a(f"s_lshl_b32 s90, {S_LOC}, 5")
    a("buffer_load_ushort v9, v8, s[44:47], s90 offen")
    a("v_lshlrev_b32 v10, 4, v5")
    a("v_add_u32 v10, v10, v6")
    a("v_lshlrev_b32 v10, 2, v10")
    a("v_lshlrev_b32 v11, 1, v1")
    a("v_add_u32 v11, v11, v2")
    a("v_lshlrev_b32 v12, 11, v5")
    a("v_lshl_add_u32 v98, v11, 3, v12")
    a("v_lshlrev_b32 v99, 9, v5")
    a("v_lshlrev_b32 v12, 10, v5")
    a("v_lshl_add_u32 v97, v11, 2, v12")
    sexpr("s22", [(S_X, "shl", 12), (S_LOC, "shl", 6)], W_X1P)
    sexpr("s23", [(S_X, "shl", 10), (S_LOC, "shl", 4)], W_X1S)
    a(f"s_lshl_b32 s24, {S_LOC}, 5")
    a(f"s_lshl_b32 s17, {S_LOC}, 12")
    a("v_cmp_eq_u32 s[26:27], 1, v4")
    a("v_mov_b32 v100, 0x3f80")
    a("v_mov_b32 v101, 0x3f800000")
    a("s_waitcnt vmcnt(0)")
    get_tag()
    a("v_mov_b32 v3, 0")
    a("v_lshlrev_b32 v102, 16, v9")
    get_mode("v3", "v20")
    stamp(1)

    def part_loads(base):
        a(f"s_add_u32 s20, s17, {base}")
        loads = []; tags = []
        for i in range(4):
            rb = 16 + 4*i
            loads.append(f"buffer_load_dwordx4 v[{rb}:{rb+3}], v7, {WSRD}, s20 offen offset:{1024*i} sc1")
            tags += [f"v{rb+1}", f"v{rb+3}"]
        return loads, tags
    def part_loads_atomic(base):
        a(f"s_add_u32 s20, s17, {base}")
        loads = []; tags = []
        for r in range(16, 32): loads.append(f"v_mov_b32 v{r}, 0")
        for i in range(4):
            rb = 16 + 4*i
            for hh in range(2):
                loads.append(f"buffer_atomic_add_x2 v[{rb+2*hh}:{rb+2*hh+1}], v7, {WSRD}, s20 offen offset:{1024*i + 8*hh} sc0 sc1")
            tags += [f"v{rb+1}", f"v{rb+3}"]
        return loads, tags
    def part_sum():
        for b in range(2):
            for (k, (off, sel)) in enumerate(((0, "v100"), (0, "v101"), (2, "v100"), (2, "v101"))):
                a(f"v_dot2_f32_bf16 v{32+4*b+k}, v{16+8*b+off}, {sel}, 0")
        for b in range(2):
            for (k, (off, sel)) in enumerate(((0, "v100"), (0, "v101"), (2, "v100"), (2, "v101"))):
                a(f"v_dot2_f32_bf16 v{32+4*b+k}, v{20+8*b+off}, {sel}, v{32+4*b+k}")
        for c in range(4): a(f"v_permlane32_swap_b32 v{32+c}, v{36+c}")
        for c in range(4): a(f"v_add_f32 v{32+c}, v{32+c}, v{36+c}")
        a("v_permlane16_swap_b32 v32, v34")
        a("v_permlane16_swap_b32 v33, v35")
        a("v_add_f32 v32, v32, v34")
        a("v_add_f32 v33, v33, v35")
        a("v_cndmask_b32 v36, v32, v33, s[26:27]")
        a("v_cndmask_b32 v37, v33, v32, s[26:27]")
        a("v_add_f32_dpp v36, v37, v36 row_ror:8 row_mask:0xf bank_mask:0xf")
        a("v_add_f32_dpp v40, v36, v36 row_shl:4 row_mask:0xf bank_mask:0x5")
        a("v_add_f32_dpp v40, v36, v36 row_shr:4 row_mask:0xf bank_mask:0xa")
    def resid(gate):
        bf16r1("v40", "v40")
        a(f"v_mul_f32 v40, v40, {gate}")
        bf16r1("v40", "v40")
        a("v_add_f32 v102, v102, v40")
        bf16r1("v102", "v102")
    def make_pair(dst):
        a("v_mov_b32_dpp v41, v102 row_ror:8 row_mask:0xf bank_mask:0xf")
        a(f"v_cvt_pk_bf16_f32 {dst}, v102, v41")
    PUBM = "0x000f000f"

    l1, t1 = part_loads(W_A4)
    spin_lds(F_GA, 1, "v3", "v15")
    a(f"ds_read_b32 v103, v10 offset:{L_GA}")
    a(f"ds_read_b32 v104, v10 offset:{L_GB}")
    a("s_waitcnt lgkmcnt(0)")
    r1_block("s", "v3")
    a(f"v_mov_b32 v43, {S_TAG}")
    a(f"v_mov_b32 v45, {S_TAG}")
    a(f"v_mov_b32 v47, {S_TAG}")
    a("s_barrier")
    after_own(F_PA, 4, "v3", "v15", cfg.d_s5)
    stamp(2)
    poll(l1, t1, "v15")
    stamp(3)
    part_sum()
    resid("v103")
    make_pair("v42")
    a("v_mul_f32 v46, v102, v102")
    a("v_mov_b32 v44, v102")
    a(f"s_mov_b32 exec_lo, {PUBM}")
    a(f"s_mov_b32 exec_hi, {PUBM}")
    store_loc(f"buffer_store_dwordx2 v[42:43], v98, {WSRD}, s22 offen")
    a("s_mov_b64 exec, -1")
    allreduce(["v44", "v46"], "v_add_f32", ["v48", "v49"], ["x1", "x2", "r8", "x16"])
    a("s_mov_b32 exec_lo, 1")
    a("s_mov_b32 exec_hi, 1")
    store_loc(f"buffer_store_dwordx4 v[44:47], v99, {WSRD}, s23 offen")
    a("s_mov_b64 exec, -1")
    a("v_mov_b32 v15, 1")
    arrive(F_PX, "v3", "v15")
    stamp(4)
    mark(14, "v3")
    a(f"s_and_b32 s90, {S_LOC}, 7")
    a(f"s_cmp_lg_u32 s90, {S_X}")
    a("s_cbranch_scc1 L_slice_nf")
    a("s_barrier")
    a("s_barrier")
    l1, t1 = part_loads_atomic(W_DN) if cfg.atom8 else part_loads(W_DN)
    after_own(F_PD, 4, "v3", "v15", cfg.d_s8)
    poll(l1, t1, "v15")
    part_sum()
    resid("v104")
    make_pair("v42")
    a(f"s_mov_b32 exec_lo, {PUBM}")
    a(f"s_mov_b32 exec_hi, {PUBM}")
    a("buffer_store_dword v42, v97, s[48:51], s24 offen")
    a(f"s_cmp_lg_u32 {S_WG}, 0")
    a("s_cbranch_scc1 L_slice_end")
    a("s_mov_b64 exec, 1")
    a(f"v_mov_b32 v24, {S_EP}")
    a("v_mov_b32 v21, 0")
    a(f"buffer_store_dword v24, v21, {WSRD}, 0 offen sc1")
    a.label("L_slice_end")
    if cfg.probe == 1:
        a("s_sleep 94")
        a("s_sleep 94")
    if cfg.probe >= 10:
        a(f"ds_read_b32 v20, v3 offset:{L_PRB}")
        a("s_waitcnt lgkmcnt(0)")
        a("v_readfirstlane_b32 s22, v20")
        a("s_mov_b32 s24, 100000")
        a.label("L_probe")
        a("s_memrealtime s[20:21]")
        a("s_waitcnt lgkmcnt(0)")
        a("s_sub_u32 s24, s24, 1")
        a("s_cbranch_scc1 L_probe_e")
        a("s_sub_u32 s23, s20, s22")
        a("s_cmp_lt_u32 s23, 2000")
        a("s_cbranch_scc1 L_probe")
        a.label("L_probe_e")
    if cfg.probe == 3:
        a("s_add_u32 s22, s62, 2500")
        a.label("L_probe")
        a("s_memrealtime s[20:21]")
        a("s_waitcnt lgkmcnt(0)")
        a("s_sub_u32 s23, s20, s22")
        a("s_cmp_lt_i32 s23, 0")
        a("s_cbranch_scc1 L_probe")
    if cfg.probe == 2:
        a("s_memrealtime s[20:21]")
        a("s_waitcnt lgkmcnt(0)")
        a("s_add_u32 s22, s20, 500")
        a.label("L_probe")
        a("s_memrealtime s[20:21]")
        a("s_waitcnt lgkmcnt(0)")
        a("s_sub_u32 s23, s20, s22")
        a("s_cmp_lt_i32 s23, 0")
        a("s_cbranch_scc1 L_probe")
    a("s_mov_b64 exec, -1")
    stamp(5)
    dump_stamps(6)
    a("s_endpgm")
    a.label("L_slice_nf")
    a("s_barrier")
    a("s_barrier")
    dump_stamps(5)
    a("s_endpgm")

    a.label("L_aux")
    srd(44, 28, 512*1792*2)
    srd(48, 30, 512*1792*2)
    srd(52, 32, 1792*512*2)
    a("v_mov_b32 v10, 1")
    sexpr("s18", [(S_X, "mul", 224*1024), (S_KQ, "mul", 56*1024), (S_CB, "shl", 7)])
    sexpr("s19", [(S_KQ, "mul", 128*3584), (S_X, "mul", 448), (S_CB, "shl", 6)])
    a("s_waitcnt vmcnt(0)")
    get_tag()
    strip_voff(3584, "v64")
    unit_voffs(pitch_shift=10, d0="v66", d1="v67")
    a("v_mov_b32 v3, 0")
    stamp(1)
    if cfg.local == 2:
        L = a.newlabel("Lxc"); E = a.newlabel("Lxce")
        srd(60, 40, 256)
        a(f"s_lshl_b32 s91, {S_X}, 5")
        a("s_add_u32 s91, s91, 8")
        a("v_mov_b32 v18, s91")
        a("s_getreg_b32 s90, hwreg(HW_REG_XCC_ID)")
        a("s_and_b32 s90, s90, 7")
        a("s_mul_i32 s90, s90, 6")
        a("s_lshl_b64 s[26:27], 1, s90")
        a("s_mov_b64 exec, 1")
        a.label(L)
        a("buffer_load_dwordx2 v[20:21], v18, s[60:63], 0 offen sc1")
        a("s_waitcnt vmcnt(0)")
        a("v_readfirstlane_b32 s20, v20")
        a("v_readfirstlane_b32 s21, v21")
        a("s_mov_b64 s[22:23], s[20:21]")
        a("s_mov_b32 s90, 0")
        for k in range(8):
            a("s_and_b32 s91, s22, 63")
            a("s_add_u32 s90, s90, s91")
            if k < 7: a("s_lshr_b64 s[22:23], s[22:23], 6")
        a("s_cmp_ge_u32 s90, 32")
        a(f"s_cbranch_scc1 {E}")
        timeout()
        a("s_sleep 2")
        a(f"s_branch {L}")
        a.label(E)
        a("s_lshl_b64 s[22:23], s[26:27], 5")
        a("s_cmp_eq_u64 s[20:21], s[22:23]")
        a("s_cselect_b32 s90, 1, 2")
        a("v_mov_b32 v16, s90")
        a(f"ds_write_b32 v3, v16 offset:{F_LM}")
        a("s_mov_b64 exec, -1")
    stamp(2)
    a(f"s_cmp_lg_u32 {S_B}, 0")
    a("s_cbranch_scc1 L_aux_ga")
    a(f"s_cmp_ge_u32 {S_SPL}, 16")
    a("s_cbranch_scc1 L_aux_ga")
    a(f"s_lshr_b32 s90, {S_X}, 1")
    a(f"s_and_b32 s91, {S_X}, 1")
    a(f"s_lshr_b32 s22, {S_SPL}, 2")
    a(f"s_and_b32 s23, {S_SPL}, 3")
    sexpr("s20", [("s90", "shl", 15), ("s91", "shl", 14), ("s22", "shl", 12), ("s23", "shl", 8)], W_MOD + 2*32768)
    sexpr("s21", [("s90", "shl", 12), ("s91", "shl", 11), (S_SPL, "shl", 7)], W_MODF + 2*4096)
    a("v_lshlrev_b32 v18, 3, v0")
    a("s_mov_b32 exec_hi, 0")
    loads = []; tags = []
    for i in range(4):
        loads.append(f"buffer_load_dwordx2 v[{40+2*i}:{41+2*i}], v18, {WSRD}, s20 offen offset:{1024*i} sc1")
        tags.append(f"v{41+2*i}")
    poll(loads, tags, "v60", sleep=6, sample=True)
    a("v_add_f32 v40, v40, v42")
    a("v_add_f32 v44, v44, v46")
    a("v_add_f32 v40, v40, v44")
    a("v_lshlrev_b32 v18, 2, v0")
    a(f"v_mov_b32 v43, {S_TAG}")
    a("v_mov_b32_dpp v42, v40 quad_perm:[1,0,3,2] row_mask:0xf bank_mask:0xf")
    a("s_mov_b32 exec_lo, 0x55555555")
    a("v_cvt_pk_bf16_f32 v42, v40, v42")
    a(f"buffer_store_dwordx2 v[42:43], v18, {WSRD}, s21 offen sc1")
    a("s_mov_b64 exec, -1")
    a.label("L_aux_ga")
    sexpr("s20", [(S_LOC, "shl", 6)], W_MODF + 2*4096)
    a(f"s_add_u32 s21, s20, {3*4096}")
    a("v_bfe_u32 v16, v0, 3, 1")
    a("v_and_b32 v17, 7, v0")
    a("v_lshlrev_b32 v18, 11, v16")
    a("v_lshl_add_u32 v18, v17, 3, v18")
    a("v_and_b32 v19, 15, v0")
    a("v_lshlrev_b32 v19, 3, v19")
    a("s_mov_b64 exec, 0xffff")
    poll([f"buffer_load_dwordx2 v[40:41], v18, {WSRD}, s20 offen sc1",
          f"buffer_load_dwordx2 v[42:43], v18, {WSRD}, s21 offen sc1"], ["v41", "v43"], "v60", sleep=8)
    a("v_lshlrev_b32 v44, 16, v40")
    a("v_and_b32 v45, 0xffff0000, v40")
    a("v_lshlrev_b32 v46, 16, v42")
    a("v_and_b32 v47, 0xffff0000, v42")
    a(f"ds_write_b64 v19, v[44:45] offset:{L_GA}")
    a(f"ds_write_b64 v19, v[46:47] offset:{L_GB}")
    a("s_mov_b64 exec, -1")
    arrive(F_GA, "v3", "v10")
    r1_block("a", "v3")
    a("s_barrier")
    spin_lds(F_PA, 4, "v3", "v50", sleep=False)
    a(f"s_cmp_eq_u32 {S_CB}, 7")
    a("s_cbranch_scc1 L_aux_dn")
    a(f"s_mov_b32 m0, {L_G}")
    a("s_mov_b32 s99, 8")
    a.label("L_aux_gu")
    a("buffer_load_dwordx4 v64, s[44:47], s19 offen nt lds")
    a("s_add_u32 m0, m0, 0x2000")
    a("s_nop 0")
    a("buffer_load_dwordx4 v64, s[48:51], s19 offen nt lds")
    a("s_sub_u32 m0, m0, 0x1c00")
    a(f"s_add_u32 s19, s19, {16*3584}")
    a("s_sub_u32 s99, s99, 1")
    a("s_cmp_lg_u32 s99, 0")
    a("s_cbranch_scc1 L_aux_gu")
    a.label("L_aux_dn")
    a(f"s_mov_b32 m0, {L_DN}")
    a("s_nop 0")
    for i in range(8):
        a(f"buffer_load_dwordx4 v{66 + (i&1)}, s[52:55], s18 offen nt lds")
        a("s_add_u32 m0, m0, 0x400")
        a("s_add_u32 s18, s18, 0x2000")
    a("s_waitcnt vmcnt(0)")
    arrive(F_LATE, "v3", "v10")
    stamp(3)
    a("s_barrier")
    a("s_barrier")
    dump_stamps(4)
    a("s_endpgm")

    a.label("L_abort")
    a("s_mov_b64 exec, 1")
    a("v_mov_b32 v1, 0")
    a(f"s_lshl_b32 s90, {S_WG}, 16")
    a("s_or_b32 s90, s90, s1") if cfg.site else None
    a("v_mov_b32 v2, s90")
    a(f"s_and_b32 s90, {S_W}, 1")
    a("s_lshl_b32 s90, s90, 2")
    a("v_mov_b32 v1, s90")
    a("v_or_b32 v2, 0xde000000, v2")
    a("s_mov_b32 s44, s40")
    a("s_and_b32 s45, s41, 0xffff")
    a("s_mov_b32 s46, 256")
    a("s_mov_b32 s47, 0x20000")
    a("buffer_store_dword v2, v1, s[44:47], 0 offen")
    a.label("L_end")
    a("s_endpgm")

    hdr = open(f"cdna_kernels/{NAME}.s.ref").read().split("; Override launch")[0]
    out = hdr
    out += f"; @launch grid=(256,1,1) block=(576,1,1) lds={L_TOTAL}\n"
    out += '.amdgcn_target "amdgcn-amd-amdhsa--gfx950"\n.text\n'
    out += f".globl {NAME}_kernel\n.p2align 8\n.type {NAME}_kernel,@function\n"
    out += a.text()
    out += f""".section .rodata,"a"
.p2align 6
.amdhsa_kernel {NAME}_kernel
  .amdhsa_next_free_vgpr 128
  .amdhsa_next_free_sgpr 102
  .amdhsa_accum_offset 128
  .amdhsa_group_segment_fixed_size 0
  .amdhsa_kernarg_size 112
  .amdhsa_user_sgpr_count 2
  .amdhsa_user_sgpr_kernarg_segment_ptr 1
  .amdhsa_system_sgpr_workgroup_id_x 1
.end_amdhsa_kernel
"""
    return out

if __name__ == "__main__":
    cfg = Cfg()
    outp = sys.argv[1]
    for arg in sys.argv[2:]:
        k, v = arg.split("=")
        assert hasattr(cfg, k), k
        setattr(cfg, k, int(v))
    open(outp, "w").write(gen(cfg))
    print("wrote", outp)
```

```python
import sys
from asmlib import Asm

NAME = "adaLN_cond__sliding_block_cached__glu_gated_bilinear__decode"

class Cfg:
    D = 40
    DA = 28
    DA1 = 0
    stamps = 0
    spin = 1 << 20
    rsl = 1
    local = 2
    touch = 1
    slow = 0
    nwait = 1
    qsl2 = 6
    wq1 = 4
    quiet = 0
    prio = 0
    qsl = 4
    kstart = 1
    d_h = 16
    d_q = 1
    d_r1 = 1
    d_s5 = 8
    d_x1 = 1
    d_gu = 1
    d_s8 = 2
    atom8 = 1
    probe = 0
    site = 0

(F_LC, F_1, F_2, F_3, F_EC, F_KC, F_MB1, F_MB2, F_LATE, F_PO, F_PA, F_PX, F_PG, F_PD,
 F_PM, F_PQ, F_QF, F_WQ, F_WOL, F_MRL, F_LM, F_GA) = [4*i for i in range(22)]
L_MX = 128; L_LS = 192; L_ZERO = 256
L_ACT1 = 768; L_ACT2 = 1344; L_ACT4 = 1920; L_ACT6 = 2496; L_ACT7 = 3072
L_PRB = 7424
L_GA = 7168; L_GB = 7296
L_Q = 3648
L_P = 4736
L_X = 8192; L_C = 10240
L_K = 12288; L_V = L_K + 73728; L_TOTAL = L_V + 73728; L_MR = L_V + 57344
NK_A = 288; NK_B = 160
L_MODB = L_K; L_WQ = L_V
L_WO = L_K; L_G = L_K + 16384; L_U = L_K + 24576; L_DN = L_K + 32768
APITCH = 272; PPITCH = 592

W_EPOCH = 0
W_MOD = 0x1000
W_MODF = 0x38000
W_Q = 0x40000
W_QF = 0x88000
W_ST = 0x80000
W_O = 0x90000
W_A4 = 0x110000
W_X1P = 0x150000
W_X1S = 0x158000
W_GU = 0x160000
W_DN = 0x1A0000
W_STAMP = 0x200000
W_USED = 0x300000

LOG2E = 0x3fb8aa3b
SCALE = 0x3db504f3
EPS = 0x3727c5ac
INV512 = 0x3b000000

S_WG, S_W, S_X, S_LOC, S_B, S_SPL, S_KQ, S_CB, S_TAG, S_SPIN = "s2", "s3", "s4", "s5", "s6", "s7", "s8", "s9", "s10", "s11"
S_U = "s7"
S_BT = "s86"
S_SP = "s87"
WSRD = "s[12:15]"
S_EP = "s89"
S_LM = "s88"
PX = "s[42:43]"
S_PH = "s101"
KB_B = 0

def gen(cfg):
    a = Asm()
    D = cfg.D

    def srd(dst, plo, size):
        a(f"s_mov_b32 s{dst}, s{plo}")
        a(f"s_and_b32 s{dst+1}, s{plo+1}, 0xffff")
        a(f"s_mov_b32 s{dst+2}, {size}")
        a(f"s_mov_b32 s{dst+3}, 0x20000")

    def stamp(k):
        if cfg.stamps: a(f"s_memrealtime s[{64+2*k}:{65+2*k}]")

    def mark(pid, vz):
        if cfg.probe == pid:
            a("s_memrealtime s[62:63]")
            a("s_waitcnt lgkmcnt(0)")
            a("v_mov_b32 v127, s62")
            a(f"ds_max_u32 {vz}, v127 offset:{L_PRB}")

    def dump_stamps(n):
        if not cfg.stamps: return
        a("s_waitcnt lgkmcnt(0)")
        a(f"s_mul_i32 s90, {S_WG}, 9")
        a(f"s_add_u32 s90, s90, {S_W}")
        a("s_lshl_b32 s90, s90, 7")
        a(f"s_add_u32 s90, s90, {W_STAMP}")
        a("s_mov_b64 exec, 1")
        a("v_mov_b32 v1, 0")
        for k in range(n):
            a(f"v_mov_b32 v2, s{64+2*k}")
            a(f"v_mov_b32 v3, s{65+2*k}")
            a(f"buffer_store_dwordx2 v[2:3], v1, {WSRD}, s90 offen offset:{8*k}")
            a("s_nop 1")
        a("s_waitcnt vmcnt(0)")

    sites = [0]
    def timeout():
        if cfg.site:
            sites[0] += 1
            a(f"s_mov_b32 s1, {sites[0]}")
        a(f"s_sub_u32 {S_SPIN}, {S_SPIN}, 1")
        a("s_cbranch_scc1 L_abort")

    def spin_lds(off, n, vz, vt, sleep=True):
        L = a.newlabel("Lsp"); E = a.newlabel("Lspe")
        a.label(L)
        a(f"ds_read_b32 {vt}, {vz} offset:{off}")
        a("s_waitcnt lgkmcnt(0)")
        a(f"v_readfirstlane_b32 s91, {vt}")
        a(f"s_cmp_ge_i32 s91, {n}")
        a(f"s_cbranch_scc1 {E}")
        timeout()
        if sleep: a("s_sleep 1")
        a(f"s_branch {L}")
        a.label(E)

    def arrive(off, vz, vone):
        a("s_mov_b64 s[92:93], exec")
        a("s_mov_b64 exec, 1")
        a(f"ds_add_u32 {vz}, {vone} offset:{off}")
        a("s_mov_b64 exec, s[92:93]")

    def poll(loads, tags, vacc, sleep=None, sample=False):
        if sleep is None: sleep = cfg.rsl
        L = a.newlabel("Lpl"); E = a.newlabel("Lple"); R = a.newlabel("Lplr")
        a(f"s_mov_b64 {PX}, exec")
        if sample:
            a(f"s_mov_b32 {S_PH}, 0")
            a("s_mov_b64 exec, 1")
        a.label(L)
        for ld in loads: a(ld)
        a("s_waitcnt vmcnt(0)")
        a(f"v_xor_b32 {vacc}, {S_TAG}, {tags[0]}")
        for t in tags[1:]:
            a(f"v_bitop3_b32 {vacc}, {vacc}, {t}, {S_TAG} bitop3:0xf6")
        a(f"v_cmp_ne_u32 vcc, 0, {vacc}")
        if sample:
            a(f"s_cbranch_vccnz {R}")
            a(f"s_cmp_lg_u32 {S_PH}, 0")
            a(f"s_cbranch_scc1 {E}")
            a(f"s_mov_b32 {S_PH}, 1")
            a(f"s_mov_b64 exec, {PX}")
            a(f"s_branch {L}")
            a.label(R)
        else:
            a(f"s_cbranch_vccz {E}")
        a("s_mov_b64 exec, vcc")
        timeout()
        if sleep: a(f"s_sleep {sleep}")
        a(f"s_branch {L}")
        a.label(E)
        a(f"s_mov_b64 exec, {PX}")

    def after_own(flag, n, vz, vt, dly):
        spin_lds(flag, n, vz, vt, sleep=False)
        if dly: a(f"s_sleep {dly}")

    def get_mode(vz, vt):
        if cfg.local == 2:
            spin_lds(F_LM, 1, vz, vt)
            a(f"s_mov_b32 {S_LM}, s91")

    def store_loc(text):
        if cfg.local == 0: a(text + " sc1")
        elif cfg.local == 1: a(text)
        else:
            P = a.newlabel("Lst"); E = a.newlabel("Lste")
            a(f"s_cmp_eq_u32 {S_LM}, 1")
            a(f"s_cbranch_scc1 {P}")
            a(text + " sc1")
            a(f"s_branch {E}")
            a.label(P)
            a(text)
            a.label(E)

    def bf16r2(d0, d1, s0, s1, tmp):
        a(f"v_cvt_pk_bf16_f32 {tmp}, {s0}, {s1}")
        a(f"v_lshlrev_b32 {d0}, 16, {tmp}")
        a(f"v_and_b32 {d1}, 0xffff0000, {tmp}")

    def bf16r1(d, s):
        a(f"v_cvt_pk_bf16_f32 {d}, {s}, {s}")
        a(f"v_lshlrev_b32 {d}, 16, {d}")

    def allreduce(regs, op, tmps, steps):
        dpp = {"x1": "quad_perm:[1,0,3,2]", "x2": "quad_perm:[2,3,0,1]", "x4": "row_half_mirror", "x8": "row_mirror", "r8": "row_ror:8", "r4": "row_ror:4"}
        for s in steps:
            if s in dpp:
                for r in regs:
                    a(f"{op}_dpp {r}, {r}, {r} {dpp[s]} row_mask:0xf bank_mask:0xf")
            else:
                ins = "v_permlane16_swap_b32" if s == "x16" else "v_permlane32_swap_b32"
                for r, t in zip(regs, tmps): a(f"v_mov_b32 {t}, {r}")
                for r, t in zip(regs, tmps): a(f"{ins} {r}, {t}")
                for r, t in zip(regs, tmps): a(f"{op} {r}, {r}, {t}")
    FULL = ["x1", "x2", "x4", "x8", "x16", "x32"]

    def sexpr(dst, terms, const=0, tmp="s94"):
        first = True
        for (reg, kind, n) in terms:
            tgt = dst if first else tmp
            if kind == "shl":
                if n == 0: a(f"s_mov_b32 {tgt}, {reg}")
                else: a(f"s_lshl_b32 {tgt}, {reg}, {n}")
            else: a(f"s_mul_i32 {tgt}, {reg}, {n}")
            if not first: a(f"s_add_u32 {dst}, {dst}, {tmp}")
            first = False
        if const: a(f"s_add_u32 {dst}, {dst}, {const}")

    def get_tag():
        a(f"v_readfirstlane_b32 {S_EP}, v3")
        a(f"s_add_u32 {S_EP}, {S_EP}, 1")
        a(f"s_mul_i32 {S_TAG}, {S_EP}, 0x9E3779B1")

    def unit_voffs(pitch_shift=None, pitch=None, d0="v24", d1="v25"):
        a("v_lshrrev_b32 v3, 3, v0")
        a("v_bfe_u32 v4, v0, 4, 1")
        a("v_lshlrev_b32 v4, 1, v4")
        a("v_and_b32 v5, 7, v0")
        a("v_xor_b32 v4, v4, v5")
        a("v_lshlrev_b32 v4, 4, v4")
        if pitch_shift is not None: a(f"v_lshlrev_b32 v6, {pitch_shift}, v3")
        else: a(f"v_mul_u32_u24 v6, {pitch}, v3")
        a(f"v_add_u32 {d0}, v6, v4")
        a(f"v_xor_b32 {d1}, 64, {d0}")

    def strip_voff(pitch, d):
        a("v_lshrrev_b32 v6, 2, v0")
        a(f"v_mul_u32_u24 {d}, {pitch}, v6")
        a("v_bfe_u32 v6, v0, 5, 1")
        a("v_lshlrev_b32 v6, 1, v6")
        a("v_and_b32 v7, 3, v0")
        a("v_xor_b32 v6, v6, v7")
        a(f"v_lshl_add_u32 {d}, v6, 4, {d}")

    a.label(f"{NAME}_kernel")
    a(f"s_cmp_ge_u32 {S_WG}, 256")
    a("s_cbranch_scc1 L_end")
    a("s_load_dwordx16 s[16:31], s[0:1], 0")
    a("s_load_dwordx8 s[32:39], s[0:1], 64")
    a("s_load_dwordx4 s[40:43], s[0:1], 96")
    stamp(0)
    if cfg.probe == 3: a("s_memrealtime s[62:63]")
    a("v_lshrrev_b32 v1, 6, v0")
    a("v_and_b32 v0, 63, v0")
    a(f"v_readfirstlane_b32 {S_W}, v1")
    a(f"s_and_b32 {S_X}, {S_WG}, 7")
    a(f"s_lshr_b32 {S_LOC}, {S_WG}, 3")
    a(f"s_cmp_lt_u32 {S_LOC}, 8")
    a(f"s_cselect_b32 {S_B}, 1, 0")
    a(f"s_cselect_b32 s90, 0, 8")
    a(f"s_sub_u32 {S_SPL}, {S_LOC}, s90")
    a(f"s_cselect_b32 s91, 4, 12") if False else None
    a(f"s_cmp_lt_u32 {S_LOC}, 8")
    a(f"s_cselect_b32 s91, 4, 12")
    a(f"s_cselect_b32 s94, 0, 4")
    a(f"s_cmp_ge_u32 {S_SPL}, s91")
    a(f"s_cselect_b32 {S_BT}, 1, 0")
    a(f"s_mul_i32 s90, {S_BT}, s91")
    a(f"s_sub_u32 {S_SP}, {S_SPL}, s90")
    a(f"s_add_u32 {S_SP}, {S_SP}, s94")
    a(f"s_lshr_b32 {S_KQ}, {S_LOC}, 3")
    a(f"s_and_b32 {S_CB}, {S_LOC}, 7")
    a(f"s_mov_b32 {S_SPIN}, {cfg.spin}")
    a(f"s_mov_b32 {S_LM}, {1 if cfg.local == 1 else 2}")
    a(f"s_cmp_lg_u32 {S_W}, 8")
    a("s_cbranch_scc1 L_worker")

    SLC = "s95"; SOFF = "s96"
    unit_voffs(pitch=6144, d0="v20", d1="v21")
    a(f"s_and_b32 s90, {S_SPL}, 3")
    a(f"s_mul_i32 {SOFF}, s90, {128*6144}")
    a(f"s_lshr_b32 s90, {S_SPL}, 2")
    a(f"s_lshl_b32 s94, {S_X}, 2")
    a("s_add_u32 s94, s94, 16")
    a(f"s_lshl_b32 s91, {S_X}, 1")
    a("s_sub_u32 s91, s91, 4")
    a(f"s_cmp_ge_u32 {S_SPL}, 16")
    a("s_cselect_b32 s94, s91, s94")
    a("s_add_u32 s90, s90, s94")
    a("s_lshl_b32 s90, s90, 7")
    a(f"s_add_u32 {SOFF}, {SOFF}, s90")
    a(f"s_mov_b32 m0, {L_MR}")
    a("s_waitcnt lgkmcnt(0)")
    srd(44, 36, 512*3072*2)
    a(f"s_cmp_lt_u32 {S_LOC}, 24")
    a("s_cbranch_scc1 L_ld_nourg")
    for i in range(16):
        a(f"buffer_load_dwordx4 v{20 + (i&1)}, s[44:47], {SOFF} offen nt lds")
        if i < 15:
            a(f"s_add_u32 {SOFF}, {SOFF}, {8*6144}")
            a("s_add_u32 m0, m0, 0x400")
    a.label("L_ld_nourg")
    if cfg.prio: a("s_setprio 3")
    a("s_barrier")
    stamp(1)
    srd(12, 42, W_USED)
    srd(52, 18, 2*8*32768*128*2)
    srd(56, 20, 2*8*32768*128*2)
    srd(60, 24, 4096*512*2)
    a("v_mov_b32 v10, 0")
    a("v_lshrrev_b32 v3, 4, v0")
    a("v_and_b32 v4, 15, v0")
    a("v_xor_b32 v5, v4, v3")
    a("v_lshlrev_b32 v5, 4, v5")
    a("v_lshl_add_u32 v26, v3, 8, v5")
    a("v_xor_b32 v27, 64, v26")
    a("v_xor_b32 v28, 0x80, v26")
    a("v_xor_b32 v29, 0xc0, v26")
    a("v_lshlrev_b32 v5, 1, v3")
    a("v_xor_b32 v5, v4, v5")
    a("v_lshlrev_b32 v5, 4, v5")
    a("v_lshl_add_u32 v30, v3, 8, v5")
    a("v_xor_b32 v31, 0x80, v30")
    a(f"s_mul_i32 s91, {S_B}, {(NK_B - NK_A) * 256}")
    a(f"s_add_u32 s91, s91, {NK_A * 256}")
    a(f"s_mul_i32 s90, {S_SP}, s91")
    a(f"s_mul_i32 s91, {S_B}, {512 * 256}")
    a("s_add_u32 s90, s90, s91")
    sexpr("s98", [(S_BT, "shl", 26), (S_X, "shl", 23), ("s90", "shl", 0)], (28672 - 512) * 256)
    unit_voffs(pitch_shift=10)

    def lc_write(val, off=F_LC):
        a(f"v_mov_b32 v11, {val}")
        a(f"ds_write_b32 v10, v11 offset:{off}")
    def seg(name, variants, srdn, step, iters, ldsbase):
        if ldsbase is not None: a(f"s_mov_b32 m0, {ldsbase}")
        a(f"s_mov_b32 s97, {iters}")
        a.label(name)
        for v in variants:
            a(f"buffer_load_dwordx4 {v}, s[{srdn}:{srdn+3}], {SOFF} offen nt lds")
            a(f"s_add_u32 {SOFF}, {SOFF}, {step}")
            a("s_add_u32 m0, m0, 0x400")
        a("s_sub_u32 s97, s97, 1")
        a("s_cmp_lg_u32 s97, 0")
        a(f"s_cbranch_scc1 {name}")
    def drain(end, ks):
        for k in ks:
            a(f"s_waitcnt vmcnt({k})")
            lc_write(end - k)
    def seg4(name, variants, srdn, iters, ldsbase, D=D):
        if ldsbase is not None: a(f"s_mov_b32 m0, {ldsbase}")
        a(f"s_mov_b32 s97, {iters}")
        a.label(name)
        for i, v in enumerate(variants):
            a(f"buffer_load_dwordx4 {v}, s[{srdn}:{srdn+3}], {SOFF} offen offset:{1024*i} nt lds")
        a(f"s_add_u32 {SOFF}, {SOFF}, 0x1000")
        a("s_add_u32 m0, m0, 0x1000")
        a(f"s_add_u32 {SLC}, {SLC}, 4")
        a(f"v_mov_b32 v11, {SLC}")
        a(f"s_waitcnt vmcnt({D-4})")
        a(f"ds_write_b32 v10, v11 offset:{F_LC}")
        a("s_sub_u32 s97, s97, 1")
        a("s_cmp_lg_u32 s97, 0")
        a(f"s_cbranch_scc1 {name}")
    WO_OFF = [(S_X, "shl", 19), (S_KQ, "shl", 17), (S_CB, "shl", 7)]

    a(f"s_cmp_eq_u32 {S_B}, 0")
    a("s_cbranch_scc1 L_ld_A")
    if cfg.kstart == 0:
        spin_lds(F_EC, 4, "v10", "v12")
        spin_lds(F_3, 2, "v10", "v12", sleep=False)
    elif cfg.kstart == 1:
        spin_lds(F_QF, 2, "v10", "v12", sleep=False)
    else:
        pass
    stamp(2)
    a(f"s_mov_b32 {SLC}, {KB_B - (D - 4)}")
    a(f"s_mov_b32 {SOFF}, s98")
    seg4("L_ld_kB", ["v26", "v27", "v28", "v29"], 52, NK_B // 16, L_K)
    a(f"s_mov_b32 {SOFF}, s98")
    seg4("L_ld_vB", ["v30", "v30", "v31", "v31"], 56, NK_B // 16, L_V)
    stamp(3)
    sexpr(SOFF, WO_OFF)
    a(f"ds_read_b32 v12, v10 offset:{F_KC}")
    a("s_waitcnt lgkmcnt(0)")
    a("v_readfirstlane_b32 s91, v12")
    a("s_cmp_ge_i32 s91, 4")
    a("s_cbranch_scc0 L_ld_Bslow")
    seg("L_ld_woB", ["v24", "v25"], 60, 8192, 8, L_WO)
    drain(KB_B + NK_B // 2 + 16, [k for k in (48, 40, 32, 24, 16) if k < D + 12])
    stamp(4)
    a("s_branch L_ld_fin")
    a.label("L_ld_Bslow")
    drain(KB_B + NK_B // 2, [k for k in (32, 24, 16, 8) if k < D - 4] + [0])
    stamp(4)
    spin_lds(F_KC, 4, "v10", "v12")
    seg("L_ld_woB2", ["v24", "v25"], 60, 8192, 8, L_WO)
    a.label("L_ld_fin")
    a("s_waitcnt vmcnt(0)")
    lc_write(1, F_WOL)
    stamp(5)
    dump_stamps(6)
    a("s_endpgm")
    a.label("L_ld_A")
    DA = cfg.DA
    a(f"s_cmp_ge_u32 {S_SPL}, 16")
    a("s_cbranch_scc1 L_ld_urg")
    spin_lds(F_1, 2, "v10", "v12", sleep=False)
    if cfg.slow:
        a(f"s_mov_b32 m0, {L_MR}")
        a("s_nop 0")
        for i in range(2 * cfg.slow):
            a(f"buffer_load_dwordx4 v{20 + (i&1)}, s[44:47], {SOFF} offen nt lds")
            a(f"s_add_u32 {SOFF}, {SOFF}, {8*6144}")
            a("s_add_u32 m0, m0, 0x400")
            if i & 1: a("s_waitcnt vmcnt(0)")
        seg("L_ld_mr", ["v20", "v21"], 44, 8*6144, 8 - cfg.slow, None)
    else:
        seg("L_ld_mr", ["v20", "v21"], 44, 8*6144, 8, L_MR)
    a("s_branch L_ld_kgo")
    a.label("L_ld_urg")
    a("s_waitcnt vmcnt(0)")
    lc_write(1, F_MRL)
    spin_lds(F_PM, 4, "v10", "v12", sleep=False)
    a.label("L_ld_kgo")
    DA1 = cfg.DA1 or DA
    a(f"s_mov_b32 {SLC}, {-(DA1 - 4)}")
    a(f"s_mov_b32 {SOFF}, s98")
    n0 = (DA1 - 4 + 3) // 4
    assert 0 < n0 < NK_A // 16
    seg4("L_ld_kA0", ["v26", "v27", "v28", "v29"], 52, n0, L_K, DA1)
    lc_write(1, F_MRL)
    seg4("L_ld_kA", ["v26", "v27", "v28", "v29"], 52, NK_A // 16 - n0, None, DA1)
    stamp(2)
    a(f"s_mov_b32 {SOFF}, s98")
    if DA > DA1:
        assert (DA - DA1) % 4 == 0
        a(f"s_mov_b32 m0, {L_V}")
        a("s_nop 0")
        for it in range((DA - DA1) // 4):
            for i, v in enumerate(["v30", "v30", "v31", "v31"]):
                a(f"buffer_load_dwordx4 {v}, s[56:59], {SOFF} offen offset:{1024*i} nt lds")
            a(f"s_add_u32 {SOFF}, {SOFF}, 0x1000")
            a("s_add_u32 m0, m0, 0x1000")
        seg4("L_ld_vA", ["v30", "v30", "v31", "v31"], 56, NK_A // 16 - 4 - (DA - DA1) // 4, None, DA)
    else:
        seg4("L_ld_vA", ["v30", "v30", "v31", "v31"], 56, NK_A // 16 - 4, L_V, DA)
    spin_lds(F_EC, 4, "v10", "v12")
    seg4("L_ld_vA2", ["v30", "v30", "v31", "v31"], 56, 4, None, DA)
    stamp(3)
    drain(NK_A // 2, [k for k in (32, 24, 16, 8) if k < DA - 4] + [0])
    stamp(4)
    spin_lds(F_KC, 4, "v10", "v12")
    sexpr(SOFF, WO_OFF)
    seg("L_ld_woA", ["v24", "v25"], 60, 8192, 8, L_WO)
    a("s_branch L_ld_fin")

    a.label("L_worker")
    a(f"s_cmp_lg_u32 {S_W}, 4")
    a("s_cbranch_scc1 L_wk2")
    a("v_mov_b32 v10, 0")
    for r in range(12, 16): a(f"v_mov_b32 v{r}, 0")
    a("v_lshlrev_b32 v1, 2, v0")
    a("v_lshlrev_b32 v2, 4, v0")
    a("ds_write_b32 v1, v10")
    a(f"ds_write_b128 v2, v[12:15] offset:{L_ZERO}")
    if cfg.probe >= 10: a(f"ds_write_b32 v10, v10 offset:{L_PRB}")
    if cfg.local == 1:
        a("v_mov_b32 v11, 1")
        a(f"ds_write_b32 v10, v11 offset:{F_LM}")
    a.label("L_wk2")
    a("s_waitcnt lgkmcnt(0)")
    srd(12, 42, W_USED)
    srd(44, 16, 2048)
    srd(48, 34, 2048)
    a(f"s_sub_u32 s97, {S_W}, 5")
    a("s_and_b32 s97, s97, 1")
    a("s_lshl_b32 s90, s97, 10")
    a(f"s_and_b32 s94, {S_SPL}, 3")
    a("s_lshl_b32 s94, s94, 8")
    a("s_add_u32 s94, s94, s90")
    a("v_lshlrev_b32 v1, 4, v0")
    a("v_lshlrev_b32 v2, 2, v0")
    a(f"s_cmp_lt_u32 {S_W}, 5")
    a("s_cbranch_scc1 L_wk2b")
    a(f"s_cmp_eq_u32 {S_W}, 7")
    a("s_cbranch_scc1 L_wk2b")
    a("buffer_load_dword v9, v2, s[48:51], s94 offen")
    a("buffer_load_dwordx4 v[4:7], v1, s[44:47], s90 offen")
    a(f"s_lshr_b32 s94, {S_SPL}, 1")
    a("s_and_b32 s94, s94, 3")
    a("s_lshl_b32 s94, s94, 8")
    a("s_add_u32 s94, s94, s90")
    a("buffer_load_dword v8, v2, s[44:47], s94 offen")
    a.label("L_wk2b")
    a("v_mov_b32 v2, 0")
    a(f"buffer_load_dword v3, v2, {WSRD}, 0 offen sc1")
    a(f"s_cmp_lg_u32 {S_W}, 7")
    a("s_cbranch_scc1 L_wk3")
    if cfg.local == 2:
        srd(60, 40, 256)
        a("s_getreg_b32 s90, hwreg(HW_REG_XCC_ID)")
        a("s_and_b32 s90, s90, 7")
        a("s_mul_i32 s90, s90, 6")
        a("s_lshl_b64 s[26:27], 1, s90")
        a(f"s_lshl_b32 s91, {S_X}, 5")
        a("s_add_u32 s91, s91, 8")
        a("v_mov_b32 v18, s91")
        a("v_mov_b32 v16, s26")
        a("v_mov_b32 v17, s27")
        a("s_mov_b64 exec, 1")
        a("buffer_atomic_add_x2 v[16:17], v18, s[60:63], 0 offen sc1")
        a("s_mov_b64 exec, -1")
    if cfg.touch:
        sexpr("s90", [(S_BT, "shl", 26), (S_X, "shl", 23), (S_SP, "shl", 16)], 28672*256)
        a("s_load_dword s78, s[18:19], s90")
        a("s_load_dword s79, s[20:21], s90")
        a(f"s_lshr_b32 s91, {S_SPL}, 1")
        a("s_and_b32 s91, s91, 3")
        a("s_lshl_b32 s91, s91, 20")
        a("s_load_dword s80, s[22:23], s91")
        sexpr("s91", [(S_X, "shl", 19), (S_KQ, "shl", 17)])
        a("s_load_dword s81, s[24:25], s91")
        a(f"s_mul_i32 s91, {S_KQ}, {128*3584}")
        a("s_load_dword s82, s[28:29], s91")
        a("s_load_dword s83, s[30:31], s91")
        a(f"s_mul_i32 s91, {S_X}, {224*1024}")
        a("s_load_dword s84, s[32:33], s91")
        a("s_load_dword s85, s[38:39], 0")
    a.label("L_wk3")
    a("s_barrier")
    a(f"s_cmp_ge_u32 {S_W}, 4")
    a("s_cbranch_scc1 L_gwave")

    a.label("L_mwave")
    srd(56, 22, 512*4096*2)
    a("v_lshrrev_b32 v1, 4, v0")
    a("v_and_b32 v2, 15, v0")
    a("v_mov_b32 v4, 1")
    a("v_lshlrev_b32 v22, 1, v1")
    a("v_xor_b32 v22, v2, v22")
    a("v_lshlrev_b32 v22, 4, v22")
    a("v_lshl_add_u32 v56, v1, 13, v22")
    a("v_xor_b32 v57, 0x80, v56")
    a(f"s_lshr_b32 s90, {S_SPL}, 1")
    a(f"s_and_b32 s91, {S_SPL}, 1")
    sexpr("s96", [("s90", "shl", 20), (S_X, "shl", 10), ("s91", "shl", 9), (S_W, "shl", 18)])
    a("s_add_u32 s97, s96, 256")
    def wq_loads(lo, hi):
        for k in range(lo, hi):
            bb, i = k >> 3, k & 7
            sr = "s96" if bb == 0 else "s97"
            if k == lo or i == 0:
                a(f"s_lshl_b32 s90, {S_W}, 13")
                a(f"s_add_u32 m0, s90, {L_WQ + 32768*bb + 1024*i}")
                a("s_nop 0")
            a(f"buffer_load_dwordx4 {'v56' if (i & 2) == 0 else 'v57'}, s[56:59], {sr} offen nt lds")
            a(f"s_add_u32 {sr}, {sr}, {4*8192}")
            a("s_add_u32 m0, m0, 0x400")
    a(f"s_cmp_eq_u32 {S_B}, 0")
    a("s_cbranch_scc1 L_m_nowq")
    wq_loads(0, 16)
    a.label("L_m_nowq")
    a("v_bfe_u32 v6, v2, 2, 1")
    a(f"v_mul_u32_u24 v6, {APITCH}, v6")
    a("v_lshl_add_u32 v6, v1, 4, v6")
    a("v_bfe_u32 v16, v0, 2, 2")
    a("v_and_b32 v17, 3, v0")
    a("v_lshl_add_u32 v18, v1, 3, v16")
    a("v_lshrrev_b32 v19, 1, v17")
    a("v_and_b32 v20, 1, v17")
    a("v_and_b32 v21, 1, v1")
    a("v_lshrrev_b32 v22, 1, v16")
    a("v_lshl_or_b32 v22, v21, 1, v22")
    a("v_lshlrev_b32 v22, 1, v22")
    a(f"s_lshl_b32 s90, {S_W}, 1")
    a("v_add_u32 v23, s90, v19")
    a("v_xor_b32 v23, v23, v22")
    a("v_lshlrev_b32 v7, 7, v18")
    a("v_lshl_add_u32 v7, v23, 4, v7")
    a("v_lshl_add_u32 v7, v20, 3, v7")
    a(f"s_and_b32 s90, {S_W}, 1")
    a("s_lshl_b32 s90, s90, 1")
    a("v_add_u32 v23, s90, v19")
    a("v_lshlrev_b32 v22, 1, v21")
    a("v_xor_b32 v23, v23, v22")
    a("v_lshlrev_b32 v12, 6, v18")
    a("v_lshl_add_u32 v12, v23, 4, v12")
    a("v_lshl_add_u32 v12, v20, 3, v12")
    a("v_lshl_or_b32 v22, v21, 2, v16")
    a("v_lshlrev_b32 v22, 1, v22")
    a(f"s_lshl_b32 s90, {S_W}, 2")
    a("v_add_u32 v23, s90, v19")
    a("v_xor_b32 v24, v23, v22")
    a("v_lshlrev_b32 v25, 8, v18")
    a("v_lshl_add_u32 v25, v20, 3, v25")
    a("v_lshl_add_u32 v13, v24, 4, v25")
    a("v_add_u32 v23, 2, v23")
    a("v_xor_b32 v24, v23, v22")
    a("v_lshl_add_u32 v14, v24, 4, v25")
    a("v_bfe_u32 v8, v0, 4, 1")
    a("v_lshlrev_b32 v9, 3, v2")
    O_MOD, O_Q, O_O, O_A4, O_GU, O_DN, O_ST, T_K, T_V = "s16", "s17", "s18", "s19", "s20", "s21", "s24", "s25", "s26"
    a(f"s_mul_i32 {T_K}, {S_B}, {KB_B + NK_B // 4 - NK_A // 4}")
    a(f"s_add_u32 {T_K}, {T_K}, {NK_A // 4}")
    a(f"s_mul_i32 {T_V}, {S_B}, {KB_B + NK_B // 2 - NK_A // 2}")
    a(f"s_add_u32 {T_V}, {T_V}, {NK_A // 2}")
    sexpr(O_O, [(S_X, "shl", 16), (S_BT, "shl", 13), (S_SP, "shl", 9), (S_W, "shl", 7)], W_O)
    sexpr(O_A4, [(S_CB, "shl", 14), (S_W, "shl", 12), (S_X, "shl", 8), (S_KQ, "shl", 6)], W_A4)
    a(f"s_add_u32 {O_DN}, {O_A4}, {W_DN - W_A4}")
    a(f"s_lshr_b32 s90, {S_W}, 1")
    a(f"s_and_b32 s91, {S_W}, 1")
    sexpr(O_GU, [(S_X, "shl", 15), ("s90", "shl", 14), (S_KQ, "shl", 11), (S_CB, "shl", 8), ("s91", "shl", 7)], W_GU)
    sexpr(O_ST, [(S_X, "shl", 11), (S_BT, "shl", 10), (S_SP, "shl", 4)], W_ST)
    a(f"s_and_b32 s90, {S_SPL}, 1")
    a("s_lshl_b32 s90, s90, 1")
    a(f"s_lshr_b32 s91, {S_W}, 1")
    a("s_add_u32 s90, s90, s91")
    a(f"s_lshr_b32 s91, {S_SPL}, 1")
    a(f"s_and_b32 s97, {S_W}, 1")
    sexpr(O_Q, [(S_X, "shl", 15), ("s90", "shl", 12), ("s91", "shl", 10), ("s97", "shl", 9)], W_Q)
    a(f"s_cmp_lt_u32 {S_SPL}, 16")
    a("s_cbranch_scc1 L_m_offA")
    a(f"s_lshr_b32 s90, {S_X}, 2")
    a(f"s_and_b32 s91, {S_X}, 3")
    a(f"s_bfe_u32 s97, {S_SPL}, 0x10002")
    a(f"s_and_b32 s98, {S_SPL}, 3")
    sexpr(O_MOD, [("s90", "shl", 15), ("s91", "shl", 12), ("s98", "shl", 10), ("s97", "shl", 9), (S_W, "shl", 7)], W_MOD)
    a("s_branch L_m_offE")
    a.label("L_m_offA")
    a(f"s_lshr_b32 s90, {S_X}, 1")
    a(f"s_and_b32 s91, {S_X}, 1")
    a("s_lshl_b32 s91, s91, 2")
    a(f"s_lshr_b32 s97, {S_SPL}, 2")
    a("s_add_u32 s91, s91, s97")
    a("s_lshr_b32 s97, s91, 1")
    a("s_and_b32 s91, s91, 1")
    a(f"s_and_b32 s98, {S_SPL}, 3")
    sexpr(O_MOD, [("s90", "shl", 15), ("s97", "shl", 12), ("s98", "shl", 10), ("s91", "shl", 9), (S_W, "shl", 7)], W_MOD + 2*32768)
    a.label("L_m_offE")
    a("s_waitcnt vmcnt(0)")
    get_tag()
    a("v_mov_b32 v3, 0")
    stamp(1)

    def loadB(vaddr, nk, kstride, hoff, base=16):
        for t in range(nk):
            a(f"ds_read_b64_tr_b16 v[{base+4*t}:{base+4*t+1}], {vaddr} offset:{t*kstride}")
            a(f"ds_read_b64_tr_b16 v[{base+4*t+2}:{base+4*t+3}], {vaddr} offset:{t*kstride+hoff}")

    def gemv(act_off, nk, bbase=16, second=None):
        for t in range(nk):
            a(f"ds_read_b128 v[{32+4*t}:{35+4*t}], v6 offset:{act_off+64*t}")
        for t in range(nk):
            a(f"s_waitcnt lgkmcnt({nk-1-t})")
            c = "0" if t == 0 else "v[48:51]"
            a(f"v_mfma_f32_16x16x32_bf16 v[48:51], v[{32+4*t}:{35+4*t}], v[{bbase+4*t}:{bbase+4*t+3}], {c}")
            if second is not None:
                c = "0" if t == 0 else "v[56:59]"
                a(f"v_mfma_f32_16x16x32_bf16 v[56:59], v[{32+4*t}:{35+4*t}], v[{second+4*t}:{second+4*t+3}], {c}")

    def publish(shift, soff, local=False, second=False):
        a(f"v_lshl_add_u32 v54, v8, {shift}, v9")
        a(f"v_mov_b32 v53, {S_TAG}")
        if second: a(f"v_mov_b32 v61, {S_TAG}")
        a("v_mov_b32 v52, v48")
        if second: a("v_mov_b32 v60, v56")
        a("s_mov_b32 exec_hi, 0")
        t1 = f"buffer_store_dwordx2 v[52:53], v54, {WSRD}, {soff} offen"
        t2 = f"buffer_store_dwordx2 v[60:61], v54, {WSRD}, {soff} offen offset:128"
        if local:
            store_loc(t1)
            if second: store_loc(t2)
        else:
            a(t1 + " sc1")
            if second: a(t2 + " sc1")
        a("s_mov_b32 exec_hi, -1")

    def publish_pair(soff):
        a("v_lshlrev_b32 v54, 11, v8")
        a("v_lshl_add_u32 v54, v2, 2, v54")
        a(f"v_mov_b32 v53, {S_TAG}")
        a("v_mov_b32_dpp v52, v48 quad_perm:[1,0,3,2] row_mask:0xf bank_mask:0xf")
        a("s_mov_b32 exec_lo, 0x55555555")
        a("s_mov_b32 exec_hi, 0")
        a("v_cvt_pk_bf16_f32 v52, v48, v52")
        a(f"buffer_store_dwordx2 v[52:53], v54, {WSRD}, {soff} offen sc1")
        a("s_mov_b64 exec, -1")

    a(f"s_cmp_lg_u32 {S_B}, 0")
    a("s_cbranch_scc1 L_m_B")
    spin_lds(F_1, 2, "v3", "v5")
    spin_lds(F_MRL, 1, "v3", "v5")
    a(f"v_add_u32 v10, {L_MR}, v7")
    loadB("v10", 4, 4096, 512)
    gemv(L_ACT1, 4)
    arrive(F_EC, "v3", "v4")
    publish(14, O_MOD)
    arrive(F_PM, "v3", "v4")
    stamp(2)
    a("s_branch L_m_s3")
    a.label("L_m_B")
    a("s_waitcnt vmcnt(0)")
    arrive(F_WQ, "v3", "v4")
    a("v_bfe_u32 v16, v0, 2, 2")
    a("v_and_b32 v17, 3, v0")
    a("v_lshl_add_u32 v18, v1, 3, v16")
    a("v_lshrrev_b32 v19, 1, v17")
    a("v_and_b32 v20, 1, v17")
    a("v_and_b32 v21, 1, v1")
    a("v_lshl_or_b32 v22, v21, 2, v16")
    a("v_lshlrev_b32 v22, 1, v22")
    a("v_lshlrev_b32 v25, 8, v18")
    a("v_lshl_add_u32 v25, v20, 3, v25")
    a(f"s_lshr_b32 s90, {S_W}, 1")
    a("s_lshl_b32 s90, s90, 15")
    a(f"s_add_u32 s90, s90, {L_WQ}")
    a("v_add_u32 v25, s90, v25")
    a(f"s_and_b32 s91, {S_W}, 1")
    a("s_lshl_b32 s91, s91, 3")
    a("v_add_u32 v19, s91, v19")
    for e in range(4):
        a(f"v_add_u32 v23, {2*e}, v19")
        a("v_xor_b32 v23, v23, v22")
        a(f"v_lshl_add_u32 v{28+e}, v23, 4, v25")
    spin_lds(F_WQ, 4, "v3", "v5", sleep=False)
    for e in range(4):
        loadB(f"v{28+e}", 4, 8192, 1024, base=64 + 16*e)
    get_mode("v3", "v5")
    a("s_waitcnt lgkmcnt(0)")
    arrive(F_EC, "v3", "v4")
    a("v_lshl_add_u32 v54, v8, 14, v9")
    a(f"v_mov_b32 v53, {S_TAG}")
    spin_lds(F_2, 2, "v3", "v5", sleep=False)
    for t in range(4):
        a(f"ds_read_b128 v[{32+4*t}:{35+4*t}], v6 offset:{L_ACT2+64*t}")
    for t in range(4):
        a(f"s_waitcnt lgkmcnt({3-t})")
        for e in range(4):
            c = "0" if t == 0 else f"v[{16+4*e}:{19+4*e}]"
            a(f"v_mfma_f32_16x16x32_bf16 v[{16+4*e}:{19+4*e}], v[{32+4*t}:{35+4*t}], v[{64+16*e+4*t}:{67+16*e+4*t}], {c}")
    a("s_mov_b32 exec_hi, 0")
    for e in range(4):
        a(f"v_mov_b32 v{56+2*e}, v{16+4*e}")
        a(f"v_mov_b32 v{57+2*e}, v53")
    if cfg.local == 2:
        P = a.newlabel("Lst"); E = a.newlabel("Lste")
        a(f"s_cmp_eq_u32 {S_LM}, 1")
        a(f"s_cbranch_scc1 {P}")
        for e in range(4): a(f"buffer_store_dwordx2 v[{56+2*e}:{57+2*e}], v54, {WSRD}, {O_Q} offen offset:{128*e} sc1")
        a(f"s_branch {E}")
        a.label(P)
        for e in range(4): a(f"buffer_store_dwordx2 v[{56+2*e}:{57+2*e}], v54, {WSRD}, {O_Q} offen offset:{128*e}")
        a.label(E)
    else:
        for e in range(4): a(f"buffer_store_dwordx2 v[{56+2*e}:{57+2*e}], v54, {WSRD}, {O_Q} offen offset:{128*e}" + (" sc1" if cfg.local == 0 else ""))
    a("s_mov_b32 exec_hi, -1")
    arrive(F_PQ, "v3", "v4")
    stamp(3)
    mark(10, "v3")
    a.label("L_m_s3")
    get_mode("v3", "v5")
    T_ST, T_N = "s27", "s28"
    a(f"s_lshl_b32 s90, {S_B}, 1")
    a(f"s_sub_u32 s90, 4, s90")
    a(f"s_mul_i32 {T_ST}, {S_W}, s90")
    a(f"s_min_u32 s91, {S_W}, 2")
    a(f"s_add_u32 {T_ST}, {T_ST}, s91")
    a(f"s_cmp_lt_u32 {S_W}, 2")
    a(f"s_addc_u32 {T_N}, s90, 0")
    a("s_mov_b64 s[30:31], -1")
    a(f"s_cmp_eq_u32 {T_N}, 3")
    a("s_cselect_b32 s31, 0xffff, s31")
    a(f"s_cmp_eq_u32 {T_N}, 2")
    a("s_cselect_b32 s31, 0, s31")
    a("s_mov_b32 s33, 0")
    a(f"s_cmp_eq_u32 {T_N}, 5")
    a("s_cselect_b32 s32, 0xffff, 0")
    a("v_xor_b32 v10, v1, v2")
    a("v_lshlrev_b32 v10, 4, v10")
    a("v_lshl_add_u32 v10, v2, 8, v10")
    a(f"s_lshl_b32 s90, {T_ST}, 12")
    a(f"s_add_u32 s90, s90, {L_K}")
    a("v_add_u32 v56, s90, v10")
    a("v_xor_b32 v57, 64, v56")
    a("v_xor_b32 v58, 0x80, v56")
    a("v_xor_b32 v59, 0xc0, v56")
    a("v_and_b32 v10, 3, v2")
    a(f"v_mul_u32_u24 v10, {APITCH}, v10")
    a("v_lshl_add_u32 v10, v1, 4, v10")
    a(f"v_add_u32 v10, {L_Q}, v10")
    a("v_lshlrev_b32 v11, 4, v1")
    a(f"v_add_u32 v11, {L_ZERO}, v11")
    a("v_lshrrev_b32 v15, 2, v2")
    for tt in range(4):
        a(f"v_cmp_eq_u32 vcc, {tt}, v15")
        a(f"v_cndmask_b32 v{60+tt}, v11, v10, vcc")
    for r in range(4): a(f"v_mov_b32 v{52+r}, 0")
    NEG = "s29"
    a(f"s_mov_b32 {NEG}, 0xff800000")
    spin_lds(F_3, 2, "v3", "v5")
    spin_lds(F_LC, T_K, "v3", "v5", sleep=False)
    stamp(4)
    mark(11, "v3")
    def qk_reads(tt, base, slot=None):
        slot = tt if slot is None else slot
        for t in range(4):
            a(f"ds_read_b128 v[{base+4*t}:{base+4*t+3}], v{60+slot} offset:{64*t}")
            a(f"ds_read_b128 v[{base+16+4*t}:{base+16+4*t+3}], v{56+t} offset:{4096*tt}")
    def qk_mfma(b, acc, first):
        for t in range(4):
            c = "0" if (first and t == 0) else acc
            a(f"v_mfma_f32_16x16x32_bf16 {acc}, v[{b+4*t}:{b+4*t+3}], v[{b+16+4*t}:{b+16+4*t+3}], {c}")
    qk_reads(0, 16)
    qk_reads(1, 68)
    a("s_waitcnt lgkmcnt(8)")
    qk_mfma(16, "v[48:51]", True)
    a(f"s_cmp_lg_u32 {T_N}, 2")
    a("s_cbranch_scc1 L_qk_n3p")
    a("s_waitcnt lgkmcnt(0)")
    qk_mfma(68, "v[48:51]", False)
    a("s_branch L_qk_done")
    a.label("L_qk_n3p")
    qk_reads(2, 16)
    a("s_waitcnt lgkmcnt(8)")
    qk_mfma(68, "v[48:51]", False)
    a(f"s_cmp_eq_u32 {T_N}, 3")
    a("s_cbranch_scc1 L_qk_n3")
    qk_reads(3, 68)
    a("s_waitcnt lgkmcnt(8)")
    qk_mfma(16, "v[48:51]", False)
    a(f"s_cmp_eq_u32 {T_N}, 5")
    a("s_cbranch_scc1 L_qk_n5")
    a("s_waitcnt lgkmcnt(0)")
    qk_mfma(68, "v[48:51]", False)
    a("s_branch L_qk_done")
    a.label("L_qk_n5")
    qk_reads(4, 16, slot=0)
    a("s_waitcnt lgkmcnt(8)")
    qk_mfma(68, "v[48:51]", False)
    a("s_waitcnt lgkmcnt(0)")
    qk_mfma(16, "v[52:55]", True)
    a("s_branch L_qk_done")
    a.label("L_qk_n3")
    a("s_waitcnt lgkmcnt(0)")
    qk_mfma(16, "v[48:51]", False)
    a.label("L_qk_done")
    arrive(F_KC, "v3", "v4")
    a("s_nop 7")
    a(f"s_mov_b32 s94, {SCALE:#x}")
    for (d, sr) in ((16, 48), (20, 52)):
        bf16r2(f"v{d}", f"v{d+1}", f"v{sr}", f"v{sr+1}", "v32")
        bf16r2(f"v{d+2}", f"v{d+3}", f"v{sr+2}", f"v{sr+3}", "v33")
    for r in range(8): a(f"v_mul_f32 v{16+r}, s94, v{16+r}")
    for d in (16, 20):
        bf16r2(f"v{d}", f"v{d+1}", f"v{d}", f"v{d+1}", "v32")
        bf16r2(f"v{d+2}", f"v{d+3}", f"v{d+2}", f"v{d+3}", "v33")
    a(f"v_mov_b32 v34, {NEG}")
    for r in range(4): a(f"v_cndmask_b32 v{16+r}, v34, v{16+r}, s[30:31]")
    for r in range(4): a(f"v_cndmask_b32 v{20+r}, v34, v{20+r}, s[32:33]")
    for r in range(4): a(f"v_max_f32 v{24+r}, v{16+r}, v{20+r}")
    allreduce(["v24", "v25", "v26", "v27"], "v_max_f32", ["v28", "v29", "v30", "v31"], FULL)
    a(f"s_lshl_b32 s90, {S_W}, 4")
    a("v_mov_b32 v10, s90")
    a("s_mov_b64 s[92:93], exec")
    a("s_mov_b64 exec, 1")
    a(f"ds_write_b128 v10, v[24:27] offset:{L_MX}")
    a(f"ds_add_u32 v3, v4 offset:{F_MB1}")
    a("s_mov_b64 exec, s[92:93]")
    spin_lds(F_MB1, 4, "v3", "v5", sleep=False)
    for w in range(4):
        a(f"ds_read_b128 v[{32+4*w}:{35+4*w}], v3 offset:{L_MX+16*w}")
    a("s_waitcnt lgkmcnt(0)")
    for r in range(4):
        a(f"v_max_f32 v{24+r}, v{32+r}, v{36+r}")
        a(f"v_max_f32 v{28+r}, v{40+r}, v{44+r}")
    for r in range(4):
        a(f"v_max_f32 v{24+r}, v{24+r}, v{28+r}")
    a(f"s_mov_b32 s94, {LOG2E:#x}")
    for r in range(8): a(f"v_sub_f32 v{16+r}, v{16+r}, v{24+(r&3)}")
    for r in range(8): a(f"v_mul_f32 v{16+r}, s94, v{16+r}")
    for r in range(8): a(f"v_exp_f32 v{16+r}, v{16+r}")
    a("v_cvt_pk_bf16_f32 v28, v16, v17")
    a("v_cvt_pk_bf16_f32 v29, v18, v19")
    a("v_cvt_pk_bf16_f32 v30, v20, v21")
    a("v_cvt_pk_bf16_f32 v31, v22, v23")
    a(f"s_lshl_b32 s90, {T_ST}, 5")
    a(f"s_add_u32 s90, s90, {L_P}")
    a("v_lshl_add_u32 v10, v0, 1, s90")
    a("s_mov_b64 exec, s[30:31]")
    a("ds_write_b16 v10, v28")
    a(f"ds_write_b16_d16_hi v10, v28 offset:{PPITCH}")
    a(f"ds_write_b16 v10, v29 offset:{2*PPITCH}")
    a(f"ds_write_b16_d16_hi v10, v29 offset:{3*PPITCH}")
    a(f"s_cmp_lg_u32 {T_N}, 5")
    a("s_cbranch_scc1 L_p_w1")
    a("s_mov_b64 exec, s[32:33]")
    a("ds_write_b16 v10, v30 offset:128")
    a(f"ds_write_b16_d16_hi v10, v30 offset:{PPITCH+128}")
    a(f"ds_write_b16 v10, v31 offset:{2*PPITCH+128}")
    a(f"ds_write_b16_d16_hi v10, v31 offset:{3*PPITCH+128}")
    a.label("L_p_w1")
    a("s_mov_b64 exec, -1")
    for r in range(4): a(f"v_add_f32 v{16+r}, v{16+r}, v{20+r}")
    allreduce(["v16", "v17", "v18", "v19"], "v_add_f32", ["v28", "v29", "v30", "v31"], FULL)
    a(f"s_lshl_b32 s90, {S_W}, 4")
    a("v_mov_b32 v10, s90")
    a("s_mov_b64 s[92:93], exec")
    a("s_mov_b64 exec, 1")
    a(f"ds_write_b128 v10, v[16:19] offset:{L_LS}")
    a(f"ds_add_u32 v3, v4 offset:{F_MB2}")
    a("s_mov_b64 exec, s[92:93]")
    spin_lds(F_MB2, 4, "v3", "v5", sleep=False)
    a(f"s_cmp_lg_u32 {S_W}, 0")
    a("s_cbranch_scc1 L_m_pv")
    a("v_lshlrev_b32 v10, 2, v0")
    a("s_mov_b64 exec, 15")
    for w in range(4):
        a(f"ds_read_b32 v{16+w}, v10 offset:{L_LS+16*w}")
        a(f"ds_read_b32 v{20+w}, v10 offset:{L_MX+16*w}")
    a("s_waitcnt lgkmcnt(0)")
    a("v_add_f32 v16, v16, v17")
    a("v_add_f32 v18, v18, v19")
    a("v_max_f32 v20, v20, v21")
    a("v_max_f32 v22, v22, v23")
    a("v_add_f32 v26, v16, v18")
    a("v_max_f32 v24, v20, v22")
    a(f"v_mov_b32 v25, {S_TAG}")
    a(f"v_mov_b32 v27, {S_TAG}")
    a("v_lshlrev_b32 v10, 8, v0")
    store_loc(f"buffer_store_dwordx4 v[24:27], v10, {WSRD}, {O_ST} offen")
    a("s_mov_b64 exec, -1")
    a.label("L_m_pv")
    stamp(5)
    a("v_lshrrev_b32 v10, 2, v2")
    a(f"v_mul_u32_u24 v10, {PPITCH}, v10")
    a("v_lshl_add_u32 v10, v1, 4, v10")
    a(f"v_add_u32 v60, {L_P}, v10")
    a(f"v_add_u32 v61, {L_V}, v13")
    a(f"v_add_u32 v62, {L_V}, v14")
    a("v_lshl_add_u32 v63, v1, 14, v9")
    a(f"v_mov_b32 v65, {S_TAG}")
    for r in range(8): a(f"v_mov_b32 v{48+r}, 0")
    a(f"s_add_u32 s95, {T_K}, 8")
    a("s_mov_b32 s96, -1000")
    a.label("L_pv_loop")
    a("s_cmp_ge_i32 s96, s95")
    a("s_cbranch_scc1 L_pv_go")
    a.label("L_pv_spin")
    a(f"ds_read_b32 v5, v3 offset:{F_LC}")
    a("s_waitcnt lgkmcnt(0)")
    a("v_readfirstlane_b32 s96, v5")
    a("s_cmp_ge_i32 s96, s95")
    a("s_cbranch_scc1 L_pv_go")
    timeout()
    a("s_branch L_pv_spin")
    a.label("L_pv_go")
    a("ds_read_b128 v[16:19], v60")
    a("ds_read_b64_tr_b16 v[20:21], v61")
    a("ds_read_b64_tr_b16 v[22:23], v61 offset:1024")
    a("ds_read_b64_tr_b16 v[24:25], v62")
    a("ds_read_b64_tr_b16 v[26:27], v62 offset:1024")
    a("v_add_u32 v60, 64, v60")
    a("v_add_u32 v61, 0x2000, v61")
    a("v_add_u32 v62, 0x2000, v62")
    a("s_add_u32 s95, s95, 8")
    a("s_waitcnt lgkmcnt(2)")
    a("v_mfma_f32_16x16x32_bf16 v[48:51], v[16:19], v[20:23], v[48:51]")
    a("s_waitcnt lgkmcnt(0)")
    a("v_mfma_f32_16x16x32_bf16 v[52:55], v[16:19], v[24:27], v[52:55]")
    a(f"s_cmp_le_i32 s95, {T_V}")
    a("s_cbranch_scc1 L_pv_loop")
    stamp(6)
    a("s_nop 4")
    a("v_cvt_pk_bf16_f32 v64, v48, v52")
    store_loc(f"buffer_store_dwordx2 v[64:65], v63, {WSRD}, {O_O} offen")
    arrive(F_PO, "v3", "v4")
    stamp(7)
    mark(12, "v3")
    spin_lds(F_WOL, 1, "v3", "v5", sleep=False)
    a(f"v_add_u32 v10, {L_WO}, v7")
    loadB("v10", 4, 4096, 512)
    a("s_waitcnt lgkmcnt(0)")
    a("s_barrier")
    gemv(L_ACT4, 4)
    publish_pair(O_A4)
    arrive(F_PA, "v3", "v4")
    stamp(8)
    mark(13, "v3")
    spin_lds(F_LATE, 1, "v3", "v5")
    a(f"v_add_u32 v10, {L_DN}, v7")
    loadB("v10", 2, 4096, 512, base=64)
    a(f"s_lshr_b32 s90, {S_W}, 1")
    a("s_lshl_b32 s90, s90, 13")
    a(f"s_add_u32 s90, s90, {L_G}")
    a("v_add_u32 v11, s90, v12")
    loadB("v11", 4, 2048, 256)
    a("s_waitcnt lgkmcnt(0)")
    a("s_barrier")
    a(f"s_cmp_eq_u32 {S_CB}, 7")
    a("s_cbranch_scc1 L_m_s7")
    gemv(L_ACT6, 4)
    publish(13, O_GU, local=True)
    a.label("L_m_s7")
    arrive(F_PG, "v3", "v4")
    stamp(9)
    a("s_barrier")
    gemv(L_ACT7, 2, bbase=64)
    publish_pair(O_DN)
    arrive(F_PD, "v3", "v4")
    stamp(10)
    mark(15, "v3")
    dump_stamps(11)
    a("s_endpgm")

    def r1_block(uid, vz):
        a(f"s_sub_u32 s90, {S_W}, 4")
        a("s_lshr_b32 s91, s90, 1")
        a("s_and_b32 s94, s90, 1")
        a("s_lshl_b32 s99, s94, 8")
        a(f"s_lshl_b32 s100, {S_X}, 16")
        a("s_add_u32 s99, s99, s100")
        a(f"s_lshl_b32 s100, {S_KQ}, 14")
        a("s_add_u32 s99, s99, s100")
        a("s_lshl_b32 s100, s91, 13")
        a("s_add_u32 s99, s99, s100")
        a(f"s_add_u32 s99, s99, {W_O}")
        a(f"s_lshl_b32 s100, {S_X}, 11")
        a("s_lshl_b32 s90, s91, 10")
        a("s_add_u32 s100, s100, s90")
        a(f"s_lshl_b32 s90, {S_KQ}, 8")
        a("s_add_u32 s100, s100, s90")
        a(f"s_add_u32 s100, s100, {W_ST}")
        a("v_lshrrev_b32 v48, 5, v0")
        a("v_and_b32 v49, 31, v0")
        a("v_lshlrev_b32 v50, 12, v48")
        a("v_lshl_add_u32 v50, v49, 3, v50")
        a("v_and_b32 v51, 7, v0")
        a("v_lshl_add_u32 v51, v48, 3, v51")
        a("v_lshlrev_b32 v51, 4, v51")
        a(f"s_mul_i32 s91, s91, {APITCH}")
        a("s_lshl_b32 s94, s94, 7")
        a("s_add_u32 s91, s91, s94")
        a("v_bfe_u32 v52, v0, 4, 1")
        a("v_lshlrev_b32 v52, 6, v52")
        a("v_and_b32 v53, 15, v0")
        a("v_lshl_add_u32 v52, v53, 1, v52")
        a("v_lshl_add_u32 v52, v48, 5, v52")
        a("v_add_u32 v52, s91, v52")
        loads = [f"buffer_load_dwordx4 v[32:35], v51, {WSRD}, s100 offen sc1"]; tags = ["v33", "v35"]
        for i in range(8):
            loads.append(f"buffer_load_dwordx2 v[{16+2*i}:{17+2*i}], v50, {WSRD}, s99 offen offset:{512*i} sc1")
            tags.append(f"v{17+2*i}")
        after_own(F_PO, 4, vz, "v54", cfg.d_r1)
        stamp(7 if uid != "q" else 4)
        poll(loads, tags, "v54")
        if uid == "q": stamp(10)
        a("v_mov_b32 v55, v32")
        allreduce(["v55"], "v_max_f32", ["v56"], ["x1", "x2", "x4", "x32"])
        a(f"s_mov_b32 s94, {LOG2E:#x}")
        a("v_sub_f32 v56, v32, v55")
        for i in range(4): a(f"v_lshlrev_b32 v{36+2*i}, 16, v{16+2*i}"); a(f"v_and_b32 v{37+2*i}, 0xffff0000, v{16+2*i}")
        a("v_mul_f32 v56, s94, v56")
        a("v_exp_f32 v56, v56")
        for i in range(4, 8): a(f"v_lshlrev_b32 v{36+2*i}, 16, v{16+2*i}"); a(f"v_and_b32 v{37+2*i}, 0xffff0000, v{16+2*i}")
        a("v_mul_f32 v57, v56, v34")
        allreduce(["v57"], "v_add_f32", ["v58"], ["x1", "x2", "x4", "x32"])
        a("v_rcp_f32 v57, v57")
        a("v_mov_b32 v58, 0")
        a("v_mov_b32 v59, 0")
        a("v_mul_f32 v56, v56, v57")
        for i in range(8):
            a(f"v_fmac_f32_dpp v58, v56, v{36+2*i} row_newbcast:{i} row_mask:0xf bank_mask:0xf")
            a(f"v_fmac_f32_dpp v59, v56, v{37+2*i} row_newbcast:{i} row_mask:0xf bank_mask:0xf")
        a("v_permlane32_swap_b32 v58, v59")
        a("v_add_f32 v58, v58, v59")
        a("v_cvt_pk_bf16_f32 v58, v58, v58")
        a(f"ds_write_b16 v52, v58 offset:{L_ACT4}")
        a("s_waitcnt lgkmcnt(0)")

    a.label("L_gwave")
    a(f"s_cmp_eq_u32 {S_W}, 4")
    a("s_cbranch_scc1 L_slice")
    a(f"s_cmp_eq_u32 {S_W}, 7")
    a("s_cbranch_scc1 L_aux")

    SB = "s97"
    a("s_mov_b64 s[36:37], s[42:43]")
    a("v_lshlrev_b32 v2, 2, v0")
    a("v_mov_b32 v10, 1")
    a(f"s_mul_i32 s98, {SB}, {APITCH}")
    a("v_add_u32 v11, s98, v2")
    a("v_mov_b32 v19, 0")
    a("s_waitcnt vmcnt(0)")
    stamp(1)
    a("v_lshlrev_b32 v12, 16, v9")
    a("v_and_b32 v13, 0xffff0000, v9")
    a(f"s_mov_b32 s94, {LOG2E:#x}")
    for r in (12, 13): a(f"v_mul_f32 v{r+2}, s94, v{r}")
    for r in (12, 13): a(f"v_exp_f32 v{r+2}, -v{r+2}")
    for r in (12, 13): a(f"v_add_f32 v{r+2}, 1.0, v{r+2}")
    for r in (12, 13): a(f"v_rcp_f32 v{r+2}, v{r+2}")
    for r in (12, 13): a(f"v_mul_f32 v{r}, v{r}, v{r+2}")
    a("v_cvt_pk_bf16_f32 v12, v12, v13")
    a(f"ds_write_b32 v11, v12 offset:{L_ACT1}")
    arrive(F_1, "v19", "v10")
    get_tag()
    a("v_mov_b32 v3, 0")

    def ln_finish(mean, var, x0, x1, tmp):
        bf16r2(mean, var, mean, var, tmp)
        a(f"s_mov_b32 s94, {EPS:#x}")
        a(f"v_add_f32 {var}, s94, {var}")
        bf16r1(var, var)
        a(f"v_sqrt_f32 {var}, {var}")
        a(f"v_sub_f32 {x0}, {x0}, {mean}")
        a(f"v_sub_f32 {x1}, {x1}, {mean}")
        bf16r1(var, var)
        a(f"v_rcp_f32 {var}, {var}")
        bf16r2(x0, x1, x0, x1, tmp)
        a(f"v_mul_f32 {x0}, {x0}, {var}")
        a(f"v_mul_f32 {x1}, {x1}, {var}")
        bf16r2(x0, x1, x0, x1, tmp)

    def quarter_gather(chunkA, chunkB, qreg, pre=None, sample=False):
        for (ch, sreg) in ((chunkA, "s90"), (chunkB, "s99")):
            sexpr(sreg, [(SB, "shl", 14), (qreg, "shl", 12)], W_MOD + ch*32768)
        loads = []; tags = []
        for i in range(4):
            loads.append(f"buffer_load_dwordx4 v[{16+4*i}:{19+4*i}], v1, {WSRD}, s90 offen offset:{1024*i} sc1")
            loads.append(f"buffer_load_dwordx4 v[{32+4*i}:{35+4*i}], v1, {WSRD}, s99 offen offset:{1024*i} sc1")
            tags += [f"v{17+4*i}", f"v{19+4*i}", f"v{33+4*i}", f"v{35+4*i}"]
        if pre: pre()
        poll(loads, tags, "v50", sample=sample)
        for (base, d0, d1) in ((16, "v14", "v15"), (32, "v48", "v49")):
            a(f"v_add_f32 {d0}, v{base}, v{base+4}")
            a(f"v_add_f32 {d1}, v{base+2}, v{base+6}")
            a(f"v_add_f32 v50, v{base+8}, v{base+12}")
            a(f"v_add_f32 v51, v{base+10}, v{base+14}")
            a(f"v_add_f32 {d0}, {d0}, v50")
            a(f"v_add_f32 {d1}, {d1}, v51")
            bf16r2(d0, d1, d0, d1, "v50")

    def modulate(x0, x1, sc0, sc1, sh0, sh1, dst, tmp):
        a(f"v_mul_f32 {x0}, {x0}, {sc0}")
        a(f"v_mul_f32 {x1}, {x1}, {sc1}")
        bf16r2(x0, x1, x0, x1, tmp)
        a(f"v_add_f32 {x0}, {x0}, {sh0}")
        a(f"v_add_f32 {x1}, {x1}, {sh1}")
        a(f"v_cvt_pk_bf16_f32 {dst}, {x0}, {x1}")

    a(f"s_cmp_eq_u32 {S_B}, 0")
    a("s_cbranch_scc1 L_q_qg")
    for i in range(4):
        a(f"v_lshlrev_b32 v{16+2*i}, 16, v{4+i}")
        a(f"v_and_b32 v{17+2*i}, 0xffff0000, v{4+i}")
    a("v_add_f32 v24, v16, v17")
    a("v_add_f32 v25, v18, v19")
    a("v_add_f32 v26, v20, v21")
    a("v_add_f32 v27, v22, v23")
    a("v_add_f32 v24, v24, v25")
    a("v_add_f32 v26, v26, v27")
    a("v_add_f32 v24, v24, v26")
    allreduce(["v24"], "v_add_f32", ["v28"], FULL)
    a(f"s_mov_b32 s94, {INV512:#x}")
    a("v_mul_f32 v24, s94, v24")
    for i in range(8): a(f"v_sub_f32 v{16+i}, v{16+i}, v24")
    a("v_mul_f32 v25, v16, v16")
    for i in range(1, 8): a(f"v_fmac_f32 v25, v{16+i}, v{16+i}")
    allreduce(["v25"], "v_add_f32", ["v28"], FULL)
    a("v_mul_f32 v25, s94, v25")
    a("v_lshlrev_b32 v12, 16, v8")
    a("v_and_b32 v13, 0xffff0000, v8")
    ln_finish("v24", "v25", "v12", "v13", "v28")
    a(f"s_lshr_b32 s100, {S_SPL}, 1")
    quarter_gather(0, 1, "s100", pre=lambda: a(f"s_sleep {cfg.d_h}"))
    a("v_add_f32 v48, 1.0, v48")
    a("v_add_f32 v49, 1.0, v49")
    bf16r2("v48", "v49", "v48", "v49", "v50")
    modulate("v12", "v13", "v48", "v49", "v14", "v15", "v16", "v50")
    a(f"ds_write_b32 v11, v16 offset:{L_ACT2}")
    arrive(F_2, "v3", "v10")
    stamp(2)
    a(f"s_lshr_b32 s90, {S_SPL}, 1")
    a(f"s_and_b32 s91, {S_SPL}, 1")
    sexpr("s99", [(S_X, "shl", 15), (SB, "shl", 14), ("s90", "shl", 12), ("s91", "shl", 9)], W_Q)
    sexpr("s100", [(S_X, "shl", 12), (SB, "shl", 11), (S_SPL, "shl", 8)], W_QF)
    a("v_lshlrev_b32 v54, 3, v0")
    a("s_mov_b32 exec_hi, 0")
    loads = []; tags = []
    for i in range(4):
        loads.append(f"buffer_load_dwordx4 v[{16+4*i}:{19+4*i}], v1, {WSRD}, s99 offen offset:{1024*i} sc1")
        tags += [f"v{17+4*i}", f"v{19+4*i}"]
    get_mode("v3", "v50")
    after_own(F_PQ, 4, "v3", "v50", cfg.d_q)
    poll(loads, tags, "v50", sleep=0)
    a("v_add_f32 v48, v16, v20")
    a("v_add_f32 v49, v18, v22")
    a("v_add_f32 v50, v24, v28")
    a("v_add_f32 v51, v26, v30")
    a("v_add_f32 v48, v48, v50")
    a("v_add_f32 v49, v49, v51")
    a(f"v_mov_b32 v53, {S_TAG}")
    a("v_cvt_pk_bf16_f32 v52, v48, v49")
    store_loc(f"buffer_store_dwordx2 v[52:53], v54, {WSRD}, s100 offen")
    a("s_mov_b64 exec, -1")
    arrive(F_QF, "v3", "v10")
    a.label("L_q_qg")
    sexpr("s90", [(S_X, "shl", 12), (S_BT, "shl", 11), (SB, "shl", 10)], W_QF)
    a("v_lshrrev_b32 v54, 5, v0")
    a(f"v_mul_u32_u24 v54, {APITCH}, v54")
    a("v_and_b32 v55, 31, v0")
    a("v_lshl_add_u32 v54, v55, 3, v54")
    a(f"s_mul_i32 s100, {SB}, {2*APITCH}")
    a("v_add_u32 v54, s100, v54")
    ldA = f"buffer_load_dwordx4 v[16:19], v1, {WSRD}, s90 offen sc1"
    ldB = f"buffer_load_dwordx4 v[20:23], v1, {WSRD}, s90 offen sc1"
    a(f"s_cmp_eq_u32 {S_B}, 0")
    a("s_cbranch_scc1 L_q_qA")
    after_own(F_QF, 2, "v3", "v50", cfg.d_q)
    a("s_branch L_q_qP")
    a.label("L_q_qA")
    if cfg.quiet: spin_lds(F_LC, cfg.quiet, "v3", "v50")
    a.label("L_q_qP")
    a(ldA)
    a(f"s_sleep {cfg.qsl2}")
    a.label("L_q_loop")
    a(ldB)
    a("s_waitcnt vmcnt(1)")
    a(f"v_xor_b32 v50, {S_TAG}, v17")
    a(f"v_bitop3_b32 v50, v50, v19, {S_TAG} bitop3:0xf6")
    a("v_cmp_ne_u32 vcc, 0, v50")
    a("s_cbranch_vccz L_q_gotA")
    timeout()
    a(ldA)
    a("s_waitcnt vmcnt(1)")
    a(f"v_xor_b32 v50, {S_TAG}, v21")
    a(f"v_bitop3_b32 v50, v50, v23, {S_TAG} bitop3:0xf6")
    a("v_cmp_ne_u32 vcc, 0, v50")
    a("s_cbranch_vccnz L_q_loop")
    a("v_mov_b32 v24, v20")
    a("v_mov_b32 v25, v22")
    a("s_branch L_q_got")
    a.label("L_q_gotA")
    a("v_mov_b32 v24, v16")
    a("v_mov_b32 v25, v18")
    a.label("L_q_got")
    a(f"ds_write_b64 v54, v[24:25] offset:{L_Q}")
    arrive(F_3, "v3", "v10")
    stamp(3)
    a("s_waitcnt vmcnt(0)")
    sexpr("s90", [(SB, "shl", 11), (S_KQ, "shl", 9)], W_MODF + 3*4096)
    a("s_add_u32 s99, s90, 4096")
    a("v_lshlrev_b32 v54, 3, v0")
    poll([f"buffer_load_dwordx2 v[16:17], v54, {WSRD}, s90 offen sc1",
          f"buffer_load_dwordx2 v[18:19], v54, {WSRD}, s99 offen sc1"], ["v17", "v19"], "v50", sleep=8)
    a("v_lshlrev_b32 v66, 16, v16")
    a("v_and_b32 v67, 0xffff0000, v16")
    a("v_lshlrev_b32 v48, 16, v18")
    a("v_and_b32 v49, 0xffff0000, v18")
    a("v_add_f32 v48, 1.0, v48")
    a("v_add_f32 v49, 1.0, v49")
    bf16r2("v64", "v65", "v48", "v49", "v50")
    r1_block("q", "v3")
    stamp(5)
    a("s_barrier")
    sexpr("s99", [(S_X, "shl", 10), (SB, "shl", 9)], W_X1S)
    sexpr("s90", [(S_X, "shl", 12), (SB, "shl", 11), (S_KQ, "shl", 9)], W_X1P)
    a("v_lshlrev_b32 v16, 3, v0")
    a("v_and_b32 v17, 31, v0")
    a("v_lshlrev_b32 v17, 4, v17")
    after_own(F_PX, 1, "v3", "v50", cfg.d_x1)
    stamp(8)
    poll([f"buffer_load_dwordx4 v[24:27], v17, {WSRD}, s99 offen sc1",
          f"buffer_load_dwordx2 v[20:21], v16, {WSRD}, s90 offen sc1"], ["v21", "v25", "v27"], "v50")
    stamp(9)
    allreduce(["v24", "v26"], "v_add_f32", ["v28", "v29"], ["x1", "x2", "x4", "x8", "x16"])
    a(f"s_mov_b32 s94, {INV512:#x}")
    a("v_mul_f32 v24, s94, v24")
    a("v_mul_f32 v26, s94, v26")
    a("v_lshlrev_b32 v12, 16, v20")
    a("v_fma_f32 v26, -v24, v24, v26")
    a("v_and_b32 v13, 0xffff0000, v20")
    a("v_max_f32 v26, 0, v26")
    ln_finish("v24", "v26", "v12", "v13", "v30")
    modulate("v12", "v13", "v64", "v65", "v66", "v67", "v16", "v30")
    a(f"ds_write_b32 v11, v16 offset:{L_ACT6}")
    a(f"s_mul_i32 s94, {S_KQ}, 448")
    sexpr("s90", [(S_X, "shl", 15), (SB, "shl", 13), ("s94", "shl", 0)], W_GU, tmp="s99")
    a("s_add_u32 s94, s90, 4096")
    a("s_add_u32 s99, s90, 16384")
    a("s_add_u32 s100, s90, 20480")
    a("s_waitcnt lgkmcnt(0)")
    stamp(6)
    a("s_barrier")
    a("v_lshlrev_b32 v16, 3, v0")
    a("v_mov_b32 v40, 0")
    a("v_lshlrev_b32 v17, 1, v0")
    a("v_add_u32 v17, s98, v17")
    a("s_mov_b32 exec_lo, -1")
    a("s_mov_b32 exec_hi, 0x00ffffff")
    loads = []; tags = []
    for wh in range(2):
        for k6 in range(4):
            sr = [["s90", "s94"], ["s99", "s100"]][wh][k6 >> 1]
            rb = 20 + 8*wh + 2*k6
            loads.append(f"buffer_load_dwordx2 v[{rb}:{rb+1}], v16, {WSRD}, {sr} offen offset:{2048*(k6&1)} sc1")
            tags.append(f"v{rb+1}")
    after_own(F_PG, 4, "v3", "v50", cfg.d_gu)
    poll(loads, tags, "v50")
    a("v_add_f32 v36, v20, v22")
    a("v_add_f32 v37, v24, v26")
    a("v_add_f32 v38, v28, v30")
    a("v_add_f32 v39, v32, v34")
    a("v_add_f32 v36, v36, v37")
    a("v_add_f32 v38, v38, v39")
    bf16r2("v36", "v38", "v36", "v38", "v50")
    a("v_mul_f32 v36, v36, v38")
    a("v_cvt_pk_bf16_f32 v40, v36, v36")
    a("s_mov_b64 exec, -1")
    a(f"ds_write_b16 v17, v40 offset:{L_ACT7}")
    a("s_waitcnt lgkmcnt(0)")
    stamp(7)
    a("s_barrier")
    dump_stamps(11)
    a("s_endpgm")

    a.label("L_slice")
    srd(48, 38, 2048)
    a("v_lshlrev_b32 v7, 4, v0")
    a("v_and_b32 v1, 3, v0")
    a("v_bfe_u32 v2, v0, 4, 1")
    a("v_bfe_u32 v4, v0, 3, 1")
    a("v_lshrrev_b32 v5, 5, v0")
    a("v_lshlrev_b32 v6, 2, v1")
    a("v_lshl_add_u32 v6, v2, 1, v6")
    a("v_add_u32 v6, v6, v4")
    a("v_lshlrev_b32 v8, 10, v5")
    a("v_lshl_add_u32 v8, v6, 1, v8")
    a(f"s_lshl_b32 s90, {S_LOC}, 5")
    a("buffer_load_ushort v9, v8, s[44:47], s90 offen")
    a("v_lshlrev_b32 v10, 4, v5")
    a("v_add_u32 v10, v10, v6")
    a("v_lshlrev_b32 v10, 2, v10")
    a("v_lshlrev_b32 v11, 1, v1")
    a("v_add_u32 v11, v11, v2")
    a("v_lshlrev_b32 v12, 11, v5")
    a("v_lshl_add_u32 v98, v11, 3, v12")
    a("v_lshlrev_b32 v99, 9, v5")
    a("v_lshlrev_b32 v12, 10, v5")
    a("v_lshl_add_u32 v97, v11, 2, v12")
    sexpr("s22", [(S_X, "shl", 12), (S_LOC, "shl", 6)], W_X1P)
    sexpr("s23", [(S_X, "shl", 10), (S_LOC, "shl", 4)], W_X1S)
    a(f"s_lshl_b32 s24, {S_LOC}, 5")
    a(f"s_lshl_b32 s17, {S_LOC}, 12")
    a("v_cmp_eq_u32 s[26:27], 1, v4")
    a("v_mov_b32 v100, 0x3f80")
    a("v_mov_b32 v101, 0x3f800000")
    a("s_waitcnt vmcnt(0)")
    get_tag()
    a("v_mov_b32 v3, 0")
    a("v_lshlrev_b32 v102, 16, v9")
    get_mode("v3", "v20")
    stamp(1)

    def part_loads(base):
        a(f"s_add_u32 s20, s17, {base}")
        loads = []; tags = []
        for i in range(4):
            rb = 16 + 4*i
            loads.append(f"buffer_load_dwordx4 v[{rb}:{rb+3}], v7, {WSRD}, s20 offen offset:{1024*i} sc1")
            tags += [f"v{rb+1}", f"v{rb+3}"]
        return loads, tags
    def part_loads_atomic(base):
        a(f"s_add_u32 s20, s17, {base}")
        loads = []; tags = []
        for r in range(16, 32): loads.append(f"v_mov_b32 v{r}, 0")
        for i in range(4):
            rb = 16 + 4*i
            for hh in range(2):
                loads.append(f"buffer_atomic_add_x2 v[{rb+2*hh}:{rb+2*hh+1}], v7, {WSRD}, s20 offen offset:{1024*i + 8*hh} sc0 sc1")
            tags += [f"v{rb+1}", f"v{rb+3}"]
        return loads, tags
    def part_sum():
        for b in range(2):
            for (k, (off, sel)) in enumerate(((0, "v100"), (0, "v101"), (2, "v100"), (2, "v101"))):
                a(f"v_dot2_f32_bf16 v{32+4*b+k}, v{16+8*b+off}, {sel}, 0")
        for b in range(2):
            for (k, (off, sel)) in enumerate(((0, "v100"), (0, "v101"), (2, "v100"), (2, "v101"))):
                a(f"v_dot2_f32_bf16 v{32+4*b+k}, v{20+8*b+off}, {sel}, v{32+4*b+k}")
        for c in range(4): a(f"v_permlane32_swap_b32 v{32+c}, v{36+c}")
        for c in range(4): a(f"v_add_f32 v{32+c}, v{32+c}, v{36+c}")
        a("v_permlane16_swap_b32 v32, v34")
        a("v_permlane16_swap_b32 v33, v35")
        a("v_add_f32 v32, v32, v34")
        a("v_add_f32 v33, v33, v35")
        a("v_cndmask_b32 v36, v32, v33, s[26:27]")
        a("v_cndmask_b32 v37, v33, v32, s[26:27]")
        a("v_add_f32_dpp v36, v37, v36 row_ror:8 row_mask:0xf bank_mask:0xf")
        a("v_add_f32_dpp v40, v36, v36 row_shl:4 row_mask:0xf bank_mask:0x5")
        a("v_add_f32_dpp v40, v36, v36 row_shr:4 row_mask:0xf bank_mask:0xa")
    def resid(gate):
        bf16r1("v40", "v40")
        a(f"v_mul_f32 v40, v40, {gate}")
        bf16r1("v40", "v40")
        a("v_add_f32 v102, v102, v40")
        bf16r1("v102", "v102")
    def make_pair(dst):
        a("v_mov_b32_dpp v41, v102 row_ror:8 row_mask:0xf bank_mask:0xf")
        a(f"v_cvt_pk_bf16_f32 {dst}, v102, v41")
    PUBM = "0x000f000f"

    l1, t1 = part_loads(W_A4)
    spin_lds(F_GA, 1, "v3", "v15")
    a(f"ds_read_b32 v103, v10 offset:{L_GA}")
    a(f"ds_read_b32 v104, v10 offset:{L_GB}")
    a("s_waitcnt lgkmcnt(0)")
    r1_block("s", "v3")
    a(f"v_mov_b32 v43, {S_TAG}")
    a(f"v_mov_b32 v45, {S_TAG}")
    a(f"v_mov_b32 v47, {S_TAG}")
    a("s_barrier")
    after_own(F_PA, 4, "v3", "v15", cfg.d_s5)
    stamp(2)
    poll(l1, t1, "v15")
    stamp(3)
    part_sum()
    resid("v103")
    make_pair("v42")
    a("v_mul_f32 v46, v102, v102")
    a("v_mov_b32 v44, v102")
    a(f"s_mov_b32 exec_lo, {PUBM}")
    a(f"s_mov_b32 exec_hi, {PUBM}")
    store_loc(f"buffer_store_dwordx2 v[42:43], v98, {WSRD}, s22 offen")
    a("s_mov_b64 exec, -1")
    allreduce(["v44", "v46"], "v_add_f32", ["v48", "v49"], ["x1", "x2", "r8", "x16"])
    a("s_mov_b32 exec_lo, 1")
    a("s_mov_b32 exec_hi, 1")
    store_loc(f"buffer_store_dwordx4 v[44:47], v99, {WSRD}, s23 offen")
    a("s_mov_b64 exec, -1")
    a("v_mov_b32 v15, 1")
    arrive(F_PX, "v3", "v15")
    stamp(4)
    mark(14, "v3")
    a(f"s_and_b32 s90, {S_LOC}, 7")
    a(f"s_cmp_lg_u32 s90, {S_X}")
    a("s_cbranch_scc1 L_slice_nf")
    a("s_barrier")
    a("s_barrier")
    l1, t1 = part_loads_atomic(W_DN) if cfg.atom8 else part_loads(W_DN)
    after_own(F_PD, 4, "v3", "v15", cfg.d_s8)
    poll(l1, t1, "v15")
    part_sum()
    resid("v104")
    make_pair("v42")
    a(f"s_mov_b32 exec_lo, {PUBM}")
    a(f"s_mov_b32 exec_hi, {PUBM}")
    a("buffer_store_dword v42, v97, s[48:51], s24 offen")
    a(f"s_cmp_lg_u32 {S_WG}, 0")
    a("s_cbranch_scc1 L_slice_end")
    a("s_mov_b64 exec, 1")
    a(f"v_mov_b32 v24, {S_EP}")
    a("v_mov_b32 v21, 0")
    a(f"buffer_store_dword v24, v21, {WSRD}, 0 offen sc1")
    a.label("L_slice_end")
    if cfg.probe == 1:
        a("s_sleep 94")
        a("s_sleep 94")
    if cfg.probe >= 10:
        a(f"ds_read_b32 v20, v3 offset:{L_PRB}")
        a("s_waitcnt lgkmcnt(0)")
        a("v_readfirstlane_b32 s22, v20")
        a("s_mov_b32 s24, 100000")
        a.label("L_probe")
        a("s_memrealtime s[20:21]")
        a("s_waitcnt lgkmcnt(0)")
        a("s_sub_u32 s24, s24, 1")
        a("s_cbranch_scc1 L_probe_e")
        a("s_sub_u32 s23, s20, s22")
        a("s_cmp_lt_u32 s23, 2000")
        a("s_cbranch_scc1 L_probe")
        a.label("L_probe_e")
    if cfg.probe == 3:
        a("s_add_u32 s22, s62, 2500")
        a.label("L_probe")
        a("s_memrealtime s[20:21]")
        a("s_waitcnt lgkmcnt(0)")
        a("s_sub_u32 s23, s20, s22")
        a("s_cmp_lt_i32 s23, 0")
        a("s_cbranch_scc1 L_probe")
    if cfg.probe == 2:
        a("s_memrealtime s[20:21]")
        a("s_waitcnt lgkmcnt(0)")
        a("s_add_u32 s22, s20, 500")
        a.label("L_probe")
        a("s_memrealtime s[20:21]")
        a("s_waitcnt lgkmcnt(0)")
        a("s_sub_u32 s23, s20, s22")
        a("s_cmp_lt_i32 s23, 0")
        a("s_cbranch_scc1 L_probe")
    a("s_mov_b64 exec, -1")
    stamp(5)
    dump_stamps(6)
    a("s_endpgm")
    a.label("L_slice_nf")
    a("s_barrier")
    a("s_barrier")
    dump_stamps(5)
    a("s_endpgm")

    a.label("L_aux")
    srd(44, 28, 512*1792*2)
    srd(48, 30, 512*1792*2)
    srd(52, 32, 1792*512*2)
    a("v_mov_b32 v10, 1")
    sexpr("s18", [(S_X, "mul", 224*1024), (S_KQ, "mul", 56*1024), (S_CB, "shl", 7)])
    sexpr("s19", [(S_KQ, "mul", 128*3584), (S_X, "mul", 448), (S_CB, "shl", 6)])
    a("s_waitcnt vmcnt(0)")
    get_tag()
    strip_voff(3584, "v64")
    unit_voffs(pitch_shift=10, d0="v66", d1="v67")
    a("v_mov_b32 v3, 0")
    stamp(1)
    if cfg.local == 2:
        L = a.newlabel("Lxc"); E = a.newlabel("Lxce")
        srd(60, 40, 256)
        a(f"s_lshl_b32 s91, {S_X}, 5")
        a("s_add_u32 s91, s91, 8")
        a("v_mov_b32 v18, s91")
        a("s_getreg_b32 s90, hwreg(HW_REG_XCC_ID)")
        a("s_and_b32 s90, s90, 7")
        a("s_mul_i32 s90, s90, 6")
        a("s_lshl_b64 s[26:27], 1, s90")
        a("s_mov_b64 exec, 1")
        a.label(L)
        a("buffer_load_dwordx2 v[20:21], v18, s[60:63], 0 offen sc1")
        a("s_waitcnt vmcnt(0)")
        a("v_readfirstlane_b32 s20, v20")
        a("v_readfirstlane_b32 s21, v21")
        a("s_mov_b64 s[22:23], s[20:21]")
        a("s_mov_b32 s90, 0")
        for k in range(8):
            a("s_and_b32 s91, s22, 63")
            a("s_add_u32 s90, s90, s91")
            if k < 7: a("s_lshr_b64 s[22:23], s[22:23], 6")
        a("s_cmp_ge_u32 s90, 32")
        a(f"s_cbranch_scc1 {E}")
        timeout()
        a("s_sleep 2")
        a(f"s_branch {L}")
        a.label(E)
        a("s_lshl_b64 s[22:23], s[26:27], 5")
        a("s_cmp_eq_u64 s[20:21], s[22:23]")
        a("s_cselect_b32 s90, 1, 2")
        a("v_mov_b32 v16, s90")
        a(f"ds_write_b32 v3, v16 offset:{F_LM}")
        a("s_mov_b64 exec, -1")
    stamp(2)
    a(f"s_cmp_lg_u32 {S_B}, 0")
    a("s_cbranch_scc1 L_aux_ga")
    a(f"s_cmp_ge_u32 {S_SPL}, 16")
    a("s_cbranch_scc1 L_aux_ga")
    a(f"s_lshr_b32 s90, {S_X}, 1")
    a(f"s_and_b32 s91, {S_X}, 1")
    a(f"s_lshr_b32 s22, {S_SPL}, 2")
    a(f"s_and_b32 s23, {S_SPL}, 3")
    sexpr("s20", [("s90", "shl", 15), ("s91", "shl", 14), ("s22", "shl", 12), ("s23", "shl", 8)], W_MOD + 2*32768)
    sexpr("s21", [("s90", "shl", 12), ("s91", "shl", 11), (S_SPL, "shl", 7)], W_MODF + 2*4096)
    a("v_lshlrev_b32 v18, 3, v0")
    a("s_mov_b32 exec_hi, 0")
    loads = []; tags = []
    for i in range(4):
        loads.append(f"buffer_load_dwordx2 v[{40+2*i}:{41+2*i}], v18, {WSRD}, s20 offen offset:{1024*i} sc1")
        tags.append(f"v{41+2*i}")
    poll(loads, tags, "v60", sleep=6, sample=True)
    a("v_add_f32 v40, v40, v42")
    a("v_add_f32 v44, v44, v46")
    a("v_add_f32 v40, v40, v44")
    a("v_lshlrev_b32 v18, 2, v0")
    a(f"v_mov_b32 v43, {S_TAG}")
    a("v_mov_b32_dpp v42, v40 quad_perm:[1,0,3,2] row_mask:0xf bank_mask:0xf")
    a("s_mov_b32 exec_lo, 0x55555555")
    a("v_cvt_pk_bf16_f32 v42, v40, v42")
    a(f"buffer_store_dwordx2 v[42:43], v18, {WSRD}, s21 offen sc1")
    a("s_mov_b64 exec, -1")
    a.label("L_aux_ga")
    sexpr("s20", [(S_LOC, "shl", 6)], W_MODF + 2*4096)
    a(f"s_add_u32 s21, s20, {3*4096}")
    a("v_bfe_u32 v16, v0, 3, 1")
    a("v_and_b32 v17, 7, v0")
    a("v_lshlrev_b32 v18, 11, v16")
    a("v_lshl_add_u32 v18, v17, 3, v18")
    a("v_and_b32 v19, 15, v0")
    a("v_lshlrev_b32 v19, 3, v19")
    a("s_mov_b64 exec, 0xffff")
    poll([f"buffer_load_dwordx2 v[40:41], v18, {WSRD}, s20 offen sc1",
          f"buffer_load_dwordx2 v[42:43], v18, {WSRD}, s21 offen sc1"], ["v41", "v43"], "v60", sleep=8)
    a("v_lshlrev_b32 v44, 16, v40")
    a("v_and_b32 v45, 0xffff0000, v40")
    a("v_lshlrev_b32 v46, 16, v42")
    a("v_and_b32 v47, 0xffff0000, v42")
    a(f"ds_write_b64 v19, v[44:45] offset:{L_GA}")
    a(f"ds_write_b64 v19, v[46:47] offset:{L_GB}")
    a("s_mov_b64 exec, -1")
    arrive(F_GA, "v3", "v10")
    r1_block("a", "v3")
    a("s_barrier")
    spin_lds(F_PA, 4, "v3", "v50", sleep=False)
    a(f"s_cmp_eq_u32 {S_CB}, 7")
    a("s_cbranch_scc1 L_aux_dn")
    a(f"s_mov_b32 m0, {L_G}")
    a("s_mov_b32 s99, 8")
    a.label("L_aux_gu")
    a("buffer_load_dwordx4 v64, s[44:47], s19 offen nt lds")
    a("s_add_u32 m0, m0, 0x2000")
    a("s_nop 0")
    a("buffer_load_dwordx4 v64, s[48:51], s19 offen nt lds")
    a("s_sub_u32 m0, m0, 0x1c00")
    a(f"s_add_u32 s19, s19, {16*3584}")
    a("s_sub_u32 s99, s99, 1")
    a("s_cmp_lg_u32 s99, 0")
    a("s_cbranch_scc1 L_aux_gu")
    a.label("L_aux_dn")
    a(f"s_mov_b32 m0, {L_DN}")
    a("s_nop 0")
    for i in range(8):
        a(f"buffer_load_dwordx4 v{66 + (i&1)}, s[52:55], s18 offen nt lds")
        a("s_add_u32 m0, m0, 0x400")
        a("s_add_u32 s18, s18, 0x2000")
    a("s_waitcnt vmcnt(0)")
    arrive(F_LATE, "v3", "v10")
    stamp(3)
    a("s_barrier")
    a("s_barrier")
    dump_stamps(4)
    a("s_endpgm")

    a.label("L_abort")
    a("s_mov_b64 exec, 1")
    a("v_mov_b32 v1, 0")
    a(f"s_lshl_b32 s90, {S_WG}, 16")
    a("s_or_b32 s90, s90, s1") if cfg.site else None
    a("v_mov_b32 v2, s90")
    a(f"s_and_b32 s90, {S_W}, 1")
    a("s_lshl_b32 s90, s90, 2")
    a("v_mov_b32 v1, s90")
    a("v_or_b32 v2, 0xde000000, v2")
    a("s_mov_b32 s44, s40")
    a("s_and_b32 s45, s41, 0xffff")
    a("s_mov_b32 s46, 256")
    a("s_mov_b32 s47, 0x20000")
    a("buffer_store_dword v2, v1, s[44:47], 0 offen")
    a.label("L_end")
    a("s_endpgm")

    hdr = open(f"cdna_kernels/{NAME}.s.ref").read().split("; Override launch")[0]
    out = hdr
    out += f"; @launch grid=(256,1,1) block=(576,1,1) lds={L_TOTAL}\n"
    out += '.amdgcn_target "amdgcn-amd-amdhsa--gfx950"\n.text\n'
    out += f".globl {NAME}_kernel\n.p2align 8\n.type {NAME}_kernel,@function\n"
    out += a.text()
    out += f""".section .rodata,"a"
.p2align 6
.amdhsa_kernel {NAME}_kernel
  .amdhsa_next_free_vgpr 128
  .amdhsa_next_free_sgpr 102
  .amdhsa_accum_offset 128
  .amdhsa_group_segment_fixed_size 0
  .amdhsa_kernarg_size 112
  .amdhsa_user_sgpr_count 2
  .amdhsa_user_sgpr_kernarg_segment_ptr 1
  .amdhsa_system_sgpr_workgroup_id_x 1
.end_amdhsa_kernel
"""
    return out

if __name__ == "__main__":
    cfg = Cfg()
    outp = sys.argv[1]
    for arg in sys.argv[2:]:
        k, v = arg.split("=")
        assert hasattr(cfg, k), k
        setattr(cfg, k, int(v))
    open(outp, "w").write(gen(cfg))
    print("wrote", outp)
```

```python
import sys
from asmlib import Asm

NAME = "adaLN_cond__sliding_block_cached__glu_gated_bilinear__decode"

class Cfg:
    D = 40
    DA = 28
    DA1 = 0
    stamps = 0
    spin = 1 << 20
    rsl = 1
    local = 2
    touch = 1
    g_piece = 0
    g_late = 0
    slow = 0
    nwait = 1
    qsl2 = 6
    wq1 = 4
    quiet = 0
    prio = 0
    qsl = 4
    kstart = 1
    d_h = 16
    d_q = 1
    d_r1 = 1
    d_s5 = 8
    d_x1 = 1
    d_gu = 1
    d_s8 = 2
    atom8 = 1
    probe = 0
    site = 0

(F_LC, F_1, F_2, F_3, F_EC, F_KC, F_MB1, F_MB2, F_LATE, F_PO, F_PA, F_PX, F_PG, F_PD,
 F_PM, F_PQ, F_QF, F_WQ, F_WOL, F_MRL, F_LM, F_GA, F_MB3) = [4*i for i in range(23)]
L_MX = 128; L_LS = 192; L_ZERO = 256
L_ACT1 = 768; L_ACT2 = 1344; L_ACT4 = 1920; L_ACT6 = 2496; L_ACT7 = 3072
L_PRB = 7424
L_GA = 7168; L_GB = 7296
L_Q = 3648
L_P = 4736
L_X = 8192; L_C = 10240
L_K = 12288; L_V = L_K + 73728; L_TOTAL = L_V + 73728; L_MR = L_V + 57344
NK_A = 288; NK_B = 160
L_MODB = L_K; L_WQ = L_V
L_WO = L_K; L_G = L_K + 16384; L_U = L_K + 24576; L_DN = L_K + 32768
APITCH = 272; PPITCH = 592

W_EPOCH = 0
W_MOD = 0x1000
W_MODF = 0x38000
W_Q = 0x40000
W_QF = 0x88000
W_ST = 0x80000
W_O = 0x90000
W_A4 = 0x110000
W_X1P = 0x150000
W_X1S = 0x158000
W_GU = 0x160000
W_DN = 0x1A0000
W_STAMP = 0x200000
W_USED = 0x300000

LOG2E = 0x3fb8aa3b
SCALE = 0x3db504f3
EPS = 0x3727c5ac
INV512 = 0x3b000000

S_WG, S_W, S_X, S_LOC, S_B, S_SPL, S_KQ, S_CB, S_TAG, S_SPIN = "s2", "s3", "s4", "s5", "s6", "s7", "s8", "s9", "s10", "s11"
S_U = "s7"
S_BT = "s86"
S_SP = "s87"
WSRD = "s[12:15]"
S_EP = "s89"
S_LM = "s88"
PX = "s[42:43]"
S_PH = "s101"
KB_B = 0

def gen(cfg):
    a = Asm()
    D = cfg.D

    def srd(dst, plo, size):
        a(f"s_mov_b32 s{dst}, s{plo}")
        a(f"s_and_b32 s{dst+1}, s{plo+1}, 0xffff")
        a(f"s_mov_b32 s{dst+2}, {size}")
        a(f"s_mov_b32 s{dst+3}, 0x20000")

    def stamp(k):
        if cfg.stamps: a(f"s_memrealtime s[{64+2*k}:{65+2*k}]")

    def mark(pid, vz):
        if cfg.probe == pid:
            a("s_memrealtime s[62:63]")
            a("s_waitcnt lgkmcnt(0)")
            a("v_mov_b32 v127, s62")
            a(f"ds_max_u32 {vz}, v127 offset:{L_PRB}")

    def dump_stamps(n):
        if not cfg.stamps: return
        a("s_waitcnt lgkmcnt(0)")
        a(f"s_mul_i32 s90, {S_WG}, 9")
        a(f"s_add_u32 s90, s90, {S_W}")
        a("s_lshl_b32 s90, s90, 7")
        a(f"s_add_u32 s90, s90, {W_STAMP}")
        a("s_mov_b64 exec, 1")
        a("v_mov_b32 v1, 0")
        for k in range(n):
            a(f"v_mov_b32 v2, s{64+2*k}")
            a(f"v_mov_b32 v3, s{65+2*k}")
            a(f"buffer_store_dwordx2 v[2:3], v1, {WSRD}, s90 offen offset:{8*k}")
            a("s_nop 1")
        a("s_waitcnt vmcnt(0)")

    sites = [0]
    def timeout():
        if cfg.site:
            sites[0] += 1
            a(f"s_mov_b32 s1, {sites[0]}")
        a(f"s_sub_u32 {S_SPIN}, {S_SPIN}, 1")
        a("s_cbranch_scc1 L_abort")

    def spin_lds(off, n, vz, vt, sleep=True):
        L = a.newlabel("Lsp"); E = a.newlabel("Lspe")
        a.label(L)
        a(f"ds_read_b32 {vt}, {vz} offset:{off}")
        a("s_waitcnt lgkmcnt(0)")
        a(f"v_readfirstlane_b32 s91, {vt}")
        a(f"s_cmp_ge_i32 s91, {n}")
        a(f"s_cbranch_scc1 {E}")
        timeout()
        if sleep: a("s_sleep 1")
        a(f"s_branch {L}")
        a.label(E)

    def arrive(off, vz, vone):
        a("s_mov_b64 s[92:93], exec")
        a("s_mov_b64 exec, 1")
        a(f"ds_add_u32 {vz}, {vone} offset:{off}")
        a("s_mov_b64 exec, s[92:93]")

    def poll(loads, tags, vacc, sleep=None, sample=False):
        if sleep is None: sleep = cfg.rsl
        L = a.newlabel("Lpl"); E = a.newlabel("Lple"); R = a.newlabel("Lplr")
        a(f"s_mov_b64 {PX}, exec")
        if sample:
            a(f"s_mov_b32 {S_PH}, 0")
            a("s_mov_b64 exec, 1")
        a.label(L)
        for ld in loads: a(ld)
        a("s_waitcnt vmcnt(0)")
        a(f"v_xor_b32 {vacc}, {S_TAG}, {tags[0]}")
        for t in tags[1:]:
            a(f"v_bitop3_b32 {vacc}, {vacc}, {t}, {S_TAG} bitop3:0xf6")
        a(f"v_cmp_ne_u32 vcc, 0, {vacc}")
        if sample:
            a(f"s_cbranch_vccnz {R}")
            a(f"s_cmp_lg_u32 {S_PH}, 0")
            a(f"s_cbranch_scc1 {E}")
            a(f"s_mov_b32 {S_PH}, 1")
            a(f"s_mov_b64 exec, {PX}")
            a(f"s_branch {L}")
            a.label(R)
        else:
            a(f"s_cbranch_vccz {E}")
        a("s_mov_b64 exec, vcc")
        timeout()
        if sleep: a(f"s_sleep {sleep}")
        a(f"s_branch {L}")
        a.label(E)
        a(f"s_mov_b64 exec, {PX}")

    def after_own(flag, n, vz, vt, dly):
        spin_lds(flag, n, vz, vt, sleep=False)
        if dly: a(f"s_sleep {dly}")

    def get_mode(vz, vt):
        if cfg.local == 2:
            spin_lds(F_LM, 1, vz, vt)
            a(f"s_mov_b32 {S_LM}, s91")

    def store_loc(text):
        if cfg.local == 0: a(text + " sc1")
        elif cfg.local == 1: a(text)
        else:
            P = a.newlabel("Lst"); E = a.newlabel("Lste")
            a(f"s_cmp_eq_u32 {S_LM}, 1")
            a(f"s_cbranch_scc1 {P}")
            a(text + " sc1")
            a(f"s_branch {E}")
            a.label(P)
            a(text)
            a.label(E)

    def bf16r2(d0, d1, s0, s1, tmp):
        a(f"v_cvt_pk_bf16_f32 {tmp}, {s0}, {s1}")
        a(f"v_lshlrev_b32 {d0}, 16, {tmp}")
        a(f"v_and_b32 {d1}, 0xffff0000, {tmp}")

    def bf16r1(d, s):
        a(f"v_cvt_pk_bf16_f32 {d}, {s}, {s}")
        a(f"v_lshlrev_b32 {d}, 16, {d}")

    def allreduce(regs, op, tmps, steps):
        dpp = {"x1": "quad_perm:[1,0,3,2]", "x2": "quad_perm:[2,3,0,1]", "x4": "row_half_mirror", "x8": "row_mirror", "r8": "row_ror:8", "r4": "row_ror:4"}
        for s in steps:
            if s in dpp:
                for r in regs:
                    a(f"{op}_dpp {r}, {r}, {r} {dpp[s]} row_mask:0xf bank_mask:0xf")
            else:
                ins = "v_permlane16_swap_b32" if s == "x16" else "v_permlane32_swap_b32"
                for r, t in zip(regs, tmps): a(f"v_mov_b32 {t}, {r}")
                for r, t in zip(regs, tmps): a(f"{ins} {r}, {t}")
                for r, t in zip(regs, tmps): a(f"{op} {r}, {r}, {t}")
    FULL = ["x1", "x2", "x4", "x8", "x16", "x32"]

    def sexpr(dst, terms, const=0, tmp="s94"):
        first = True
        for (reg, kind, n) in terms:
            tgt = dst if first else tmp
            if kind == "shl":
                if n == 0: a(f"s_mov_b32 {tgt}, {reg}")
                else: a(f"s_lshl_b32 {tgt}, {reg}, {n}")
            else: a(f"s_mul_i32 {tgt}, {reg}, {n}")
            if not first: a(f"s_add_u32 {dst}, {dst}, {tmp}")
            first = False
        if const: a(f"s_add_u32 {dst}, {dst}, {const}")

    def gate_lc(valA, valB, vz, vt):
        a(f"s_mul_i32 s99, {S_B}, {valB - valA}")
        a(f"s_add_u32 s99, s99, {valA}")
        spin_lds(F_LC, "s99", vz, vt)

    def get_tag():
        a(f"v_readfirstlane_b32 {S_EP}, v3")
        a(f"s_add_u32 {S_EP}, {S_EP}, 1")
        a(f"s_mul_i32 {S_TAG}, {S_EP}, 0x9E3779B1")

    def unit_voffs(pitch_shift=None, pitch=None, d0="v24", d1="v25"):
        a("v_lshrrev_b32 v3, 3, v0")
        a("v_bfe_u32 v4, v0, 4, 1")
        a("v_lshlrev_b32 v4, 1, v4")
        a("v_and_b32 v5, 7, v0")
        a("v_xor_b32 v4, v4, v5")
        a("v_lshlrev_b32 v4, 4, v4")
        if pitch_shift is not None: a(f"v_lshlrev_b32 v6, {pitch_shift}, v3")
        else: a(f"v_mul_u32_u24 v6, {pitch}, v3")
        a(f"v_add_u32 {d0}, v6, v4")
        a(f"v_xor_b32 {d1}, 64, {d0}")

    def strip_voff(pitch, d):
        a("v_lshrrev_b32 v6, 2, v0")
        a(f"v_mul_u32_u24 {d}, {pitch}, v6")
        a("v_bfe_u32 v6, v0, 5, 1")
        a("v_lshlrev_b32 v6, 1, v6")
        a("v_and_b32 v7, 3, v0")
        a("v_xor_b32 v6, v6, v7")
        a(f"v_lshl_add_u32 {d}, v6, 4, {d}")

    a.label(f"{NAME}_kernel")
    a(f"s_cmp_ge_u32 {S_WG}, 256")
    a("s_cbranch_scc1 L_end")
    a("s_load_dwordx16 s[16:31], s[0:1], 0")
    a("s_load_dwordx8 s[32:39], s[0:1], 64")
    a("s_load_dwordx4 s[40:43], s[0:1], 96")
    stamp(0)
    if cfg.probe == 3: a("s_memrealtime s[62:63]")
    a("v_lshrrev_b32 v1, 6, v0")
    a("v_and_b32 v0, 63, v0")
    a(f"v_readfirstlane_b32 {S_W}, v1")
    a(f"s_and_b32 {S_X}, {S_WG}, 7")
    a(f"s_lshr_b32 {S_LOC}, {S_WG}, 3")
    a(f"s_cmp_lt_u32 {S_LOC}, 8")
    a(f"s_cselect_b32 {S_B}, 1, 0")
    a(f"s_cselect_b32 s90, 0, 8")
    a(f"s_sub_u32 {S_SPL}, {S_LOC}, s90")
    a(f"s_cselect_b32 s91, 4, 12") if False else None
    a(f"s_cmp_lt_u32 {S_LOC}, 8")
    a(f"s_cselect_b32 s91, 4, 12")
    a(f"s_cselect_b32 s94, 0, 4")
    a(f"s_cmp_ge_u32 {S_SPL}, s91")
    a(f"s_cselect_b32 {S_BT}, 1, 0")
    a(f"s_mul_i32 s90, {S_BT}, s91")
    a(f"s_sub_u32 {S_SP}, {S_SPL}, s90")
    a(f"s_add_u32 {S_SP}, {S_SP}, s94")
    a(f"s_lshr_b32 {S_KQ}, {S_LOC}, 3")
    a(f"s_and_b32 {S_CB}, {S_LOC}, 7")
    a(f"s_mov_b32 {S_SPIN}, {cfg.spin}")
    a(f"s_mov_b32 {S_LM}, {1 if cfg.local == 1 else 2}")
    a(f"s_cmp_lg_u32 {S_W}, 8")
    a("s_cbranch_scc1 L_worker")

    SLC = "s95"; SOFF = "s96"
    unit_voffs(pitch=6144, d0="v20", d1="v21")
    a(f"s_and_b32 s90, {S_SPL}, 3")
    a(f"s_mul_i32 {SOFF}, s90, {128*6144}")
    a(f"s_lshr_b32 s90, {S_SPL}, 2")
    a(f"s_lshl_b32 s94, {S_X}, 2")
    a("s_add_u32 s94, s94, 16")
    a(f"s_lshl_b32 s91, {S_X}, 1")
    a("s_sub_u32 s91, s91, 4")
    a(f"s_cmp_ge_u32 {S_SPL}, 16")
    a("s_cselect_b32 s94, s91, s94")
    a("s_add_u32 s90, s90, s94")
    a("s_lshl_b32 s90, s90, 7")
    a(f"s_add_u32 {SOFF}, {SOFF}, s90")
    a(f"s_mov_b32 m0, {L_MR}")
    a("s_waitcnt lgkmcnt(0)")
    srd(44, 36, 512*3072*2)
    a(f"s_cmp_lt_u32 {S_LOC}, 24")
    a("s_cbranch_scc1 L_ld_nourg")
    for i in range(16):
        a(f"buffer_load_dwordx4 v{20 + (i&1)}, s[44:47], {SOFF} offen nt lds")
        if i < 15:
            a(f"s_add_u32 {SOFF}, {SOFF}, {8*6144}")
            a("s_add_u32 m0, m0, 0x400")
    a.label("L_ld_nourg")
    if cfg.prio: a("s_setprio 3")
    a("s_barrier")
    stamp(1)
    srd(12, 42, W_USED)
    srd(52, 18, 2*8*32768*128*2)
    srd(56, 20, 2*8*32768*128*2)
    srd(60, 24, 4096*512*2)
    a("v_mov_b32 v10, 0")
    a("v_lshrrev_b32 v3, 4, v0")
    a("v_and_b32 v4, 15, v0")
    a("v_xor_b32 v5, v4, v3")
    a("v_lshlrev_b32 v5, 4, v5")
    a("v_lshl_add_u32 v26, v3, 8, v5")
    a("v_xor_b32 v27, 64, v26")
    a("v_xor_b32 v28, 0x80, v26")
    a("v_xor_b32 v29, 0xc0, v26")
    a("v_lshlrev_b32 v5, 1, v3")
    a("v_xor_b32 v5, v4, v5")
    a("v_lshlrev_b32 v5, 4, v5")
    a("v_lshl_add_u32 v30, v3, 8, v5")
    a("v_xor_b32 v31, 0x80, v30")
    a(f"s_mul_i32 s91, {S_B}, {(NK_B - NK_A) * 256}")
    a(f"s_add_u32 s91, s91, {NK_A * 256}")
    a(f"s_mul_i32 s90, {S_SP}, s91")
    a(f"s_mul_i32 s91, {S_B}, {512 * 256}")
    a("s_add_u32 s90, s90, s91")
    sexpr("s98", [(S_BT, "shl", 26), (S_X, "shl", 23), ("s90", "shl", 0)], (28672 - 512) * 256)
    unit_voffs(pitch_shift=10)

    def lc_write(val, off=F_LC):
        a(f"v_mov_b32 v11, {val}")
        a(f"ds_write_b32 v10, v11 offset:{off}")
    def seg(name, variants, srdn, step, iters, ldsbase):
        if ldsbase is not None: a(f"s_mov_b32 m0, {ldsbase}")
        a(f"s_mov_b32 s97, {iters}")
        a.label(name)
        for v in variants:
            a(f"buffer_load_dwordx4 {v}, s[{srdn}:{srdn+3}], {SOFF} offen nt lds")
            a(f"s_add_u32 {SOFF}, {SOFF}, {step}")
            a("s_add_u32 m0, m0, 0x400")
        a("s_sub_u32 s97, s97, 1")
        a("s_cmp_lg_u32 s97, 0")
        a(f"s_cbranch_scc1 {name}")
    def drain(end, ks):
        for k in ks:
            a(f"s_waitcnt vmcnt({k})")
            lc_write(end - k)
    def seg4(name, variants, srdn, iters, ldsbase, D=D):
        if ldsbase is not None: a(f"s_mov_b32 m0, {ldsbase}")
        a(f"s_mov_b32 s97, {iters}")
        a.label(name)
        for i, v in enumerate(variants):
            a(f"buffer_load_dwordx4 {v}, s[{srdn}:{srdn+3}], {SOFF} offen offset:{1024*i} nt lds")
        a(f"s_add_u32 {SOFF}, {SOFF}, 0x1000")
        a("s_add_u32 m0, m0, 0x1000")
        a(f"s_add_u32 {SLC}, {SLC}, 4")
        a(f"v_mov_b32 v11, {SLC}")
        a(f"s_waitcnt vmcnt({D-4})")
        a(f"ds_write_b32 v10, v11 offset:{F_LC}")
        a("s_sub_u32 s97, s97, 1")
        a("s_cmp_lg_u32 s97, 0")
        a(f"s_cbranch_scc1 {name}")
    WO_OFF = [(S_X, "shl", 19), (S_KQ, "shl", 17), (S_CB, "shl", 7)]

    a(f"s_cmp_eq_u32 {S_B}, 0")
    a("s_cbranch_scc1 L_ld_A")
    if cfg.kstart == 0:
        spin_lds(F_EC, 4, "v10", "v12")
        spin_lds(F_3, 2, "v10", "v12", sleep=False)
    elif cfg.kstart == 1:
        spin_lds(F_QF, 2, "v10", "v12", sleep=False)
    else:
        pass
    stamp(2)
    a(f"s_mov_b32 {SLC}, {KB_B - (D - 4)}")
    a(f"s_mov_b32 {SOFF}, s98")
    seg4("L_ld_kB", ["v26", "v27", "v28", "v29"], 52, NK_B // 16, L_K)
    a(f"s_mov_b32 {SOFF}, s98")
    seg4("L_ld_vB", ["v30", "v30", "v31", "v31"], 56, NK_B // 16, L_V)
    stamp(3)
    sexpr(SOFF, WO_OFF)
    a(f"ds_read_b32 v12, v10 offset:{F_KC}")
    a("s_waitcnt lgkmcnt(0)")
    a("v_readfirstlane_b32 s91, v12")
    a("s_cmp_ge_i32 s91, 4")
    a("s_cbranch_scc0 L_ld_Bslow")
    seg("L_ld_woB", ["v24", "v25"], 60, 8192, 8, L_WO)
    drain(KB_B + NK_B // 2 + 16, [k for k in (48, 40, 32, 24, 16) if k < D + 12])
    stamp(4)
    a("s_branch L_ld_fin")
    a.label("L_ld_Bslow")
    drain(KB_B + NK_B // 2, [k for k in (32, 24, 16, 8) if k < D - 4] + [0])
    stamp(4)
    spin_lds(F_KC, 4, "v10", "v12")
    seg("L_ld_woB2", ["v24", "v25"], 60, 8192, 8, L_WO)
    a.label("L_ld_fin")
    a("s_waitcnt vmcnt(0)")
    lc_write(1, F_WOL)
    stamp(5)
    dump_stamps(6)
    a("s_endpgm")
    a.label("L_ld_A")
    DA = cfg.DA
    a(f"s_cmp_ge_u32 {S_SPL}, 16")
    a("s_cbranch_scc1 L_ld_urg")
    spin_lds(F_1, 2, "v10", "v12", sleep=False)
    if cfg.slow:
        a(f"s_mov_b32 m0, {L_MR}")
        a("s_nop 0")
        for i in range(2 * cfg.slow):
            a(f"buffer_load_dwordx4 v{20 + (i&1)}, s[44:47], {SOFF} offen nt lds")
            a(f"s_add_u32 {SOFF}, {SOFF}, {8*6144}")
            a("s_add_u32 m0, m0, 0x400")
            if i & 1: a("s_waitcnt vmcnt(0)")
        seg("L_ld_mr", ["v20", "v21"], 44, 8*6144, 8 - cfg.slow, None)
    else:
        seg("L_ld_mr", ["v20", "v21"], 44, 8*6144, 8, L_MR)
    a("s_branch L_ld_kgo")
    a.label("L_ld_urg")
    a("s_waitcnt vmcnt(0)")
    lc_write(1, F_MRL)
    spin_lds(F_PM, 4, "v10", "v12", sleep=False)
    a.label("L_ld_kgo")
    DA1 = cfg.DA1 or DA
    a(f"s_mov_b32 {SLC}, {-(DA1 - 4)}")
    a(f"s_mov_b32 {SOFF}, s98")
    n0 = (DA1 - 4 + 3) // 4
    assert 0 < n0 < NK_A // 16
    seg4("L_ld_kA0", ["v26", "v27", "v28", "v29"], 52, n0, L_K, DA1)
    lc_write(1, F_MRL)
    seg4("L_ld_kA", ["v26", "v27", "v28", "v29"], 52, NK_A // 16 - n0, None, DA1)
    stamp(2)
    a(f"s_mov_b32 {SOFF}, s98")
    if DA > DA1:
        assert (DA - DA1) % 4 == 0
        a(f"s_mov_b32 m0, {L_V}")
        a("s_nop 0")
        for it in range((DA - DA1) // 4):
            for i, v in enumerate(["v30", "v30", "v31", "v31"]):
                a(f"buffer_load_dwordx4 {v}, s[56:59], {SOFF} offen offset:{1024*i} nt lds")
            a(f"s_add_u32 {SOFF}, {SOFF}, 0x1000")
            a("s_add_u32 m0, m0, 0x1000")
        seg4("L_ld_vA", ["v30", "v30", "v31", "v31"], 56, NK_A // 16 - 4 - (DA - DA1) // 4, None, DA)
    else:
        seg4("L_ld_vA", ["v30", "v30", "v31", "v31"], 56, NK_A // 16 - 4, L_V, DA)
    spin_lds(F_EC, 4, "v10", "v12")
    seg4("L_ld_vA2", ["v30", "v30", "v31", "v31"], 56, 4, None, DA)
    stamp(3)
    drain(NK_A // 2, [k for k in (32, 24, 16, 8) if k < DA - 4] + [0])
    stamp(4)
    spin_lds(F_KC, 4, "v10", "v12")
    sexpr(SOFF, WO_OFF)
    seg("L_ld_woA", ["v24", "v25"], 60, 8192, 8, L_WO)
    a("s_branch L_ld_fin")

    a.label("L_worker")
    a(f"s_cmp_lg_u32 {S_W}, 4")
    a("s_cbranch_scc1 L_wk2")
    a("v_mov_b32 v10, 0")
    for r in range(12, 16): a(f"v_mov_b32 v{r}, 0")
    a("v_lshlrev_b32 v1, 2, v0")
    a("v_lshlrev_b32 v2, 4, v0")
    a("ds_write_b32 v1, v10")
    a(f"ds_write_b128 v2, v[12:15] offset:{L_ZERO}")
    if cfg.probe >= 10: a(f"ds_write_b32 v10, v10 offset:{L_PRB}")
    if cfg.local == 1:
        a("v_mov_b32 v11, 1")
        a(f"ds_write_b32 v10, v11 offset:{F_LM}")
    a.label("L_wk2")
    a("s_waitcnt lgkmcnt(0)")
    srd(12, 42, W_USED)
    srd(44, 16, 2048)
    srd(48, 34, 2048)
    a(f"s_sub_u32 s97, {S_W}, 5")
    a("s_and_b32 s97, s97, 1")
    a("s_lshl_b32 s90, s97, 10")
    a(f"s_and_b32 s94, {S_SPL}, 3")
    a("s_lshl_b32 s94, s94, 8")
    a("s_add_u32 s94, s94, s90")
    a("v_lshlrev_b32 v1, 4, v0")
    a("v_lshlrev_b32 v2, 2, v0")
    a(f"s_cmp_lt_u32 {S_W}, 5")
    a("s_cbranch_scc1 L_wk2b")
    a(f"s_cmp_eq_u32 {S_W}, 7")
    a("s_cbranch_scc1 L_wk2b")
    a("buffer_load_dword v9, v2, s[48:51], s94 offen")
    a("buffer_load_dwordx4 v[4:7], v1, s[44:47], s90 offen")
    a(f"s_lshr_b32 s94, {S_SPL}, 1")
    a("s_and_b32 s94, s94, 3")
    a("s_lshl_b32 s94, s94, 8")
    a("s_add_u32 s94, s94, s90")
    a("buffer_load_dword v8, v2, s[44:47], s94 offen")
    a.label("L_wk2b")
    a("v_mov_b32 v2, 0")
    a(f"buffer_load_dword v3, v2, {WSRD}, 0 offen sc1")
    a(f"s_cmp_lg_u32 {S_W}, 7")
    a("s_cbranch_scc1 L_wk3")
    if cfg.local == 2:
        srd(60, 40, 256)
        a("s_getreg_b32 s90, hwreg(HW_REG_XCC_ID)")
        a("s_and_b32 s90, s90, 7")
        a("s_mul_i32 s90, s90, 6")
        a("s_lshl_b64 s[26:27], 1, s90")
        a(f"s_lshl_b32 s91, {S_X}, 5")
        a("s_add_u32 s91, s91, 8")
        a("v_mov_b32 v18, s91")
        a("v_mov_b32 v16, s26")
        a("v_mov_b32 v17, s27")
        a("s_mov_b64 exec, 1")
        a("buffer_atomic_add_x2 v[16:17], v18, s[60:63], 0 offen sc1")
        a("s_mov_b64 exec, -1")
    if cfg.touch:
        sexpr("s90", [(S_BT, "shl", 26), (S_X, "shl", 23), (S_SP, "shl", 16)], 28672*256)
        a("s_load_dword s78, s[18:19], s90")
        a("s_load_dword s79, s[20:21], s90")
        a(f"s_lshr_b32 s91, {S_SPL}, 1")
        a("s_and_b32 s91, s91, 3")
        a("s_lshl_b32 s91, s91, 20")
        a("s_load_dword s80, s[22:23], s91")
        sexpr("s91", [(S_X, "shl", 19), (S_KQ, "shl", 17)])
        a("s_load_dword s81, s[24:25], s91")
        a(f"s_mul_i32 s91, {S_KQ}, {128*3584}")
        a("s_load_dword s82, s[28:29], s91")
        a("s_load_dword s83, s[30:31], s91")
        a(f"s_mul_i32 s91, {S_X}, {224*1024}")
        a("s_load_dword s84, s[32:33], s91")
        a("s_load_dword s85, s[38:39], 0")
    a.label("L_wk3")
    a("s_barrier")
    a(f"s_cmp_ge_u32 {S_W}, 4")
    a("s_cbranch_scc1 L_gwave")

    a.label("L_mwave")
    srd(56, 22, 512*4096*2)
    a("v_lshrrev_b32 v1, 4, v0")
    a("v_and_b32 v2, 15, v0")
    a("v_mov_b32 v4, 1")
    a("v_lshlrev_b32 v22, 1, v1")
    a("v_xor_b32 v22, v2, v22")
    a("v_lshlrev_b32 v22, 4, v22")
    a("v_lshl_add_u32 v56, v1, 13, v22")
    a("v_xor_b32 v57, 0x80, v56")
    a(f"s_lshr_b32 s90, {S_SPL}, 1")
    a(f"s_and_b32 s91, {S_SPL}, 1")
    sexpr("s96", [("s90", "shl", 20), (S_X, "shl", 10), ("s91", "shl", 9), (S_W, "shl", 18)])
    a("s_add_u32 s97, s96, 256")
    def wq_loads(lo, hi):
        for k in range(lo, hi):
            bb, i = k >> 3, k & 7
            sr = "s96" if bb == 0 else "s97"
            if k == lo or i == 0:
                a(f"s_lshl_b32 s90, {S_W}, 13")
                a(f"s_add_u32 m0, s90, {L_WQ + 32768*bb + 1024*i}")
                a("s_nop 0")
            a(f"buffer_load_dwordx4 {'v56' if (i & 2) == 0 else 'v57'}, s[56:59], {sr} offen nt lds")
            a(f"s_add_u32 {sr}, {sr}, {4*8192}")
            a("s_add_u32 m0, m0, 0x400")
    a(f"s_cmp_eq_u32 {S_B}, 0")
    a("s_cbranch_scc1 L_m_nowq")
    wq_loads(0, 16)
    a.label("L_m_nowq")
    a("v_bfe_u32 v6, v2, 2, 1")
    a(f"v_mul_u32_u24 v6, {APITCH}, v6")
    a("v_lshl_add_u32 v6, v1, 4, v6")
    a("v_bfe_u32 v16, v0, 2, 2")
    a("v_and_b32 v17, 3, v0")
    a("v_lshl_add_u32 v18, v1, 3, v16")
    a("v_lshrrev_b32 v19, 1, v17")
    a("v_and_b32 v20, 1, v17")
    a("v_and_b32 v21, 1, v1")
    a("v_lshrrev_b32 v22, 1, v16")
    a("v_lshl_or_b32 v22, v21, 1, v22")
    a("v_lshlrev_b32 v22, 1, v22")
    a(f"s_lshl_b32 s90, {S_W}, 1")
    a("v_add_u32 v23, s90, v19")
    a("v_xor_b32 v23, v23, v22")
    a("v_lshlrev_b32 v7, 7, v18")
    a("v_lshl_add_u32 v7, v23, 4, v7")
    a("v_lshl_add_u32 v7, v20, 3, v7")
    a(f"s_and_b32 s90, {S_W}, 1")
    a("s_lshl_b32 s90, s90, 1")
    a("v_add_u32 v23, s90, v19")
    a("v_lshlrev_b32 v22, 1, v21")
    a("v_xor_b32 v23, v23, v22")
    a("v_lshlrev_b32 v12, 6, v18")
    a("v_lshl_add_u32 v12, v23, 4, v12")
    a("v_lshl_add_u32 v12, v20, 3, v12")
    a("v_lshl_or_b32 v22, v21, 2, v16")
    a("v_lshlrev_b32 v22, 1, v22")
    a(f"s_lshl_b32 s90, {S_W}, 2")
    a("v_add_u32 v23, s90, v19")
    a("v_xor_b32 v24, v23, v22")
    a("v_lshlrev_b32 v25, 8, v18")
    a("v_lshl_add_u32 v25, v20, 3, v25")
    a("v_lshl_add_u32 v13, v24, 4, v25")
    a("v_add_u32 v23, 2, v23")
    a("v_xor_b32 v24, v23, v22")
    a("v_lshl_add_u32 v14, v24, 4, v25")
    a("v_bfe_u32 v8, v0, 4, 1")
    a("v_lshlrev_b32 v9, 3, v2")
    O_MOD, O_Q, O_O, O_A4, O_GU, O_DN, O_ST, T_K, T_V = "s16", "s17", "s18", "s19", "s20", "s21", "s24", "s25", "s26"
    a(f"s_mul_i32 {T_K}, {S_B}, {KB_B + NK_B // 4 - NK_A // 4}")
    a(f"s_add_u32 {T_K}, {T_K}, {NK_A // 4}")
    a(f"s_mul_i32 {T_V}, {S_B}, {KB_B + NK_B // 2 - NK_A // 2}")
    a(f"s_add_u32 {T_V}, {T_V}, {NK_A // 2}")
    sexpr(O_O, [(S_X, "shl", 16), (S_BT, "shl", 13), (S_SP, "shl", 9), (S_W, "shl", 7)], W_O)
    sexpr(O_A4, [(S_CB, "shl", 14), (S_W, "shl", 12), (S_X, "shl", 8), (S_KQ, "shl", 6)], W_A4)
    a(f"s_add_u32 {O_DN}, {O_A4}, {W_DN - W_A4}")
    a(f"s_lshr_b32 s90, {S_W}, 1")
    a(f"s_and_b32 s91, {S_W}, 1")
    sexpr(O_GU, [(S_X, "shl", 15), ("s90", "shl", 14), (S_KQ, "shl", 11), (S_CB, "shl", 8), ("s91", "shl", 7)], W_GU)
    sexpr(O_ST, [(S_X, "shl", 11), (S_BT, "shl", 10), (S_SP, "shl", 4)], W_ST)
    a(f"s_and_b32 s90, {S_SPL}, 1")
    a("s_lshl_b32 s90, s90, 1")
    a(f"s_lshr_b32 s91, {S_W}, 1")
    a("s_add_u32 s90, s90, s91")
    a(f"s_lshr_b32 s91, {S_SPL}, 1")
    a(f"s_and_b32 s97, {S_W}, 1")
    sexpr(O_Q, [(S_X, "shl", 15), ("s90", "shl", 12), ("s91", "shl", 10), ("s97", "shl", 9)], W_Q)
    a(f"s_cmp_lt_u32 {S_SPL}, 16")
    a("s_cbranch_scc1 L_m_offA")
    a(f"s_lshr_b32 s90, {S_X}, 2")
    a(f"s_and_b32 s91, {S_X}, 3")
    a(f"s_bfe_u32 s97, {S_SPL}, 0x10002")
    a(f"s_and_b32 s98, {S_SPL}, 3")
    sexpr(O_MOD, [("s90", "shl", 15), ("s91", "shl", 12), ("s98", "shl", 10), ("s97", "shl", 9), (S_W, "shl", 7)], W_MOD)
    a("s_branch L_m_offE")
    a.label("L_m_offA")
    a(f"s_lshr_b32 s90, {S_X}, 1")
    a(f"s_and_b32 s91, {S_X}, 1")
    a("s_lshl_b32 s91, s91, 2")
    a(f"s_lshr_b32 s97, {S_SPL}, 2")
    a("s_add_u32 s91, s91, s97")
    a("s_lshr_b32 s97, s91, 1")
    a("s_and_b32 s91, s91, 1")
    a(f"s_and_b32 s98, {S_SPL}, 3")
    sexpr(O_MOD, [("s90", "shl", 15), ("s97", "shl", 12), ("s98", "shl", 10), ("s91", "shl", 9), (S_W, "shl", 7)], W_MOD + 2*32768)
    a.label("L_m_offE")
    a("s_waitcnt vmcnt(0)")
    get_tag()
    a("v_mov_b32 v3, 0")
    stamp(1)

    def loadB(vaddr, nk, kstride, hoff, base=16):
        for t in range(nk):
            a(f"ds_read_b64_tr_b16 v[{base+4*t}:{base+4*t+1}], {vaddr} offset:{t*kstride}")
            a(f"ds_read_b64_tr_b16 v[{base+4*t+2}:{base+4*t+3}], {vaddr} offset:{t*kstride+hoff}")

    def gemv(act_off, nk, bbase=16, second=None):
        for t in range(nk):
            a(f"ds_read_b128 v[{32+4*t}:{35+4*t}], v6 offset:{act_off+64*t}")
        for t in range(nk):
            a(f"s_waitcnt lgkmcnt({nk-1-t})")
            c = "0" if t == 0 else "v[48:51]"
            a(f"v_mfma_f32_16x16x32_bf16 v[48:51], v[{32+4*t}:{35+4*t}], v[{bbase+4*t}:{bbase+4*t+3}], {c}")
            if second is not None:
                c = "0" if t == 0 else "v[56:59]"
                a(f"v_mfma_f32_16x16x32_bf16 v[56:59], v[{32+4*t}:{35+4*t}], v[{second+4*t}:{second+4*t+3}], {c}")

    def publish(shift, soff, local=False, second=False):
        a(f"v_lshl_add_u32 v54, v8, {shift}, v9")
        a(f"v_mov_b32 v53, {S_TAG}")
        if second: a(f"v_mov_b32 v61, {S_TAG}")
        a("v_mov_b32 v52, v48")
        if second: a("v_mov_b32 v60, v56")
        a("s_mov_b32 exec_hi, 0")
        t1 = f"buffer_store_dwordx2 v[52:53], v54, {WSRD}, {soff} offen"
        t2 = f"buffer_store_dwordx2 v[60:61], v54, {WSRD}, {soff} offen offset:128"
        if local:
            store_loc(t1)
            if second: store_loc(t2)
        else:
            a(t1 + " sc1")
            if second: a(t2 + " sc1")
        a("s_mov_b32 exec_hi, -1")

    def publish_pair(soff):
        a("v_lshlrev_b32 v54, 11, v8")
        a("v_lshl_add_u32 v54, v2, 2, v54")
        a(f"v_mov_b32 v53, {S_TAG}")
        a("v_mov_b32_dpp v52, v48 quad_perm:[1,0,3,2] row_mask:0xf bank_mask:0xf")
        a("s_mov_b32 exec_lo, 0x55555555")
        a("s_mov_b32 exec_hi, 0")
        a("v_cvt_pk_bf16_f32 v52, v48, v52")
        a(f"buffer_store_dwordx2 v[52:53], v54, {WSRD}, {soff} offen sc1")
        a("s_mov_b64 exec, -1")

    a(f"s_cmp_lg_u32 {S_B}, 0")
    a("s_cbranch_scc1 L_m_B")
    spin_lds(F_1, 2, "v3", "v5")
    spin_lds(F_MRL, 1, "v3", "v5")
    a(f"v_add_u32 v10, {L_MR}, v7")
    loadB("v10", 4, 4096, 512)
    gemv(L_ACT1, 4)
    arrive(F_EC, "v3", "v4")
    publish(14, O_MOD)
    arrive(F_PM, "v3", "v4")
    stamp(2)
    a("s_branch L_m_s3")
    a.label("L_m_B")
    a("s_waitcnt vmcnt(0)")
    arrive(F_WQ, "v3", "v4")
    a("v_bfe_u32 v16, v0, 2, 2")
    a("v_and_b32 v17, 3, v0")
    a("v_lshl_add_u32 v18, v1, 3, v16")
    a("v_lshrrev_b32 v19, 1, v17")
    a("v_and_b32 v20, 1, v17")
    a("v_and_b32 v21, 1, v1")
    a("v_lshl_or_b32 v22, v21, 2, v16")
    a("v_lshlrev_b32 v22, 1, v22")
    a("v_lshlrev_b32 v25, 8, v18")
    a("v_lshl_add_u32 v25, v20, 3, v25")
    a(f"s_lshr_b32 s90, {S_W}, 1")
    a("s_lshl_b32 s90, s90, 15")
    a(f"s_add_u32 s90, s90, {L_WQ}")
    a("v_add_u32 v25, s90, v25")
    a(f"s_and_b32 s91, {S_W}, 1")
    a("s_lshl_b32 s91, s91, 3")
    a("v_add_u32 v19, s91, v19")
    for e in range(4):
        a(f"v_add_u32 v23, {2*e}, v19")
        a("v_xor_b32 v23, v23, v22")
        a(f"v_lshl_add_u32 v{28+e}, v23, 4, v25")
    spin_lds(F_WQ, 4, "v3", "v5", sleep=False)
    for e in range(4):
        loadB(f"v{28+e}", 4, 8192, 1024, base=64 + 16*e)
    get_mode("v3", "v5")
    a("s_waitcnt lgkmcnt(0)")
    arrive(F_EC, "v3", "v4")
    a("v_lshl_add_u32 v54, v8, 14, v9")
    a(f"v_mov_b32 v53, {S_TAG}")
    spin_lds(F_2, 2, "v3", "v5", sleep=False)
    for t in range(4):
        a(f"ds_read_b128 v[{32+4*t}:{35+4*t}], v6 offset:{L_ACT2+64*t}")
    for t in range(4):
        a(f"s_waitcnt lgkmcnt({3-t})")
        for e in range(4):
            c = "0" if t == 0 else f"v[{16+4*e}:{19+4*e}]"
            a(f"v_mfma_f32_16x16x32_bf16 v[{16+4*e}:{19+4*e}], v[{32+4*t}:{35+4*t}], v[{64+16*e+4*t}:{67+16*e+4*t}], {c}")
    a("s_mov_b32 exec_hi, 0")
    for e in range(4):
        a(f"v_mov_b32 v{56+2*e}, v{16+4*e}")
        a(f"v_mov_b32 v{57+2*e}, v53")
    if cfg.local == 2:
        P = a.newlabel("Lst"); E = a.newlabel("Lste")
        a(f"s_cmp_eq_u32 {S_LM}, 1")
        a(f"s_cbranch_scc1 {P}")
        for e in range(4): a(f"buffer_store_dwordx2 v[{56+2*e}:{57+2*e}], v54, {WSRD}, {O_Q} offen offset:{128*e} sc1")
        a(f"s_branch {E}")
        a.label(P)
        for e in range(4): a(f"buffer_store_dwordx2 v[{56+2*e}:{57+2*e}], v54, {WSRD}, {O_Q} offen offset:{128*e}")
        a.label(E)
    else:
        for e in range(4): a(f"buffer_store_dwordx2 v[{56+2*e}:{57+2*e}], v54, {WSRD}, {O_Q} offen offset:{128*e}" + (" sc1" if cfg.local == 0 else ""))
    a("s_mov_b32 exec_hi, -1")
    arrive(F_PQ, "v3", "v4")
    stamp(3)
    mark(10, "v3")
    a.label("L_m_s3")
    get_mode("v3", "v5")
    T_ST, T_N = "s27", "s28"
    a(f"s_lshl_b32 s90, {S_B}, 1")
    a(f"s_sub_u32 s90, 4, s90")
    a(f"s_mul_i32 {T_ST}, {S_W}, s90")
    a(f"s_min_u32 s91, {S_W}, 2")
    a(f"s_add_u32 {T_ST}, {T_ST}, s91")
    a(f"s_cmp_lt_u32 {S_W}, 2")
    a(f"s_addc_u32 {T_N}, s90, 0")
    a("s_mov_b64 s[30:31], -1")
    a(f"s_cmp_eq_u32 {T_N}, 3")
    a("s_cselect_b32 s31, 0xffff, s31")
    a(f"s_cmp_eq_u32 {T_N}, 2")
    a("s_cselect_b32 s31, 0, s31")
    a("s_mov_b32 s33, 0")
    a(f"s_cmp_eq_u32 {T_N}, 5")
    a("s_cselect_b32 s32, 0xffff, 0")
    a("v_xor_b32 v10, v1, v2")
    a("v_lshlrev_b32 v10, 4, v10")
    a("v_lshl_add_u32 v10, v2, 8, v10")
    a(f"s_lshl_b32 s90, {T_ST}, 12")
    a(f"s_add_u32 s90, s90, {L_K}")
    a("v_add_u32 v112, s90, v10")
    a("v_xor_b32 v113, 64, v112")
    a("v_xor_b32 v114, 0x80, v112")
    a("v_xor_b32 v115, 0xc0, v112")
    a("v_and_b32 v10, 3, v2")
    a(f"v_mul_u32_u24 v10, {APITCH}, v10")
    a("v_lshl_add_u32 v116, v1, 4, v10")
    a("v_cmp_eq_u32 s[34:35], 1, v1")
    a("v_cmp_eq_u32 s[36:37], 2, v1")
    a("v_cmp_eq_u32 s[38:39], 3, v1")
    for r in range(80, 100): a(f"v_mov_b32 v{r}, 0")
    NEG = "s29"
    a(f"s_mov_b32 {NEG}, 0xff800000")
    spin_lds(F_3, 2, "v3", "v5", sleep=False)
    spin_lds(F_LC, T_K, "v3", "v5", sleep=False)
    stamp(4)
    mark(11, "v3")
    def k_reads(tt, base):
        for t in range(4):
            a(f"ds_read_b128 v[{base+4*t}:{base+4*t+3}], v{112+t} offset:{4096*tt}")
    def qk_mfma(tt, base):
        acc = f"v[{80+4*tt}:{83+4*tt}]"
        for t in range(4):
            c = "0" if t == 0 else acc
            a(f"v_mfma_f32_16x16x32_bf16 {acc}, v[{16+4*t}:{19+4*t}], v[{base+4*t}:{base+4*t+3}], {c}")
    for t in range(4):
        a(f"ds_read_b128 v[{16+4*t}:{19+4*t}], v116 offset:{L_Q+64*t}")
    k_reads(0, 32)
    k_reads(1, 48)
    a(f"s_cmp_eq_u32 {T_N}, 2")
    a("s_cbranch_scc1 L_qk_n2")
    k_reads(2, 64)
    a("s_waitcnt lgkmcnt(8)")
    qk_mfma(0, 32)
    a(f"s_cmp_eq_u32 {T_N}, 3")
    a("s_cbranch_scc1 L_qk_n3")
    k_reads(3, 32)
    a("s_waitcnt lgkmcnt(8)")
    qk_mfma(1, 48)
    a(f"s_cmp_eq_u32 {T_N}, 4")
    a("s_cbranch_scc1 L_qk_n4")
    k_reads(4, 48)
    a("s_waitcnt lgkmcnt(8)")
    qk_mfma(2, 64)
    a("s_waitcnt lgkmcnt(4)")
    qk_mfma(3, 32)
    a("s_waitcnt lgkmcnt(0)")
    qk_mfma(4, 48)
    a("s_branch L_qk_done")
    a.label("L_qk_n4")
    a("s_waitcnt lgkmcnt(4)")
    qk_mfma(2, 64)
    a("s_waitcnt lgkmcnt(0)")
    qk_mfma(3, 32)
    a("s_branch L_qk_done")
    a.label("L_qk_n3")
    a("s_waitcnt lgkmcnt(4)")
    qk_mfma(1, 48)
    a("s_waitcnt lgkmcnt(0)")
    qk_mfma(2, 64)
    a("s_branch L_qk_done")
    a.label("L_qk_n2")
    a("s_waitcnt lgkmcnt(4)")
    qk_mfma(0, 32)
    a("s_waitcnt lgkmcnt(0)")
    qk_mfma(1, 48)
    a.label("L_qk_done")
    arrive(F_KC, "v3", "v4")
    a("s_nop 7")
    for r in range(4): a(f"v_cndmask_b32 v{48+r}, v{80+r}, v{84+r}, s[34:35]")
    for r in range(4): a(f"v_cndmask_b32 v{48+r}, v{48+r}, v{88+r}, s[36:37]")
    for r in range(4): a(f"v_cndmask_b32 v{48+r}, v{48+r}, v{92+r}, s[38:39]")
    a(f"s_mov_b32 s94, {SCALE:#x}")
    for (d, sr) in ((20, 96), (16, 48)):
        bf16r2(f"v{d}", f"v{d+1}", f"v{sr}", f"v{sr+1}", "v32")
        bf16r2(f"v{d+2}", f"v{d+3}", f"v{sr+2}", f"v{sr+3}", "v33")
    for r in range(8): a(f"v_mul_f32 v{16+r}, s94, v{16+r}")
    for d in (16, 20):
        bf16r2(f"v{d}", f"v{d+1}", f"v{d}", f"v{d+1}", "v32")
        bf16r2(f"v{d+2}", f"v{d+3}", f"v{d+2}", f"v{d+3}", "v33")
    a(f"v_mov_b32 v34, {NEG}")
    for r in range(4): a(f"v_cndmask_b32 v{16+r}, v34, v{16+r}, s[30:31]")
    for r in range(4): a(f"v_cndmask_b32 v{20+r}, v34, v{20+r}, s[32:33]")
    for r in range(4): a(f"v_max_f32 v{24+r}, v{16+r}, v{20+r}")
    allreduce(["v24", "v25", "v26", "v27"], "v_max_f32", ["v28", "v29", "v30", "v31"], FULL)
    a(f"s_lshl_b32 s90, {S_W}, 4")
    a("v_mov_b32 v10, s90")
    a("s_mov_b64 s[92:93], exec")
    a("s_mov_b64 exec, 1")
    a(f"ds_write_b128 v10, v[24:27] offset:{L_MX}")
    a(f"ds_add_u32 v3, v4 offset:{F_MB1}")
    a("s_mov_b64 exec, s[92:93]")
    spin_lds(F_MB1, 4, "v3", "v5", sleep=False)
    for w in range(4):
        a(f"ds_read_b128 v[{32+4*w}:{35+4*w}], v3 offset:{L_MX+16*w}")
    a("s_waitcnt lgkmcnt(0)")
    for r in range(4):
        a(f"v_max_f32 v{24+r}, v{32+r}, v{36+r}")
        a(f"v_max_f32 v{28+r}, v{40+r}, v{44+r}")
    for r in range(4):
        a(f"v_max_f32 v{24+r}, v{24+r}, v{28+r}")
    a(f"s_mov_b32 s94, {LOG2E:#x}")
    for r in range(8): a(f"v_sub_f32 v{16+r}, v{16+r}, v{24+(r&3)}")
    for r in range(8): a(f"v_mul_f32 v{16+r}, s94, v{16+r}")
    for r in range(8): a(f"v_exp_f32 v{16+r}, v{16+r}")
    a("v_cvt_pk_bf16_f32 v28, v16, v17")
    a("v_cvt_pk_bf16_f32 v29, v18, v19")
    a("v_cvt_pk_bf16_f32 v30, v20, v21")
    a("v_cvt_pk_bf16_f32 v31, v22, v23")
    a(f"s_lshl_b32 s90, {T_ST}, 5")
    a(f"s_add_u32 s90, s90, {L_P}")
    a("v_lshl_add_u32 v10, v0, 1, s90")
    a("s_mov_b64 exec, s[30:31]")
    a("ds_write_b16 v10, v28")
    a(f"ds_write_b16_d16_hi v10, v28 offset:{PPITCH}")
    a(f"ds_write_b16 v10, v29 offset:{2*PPITCH}")
    a(f"ds_write_b16_d16_hi v10, v29 offset:{3*PPITCH}")
    a(f"s_cmp_lg_u32 {T_N}, 5")
    a("s_cbranch_scc1 L_p_w1")
    a("s_mov_b64 exec, s[32:33]")
    a("ds_write_b16 v10, v30 offset:128")
    a(f"ds_write_b16_d16_hi v10, v30 offset:{PPITCH+128}")
    a(f"ds_write_b16 v10, v31 offset:{2*PPITCH+128}")
    a(f"ds_write_b16_d16_hi v10, v31 offset:{3*PPITCH+128}")
    a.label("L_p_w1")
    a("s_mov_b64 exec, -1")
    arrive(F_MB2, "v3", "v4")
    for r in range(4): a(f"v_add_f32 v{16+r}, v{16+r}, v{20+r}")
    allreduce(["v16", "v17", "v18", "v19"], "v_add_f32", ["v28", "v29", "v30", "v31"], FULL)
    a(f"s_lshl_b32 s90, {S_W}, 4")
    a("v_mov_b32 v10, s90")
    a("s_mov_b64 s[92:93], exec")
    a("s_mov_b64 exec, 1")
    a(f"ds_write_b128 v10, v[16:19] offset:{L_LS}")
    a(f"ds_add_u32 v3, v4 offset:{F_MB3}")
    a("s_mov_b64 exec, s[92:93]")
    a(f"s_cmp_lg_u32 {S_W}, 0")
    a("s_cbranch_scc1 L_m_pv")
    spin_lds(F_MB3, 4, "v3", "v5", sleep=False)
    a("v_lshlrev_b32 v10, 2, v0")
    a("s_mov_b64 exec, 15")
    for w in range(4):
        a(f"ds_read_b32 v{16+w}, v10 offset:{L_LS+16*w}")
        a(f"ds_read_b32 v{20+w}, v10 offset:{L_MX+16*w}")
    a("s_waitcnt lgkmcnt(0)")
    a("v_add_f32 v16, v16, v17")
    a("v_add_f32 v18, v18, v19")
    a("v_max_f32 v20, v20, v21")
    a("v_max_f32 v22, v22, v23")
    a("v_add_f32 v26, v16, v18")
    a("v_max_f32 v24, v20, v22")
    a(f"v_mov_b32 v25, {S_TAG}")
    a(f"v_mov_b32 v27, {S_TAG}")
    a("v_lshlrev_b32 v10, 8, v0")
    store_loc(f"buffer_store_dwordx4 v[24:27], v10, {WSRD}, {O_ST} offen")
    a("s_mov_b64 exec, -1")
    a.label("L_m_pv")
    stamp(5)
    a("v_lshrrev_b32 v10, 2, v2")
    a(f"v_mul_u32_u24 v10, {PPITCH}, v10")
    a("v_lshl_add_u32 v10, v1, 4, v10")
    a(f"v_add_u32 v60, {L_P}, v10")
    a(f"v_add_u32 v61, {L_V}, v13")
    a(f"v_add_u32 v62, {L_V}, v14")
    a("v_lshl_add_u32 v63, v1, 14, v9")
    a(f"v_mov_b32 v65, {S_TAG}")
    for r in range(8): a(f"v_mov_b32 v{48+r}, 0")
    spin_lds(F_MB2, 4, "v3", "v5", sleep=False)
    a(f"s_add_u32 s95, {T_K}, 8")
    a("s_mov_b32 s96, -1000")
    def pv_ensure(tagl):
        G = f"L_pv_go{tagl}"; S = f"L_pv_sp{tagl}"
        a("s_cmp_ge_i32 s96, s95")
        a(f"s_cbranch_scc1 {G}")
        a.label(S)
        a(f"ds_read_b32 v5, v3 offset:{F_LC}")
        a("s_waitcnt lgkmcnt(0)")
        a("v_readfirstlane_b32 s96, v5")
        a("s_cmp_ge_i32 s96, s95")
        a(f"s_cbranch_scc1 {G}")
        timeout()
        a(f"s_branch {S}")
        a.label(G)
    def pv_reads(b):
        a(f"ds_read_b128 v[{b}:{b+3}], v60")
        a(f"ds_read_b64_tr_b16 v[{b+4}:{b+5}], v61")
        a(f"ds_read_b64_tr_b16 v[{b+6}:{b+7}], v61 offset:1024")
        a(f"ds_read_b64_tr_b16 v[{b+8}:{b+9}], v62")
        a(f"ds_read_b64_tr_b16 v[{b+10}:{b+11}], v62 offset:1024")
        a("v_add_u32 v60, 64, v60")
        a("v_add_u32 v61, 0x2000, v61")
        a("v_add_u32 v62, 0x2000, v62")
        a("s_add_u32 s95, s95, 8")
    def pv_mfma(b):
        a(f"v_mfma_f32_16x16x32_bf16 v[48:51], v[{b}:{b+3}], v[{b+4}:{b+7}], v[48:51]")
        a(f"v_mfma_f32_16x16x32_bf16 v[52:55], v[{b}:{b+3}], v[{b+8}:{b+11}], v[52:55]")
    pv_ensure("0")
    pv_reads(16)
    a.label("L_pv_loop")
    pv_ensure("1")
    pv_reads(28)
    a("s_waitcnt lgkmcnt(5)")
    pv_mfma(16)
    pv_ensure("2")
    pv_reads(16)
    a("s_waitcnt lgkmcnt(5)")
    pv_mfma(28)
    a(f"s_cmp_le_i32 s95, {T_V}")
    a("s_cbranch_scc1 L_pv_loop")
    a("s_waitcnt lgkmcnt(0)")
    pv_mfma(16)
    stamp(6)
    a("s_nop 4")
    a("v_cvt_pk_bf16_f32 v64, v48, v52")
    store_loc(f"buffer_store_dwordx2 v[64:65], v63, {WSRD}, {O_O} offen")
    arrive(F_PO, "v3", "v4")
    stamp(7)
    mark(12, "v3")
    spin_lds(F_WOL, 1, "v3", "v5", sleep=False)
    a(f"v_add_u32 v10, {L_WO}, v7")
    loadB("v10", 4, 4096, 512)
    a("s_waitcnt lgkmcnt(0)")
    a("s_barrier")
    gemv(L_ACT4, 4)
    publish_pair(O_A4)
    arrive(F_PA, "v3", "v4")
    stamp(8)
    mark(13, "v3")
    spin_lds(F_LATE, 1, "v3", "v5")
    a(f"v_add_u32 v10, {L_DN}, v7")
    loadB("v10", 2, 4096, 512, base=64)
    a(f"s_lshr_b32 s90, {S_W}, 1")
    a("s_lshl_b32 s90, s90, 13")
    a(f"s_add_u32 s90, s90, {L_G}")
    a("v_add_u32 v11, s90, v12")
    loadB("v11", 4, 2048, 256)
    a("s_waitcnt lgkmcnt(0)")
    a("s_barrier")
    a(f"s_cmp_eq_u32 {S_CB}, 7")
    a("s_cbranch_scc1 L_m_s7")
    gemv(L_ACT6, 4)
    publish(13, O_GU, local=True)
    a.label("L_m_s7")
    arrive(F_PG, "v3", "v4")
    stamp(9)
    a("s_barrier")
    gemv(L_ACT7, 2, bbase=64)
    publish_pair(O_DN)
    arrive(F_PD, "v3", "v4")
    stamp(10)
    mark(15, "v3")
    dump_stamps(11)
    a("s_endpgm")

    def r1_block(uid, vz):
        a(f"s_sub_u32 s90, {S_W}, 4")
        a("s_lshr_b32 s91, s90, 1")
        a("s_and_b32 s94, s90, 1")
        a("s_lshl_b32 s99, s94, 8")
        a(f"s_lshl_b32 s100, {S_X}, 16")
        a("s_add_u32 s99, s99, s100")
        a(f"s_lshl_b32 s100, {S_KQ}, 14")
        a("s_add_u32 s99, s99, s100")
        a("s_lshl_b32 s100, s91, 13")
        a("s_add_u32 s99, s99, s100")
        a(f"s_add_u32 s99, s99, {W_O}")
        a(f"s_lshl_b32 s100, {S_X}, 11")
        a("s_lshl_b32 s90, s91, 10")
        a("s_add_u32 s100, s100, s90")
        a(f"s_lshl_b32 s90, {S_KQ}, 8")
        a("s_add_u32 s100, s100, s90")
        a(f"s_add_u32 s100, s100, {W_ST}")
        a("v_lshrrev_b32 v48, 5, v0")
        a("v_and_b32 v49, 31, v0")
        a("v_lshlrev_b32 v50, 12, v48")
        a("v_lshl_add_u32 v50, v49, 3, v50")
        a("v_and_b32 v51, 7, v0")
        a("v_lshl_add_u32 v51, v48, 3, v51")
        a("v_lshlrev_b32 v51, 4, v51")
        a(f"s_mul_i32 s91, s91, {APITCH}")
        a("s_lshl_b32 s94, s94, 7")
        a("s_add_u32 s91, s91, s94")
        a("v_bfe_u32 v52, v0, 4, 1")
        a("v_lshlrev_b32 v52, 6, v52")
        a("v_and_b32 v53, 15, v0")
        a("v_lshl_add_u32 v52, v53, 1, v52")
        a("v_lshl_add_u32 v52, v48, 5, v52")
        a("v_add_u32 v52, s91, v52")
        loads = [f"buffer_load_dwordx4 v[32:35], v51, {WSRD}, s100 offen sc1"]; tags = ["v33", "v35"]
        for i in range(8):
            loads.append(f"buffer_load_dwordx2 v[{16+2*i}:{17+2*i}], v50, {WSRD}, s99 offen offset:{512*i} sc1")
            tags.append(f"v{17+2*i}")
        after_own(F_PO, 4, vz, "v54", cfg.d_r1)
        stamp(7 if uid != "q" else 4)
        poll(loads, tags, "v54")
        if uid == "q": stamp(10)
        a("v_mov_b32 v55, v32")
        allreduce(["v55"], "v_max_f32", ["v56"], ["x1", "x2", "x4", "x32"])
        a(f"s_mov_b32 s94, {LOG2E:#x}")
        a("v_sub_f32 v56, v32, v55")
        for i in range(4): a(f"v_lshlrev_b32 v{36+2*i}, 16, v{16+2*i}"); a(f"v_and_b32 v{37+2*i}, 0xffff0000, v{16+2*i}")
        a("v_mul_f32 v56, s94, v56")
        a("v_exp_f32 v56, v56")
        for i in range(4, 8): a(f"v_lshlrev_b32 v{36+2*i}, 16, v{16+2*i}"); a(f"v_and_b32 v{37+2*i}, 0xffff0000, v{16+2*i}")
        a("v_mul_f32 v57, v56, v34")
        allreduce(["v57"], "v_add_f32", ["v58"], ["x1", "x2", "x4", "x32"])
        a("v_rcp_f32 v57, v57")
        a("v_mov_b32 v58, 0")
        a("v_mov_b32 v59, 0")
        a("v_mul_f32 v56, v56, v57")
        for i in range(8):
            a(f"v_fmac_f32_dpp v58, v56, v{36+2*i} row_newbcast:{i} row_mask:0xf bank_mask:0xf")
            a(f"v_fmac_f32_dpp v59, v56, v{37+2*i} row_newbcast:{i} row_mask:0xf bank_mask:0xf")
        a("v_permlane32_swap_b32 v58, v59")
        a("v_add_f32 v58, v58, v59")
        a("v_cvt_pk_bf16_f32 v58, v58, v58")
        a(f"ds_write_b16 v52, v58 offset:{L_ACT4}")
        a("s_waitcnt lgkmcnt(0)")

    a.label("L_gwave")
    a(f"s_cmp_eq_u32 {S_W}, 4")
    a("s_cbranch_scc1 L_slice")
    a(f"s_cmp_eq_u32 {S_W}, 7")
    a("s_cbranch_scc1 L_aux")

    SB = "s97"
    a("s_mov_b64 s[36:37], s[42:43]")
    a("v_lshlrev_b32 v2, 2, v0")
    a("v_mov_b32 v10, 1")
    a(f"s_mul_i32 s98, {SB}, {APITCH}")
    a("v_add_u32 v11, s98, v2")
    a("v_mov_b32 v19, 0")
    a("s_waitcnt vmcnt(0)")
    stamp(1)
    a("v_lshlrev_b32 v12, 16, v9")
    a("v_and_b32 v13, 0xffff0000, v9")
    a(f"s_mov_b32 s94, {LOG2E:#x}")
    for r in (12, 13): a(f"v_mul_f32 v{r+2}, s94, v{r}")
    for r in (12, 13): a(f"v_exp_f32 v{r+2}, -v{r+2}")
    for r in (12, 13): a(f"v_add_f32 v{r+2}, 1.0, v{r+2}")
    for r in (12, 13): a(f"v_rcp_f32 v{r+2}, v{r+2}")
    for r in (12, 13): a(f"v_mul_f32 v{r}, v{r}, v{r+2}")
    a("v_cvt_pk_bf16_f32 v12, v12, v13")
    a(f"ds_write_b32 v11, v12 offset:{L_ACT1}")
    arrive(F_1, "v19", "v10")
    get_tag()
    a("v_mov_b32 v3, 0")

    def ln_finish(mean, var, x0, x1, tmp):
        bf16r2(mean, var, mean, var, tmp)
        a(f"s_mov_b32 s94, {EPS:#x}")
        a(f"v_add_f32 {var}, s94, {var}")
        bf16r1(var, var)
        a(f"v_sqrt_f32 {var}, {var}")
        a(f"v_sub_f32 {x0}, {x0}, {mean}")
        a(f"v_sub_f32 {x1}, {x1}, {mean}")
        bf16r1(var, var)
        a(f"v_rcp_f32 {var}, {var}")
        bf16r2(x0, x1, x0, x1, tmp)
        a(f"v_mul_f32 {x0}, {x0}, {var}")
        a(f"v_mul_f32 {x1}, {x1}, {var}")
        bf16r2(x0, x1, x0, x1, tmp)

    def quarter_gather(chunkA, chunkB, qreg, pre=None, sample=False):
        for (ch, sreg) in ((chunkA, "s90"), (chunkB, "s99")):
            sexpr(sreg, [(SB, "shl", 14), (qreg, "shl", 12)], W_MOD + ch*32768)
        loads = []; tags = []
        for i in range(4):
            loads.append(f"buffer_load_dwordx4 v[{16+4*i}:{19+4*i}], v1, {WSRD}, s90 offen offset:{1024*i} sc1")
            loads.append(f"buffer_load_dwordx4 v[{32+4*i}:{35+4*i}], v1, {WSRD}, s99 offen offset:{1024*i} sc1")
            tags += [f"v{17+4*i}", f"v{19+4*i}", f"v{33+4*i}", f"v{35+4*i}"]
        if pre: pre()
        poll(loads, tags, "v50", sample=sample)
        for (base, d0, d1) in ((16, "v14", "v15"), (32, "v48", "v49")):
            a(f"v_add_f32 {d0}, v{base}, v{base+4}")
            a(f"v_add_f32 {d1}, v{base+2}, v{base+6}")
            a(f"v_add_f32 v50, v{base+8}, v{base+12}")
            a(f"v_add_f32 v51, v{base+10}, v{base+14}")
            a(f"v_add_f32 {d0}, {d0}, v50")
            a(f"v_add_f32 {d1}, {d1}, v51")
            bf16r2(d0, d1, d0, d1, "v50")

    def modulate(x0, x1, sc0, sc1, sh0, sh1, dst, tmp):
        a(f"v_mul_f32 {x0}, {x0}, {sc0}")
        a(f"v_mul_f32 {x1}, {x1}, {sc1}")
        bf16r2(x0, x1, x0, x1, tmp)
        a(f"v_add_f32 {x0}, {x0}, {sh0}")
        a(f"v_add_f32 {x1}, {x1}, {sh1}")
        a(f"v_cvt_pk_bf16_f32 {dst}, {x0}, {x1}")

    a(f"s_cmp_eq_u32 {S_B}, 0")
    a("s_cbranch_scc1 L_q_qg")
    for i in range(4):
        a(f"v_lshlrev_b32 v{16+2*i}, 16, v{4+i}")
        a(f"v_and_b32 v{17+2*i}, 0xffff0000, v{4+i}")
    a("v_add_f32 v24, v16, v17")
    a("v_add_f32 v25, v18, v19")
    a("v_add_f32 v26, v20, v21")
    a("v_add_f32 v27, v22, v23")
    a("v_add_f32 v24, v24, v25")
    a("v_add_f32 v26, v26, v27")
    a("v_add_f32 v24, v24, v26")
    allreduce(["v24"], "v_add_f32", ["v28"], FULL)
    a(f"s_mov_b32 s94, {INV512:#x}")
    a("v_mul_f32 v24, s94, v24")
    for i in range(8): a(f"v_sub_f32 v{16+i}, v{16+i}, v24")
    a("v_mul_f32 v25, v16, v16")
    for i in range(1, 8): a(f"v_fmac_f32 v25, v{16+i}, v{16+i}")
    allreduce(["v25"], "v_add_f32", ["v28"], FULL)
    a("v_mul_f32 v25, s94, v25")
    a("v_lshlrev_b32 v12, 16, v8")
    a("v_and_b32 v13, 0xffff0000, v8")
    ln_finish("v24", "v25", "v12", "v13", "v28")
    a(f"s_lshr_b32 s100, {S_SPL}, 1")
    quarter_gather(0, 1, "s100", pre=lambda: a(f"s_sleep {cfg.d_h}"))
    a("v_add_f32 v48, 1.0, v48")
    a("v_add_f32 v49, 1.0, v49")
    bf16r2("v48", "v49", "v48", "v49", "v50")
    modulate("v12", "v13", "v48", "v49", "v14", "v15", "v16", "v50")
    a(f"ds_write_b32 v11, v16 offset:{L_ACT2}")
    arrive(F_2, "v3", "v10")
    stamp(2)
    a(f"s_lshr_b32 s90, {S_SPL}, 1")
    a(f"s_and_b32 s91, {S_SPL}, 1")
    sexpr("s99", [(S_X, "shl", 15), (SB, "shl", 14), ("s90", "shl", 12), ("s91", "shl", 9)], W_Q)
    sexpr("s100", [(S_X, "shl", 12), (SB, "shl", 11), (S_SPL, "shl", 8)], W_QF)
    a("v_lshlrev_b32 v54, 3, v0")
    a("s_mov_b32 exec_hi, 0")
    loads = []; tags = []
    for i in range(4):
        loads.append(f"buffer_load_dwordx4 v[{16+4*i}:{19+4*i}], v1, {WSRD}, s99 offen offset:{1024*i} sc1")
        tags += [f"v{17+4*i}", f"v{19+4*i}"]
    get_mode("v3", "v50")
    after_own(F_PQ, 4, "v3", "v50", cfg.d_q)
    poll(loads, tags, "v50", sleep=0)
    a("v_add_f32 v48, v16, v20")
    a("v_add_f32 v49, v18, v22")
    a("v_add_f32 v50, v24, v28")
    a("v_add_f32 v51, v26, v30")
    a("v_add_f32 v48, v48, v50")
    a("v_add_f32 v49, v49, v51")
    a(f"v_mov_b32 v53, {S_TAG}")
    a("v_cvt_pk_bf16_f32 v52, v48, v49")
    store_loc(f"buffer_store_dwordx2 v[52:53], v54, {WSRD}, s100 offen")
    a("s_mov_b64 exec, -1")
    arrive(F_QF, "v3", "v10")
    a.label("L_q_qg")
    sexpr("s90", [(S_X, "shl", 12), (S_BT, "shl", 11), (SB, "shl", 10)], W_QF)
    a("v_lshrrev_b32 v54, 5, v0")
    a(f"v_mul_u32_u24 v54, {APITCH}, v54")
    a("v_and_b32 v55, 31, v0")
    a("v_lshl_add_u32 v54, v55, 3, v54")
    a(f"s_mul_i32 s100, {SB}, {2*APITCH}")
    a("v_add_u32 v54, s100, v54")
    ldA = f"buffer_load_dwordx4 v[16:19], v1, {WSRD}, s90 offen sc1"
    ldB = f"buffer_load_dwordx4 v[20:23], v1, {WSRD}, s90 offen sc1"
    a(f"s_cmp_eq_u32 {S_B}, 0")
    a("s_cbranch_scc1 L_q_qA")
    after_own(F_QF, 2, "v3", "v50", cfg.d_q)
    a("s_branch L_q_qP")
    a.label("L_q_qA")
    if cfg.quiet: spin_lds(F_LC, cfg.quiet, "v3", "v50")
    a.label("L_q_qP")
    a(ldA)
    a(f"s_sleep {cfg.qsl2}")
    a.label("L_q_loop")
    a(ldB)
    a("s_waitcnt vmcnt(1)")
    a(f"v_xor_b32 v50, {S_TAG}, v17")
    a(f"v_bitop3_b32 v50, v50, v19, {S_TAG} bitop3:0xf6")
    a("v_cmp_ne_u32 vcc, 0, v50")
    a("s_cbranch_vccz L_q_gotA")
    timeout()
    a(ldA)
    a("s_waitcnt vmcnt(1)")
    a(f"v_xor_b32 v50, {S_TAG}, v21")
    a(f"v_bitop3_b32 v50, v50, v23, {S_TAG} bitop3:0xf6")
    a("v_cmp_ne_u32 vcc, 0, v50")
    a("s_cbranch_vccnz L_q_loop")
    a("v_mov_b32 v24, v20")
    a("v_mov_b32 v25, v22")
    a("s_branch L_q_got")
    a.label("L_q_gotA")
    a("v_mov_b32 v24, v16")
    a("v_mov_b32 v25, v18")
    a.label("L_q_got")
    a(f"ds_write_b64 v54, v[24:25] offset:{L_Q}")
    arrive(F_3, "v3", "v10")
    stamp(3)
    a("s_waitcnt vmcnt(0)")
    if cfg.g_late: gate_lc(cfg.g_late, cfg.g_late * NK_B // NK_A, "v3", "v50")
    sexpr("s90", [(SB, "shl", 11), (S_KQ, "shl", 9)], W_MODF + 3*4096)
    a("s_add_u32 s99, s90, 4096")
    a("v_lshlrev_b32 v54, 3, v0")
    poll([f"buffer_load_dwordx2 v[16:17], v54, {WSRD}, s90 offen sc1",
          f"buffer_load_dwordx2 v[18:19], v54, {WSRD}, s99 offen sc1"], ["v17", "v19"], "v50", sleep=8)
    a("v_lshlrev_b32 v66, 16, v16")
    a("v_and_b32 v67, 0xffff0000, v16")
    a("v_lshlrev_b32 v48, 16, v18")
    a("v_and_b32 v49, 0xffff0000, v18")
    a("v_add_f32 v48, 1.0, v48")
    a("v_add_f32 v49, 1.0, v49")
    bf16r2("v64", "v65", "v48", "v49", "v50")
    r1_block("q", "v3")
    stamp(5)
    a("s_barrier")
    sexpr("s99", [(S_X, "shl", 10), (SB, "shl", 9)], W_X1S)
    sexpr("s90", [(S_X, "shl", 12), (SB, "shl", 11), (S_KQ, "shl", 9)], W_X1P)
    a("v_lshlrev_b32 v16, 3, v0")
    a("v_and_b32 v17, 31, v0")
    a("v_lshlrev_b32 v17, 4, v17")
    after_own(F_PX, 1, "v3", "v50", cfg.d_x1)
    stamp(8)
    poll([f"buffer_load_dwordx4 v[24:27], v17, {WSRD}, s99 offen sc1",
          f"buffer_load_dwordx2 v[20:21], v16, {WSRD}, s90 offen sc1"], ["v21", "v25", "v27"], "v50")
    stamp(9)
    allreduce(["v24", "v26"], "v_add_f32", ["v28", "v29"], ["x1", "x2", "x4", "x8", "x16"])
    a(f"s_mov_b32 s94, {INV512:#x}")
    a("v_mul_f32 v24, s94, v24")
    a("v_mul_f32 v26, s94, v26")
    a("v_lshlrev_b32 v12, 16, v20")
    a("v_fma_f32 v26, -v24, v24, v26")
    a("v_and_b32 v13, 0xffff0000, v20")
    a("v_max_f32 v26, 0, v26")
    ln_finish("v24", "v26", "v12", "v13", "v30")
    modulate("v12", "v13", "v64", "v65", "v66", "v67", "v16", "v30")
    a(f"ds_write_b32 v11, v16 offset:{L_ACT6}")
    a(f"s_mul_i32 s94, {S_KQ}, 448")
    sexpr("s90", [(S_X, "shl", 15), (SB, "shl", 13), ("s94", "shl", 0)], W_GU, tmp="s99")
    a("s_add_u32 s94, s90, 4096")
    a("s_add_u32 s99, s90, 16384")
    a("s_add_u32 s100, s90, 20480")
    a("s_waitcnt lgkmcnt(0)")
    stamp(6)
    a("s_barrier")
    a("v_lshlrev_b32 v16, 3, v0")
    a("v_mov_b32 v40, 0")
    a("v_lshlrev_b32 v17, 1, v0")
    a("v_add_u32 v17, s98, v17")
    a("s_mov_b32 exec_lo, -1")
    a("s_mov_b32 exec_hi, 0x00ffffff")
    loads = []; tags = []
    for wh in range(2):
        for k6 in range(4):
            sr = [["s90", "s94"], ["s99", "s100"]][wh][k6 >> 1]
            rb = 20 + 8*wh + 2*k6
            loads.append(f"buffer_load_dwordx2 v[{rb}:{rb+1}], v16, {WSRD}, {sr} offen offset:{2048*(k6&1)} sc1")
            tags.append(f"v{rb+1}")
    after_own(F_PG, 4, "v3", "v50", cfg.d_gu)
    poll(loads, tags, "v50")
    a("v_add_f32 v36, v20, v22")
    a("v_add_f32 v37, v24, v26")
    a("v_add_f32 v38, v28, v30")
    a("v_add_f32 v39, v32, v34")
    a("v_add_f32 v36, v36, v37")
    a("v_add_f32 v38, v38, v39")
    bf16r2("v36", "v38", "v36", "v38", "v50")
    a("v_mul_f32 v36, v36, v38")
    a("v_cvt_pk_bf16_f32 v40, v36, v36")
    a("s_mov_b64 exec, -1")
    a(f"ds_write_b16 v17, v40 offset:{L_ACT7}")
    a("s_waitcnt lgkmcnt(0)")
    stamp(7)
    a("s_barrier")
    dump_stamps(11)
    a("s_endpgm")

    a.label("L_slice")
    srd(48, 38, 2048)
    a("v_lshlrev_b32 v7, 4, v0")
    a("v_and_b32 v1, 3, v0")
    a("v_bfe_u32 v2, v0, 4, 1")
    a("v_bfe_u32 v4, v0, 3, 1")
    a("v_lshrrev_b32 v5, 5, v0")
    a("v_lshlrev_b32 v6, 2, v1")
    a("v_lshl_add_u32 v6, v2, 1, v6")
    a("v_add_u32 v6, v6, v4")
    a("v_lshlrev_b32 v8, 10, v5")
    a("v_lshl_add_u32 v8, v6, 1, v8")
    a(f"s_lshl_b32 s90, {S_LOC}, 5")
    a("buffer_load_ushort v9, v8, s[44:47], s90 offen")
    a("v_lshlrev_b32 v10, 4, v5")
    a("v_add_u32 v10, v10, v6")
    a("v_lshlrev_b32 v10, 2, v10")
    a("v_lshlrev_b32 v11, 1, v1")
    a("v_add_u32 v11, v11, v2")
    a("v_lshlrev_b32 v12, 11, v5")
    a("v_lshl_add_u32 v98, v11, 3, v12")
    a("v_lshlrev_b32 v99, 9, v5")
    a("v_lshlrev_b32 v12, 10, v5")
    a("v_lshl_add_u32 v97, v11, 2, v12")
    sexpr("s22", [(S_X, "shl", 12), (S_LOC, "shl", 6)], W_X1P)
    sexpr("s23", [(S_X, "shl", 10), (S_LOC, "shl", 4)], W_X1S)
    a(f"s_lshl_b32 s24, {S_LOC}, 5")
    a(f"s_lshl_b32 s17, {S_LOC}, 12")
    a("v_cmp_eq_u32 s[26:27], 1, v4")
    a("v_mov_b32 v100, 0x3f80")
    a("v_mov_b32 v101, 0x3f800000")
    a("s_waitcnt vmcnt(0)")
    get_tag()
    a("v_mov_b32 v3, 0")
    a("v_lshlrev_b32 v102, 16, v9")
    get_mode("v3", "v20")
    stamp(1)

    def part_loads(base):
        a(f"s_add_u32 s20, s17, {base}")
        loads = []; tags = []
        for i in range(4):
            rb = 16 + 4*i
            loads.append(f"buffer_load_dwordx4 v[{rb}:{rb+3}], v7, {WSRD}, s20 offen offset:{1024*i} sc1")
            tags += [f"v{rb+1}", f"v{rb+3}"]
        return loads, tags
    def part_loads_atomic(base):
        a(f"s_add_u32 s20, s17, {base}")
        loads = []; tags = []
        for r in range(16, 32): loads.append(f"v_mov_b32 v{r}, 0")
        for i in range(4):
            rb = 16 + 4*i
            for hh in range(2):
                loads.append(f"buffer_atomic_add_x2 v[{rb+2*hh}:{rb+2*hh+1}], v7, {WSRD}, s20 offen offset:{1024*i + 8*hh} sc0 sc1")
            tags += [f"v{rb+1}", f"v{rb+3}"]
        return loads, tags
    def part_sum():
        for b in range(2):
            for (k, (off, sel)) in enumerate(((0, "v100"), (0, "v101"), (2, "v100"), (2, "v101"))):
                a(f"v_dot2_f32_bf16 v{32+4*b+k}, v{16+8*b+off}, {sel}, 0")
        for b in range(2):
            for (k, (off, sel)) in enumerate(((0, "v100"), (0, "v101"), (2, "v100"), (2, "v101"))):
                a(f"v_dot2_f32_bf16 v{32+4*b+k}, v{20+8*b+off}, {sel}, v{32+4*b+k}")
        for c in range(4): a(f"v_permlane32_swap_b32 v{32+c}, v{36+c}")
        for c in range(4): a(f"v_add_f32 v{32+c}, v{32+c}, v{36+c}")
        a("v_permlane16_swap_b32 v32, v34")
        a("v_permlane16_swap_b32 v33, v35")
        a("v_add_f32 v32, v32, v34")
        a("v_add_f32 v33, v33, v35")
        a("v_cndmask_b32 v36, v32, v33, s[26:27]")
        a("v_cndmask_b32 v37, v33, v32, s[26:27]")
        a("v_add_f32_dpp v36, v37, v36 row_ror:8 row_mask:0xf bank_mask:0xf")
        a("v_add_f32_dpp v40, v36, v36 row_shl:4 row_mask:0xf bank_mask:0x5")
        a("v_add_f32_dpp v40, v36, v36 row_shr:4 row_mask:0xf bank_mask:0xa")
    def resid(gate):
        bf16r1("v40", "v40")
        a(f"v_mul_f32 v40, v40, {gate}")
        bf16r1("v40", "v40")
        a("v_add_f32 v102, v102, v40")
        bf16r1("v102", "v102")
    def make_pair(dst):
        a("v_mov_b32_dpp v41, v102 row_ror:8 row_mask:0xf bank_mask:0xf")
        a(f"v_cvt_pk_bf16_f32 {dst}, v102, v41")
    PUBM = "0x000f000f"

    l1, t1 = part_loads(W_A4)
    spin_lds(F_GA, 1, "v3", "v15")
    a(f"ds_read_b32 v103, v10 offset:{L_GA}")
    a(f"ds_read_b32 v104, v10 offset:{L_GB}")
    a("s_waitcnt lgkmcnt(0)")
    r1_block("s", "v3")
    a(f"v_mov_b32 v43, {S_TAG}")
    a(f"v_mov_b32 v45, {S_TAG}")
    a(f"v_mov_b32 v47, {S_TAG}")
    a("s_barrier")
    after_own(F_PA, 4, "v3", "v15", cfg.d_s5)
    stamp(2)
    poll(l1, t1, "v15")
    stamp(3)
    part_sum()
    resid("v103")
    make_pair("v42")
    a("v_mul_f32 v46, v102, v102")
    a("v_mov_b32 v44, v102")
    a(f"s_mov_b32 exec_lo, {PUBM}")
    a(f"s_mov_b32 exec_hi, {PUBM}")
    store_loc(f"buffer_store_dwordx2 v[42:43], v98, {WSRD}, s22 offen")
    a("s_mov_b64 exec, -1")
    allreduce(["v44", "v46"], "v_add_f32", ["v48", "v49"], ["x1", "x2", "r8", "x16"])
    a("s_mov_b32 exec_lo, 1")
    a("s_mov_b32 exec_hi, 1")
    store_loc(f"buffer_store_dwordx4 v[44:47], v99, {WSRD}, s23 offen")
    a("s_mov_b64 exec, -1")
    a("v_mov_b32 v15, 1")
    arrive(F_PX, "v3", "v15")
    stamp(4)
    mark(14, "v3")
    a(f"s_and_b32 s90, {S_LOC}, 7")
    a(f"s_cmp_lg_u32 s90, {S_X}")
    a("s_cbranch_scc1 L_slice_nf")
    a("s_barrier")
    a("s_barrier")
    l1, t1 = part_loads_atomic(W_DN) if cfg.atom8 else part_loads(W_DN)
    after_own(F_PD, 4, "v3", "v15", cfg.d_s8)
    poll(l1, t1, "v15")
    part_sum()
    resid("v104")
    make_pair("v42")
    a(f"s_mov_b32 exec_lo, {PUBM}")
    a(f"s_mov_b32 exec_hi, {PUBM}")
    a("buffer_store_dword v42, v97, s[48:51], s24 offen")
    a(f"s_cmp_lg_u32 {S_WG}, 0")
    a("s_cbranch_scc1 L_slice_end")
    a("s_mov_b64 exec, 1")
    a(f"v_mov_b32 v24, {S_EP}")
    a("v_mov_b32 v21, 0")
    a(f"buffer_store_dword v24, v21, {WSRD}, 0 offen sc1")
    a.label("L_slice_end")
    if cfg.probe == 1:
        a("s_sleep 94")
        a("s_sleep 94")
    if cfg.probe >= 10:
        a(f"ds_read_b32 v20, v3 offset:{L_PRB}")
        a("s_waitcnt lgkmcnt(0)")
        a("v_readfirstlane_b32 s22, v20")
        a("s_mov_b32 s24, 100000")
        a.label("L_probe")
        a("s_memrealtime s[20:21]")
        a("s_waitcnt lgkmcnt(0)")
        a("s_sub_u32 s24, s24, 1")
        a("s_cbranch_scc1 L_probe_e")
        a("s_sub_u32 s23, s20, s22")
        a("s_cmp_lt_u32 s23, 2000")
        a("s_cbranch_scc1 L_probe")
        a.label("L_probe_e")
    if cfg.probe == 3:
        a("s_add_u32 s22, s62, 2500")
        a.label("L_probe")
        a("s_memrealtime s[20:21]")
        a("s_waitcnt lgkmcnt(0)")
        a("s_sub_u32 s23, s20, s22")
        a("s_cmp_lt_i32 s23, 0")
        a("s_cbranch_scc1 L_probe")
    if cfg.probe == 2:
        a("s_memrealtime s[20:21]")
        a("s_waitcnt lgkmcnt(0)")
        a("s_add_u32 s22, s20, 500")
        a.label("L_probe")
        a("s_memrealtime s[20:21]")
        a("s_waitcnt lgkmcnt(0)")
        a("s_sub_u32 s23, s20, s22")
        a("s_cmp_lt_i32 s23, 0")
        a("s_cbranch_scc1 L_probe")
    a("s_mov_b64 exec, -1")
    stamp(5)
    dump_stamps(6)
    a("s_endpgm")
    a.label("L_slice_nf")
    a("s_barrier")
    a("s_barrier")
    dump_stamps(5)
    a("s_endpgm")

    a.label("L_aux")
    srd(44, 28, 512*1792*2)
    srd(48, 30, 512*1792*2)
    srd(52, 32, 1792*512*2)
    a("v_mov_b32 v10, 1")
    sexpr("s18", [(S_X, "mul", 224*1024), (S_KQ, "mul", 56*1024), (S_CB, "shl", 7)])
    sexpr("s19", [(S_KQ, "mul", 128*3584), (S_X, "mul", 448), (S_CB, "shl", 6)])
    a("s_waitcnt vmcnt(0)")
    get_tag()
    strip_voff(3584, "v64")
    unit_voffs(pitch_shift=10, d0="v66", d1="v67")
    a("v_mov_b32 v3, 0")
    stamp(1)
    if cfg.g_piece:
        Lq = a.newlabel("Lgx")
        a(f"s_cmp_lg_u32 {S_B}, 0")
        a(f"s_cbranch_scc1 {Lq}")
        spin_lds(F_LC, cfg.g_piece, "v3", "v50")
        a.label(Lq)
    if cfg.local == 2:
        L = a.newlabel("Lxc"); E = a.newlabel("Lxce")
        srd(60, 40, 256)
        a(f"s_lshl_b32 s91, {S_X}, 5")
        a("s_add_u32 s91, s91, 8")
        a("v_mov_b32 v18, s91")
        a("s_getreg_b32 s90, hwreg(HW_REG_XCC_ID)")
        a("s_and_b32 s90, s90, 7")
        a("s_mul_i32 s90, s90, 6")
        a("s_lshl_b64 s[26:27], 1, s90")
        a("s_mov_b64 exec, 1")
        a.label(L)
        a("buffer_load_dwordx2 v[20:21], v18, s[60:63], 0 offen sc1")
        a("s_waitcnt vmcnt(0)")
        a("v_readfirstlane_b32 s20, v20")
        a("v_readfirstlane_b32 s21, v21")
        a("s_mov_b64 s[22:23], s[20:21]")
        a("s_mov_b32 s90, 0")
        for k in range(8):
            a("s_and_b32 s91, s22, 63")
            a("s_add_u32 s90, s90, s91")
            if k < 7: a("s_lshr_b64 s[22:23], s[22:23], 6")
        a("s_cmp_ge_u32 s90, 32")
        a(f"s_cbranch_scc1 {E}")
        timeout()
        a("s_sleep 2")
        a(f"s_branch {L}")
        a.label(E)
        a("s_lshl_b64 s[22:23], s[26:27], 5")
        a("s_cmp_eq_u64 s[20:21], s[22:23]")
        a("s_cselect_b32 s90, 1, 2")
        a("v_mov_b32 v16, s90")
        a(f"ds_write_b32 v3, v16 offset:{F_LM}")
        a("s_mov_b64 exec, -1")
    stamp(2)
    a(f"s_cmp_lg_u32 {S_B}, 0")
    a("s_cbranch_scc1 L_aux_ga")
    a(f"s_cmp_ge_u32 {S_SPL}, 16")
    a("s_cbranch_scc1 L_aux_ga")
    a(f"s_lshr_b32 s90, {S_X}, 1")
    a(f"s_and_b32 s91, {S_X}, 1")
    a(f"s_lshr_b32 s22, {S_SPL}, 2")
    a(f"s_and_b32 s23, {S_SPL}, 3")
    sexpr("s20", [("s90", "shl", 15), ("s91", "shl", 14), ("s22", "shl", 12), ("s23", "shl", 8)], W_MOD + 2*32768)
    sexpr("s21", [("s90", "shl", 12), ("s91", "shl", 11), (S_SPL, "shl", 7)], W_MODF + 2*4096)
    a("v_lshlrev_b32 v18, 3, v0")
    a("s_mov_b32 exec_hi, 0")
    loads = []; tags = []
    for i in range(4):
        loads.append(f"buffer_load_dwordx2 v[{40+2*i}:{41+2*i}], v18, {WSRD}, s20 offen offset:{1024*i} sc1")
        tags.append(f"v{41+2*i}")
    if cfg.g_piece: spin_lds(F_LC, cfg.g_piece, "v3", "v50")
    poll(loads, tags, "v60", sleep=6, sample=(not cfg.g_piece))
    a("v_add_f32 v40, v40, v42")
    a("v_add_f32 v44, v44, v46")
    a("v_add_f32 v40, v40, v44")
    a("v_lshlrev_b32 v18, 2, v0")
    a(f"v_mov_b32 v43, {S_TAG}")
    a("v_mov_b32_dpp v42, v40 quad_perm:[1,0,3,2] row_mask:0xf bank_mask:0xf")
    a("s_mov_b32 exec_lo, 0x55555555")
    a("v_cvt_pk_bf16_f32 v42, v40, v42")
    a(f"buffer_store_dwordx2 v[42:43], v18, {WSRD}, s21 offen sc1")
    a("s_mov_b64 exec, -1")
    a.label("L_aux_ga")
    if cfg.g_late: gate_lc(cfg.g_late, cfg.g_late * NK_B // NK_A, "v3", "v50")
    sexpr("s20", [(S_LOC, "shl", 6)], W_MODF + 2*4096)
    a(f"s_add_u32 s21, s20, {3*4096}")
    a("v_bfe_u32 v16, v0, 3, 1")
    a("v_and_b32 v17, 7, v0")
    a("v_lshlrev_b32 v18, 11, v16")
    a("v_lshl_add_u32 v18, v17, 3, v18")
    a("v_and_b32 v19, 15, v0")
    a("v_lshlrev_b32 v19, 3, v19")
    a("s_mov_b64 exec, 0xffff")
    poll([f"buffer_load_dwordx2 v[40:41], v18, {WSRD}, s20 offen sc1",
          f"buffer_load_dwordx2 v[42:43], v18, {WSRD}, s21 offen sc1"], ["v41", "v43"], "v60", sleep=8)
    a("v_lshlrev_b32 v44, 16, v40")
    a("v_and_b32 v45, 0xffff0000, v40")
    a("v_lshlrev_b32 v46, 16, v42")
    a("v_and_b32 v47, 0xffff0000, v42")
    a(f"ds_write_b64 v19, v[44:45] offset:{L_GA}")
    a(f"ds_write_b64 v19, v[46:47] offset:{L_GB}")
    a("s_mov_b64 exec, -1")
    arrive(F_GA, "v3", "v10")
    r1_block("a", "v3")
    a("s_barrier")
    spin_lds(F_PA, 4, "v3", "v50", sleep=False)
    a(f"s_cmp_eq_u32 {S_CB}, 7")
    a("s_cbranch_scc1 L_aux_dn")
    a(f"s_mov_b32 m0, {L_G}")
    a("s_mov_b32 s99, 8")
    a.label("L_aux_gu")
    a("buffer_load_dwordx4 v64, s[44:47], s19 offen nt lds")
    a("s_add_u32 m0, m0, 0x2000")
    a("s_nop 0")
    a("buffer_load_dwordx4 v64, s[48:51], s19 offen nt lds")
    a("s_sub_u32 m0, m0, 0x1c00")
    a(f"s_add_u32 s19, s19, {16*3584}")
    a("s_sub_u32 s99, s99, 1")
    a("s_cmp_lg_u32 s99, 0")
    a("s_cbranch_scc1 L_aux_gu")
    a.label("L_aux_dn")
    a(f"s_mov_b32 m0, {L_DN}")
    a("s_nop 0")
    for i in range(8):
        a(f"buffer_load_dwordx4 v{66 + (i&1)}, s[52:55], s18 offen nt lds")
        a("s_add_u32 m0, m0, 0x400")
        a("s_add_u32 s18, s18, 0x2000")
    a("s_waitcnt vmcnt(0)")
    arrive(F_LATE, "v3", "v10")
    stamp(3)
    a("s_barrier")
    a("s_barrier")
    dump_stamps(4)
    a("s_endpgm")

    a.label("L_abort")
    a("s_mov_b64 exec, 1")
    a("v_mov_b32 v1, 0")
    a(f"s_lshl_b32 s90, {S_WG}, 16")
    a("s_or_b32 s90, s90, s1") if cfg.site else None
    a("v_mov_b32 v2, s90")
    a(f"s_and_b32 s90, {S_W}, 1")
    a("s_lshl_b32 s90, s90, 2")
    a("v_mov_b32 v1, s90")
    a("v_or_b32 v2, 0xde000000, v2")
    a("s_mov_b32 s44, s40")
    a("s_and_b32 s45, s41, 0xffff")
    a("s_mov_b32 s46, 256")
    a("s_mov_b32 s47, 0x20000")
    a("buffer_store_dword v2, v1, s[44:47], 0 offen")
    a.label("L_end")
    a("s_endpgm")

    hdr = open(f"cdna_kernels/{NAME}.s.ref").read().split("; Override launch")[0]
    out = hdr
    out += f"; @launch grid=(256,1,1) block=(576,1,1) lds={L_TOTAL}\n"
    out += '.amdgcn_target "amdgcn-amd-amdhsa--gfx950"\n.text\n'
    out += f".globl {NAME}_kernel\n.p2align 8\n.type {NAME}_kernel,@function\n"
    out += a.text()
    out += f""".section .rodata,"a"
.p2align 6
.amdhsa_kernel {NAME}_kernel
  .amdhsa_next_free_vgpr 128
  .amdhsa_next_free_sgpr 102
  .amdhsa_accum_offset 128
  .amdhsa_group_segment_fixed_size 0
  .amdhsa_kernarg_size 112
  .amdhsa_user_sgpr_count 2
  .amdhsa_user_sgpr_kernarg_segment_ptr 1
  .amdhsa_system_sgpr_workgroup_id_x 1
.end_amdhsa_kernel
"""
    return out

if __name__ == "__main__":
    cfg = Cfg()
    outp = sys.argv[1]
    for arg in sys.argv[2:]:
        k, v = arg.split("=")
        assert hasattr(cfg, k), k
        setattr(cfg, k, int(v))
    open(outp, "w").write(gen(cfg))
    print("wrote", outp)
```

```python
import sys
from asmlib import Asm

NAME = "adaLN_cond__sliding_block_cached__glu_gated_bilinear__decode"

class Cfg:
    D = 40
    DA = 28
    DA1 = 0
    stamps = 0
    spin = 1 << 20
    rsl = 1
    local = 2
    touch = 1
    dbl = 1
    stag = 4
    rsl_l = 0
    g_piece = 0
    g_late = 0
    slow = 0
    nwait = 1
    qsl2 = 6
    wq1 = 4
    quiet = 0
    prio = 0
    qsl = 4
    kstart = 1
    d_h = 16
    d_q = 1
    d_r1 = 1
    d_s5 = 8
    d_x1 = 1
    d_gu = 1
    d_s8 = 2
    atom8 = 1
    probe = 0
    site = 0

(F_LC, F_1, F_2, F_3, F_EC, F_KC, F_MB1, F_MB2, F_LATE, F_PO, F_PA, F_PX, F_PG, F_PD,
 F_PM, F_PQ, F_QF, F_WQ, F_WOL, F_MRL, F_LM, F_GA, F_MB3) = [4*i for i in range(23)]
L_MX = 128; L_LS = 192; L_ZERO = 256
L_ACT1 = 768; L_ACT2 = 1344; L_ACT4 = 1920; L_ACT6 = 2496; L_ACT7 = 3072
L_PRB = 7424
L_GA = 7168; L_GB = 7296
L_Q = 3648
L_P = 4736
L_X = 8192; L_C = 10240
L_K = 12288; L_V = L_K + 73728; L_TOTAL = L_V + 73728; L_MR = L_V + 57344
NK_A = 288; NK_B = 160
L_MODB = L_K; L_WQ = L_V
L_WO = L_K; L_G = L_K + 16384; L_U = L_K + 24576; L_DN = L_K + 32768
APITCH = 272; PPITCH = 592

W_EPOCH = 0
W_MOD = 0x1000
W_MODF = 0x38000
W_Q = 0x40000
W_QF = 0x88000
W_ST = 0x80000
W_O = 0x90000
W_A4 = 0x110000
W_X1P = 0x150000
W_X1S = 0x158000
W_GU = 0x160000
W_DN = 0x1A0000
W_STAMP = 0x200000
W_USED = 0x300000

LOG2E = 0x3fb8aa3b
SCALE = 0x3db504f3
EPS = 0x3727c5ac
INV512 = 0x3b000000

S_WG, S_W, S_X, S_LOC, S_B, S_SPL, S_KQ, S_CB, S_TAG, S_SPIN = "s2", "s3", "s4", "s5", "s6", "s7", "s8", "s9", "s10", "s11"
S_U = "s7"
S_BT = "s86"
S_SP = "s87"
WSRD = "s[12:15]"
S_EP = "s89"
S_LM = "s88"
PX = "s[42:43]"
S_PH = "s101"
KB_B = 0

def gen(cfg):
    a = Asm()
    D = cfg.D

    def srd(dst, plo, size):
        a(f"s_mov_b32 s{dst}, s{plo}")
        a(f"s_and_b32 s{dst+1}, s{plo+1}, 0xffff")
        a(f"s_mov_b32 s{dst+2}, {size}")
        a(f"s_mov_b32 s{dst+3}, 0x20000")

    def stamp(k):
        if cfg.stamps: a(f"s_memrealtime s[{64+2*k}:{65+2*k}]")

    def mark(pid, vz):
        if cfg.probe == pid:
            a("s_memrealtime s[62:63]")
            a("s_waitcnt lgkmcnt(0)")
            a("v_mov_b32 v127, s62")
            a(f"ds_max_u32 {vz}, v127 offset:{L_PRB}")

    def dump_stamps(n):
        if not cfg.stamps: return
        a("s_waitcnt lgkmcnt(0)")
        a(f"s_mul_i32 s90, {S_WG}, 9")
        a(f"s_add_u32 s90, s90, {S_W}")
        a("s_lshl_b32 s90, s90, 7")
        a(f"s_add_u32 s90, s90, {W_STAMP}")
        a("s_mov_b64 exec, 1")
        a("v_mov_b32 v1, 0")
        for k in range(n):
            a(f"v_mov_b32 v2, s{64+2*k}")
            a(f"v_mov_b32 v3, s{65+2*k}")
            a(f"buffer_store_dwordx2 v[2:3], v1, {WSRD}, s90 offen offset:{8*k}")
            a("s_nop 1")
        a("s_waitcnt vmcnt(0)")

    sites = [0]
    def timeout():
        if cfg.site:
            sites[0] += 1
            a(f"s_mov_b32 s1, {sites[0]}")
        a(f"s_sub_u32 {S_SPIN}, {S_SPIN}, 1")
        a("s_cbranch_scc1 L_abort")

    def spin_lds(off, n, vz, vt, sleep=True):
        L = a.newlabel("Lsp"); E = a.newlabel("Lspe")
        a.label(L)
        a(f"ds_read_b32 {vt}, {vz} offset:{off}")
        a("s_waitcnt lgkmcnt(0)")
        a(f"v_readfirstlane_b32 s91, {vt}")
        a(f"s_cmp_ge_i32 s91, {n}")
        a(f"s_cbranch_scc1 {E}")
        timeout()
        if sleep: a("s_sleep 1")
        a(f"s_branch {L}")
        a.label(E)

    def arrive(off, vz, vone):
        a("s_mov_b64 s[92:93], exec")
        a("s_mov_b64 exec, 1")
        a(f"ds_add_u32 {vz}, {vone} offset:{off}")
        a("s_mov_b64 exec, s[92:93]")

    def poll(loads, tags, vacc, sleep=None, sample=False):
        if sleep is None: sleep = cfg.rsl
        L = a.newlabel("Lpl"); E = a.newlabel("Lple"); R = a.newlabel("Lplr")
        a(f"s_mov_b64 {PX}, exec")
        if sample:
            a(f"s_mov_b32 {S_PH}, 0")
            a("s_mov_b64 exec, 1")
        a.label(L)
        for ld in loads: a(ld)
        a("s_waitcnt vmcnt(0)")
        a(f"v_xor_b32 {vacc}, {S_TAG}, {tags[0]}")
        for t in tags[1:]:
            a(f"v_bitop3_b32 {vacc}, {vacc}, {t}, {S_TAG} bitop3:0xf6")
        a(f"v_cmp_ne_u32 vcc, 0, {vacc}")
        if sample:
            a(f"s_cbranch_vccnz {R}")
            a(f"s_cmp_lg_u32 {S_PH}, 0")
            a(f"s_cbranch_scc1 {E}")
            a(f"s_mov_b32 {S_PH}, 1")
            a(f"s_mov_b64 exec, {PX}")
            a(f"s_branch {L}")
            a.label(R)
        else:
            a(f"s_cbranch_vccz {E}")
        a("s_mov_b64 exec, vcc")
        timeout()
        if sleep: a(f"s_sleep {sleep}")
        a(f"s_branch {L}")
        a.label(E)
        a(f"s_mov_b64 exec, {PX}")

    def poll2(mk, vacc, uid, use):
        la, ta = mk(16); lb, tb = mk(64)
        nl = len(la)
        def check(tags):
            a(f"v_xor_b32 {vacc}, {S_TAG}, {tags[0]}")
            for t in tags[1:]: a(f"v_bitop3_b32 {vacc}, {vacc}, {t}, {S_TAG} bitop3:0xf6")
            a(f"v_cmp_ne_u32 vcc, 0, {vacc}")
        for l in la: a(l)
        a(f"s_sleep {cfg.stag}")
        a.label(f"L_p2_{uid}")
        for l in lb: a(l)
        a(f"s_waitcnt vmcnt({nl})")
        check(ta)
        a(f"s_cbranch_vccz L_p2a_{uid}")
        timeout()
        for l in la: a(l)
        a(f"s_waitcnt vmcnt({nl})")
        check(tb)
        a(f"s_cbranch_vccnz L_p2_{uid}")
        use(64)
        a(f"s_branch L_p2e_{uid}")
        a.label(f"L_p2a_{uid}")
        use(16)
        a.label(f"L_p2e_{uid}")

    def after_own(flag, n, vz, vt, dly):
        spin_lds(flag, n, vz, vt, sleep=False)
        if dly: a(f"s_sleep {dly}")

    def get_mode(vz, vt):
        if cfg.local == 2:
            spin_lds(F_LM, 1, vz, vt)
            a(f"s_mov_b32 {S_LM}, s91")

    def store_loc(text):
        if cfg.local == 0: a(text + " sc1")
        elif cfg.local == 1: a(text)
        else:
            P = a.newlabel("Lst"); E = a.newlabel("Lste")
            a(f"s_cmp_eq_u32 {S_LM}, 1")
            a(f"s_cbranch_scc1 {P}")
            a(text + " sc1")
            a(f"s_branch {E}")
            a.label(P)
            a(text)
            a.label(E)

    def bf16r2(d0, d1, s0, s1, tmp):
        a(f"v_cvt_pk_bf16_f32 {tmp}, {s0}, {s1}")
        a(f"v_lshlrev_b32 {d0}, 16, {tmp}")
        a(f"v_and_b32 {d1}, 0xffff0000, {tmp}")

    def bf16r1(d, s):
        a(f"v_cvt_pk_bf16_f32 {d}, {s}, {s}")
        a(f"v_lshlrev_b32 {d}, 16, {d}")

    def allreduce(regs, op, tmps, steps):
        dpp = {"x1": "quad_perm:[1,0,3,2]", "x2": "quad_perm:[2,3,0,1]", "x4": "row_half_mirror", "x8": "row_mirror", "r8": "row_ror:8", "r4": "row_ror:4"}
        for s in steps:
            if s in dpp:
                for r in regs:
                    a(f"{op}_dpp {r}, {r}, {r} {dpp[s]} row_mask:0xf bank_mask:0xf")
            else:
                ins = "v_permlane16_swap_b32" if s == "x16" else "v_permlane32_swap_b32"
                for r, t in zip(regs, tmps): a(f"v_mov_b32 {t}, {r}")
                for r, t in zip(regs, tmps): a(f"{ins} {r}, {t}")
                for r, t in zip(regs, tmps): a(f"{op} {r}, {r}, {t}")
    FULL = ["x1", "x2", "x4", "x8", "x16", "x32"]

    def sexpr(dst, terms, const=0, tmp="s94"):
        first = True
        for (reg, kind, n) in terms:
            tgt = dst if first else tmp
            if kind == "shl":
                if n == 0: a(f"s_mov_b32 {tgt}, {reg}")
                else: a(f"s_lshl_b32 {tgt}, {reg}, {n}")
            else: a(f"s_mul_i32 {tgt}, {reg}, {n}")
            if not first: a(f"s_add_u32 {dst}, {dst}, {tmp}")
            first = False
        if const: a(f"s_add_u32 {dst}, {dst}, {const}")

    def gate_lc(valA, valB, vz, vt):
        a(f"s_mul_i32 s99, {S_B}, {valB - valA}")
        a(f"s_add_u32 s99, s99, {valA}")
        spin_lds(F_LC, "s99", vz, vt)

    def get_tag():
        a(f"v_readfirstlane_b32 {S_EP}, v3")
        a(f"s_add_u32 {S_EP}, {S_EP}, 1")
        a(f"s_mul_i32 {S_TAG}, {S_EP}, 0x9E3779B1")

    def unit_voffs(pitch_shift=None, pitch=None, d0="v24", d1="v25"):
        a("v_lshrrev_b32 v3, 3, v0")
        a("v_bfe_u32 v4, v0, 4, 1")
        a("v_lshlrev_b32 v4, 1, v4")
        a("v_and_b32 v5, 7, v0")
        a("v_xor_b32 v4, v4, v5")
        a("v_lshlrev_b32 v4, 4, v4")
        if pitch_shift is not None: a(f"v_lshlrev_b32 v6, {pitch_shift}, v3")
        else: a(f"v_mul_u32_u24 v6, {pitch}, v3")
        a(f"v_add_u32 {d0}, v6, v4")
        a(f"v_xor_b32 {d1}, 64, {d0}")

    def strip_voff(pitch, d):
        a("v_lshrrev_b32 v6, 2, v0")
        a(f"v_mul_u32_u24 {d}, {pitch}, v6")
        a("v_bfe_u32 v6, v0, 5, 1")
        a("v_lshlrev_b32 v6, 1, v6")
        a("v_and_b32 v7, 3, v0")
        a("v_xor_b32 v6, v6, v7")
        a(f"v_lshl_add_u32 {d}, v6, 4, {d}")

    a.label(f"{NAME}_kernel")
    a(f"s_cmp_ge_u32 {S_WG}, 256")
    a("s_cbranch_scc1 L_end")
    a("s_load_dwordx16 s[16:31], s[0:1], 0")
    a("s_load_dwordx8 s[32:39], s[0:1], 64")
    a("s_load_dwordx4 s[40:43], s[0:1], 96")
    stamp(0)
    if cfg.probe == 3: a("s_memrealtime s[62:63]")
    a("v_lshrrev_b32 v1, 6, v0")
    a("v_and_b32 v0, 63, v0")
    a(f"v_readfirstlane_b32 {S_W}, v1")
    a(f"s_and_b32 {S_X}, {S_WG}, 7")
    a(f"s_lshr_b32 {S_LOC}, {S_WG}, 3")
    a(f"s_cmp_lt_u32 {S_LOC}, 8")
    a(f"s_cselect_b32 {S_B}, 1, 0")
    a(f"s_cselect_b32 s90, 0, 8")
    a(f"s_sub_u32 {S_SPL}, {S_LOC}, s90")
    a(f"s_cselect_b32 s91, 4, 12") if False else None
    a(f"s_cmp_lt_u32 {S_LOC}, 8")
    a(f"s_cselect_b32 s91, 4, 12")
    a(f"s_cselect_b32 s94, 0, 4")
    a(f"s_cmp_ge_u32 {S_SPL}, s91")
    a(f"s_cselect_b32 {S_BT}, 1, 0")
    a(f"s_mul_i32 s90, {S_BT}, s91")
    a(f"s_sub_u32 {S_SP}, {S_SPL}, s90")
    a(f"s_add_u32 {S_SP}, {S_SP}, s94")
    a(f"s_lshr_b32 {S_KQ}, {S_LOC}, 3")
    a(f"s_and_b32 {S_CB}, {S_LOC}, 7")
    a(f"s_mov_b32 {S_SPIN}, {cfg.spin}")
    a(f"s_mov_b32 {S_LM}, {1 if cfg.local == 1 else 2}")
    a(f"s_cmp_lg_u32 {S_W}, 8")
    a("s_cbranch_scc1 L_worker")

    SLC = "s95"; SOFF = "s96"
    unit_voffs(pitch=6144, d0="v20", d1="v21")
    a(f"s_and_b32 s90, {S_SPL}, 3")
    a(f"s_mul_i32 {SOFF}, s90, {128*6144}")
    a(f"s_lshr_b32 s90, {S_SPL}, 2")
    a(f"s_lshl_b32 s94, {S_X}, 2")
    a("s_add_u32 s94, s94, 16")
    a(f"s_lshl_b32 s91, {S_X}, 1")
    a("s_sub_u32 s91, s91, 4")
    a(f"s_cmp_ge_u32 {S_SPL}, 16")
    a("s_cselect_b32 s94, s91, s94")
    a("s_add_u32 s90, s90, s94")
    a("s_lshl_b32 s90, s90, 7")
    a(f"s_add_u32 {SOFF}, {SOFF}, s90")
    a(f"s_mov_b32 m0, {L_MR}")
    a("s_waitcnt lgkmcnt(0)")
    srd(44, 36, 512*3072*2)
    a(f"s_cmp_lt_u32 {S_LOC}, 24")
    a("s_cbranch_scc1 L_ld_nourg")
    for i in range(16):
        a(f"buffer_load_dwordx4 v{20 + (i&1)}, s[44:47], {SOFF} offen nt lds")
        if i < 15:
            a(f"s_add_u32 {SOFF}, {SOFF}, {8*6144}")
            a("s_add_u32 m0, m0, 0x400")
    a.label("L_ld_nourg")
    if cfg.prio: a("s_setprio 3")
    a("s_barrier")
    stamp(1)
    srd(12, 42, W_USED)
    srd(52, 18, 2*8*32768*128*2)
    srd(56, 20, 2*8*32768*128*2)
    srd(60, 24, 4096*512*2)
    a("v_mov_b32 v10, 0")
    a("v_lshrrev_b32 v3, 4, v0")
    a("v_and_b32 v4, 15, v0")
    a("v_xor_b32 v5, v4, v3")
    a("v_lshlrev_b32 v5, 4, v5")
    a("v_lshl_add_u32 v26, v3, 8, v5")
    a("v_xor_b32 v27, 64, v26")
    a("v_xor_b32 v28, 0x80, v26")
    a("v_xor_b32 v29, 0xc0, v26")
    a("v_lshlrev_b32 v5, 1, v3")
    a("v_xor_b32 v5, v4, v5")
    a("v_lshlrev_b32 v5, 4, v5")
    a("v_lshl_add_u32 v30, v3, 8, v5")
    a("v_xor_b32 v31, 0x80, v30")
    a(f"s_mul_i32 s91, {S_B}, {(NK_B - NK_A) * 256}")
    a(f"s_add_u32 s91, s91, {NK_A * 256}")
    a(f"s_mul_i32 s90, {S_SP}, s91")
    a(f"s_mul_i32 s91, {S_B}, {512 * 256}")
    a("s_add_u32 s90, s90, s91")
    sexpr("s98", [(S_BT, "shl", 26), (S_X, "shl", 23), ("s90", "shl", 0)], (28672 - 512) * 256)
    unit_voffs(pitch_shift=10)

    def lc_write(val, off=F_LC):
        a(f"v_mov_b32 v11, {val}")
        a(f"ds_write_b32 v10, v11 offset:{off}")
    def seg(name, variants, srdn, step, iters, ldsbase):
        if ldsbase is not None: a(f"s_mov_b32 m0, {ldsbase}")
        a(f"s_mov_b32 s97, {iters}")
        a.label(name)
        for v in variants:
            a(f"buffer_load_dwordx4 {v}, s[{srdn}:{srdn+3}], {SOFF} offen nt lds")
            a(f"s_add_u32 {SOFF}, {SOFF}, {step}")
            a("s_add_u32 m0, m0, 0x400")
        a("s_sub_u32 s97, s97, 1")
        a("s_cmp_lg_u32 s97, 0")
        a(f"s_cbranch_scc1 {name}")
    def drain(end, ks):
        for k in ks:
            a(f"s_waitcnt vmcnt({k})")
            lc_write(end - k)
    def seg4(name, variants, srdn, iters, ldsbase, D=D):
        if ldsbase is not None: a(f"s_mov_b32 m0, {ldsbase}")
        a(f"s_mov_b32 s97, {iters}")
        a.label(name)
        for i, v in enumerate(variants):
            a(f"buffer_load_dwordx4 {v}, s[{srdn}:{srdn+3}], {SOFF} offen offset:{1024*i} nt lds")
        a(f"s_add_u32 {SOFF}, {SOFF}, 0x1000")
        a("s_add_u32 m0, m0, 0x1000")
        a(f"s_add_u32 {SLC}, {SLC}, 4")
        a(f"v_mov_b32 v11, {SLC}")
        a(f"s_waitcnt vmcnt({D-4})")
        a(f"ds_write_b32 v10, v11 offset:{F_LC}")
        a("s_sub_u32 s97, s97, 1")
        a("s_cmp_lg_u32 s97, 0")
        a(f"s_cbranch_scc1 {name}")
    WO_OFF = [(S_X, "shl", 19), (S_KQ, "shl", 17), (S_CB, "shl", 7)]

    a(f"s_cmp_eq_u32 {S_B}, 0")
    a("s_cbranch_scc1 L_ld_A")
    if cfg.kstart == 0:
        spin_lds(F_EC, 4, "v10", "v12")
        spin_lds(F_3, 2, "v10", "v12", sleep=False)
    elif cfg.kstart == 1:
        spin_lds(F_QF, 2, "v10", "v12", sleep=False)
    else:
        pass
    stamp(2)
    a(f"s_mov_b32 {SLC}, {KB_B - (D - 4)}")
    a(f"s_mov_b32 {SOFF}, s98")
    seg4("L_ld_kB", ["v26", "v27", "v28", "v29"], 52, NK_B // 16, L_K)
    a(f"s_mov_b32 {SOFF}, s98")
    seg4("L_ld_vB", ["v30", "v30", "v31", "v31"], 56, NK_B // 16, L_V)
    stamp(3)
    sexpr(SOFF, WO_OFF)
    a(f"ds_read_b32 v12, v10 offset:{F_KC}")
    a("s_waitcnt lgkmcnt(0)")
    a("v_readfirstlane_b32 s91, v12")
    a("s_cmp_ge_i32 s91, 4")
    a("s_cbranch_scc0 L_ld_Bslow")
    seg("L_ld_woB", ["v24", "v25"], 60, 8192, 8, L_WO)
    drain(KB_B + NK_B // 2 + 16, [k for k in (48, 40, 32, 24, 16) if k < D + 12])
    stamp(4)
    a("s_branch L_ld_fin")
    a.label("L_ld_Bslow")
    drain(KB_B + NK_B // 2, [k for k in (32, 24, 16, 8) if k < D - 4] + [0])
    stamp(4)
    spin_lds(F_KC, 4, "v10", "v12")
    seg("L_ld_woB2", ["v24", "v25"], 60, 8192, 8, L_WO)
    a.label("L_ld_fin")
    a("s_waitcnt vmcnt(0)")
    lc_write(1, F_WOL)
    stamp(5)
    dump_stamps(6)
    a("s_endpgm")
    a.label("L_ld_A")
    DA = cfg.DA
    a(f"s_cmp_ge_u32 {S_SPL}, 16")
    a("s_cbranch_scc1 L_ld_urg")
    spin_lds(F_1, 2, "v10", "v12", sleep=False)
    if cfg.slow:
        a(f"s_mov_b32 m0, {L_MR}")
        a("s_nop 0")
        for i in range(2 * cfg.slow):
            a(f"buffer_load_dwordx4 v{20 + (i&1)}, s[44:47], {SOFF} offen nt lds")
            a(f"s_add_u32 {SOFF}, {SOFF}, {8*6144}")
            a("s_add_u32 m0, m0, 0x400")
            if i & 1: a("s_waitcnt vmcnt(0)")
        seg("L_ld_mr", ["v20", "v21"], 44, 8*6144, 8 - cfg.slow, None)
    else:
        seg("L_ld_mr", ["v20", "v21"], 44, 8*6144, 8, L_MR)
    a("s_branch L_ld_kgo")
    a.label("L_ld_urg")
    a("s_waitcnt vmcnt(0)")
    lc_write(1, F_MRL)
    spin_lds(F_PM, 4, "v10", "v12", sleep=False)
    a.label("L_ld_kgo")
    DA1 = cfg.DA1 or DA
    a(f"s_mov_b32 {SLC}, {-(DA1 - 4)}")
    a(f"s_mov_b32 {SOFF}, s98")
    n0 = (DA1 - 4 + 3) // 4
    assert 0 < n0 < NK_A // 16
    seg4("L_ld_kA0", ["v26", "v27", "v28", "v29"], 52, n0, L_K, DA1)
    lc_write(1, F_MRL)
    seg4("L_ld_kA", ["v26", "v27", "v28", "v29"], 52, NK_A // 16 - n0, None, DA1)
    stamp(2)
    a(f"s_mov_b32 {SOFF}, s98")
    if DA > DA1:
        assert (DA - DA1) % 4 == 0
        a(f"s_mov_b32 m0, {L_V}")
        a("s_nop 0")
        for it in range((DA - DA1) // 4):
            for i, v in enumerate(["v30", "v30", "v31", "v31"]):
                a(f"buffer_load_dwordx4 {v}, s[56:59], {SOFF} offen offset:{1024*i} nt lds")
            a(f"s_add_u32 {SOFF}, {SOFF}, 0x1000")
            a("s_add_u32 m0, m0, 0x1000")
        seg4("L_ld_vA", ["v30", "v30", "v31", "v31"], 56, NK_A // 16 - 4 - (DA - DA1) // 4, None, DA)
    else:
        seg4("L_ld_vA", ["v30", "v30", "v31", "v31"], 56, NK_A // 16 - 4, L_V, DA)
    spin_lds(F_EC, 4, "v10", "v12")
    seg4("L_ld_vA2", ["v30", "v30", "v31", "v31"], 56, 4, None, DA)
    stamp(3)
    drain(NK_A // 2, [k for k in (32, 24, 16, 8) if k < DA - 4] + [0])
    stamp(4)
    spin_lds(F_KC, 4, "v10", "v12")
    sexpr(SOFF, WO_OFF)
    seg("L_ld_woA", ["v24", "v25"], 60, 8192, 8, L_WO)
    a("s_branch L_ld_fin")

    a.label("L_worker")
    a(f"s_cmp_lg_u32 {S_W}, 4")
    a("s_cbranch_scc1 L_wk2")
    a("v_mov_b32 v10, 0")
    for r in range(12, 16): a(f"v_mov_b32 v{r}, 0")
    a("v_lshlrev_b32 v1, 2, v0")
    a("v_lshlrev_b32 v2, 4, v0")
    a("ds_write_b32 v1, v10")
    a(f"ds_write_b128 v2, v[12:15] offset:{L_ZERO}")
    if cfg.probe >= 10: a(f"ds_write_b32 v10, v10 offset:{L_PRB}")
    if cfg.local == 1:
        a("v_mov_b32 v11, 1")
        a(f"ds_write_b32 v10, v11 offset:{F_LM}")
    a.label("L_wk2")
    a("s_waitcnt lgkmcnt(0)")
    srd(12, 42, W_USED)
    srd(44, 16, 2048)
    srd(48, 34, 2048)
    a(f"s_sub_u32 s97, {S_W}, 5")
    a("s_and_b32 s97, s97, 1")
    a("s_lshl_b32 s90, s97, 10")
    a(f"s_and_b32 s94, {S_SPL}, 3")
    a("s_lshl_b32 s94, s94, 8")
    a("s_add_u32 s94, s94, s90")
    a("v_lshlrev_b32 v1, 4, v0")
    a("v_lshlrev_b32 v2, 2, v0")
    a(f"s_cmp_lt_u32 {S_W}, 5")
    a("s_cbranch_scc1 L_wk2b")
    a(f"s_cmp_eq_u32 {S_W}, 7")
    a("s_cbranch_scc1 L_wk2b")
    a("buffer_load_dword v9, v2, s[48:51], s94 offen")
    a("buffer_load_dwordx4 v[4:7], v1, s[44:47], s90 offen")
    a(f"s_lshr_b32 s94, {S_SPL}, 1")
    a("s_and_b32 s94, s94, 3")
    a("s_lshl_b32 s94, s94, 8")
    a("s_add_u32 s94, s94, s90")
    a("buffer_load_dword v8, v2, s[44:47], s94 offen")
    a.label("L_wk2b")
    a("v_mov_b32 v2, 0")
    a(f"buffer_load_dword v3, v2, {WSRD}, 0 offen sc1")
    a(f"s_cmp_lg_u32 {S_W}, 7")
    a("s_cbranch_scc1 L_wk3")
    if cfg.local == 2:
        srd(60, 40, 256)
        a("s_getreg_b32 s90, hwreg(HW_REG_XCC_ID)")
        a("s_and_b32 s90, s90, 7")
        a("s_mul_i32 s90, s90, 6")
        a("s_lshl_b64 s[26:27], 1, s90")
        a(f"s_lshl_b32 s91, {S_X}, 5")
        a("s_add_u32 s91, s91, 8")
        a("v_mov_b32 v18, s91")
        a("v_mov_b32 v16, s26")
        a("v_mov_b32 v17, s27")
        a("s_mov_b64 exec, 1")
        a("buffer_atomic_add_x2 v[16:17], v18, s[60:63], 0 offen sc1")
        a("s_mov_b64 exec, -1")
    if cfg.touch:
        sexpr("s90", [(S_BT, "shl", 26), (S_X, "shl", 23), (S_SP, "shl", 16)], 28672*256)
        a("s_load_dword s78, s[18:19], s90")
        a("s_load_dword s79, s[20:21], s90")
        a(f"s_lshr_b32 s91, {S_SPL}, 1")
        a("s_and_b32 s91, s91, 3")
        a("s_lshl_b32 s91, s91, 20")
        a("s_load_dword s80, s[22:23], s91")
        sexpr("s91", [(S_X, "shl", 19), (S_KQ, "shl", 17)])
        a("s_load_dword s81, s[24:25], s91")
        a(f"s_mul_i32 s91, {S_KQ}, {128*3584}")
        a("s_load_dword s82, s[28:29], s91")
        a("s_load_dword s83, s[30:31], s91")
        a(f"s_mul_i32 s91, {S_X}, {224*1024}")
        a("s_load_dword s84, s[32:33], s91")
        a("s_load_dword s85, s[38:39], 0")
    a.label("L_wk3")
    a("s_barrier")
    a(f"s_cmp_ge_u32 {S_W}, 4")
    a("s_cbranch_scc1 L_gwave")

    a.label("L_mwave")
    srd(56, 22, 512*4096*2)
    a("v_lshrrev_b32 v1, 4, v0")
    a("v_and_b32 v2, 15, v0")
    a("v_mov_b32 v4, 1")
    a("v_lshlrev_b32 v22, 1, v1")
    a("v_xor_b32 v22, v2, v22")
    a("v_lshlrev_b32 v22, 4, v22")
    a("v_lshl_add_u32 v56, v1, 13, v22")
    a("v_xor_b32 v57, 0x80, v56")
    a(f"s_lshr_b32 s90, {S_SPL}, 1")
    a(f"s_and_b32 s91, {S_SPL}, 1")
    sexpr("s96", [("s90", "shl", 20), (S_X, "shl", 10), ("s91", "shl", 9), (S_W, "shl", 18)])
    a("s_add_u32 s97, s96, 256")
    def wq_loads(lo, hi):
        for k in range(lo, hi):
            bb, i = k >> 3, k & 7
            sr = "s96" if bb == 0 else "s97"
            if k == lo or i == 0:
                a(f"s_lshl_b32 s90, {S_W}, 13")
                a(f"s_add_u32 m0, s90, {L_WQ + 32768*bb + 1024*i}")
                a("s_nop 0")
            a(f"buffer_load_dwordx4 {'v56' if (i & 2) == 0 else 'v57'}, s[56:59], {sr} offen nt lds")
            a(f"s_add_u32 {sr}, {sr}, {4*8192}")
            a("s_add_u32 m0, m0, 0x400")
    a(f"s_cmp_eq_u32 {S_B}, 0")
    a("s_cbranch_scc1 L_m_nowq")
    wq_loads(0, 16)
    a.label("L_m_nowq")
    a("v_bfe_u32 v6, v2, 2, 1")
    a(f"v_mul_u32_u24 v6, {APITCH}, v6")
    a("v_lshl_add_u32 v6, v1, 4, v6")
    a("v_bfe_u32 v16, v0, 2, 2")
    a("v_and_b32 v17, 3, v0")
    a("v_lshl_add_u32 v18, v1, 3, v16")
    a("v_lshrrev_b32 v19, 1, v17")
    a("v_and_b32 v20, 1, v17")
    a("v_and_b32 v21, 1, v1")
    a("v_lshrrev_b32 v22, 1, v16")
    a("v_lshl_or_b32 v22, v21, 1, v22")
    a("v_lshlrev_b32 v22, 1, v22")
    a(f"s_lshl_b32 s90, {S_W}, 1")
    a("v_add_u32 v23, s90, v19")
    a("v_xor_b32 v23, v23, v22")
    a("v_lshlrev_b32 v7, 7, v18")
    a("v_lshl_add_u32 v7, v23, 4, v7")
    a("v_lshl_add_u32 v7, v20, 3, v7")
    a(f"s_and_b32 s90, {S_W}, 1")
    a("s_lshl_b32 s90, s90, 1")
    a("v_add_u32 v23, s90, v19")
    a("v_lshlrev_b32 v22, 1, v21")
    a("v_xor_b32 v23, v23, v22")
    a("v_lshlrev_b32 v12, 6, v18")
    a("v_lshl_add_u32 v12, v23, 4, v12")
    a("v_lshl_add_u32 v12, v20, 3, v12")
    a("v_lshl_or_b32 v22, v21, 2, v16")
    a("v_lshlrev_b32 v22, 1, v22")
    a(f"s_lshl_b32 s90, {S_W}, 2")
    a("v_add_u32 v23, s90, v19")
    a("v_xor_b32 v24, v23, v22")
    a("v_lshlrev_b32 v25, 8, v18")
    a("v_lshl_add_u32 v25, v20, 3, v25")
    a("v_lshl_add_u32 v13, v24, 4, v25")
    a("v_add_u32 v23, 2, v23")
    a("v_xor_b32 v24, v23, v22")
    a("v_lshl_add_u32 v14, v24, 4, v25")
    a("v_bfe_u32 v8, v0, 4, 1")
    a("v_lshlrev_b32 v9, 3, v2")
    O_MOD, O_Q, O_O, O_A4, O_GU, O_DN, O_ST, T_K, T_V = "s16", "s17", "s18", "s19", "s20", "s21", "s24", "s25", "s26"
    a(f"s_mul_i32 {T_K}, {S_B}, {KB_B + NK_B // 4 - NK_A // 4}")
    a(f"s_add_u32 {T_K}, {T_K}, {NK_A // 4}")
    a(f"s_mul_i32 {T_V}, {S_B}, {KB_B + NK_B // 2 - NK_A // 2}")
    a(f"s_add_u32 {T_V}, {T_V}, {NK_A // 2}")
    sexpr(O_O, [(S_X, "shl", 16), (S_BT, "shl", 13), (S_SP, "shl", 9), (S_W, "shl", 7)], W_O)
    sexpr(O_A4, [(S_CB, "shl", 14), (S_W, "shl", 12), (S_X, "shl", 8), (S_KQ, "shl", 6)], W_A4)
    a(f"s_add_u32 {O_DN}, {O_A4}, {W_DN - W_A4}")
    a(f"s_lshr_b32 s90, {S_W}, 1")
    a(f"s_and_b32 s91, {S_W}, 1")
    sexpr(O_GU, [(S_X, "shl", 15), ("s90", "shl", 14), (S_KQ, "shl", 11), (S_CB, "shl", 8), ("s91", "shl", 7)], W_GU)
    sexpr(O_ST, [(S_X, "shl", 11), (S_BT, "shl", 10), (S_SP, "shl", 4)], W_ST)
    a(f"s_and_b32 s90, {S_SPL}, 1")
    a("s_lshl_b32 s90, s90, 1")
    a(f"s_lshr_b32 s91, {S_W}, 1")
    a("s_add_u32 s90, s90, s91")
    a(f"s_lshr_b32 s91, {S_SPL}, 1")
    a(f"s_and_b32 s97, {S_W}, 1")
    sexpr(O_Q, [(S_X, "shl", 15), ("s90", "shl", 12), ("s91", "shl", 10), ("s97", "shl", 9)], W_Q)
    a(f"s_cmp_lt_u32 {S_SPL}, 16")
    a("s_cbranch_scc1 L_m_offA")
    a(f"s_lshr_b32 s90, {S_X}, 2")
    a(f"s_and_b32 s91, {S_X}, 3")
    a(f"s_bfe_u32 s97, {S_SPL}, 0x10002")
    a(f"s_and_b32 s98, {S_SPL}, 3")
    sexpr(O_MOD, [("s90", "shl", 15), ("s91", "shl", 12), ("s98", "shl", 10), ("s97", "shl", 9), (S_W, "shl", 7)], W_MOD)
    a("s_branch L_m_offE")
    a.label("L_m_offA")
    a(f"s_lshr_b32 s90, {S_X}, 1")
    a(f"s_and_b32 s91, {S_X}, 1")
    a("s_lshl_b32 s91, s91, 2")
    a(f"s_lshr_b32 s97, {S_SPL}, 2")
    a("s_add_u32 s91, s91, s97")
    a("s_lshr_b32 s97, s91, 1")
    a("s_and_b32 s91, s91, 1")
    a(f"s_and_b32 s98, {S_SPL}, 3")
    sexpr(O_MOD, [("s90", "shl", 15), ("s97", "shl", 12), ("s98", "shl", 10), ("s91", "shl", 9), (S_W, "shl", 7)], W_MOD + 2*32768)
    a.label("L_m_offE")
    a("s_waitcnt vmcnt(0)")
    get_tag()
    a("v_mov_b32 v3, 0")
    stamp(1)

    def loadB(vaddr, nk, kstride, hoff, base=16):
        for t in range(nk):
            a(f"ds_read_b64_tr_b16 v[{base+4*t}:{base+4*t+1}], {vaddr} offset:{t*kstride}")
            a(f"ds_read_b64_tr_b16 v[{base+4*t+2}:{base+4*t+3}], {vaddr} offset:{t*kstride+hoff}")

    def gemv(act_off, nk, bbase=16, second=None):
        for t in range(nk):
            a(f"ds_read_b128 v[{32+4*t}:{35+4*t}], v6 offset:{act_off+64*t}")
        for t in range(nk):
            a(f"s_waitcnt lgkmcnt({nk-1-t})")
            c = "0" if t == 0 else "v[48:51]"
            a(f"v_mfma_f32_16x16x32_bf16 v[48:51], v[{32+4*t}:{35+4*t}], v[{bbase+4*t}:{bbase+4*t+3}], {c}")
            if second is not None:
                c = "0" if t == 0 else "v[56:59]"
                a(f"v_mfma_f32_16x16x32_bf16 v[56:59], v[{32+4*t}:{35+4*t}], v[{second+4*t}:{second+4*t+3}], {c}")

    def publish(shift, soff, local=False, second=False):
        a(f"v_lshl_add_u32 v54, v8, {shift}, v9")
        a(f"v_mov_b32 v53, {S_TAG}")
        if second: a(f"v_mov_b32 v61, {S_TAG}")
        a("v_mov_b32 v52, v48")
        if second: a("v_mov_b32 v60, v56")
        a("s_mov_b32 exec_hi, 0")
        t1 = f"buffer_store_dwordx2 v[52:53], v54, {WSRD}, {soff} offen"
        t2 = f"buffer_store_dwordx2 v[60:61], v54, {WSRD}, {soff} offen offset:128"
        if local:
            store_loc(t1)
            if second: store_loc(t2)
        else:
            a(t1 + " sc1")
            if second: a(t2 + " sc1")
        a("s_mov_b32 exec_hi, -1")

    def publish_pair(soff):
        a("v_lshlrev_b32 v54, 11, v8")
        a("v_lshl_add_u32 v54, v2, 2, v54")
        a(f"v_mov_b32 v53, {S_TAG}")
        a("v_mov_b32_dpp v52, v48 quad_perm:[1,0,3,2] row_mask:0xf bank_mask:0xf")
        a("s_mov_b32 exec_lo, 0x55555555")
        a("s_mov_b32 exec_hi, 0")
        a("v_cvt_pk_bf16_f32 v52, v48, v52")
        a(f"buffer_store_dwordx2 v[52:53], v54, {WSRD}, {soff} offen sc1")
        a("s_mov_b64 exec, -1")

    a(f"s_cmp_lg_u32 {S_B}, 0")
    a("s_cbranch_scc1 L_m_B")
    spin_lds(F_1, 2, "v3", "v5")
    spin_lds(F_MRL, 1, "v3", "v5")
    a(f"v_add_u32 v10, {L_MR}, v7")
    loadB("v10", 4, 4096, 512)
    gemv(L_ACT1, 4)
    arrive(F_EC, "v3", "v4")
    publish(14, O_MOD)
    arrive(F_PM, "v3", "v4")
    stamp(2)
    a("s_branch L_m_s3")
    a.label("L_m_B")
    a("s_waitcnt vmcnt(0)")
    arrive(F_WQ, "v3", "v4")
    a("v_bfe_u32 v16, v0, 2, 2")
    a("v_and_b32 v17, 3, v0")
    a("v_lshl_add_u32 v18, v1, 3, v16")
    a("v_lshrrev_b32 v19, 1, v17")
    a("v_and_b32 v20, 1, v17")
    a("v_and_b32 v21, 1, v1")
    a("v_lshl_or_b32 v22, v21, 2, v16")
    a("v_lshlrev_b32 v22, 1, v22")
    a("v_lshlrev_b32 v25, 8, v18")
    a("v_lshl_add_u32 v25, v20, 3, v25")
    a(f"s_lshr_b32 s90, {S_W}, 1")
    a("s_lshl_b32 s90, s90, 15")
    a(f"s_add_u32 s90, s90, {L_WQ}")
    a("v_add_u32 v25, s90, v25")
    a(f"s_and_b32 s91, {S_W}, 1")
    a("s_lshl_b32 s91, s91, 3")
    a("v_add_u32 v19, s91, v19")
    for e in range(4):
        a(f"v_add_u32 v23, {2*e}, v19")
        a("v_xor_b32 v23, v23, v22")
        a(f"v_lshl_add_u32 v{28+e}, v23, 4, v25")
    spin_lds(F_WQ, 4, "v3", "v5", sleep=False)
    for e in range(4):
        loadB(f"v{28+e}", 4, 8192, 1024, base=64 + 16*e)
    get_mode("v3", "v5")
    a("s_waitcnt lgkmcnt(0)")
    arrive(F_EC, "v3", "v4")
    a("v_lshl_add_u32 v54, v8, 14, v9")
    a(f"v_mov_b32 v53, {S_TAG}")
    spin_lds(F_2, 2, "v3", "v5", sleep=False)
    for t in range(4):
        a(f"ds_read_b128 v[{32+4*t}:{35+4*t}], v6 offset:{L_ACT2+64*t}")
    for t in range(4):
        a(f"s_waitcnt lgkmcnt({3-t})")
        for e in range(4):
            c = "0" if t == 0 else f"v[{16+4*e}:{19+4*e}]"
            a(f"v_mfma_f32_16x16x32_bf16 v[{16+4*e}:{19+4*e}], v[{32+4*t}:{35+4*t}], v[{64+16*e+4*t}:{67+16*e+4*t}], {c}")
    a("s_mov_b32 exec_hi, 0")
    for e in range(4):
        a(f"v_mov_b32 v{56+2*e}, v{16+4*e}")
        a(f"v_mov_b32 v{57+2*e}, v53")
    if cfg.local == 2:
        P = a.newlabel("Lst"); E = a.newlabel("Lste")
        a(f"s_cmp_eq_u32 {S_LM}, 1")
        a(f"s_cbranch_scc1 {P}")
        for e in range(4): a(f"buffer_store_dwordx2 v[{56+2*e}:{57+2*e}], v54, {WSRD}, {O_Q} offen offset:{128*e} sc1")
        a(f"s_branch {E}")
        a.label(P)
        for e in range(4): a(f"buffer_store_dwordx2 v[{56+2*e}:{57+2*e}], v54, {WSRD}, {O_Q} offen offset:{128*e}")
        a.label(E)
    else:
        for e in range(4): a(f"buffer_store_dwordx2 v[{56+2*e}:{57+2*e}], v54, {WSRD}, {O_Q} offen offset:{128*e}" + (" sc1" if cfg.local == 0 else ""))
    a("s_mov_b32 exec_hi, -1")
    arrive(F_PQ, "v3", "v4")
    stamp(3)
    mark(10, "v3")
    a.label("L_m_s3")
    get_mode("v3", "v5")
    T_ST, T_N = "s27", "s28"
    a(f"s_lshl_b32 s90, {S_B}, 1")
    a(f"s_sub_u32 s90, 4, s90")
    a(f"s_mul_i32 {T_ST}, {S_W}, s90")
    a(f"s_min_u32 s91, {S_W}, 2")
    a(f"s_add_u32 {T_ST}, {T_ST}, s91")
    a(f"s_cmp_lt_u32 {S_W}, 2")
    a(f"s_addc_u32 {T_N}, s90, 0")
    a("s_mov_b64 s[30:31], -1")
    a(f"s_cmp_eq_u32 {T_N}, 3")
    a("s_cselect_b32 s31, 0xffff, s31")
    a(f"s_cmp_eq_u32 {T_N}, 2")
    a("s_cselect_b32 s31, 0, s31")
    a("s_mov_b32 s33, 0")
    a(f"s_cmp_eq_u32 {T_N}, 5")
    a("s_cselect_b32 s32, 0xffff, 0")
    a("v_xor_b32 v10, v1, v2")
    a("v_lshlrev_b32 v10, 4, v10")
    a("v_lshl_add_u32 v10, v2, 8, v10")
    a(f"s_lshl_b32 s90, {T_ST}, 12")
    a(f"s_add_u32 s90, s90, {L_K}")
    a("v_add_u32 v112, s90, v10")
    a("v_xor_b32 v113, 64, v112")
    a("v_xor_b32 v114, 0x80, v112")
    a("v_xor_b32 v115, 0xc0, v112")
    a("v_and_b32 v10, 3, v2")
    a(f"v_mul_u32_u24 v10, {APITCH}, v10")
    a("v_lshl_add_u32 v116, v1, 4, v10")
    a("v_cmp_eq_u32 s[34:35], 1, v1")
    a("v_cmp_eq_u32 s[36:37], 2, v1")
    a("v_cmp_eq_u32 s[38:39], 3, v1")
    for r in range(80, 100): a(f"v_mov_b32 v{r}, 0")
    NEG = "s29"
    a(f"s_mov_b32 {NEG}, 0xff800000")
    spin_lds(F_3, 2, "v3", "v5", sleep=False)
    spin_lds(F_LC, T_K, "v3", "v5", sleep=False)
    stamp(4)
    mark(11, "v3")
    def k_reads(tt, base):
        for t in range(4):
            a(f"ds_read_b128 v[{base+4*t}:{base+4*t+3}], v{112+t} offset:{4096*tt}")
    def qk_mfma(tt, base):
        acc = f"v[{80+4*tt}:{83+4*tt}]"
        for t in range(4):
            c = "0" if t == 0 else acc
            a(f"v_mfma_f32_16x16x32_bf16 {acc}, v[{16+4*t}:{19+4*t}], v[{base+4*t}:{base+4*t+3}], {c}")
    for t in range(4):
        a(f"ds_read_b128 v[{16+4*t}:{19+4*t}], v116 offset:{L_Q+64*t}")
    k_reads(0, 32)
    k_reads(1, 48)
    a(f"s_cmp_eq_u32 {T_N}, 2")
    a("s_cbranch_scc1 L_qk_n2")
    k_reads(2, 64)
    a("s_waitcnt lgkmcnt(8)")
    qk_mfma(0, 32)
    a(f"s_cmp_eq_u32 {T_N}, 3")
    a("s_cbranch_scc1 L_qk_n3")
    k_reads(3, 32)
    a("s_waitcnt lgkmcnt(8)")
    qk_mfma(1, 48)
    a(f"s_cmp_eq_u32 {T_N}, 4")
    a("s_cbranch_scc1 L_qk_n4")
    k_reads(4, 48)
    a("s_waitcnt lgkmcnt(8)")
    qk_mfma(2, 64)
    a("s_waitcnt lgkmcnt(4)")
    qk_mfma(3, 32)
    a("s_waitcnt lgkmcnt(0)")
    qk_mfma(4, 48)
    a("s_branch L_qk_done")
    a.label("L_qk_n4")
    a("s_waitcnt lgkmcnt(4)")
    qk_mfma(2, 64)
    a("s_waitcnt lgkmcnt(0)")
    qk_mfma(3, 32)
    a("s_branch L_qk_done")
    a.label("L_qk_n3")
    a("s_waitcnt lgkmcnt(4)")
    qk_mfma(1, 48)
    a("s_waitcnt lgkmcnt(0)")
    qk_mfma(2, 64)
    a("s_branch L_qk_done")
    a.label("L_qk_n2")
    a("s_waitcnt lgkmcnt(4)")
    qk_mfma(0, 32)
    a("s_waitcnt lgkmcnt(0)")
    qk_mfma(1, 48)
    a.label("L_qk_done")
    arrive(F_KC, "v3", "v4")
    a("s_nop 7")
    for r in range(4): a(f"v_cndmask_b32 v{48+r}, v{80+r}, v{84+r}, s[34:35]")
    for r in range(4): a(f"v_cndmask_b32 v{48+r}, v{48+r}, v{88+r}, s[36:37]")
    for r in range(4): a(f"v_cndmask_b32 v{48+r}, v{48+r}, v{92+r}, s[38:39]")
    a(f"s_mov_b32 s94, {SCALE:#x}")
    for (d, sr) in ((20, 96), (16, 48)):
        bf16r2(f"v{d}", f"v{d+1}", f"v{sr}", f"v{sr+1}", "v32")
        bf16r2(f"v{d+2}", f"v{d+3}", f"v{sr+2}", f"v{sr+3}", "v33")
    for r in range(8): a(f"v_mul_f32 v{16+r}, s94, v{16+r}")
    for d in (16, 20):
        bf16r2(f"v{d}", f"v{d+1}", f"v{d}", f"v{d+1}", "v32")
        bf16r2(f"v{d+2}", f"v{d+3}", f"v{d+2}", f"v{d+3}", "v33")
    a(f"v_mov_b32 v34, {NEG}")
    for r in range(4): a(f"v_cndmask_b32 v{16+r}, v34, v{16+r}, s[30:31]")
    for r in range(4): a(f"v_cndmask_b32 v{20+r}, v34, v{20+r}, s[32:33]")
    for r in range(4): a(f"v_max_f32 v{24+r}, v{16+r}, v{20+r}")
    allreduce(["v24", "v25", "v26", "v27"], "v_max_f32", ["v28", "v29", "v30", "v31"], FULL)
    a(f"s_lshl_b32 s90, {S_W}, 4")
    a("v_mov_b32 v10, s90")
    a("s_mov_b64 s[92:93], exec")
    a("s_mov_b64 exec, 1")
    a(f"ds_write_b128 v10, v[24:27] offset:{L_MX}")
    a(f"ds_add_u32 v3, v4 offset:{F_MB1}")
    a("s_mov_b64 exec, s[92:93]")
    spin_lds(F_MB1, 4, "v3", "v5", sleep=False)
    for w in range(4):
        a(f"ds_read_b128 v[{32+4*w}:{35+4*w}], v3 offset:{L_MX+16*w}")
    a("s_waitcnt lgkmcnt(0)")
    for r in range(4):
        a(f"v_max_f32 v{24+r}, v{32+r}, v{36+r}")
        a(f"v_max_f32 v{28+r}, v{40+r}, v{44+r}")
    for r in range(4):
        a(f"v_max_f32 v{24+r}, v{24+r}, v{28+r}")
    a(f"s_mov_b32 s94, {LOG2E:#x}")
    for r in range(8): a(f"v_sub_f32 v{16+r}, v{16+r}, v{24+(r&3)}")
    for r in range(8): a(f"v_mul_f32 v{16+r}, s94, v{16+r}")
    for r in range(8): a(f"v_exp_f32 v{16+r}, v{16+r}")
    a("v_cvt_pk_bf16_f32 v28, v16, v17")
    a("v_cvt_pk_bf16_f32 v29, v18, v19")
    a("v_cvt_pk_bf16_f32 v30, v20, v21")
    a("v_cvt_pk_bf16_f32 v31, v22, v23")
    a(f"s_lshl_b32 s90, {T_ST}, 5")
    a(f"s_add_u32 s90, s90, {L_P}")
    a("v_lshl_add_u32 v10, v0, 1, s90")
    a("s_mov_b64 exec, s[30:31]")
    a("ds_write_b16 v10, v28")
    a(f"ds_write_b16_d16_hi v10, v28 offset:{PPITCH}")
    a(f"ds_write_b16 v10, v29 offset:{2*PPITCH}")
    a(f"ds_write_b16_d16_hi v10, v29 offset:{3*PPITCH}")
    a(f"s_cmp_lg_u32 {T_N}, 5")
    a("s_cbranch_scc1 L_p_w1")
    a("s_mov_b64 exec, s[32:33]")
    a("ds_write_b16 v10, v30 offset:128")
    a(f"ds_write_b16_d16_hi v10, v30 offset:{PPITCH+128}")
    a(f"ds_write_b16 v10, v31 offset:{2*PPITCH+128}")
    a(f"ds_write_b16_d16_hi v10, v31 offset:{3*PPITCH+128}")
    a.label("L_p_w1")
    a("s_mov_b64 exec, -1")
    arrive(F_MB2, "v3", "v4")
    for r in range(4): a(f"v_add_f32 v{16+r}, v{16+r}, v{20+r}")
    allreduce(["v16", "v17", "v18", "v19"], "v_add_f32", ["v28", "v29", "v30", "v31"], FULL)
    a(f"s_lshl_b32 s90, {S_W}, 4")
    a("v_mov_b32 v10, s90")
    a("s_mov_b64 s[92:93], exec")
    a("s_mov_b64 exec, 1")
    a(f"ds_write_b128 v10, v[16:19] offset:{L_LS}")
    a(f"ds_add_u32 v3, v4 offset:{F_MB3}")
    a("s_mov_b64 exec, s[92:93]")
    a(f"s_cmp_lg_u32 {S_W}, 0")
    a("s_cbranch_scc1 L_m_pv")
    spin_lds(F_MB3, 4, "v3", "v5", sleep=False)
    a("v_lshlrev_b32 v10, 2, v0")
    a("s_mov_b64 exec, 15")
    for w in range(4):
        a(f"ds_read_b32 v{16+w}, v10 offset:{L_LS+16*w}")
        a(f"ds_read_b32 v{20+w}, v10 offset:{L_MX+16*w}")
    a("s_waitcnt lgkmcnt(0)")
    a("v_add_f32 v16, v16, v17")
    a("v_add_f32 v18, v18, v19")
    a("v_max_f32 v20, v20, v21")
    a("v_max_f32 v22, v22, v23")
    a("v_add_f32 v26, v16, v18")
    a("v_max_f32 v24, v20, v22")
    a(f"v_mov_b32 v25, {S_TAG}")
    a(f"v_mov_b32 v27, {S_TAG}")
    a("v_lshlrev_b32 v10, 8, v0")
    store_loc(f"buffer_store_dwordx4 v[24:27], v10, {WSRD}, {O_ST} offen")
    a("s_mov_b64 exec, -1")
    a.label("L_m_pv")
    stamp(5)
    a("v_lshrrev_b32 v10, 2, v2")
    a(f"v_mul_u32_u24 v10, {PPITCH}, v10")
    a("v_lshl_add_u32 v10, v1, 4, v10")
    a(f"v_add_u32 v60, {L_P}, v10")
    a(f"v_add_u32 v61, {L_V}, v13")
    a(f"v_add_u32 v62, {L_V}, v14")
    a("v_lshl_add_u32 v63, v1, 14, v9")
    a(f"v_mov_b32 v65, {S_TAG}")
    for r in range(8): a(f"v_mov_b32 v{48+r}, 0")
    spin_lds(F_MB2, 4, "v3", "v5", sleep=False)
    a(f"s_add_u32 s95, {T_K}, 8")
    a("s_mov_b32 s96, -1000")
    def pv_ensure(tagl):
        G = f"L_pv_go{tagl}"; S = f"L_pv_sp{tagl}"
        a("s_cmp_ge_i32 s96, s95")
        a(f"s_cbranch_scc1 {G}")
        a.label(S)
        a(f"ds_read_b32 v5, v3 offset:{F_LC}")
        a("s_waitcnt lgkmcnt(0)")
        a("v_readfirstlane_b32 s96, v5")
        a("s_cmp_ge_i32 s96, s95")
        a(f"s_cbranch_scc1 {G}")
        timeout()
        a(f"s_branch {S}")
        a.label(G)
    def pv_reads(b):
        a(f"ds_read_b128 v[{b}:{b+3}], v60")
        a(f"ds_read_b64_tr_b16 v[{b+4}:{b+5}], v61")
        a(f"ds_read_b64_tr_b16 v[{b+6}:{b+7}], v61 offset:1024")
        a(f"ds_read_b64_tr_b16 v[{b+8}:{b+9}], v62")
        a(f"ds_read_b64_tr_b16 v[{b+10}:{b+11}], v62 offset:1024")
        a("v_add_u32 v60, 64, v60")
        a("v_add_u32 v61, 0x2000, v61")
        a("v_add_u32 v62, 0x2000, v62")
        a("s_add_u32 s95, s95, 8")
    def pv_mfma(b):
        a(f"v_mfma_f32_16x16x32_bf16 v[48:51], v[{b}:{b+3}], v[{b+4}:{b+7}], v[48:51]")
        a(f"v_mfma_f32_16x16x32_bf16 v[52:55], v[{b}:{b+3}], v[{b+8}:{b+11}], v[52:55]")
    pv_ensure("0")
    pv_reads(16)
    a.label("L_pv_loop")
    pv_ensure("1")
    pv_reads(28)
    a("s_waitcnt lgkmcnt(5)")
    pv_mfma(16)
    pv_ensure("2")
    pv_reads(16)
    a("s_waitcnt lgkmcnt(5)")
    pv_mfma(28)
    a(f"s_cmp_le_i32 s95, {T_V}")
    a("s_cbranch_scc1 L_pv_loop")
    a("s_waitcnt lgkmcnt(0)")
    pv_mfma(16)
    stamp(6)
    a("s_nop 4")
    a("v_cvt_pk_bf16_f32 v64, v48, v52")
    store_loc(f"buffer_store_dwordx2 v[64:65], v63, {WSRD}, {O_O} offen")
    arrive(F_PO, "v3", "v4")
    stamp(7)
    mark(12, "v3")
    spin_lds(F_WOL, 1, "v3", "v5", sleep=False)
    a(f"v_add_u32 v10, {L_WO}, v7")
    loadB("v10", 4, 4096, 512)
    a("s_waitcnt lgkmcnt(0)")
    a("s_barrier")
    gemv(L_ACT4, 4)
    publish_pair(O_A4)
    arrive(F_PA, "v3", "v4")
    stamp(8)
    mark(13, "v3")
    spin_lds(F_LATE, 1, "v3", "v5")
    a(f"v_add_u32 v10, {L_DN}, v7")
    loadB("v10", 2, 4096, 512, base=64)
    a(f"s_lshr_b32 s90, {S_W}, 1")
    a("s_lshl_b32 s90, s90, 13")
    a(f"s_add_u32 s90, s90, {L_G}")
    a("v_add_u32 v11, s90, v12")
    loadB("v11", 4, 2048, 256)
    a("s_waitcnt lgkmcnt(0)")
    a("s_barrier")
    a(f"s_cmp_eq_u32 {S_CB}, 7")
    a("s_cbranch_scc1 L_m_s7")
    gemv(L_ACT6, 4)
    publish(13, O_GU, local=True)
    a.label("L_m_s7")
    arrive(F_PG, "v3", "v4")
    stamp(9)
    a("s_barrier")
    gemv(L_ACT7, 2, bbase=64)
    publish_pair(O_DN)
    arrive(F_PD, "v3", "v4")
    stamp(10)
    mark(15, "v3")
    dump_stamps(11)
    a("s_endpgm")

    def r1_block(uid, vz):
        a(f"s_sub_u32 s90, {S_W}, 4")
        a("s_lshr_b32 s91, s90, 1")
        a("s_and_b32 s94, s90, 1")
        a("s_lshl_b32 s99, s94, 8")
        a(f"s_lshl_b32 s100, {S_X}, 16")
        a("s_add_u32 s99, s99, s100")
        a(f"s_lshl_b32 s100, {S_KQ}, 14")
        a("s_add_u32 s99, s99, s100")
        a("s_lshl_b32 s100, s91, 13")
        a("s_add_u32 s99, s99, s100")
        a(f"s_add_u32 s99, s99, {W_O}")
        a(f"s_lshl_b32 s100, {S_X}, 11")
        a("s_lshl_b32 s90, s91, 10")
        a("s_add_u32 s100, s100, s90")
        a(f"s_lshl_b32 s90, {S_KQ}, 8")
        a("s_add_u32 s100, s100, s90")
        a(f"s_add_u32 s100, s100, {W_ST}")
        a("v_lshrrev_b32 v48, 5, v0")
        a("v_and_b32 v49, 31, v0")
        a("v_lshlrev_b32 v50, 12, v48")
        a("v_lshl_add_u32 v50, v49, 3, v50")
        a("v_and_b32 v51, 7, v0")
        a("v_lshl_add_u32 v51, v48, 3, v51")
        a("v_lshlrev_b32 v51, 4, v51")
        a(f"s_mul_i32 s91, s91, {APITCH}")
        a("s_lshl_b32 s94, s94, 7")
        a("s_add_u32 s91, s91, s94")
        a("v_bfe_u32 v52, v0, 4, 1")
        a("v_lshlrev_b32 v52, 6, v52")
        a("v_and_b32 v53, 15, v0")
        a("v_lshl_add_u32 v52, v53, 1, v52")
        a("v_lshl_add_u32 v52, v48, 5, v52")
        a("v_add_u32 v52, s91, v52")
        loads = [f"buffer_load_dwordx4 v[32:35], v51, {WSRD}, s100 offen sc1"]; tags = ["v33", "v35"]
        for i in range(8):
            loads.append(f"buffer_load_dwordx2 v[{16+2*i}:{17+2*i}], v50, {WSRD}, s99 offen offset:{512*i} sc1")
            tags.append(f"v{17+2*i}")
        after_own(F_PO, 4, vz, "v54", cfg.d_r1)
        stamp(7 if uid != "q" else 4)
        poll(loads, tags, "v54", sleep=cfg.rsl_l)
        if uid == "q": stamp(10)
        a("v_mov_b32 v55, v32")
        allreduce(["v55"], "v_max_f32", ["v56"], ["x1", "x2", "x4", "x32"])
        a(f"s_mov_b32 s94, {LOG2E:#x}")
        a("v_sub_f32 v56, v32, v55")
        for i in range(4): a(f"v_lshlrev_b32 v{36+2*i}, 16, v{16+2*i}"); a(f"v_and_b32 v{37+2*i}, 0xffff0000, v{16+2*i}")
        a("v_mul_f32 v56, s94, v56")
        a("v_exp_f32 v56, v56")
        for i in range(4, 8): a(f"v_lshlrev_b32 v{36+2*i}, 16, v{16+2*i}"); a(f"v_and_b32 v{37+2*i}, 0xffff0000, v{16+2*i}")
        a("v_mul_f32 v57, v56, v34")
        allreduce(["v57"], "v_add_f32", ["v58"], ["x1", "x2", "x4", "x32"])
        a("v_rcp_f32 v57, v57")
        a("v_mov_b32 v58, 0")
        a("v_mov_b32 v59, 0")
        a("v_mul_f32 v56, v56, v57")
        for i in range(8):
            a(f"v_fmac_f32_dpp v58, v56, v{36+2*i} row_newbcast:{i} row_mask:0xf bank_mask:0xf")
            a(f"v_fmac_f32_dpp v59, v56, v{37+2*i} row_newbcast:{i} row_mask:0xf bank_mask:0xf")
        a("v_permlane32_swap_b32 v58, v59")
        a("v_add_f32 v58, v58, v59")
        a("v_cvt_pk_bf16_f32 v58, v58, v58")
        a(f"ds_write_b16 v52, v58 offset:{L_ACT4}")
        a("s_waitcnt lgkmcnt(0)")

    a.label("L_gwave")
    a(f"s_cmp_eq_u32 {S_W}, 4")
    a("s_cbranch_scc1 L_slice")
    a(f"s_cmp_eq_u32 {S_W}, 7")
    a("s_cbranch_scc1 L_aux")

    SB = "s97"
    a("s_mov_b64 s[36:37], s[42:43]")
    a("v_lshlrev_b32 v2, 2, v0")
    a("v_mov_b32 v10, 1")
    a(f"s_mul_i32 s98, {SB}, {APITCH}")
    a("v_add_u32 v11, s98, v2")
    a("v_mov_b32 v19, 0")
    a("s_waitcnt vmcnt(0)")
    stamp(1)
    a("v_lshlrev_b32 v12, 16, v9")
    a("v_and_b32 v13, 0xffff0000, v9")
    a(f"s_mov_b32 s94, {LOG2E:#x}")
    for r in (12, 13): a(f"v_mul_f32 v{r+2}, s94, v{r}")
    for r in (12, 13): a(f"v_exp_f32 v{r+2}, -v{r+2}")
    for r in (12, 13): a(f"v_add_f32 v{r+2}, 1.0, v{r+2}")
    for r in (12, 13): a(f"v_rcp_f32 v{r+2}, v{r+2}")
    for r in (12, 13): a(f"v_mul_f32 v{r}, v{r}, v{r+2}")
    a("v_cvt_pk_bf16_f32 v12, v12, v13")
    a(f"ds_write_b32 v11, v12 offset:{L_ACT1}")
    arrive(F_1, "v19", "v10")
    get_tag()
    a("v_mov_b32 v3, 0")

    def ln_finish(mean, var, x0, x1, tmp):
        bf16r2(mean, var, mean, var, tmp)
        a(f"s_mov_b32 s94, {EPS:#x}")
        a(f"v_add_f32 {var}, s94, {var}")
        bf16r1(var, var)
        a(f"v_sqrt_f32 {var}, {var}")
        a(f"v_sub_f32 {x0}, {x0}, {mean}")
        a(f"v_sub_f32 {x1}, {x1}, {mean}")
        bf16r1(var, var)
        a(f"v_rcp_f32 {var}, {var}")
        bf16r2(x0, x1, x0, x1, tmp)
        a(f"v_mul_f32 {x0}, {x0}, {var}")
        a(f"v_mul_f32 {x1}, {x1}, {var}")
        bf16r2(x0, x1, x0, x1, tmp)

    def quarter_gather(chunkA, chunkB, qreg, pre=None, sample=False):
        for (ch, sreg) in ((chunkA, "s90"), (chunkB, "s99")):
            sexpr(sreg, [(SB, "shl", 14), (qreg, "shl", 12)], W_MOD + ch*32768)
        loads = []; tags = []
        for i in range(4):
            loads.append(f"buffer_load_dwordx4 v[{16+4*i}:{19+4*i}], v1, {WSRD}, s90 offen offset:{1024*i} sc1")
            loads.append(f"buffer_load_dwordx4 v[{32+4*i}:{35+4*i}], v1, {WSRD}, s99 offen offset:{1024*i} sc1")
            tags += [f"v{17+4*i}", f"v{19+4*i}", f"v{33+4*i}", f"v{35+4*i}"]
        if pre: pre()
        poll(loads, tags, "v50", sample=sample)
        for (base, d0, d1) in ((16, "v14", "v15"), (32, "v48", "v49")):
            a(f"v_add_f32 {d0}, v{base}, v{base+4}")
            a(f"v_add_f32 {d1}, v{base+2}, v{base+6}")
            a(f"v_add_f32 v50, v{base+8}, v{base+12}")
            a(f"v_add_f32 v51, v{base+10}, v{base+14}")
            a(f"v_add_f32 {d0}, {d0}, v50")
            a(f"v_add_f32 {d1}, {d1}, v51")
            bf16r2(d0, d1, d0, d1, "v50")

    def modulate(x0, x1, sc0, sc1, sh0, sh1, dst, tmp):
        a(f"v_mul_f32 {x0}, {x0}, {sc0}")
        a(f"v_mul_f32 {x1}, {x1}, {sc1}")
        bf16r2(x0, x1, x0, x1, tmp)
        a(f"v_add_f32 {x0}, {x0}, {sh0}")
        a(f"v_add_f32 {x1}, {x1}, {sh1}")
        a(f"v_cvt_pk_bf16_f32 {dst}, {x0}, {x1}")

    a(f"s_cmp_eq_u32 {S_B}, 0")
    a("s_cbranch_scc1 L_q_qg")
    for i in range(4):
        a(f"v_lshlrev_b32 v{16+2*i}, 16, v{4+i}")
        a(f"v_and_b32 v{17+2*i}, 0xffff0000, v{4+i}")
    a("v_add_f32 v24, v16, v17")
    a("v_add_f32 v25, v18, v19")
    a("v_add_f32 v26, v20, v21")
    a("v_add_f32 v27, v22, v23")
    a("v_add_f32 v24, v24, v25")
    a("v_add_f32 v26, v26, v27")
    a("v_add_f32 v24, v24, v26")
    allreduce(["v24"], "v_add_f32", ["v28"], FULL)
    a(f"s_mov_b32 s94, {INV512:#x}")
    a("v_mul_f32 v24, s94, v24")
    for i in range(8): a(f"v_sub_f32 v{16+i}, v{16+i}, v24")
    a("v_mul_f32 v25, v16, v16")
    for i in range(1, 8): a(f"v_fmac_f32 v25, v{16+i}, v{16+i}")
    allreduce(["v25"], "v_add_f32", ["v28"], FULL)
    a("v_mul_f32 v25, s94, v25")
    a("v_lshlrev_b32 v12, 16, v8")
    a("v_and_b32 v13, 0xffff0000, v8")
    ln_finish("v24", "v25", "v12", "v13", "v28")
    a(f"s_lshr_b32 s100, {S_SPL}, 1")
    quarter_gather(0, 1, "s100", pre=lambda: a(f"s_sleep {cfg.d_h}"))
    a("v_add_f32 v48, 1.0, v48")
    a("v_add_f32 v49, 1.0, v49")
    bf16r2("v48", "v49", "v48", "v49", "v50")
    modulate("v12", "v13", "v48", "v49", "v14", "v15", "v16", "v50")
    a(f"ds_write_b32 v11, v16 offset:{L_ACT2}")
    arrive(F_2, "v3", "v10")
    stamp(2)
    a(f"s_lshr_b32 s90, {S_SPL}, 1")
    a(f"s_and_b32 s91, {S_SPL}, 1")
    sexpr("s99", [(S_X, "shl", 15), (SB, "shl", 14), ("s90", "shl", 12), ("s91", "shl", 9)], W_Q)
    sexpr("s100", [(S_X, "shl", 12), (SB, "shl", 11), (S_SPL, "shl", 8)], W_QF)
    a("v_lshlrev_b32 v54, 3, v0")
    a("s_mov_b32 exec_hi, 0")
    loads = []; tags = []
    for i in range(4):
        loads.append(f"buffer_load_dwordx4 v[{16+4*i}:{19+4*i}], v1, {WSRD}, s99 offen offset:{1024*i} sc1")
        tags += [f"v{17+4*i}", f"v{19+4*i}"]
    get_mode("v3", "v50")
    after_own(F_PQ, 4, "v3", "v50", cfg.d_q)
    poll(loads, tags, "v50", sleep=0)
    a("v_add_f32 v48, v16, v20")
    a("v_add_f32 v49, v18, v22")
    a("v_add_f32 v50, v24, v28")
    a("v_add_f32 v51, v26, v30")
    a("v_add_f32 v48, v48, v50")
    a("v_add_f32 v49, v49, v51")
    a(f"v_mov_b32 v53, {S_TAG}")
    a("v_cvt_pk_bf16_f32 v52, v48, v49")
    store_loc(f"buffer_store_dwordx2 v[52:53], v54, {WSRD}, s100 offen")
    a("s_mov_b64 exec, -1")
    arrive(F_QF, "v3", "v10")
    a.label("L_q_qg")
    sexpr("s90", [(S_X, "shl", 12), (S_BT, "shl", 11), (SB, "shl", 10)], W_QF)
    a("v_lshrrev_b32 v54, 5, v0")
    a(f"v_mul_u32_u24 v54, {APITCH}, v54")
    a("v_and_b32 v55, 31, v0")
    a("v_lshl_add_u32 v54, v55, 3, v54")
    a(f"s_mul_i32 s100, {SB}, {2*APITCH}")
    a("v_add_u32 v54, s100, v54")
    ldA = f"buffer_load_dwordx4 v[16:19], v1, {WSRD}, s90 offen sc1"
    ldB = f"buffer_load_dwordx4 v[20:23], v1, {WSRD}, s90 offen sc1"
    a(f"s_cmp_eq_u32 {S_B}, 0")
    a("s_cbranch_scc1 L_q_qA")
    after_own(F_QF, 2, "v3", "v50", cfg.d_q)
    a("s_branch L_q_qP")
    a.label("L_q_qA")
    if cfg.quiet: spin_lds(F_LC, cfg.quiet, "v3", "v50")
    a.label("L_q_qP")
    a(ldA)
    a(f"s_sleep {cfg.qsl2}")
    a.label("L_q_loop")
    a(ldB)
    a("s_waitcnt vmcnt(1)")
    a(f"v_xor_b32 v50, {S_TAG}, v17")
    a(f"v_bitop3_b32 v50, v50, v19, {S_TAG} bitop3:0xf6")
    a("v_cmp_ne_u32 vcc, 0, v50")
    a("s_cbranch_vccz L_q_gotA")
    timeout()
    a(ldA)
    a("s_waitcnt vmcnt(1)")
    a(f"v_xor_b32 v50, {S_TAG}, v21")
    a(f"v_bitop3_b32 v50, v50, v23, {S_TAG} bitop3:0xf6")
    a("v_cmp_ne_u32 vcc, 0, v50")
    a("s_cbranch_vccnz L_q_loop")
    a("v_mov_b32 v24, v20")
    a("v_mov_b32 v25, v22")
    a("s_branch L_q_got")
    a.label("L_q_gotA")
    a("v_mov_b32 v24, v16")
    a("v_mov_b32 v25, v18")
    a.label("L_q_got")
    a(f"ds_write_b64 v54, v[24:25] offset:{L_Q}")
    arrive(F_3, "v3", "v10")
    stamp(3)
    a("s_waitcnt vmcnt(0)")
    if cfg.g_late: gate_lc(cfg.g_late, cfg.g_late * NK_B // NK_A, "v3", "v50")
    sexpr("s90", [(SB, "shl", 11), (S_KQ, "shl", 9)], W_MODF + 3*4096)
    a("s_add_u32 s99, s90, 4096")
    a("v_lshlrev_b32 v54, 3, v0")
    poll([f"buffer_load_dwordx2 v[16:17], v54, {WSRD}, s90 offen sc1",
          f"buffer_load_dwordx2 v[18:19], v54, {WSRD}, s99 offen sc1"], ["v17", "v19"], "v50", sleep=8)
    a("v_lshlrev_b32 v66, 16, v16")
    a("v_and_b32 v67, 0xffff0000, v16")
    a("v_lshlrev_b32 v48, 16, v18")
    a("v_and_b32 v49, 0xffff0000, v18")
    a("v_add_f32 v48, 1.0, v48")
    a("v_add_f32 v49, 1.0, v49")
    bf16r2("v64", "v65", "v48", "v49", "v50")
    r1_block("q", "v3")
    stamp(5)
    a("s_barrier")
    sexpr("s99", [(S_X, "shl", 10), (SB, "shl", 9)], W_X1S)
    sexpr("s90", [(S_X, "shl", 12), (SB, "shl", 11), (S_KQ, "shl", 9)], W_X1P)
    a("v_lshlrev_b32 v16, 3, v0")
    a("v_and_b32 v17, 31, v0")
    a("v_lshlrev_b32 v17, 4, v17")
    after_own(F_PX, 1, "v3", "v50", cfg.d_x1)
    stamp(8)
    poll([f"buffer_load_dwordx4 v[24:27], v17, {WSRD}, s99 offen sc1",
          f"buffer_load_dwordx2 v[20:21], v16, {WSRD}, s90 offen sc1"], ["v21", "v25", "v27"], "v50", sleep=cfg.rsl_l)
    stamp(9)
    allreduce(["v24", "v26"], "v_add_f32", ["v28", "v29"], ["x1", "x2", "x4", "x8", "x16"])
    a(f"s_mov_b32 s94, {INV512:#x}")
    a("v_mul_f32 v24, s94, v24")
    a("v_mul_f32 v26, s94, v26")
    a("v_lshlrev_b32 v12, 16, v20")
    a("v_fma_f32 v26, -v24, v24, v26")
    a("v_and_b32 v13, 0xffff0000, v20")
    a("v_max_f32 v26, 0, v26")
    ln_finish("v24", "v26", "v12", "v13", "v30")
    modulate("v12", "v13", "v64", "v65", "v66", "v67", "v16", "v30")
    a(f"ds_write_b32 v11, v16 offset:{L_ACT6}")
    a(f"s_mul_i32 s94, {S_KQ}, 448")
    sexpr("s90", [(S_X, "shl", 15), (SB, "shl", 13), ("s94", "shl", 0)], W_GU, tmp="s99")
    a("s_add_u32 s94, s90, 4096")
    a("s_add_u32 s99, s90, 16384")
    a("s_add_u32 s100, s90, 20480")
    a("s_waitcnt lgkmcnt(0)")
    stamp(6)
    a("s_barrier")
    a("v_lshlrev_b32 v16, 3, v0")
    a("v_mov_b32 v40, 0")
    a("v_lshlrev_b32 v17, 1, v0")
    a("v_add_u32 v17, s98, v17")
    a("s_mov_b32 exec_lo, -1")
    a("s_mov_b32 exec_hi, 0x00ffffff")
    loads = []; tags = []
    for wh in range(2):
        for k6 in range(4):
            sr = [["s90", "s94"], ["s99", "s100"]][wh][k6 >> 1]
            rb = 20 + 8*wh + 2*k6
            loads.append(f"buffer_load_dwordx2 v[{rb}:{rb+1}], v16, {WSRD}, {sr} offen offset:{2048*(k6&1)} sc1")
            tags.append(f"v{rb+1}")
    after_own(F_PG, 4, "v3", "v50", cfg.d_gu)
    poll(loads, tags, "v50", sleep=cfg.rsl_l)
    a("v_add_f32 v36, v20, v22")
    a("v_add_f32 v37, v24, v26")
    a("v_add_f32 v38, v28, v30")
    a("v_add_f32 v39, v32, v34")
    a("v_add_f32 v36, v36, v37")
    a("v_add_f32 v38, v38, v39")
    bf16r2("v36", "v38", "v36", "v38", "v50")
    a("v_mul_f32 v36, v36, v38")
    a("v_cvt_pk_bf16_f32 v40, v36, v36")
    a("s_mov_b64 exec, -1")
    a(f"ds_write_b16 v17, v40 offset:{L_ACT7}")
    a("s_waitcnt lgkmcnt(0)")
    stamp(7)
    a("s_barrier")
    dump_stamps(11)
    a("s_endpgm")

    a.label("L_slice")
    srd(48, 38, 2048)
    a("v_lshlrev_b32 v7, 4, v0")
    a("v_and_b32 v1, 3, v0")
    a("v_bfe_u32 v2, v0, 4, 1")
    a("v_bfe_u32 v4, v0, 3, 1")
    a("v_lshrrev_b32 v5, 5, v0")
    a("v_lshlrev_b32 v6, 2, v1")
    a("v_lshl_add_u32 v6, v2, 1, v6")
    a("v_add_u32 v6, v6, v4")
    a("v_lshlrev_b32 v8, 10, v5")
    a("v_lshl_add_u32 v8, v6, 1, v8")
    a(f"s_lshl_b32 s90, {S_LOC}, 5")
    a("buffer_load_ushort v9, v8, s[44:47], s90 offen")
    a("v_lshlrev_b32 v10, 4, v5")
    a("v_add_u32 v10, v10, v6")
    a("v_lshlrev_b32 v10, 2, v10")
    a("v_lshlrev_b32 v11, 1, v1")
    a("v_add_u32 v11, v11, v2")
    a("v_lshlrev_b32 v12, 11, v5")
    a("v_lshl_add_u32 v98, v11, 3, v12")
    a("v_lshlrev_b32 v99, 9, v5")
    a("v_lshlrev_b32 v12, 10, v5")
    a("v_lshl_add_u32 v97, v11, 2, v12")
    sexpr("s22", [(S_X, "shl", 12), (S_LOC, "shl", 6)], W_X1P)
    sexpr("s23", [(S_X, "shl", 10), (S_LOC, "shl", 4)], W_X1S)
    a(f"s_lshl_b32 s24, {S_LOC}, 5")
    a(f"s_lshl_b32 s17, {S_LOC}, 12")
    a("v_cmp_eq_u32 s[26:27], 1, v4")
    a("v_mov_b32 v100, 0x3f80")
    a("v_mov_b32 v101, 0x3f800000")
    a("s_waitcnt vmcnt(0)")
    get_tag()
    a("v_mov_b32 v3, 0")
    a("v_lshlrev_b32 v102, 16, v9")
    get_mode("v3", "v20")
    stamp(1)

    def part_loads(base, rb0=16, setup=True):
        if setup: a(f"s_add_u32 s20, s17, {base}")
        loads = []; tags = []
        for i in range(4):
            rb = rb0 + 4*i
            loads.append(f"buffer_load_dwordx4 v[{rb}:{rb+3}], v7, {WSRD}, s20 offen offset:{1024*i} sc1")
            tags += [f"v{rb+1}", f"v{rb+3}"]
        return loads, tags
    def part_loads_atomic(base):
        a(f"s_add_u32 s20, s17, {base}")
        loads = []; tags = []
        for r in range(16, 32): loads.append(f"v_mov_b32 v{r}, 0")
        for i in range(4):
            rb = 16 + 4*i
            for hh in range(2):
                loads.append(f"buffer_atomic_add_x2 v[{rb+2*hh}:{rb+2*hh+1}], v7, {WSRD}, s20 offen offset:{1024*i + 8*hh} sc0 sc1")
            tags += [f"v{rb+1}", f"v{rb+3}"]
        return loads, tags
    def part_dot(rb0):
        for b in range(2):
            for (k, (off, sel)) in enumerate(((0, "v100"), (0, "v101"), (2, "v100"), (2, "v101"))):
                a(f"v_dot2_f32_bf16 v{32+4*b+k}, v{rb0+8*b+off}, {sel}, 0")
        for b in range(2):
            for (k, (off, sel)) in enumerate(((0, "v100"), (0, "v101"), (2, "v100"), (2, "v101"))):
                a(f"v_dot2_f32_bf16 v{32+4*b+k}, v{rb0+4+8*b+off}, {sel}, v{32+4*b+k}")
    def part_sum(dot=True):
        if dot: part_dot(16)
        for c in range(4): a(f"v_permlane32_swap_b32 v{32+c}, v{36+c}")
        for c in range(4): a(f"v_add_f32 v{32+c}, v{32+c}, v{36+c}")
        a("v_permlane16_swap_b32 v32, v34")
        a("v_permlane16_swap_b32 v33, v35")
        a("v_add_f32 v32, v32, v34")
        a("v_add_f32 v33, v33, v35")
        a("v_cndmask_b32 v36, v32, v33, s[26:27]")
        a("v_cndmask_b32 v37, v33, v32, s[26:27]")
        a("v_add_f32_dpp v36, v37, v36 row_ror:8 row_mask:0xf bank_mask:0xf")
        a("v_add_f32_dpp v40, v36, v36 row_shl:4 row_mask:0xf bank_mask:0x5")
        a("v_add_f32_dpp v40, v36, v36 row_shr:4 row_mask:0xf bank_mask:0xa")
    def resid(gate):
        bf16r1("v40", "v40")
        a(f"v_mul_f32 v40, v40, {gate}")
        bf16r1("v40", "v40")
        a("v_add_f32 v102, v102, v40")
        bf16r1("v102", "v102")
    def make_pair(dst):
        a("v_mov_b32_dpp v41, v102 row_ror:8 row_mask:0xf bank_mask:0xf")
        a(f"v_cvt_pk_bf16_f32 {dst}, v102, v41")
    PUBM = "0x000f000f"

    l1, t1 = part_loads(W_A4)
    spin_lds(F_GA, 1, "v3", "v15")
    a(f"ds_read_b32 v103, v10 offset:{L_GA}")
    a(f"ds_read_b32 v104, v10 offset:{L_GB}")
    a("s_waitcnt lgkmcnt(0)")
    r1_block("s", "v3")
    a(f"v_mov_b32 v43, {S_TAG}")
    a(f"v_mov_b32 v45, {S_TAG}")
    a(f"v_mov_b32 v47, {S_TAG}")
    a("s_barrier")
    after_own(F_PA, 4, "v3", "v15", cfg.d_s5)
    stamp(2)
    if cfg.dbl:
        poll2(lambda rb: part_loads(0, rb, setup=False), "v15", "s5", part_dot)
        stamp(3)
        part_sum(dot=False)
    else:
        poll(l1, t1, "v15")
        stamp(3)
        part_sum()
    resid("v103")
    make_pair("v42")
    a("v_mul_f32 v46, v102, v102")
    a("v_mov_b32 v44, v102")
    a(f"s_mov_b32 exec_lo, {PUBM}")
    a(f"s_mov_b32 exec_hi, {PUBM}")
    store_loc(f"buffer_store_dwordx2 v[42:43], v98, {WSRD}, s22 offen")
    a("s_mov_b64 exec, -1")
    allreduce(["v44", "v46"], "v_add_f32", ["v48", "v49"], ["x1", "x2", "r8", "x16"])
    a("s_mov_b32 exec_lo, 1")
    a("s_mov_b32 exec_hi, 1")
    store_loc(f"buffer_store_dwordx4 v[44:47], v99, {WSRD}, s23 offen")
    a("s_mov_b64 exec, -1")
    a("v_mov_b32 v15, 1")
    arrive(F_PX, "v3", "v15")
    stamp(4)
    mark(14, "v3")
    a(f"s_and_b32 s90, {S_LOC}, 7")
    a(f"s_cmp_lg_u32 s90, {S_X}")
    a("s_cbranch_scc1 L_slice_nf")
    a("s_barrier")
    a("s_barrier")
    l1, t1 = part_loads_atomic(W_DN) if cfg.atom8 else part_loads(W_DN)
    after_own(F_PD, 4, "v3", "v15", cfg.d_s8)
    if cfg.dbl and not cfg.atom8:
        a("s_waitcnt vmcnt(0)")
        poll2(lambda rb: part_loads(0, rb, setup=False), "v15", "s8", part_dot)
        part_sum(dot=False)
    else:
        poll(l1, t1, "v15")
        part_sum()
    resid("v104")
    make_pair("v42")
    a(f"s_mov_b32 exec_lo, {PUBM}")
    a(f"s_mov_b32 exec_hi, {PUBM}")
    a("buffer_store_dword v42, v97, s[48:51], s24 offen")
    a(f"s_cmp_lg_u32 {S_WG}, 0")
    a("s_cbranch_scc1 L_slice_end")
    a("s_mov_b64 exec, 1")
    a(f"v_mov_b32 v24, {S_EP}")
    a("v_mov_b32 v21, 0")
    a(f"buffer_store_dword v24, v21, {WSRD}, 0 offen sc1")
    a.label("L_slice_end")
    if cfg.probe == 1:
        a("s_sleep 94")
        a("s_sleep 94")
    if cfg.probe >= 10:
        a(f"ds_read_b32 v20, v3 offset:{L_PRB}")
        a("s_waitcnt lgkmcnt(0)")
        a("v_readfirstlane_b32 s22, v20")
        a("s_mov_b32 s24, 100000")
        a.label("L_probe")
        a("s_memrealtime s[20:21]")
        a("s_waitcnt lgkmcnt(0)")
        a("s_sub_u32 s24, s24, 1")
        a("s_cbranch_scc1 L_probe_e")
        a("s_sub_u32 s23, s20, s22")
        a("s_cmp_lt_u32 s23, 2000")
        a("s_cbranch_scc1 L_probe")
        a.label("L_probe_e")
    if cfg.probe == 3:
        a("s_add_u32 s22, s62, 2500")
        a.label("L_probe")
        a("s_memrealtime s[20:21]")
        a("s_waitcnt lgkmcnt(0)")
        a("s_sub_u32 s23, s20, s22")
        a("s_cmp_lt_i32 s23, 0")
        a("s_cbranch_scc1 L_probe")
    if cfg.probe == 2:
        a("s_memrealtime s[20:21]")
        a("s_waitcnt lgkmcnt(0)")
        a("s_add_u32 s22, s20, 500")
        a.label("L_probe")
        a("s_memrealtime s[20:21]")
        a("s_waitcnt lgkmcnt(0)")
        a("s_sub_u32 s23, s20, s22")
        a("s_cmp_lt_i32 s23, 0")
        a("s_cbranch_scc1 L_probe")
    a("s_mov_b64 exec, -1")
    stamp(5)
    dump_stamps(6)
    a("s_endpgm")
    a.label("L_slice_nf")
    a("s_barrier")
    a("s_barrier")
    dump_stamps(5)
    a("s_endpgm")

    a.label("L_aux")
    srd(44, 28, 512*1792*2)
    srd(48, 30, 512*1792*2)
    srd(52, 32, 1792*512*2)
    a("v_mov_b32 v10, 1")
    sexpr("s18", [(S_X, "mul", 224*1024), (S_KQ, "mul", 56*1024), (S_CB, "shl", 7)])
    sexpr("s19", [(S_KQ, "mul", 128*3584), (S_X, "mul", 448), (S_CB, "shl", 6)])
    a("s_waitcnt vmcnt(0)")
    get_tag()
    strip_voff(3584, "v64")
    unit_voffs(pitch_shift=10, d0="v66", d1="v67")
    a("v_mov_b32 v3, 0")
    stamp(1)
    if cfg.g_piece:
        Lq = a.newlabel("Lgx")
        a(f"s_cmp_lg_u32 {S_B}, 0")
        a(f"s_cbranch_scc1 {Lq}")
        spin_lds(F_LC, cfg.g_piece, "v3", "v50")
        a.label(Lq)
    if cfg.local == 2:
        L = a.newlabel("Lxc"); E = a.newlabel("Lxce")
        srd(60, 40, 256)
        a(f"s_lshl_b32 s91, {S_X}, 5")
        a("s_add_u32 s91, s91, 8")
        a("v_mov_b32 v18, s91")
        a("s_getreg_b32 s90, hwreg(HW_REG_XCC_ID)")
        a("s_and_b32 s90, s90, 7")
        a("s_mul_i32 s90, s90, 6")
        a("s_lshl_b64 s[26:27], 1, s90")
        a("s_mov_b64 exec, 1")
        a.label(L)
        a("buffer_load_dwordx2 v[20:21], v18, s[60:63], 0 offen sc1")
        a("s_waitcnt vmcnt(0)")
        a("v_readfirstlane_b32 s20, v20")
        a("v_readfirstlane_b32 s21, v21")
        a("s_mov_b64 s[22:23], s[20:21]")
        a("s_mov_b32 s90, 0")
        for k in range(8):
            a("s_and_b32 s91, s22, 63")
            a("s_add_u32 s90, s90, s91")
            if k < 7: a("s_lshr_b64 s[22:23], s[22:23], 6")
        a("s_cmp_ge_u32 s90, 32")
        a(f"s_cbranch_scc1 {E}")
        timeout()
        a("s_sleep 2")
        a(f"s_branch {L}")
        a.label(E)
        a("s_lshl_b64 s[22:23], s[26:27], 5")
        a("s_cmp_eq_u64 s[20:21], s[22:23]")
        a("s_cselect_b32 s90, 1, 2")
        a("v_mov_b32 v16, s90")
        a(f"ds_write_b32 v3, v16 offset:{F_LM}")
        a("s_mov_b64 exec, -1")
    stamp(2)
    a(f"s_cmp_lg_u32 {S_B}, 0")
    a("s_cbranch_scc1 L_aux_ga")
    a(f"s_cmp_ge_u32 {S_SPL}, 16")
    a("s_cbranch_scc1 L_aux_ga")
    a(f"s_lshr_b32 s90, {S_X}, 1")
    a(f"s_and_b32 s91, {S_X}, 1")
    a(f"s_lshr_b32 s22, {S_SPL}, 2")
    a(f"s_and_b32 s23, {S_SPL}, 3")
    sexpr("s20", [("s90", "shl", 15), ("s91", "shl", 14), ("s22", "shl", 12), ("s23", "shl", 8)], W_MOD + 2*32768)
    sexpr("s21", [("s90", "shl", 12), ("s91", "shl", 11), (S_SPL, "shl", 7)], W_MODF + 2*4096)
    a("v_lshlrev_b32 v18, 3, v0")
    a("s_mov_b32 exec_hi, 0")
    loads = []; tags = []
    for i in range(4):
        loads.append(f"buffer_load_dwordx2 v[{40+2*i}:{41+2*i}], v18, {WSRD}, s20 offen offset:{1024*i} sc1")
        tags.append(f"v{41+2*i}")
    if cfg.g_piece: spin_lds(F_LC, cfg.g_piece, "v3", "v50")
    poll(loads, tags, "v60", sleep=6, sample=(not cfg.g_piece))
    a("v_add_f32 v40, v40, v42")
    a("v_add_f32 v44, v44, v46")
    a("v_add_f32 v40, v40, v44")
    a("v_lshlrev_b32 v18, 2, v0")
    a(f"v_mov_b32 v43, {S_TAG}")
    a("v_mov_b32_dpp v42, v40 quad_perm:[1,0,3,2] row_mask:0xf bank_mask:0xf")
    a("s_mov_b32 exec_lo, 0x55555555")
    a("v_cvt_pk_bf16_f32 v42, v40, v42")
    a(f"buffer_store_dwordx2 v[42:43], v18, {WSRD}, s21 offen sc1")
    a("s_mov_b64 exec, -1")
    a.label("L_aux_ga")
    if cfg.g_late: gate_lc(cfg.g_late, cfg.g_late * NK_B // NK_A, "v3", "v50")
    sexpr("s20", [(S_LOC, "shl", 6)], W_MODF + 2*4096)
    a(f"s_add_u32 s21, s20, {3*4096}")
    a("v_bfe_u32 v16, v0, 3, 1")
    a("v_and_b32 v17, 7, v0")
    a("v_lshlrev_b32 v18, 11, v16")
    a("v_lshl_add_u32 v18, v17, 3, v18")
    a("v_and_b32 v19, 15, v0")
    a("v_lshlrev_b32 v19, 3, v19")
    a("s_mov_b64 exec, 0xffff")
    poll([f"buffer_load_dwordx2 v[40:41], v18, {WSRD}, s20 offen sc1",
          f"buffer_load_dwordx2 v[42:43], v18, {WSRD}, s21 offen sc1"], ["v41", "v43"], "v60", sleep=8)
    a("v_lshlrev_b32 v44, 16, v40")
    a("v_and_b32 v45, 0xffff0000, v40")
    a("v_lshlrev_b32 v46, 16, v42")
    a("v_and_b32 v47, 0xffff0000, v42")
    a(f"ds_write_b64 v19, v[44:45] offset:{L_GA}")
    a(f"ds_write_b64 v19, v[46:47] offset:{L_GB}")
    a("s_mov_b64 exec, -1")
    arrive(F_GA, "v3", "v10")
    r1_block("a", "v3")
    a("s_barrier")
    spin_lds(F_PA, 4, "v3", "v50", sleep=False)
    a(f"s_cmp_eq_u32 {S_CB}, 7")
    a("s_cbranch_scc1 L_aux_dn")
    a(f"s_mov_b32 m0, {L_G}")
    a("s_mov_b32 s99, 8")
    a.label("L_aux_gu")
    a("buffer_load_dwordx4 v64, s[44:47], s19 offen nt lds")
    a("s_add_u32 m0, m0, 0x2000")
    a("s_nop 0")
    a("buffer_load_dwordx4 v64, s[48:51], s19 offen nt lds")
    a("s_sub_u32 m0, m0, 0x1c00")
    a(f"s_add_u32 s19, s19, {16*3584}")
    a("s_sub_u32 s99, s99, 1")
    a("s_cmp_lg_u32 s99, 0")
    a("s_cbranch_scc1 L_aux_gu")
    a.label("L_aux_dn")
    a(f"s_mov_b32 m0, {L_DN}")
    a("s_nop 0")
    for i in range(8):
        a(f"buffer_load_dwordx4 v{66 + (i&1)}, s[52:55], s18 offen nt lds")
        a("s_add_u32 m0, m0, 0x400")
        a("s_add_u32 s18, s18, 0x2000")
    a("s_waitcnt vmcnt(0)")
    arrive(F_LATE, "v3", "v10")
    stamp(3)
    a("s_barrier")
    a("s_barrier")
    dump_stamps(4)
    a("s_endpgm")

    a.label("L_abort")
    a("s_mov_b64 exec, 1")
    a("v_mov_b32 v1, 0")
    a(f"s_lshl_b32 s90, {S_WG}, 16")
    a("s_or_b32 s90, s90, s1") if cfg.site else None
    a("v_mov_b32 v2, s90")
    a(f"s_and_b32 s90, {S_W}, 1")
    a("s_lshl_b32 s90, s90, 2")
    a("v_mov_b32 v1, s90")
    a("v_or_b32 v2, 0xde000000, v2")
    a("s_mov_b32 s44, s40")
    a("s_and_b32 s45, s41, 0xffff")
    a("s_mov_b32 s46, 256")
    a("s_mov_b32 s47, 0x20000")
    a("buffer_store_dword v2, v1, s[44:47], 0 offen")
    a.label("L_end")
    a("s_endpgm")

    hdr = open(f"cdna_kernels/{NAME}.s.ref").read().split("; Override launch")[0]
    out = hdr
    out += f"; @launch grid=(256,1,1) block=(576,1,1) lds={L_TOTAL}\n"
    out += '.amdgcn_target "amdgcn-amd-amdhsa--gfx950"\n.text\n'
    out += f".globl {NAME}_kernel\n.p2align 8\n.type {NAME}_kernel,@function\n"
    out += a.text()
    out += f""".section .rodata,"a"
.p2align 6
.amdhsa_kernel {NAME}_kernel
  .amdhsa_next_free_vgpr 128
  .amdhsa_next_free_sgpr 102
  .amdhsa_accum_offset 128
  .amdhsa_group_segment_fixed_size 0
  .amdhsa_kernarg_size 112
  .amdhsa_user_sgpr_count 2
  .amdhsa_user_sgpr_kernarg_segment_ptr 1
  .amdhsa_system_sgpr_workgroup_id_x 1
.end_amdhsa_kernel
"""
    return out

if __name__ == "__main__":
    cfg = Cfg()
    outp = sys.argv[1]
    for arg in sys.argv[2:]:
        k, v = arg.split("=")
        assert hasattr(cfg, k), k
        setattr(cfg, k, int(v))
    open(outp, "w").write(gen(cfg))
    print("wrote", outp)
```

```python
import re

TRANS = ("v_exp_f32", "v_log_f32", "v_rcp_f32", "v_rsq_f32", "v_sqrt_f32", "v_sin_f32", "v_cos_f32")

def expand(op):
    op = op.strip()
    op = op.lstrip("-")
    m = re.fullmatch(r"abs\((.*)\)", op)
    if m: op = m.group(1)
    m = re.fullmatch(r"\|(.*)\|", op)
    if m: op = m.group(1)
    m = re.fullmatch(r"([vsa])\[(\d+):(\d+)\]", op)
    if m:
        return [f"{m.group(1)}{i}" for i in range(int(m.group(2)), int(m.group(3)) + 1)]
    m = re.fullmatch(r"([vsa])(\d+)", op)
    if m: return [op]
    if op in ("vcc", "exec", "m0", "scc"): return [op]
    if op in ("vcc_lo", "vcc_hi"): return ["vcc"]
    if op in ("exec_lo", "exec_hi"): return ["exec"]
    return []

class Asm:
    def __init__(self):
        self.lines = []
        self.hist = []
        self.uid = 0
        self.nops = 0
    def label(self, name):
        self.lines.append(f"{name}:")
    def newlabel(self, base="L"):
        self.uid += 1
        return f"{base}_{self.uid}"
    def comment(self, c):
        self.lines.append(f"    ; {c}")
    def raw(self, s):
        self.lines.append(s)
    def _classify(self, text):
        t = text.split(";")[0].strip()
        parts = t.split(None, 1)
        mn = parts[0]
        ops = []
        if len(parts) > 1:
            ops = [o.strip() for o in re.split(r",(?![^\[]*\])", parts[1])]
            if ops:
                last = ops[-1].split()
                ops[-1] = last[0] if last else ""
        return mn, ops, t
    def emit(self, text):
        mn, ops, t = self._classify(text)
        isv = mn.startswith("v_")
        is_mfma = mn.startswith("v_mfma")
        is_valu = isv and not is_mfma
        is_vmem = mn.startswith(("buffer_", "global_", "flat_"))
        is_ds = mn.startswith("ds_")
        is_salu = mn.startswith("s_")
        dpp = ("_dpp" in mn) or (" quad_perm" in t) or (" row_" in t)
        writes, reads = [], []
        if is_mfma:
            writes = expand(ops[0]); reads = expand(ops[1]) + expand(ops[2]); creads = expand(ops[3])
        elif is_valu:
            if mn.startswith("v_cmp"):
                writes = expand(ops[0]); reads = sum((expand(o) for o in ops[1:]), [])
            elif mn.startswith(("v_readfirstlane", "v_readlane")):
                writes = expand(ops[0]); reads = sum((expand(o) for o in ops[1:]), [])
            elif mn.startswith(("v_permlane16_swap", "v_permlane32_swap")):
                writes = expand(ops[0]) + expand(ops[1]); reads = list(writes)
            elif mn.startswith(("v_add_co", "v_addc_co", "v_sub_co")):
                writes = expand(ops[0]) + expand(ops[1]); reads = sum((expand(o) for o in ops[2:]), [])
            else:
                writes = expand(ops[0]); reads = sum((expand(o) for o in ops[1:]), [])
                if mn.startswith(("v_fmac", "v_dot2c", "v_writelane")) or dpp:
                    reads += expand(ops[0])
                if mn.startswith("v_cndmask_b32") and len(ops) == 3:
                    reads += ["vcc"]
        elif is_vmem:
            lds = " lds" in (" " + t)
            if "load" in mn and not lds:
                writes = expand(ops[0]); reads = sum((expand(o) for o in ops[1:]), [])
            else:
                reads = sum((expand(o) for o in ops), [])
            if lds: reads += ["m0"]
        elif is_ds:
            if mn.startswith(("ds_read", "ds_bpermute", "ds_permute", "ds_swizzle")) or "_rtn" in mn:
                writes = expand(ops[0]); reads = sum((expand(o) for o in ops[1:]), [])
            else:
                reads = sum((expand(o) for o in ops), [])
        elif is_salu:
            if mn.startswith(("s_cmp", "s_cbranch", "s_branch", "s_waitcnt", "s_nop", "s_barrier", "s_sleep", "s_endpgm", "s_setprio")):
                reads = sum((expand(o) for o in ops), [])
            else:
                writes = expand(ops[0]) if ops else []
                reads = sum((expand(o) for o in ops[1:]), [])
                if "saveexec" in mn: writes += ["exec"]
        need = 0
        n = len(self.hist)
        for d in range(1, min(n, 20) + 1):
            h = self.hist[n - d]
            dist = sum(x["states"] for x in self.hist[n - d + 1:n])
            hw = set(h["writes"])
            req = 0
            if h["valu"]:
                vw = {r for r in hw if r[0] == "v"}
                sw = {r for r in hw if r[0] == "s" or r == "vcc"}
                if is_mfma and vw & set(reads + creads): req = max(req, 2)
                if dpp and vw & set(reads): req = max(req, 2)
                if mn.startswith(("v_permlane16_swap", "v_permlane32_swap")) and vw & set(reads): req = max(req, 2)
                if mn.startswith(("v_readfirstlane", "v_readlane")) and vw & set(reads): req = max(req, 1)
                if h["trans"] and is_valu and vw & set(reads): req = max(req, 1)
                if is_valu and sw & set(reads): req = max(req, 2)
                if is_vmem and sw & set(reads): req = max(req, 5)
                if mn.startswith(("v_readlane", "v_writelane")) and sw & set(reads): req = max(req, 4)
                if is_salu and sw & set(reads) and not mn.startswith("s_cbranch"): req = max(req, 1)
            if h.get("dot"):
                dw = {r for r in hw if r[0] == "v"}
                if mn.startswith("v_dot2_f32_bf16"):
                    if dw & set(expand(ops[1]) + expand(ops[2])): req = max(req, 3)
                elif (is_valu or is_mfma or is_vmem or is_ds) and (dw & set(reads + writes)): req = max(req, 3)
            if h["mfma"]:
                dw = hw
                passes = h["passes"]
                big = {2: 5, 4: 8, 8: 12, 16: 20}[passes]
                if is_mfma:
                    if dw & set(reads): req = max(req, big)
                    if dw & set(creads):
                        if set(creads) == dw: req = max(req, 2 if passes == 2 else 0)
                        else: req = max(req, {2: 4, 4: 6, 8: 10, 16: 18}[passes])
                elif (is_valu or is_vmem or is_ds) and (dw & set(reads + writes)): req = max(req, big)
                if is_valu and set(h["creads"]) & set(writes): req = max(req, {2: 1, 4: 3, 8: 7, 16: 15}[passes])
            if h["widestore"] and is_valu and set(h["reads"]) & set(writes): req = max(req, 2)
            if h["widestore"] and (is_ds or is_vmem) and set(h["reads"]) & set(w for w in writes): req = max(req, 1)
            if h["salu"] and "m0" in hw and "m0" in reads and is_vmem: req = max(req, 1)
            if req - dist > need: need = req - dist
        while need > 0:
            k = min(need, 16)
            self.lines.append(f"    s_nop {k-1}")
            self.hist.append(dict(valu=False, mfma=False, trans=False, salu=True, widestore=False, writes=[], reads=[], creads=[], passes=0, states=k))
            self.nops += 1
            need -= k
        st = 1
        if mn == "s_nop": st = int(ops[0]) + 1
        passes = 0
        if is_mfma:
            passes = 8 if "32x32" in mn else 4
        self.hist.append(dict(dot=mn.startswith("v_dot"), valu=is_valu, mfma=is_mfma, trans=mn.replace("_e32", "").replace("_e64", "") in TRANS, salu=is_salu,
                              widestore=(is_vmem and "store" in mn and ("x4" in mn or "x3" in mn)), writes=writes, reads=reads,
                              creads=(creads if is_mfma else []), passes=passes, states=st))
        self.lines.append("    " + text)
    def __call__(self, text):
        for l in text.strip().split("\n"):
            l = l.strip()
            if not l or l.startswith(";"): continue
            if l.endswith(":"): self.label(l[:-1])
            else: self.emit(l)
    def text(self):
        return "\n".join(self.lines) + "\n"
```

```python
import sys
from asmlib import Asm

NAME = "adaLN_cond__sliding_block_cached__glu_gated_bilinear__decode"

class Cfg:
    D = 40
    DA = 28
    DA1 = 0
    stamps = 0
    spin = 1 << 20
    rsl = 1
    local = 2
    touch = 1
    guwo = 0
    dnwo = 1
    bearly = 0
    mprio = 1
    warm = 1
    dbl = 1
    stag = 4
    rsl_l = 0
    g_piece = 0
    g_late = 0
    slow = 0
    nwait = 1
    qsl2 = 6
    wq1 = 4
    quiet = 0
    prio = 0
    qsl = 4
    kstart = 1
    d_h = 16
    d_q = 1
    d_r1 = 1
    d_s5 = 8
    d_x1 = 1
    d_gu = 1
    d_s8 = 2
    atom8 = 1
    probe = 0
    site = 0

(F_LC, F_1, F_2, F_3, F_EC, F_KC, F_MB1, F_MB2, F_LATE, F_PO, F_PA, F_PX, F_PG, F_PD,
 F_PM, F_PQ, F_QF, F_WQ, F_WOL, F_MRL, F_LM, F_GA, F_DN) = [4*i for i in range(23)]
L_MX = 128; L_LS = 192; L_ZERO = 256
L_ACT1 = 768; L_ACT2 = 1344; L_ACT4 = 1920; L_ACT6 = 2496; L_ACT7 = 3072
L_PRB = 7424
L_GA = 7168; L_GB = 7296
L_Q = 3648
L_P = 4736
L_X = 8192; L_C = 10240
L_K = 12288; L_V = L_K + 73728; L_TOTAL = L_V + 73728; L_MR = L_V + 57344
NK_A = 288; NK_B = 160
L_MODB = L_K; L_WQ = L_V
L_WO = L_K; L_G = L_K + 16384; L_U = L_K + 24576; L_DN = L_K + 32768
L_WO_B = L_K + 40960; L_G_B = L_K + 57344; L_DN_B = L_V + 65536
APITCH = 272; PPITCH = 592

W_EPOCH = 0
W_MOD = 0x1000
W_MODF = 0x38000
W_Q = 0x40000
W_QF = 0x88000
W_ST = 0x80000
W_O = 0x90000
W_A4 = 0x110000
W_X1P = 0x150000
W_X1S = 0x158000
W_GU = 0x160000
W_DN = 0x1A0000
W_STAMP = 0x200000
W_USED = 0x300000

LOG2E = 0x3fb8aa3b
SCALE = 0x3db504f3
EPS = 0x3727c5ac
INV512 = 0x3b000000

S_WG, S_W, S_X, S_LOC, S_B, S_SPL, S_KQ, S_CB, S_TAG, S_SPIN = "s2", "s3", "s4", "s5", "s6", "s7", "s8", "s9", "s10", "s11"
S_U = "s7"
S_BT = "s86"
S_SP = "s87"
WSRD = "s[12:15]"
S_EP = "s89"
S_LM = "s88"
PX = "s[42:43]"
S_PH = "s101"
KB_B = 0

def gen(cfg):
    a = Asm()
    D = cfg.D

    def srd(dst, plo, size):
        a(f"s_mov_b32 s{dst}, s{plo}")
        a(f"s_and_b32 s{dst+1}, s{plo+1}, 0xffff")
        a(f"s_mov_b32 s{dst+2}, {size}")
        a(f"s_mov_b32 s{dst+3}, 0x20000")

    def stamp(k):
        if cfg.stamps == 1 or (cfg.stamps == 2 and k == 0): a(f"s_memrealtime s[{64+2*k}:{65+2*k}]")

    def mark(pid, vz):
        if cfg.probe == pid:
            a("s_memrealtime s[62:63]")
            a("s_waitcnt lgkmcnt(0)")
            a("v_mov_b32 v127, s62")
            a(f"ds_max_u32 {vz}, v127 offset:{L_PRB}")

    def dump_stamps(n, final=False):
        if not cfg.stamps: return
        if cfg.stamps == 2:
            if not final: return
            a("s_memrealtime s[66:67]")
            n = 2
        a("s_waitcnt lgkmcnt(0)")
        a(f"s_mul_i32 s90, {S_WG}, 9")
        a(f"s_add_u32 s90, s90, {S_W}")
        a("s_lshl_b32 s90, s90, 7")
        a(f"s_add_u32 s90, s90, {W_STAMP}")
        a("s_mov_b64 exec, 1")
        a("v_mov_b32 v1, 0")
        for k in range(n):
            a(f"v_mov_b32 v2, s{64+2*k}")
            a(f"v_mov_b32 v3, s{65+2*k}")
            a(f"buffer_store_dwordx2 v[2:3], v1, {WSRD}, s90 offen offset:{8*k}")
            a("s_nop 1")
        a("s_waitcnt vmcnt(0)")

    sites = [0]
    def timeout():
        if cfg.site:
            sites[0] += 1
            a(f"s_mov_b32 s1, {sites[0]}")
        a(f"s_sub_u32 {S_SPIN}, {S_SPIN}, 1")
        a("s_cbranch_scc1 L_abort")

    def spin_lds(off, n, vz, vt, sleep=True):
        L = a.newlabel("Lsp"); E = a.newlabel("Lspe")
        a.label(L)
        a(f"ds_read_b32 {vt}, {vz} offset:{off}")
        a("s_waitcnt lgkmcnt(0)")
        a(f"v_readfirstlane_b32 s91, {vt}")
        a(f"s_cmp_ge_i32 s91, {n}")
        a(f"s_cbranch_scc1 {E}")
        timeout()
        if sleep: a("s_sleep 1")
        a(f"s_branch {L}")
        a.label(E)

    def arrive(off, vz, vone):
        a("s_mov_b64 s[92:93], exec")
        a("s_mov_b64 exec, 1")
        a(f"ds_add_u32 {vz}, {vone} offset:{off}")
        a("s_mov_b64 exec, s[92:93]")

    def poll(loads, tags, vacc, sleep=None, sample=False):
        if sleep is None: sleep = cfg.rsl
        L = a.newlabel("Lpl"); E = a.newlabel("Lple"); R = a.newlabel("Lplr")
        a(f"s_mov_b64 {PX}, exec")
        if sample:
            a(f"s_mov_b32 {S_PH}, 0")
            a("s_mov_b64 exec, 1")
        a.label(L)
        for ld in loads: a(ld)
        a("s_waitcnt vmcnt(0)")
        a(f"v_xor_b32 {vacc}, {S_TAG}, {tags[0]}")
        for t in tags[1:]:
            a(f"v_bitop3_b32 {vacc}, {vacc}, {t}, {S_TAG} bitop3:0xf6")
        a(f"v_cmp_ne_u32 vcc, 0, {vacc}")
        if sample:
            a(f"s_cbranch_vccnz {R}")
            a(f"s_cmp_lg_u32 {S_PH}, 0")
            a(f"s_cbranch_scc1 {E}")
            a(f"s_mov_b32 {S_PH}, 1")
            a(f"s_mov_b64 exec, {PX}")
            a(f"s_branch {L}")
            a.label(R)
        else:
            a(f"s_cbranch_vccz {E}")
        a("s_mov_b64 exec, vcc")
        timeout()
        if sleep: a(f"s_sleep {sleep}")
        a(f"s_branch {L}")
        a.label(E)
        a(f"s_mov_b64 exec, {PX}")

    def poll2(mk, vacc, uid, use):
        la, ta = mk(16); lb, tb = mk(64)
        nl = len(la)
        def check(tags):
            a(f"v_xor_b32 {vacc}, {S_TAG}, {tags[0]}")
            for t in tags[1:]: a(f"v_bitop3_b32 {vacc}, {vacc}, {t}, {S_TAG} bitop3:0xf6")
            a(f"v_cmp_ne_u32 vcc, 0, {vacc}")
        for l in la: a(l)
        a(f"s_sleep {cfg.stag}")
        a.label(f"L_p2_{uid}")
        for l in lb: a(l)
        a(f"s_waitcnt vmcnt({nl})")
        check(ta)
        a(f"s_cbranch_vccz L_p2a_{uid}")
        timeout()
        for l in la: a(l)
        a(f"s_waitcnt vmcnt({nl})")
        check(tb)
        a(f"s_cbranch_vccnz L_p2_{uid}")
        use(64)
        a(f"s_branch L_p2e_{uid}")
        a.label(f"L_p2a_{uid}")
        use(16)
        a.label(f"L_p2e_{uid}")

    def after_own(flag, n, vz, vt, dly):
        spin_lds(flag, n, vz, vt, sleep=False)
        if dly: a(f"s_sleep {dly}")

    def get_mode(vz, vt):
        if cfg.local == 2:
            spin_lds(F_LM, 1, vz, vt)
            a(f"s_mov_b32 {S_LM}, s91")

    def store_loc(text):
        if cfg.local == 0: a(text + " sc1")
        elif cfg.local == 1: a(text)
        else:
            P = a.newlabel("Lst"); E = a.newlabel("Lste")
            a(f"s_cmp_eq_u32 {S_LM}, 1")
            a(f"s_cbranch_scc1 {P}")
            a(text + " sc1")
            a(f"s_branch {E}")
            a.label(P)
            a(text)
            a.label(E)

    def bf16r2(d0, d1, s0, s1, tmp):
        a(f"v_cvt_pk_bf16_f32 {tmp}, {s0}, {s1}")
        a(f"v_lshlrev_b32 {d0}, 16, {tmp}")
        a(f"v_and_b32 {d1}, 0xffff0000, {tmp}")

    def bf16r1(d, s):
        a(f"v_cvt_pk_bf16_f32 {d}, {s}, {s}")
        a(f"v_lshlrev_b32 {d}, 16, {d}")

    def allreduce(regs, op, tmps, steps):
        dpp = {"x1": "quad_perm:[1,0,3,2]", "x2": "quad_perm:[2,3,0,1]", "x4": "row_half_mirror", "x8": "row_mirror", "r8": "row_ror:8", "r4": "row_ror:4"}
        for s in steps:
            if s in dpp:
                for r in regs:
                    a(f"{op}_dpp {r}, {r}, {r} {dpp[s]} row_mask:0xf bank_mask:0xf")
            else:
                ins = "v_permlane16_swap_b32" if s == "x16" else "v_permlane32_swap_b32"
                for r, t in zip(regs, tmps): a(f"v_mov_b32 {t}, {r}")
                for r, t in zip(regs, tmps): a(f"{ins} {r}, {t}")
                for r, t in zip(regs, tmps): a(f"{op} {r}, {r}, {t}")
    FULL = ["x1", "x2", "x4", "x8", "x16", "x32"]

    def sexpr(dst, terms, const=0, tmp="s94"):
        first = True
        for (reg, kind, n) in terms:
            tgt = dst if first else tmp
            if kind == "shl":
                if n == 0: a(f"s_mov_b32 {tgt}, {reg}")
                else: a(f"s_lshl_b32 {tgt}, {reg}, {n}")
            else: a(f"s_mul_i32 {tgt}, {reg}, {n}")
            if not first: a(f"s_add_u32 {dst}, {dst}, {tmp}")
            first = False
        if const: a(f"s_add_u32 {dst}, {dst}, {const}")

    def gate_lc(valA, valB, vz, vt):
        a(f"s_mul_i32 s99, {S_B}, {valB - valA}")
        a(f"s_add_u32 s99, s99, {valA}")
        spin_lds(F_LC, "s99", vz, vt)

    def get_tag():
        a(f"v_readfirstlane_b32 {S_EP}, v3")
        a(f"s_add_u32 {S_EP}, {S_EP}, 1")
        a(f"s_mul_i32 {S_TAG}, {S_EP}, 0x9E3779B1")

    def unit_voffs(pitch_shift=None, pitch=None, d0="v24", d1="v25"):
        a("v_lshrrev_b32 v3, 3, v0")
        a("v_bfe_u32 v4, v0, 4, 1")
        a("v_lshlrev_b32 v4, 1, v4")
        a("v_and_b32 v5, 7, v0")
        a("v_xor_b32 v4, v4, v5")
        a("v_lshlrev_b32 v4, 4, v4")
        if pitch_shift is not None: a(f"v_lshlrev_b32 v6, {pitch_shift}, v3")
        else: a(f"v_mul_u32_u24 v6, {pitch}, v3")
        a(f"v_add_u32 {d0}, v6, v4")
        a(f"v_xor_b32 {d1}, 64, {d0}")

    def strip_voff(pitch, d):
        a("v_lshrrev_b32 v6, 2, v0")
        a(f"v_mul_u32_u24 {d}, {pitch}, v6")
        a("v_bfe_u32 v6, v0, 5, 1")
        a("v_lshlrev_b32 v6, 1, v6")
        a("v_and_b32 v7, 3, v0")
        a("v_xor_b32 v6, v6, v7")
        a(f"v_lshl_add_u32 {d}, v6, 4, {d}")

    a.label(f"{NAME}_kernel")
    a(f"s_cmp_ge_u32 {S_WG}, 256")
    a("s_cbranch_scc1 L_end")
    a("s_load_dwordx16 s[16:31], s[0:1], 0")
    a("s_load_dwordx8 s[32:39], s[0:1], 64")
    a("s_load_dwordx4 s[40:43], s[0:1], 96")
    stamp(0)
    if cfg.probe == 3: a("s_memrealtime s[62:63]")
    a("v_lshrrev_b32 v1, 6, v0")
    a("v_and_b32 v0, 63, v0")
    a(f"v_readfirstlane_b32 {S_W}, v1")
    a(f"s_and_b32 {S_X}, {S_WG}, 7")
    a(f"s_lshr_b32 {S_LOC}, {S_WG}, 3")
    a(f"s_cmp_lt_u32 {S_LOC}, 8")
    a(f"s_cselect_b32 {S_B}, 1, 0")
    a(f"s_cselect_b32 s90, 0, 8")
    a(f"s_sub_u32 {S_SPL}, {S_LOC}, s90")
    a(f"s_cselect_b32 s91, 4, 12") if False else None
    a(f"s_cmp_lt_u32 {S_LOC}, 8")
    a(f"s_cselect_b32 s91, 4, 12")
    a(f"s_cselect_b32 s94, 0, 4")
    a(f"s_cmp_ge_u32 {S_SPL}, s91")
    a(f"s_cselect_b32 {S_BT}, 1, 0")
    a(f"s_mul_i32 s90, {S_BT}, s91")
    a(f"s_sub_u32 {S_SP}, {S_SPL}, s90")
    a(f"s_add_u32 {S_SP}, {S_SP}, s94")
    a(f"s_lshr_b32 {S_KQ}, {S_LOC}, 3")
    a(f"s_and_b32 {S_CB}, {S_LOC}, 7")
    a(f"s_mov_b32 {S_SPIN}, {cfg.spin}")
    a(f"s_mov_b32 {S_LM}, {1 if cfg.local == 1 else 2}")
    a(f"s_cmp_lg_u32 {S_W}, 8")
    a("s_cbranch_scc1 L_worker")

    SLC = "s95"; SOFF = "s96"
    unit_voffs(pitch=6144, d0="v20", d1="v21")
    a(f"s_and_b32 s90, {S_SPL}, 3")
    a(f"s_mul_i32 {SOFF}, s90, {128*6144}")
    a(f"s_lshr_b32 s90, {S_SPL}, 2")
    a(f"s_lshl_b32 s94, {S_X}, 2")
    a("s_add_u32 s94, s94, 16")
    a(f"s_lshl_b32 s91, {S_X}, 1")
    a("s_sub_u32 s91, s91, 4")
    a(f"s_cmp_ge_u32 {S_SPL}, 16")
    a("s_cselect_b32 s94, s91, s94")
    a("s_add_u32 s90, s90, s94")
    a("s_lshl_b32 s90, s90, 7")
    a(f"s_add_u32 {SOFF}, {SOFF}, s90")
    a(f"s_mov_b32 m0, {L_MR}")
    a("s_waitcnt lgkmcnt(0)")
    srd(44, 36, 512*3072*2)
    a(f"s_cmp_lt_u32 {S_LOC}, 24")
    a("s_cbranch_scc1 L_ld_nourg")
    for i in range(16):
        a(f"buffer_load_dwordx4 v{20 + (i&1)}, s[44:47], {SOFF} offen nt lds")
        if i < 15:
            a(f"s_add_u32 {SOFF}, {SOFF}, {8*6144}")
            a("s_add_u32 m0, m0, 0x400")
    a.label("L_ld_nourg")
    if cfg.prio: a("s_setprio 3")
    a("s_barrier")
    stamp(1)
    srd(12, 42, W_USED)
    srd(52, 18, 2*8*32768*128*2)
    srd(56, 20, 2*8*32768*128*2)
    srd(60, 24, 4096*512*2)
    a("v_mov_b32 v10, 0")
    a("v_lshrrev_b32 v3, 4, v0")
    a("v_and_b32 v4, 15, v0")
    a("v_xor_b32 v5, v4, v3")
    a("v_lshlrev_b32 v5, 4, v5")
    a("v_lshl_add_u32 v26, v3, 8, v5")
    a("v_xor_b32 v27, 64, v26")
    a("v_xor_b32 v28, 0x80, v26")
    a("v_xor_b32 v29, 0xc0, v26")
    a("v_lshlrev_b32 v5, 1, v3")
    a("v_xor_b32 v5, v4, v5")
    a("v_lshlrev_b32 v5, 4, v5")
    a("v_lshl_add_u32 v30, v3, 8, v5")
    a("v_xor_b32 v31, 0x80, v30")
    a(f"s_mul_i32 s91, {S_B}, {(NK_B - NK_A) * 256}")
    a(f"s_add_u32 s91, s91, {NK_A * 256}")
    a(f"s_mul_i32 s90, {S_SP}, s91")
    a(f"s_mul_i32 s91, {S_B}, {512 * 256}")
    a("s_add_u32 s90, s90, s91")
    sexpr("s98", [(S_BT, "shl", 26), (S_X, "shl", 23), ("s90", "shl", 0)], (28672 - 512) * 256)
    unit_voffs(pitch_shift=10)

    def lc_write(val, off=F_LC):
        a(f"v_mov_b32 v11, {val}")
        a(f"ds_write_b32 v10, v11 offset:{off}")
    def seg(name, variants, srdn, step, iters, ldsbase):
        if ldsbase is not None: a(f"s_mov_b32 m0, {ldsbase}")
        a(f"s_mov_b32 s97, {iters}")
        a.label(name)
        for v in variants:
            a(f"buffer_load_dwordx4 {v}, s[{srdn}:{srdn+3}], {SOFF} offen nt lds")
            a(f"s_add_u32 {SOFF}, {SOFF}, {step}")
            a("s_add_u32 m0, m0, 0x400")
        a("s_sub_u32 s97, s97, 1")
        a("s_cmp_lg_u32 s97, 0")
        a(f"s_cbranch_scc1 {name}")
    def drain(end, ks):
        for k in ks:
            a(f"s_waitcnt vmcnt({k})")
            lc_write(end - k)
    def seg4(name, variants, srdn, iters, ldsbase, D=D):
        if ldsbase is not None: a(f"s_mov_b32 m0, {ldsbase}")
        a(f"s_mov_b32 s97, {iters}")
        a.label(name)
        for i, v in enumerate(variants):
            a(f"buffer_load_dwordx4 {v}, s[{srdn}:{srdn+3}], {SOFF} offen offset:{1024*i} nt lds")
        a(f"s_add_u32 {SOFF}, {SOFF}, 0x1000")
        a("s_add_u32 m0, m0, 0x1000")
        a(f"s_add_u32 {SLC}, {SLC}, 4")
        a(f"v_mov_b32 v11, {SLC}")
        a(f"s_waitcnt vmcnt({D-4})")
        a(f"ds_write_b32 v10, v11 offset:{F_LC}")
        a("s_sub_u32 s97, s97, 1")
        a("s_cmp_lg_u32 s97, 0")
        a(f"s_cbranch_scc1 {name}")
    WO_OFF = [(S_X, "shl", 19), (S_KQ, "shl", 17), (S_CB, "shl", 7)]

    a(f"s_cmp_eq_u32 {S_B}, 0")
    a("s_cbranch_scc1 L_ld_A")
    if cfg.bearly:
        srd(48, 28, 512*1792*2)
        srd(44, 30, 512*1792*2)
        strip_voff(3584, "v20")
        sexpr(SOFF, WO_OFF)
        seg("L_ld_woB", ["v24", "v25"], 60, 8192, 8, L_WO_B)
        a(f"s_cmp_eq_u32 {S_CB}, 7")
        a("s_cbranch_scc1 L_ld_guBe")
        sexpr(SOFF, [(S_KQ, "mul", 128*3584), (S_X, "mul", 448), (S_CB, "shl", 6)])
        a(f"s_mov_b32 m0, {L_G_B}")
        a("s_mov_b32 s97, 8")
        a.label("L_ld_guB")
        a(f"buffer_load_dwordx4 v20, s[48:51], {SOFF} offen nt lds")
        a("s_add_u32 m0, m0, 0x2000")
        a("s_nop 0")
        a(f"buffer_load_dwordx4 v20, s[44:47], {SOFF} offen nt lds")
        a("s_sub_u32 m0, m0, 0x1c00")
        a(f"s_add_u32 {SOFF}, {SOFF}, {16*3584}")
        a("s_sub_u32 s97, s97, 1")
        a("s_cmp_lg_u32 s97, 0")
        a("s_cbranch_scc1 L_ld_guB")
        a.label("L_ld_guBe")
        srd(48, 32, 1792*512*2)
        sexpr(SOFF, [(S_X, "mul", 224*1024), (S_KQ, "mul", 56*1024), (S_CB, "shl", 7)])
        seg("L_ld_dnB", ["v24", "v25"], 48, 8192, 4, L_DN_B)
        a("s_waitcnt vmcnt(0)")
        lc_write(1, F_WOL)
        lc_write(1, F_LATE)
        lc_write(1, F_DN)
    if cfg.kstart == 0:
        spin_lds(F_EC, 4, "v10", "v12")
        spin_lds(F_3, 2, "v10", "v12", sleep=False)
    elif cfg.kstart == 1:
        spin_lds(F_QF, 2, "v10", "v12", sleep=False)
    else:
        pass
    stamp(2)
    a(f"s_mov_b32 {SLC}, {KB_B - (D - 4)}")
    a(f"s_mov_b32 {SOFF}, s98")
    seg4("L_ld_kB", ["v26", "v27", "v28", "v29"], 52, NK_B // 16, L_K)
    a(f"s_mov_b32 {SOFF}, s98")
    seg4("L_ld_vB", ["v30", "v30", "v31", "v31"], 56, NK_B // 16, L_V)
    stamp(3)
    if cfg.bearly:
        drain(KB_B + NK_B // 2, [k for k in (32, 24, 16, 8) if k < D - 4] + [0])
        stamp(4)
        dump_stamps(5)
        a("s_endpgm")
    else:
        sexpr(SOFF, WO_OFF)
        seg("L_ld_woB", ["v24", "v25"], 60, 8192, 8, L_WO_B)
        if cfg.dnwo:
            srd(48, 32, 1792*512*2)
            sexpr(SOFF, [(S_X, "mul", 224*1024), (S_KQ, "mul", 56*1024), (S_CB, "shl", 7)])
            seg("L_ld_dnB", ["v24", "v25"], 48, 8192, 4, L_DN_B)
            drain(KB_B + NK_B // 2 + 24, [k for k in (56, 48, 40, 32, 24) if k < D + 20])
            stamp(4)
            a("s_waitcnt vmcnt(8)")
            lc_write(1, F_WOL)
            a("s_waitcnt vmcnt(0)")
            lc_write(1, F_DN)
            dump_stamps(5)
            a("s_endpgm")
        else:
            drain(KB_B + NK_B // 2 + 16, [k for k in (48, 40, 32, 24, 16) if k < D + 12])
            stamp(4)
    a.label("L_ld_fin")
    a("s_waitcnt vmcnt(0)")
    lc_write(1, F_WOL)
    stamp(5)
    dump_stamps(6)
    a("s_endpgm")
    a.label("L_ld_A")
    DA = cfg.DA
    a(f"s_cmp_ge_u32 {S_SPL}, 16")
    a("s_cbranch_scc1 L_ld_urg")
    spin_lds(F_1, 2, "v10", "v12", sleep=False)
    if cfg.slow:
        a(f"s_mov_b32 m0, {L_MR}")
        a("s_nop 0")
        for i in range(2 * cfg.slow):
            a(f"buffer_load_dwordx4 v{20 + (i&1)}, s[44:47], {SOFF} offen nt lds")
            a(f"s_add_u32 {SOFF}, {SOFF}, {8*6144}")
            a("s_add_u32 m0, m0, 0x400")
            if i & 1: a("s_waitcnt vmcnt(0)")
        seg("L_ld_mr", ["v20", "v21"], 44, 8*6144, 8 - cfg.slow, None)
    else:
        seg("L_ld_mr", ["v20", "v21"], 44, 8*6144, 8, L_MR)
    a("s_branch L_ld_kgo")
    a.label("L_ld_urg")
    a("s_waitcnt vmcnt(0)")
    lc_write(1, F_MRL)
    spin_lds(F_PM, 4, "v10", "v12", sleep=False)
    a.label("L_ld_kgo")
    DA1 = cfg.DA1 or DA
    a(f"s_mov_b32 {SLC}, {-(DA1 - 4)}")
    a(f"s_mov_b32 {SOFF}, s98")
    n0 = (DA1 - 4 + 3) // 4
    assert 0 < n0 < NK_A // 16
    seg4("L_ld_kA0", ["v26", "v27", "v28", "v29"], 52, n0, L_K, DA1)
    lc_write(1, F_MRL)
    seg4("L_ld_kA", ["v26", "v27", "v28", "v29"], 52, NK_A // 16 - n0, None, DA1)
    stamp(2)
    a(f"s_mov_b32 {SOFF}, s98")
    if DA > DA1:
        assert (DA - DA1) % 4 == 0
        a(f"s_mov_b32 m0, {L_V}")
        a("s_nop 0")
        for it in range((DA - DA1) // 4):
            for i, v in enumerate(["v30", "v30", "v31", "v31"]):
                a(f"buffer_load_dwordx4 {v}, s[56:59], {SOFF} offen offset:{1024*i} nt lds")
            a(f"s_add_u32 {SOFF}, {SOFF}, 0x1000")
            a("s_add_u32 m0, m0, 0x1000")
        seg4("L_ld_vA", ["v30", "v30", "v31", "v31"], 56, NK_A // 16 - 4 - (DA - DA1) // 4, None, DA)
    else:
        seg4("L_ld_vA", ["v30", "v30", "v31", "v31"], 56, NK_A // 16 - 4, L_V, DA)
    spin_lds(F_EC, 4, "v10", "v12")
    seg4("L_ld_vA2", ["v30", "v30", "v31", "v31"], 56, 4, None, DA)
    stamp(3)
    drain(NK_A // 2, [k for k in (32, 24, 16, 8) if k < DA - 4] + [0])
    stamp(4)
    spin_lds(F_KC, 4, "v10", "v12")
    sexpr(SOFF, WO_OFF)
    seg("L_ld_woA", ["v24", "v25"], 60, 8192, 8, L_WO)
    if cfg.dnwo:
        srd(48, 32, 1792*512*2)
        sexpr(SOFF, [(S_X, "mul", 224*1024), (S_KQ, "mul", 56*1024), (S_CB, "shl", 7)])
        seg("L_ld_dnA", ["v24", "v25"], 48, 8192, 4, L_DN)
        if cfg.guwo:
            a("s_waitcnt vmcnt(8)")
            lc_write(1, F_WOL)
            srd(48, 28, 512*1792*2)
            srd(44, 30, 512*1792*2)
            strip_voff(3584, "v20")
            a(f"s_cmp_eq_u32 {S_CB}, 7")
            a("s_cbranch_scc1 L_ld_guAe")
            sexpr(SOFF, [(S_KQ, "mul", 128*3584), (S_X, "mul", 448), (S_CB, "shl", 6)])
            a(f"s_mov_b32 m0, {L_G}")
            a("s_mov_b32 s97, 8")
            a.label("L_ld_guA")
            a(f"buffer_load_dwordx4 v20, s[48:51], {SOFF} offen nt lds")
            a("s_add_u32 m0, m0, 0x2000")
            a("s_nop 0")
            a(f"buffer_load_dwordx4 v20, s[44:47], {SOFF} offen nt lds")
            a("s_sub_u32 m0, m0, 0x1c00")
            a(f"s_add_u32 {SOFF}, {SOFF}, {16*3584}")
            a("s_sub_u32 s97, s97, 1")
            a("s_cmp_lg_u32 s97, 0")
            a("s_cbranch_scc1 L_ld_guA")
            a.label("L_ld_guAe")
            a("s_waitcnt vmcnt(0)")
            lc_write(1, F_DN)
            lc_write(1, F_LATE)
        else:
            a("s_waitcnt vmcnt(8)")
            lc_write(1, F_WOL)
            a("s_waitcnt vmcnt(0)")
            lc_write(1, F_DN)
        dump_stamps(5)
        a("s_endpgm")
    else:
        a("s_branch L_ld_fin")

    a.label("L_worker")
    a(f"s_cmp_lg_u32 {S_W}, 4")
    a("s_cbranch_scc1 L_wk2")
    a("v_mov_b32 v10, 0")
    for r in range(12, 16): a(f"v_mov_b32 v{r}, 0")
    a("v_lshlrev_b32 v1, 2, v0")
    a("v_lshlrev_b32 v2, 4, v0")
    a("ds_write_b32 v1, v10")
    a(f"ds_write_b128 v2, v[12:15] offset:{L_ZERO}")
    if cfg.probe >= 10: a(f"ds_write_b32 v10, v10 offset:{L_PRB}")
    if cfg.local == 1:
        a("v_mov_b32 v11, 1")
        a(f"ds_write_b32 v10, v11 offset:{F_LM}")
    a.label("L_wk2")
    a("s_waitcnt lgkmcnt(0)")
    srd(12, 42, W_USED)
    srd(44, 16, 2048)
    srd(48, 34, 2048)
    a(f"s_sub_u32 s97, {S_W}, 5")
    a("s_and_b32 s97, s97, 1")
    a("s_lshl_b32 s90, s97, 10")
    a(f"s_and_b32 s94, {S_SPL}, 3")
    a("s_lshl_b32 s94, s94, 8")
    a("s_add_u32 s94, s94, s90")
    a("v_lshlrev_b32 v1, 4, v0")
    a("v_lshlrev_b32 v2, 2, v0")
    a(f"s_cmp_lt_u32 {S_W}, 5")
    a("s_cbranch_scc1 L_wk2b")
    a(f"s_cmp_eq_u32 {S_W}, 7")
    a("s_cbranch_scc1 L_wk2b")
    a("buffer_load_dword v9, v2, s[48:51], s94 offen")
    a("buffer_load_dwordx4 v[4:7], v1, s[44:47], s90 offen")
    a(f"s_lshr_b32 s94, {S_SPL}, 1")
    a("s_and_b32 s94, s94, 3")
    a("s_lshl_b32 s94, s94, 8")
    a("s_add_u32 s94, s94, s90")
    a("buffer_load_dword v8, v2, s[44:47], s94 offen")
    a.label("L_wk2b")
    a("v_mov_b32 v2, 0")
    a(f"buffer_load_dword v3, v2, {WSRD}, 0 offen sc1")
    a(f"s_cmp_lg_u32 {S_W}, 7")
    a("s_cbranch_scc1 L_wk3")
    if cfg.local == 2:
        srd(60, 40, 256)
        a("s_getreg_b32 s90, hwreg(HW_REG_XCC_ID)")
        a("s_and_b32 s90, s90, 7")
        a("s_mul_i32 s90, s90, 6")
        a("s_lshl_b64 s[26:27], 1, s90")
        a(f"s_lshl_b32 s91, {S_X}, 5")
        a("s_add_u32 s91, s91, 8")
        a("v_mov_b32 v18, s91")
        a("v_mov_b32 v16, s26")
        a("v_mov_b32 v17, s27")
        a("s_mov_b64 exec, 1")
        a("buffer_atomic_add_x2 v[16:17], v18, s[60:63], 0 offen sc1")
        a("s_mov_b64 exec, -1")
    if cfg.touch:
        sexpr("s90", [(S_BT, "shl", 26), (S_X, "shl", 23), (S_SP, "shl", 16)], 28672*256)
        a("s_load_dword s78, s[18:19], s90")
        a("s_load_dword s79, s[20:21], s90")
        a(f"s_lshr_b32 s91, {S_SPL}, 1")
        a("s_and_b32 s91, s91, 3")
        a("s_lshl_b32 s91, s91, 20")
        a("s_load_dword s80, s[22:23], s91")
        sexpr("s91", [(S_X, "shl", 19), (S_KQ, "shl", 17)])
        a("s_load_dword s81, s[24:25], s91")
        a(f"s_mul_i32 s91, {S_KQ}, {128*3584}")
        a("s_load_dword s82, s[28:29], s91")
        a("s_load_dword s83, s[30:31], s91")
        a(f"s_mul_i32 s91, {S_X}, {224*1024}")
        a("s_load_dword s84, s[32:33], s91")
        a("s_load_dword s85, s[38:39], 0")
    a.label("L_wk3")
    a("s_barrier")
    a(f"s_cmp_ge_u32 {S_W}, 4")
    a("s_cbranch_scc1 L_gwave")

    a.label("L_mwave")
    if cfg.mprio: a("s_setprio 2")
    srd(56, 22, 512*4096*2)
    a("v_lshrrev_b32 v1, 4, v0")
    a("v_and_b32 v2, 15, v0")
    a("v_mov_b32 v4, 1")
    a("v_lshlrev_b32 v22, 1, v1")
    a("v_xor_b32 v22, v2, v22")
    a("v_lshlrev_b32 v22, 4, v22")
    a("v_lshl_add_u32 v56, v1, 13, v22")
    a("v_xor_b32 v57, 0x80, v56")
    a(f"s_lshr_b32 s90, {S_SPL}, 1")
    a(f"s_and_b32 s91, {S_SPL}, 1")
    sexpr("s96", [("s90", "shl", 20), (S_X, "shl", 10), ("s91", "shl", 9), (S_W, "shl", 18)])
    a("s_add_u32 s97, s96, 256")
    def wq_loads(lo, hi):
        for k in range(lo, hi):
            bb, i = k >> 3, k & 7
            sr = "s96" if bb == 0 else "s97"
            if k == lo or i == 0:
                a(f"s_lshl_b32 s90, {S_W}, 13")
                a(f"s_add_u32 m0, s90, {L_WQ + 32768*bb + 1024*i}")
                a("s_nop 0")
            a(f"buffer_load_dwordx4 {'v56' if (i & 2) == 0 else 'v57'}, s[56:59], {sr} offen nt lds")
            a(f"s_add_u32 {sr}, {sr}, {4*8192}")
            a("s_add_u32 m0, m0, 0x400")
    a(f"s_cmp_eq_u32 {S_B}, 0")
    a("s_cbranch_scc1 L_m_nowq")
    wq_loads(0, 16)
    a.label("L_m_nowq")
    a("v_bfe_u32 v6, v2, 2, 1")
    a(f"v_mul_u32_u24 v6, {APITCH}, v6")
    a("v_lshl_add_u32 v6, v1, 4, v6")
    a("v_bfe_u32 v16, v0, 2, 2")
    a("v_and_b32 v17, 3, v0")
    a("v_lshl_add_u32 v18, v1, 3, v16")
    a("v_lshrrev_b32 v19, 1, v17")
    a("v_and_b32 v20, 1, v17")
    a("v_and_b32 v21, 1, v1")
    a("v_lshrrev_b32 v22, 1, v16")
    a("v_lshl_or_b32 v22, v21, 1, v22")
    a("v_lshlrev_b32 v22, 1, v22")
    a(f"s_lshl_b32 s90, {S_W}, 1")
    a("v_add_u32 v23, s90, v19")
    a("v_xor_b32 v23, v23, v22")
    a("v_lshlrev_b32 v7, 7, v18")
    a("v_lshl_add_u32 v7, v23, 4, v7")
    a("v_lshl_add_u32 v7, v20, 3, v7")
    a(f"s_and_b32 s90, {S_W}, 1")
    a("s_lshl_b32 s90, s90, 1")
    a("v_add_u32 v23, s90, v19")
    a("v_lshlrev_b32 v22, 1, v21")
    a("v_xor_b32 v23, v23, v22")
    a("v_lshlrev_b32 v12, 6, v18")
    a("v_lshl_add_u32 v12, v23, 4, v12")
    a("v_lshl_add_u32 v12, v20, 3, v12")
    a("v_lshl_or_b32 v22, v21, 2, v16")
    a("v_lshlrev_b32 v22, 1, v22")
    a(f"s_lshl_b32 s90, {S_W}, 2")
    a("v_add_u32 v23, s90, v19")
    a("v_xor_b32 v24, v23, v22")
    a("v_lshlrev_b32 v25, 8, v18")
    a("v_lshl_add_u32 v25, v20, 3, v25")
    a("v_lshl_add_u32 v13, v24, 4, v25")
    a("v_add_u32 v23, 2, v23")
    a("v_xor_b32 v24, v23, v22")
    a("v_lshl_add_u32 v14, v24, 4, v25")
    a("v_bfe_u32 v8, v0, 4, 1")
    a("v_lshlrev_b32 v9, 3, v2")
    O_MOD, O_Q, O_O, O_A4, O_GU, O_DN, O_ST, T_K, T_V = "s16", "s17", "s18", "s19", "s20", "s21", "s24", "s25", "s26"
    a(f"s_mul_i32 {T_K}, {S_B}, {KB_B + NK_B // 4 - NK_A // 4}")
    a(f"s_add_u32 {T_K}, {T_K}, {NK_A // 4}")
    a(f"s_mul_i32 {T_V}, {S_B}, {KB_B + NK_B // 2 - NK_A // 2}")
    a(f"s_add_u32 {T_V}, {T_V}, {NK_A // 2}")
    sexpr(O_O, [(S_X, "shl", 16), (S_BT, "shl", 13), (S_SP, "shl", 9), (S_W, "shl", 7)], W_O)
    sexpr(O_A4, [(S_CB, "shl", 14), (S_W, "shl", 12), (S_X, "shl", 8), (S_KQ, "shl", 6)], W_A4)
    a(f"s_add_u32 {O_DN}, {O_A4}, {W_DN - W_A4}")
    a(f"s_lshr_b32 s90, {S_W}, 1")
    a(f"s_and_b32 s91, {S_W}, 1")
    sexpr(O_GU, [(S_X, "shl", 15), ("s90", "shl", 14), (S_KQ, "shl", 11), (S_CB, "shl", 8), ("s91", "shl", 7)], W_GU)
    sexpr(O_ST, [(S_X, "shl", 11), (S_BT, "shl", 10), (S_SP, "shl", 4)], W_ST)
    a(f"s_and_b32 s90, {S_SPL}, 1")
    a("s_lshl_b32 s90, s90, 1")
    a(f"s_lshr_b32 s91, {S_W}, 1")
    a("s_add_u32 s90, s90, s91")
    a(f"s_lshr_b32 s91, {S_SPL}, 1")
    a(f"s_and_b32 s97, {S_W}, 1")
    sexpr(O_Q, [(S_X, "shl", 15), ("s90", "shl", 12), ("s91", "shl", 10), ("s97", "shl", 9)], W_Q)
    a(f"s_cmp_lt_u32 {S_SPL}, 16")
    a("s_cbranch_scc1 L_m_offA")
    a(f"s_lshr_b32 s90, {S_X}, 2")
    a(f"s_and_b32 s91, {S_X}, 3")
    a(f"s_bfe_u32 s97, {S_SPL}, 0x10002")
    a(f"s_and_b32 s98, {S_SPL}, 3")
    sexpr(O_MOD, [("s90", "shl", 15), ("s91", "shl", 12), ("s98", "shl", 10), ("s97", "shl", 9), (S_W, "shl", 7)], W_MOD)
    a("s_branch L_m_offE")
    a.label("L_m_offA")
    a(f"s_lshr_b32 s90, {S_X}, 1")
    a(f"s_and_b32 s91, {S_X}, 1")
    a("s_lshl_b32 s91, s91, 2")
    a(f"s_lshr_b32 s97, {S_SPL}, 2")
    a("s_add_u32 s91, s91, s97")
    a("s_lshr_b32 s97, s91, 1")
    a("s_and_b32 s91, s91, 1")
    a(f"s_and_b32 s98, {S_SPL}, 3")
    sexpr(O_MOD, [("s90", "shl", 15), ("s97", "shl", 12), ("s98", "shl", 10), ("s91", "shl", 9), (S_W, "shl", 7)], W_MOD + 2*32768)
    a.label("L_m_offE")
    a("s_waitcnt vmcnt(0)")
    get_tag()
    a("v_mov_b32 v3, 0")
    stamp(1)

    def loadB(vaddr, nk, kstride, hoff, base=16):
        for t in range(nk):
            a(f"ds_read_b64_tr_b16 v[{base+4*t}:{base+4*t+1}], {vaddr} offset:{t*kstride}")
            a(f"ds_read_b64_tr_b16 v[{base+4*t+2}:{base+4*t+3}], {vaddr} offset:{t*kstride+hoff}")

    def gemv(act_off, nk, bbase=16, second=None):
        for t in range(nk):
            a(f"ds_read_b128 v[{32+4*t}:{35+4*t}], v6 offset:{act_off+64*t}")
        for t in range(nk):
            a(f"s_waitcnt lgkmcnt({nk-1-t})")
            c = "0" if t == 0 else "v[48:51]"
            a(f"v_mfma_f32_16x16x32_bf16 v[48:51], v[{32+4*t}:{35+4*t}], v[{bbase+4*t}:{bbase+4*t+3}], {c}")
            if second is not None:
                c = "0" if t == 0 else "v[56:59]"
                a(f"v_mfma_f32_16x16x32_bf16 v[56:59], v[{32+4*t}:{35+4*t}], v[{second+4*t}:{second+4*t+3}], {c}")

    def publish(shift, soff, local=False, second=False):
        a(f"v_lshl_add_u32 v54, v8, {shift}, v9")
        a(f"v_mov_b32 v53, {S_TAG}")
        if second: a(f"v_mov_b32 v61, {S_TAG}")
        a("v_mov_b32 v52, v48")
        if second: a("v_mov_b32 v60, v56")
        a("s_mov_b32 exec_hi, 0")
        t1 = f"buffer_store_dwordx2 v[52:53], v54, {WSRD}, {soff} offen"
        t2 = f"buffer_store_dwordx2 v[60:61], v54, {WSRD}, {soff} offen offset:128"
        if local:
            store_loc(t1)
            if second: store_loc(t2)
        else:
            a(t1 + " sc1")
            if second: a(t2 + " sc1")
        a("s_mov_b32 exec_hi, -1")

    def publish_pair(soff):
        a("v_lshlrev_b32 v54, 11, v8")
        a("v_lshl_add_u32 v54, v2, 2, v54")
        a(f"v_mov_b32 v53, {S_TAG}")
        a("v_mov_b32_dpp v52, v48 quad_perm:[1,0,3,2] row_mask:0xf bank_mask:0xf")
        a("s_mov_b32 exec_lo, 0x55555555")
        a("s_mov_b32 exec_hi, 0")
        a("v_cvt_pk_bf16_f32 v52, v48, v52")
        a(f"buffer_store_dwordx2 v[52:53], v54, {WSRD}, {soff} offen sc1")
        a("s_mov_b64 exec, -1")

    a(f"s_cmp_lg_u32 {S_B}, 0")
    a("s_cbranch_scc1 L_m_B")
    spin_lds(F_1, 2, "v3", "v5")
    spin_lds(F_MRL, 1, "v3", "v5")
    a(f"v_add_u32 v10, {L_MR}, v7")
    loadB("v10", 4, 4096, 512)
    gemv(L_ACT1, 4)
    arrive(F_EC, "v3", "v4")
    publish(14, O_MOD)
    arrive(F_PM, "v3", "v4")
    stamp(2)
    a("s_branch L_m_s3")
    a.label("L_m_B")
    a("s_waitcnt vmcnt(0)")
    arrive(F_WQ, "v3", "v4")
    a("v_bfe_u32 v16, v0, 2, 2")
    a("v_and_b32 v17, 3, v0")
    a("v_lshl_add_u32 v18, v1, 3, v16")
    a("v_lshrrev_b32 v19, 1, v17")
    a("v_and_b32 v20, 1, v17")
    a("v_and_b32 v21, 1, v1")
    a("v_lshl_or_b32 v22, v21, 2, v16")
    a("v_lshlrev_b32 v22, 1, v22")
    a("v_lshlrev_b32 v25, 8, v18")
    a("v_lshl_add_u32 v25, v20, 3, v25")
    a(f"s_lshr_b32 s90, {S_W}, 1")
    a("s_lshl_b32 s90, s90, 15")
    a(f"s_add_u32 s90, s90, {L_WQ}")
    a("v_add_u32 v25, s90, v25")
    a(f"s_and_b32 s91, {S_W}, 1")
    a("s_lshl_b32 s91, s91, 3")
    a("v_add_u32 v19, s91, v19")
    for e in range(4):
        a(f"v_add_u32 v23, {2*e}, v19")
        a("v_xor_b32 v23, v23, v22")
        a(f"v_lshl_add_u32 v{28+e}, v23, 4, v25")
    spin_lds(F_WQ, 4, "v3", "v5", sleep=False)
    for e in range(4):
        loadB(f"v{28+e}", 4, 8192, 1024, base=64 + 16*e)
    get_mode("v3", "v5")
    a("s_waitcnt lgkmcnt(0)")
    arrive(F_EC, "v3", "v4")
    a("v_lshl_add_u32 v54, v8, 14, v9")
    a(f"v_mov_b32 v53, {S_TAG}")
    spin_lds(F_2, 2, "v3", "v5", sleep=False)
    for t in range(4):
        a(f"ds_read_b128 v[{32+4*t}:{35+4*t}], v6 offset:{L_ACT2+64*t}")
    for t in range(4):
        a(f"s_waitcnt lgkmcnt({3-t})")
        for e in range(4):
            c = "0" if t == 0 else f"v[{16+4*e}:{19+4*e}]"
            a(f"v_mfma_f32_16x16x32_bf16 v[{16+4*e}:{19+4*e}], v[{32+4*t}:{35+4*t}], v[{64+16*e+4*t}:{67+16*e+4*t}], {c}")
    a("s_mov_b32 exec_hi, 0")
    for e in range(4):
        a(f"v_mov_b32 v{56+2*e}, v{16+4*e}")
        a(f"v_mov_b32 v{57+2*e}, v53")
    if cfg.local == 2:
        P = a.newlabel("Lst"); E = a.newlabel("Lste")
        a(f"s_cmp_eq_u32 {S_LM}, 1")
        a(f"s_cbranch_scc1 {P}")
        for e in range(4): a(f"buffer_store_dwordx2 v[{56+2*e}:{57+2*e}], v54, {WSRD}, {O_Q} offen offset:{128*e} sc1")
        a(f"s_branch {E}")
        a.label(P)
        for e in range(4): a(f"buffer_store_dwordx2 v[{56+2*e}:{57+2*e}], v54, {WSRD}, {O_Q} offen offset:{128*e}")
        a.label(E)
    else:
        for e in range(4): a(f"buffer_store_dwordx2 v[{56+2*e}:{57+2*e}], v54, {WSRD}, {O_Q} offen offset:{128*e}" + (" sc1" if cfg.local == 0 else ""))
    a("s_mov_b32 exec_hi, -1")
    arrive(F_PQ, "v3", "v4")
    stamp(3)
    mark(10, "v3")
    a.label("L_m_s3")
    get_mode("v3", "v5")
    T_ST, T_N = "s27", "s28"
    a(f"s_lshl_b32 s90, {S_B}, 1")
    a(f"s_sub_u32 s90, 4, s90")
    a(f"s_mul_i32 {T_ST}, {S_W}, s90")
    a(f"s_min_u32 s91, {S_W}, 2")
    a(f"s_add_u32 {T_ST}, {T_ST}, s91")
    a(f"s_cmp_lt_u32 {S_W}, 2")
    a(f"s_addc_u32 {T_N}, s90, 0")
    a("s_mov_b64 s[30:31], -1")
    a(f"s_cmp_eq_u32 {T_N}, 3")
    a("s_cselect_b32 s31, 0xffff, s31")
    a(f"s_cmp_eq_u32 {T_N}, 2")
    a("s_cselect_b32 s31, 0, s31")
    a("s_mov_b32 s33, 0")
    a(f"s_cmp_eq_u32 {T_N}, 5")
    a("s_cselect_b32 s32, 0xffff, 0")
    a("v_xor_b32 v10, v1, v2")
    a("v_lshlrev_b32 v10, 4, v10")
    a("v_lshl_add_u32 v10, v2, 8, v10")
    a(f"s_lshl_b32 s90, {T_ST}, 12")
    a(f"s_add_u32 s90, s90, {L_K}")
    a("v_add_u32 v112, s90, v10")
    a("v_xor_b32 v113, 64, v112")
    a("v_xor_b32 v114, 0x80, v112")
    a("v_xor_b32 v115, 0xc0, v112")
    a("v_and_b32 v10, 3, v2")
    a(f"v_mul_u32_u24 v10, {APITCH}, v10")
    a("v_lshl_add_u32 v116, v1, 4, v10")
    a("v_cmp_eq_u32 s[34:35], 1, v1")
    a("v_cmp_eq_u32 s[36:37], 2, v1")
    a("v_cmp_eq_u32 s[38:39], 3, v1")
    for r in range(80, 100): a(f"v_mov_b32 v{r}, 0")
    NEG = "s29"
    a(f"s_mov_b32 {NEG}, 0xff800000")
    spin_lds(F_3, 2, "v3", "v5", sleep=False)
    spin_lds(F_LC, T_K, "v3", "v5", sleep=False)
    stamp(4)
    mark(11, "v3")
    def k_reads(tt, base):
        for t in range(4):
            a(f"ds_read_b128 v[{base+4*t}:{base+4*t+3}], v{112+t} offset:{4096*tt}")
    def qk_mfma(tt, base):
        acc = f"v[{80+4*tt}:{83+4*tt}]"
        for t in range(4):
            c = "0" if t == 0 else acc
            a(f"v_mfma_f32_16x16x32_bf16 {acc}, v[{16+4*t}:{19+4*t}], v[{base+4*t}:{base+4*t+3}], {c}")
    for t in range(4):
        a(f"ds_read_b128 v[{16+4*t}:{19+4*t}], v116 offset:{L_Q+64*t}")
    k_reads(0, 32)
    k_reads(1, 48)
    a(f"s_cmp_eq_u32 {T_N}, 2")
    a("s_cbranch_scc1 L_qk_n2")
    k_reads(2, 64)
    a("s_waitcnt lgkmcnt(8)")
    qk_mfma(0, 32)
    a(f"s_cmp_eq_u32 {T_N}, 3")
    a("s_cbranch_scc1 L_qk_n3")
    k_reads(3, 32)
    a("s_waitcnt lgkmcnt(8)")
    qk_mfma(1, 48)
    a(f"s_cmp_eq_u32 {T_N}, 4")
    a("s_cbranch_scc1 L_qk_n4")
    k_reads(4, 48)
    a("s_waitcnt lgkmcnt(8)")
    qk_mfma(2, 64)
    a("s_waitcnt lgkmcnt(4)")
    qk_mfma(3, 32)
    a("s_waitcnt lgkmcnt(0)")
    qk_mfma(4, 48)
    a("s_branch L_qk_done")
    a.label("L_qk_n4")
    a("s_waitcnt lgkmcnt(4)")
    qk_mfma(2, 64)
    a("s_waitcnt lgkmcnt(0)")
    qk_mfma(3, 32)
    a("s_branch L_qk_done")
    a.label("L_qk_n3")
    a("s_waitcnt lgkmcnt(4)")
    qk_mfma(1, 48)
    a("s_waitcnt lgkmcnt(0)")
    qk_mfma(2, 64)
    a("s_branch L_qk_done")
    a.label("L_qk_n2")
    a("s_waitcnt lgkmcnt(4)")
    qk_mfma(0, 32)
    a("s_waitcnt lgkmcnt(0)")
    qk_mfma(1, 48)
    a.label("L_qk_done")
    arrive(F_KC, "v3", "v4")
    a("s_nop 7")
    for r in range(4): a(f"v_cndmask_b32 v{48+r}, v{80+r}, v{84+r}, s[34:35]")
    for r in range(4): a(f"v_cndmask_b32 v{48+r}, v{48+r}, v{88+r}, s[36:37]")
    for r in range(4): a(f"v_cndmask_b32 v{48+r}, v{48+r}, v{92+r}, s[38:39]")
    a(f"s_mov_b32 s94, {SCALE:#x}")
    for (d, sr) in ((20, 96), (16, 48)):
        bf16r2(f"v{d}", f"v{d+1}", f"v{sr}", f"v{sr+1}", "v32")
        bf16r2(f"v{d+2}", f"v{d+3}", f"v{sr+2}", f"v{sr+3}", "v33")
    for r in range(8): a(f"v_mul_f32 v{16+r}, s94, v{16+r}")
    for d in (16, 20):
        bf16r2(f"v{d}", f"v{d+1}", f"v{d}", f"v{d+1}", "v32")
        bf16r2(f"v{d+2}", f"v{d+3}", f"v{d+2}", f"v{d+3}", "v33")
    a(f"v_mov_b32 v34, {NEG}")
    for r in range(4): a(f"v_cndmask_b32 v{16+r}, v34, v{16+r}, s[30:31]")
    for r in range(4): a(f"v_cndmask_b32 v{20+r}, v34, v{20+r}, s[32:33]")
    for r in range(4): a(f"v_max_f32 v{24+r}, v{16+r}, v{20+r}")
    allreduce(["v24", "v25", "v26", "v27"], "v_max_f32", [], ["x1", "x2", "x4", "x8"])
    for r in range(4): a(f"v_max_f32_dpp v{24+r}, v{24+r}, v{24+r} row_bcast:15 row_mask:0xa bank_mask:0xf")
    for r in range(4): a(f"v_max_f32_dpp v{24+r}, v{24+r}, v{24+r} row_bcast:31 row_mask:0xc bank_mask:0xf")
    a(f"s_lshl_b32 s90, {S_W}, 4")
    a("v_mov_b32 v10, s90")
    a("s_mov_b32 exec_lo, 0")
    a("s_mov_b32 exec_hi, 0x80000000")
    a(f"ds_write_b128 v10, v[24:27] offset:{L_MX}")
    a(f"ds_add_u32 v3, v4 offset:{F_MB1}")
    a("s_mov_b64 exec, -1")
    a(f"s_lshl_b32 s90, {T_ST}, 5")
    a(f"s_add_u32 s90, s90, {L_P}")
    a("v_lshl_add_u32 v10, v0, 1, s90")
    spin_lds(F_MB1, 4, "v3", "v5", sleep=False)
    for w in range(4):
        a(f"ds_read_b128 v[{32+4*w}:{35+4*w}], v3 offset:{L_MX+16*w}")
    a(f"s_mov_b32 s94, {LOG2E:#x}")
    a("s_waitcnt lgkmcnt(0)")
    for r in range(4):
        a(f"v_max3_f32 v{24+r}, v{32+r}, v{36+r}, v{40+r}")
    for r in range(4):
        a(f"v_max_f32 v{24+r}, v{24+r}, v{44+r}")
    for r in range(8): a(f"v_sub_f32 v{16+r}, v{16+r}, v{24+(r&3)}")
    for r in range(8): a(f"v_mul_f32 v{16+r}, s94, v{16+r}")
    for r in range(8): a(f"v_exp_f32 v{16+r}, v{16+r}")
    a("v_cvt_pk_bf16_f32 v28, v16, v17")
    a("v_cvt_pk_bf16_f32 v29, v18, v19")
    a("v_cvt_pk_bf16_f32 v30, v20, v21")
    a("v_cvt_pk_bf16_f32 v31, v22, v23")
    a("s_mov_b64 exec, s[30:31]")
    a("ds_write_b16 v10, v28")
    a(f"ds_write_b16_d16_hi v10, v28 offset:{PPITCH}")
    a(f"ds_write_b16 v10, v29 offset:{2*PPITCH}")
    a(f"ds_write_b16_d16_hi v10, v29 offset:{3*PPITCH}")
    a(f"s_cmp_lg_u32 {T_N}, 5")
    a("s_cbranch_scc1 L_p_w1")
    a("s_mov_b64 exec, s[32:33]")
    a("ds_write_b16 v10, v30 offset:128")
    a(f"ds_write_b16_d16_hi v10, v30 offset:{PPITCH+128}")
    a(f"ds_write_b16 v10, v31 offset:{2*PPITCH+128}")
    a(f"ds_write_b16_d16_hi v10, v31 offset:{3*PPITCH+128}")
    a.label("L_p_w1")
    a("s_mov_b64 exec, 1")
    a(f"ds_add_u32 v3, v4 offset:{F_MB2}")
    a("s_mov_b64 exec, -1")
    a.label("L_m_pv")
    stamp(5)
    a("v_lshrrev_b32 v10, 2, v2")
    a(f"v_mul_u32_u24 v10, {PPITCH}, v10")
    a("v_lshl_add_u32 v10, v1, 4, v10")
    a(f"v_add_u32 v60, {L_P}, v10")
    a(f"v_add_u32 v61, {L_V}, v13")
    a(f"v_add_u32 v62, {L_V}, v14")
    a("v_lshl_add_u32 v63, v1, 14, v9")
    a(f"v_mov_b32 v65, {S_TAG}")
    for r in range(8): a(f"v_mov_b32 v{48+r}, 0")
    spin_lds(F_MB2, 4, "v3", "v5", sleep=False)
    a(f"s_add_u32 s95, {T_K}, 8")
    a("s_mov_b32 s96, -1000")
    def pv_ensure(tagl):
        G = f"L_pv_go{tagl}"; S = f"L_pv_sp{tagl}"
        a("s_cmp_ge_i32 s96, s95")
        a(f"s_cbranch_scc1 {G}")
        a.label(S)
        a(f"ds_read_b32 v5, v3 offset:{F_LC}")
        a("s_waitcnt lgkmcnt(0)")
        a("v_readfirstlane_b32 s96, v5")
        a("s_cmp_ge_i32 s96, s95")
        a(f"s_cbranch_scc1 {G}")
        timeout()
        a(f"s_branch {S}")
        a.label(G)
    def pv_reads(b):
        a(f"ds_read_b128 v[{b}:{b+3}], v60")
        a(f"ds_read_b64_tr_b16 v[{b+4}:{b+5}], v61")
        a(f"ds_read_b64_tr_b16 v[{b+6}:{b+7}], v61 offset:1024")
        a(f"ds_read_b64_tr_b16 v[{b+8}:{b+9}], v62")
        a(f"ds_read_b64_tr_b16 v[{b+10}:{b+11}], v62 offset:1024")
        a("v_add_u32 v60, 64, v60")
        a("v_add_u32 v61, 0x2000, v61")
        a("v_add_u32 v62, 0x2000, v62")
        a("s_add_u32 s95, s95, 8")
    def pv_mfma(b):
        a(f"v_mfma_f32_16x16x32_bf16 v[48:51], v[{b}:{b+3}], v[{b+4}:{b+7}], v[48:51]")
        a(f"v_mfma_f32_16x16x32_bf16 v[52:55], v[{b}:{b+3}], v[{b+8}:{b+11}], v[52:55]")
    pv_ensure("0")
    pv_reads(16)
    a.label("L_pv_loop")
    pv_ensure("1")
    pv_reads(28)
    a("s_waitcnt lgkmcnt(5)")
    pv_mfma(16)
    pv_ensure("2")
    pv_reads(16)
    a("s_waitcnt lgkmcnt(5)")
    pv_mfma(28)
    a(f"s_cmp_le_i32 s95, {T_V}")
    a("s_cbranch_scc1 L_pv_loop")
    a("s_waitcnt lgkmcnt(0)")
    pv_mfma(16)
    stamp(6)
    a("s_nop 4")
    a("v_cvt_pk_bf16_f32 v64, v48, v52")
    store_loc(f"buffer_store_dwordx2 v[64:65], v63, {WSRD}, {O_O} offen")
    arrive(F_PO, "v3", "v4")
    stamp(7)
    mark(12, "v3")
    spin_lds(F_WOL, 1, "v3", "v5", sleep=False)
    a(f"s_mul_i32 s90, {S_B}, {L_WO_B - L_WO}")
    a(f"s_add_u32 s90, s90, {L_WO}")
    a("v_add_u32 v10, s90, v7")
    loadB("v10", 4, 4096, 512)
    a("s_waitcnt lgkmcnt(0)")
    a("s_barrier")
    gemv(L_ACT4, 4)
    publish_pair(O_A4)
    arrive(F_PA, "v3", "v4")
    stamp(8)
    mark(13, "v3")
    spin_lds(F_LATE, 1, "v3", "v5")
    a(f"s_lshr_b32 s90, {S_W}, 1")
    a("s_lshl_b32 s90, s90, 13")
    a(f"s_mul_i32 s91, {S_B}, {(L_G_B - L_G) if cfg.bearly else 0}")
    a("s_add_u32 s90, s90, s91")
    a(f"s_add_u32 s90, s90, {L_G}")
    a("v_add_u32 v11, s90, v12")
    loadB("v11", 4, 2048, 256)
    a(f"s_mul_i32 s90, {S_B}, {(L_DN_B - L_DN) if (cfg.bearly or cfg.dnwo) else 0}")
    a(f"s_add_u32 s90, s90, {L_DN}")
    a("v_add_u32 v15, s90, v7")
    a("s_waitcnt lgkmcnt(0)")
    a("s_barrier")
    a(f"s_cmp_eq_u32 {S_CB}, 7")
    a("s_cbranch_scc1 L_m_s7")
    gemv(L_ACT6, 4)
    publish(13, O_GU, local=True)
    a.label("L_m_s7")
    arrive(F_PG, "v3", "v4")
    stamp(9)
    spin_lds(F_DN, 1, "v3", "v5", sleep=False)
    loadB("v15", 2, 4096, 512, base=64)
    a("s_waitcnt lgkmcnt(0)")
    a("s_barrier")
    gemv(L_ACT7, 2, bbase=64)
    publish_pair(O_DN)
    arrive(F_PD, "v3", "v4")
    stamp(10)
    mark(15, "v3")
    dump_stamps(11)
    a("s_endpgm")

    def r1_block(uid, vz):
        a(f"s_sub_u32 s90, {S_W}, 4")
        a("s_lshr_b32 s91, s90, 1")
        a("s_and_b32 s94, s90, 1")
        a("s_lshl_b32 s99, s94, 8")
        a(f"s_lshl_b32 s100, {S_X}, 16")
        a("s_add_u32 s99, s99, s100")
        a(f"s_lshl_b32 s100, {S_KQ}, 14")
        a("s_add_u32 s99, s99, s100")
        a("s_lshl_b32 s100, s91, 13")
        a("s_add_u32 s99, s99, s100")
        a(f"s_add_u32 s99, s99, {W_O}")
        a(f"s_lshl_b32 s100, {S_X}, 11")
        a("s_lshl_b32 s90, s91, 10")
        a("s_add_u32 s100, s100, s90")
        a(f"s_lshl_b32 s90, {S_KQ}, 8")
        a("s_add_u32 s100, s100, s90")
        a(f"s_add_u32 s100, s100, {W_ST}")
        a("v_lshrrev_b32 v48, 5, v0")
        a("v_and_b32 v49, 31, v0")
        a("v_lshlrev_b32 v50, 12, v48")
        a("v_lshl_add_u32 v50, v49, 3, v50")
        a("v_and_b32 v51, 7, v0")
        a("v_lshl_add_u32 v51, v48, 3, v51")
        a("v_lshlrev_b32 v51, 4, v51")
        a(f"s_mul_i32 s91, s91, {APITCH}")
        a("s_lshl_b32 s94, s94, 7")
        a("s_add_u32 s91, s91, s94")
        a("v_bfe_u32 v52, v0, 4, 1")
        a("v_lshlrev_b32 v52, 6, v52")
        a("v_and_b32 v53, 15, v0")
        a("v_lshl_add_u32 v52, v53, 1, v52")
        a("v_lshl_add_u32 v52, v48, 5, v52")
        a("v_add_u32 v52, s91, v52")
        loads = [f"buffer_load_dwordx4 v[32:35], v51, {WSRD}, s100 offen sc1"]; tags = ["v33", "v35"]
        for i in range(8):
            loads.append(f"buffer_load_dwordx2 v[{16+2*i}:{17+2*i}], v50, {WSRD}, s99 offen offset:{512*i} sc1")
            tags.append(f"v{17+2*i}")
        if cfg.warm:
            for l in loads: a(l)
        after_own(F_PO, 4, vz, "v54", cfg.d_r1)
        stamp(7 if uid != "q" else 4)
        poll(loads, tags, "v54", sleep=cfg.rsl_l)
        if uid == "q": stamp(10)
        a("v_mov_b32 v55, v32")
        allreduce(["v55"], "v_max_f32", ["v56"], ["x1", "x2", "x4", "x32"])
        a(f"s_mov_b32 s94, {LOG2E:#x}")
        a("v_sub_f32 v56, v32, v55")
        for i in range(4): a(f"v_lshlrev_b32 v{36+2*i}, 16, v{16+2*i}"); a(f"v_and_b32 v{37+2*i}, 0xffff0000, v{16+2*i}")
        a("v_mul_f32 v56, s94, v56")
        a("v_exp_f32 v56, v56")
        for i in range(4, 8): a(f"v_lshlrev_b32 v{36+2*i}, 16, v{16+2*i}"); a(f"v_and_b32 v{37+2*i}, 0xffff0000, v{16+2*i}")
        a("v_mul_f32 v57, v56, v34")
        allreduce(["v57"], "v_add_f32", ["v58"], ["x1", "x2", "x4", "x32"])
        a("v_rcp_f32 v57, v57")
        a("v_mov_b32 v58, 0")
        a("v_mov_b32 v59, 0")
        a("v_mul_f32 v56, v56, v57")
        for i in range(8):
            a(f"v_fmac_f32_dpp v58, v56, v{36+2*i} row_newbcast:{i} row_mask:0xf bank_mask:0xf")
            a(f"v_fmac_f32_dpp v59, v56, v{37+2*i} row_newbcast:{i} row_mask:0xf bank_mask:0xf")
        a("v_permlane32_swap_b32 v58, v59")
        a("v_add_f32 v58, v58, v59")
        a("v_cvt_pk_bf16_f32 v58, v58, v58")
        a(f"ds_write_b16 v52, v58 offset:{L_ACT4}")
        a("s_waitcnt lgkmcnt(0)")

    a.label("L_gwave")
    a(f"s_cmp_eq_u32 {S_W}, 4")
    a("s_cbranch_scc1 L_slice")
    a(f"s_cmp_eq_u32 {S_W}, 7")
    a("s_cbranch_scc1 L_aux")

    SB = "s97"
    a("s_mov_b64 s[36:37], s[42:43]")
    a("v_lshlrev_b32 v2, 2, v0")
    a("v_mov_b32 v10, 1")
    a(f"s_mul_i32 s98, {SB}, {APITCH}")
    a("v_add_u32 v11, s98, v2")
    a("v_mov_b32 v19, 0")
    a("s_waitcnt vmcnt(0)")
    stamp(1)
    a("v_lshlrev_b32 v12, 16, v9")
    a("v_and_b32 v13, 0xffff0000, v9")
    a(f"s_mov_b32 s94, {LOG2E:#x}")
    for r in (12, 13): a(f"v_mul_f32 v{r+2}, s94, v{r}")
    for r in (12, 13): a(f"v_exp_f32 v{r+2}, -v{r+2}")
    for r in (12, 13): a(f"v_add_f32 v{r+2}, 1.0, v{r+2}")
    for r in (12, 13): a(f"v_rcp_f32 v{r+2}, v{r+2}")
    for r in (12, 13): a(f"v_mul_f32 v{r}, v{r}, v{r+2}")
    a("v_cvt_pk_bf16_f32 v12, v12, v13")
    a(f"ds_write_b32 v11, v12 offset:{L_ACT1}")
    arrive(F_1, "v19", "v10")
    get_tag()
    a("v_mov_b32 v3, 0")

    def ln_finish(mean, var, x0, x1, tmp):
        bf16r2(mean, var, mean, var, tmp)
        a(f"s_mov_b32 s94, {EPS:#x}")
        a(f"v_add_f32 {var}, s94, {var}")
        bf16r1(var, var)
        a(f"v_sqrt_f32 {var}, {var}")
        a(f"v_sub_f32 {x0}, {x0}, {mean}")
        a(f"v_sub_f32 {x1}, {x1}, {mean}")
        bf16r1(var, var)
        a(f"v_rcp_f32 {var}, {var}")
        bf16r2(x0, x1, x0, x1, tmp)
        a(f"v_mul_f32 {x0}, {x0}, {var}")
        a(f"v_mul_f32 {x1}, {x1}, {var}")
        bf16r2(x0, x1, x0, x1, tmp)

    def quarter_gather(chunkA, chunkB, qreg, pre=None, sample=False):
        for (ch, sreg) in ((chunkA, "s90"), (chunkB, "s99")):
            sexpr(sreg, [(SB, "shl", 14), (qreg, "shl", 12)], W_MOD + ch*32768)
        loads = []; tags = []
        for i in range(4):
            loads.append(f"buffer_load_dwordx4 v[{16+4*i}:{19+4*i}], v1, {WSRD}, s90 offen offset:{1024*i} sc1")
            loads.append(f"buffer_load_dwordx4 v[{32+4*i}:{35+4*i}], v1, {WSRD}, s99 offen offset:{1024*i} sc1")
            tags += [f"v{17+4*i}", f"v{19+4*i}", f"v{33+4*i}", f"v{35+4*i}"]
        if pre: pre()
        poll(loads, tags, "v50", sample=sample)
        for (base, d0, d1) in ((16, "v14", "v15"), (32, "v48", "v49")):
            a(f"v_add_f32 {d0}, v{base}, v{base+4}")
            a(f"v_add_f32 {d1}, v{base+2}, v{base+6}")
            a(f"v_add_f32 v50, v{base+8}, v{base+12}")
            a(f"v_add_f32 v51, v{base+10}, v{base+14}")
            a(f"v_add_f32 {d0}, {d0}, v50")
            a(f"v_add_f32 {d1}, {d1}, v51")
            bf16r2(d0, d1, d0, d1, "v50")

    def modulate(x0, x1, sc0, sc1, sh0, sh1, dst, tmp):
        a(f"v_mul_f32 {x0}, {x0}, {sc0}")
        a(f"v_mul_f32 {x1}, {x1}, {sc1}")
        bf16r2(x0, x1, x0, x1, tmp)
        a(f"v_add_f32 {x0}, {x0}, {sh0}")
        a(f"v_add_f32 {x1}, {x1}, {sh1}")
        a(f"v_cvt_pk_bf16_f32 {dst}, {x0}, {x1}")

    a(f"s_cmp_eq_u32 {S_B}, 0")
    a("s_cbranch_scc1 L_q_qg")
    for i in range(4):
        a(f"v_lshlrev_b32 v{16+2*i}, 16, v{4+i}")
        a(f"v_and_b32 v{17+2*i}, 0xffff0000, v{4+i}")
    a("v_add_f32 v24, v16, v17")
    a("v_add_f32 v25, v18, v19")
    a("v_add_f32 v26, v20, v21")
    a("v_add_f32 v27, v22, v23")
    a("v_add_f32 v24, v24, v25")
    a("v_add_f32 v26, v26, v27")
    a("v_add_f32 v24, v24, v26")
    allreduce(["v24"], "v_add_f32", ["v28"], FULL)
    a(f"s_mov_b32 s94, {INV512:#x}")
    a("v_mul_f32 v24, s94, v24")
    for i in range(8): a(f"v_sub_f32 v{16+i}, v{16+i}, v24")
    a("v_mul_f32 v25, v16, v16")
    for i in range(1, 8): a(f"v_fmac_f32 v25, v{16+i}, v{16+i}")
    allreduce(["v25"], "v_add_f32", ["v28"], FULL)
    a("v_mul_f32 v25, s94, v25")
    a("v_lshlrev_b32 v12, 16, v8")
    a("v_and_b32 v13, 0xffff0000, v8")
    ln_finish("v24", "v25", "v12", "v13", "v28")
    a(f"s_lshr_b32 s100, {S_SPL}, 1")
    quarter_gather(0, 1, "s100", pre=lambda: a(f"s_sleep {cfg.d_h}"))
    a("v_add_f32 v48, 1.0, v48")
    a("v_add_f32 v49, 1.0, v49")
    bf16r2("v48", "v49", "v48", "v49", "v50")
    modulate("v12", "v13", "v48", "v49", "v14", "v15", "v16", "v50")
    a(f"ds_write_b32 v11, v16 offset:{L_ACT2}")
    arrive(F_2, "v3", "v10")
    stamp(2)
    a(f"s_lshr_b32 s90, {S_SPL}, 1")
    a(f"s_and_b32 s91, {S_SPL}, 1")
    sexpr("s99", [(S_X, "shl", 15), (SB, "shl", 14), ("s90", "shl", 12), ("s91", "shl", 9)], W_Q)
    sexpr("s100", [(S_X, "shl", 12), (SB, "shl", 11), (S_SPL, "shl", 8)], W_QF)
    a("v_lshlrev_b32 v54, 3, v0")
    a("s_mov_b32 exec_hi, 0")
    loads = []; tags = []
    for i in range(4):
        loads.append(f"buffer_load_dwordx4 v[{16+4*i}:{19+4*i}], v1, {WSRD}, s99 offen offset:{1024*i} sc1")
        tags += [f"v{17+4*i}", f"v{19+4*i}"]
    get_mode("v3", "v50")
    after_own(F_PQ, 4, "v3", "v50", cfg.d_q)
    poll(loads, tags, "v50", sleep=0)
    a("v_add_f32 v48, v16, v20")
    a("v_add_f32 v49, v18, v22")
    a("v_add_f32 v50, v24, v28")
    a("v_add_f32 v51, v26, v30")
    a("v_add_f32 v48, v48, v50")
    a("v_add_f32 v49, v49, v51")
    a(f"v_mov_b32 v53, {S_TAG}")
    a("v_cvt_pk_bf16_f32 v52, v48, v49")
    store_loc(f"buffer_store_dwordx2 v[52:53], v54, {WSRD}, s100 offen")
    a("s_mov_b64 exec, -1")
    arrive(F_QF, "v3", "v10")
    a.label("L_q_qg")
    sexpr("s90", [(S_X, "shl", 12), (S_BT, "shl", 11), (SB, "shl", 10)], W_QF)
    a("v_lshrrev_b32 v54, 5, v0")
    a(f"v_mul_u32_u24 v54, {APITCH}, v54")
    a("v_and_b32 v55, 31, v0")
    a("v_lshl_add_u32 v54, v55, 3, v54")
    a(f"s_mul_i32 s100, {SB}, {2*APITCH}")
    a("v_add_u32 v54, s100, v54")
    ldA = f"buffer_load_dwordx4 v[16:19], v1, {WSRD}, s90 offen sc1"
    ldB = f"buffer_load_dwordx4 v[20:23], v1, {WSRD}, s90 offen sc1"
    a(f"s_cmp_eq_u32 {S_B}, 0")
    a("s_cbranch_scc1 L_q_qA")
    after_own(F_QF, 2, "v3", "v50", cfg.d_q)
    a("s_branch L_q_qP")
    a.label("L_q_qA")
    if cfg.quiet: spin_lds(F_LC, cfg.quiet, "v3", "v50")
    a.label("L_q_qP")
    a(ldA)
    a(f"s_sleep {cfg.qsl2}")
    a.label("L_q_loop")
    a(ldB)
    a("s_waitcnt vmcnt(1)")
    a(f"v_xor_b32 v50, {S_TAG}, v17")
    a(f"v_bitop3_b32 v50, v50, v19, {S_TAG} bitop3:0xf6")
    a("v_cmp_ne_u32 vcc, 0, v50")
    a("s_cbranch_vccz L_q_gotA")
    timeout()
    a(ldA)
    a("s_waitcnt vmcnt(1)")
    a(f"v_xor_b32 v50, {S_TAG}, v21")
    a(f"v_bitop3_b32 v50, v50, v23, {S_TAG} bitop3:0xf6")
    a("v_cmp_ne_u32 vcc, 0, v50")
    a("s_cbranch_vccnz L_q_loop")
    a("v_mov_b32 v24, v20")
    a("v_mov_b32 v25, v22")
    a("s_branch L_q_got")
    a.label("L_q_gotA")
    a("v_mov_b32 v24, v16")
    a("v_mov_b32 v25, v18")
    a.label("L_q_got")
    a(f"ds_write_b64 v54, v[24:25] offset:{L_Q}")
    arrive(F_3, "v3", "v10")
    stamp(3)
    a("s_waitcnt vmcnt(0)")
    if cfg.g_late: gate_lc(cfg.g_late, cfg.g_late * NK_B // NK_A, "v3", "v50")
    sexpr("s90", [(SB, "shl", 11), (S_KQ, "shl", 9)], W_MODF + 3*4096)
    a("s_add_u32 s99, s90, 4096")
    a("v_lshlrev_b32 v54, 3, v0")
    if cfg.warm:
        a(f"s_mul_i32 s94, {S_KQ}, 448")
        sexpr("s24", [(S_X, "shl", 15), (SB, "shl", 13), ("s94", "shl", 0)], W_GU, tmp="s25")
        a("s_add_u32 s25, s24, 4096")
        a("s_add_u32 s26, s24, 16384")
        a("s_add_u32 s27, s24, 20480")
        for wh in range(2):
            for k6 in range(4):
                sr = [["s24", "s25"], ["s26", "s27"]][wh][k6 >> 1]
                rb = 20 + 8*wh + 2*k6
                a(f"buffer_load_dwordx2 v[{rb}:{rb+1}], v54, {WSRD}, {sr} offen offset:{2048*(k6&1)} sc1")
        sexpr("s24", [(S_X, "shl", 10), (SB, "shl", 9)], W_X1S)
        sexpr("s25", [(S_X, "shl", 12), (SB, "shl", 11), (S_KQ, "shl", 9)], W_X1P)
        a(f"buffer_load_dwordx2 v[36:37], v54, {WSRD}, s24 offen sc1")
        a(f"buffer_load_dwordx2 v[38:39], v54, {WSRD}, s25 offen sc1")
    poll([f"buffer_load_dwordx2 v[16:17], v54, {WSRD}, s90 offen sc1",
          f"buffer_load_dwordx2 v[18:19], v54, {WSRD}, s99 offen sc1"], ["v17", "v19"], "v50", sleep=8)
    a("v_lshlrev_b32 v66, 16, v16")
    a("v_and_b32 v67, 0xffff0000, v16")
    a("v_lshlrev_b32 v48, 16, v18")
    a("v_and_b32 v49, 0xffff0000, v18")
    a("v_add_f32 v48, 1.0, v48")
    a("v_add_f32 v49, 1.0, v49")
    bf16r2("v64", "v65", "v48", "v49", "v50")
    r1_block("q", "v3")
    stamp(5)
    a("s_barrier")
    sexpr("s99", [(S_X, "shl", 10), (SB, "shl", 9)], W_X1S)
    sexpr("s90", [(S_X, "shl", 12), (SB, "shl", 11), (S_KQ, "shl", 9)], W_X1P)
    a("v_lshlrev_b32 v16, 3, v0")
    a("v_and_b32 v17, 31, v0")
    a("v_lshlrev_b32 v17, 4, v17")
    after_own(F_PX, 1, "v3", "v50", cfg.d_x1)
    stamp(8)
    poll([f"buffer_load_dwordx4 v[24:27], v17, {WSRD}, s99 offen sc1",
          f"buffer_load_dwordx2 v[20:21], v16, {WSRD}, s90 offen sc1"], ["v21", "v25", "v27"], "v50", sleep=cfg.rsl_l)
    stamp(9)
    allreduce(["v24", "v26"], "v_add_f32", ["v28", "v29"], ["x1", "x2", "x4", "x8", "x16"])
    a(f"s_mov_b32 s94, {INV512:#x}")
    a("v_mul_f32 v24, s94, v24")
    a("v_mul_f32 v26, s94, v26")
    a("v_lshlrev_b32 v12, 16, v20")
    a("v_fma_f32 v26, -v24, v24, v26")
    a("v_and_b32 v13, 0xffff0000, v20")
    a("v_max_f32 v26, 0, v26")
    ln_finish("v24", "v26", "v12", "v13", "v30")
    modulate("v12", "v13", "v64", "v65", "v66", "v67", "v16", "v30")
    a(f"ds_write_b32 v11, v16 offset:{L_ACT6}")
    a(f"s_mul_i32 s94, {S_KQ}, 448")
    sexpr("s90", [(S_X, "shl", 15), (SB, "shl", 13), ("s94", "shl", 0)], W_GU, tmp="s99")
    a("s_add_u32 s94, s90, 4096")
    a("s_add_u32 s99, s90, 16384")
    a("s_add_u32 s100, s90, 20480")
    a("s_waitcnt lgkmcnt(0)")
    stamp(6)
    a("s_barrier")
    a("v_lshlrev_b32 v16, 3, v0")
    a("v_mov_b32 v40, 0")
    a("v_lshlrev_b32 v17, 1, v0")
    a("v_add_u32 v17, s98, v17")
    a("s_mov_b32 exec_lo, -1")
    a("s_mov_b32 exec_hi, 0x00ffffff")
    loads = []; tags = []
    for wh in range(2):
        for k6 in range(4):
            sr = [["s90", "s94"], ["s99", "s100"]][wh][k6 >> 1]
            rb = 20 + 8*wh + 2*k6
            loads.append(f"buffer_load_dwordx2 v[{rb}:{rb+1}], v16, {WSRD}, {sr} offen offset:{2048*(k6&1)} sc1")
            tags.append(f"v{rb+1}")
    after_own(F_PG, 4, "v3", "v50", cfg.d_gu)
    poll(loads, tags, "v50", sleep=cfg.rsl_l)
    a("v_add_f32 v36, v20, v22")
    a("v_add_f32 v37, v24, v26")
    a("v_add_f32 v38, v28, v30")
    a("v_add_f32 v39, v32, v34")
    a("v_add_f32 v36, v36, v37")
    a("v_add_f32 v38, v38, v39")
    bf16r2("v36", "v38", "v36", "v38", "v50")
    a("v_mul_f32 v36, v36, v38")
    a("v_cvt_pk_bf16_f32 v40, v36, v36")
    a("s_mov_b64 exec, -1")
    a(f"ds_write_b16 v17, v40 offset:{L_ACT7}")
    a("s_waitcnt lgkmcnt(0)")
    stamp(7)
    a("s_barrier")
    dump_stamps(11)
    a("s_endpgm")

    a.label("L_slice")
    srd(48, 38, 2048)
    a("v_lshlrev_b32 v7, 4, v0")
    a("v_and_b32 v1, 3, v0")
    a("v_bfe_u32 v2, v0, 4, 1")
    a("v_bfe_u32 v4, v0, 3, 1")
    a("v_lshrrev_b32 v5, 5, v0")
    a("v_lshlrev_b32 v6, 2, v1")
    a("v_lshl_add_u32 v6, v2, 1, v6")
    a("v_add_u32 v6, v6, v4")
    a("v_lshlrev_b32 v8, 10, v5")
    a("v_lshl_add_u32 v8, v6, 1, v8")
    a(f"s_lshl_b32 s90, {S_LOC}, 5")
    a("buffer_load_ushort v9, v8, s[44:47], s90 offen")
    a("v_lshlrev_b32 v10, 4, v5")
    a("v_add_u32 v10, v10, v6")
    a("v_lshlrev_b32 v10, 2, v10")
    a("v_lshlrev_b32 v11, 1, v1")
    a("v_add_u32 v11, v11, v2")
    a("v_lshlrev_b32 v12, 11, v5")
    a("v_lshl_add_u32 v98, v11, 3, v12")
    a("v_lshlrev_b32 v99, 9, v5")
    a("v_lshlrev_b32 v12, 10, v5")
    a("v_lshl_add_u32 v97, v11, 2, v12")
    sexpr("s22", [(S_X, "shl", 12), (S_LOC, "shl", 6)], W_X1P)
    sexpr("s23", [(S_X, "shl", 10), (S_LOC, "shl", 4)], W_X1S)
    a(f"s_lshl_b32 s24, {S_LOC}, 5")
    a(f"s_lshl_b32 s17, {S_LOC}, 12")
    a("v_cmp_eq_u32 s[26:27], 1, v4")
    a("v_mov_b32 v100, 0x3f80")
    a("v_mov_b32 v101, 0x3f800000")
    a("s_waitcnt vmcnt(0)")
    get_tag()
    a("v_mov_b32 v3, 0")
    a("v_lshlrev_b32 v102, 16, v9")
    get_mode("v3", "v20")
    stamp(1)

    def part_loads(base, rb0=16, setup=True):
        if setup: a(f"s_add_u32 s20, s17, {base}")
        loads = []; tags = []
        for i in range(4):
            rb = rb0 + 4*i
            loads.append(f"buffer_load_dwordx4 v[{rb}:{rb+3}], v7, {WSRD}, s20 offen offset:{1024*i} sc1")
            tags += [f"v{rb+1}", f"v{rb+3}"]
        return loads, tags
    def part_loads_atomic(base):
        a(f"s_add_u32 s20, s17, {base}")
        loads = []; tags = []
        for r in range(16, 32): loads.append(f"v_mov_b32 v{r}, 0")
        for i in range(4):
            rb = 16 + 4*i
            for hh in range(2):
                loads.append(f"buffer_atomic_add_x2 v[{rb+2*hh}:{rb+2*hh+1}], v7, {WSRD}, s20 offen offset:{1024*i + 8*hh} sc0 sc1")
            tags += [f"v{rb+1}", f"v{rb+3}"]
        return loads, tags
    def part_dot(rb0):
        for b in range(2):
            for (k, (off, sel)) in enumerate(((0, "v100"), (0, "v101"), (2, "v100"), (2, "v101"))):
                a(f"v_dot2_f32_bf16 v{32+4*b+k}, v{rb0+8*b+off}, {sel}, 0")
        for b in range(2):
            for (k, (off, sel)) in enumerate(((0, "v100"), (0, "v101"), (2, "v100"), (2, "v101"))):
                a(f"v_dot2_f32_bf16 v{32+4*b+k}, v{rb0+4+8*b+off}, {sel}, v{32+4*b+k}")
    def part_sum(dot=True):
        if dot: part_dot(16)
        for c in range(4): a(f"v_permlane32_swap_b32 v{32+c}, v{36+c}")
        for c in range(4): a(f"v_add_f32 v{32+c}, v{32+c}, v{36+c}")
        a("v_permlane16_swap_b32 v32, v34")
        a("v_permlane16_swap_b32 v33, v35")
        a("v_add_f32 v32, v32, v34")
        a("v_add_f32 v33, v33, v35")
        a("v_cndmask_b32 v36, v32, v33, s[26:27]")
        a("v_cndmask_b32 v37, v33, v32, s[26:27]")
        a("v_add_f32_dpp v36, v37, v36 row_ror:8 row_mask:0xf bank_mask:0xf")
        a("v_add_f32_dpp v40, v36, v36 row_shl:4 row_mask:0xf bank_mask:0x5")
        a("v_add_f32_dpp v40, v36, v36 row_shr:4 row_mask:0xf bank_mask:0xa")
    def resid(gate):
        bf16r1("v40", "v40")
        a(f"v_mul_f32 v40, v40, {gate}")
        bf16r1("v40", "v40")
        a("v_add_f32 v102, v102, v40")
        bf16r1("v102", "v102")
    def make_pair(dst):
        a("v_mov_b32_dpp v41, v102 row_ror:8 row_mask:0xf bank_mask:0xf")
        a(f"v_cvt_pk_bf16_f32 {dst}, v102, v41")
    PUBM = "0x000f000f"

    l1, t1 = part_loads(W_A4)
    spin_lds(F_MB2, 4, "v3", "v15")
    a("v_lshrrev_b32 v16, 4, v0")
    a("v_and_b32 v17, 15, v0")
    a(f"v_mul_u32_u24 v18, {PPITCH}, v16")
    a("v_lshl_add_u32 v18, v17, 2, v18")
    a("v_lshlrev_b32 v19, 2, v16")
    a("v_mov_b32 v20, 0")
    a("v_mov_b32 v21, 0x3f803f80")
    for w in range(4): a(f"ds_read_b32 v{24+w}, v19 offset:{L_MX+16*w}")
    for i in range(NK_B // 32): a(f"ds_read_b32 v{32+i}, v18 offset:{L_P+64*i}")
    a(f"s_cmp_lg_u32 {S_B}, 0")
    a("s_cbranch_scc1 L_sl_stB")
    for i in range(NK_B // 32, NK_A // 32): a(f"ds_read_b32 v{32+i}, v18 offset:{L_P+64*i}")
    a("s_waitcnt lgkmcnt(0)")
    for i in range(NK_B // 32, NK_A // 32): a(f"v_dot2_f32_bf16 v20, v{32+i}, v21, v20")
    a.label("L_sl_stB")
    a("s_waitcnt lgkmcnt(0)")
    for i in range(NK_B // 32): a(f"v_dot2_f32_bf16 v20, v{32+i}, v21, v20")
    allreduce(["v20"], "v_add_f32", [], ["x1", "x2", "x4", "x8"])
    a("v_max3_f32 v24, v24, v25, v26")
    a("v_max_f32 v24, v24, v27")
    a(f"v_mov_b32 v25, {S_TAG}")
    a("v_mov_b32 v26, v20")
    a(f"v_mov_b32 v27, {S_TAG}")
    a("v_lshlrev_b32 v22, 8, v16")
    sexpr("s25", [(S_X, "shl", 11), (S_BT, "shl", 10), (S_SP, "shl", 4)], W_ST)
    a("s_mov_b32 exec_lo, 0x00010001")
    a("s_mov_b32 exec_hi, 0x00010001")
    store_loc(f"buffer_store_dwordx4 v[24:27], v22, {WSRD}, s25 offen")
    a("s_mov_b64 exec, -1")
    spin_lds(F_GA, 1, "v3", "v15")
    a(f"ds_read_b32 v103, v10 offset:{L_GA}")
    a(f"ds_read_b32 v104, v10 offset:{L_GB}")
    a("s_waitcnt lgkmcnt(0)")
    r1_block("s", "v3")
    a(f"v_mov_b32 v43, {S_TAG}")
    a(f"v_mov_b32 v45, {S_TAG}")
    a(f"v_mov_b32 v47, {S_TAG}")
    a("s_barrier")
    after_own(F_PA, 4, "v3", "v15", cfg.d_s5)
    stamp(2)
    if cfg.dbl:
        poll2(lambda rb: part_loads(0, rb, setup=False), "v15", "s5", part_dot)
        stamp(3)
        part_sum(dot=False)
    else:
        poll(l1, t1, "v15")
        stamp(3)
        part_sum()
    resid("v103")
    make_pair("v42")
    a("v_mul_f32 v46, v102, v102")
    a("v_mov_b32 v44, v102")
    a(f"s_mov_b32 exec_lo, {PUBM}")
    a(f"s_mov_b32 exec_hi, {PUBM}")
    store_loc(f"buffer_store_dwordx2 v[42:43], v98, {WSRD}, s22 offen")
    a("s_mov_b64 exec, -1")
    allreduce(["v44", "v46"], "v_add_f32", ["v48", "v49"], ["x1", "x2", "r8", "x16"])
    a("s_mov_b32 exec_lo, 1")
    a("s_mov_b32 exec_hi, 1")
    store_loc(f"buffer_store_dwordx4 v[44:47], v99, {WSRD}, s23 offen")
    a("s_mov_b64 exec, -1")
    a("v_mov_b32 v15, 1")
    arrive(F_PX, "v3", "v15")
    stamp(4)
    mark(14, "v3")
    a(f"s_and_b32 s90, {S_LOC}, 7")
    a(f"s_cmp_lg_u32 s90, {S_X}")
    a("s_cbranch_scc1 L_slice_nf")
    a("s_barrier")
    a("s_barrier")
    l1, t1 = part_loads_atomic(W_DN) if cfg.atom8 else part_loads(W_DN)
    after_own(F_PD, 4, "v3", "v15", cfg.d_s8)
    if cfg.dbl and not cfg.atom8:
        a("s_waitcnt vmcnt(0)")
        poll2(lambda rb: part_loads(0, rb, setup=False), "v15", "s8", part_dot)
        part_sum(dot=False)
    else:
        poll(l1, t1, "v15")
        part_sum()
    resid("v104")
    make_pair("v42")
    a(f"s_mov_b32 exec_lo, {PUBM}")
    a(f"s_mov_b32 exec_hi, {PUBM}")
    a("buffer_store_dword v42, v97, s[48:51], s24 offen")
    a(f"s_cmp_lg_u32 {S_WG}, 0")
    a("s_cbranch_scc1 L_slice_end")
    a("s_mov_b64 exec, 1")
    a(f"v_mov_b32 v24, {S_EP}")
    a("v_mov_b32 v21, 0")
    a(f"buffer_store_dword v24, v21, {WSRD}, 0 offen sc1")
    a.label("L_slice_end")
    if cfg.probe == 1:
        a("s_sleep 94")
        a("s_sleep 94")
    if cfg.probe >= 10:
        a(f"ds_read_b32 v20, v3 offset:{L_PRB}")
        a("s_waitcnt lgkmcnt(0)")
        a("v_readfirstlane_b32 s22, v20")
        a("s_mov_b32 s24, 100000")
        a.label("L_probe")
        a("s_memrealtime s[20:21]")
        a("s_waitcnt lgkmcnt(0)")
        a("s_sub_u32 s24, s24, 1")
        a("s_cbranch_scc1 L_probe_e")
        a("s_sub_u32 s23, s20, s22")
        a("s_cmp_lt_u32 s23, 2000")
        a("s_cbranch_scc1 L_probe")
        a.label("L_probe_e")
    if cfg.probe == 3:
        a("s_add_u32 s22, s62, 2500")
        a.label("L_probe")
        a("s_memrealtime s[20:21]")
        a("s_waitcnt lgkmcnt(0)")
        a("s_sub_u32 s23, s20, s22")
        a("s_cmp_lt_i32 s23, 0")
        a("s_cbranch_scc1 L_probe")
    if cfg.probe == 2:
        a("s_memrealtime s[20:21]")
        a("s_waitcnt lgkmcnt(0)")
        a("s_add_u32 s22, s20, 500")
        a.label("L_probe")
        a("s_memrealtime s[20:21]")
        a("s_waitcnt lgkmcnt(0)")
        a("s_sub_u32 s23, s20, s22")
        a("s_cmp_lt_i32 s23, 0")
        a("s_cbranch_scc1 L_probe")
    a("s_mov_b64 exec, -1")
    stamp(5)
    dump_stamps(6, final=True)
    a("s_endpgm")
    a.label("L_slice_nf")
    a("s_barrier")
    a("s_barrier")
    dump_stamps(5, final=True)
    a("s_endpgm")

    a.label("L_aux")
    srd(44, 28, 512*1792*2)
    srd(48, 30, 512*1792*2)
    srd(52, 32, 1792*512*2)
    a("v_mov_b32 v10, 1")
    sexpr("s18", [(S_X, "mul", 224*1024), (S_KQ, "mul", 56*1024), (S_CB, "shl", 7)])
    sexpr("s19", [(S_KQ, "mul", 128*3584), (S_X, "mul", 448), (S_CB, "shl", 6)])
    a("s_waitcnt vmcnt(0)")
    get_tag()
    strip_voff(3584, "v64")
    unit_voffs(pitch_shift=10, d0="v66", d1="v67")
    a("v_mov_b32 v3, 0")
    stamp(1)

    if cfg.g_piece:
        Lq = a.newlabel("Lgx")
        a(f"s_cmp_lg_u32 {S_B}, 0")
        a(f"s_cbranch_scc1 {Lq}")
        spin_lds(F_LC, cfg.g_piece, "v3", "v50")
        a.label(Lq)
    if cfg.local == 2:
        L = a.newlabel("Lxc"); E = a.newlabel("Lxce")
        srd(60, 40, 256)
        a(f"s_lshl_b32 s91, {S_X}, 5")
        a("s_add_u32 s91, s91, 8")
        a("v_mov_b32 v18, s91")
        a("s_getreg_b32 s90, hwreg(HW_REG_XCC_ID)")
        a("s_and_b32 s90, s90, 7")
        a("s_mul_i32 s90, s90, 6")
        a("s_lshl_b64 s[26:27], 1, s90")
        a("s_mov_b64 exec, 1")
        a.label(L)
        a("buffer_load_dwordx2 v[20:21], v18, s[60:63], 0 offen sc1")
        a("s_waitcnt vmcnt(0)")
        a("v_readfirstlane_b32 s20, v20")
        a("v_readfirstlane_b32 s21, v21")
        a("s_mov_b64 s[22:23], s[20:21]")
        a("s_mov_b32 s90, 0")
        for k in range(8):
            a("s_and_b32 s91, s22, 63")
            a("s_add_u32 s90, s90, s91")
            if k < 7: a("s_lshr_b64 s[22:23], s[22:23], 6")
        a("s_cmp_ge_u32 s90, 32")
        a(f"s_cbranch_scc1 {E}")
        timeout()
        a("s_sleep 2")
        a(f"s_branch {L}")
        a.label(E)
        a("s_lshl_b64 s[22:23], s[26:27], 5")
        a("s_cmp_eq_u64 s[20:21], s[22:23]")
        a("s_cselect_b32 s90, 1, 2")
        a("v_mov_b32 v16, s90")
        a(f"ds_write_b32 v3, v16 offset:{F_LM}")
        a("s_mov_b64 exec, -1")
    stamp(2)
    a(f"s_cmp_lg_u32 {S_B}, 0")
    a("s_cbranch_scc1 L_aux_ga")
    a(f"s_cmp_ge_u32 {S_SPL}, 16")
    a("s_cbranch_scc1 L_aux_ga")
    a(f"s_lshr_b32 s90, {S_X}, 1")
    a(f"s_and_b32 s91, {S_X}, 1")
    a(f"s_lshr_b32 s22, {S_SPL}, 2")
    a(f"s_and_b32 s23, {S_SPL}, 3")
    sexpr("s20", [("s90", "shl", 15), ("s91", "shl", 14), ("s22", "shl", 12), ("s23", "shl", 8)], W_MOD + 2*32768)
    sexpr("s21", [("s90", "shl", 12), ("s91", "shl", 11), (S_SPL, "shl", 7)], W_MODF + 2*4096)
    a("v_lshlrev_b32 v18, 3, v0")
    a("s_mov_b32 exec_hi, 0")
    loads = []; tags = []
    for i in range(4):
        loads.append(f"buffer_load_dwordx2 v[{40+2*i}:{41+2*i}], v18, {WSRD}, s20 offen offset:{1024*i} sc1")
        tags.append(f"v{41+2*i}")
    if cfg.g_piece: spin_lds(F_LC, cfg.g_piece, "v3", "v50")
    poll(loads, tags, "v60", sleep=6, sample=(not cfg.g_piece))
    a("v_add_f32 v40, v40, v42")
    a("v_add_f32 v44, v44, v46")
    a("v_add_f32 v40, v40, v44")
    a("v_lshlrev_b32 v18, 2, v0")
    a(f"v_mov_b32 v43, {S_TAG}")
    a("v_mov_b32_dpp v42, v40 quad_perm:[1,0,3,2] row_mask:0xf bank_mask:0xf")
    a("s_mov_b32 exec_lo, 0x55555555")
    a("v_cvt_pk_bf16_f32 v42, v40, v42")
    a(f"buffer_store_dwordx2 v[42:43], v18, {WSRD}, s21 offen sc1")
    a("s_mov_b64 exec, -1")
    a.label("L_aux_ga")
    if cfg.g_late: gate_lc(cfg.g_late, cfg.g_late * NK_B // NK_A, "v3", "v50")
    sexpr("s20", [(S_LOC, "shl", 6)], W_MODF + 2*4096)
    a(f"s_add_u32 s21, s20, {3*4096}")
    a("v_bfe_u32 v16, v0, 3, 1")
    a("v_and_b32 v17, 7, v0")
    a("v_lshlrev_b32 v18, 11, v16")
    a("v_lshl_add_u32 v18, v17, 3, v18")
    a("v_and_b32 v19, 15, v0")
    a("v_lshlrev_b32 v19, 3, v19")
    a("s_mov_b64 exec, 0xffff")
    poll([f"buffer_load_dwordx2 v[40:41], v18, {WSRD}, s20 offen sc1",
          f"buffer_load_dwordx2 v[42:43], v18, {WSRD}, s21 offen sc1"], ["v41", "v43"], "v60", sleep=8)
    a("v_lshlrev_b32 v44, 16, v40")
    a("v_and_b32 v45, 0xffff0000, v40")
    a("v_lshlrev_b32 v46, 16, v42")
    a("v_and_b32 v47, 0xffff0000, v42")
    a(f"ds_write_b64 v19, v[44:45] offset:{L_GA}")
    a(f"ds_write_b64 v19, v[46:47] offset:{L_GB}")
    a("s_mov_b64 exec, -1")
    arrive(F_GA, "v3", "v10")
    r1_block("a", "v3")
    a("s_barrier")
    if cfg.bearly:
        a(f"s_cmp_lg_u32 {S_B}, 0")
        a("s_cbranch_scc1 L_aux_lateE")
    if cfg.guwo:
        a(f"s_cmp_eq_u32 {S_B}, 0")
        a("s_cbranch_scc1 L_aux_lateE")
    spin_lds(F_PA, 4, "v3", "v50", sleep=False)
    a(f"s_cmp_eq_u32 {S_CB}, 7")
    a("s_cbranch_scc1 L_aux_gu_e")
    a(f"s_mov_b32 m0, {L_G}")
    a("s_mov_b32 s99, 8")
    a.label("L_aux_gu")
    a("buffer_load_dwordx4 v64, s[44:47], s19 offen nt lds")
    a("s_add_u32 m0, m0, 0x2000")
    a("s_nop 0")
    a("buffer_load_dwordx4 v64, s[48:51], s19 offen nt lds")
    a("s_sub_u32 m0, m0, 0x1c00")
    a(f"s_add_u32 s19, s19, {16*3584}")
    a("s_sub_u32 s99, s99, 1")
    a("s_cmp_lg_u32 s99, 0")
    a("s_cbranch_scc1 L_aux_gu")
    a.label("L_aux_gu_e")
    a("s_waitcnt vmcnt(0)")
    arrive(F_LATE, "v3", "v10")
    if not cfg.dnwo:
        spin_lds(F_PX, 1, "v3", "v50", sleep=False)
        a(f"s_mov_b32 m0, {L_DN}")
        a("s_nop 0")
        for i in range(8):
            a(f"buffer_load_dwordx4 v{66 + (i&1)}, s[52:55], s18 offen nt lds")
            a("s_add_u32 m0, m0, 0x400")
            a("s_add_u32 s18, s18, 0x2000")
        a("s_waitcnt vmcnt(0)")
        arrive(F_DN, "v3", "v10")
    a.label("L_aux_lateE")
    stamp(3)
    a("s_barrier")
    a("s_barrier")
    dump_stamps(4)
    a("s_endpgm")

    a.label("L_abort")
    a("s_mov_b64 exec, 1")
    a("v_mov_b32 v1, 0")
    a(f"s_lshl_b32 s90, {S_WG}, 16")
    a("s_or_b32 s90, s90, s1") if cfg.site else None
    a("v_mov_b32 v2, s90")
    a(f"s_and_b32 s90, {S_W}, 1")
    a("s_lshl_b32 s90, s90, 2")
    a("v_mov_b32 v1, s90")
    a("v_or_b32 v2, 0xde000000, v2")
    a("s_mov_b32 s44, s40")
    a("s_and_b32 s45, s41, 0xffff")
    a("s_mov_b32 s46, 256")
    a("s_mov_b32 s47, 0x20000")
    a("buffer_store_dword v2, v1, s[44:47], 0 offen")
    a.label("L_end")
    a("s_endpgm")

    hdr = open(f"cdna_kernels/{NAME}.s.ref").read().split("; Override launch")[0]
    out = hdr
    out += f"; @launch grid=(256,1,1) block=(576,1,1) lds={L_TOTAL}\n"
    out += '.amdgcn_target "amdgcn-amd-amdhsa--gfx950"\n.text\n'
    out += f".globl {NAME}_kernel\n.p2align 8\n.type {NAME}_kernel,@function\n"
    out += a.text()
    out += f""".section .rodata,"a"
.p2align 6
.amdhsa_kernel {NAME}_kernel
  .amdhsa_next_free_vgpr 128
  .amdhsa_next_free_sgpr 102
  .amdhsa_accum_offset 128
  .amdhsa_group_segment_fixed_size 0
  .amdhsa_kernarg_size 112
  .amdhsa_user_sgpr_count 2
  .amdhsa_user_sgpr_kernarg_segment_ptr 1
  .amdhsa_system_sgpr_workgroup_id_x 1
.end_amdhsa_kernel
"""
    return out

if __name__ == "__main__":
    cfg = Cfg()
    outp = sys.argv[1]
    for arg in sys.argv[2:]:
        k, v = arg.split("=")
        assert hasattr(cfg, k), k
        setattr(cfg, k, int(v))
    open(outp, "w").write(gen(cfg))
    print("wrote", outp)
```

```python
import sys
from asmlib import Asm

NAME = "adaLN_cond__sliding_block_cached__glu_gated_bilinear__decode"

class Cfg:
    D = 40
    DA = 28
    DA1 = 0
    stamps = 0
    spin = 1 << 20
    rsl = 1
    local = 2
    touch = 1
    wqsplit = 16
    guwo = 0
    dnwo = 1
    bearly = 0
    mprio = 1
    warm = 1
    dbl = 1
    stag = 4
    rsl_l = 0
    g_piece = 0
    g_late = 0
    slow = 0
    nwait = 1
    qsl2 = 6
    wq1 = 4
    quiet = 0
    prio = 0
    qsl = 4
    kstart = 1
    d_h = 16
    d_q = 1
    d_r1 = 1
    d_s5 = 8
    d_x1 = 1
    d_gu = 1
    d_s8 = 2
    atom8 = 1
    probe = 0
    site = 0

(F_LC, F_1, F_2, F_3, F_EC, F_KC, F_MB1, F_MB2, F_LATE, F_PO, F_PA, F_PX, F_PG, F_PD,
 F_PM, F_PQ, F_QF, F_WQ, F_WOL, F_MRL, F_LM, F_GA, F_DN, F_HI) = [4*i for i in range(24)]
L_MX = 128; L_LS = 192; L_ZERO = 256
L_ACT1 = 768; L_ACT2 = 1344; L_ACT4 = 1920; L_ACT6 = 2496; L_ACT7 = 3072
L_PRB = 7424
L_GA = 7168; L_GB = 7296
L_Q = 3648
L_P = 4736
L_X = 8192; L_C = 10240
L_K = 12288; L_V = L_K + 73728; L_TOTAL = L_V + 73728; L_MR = L_V + 57344
NK_A = 288; NK_B = 160
L_MODB = L_K; L_WQ = L_V
L_WO = L_K; L_G = L_K + 16384; L_U = L_K + 24576; L_DN = L_K + 32768
L_WO_B = L_K + 40960; L_G_B = L_K + 57344; L_DN_B = L_V + 65536
APITCH = 272; PPITCH = 592

W_EPOCH = 0
W_MOD = 0x1000
W_MODF = 0x38000
W_Q = 0x40000
W_QF = 0x88000
W_ST = 0x80000
W_O = 0x90000
W_A4 = 0x110000
W_X1P = 0x150000
W_X1S = 0x158000
W_GU = 0x160000
W_DN = 0x1A0000
W_STAMP = 0x200000
W_USED = 0x300000

LOG2E = 0x3fb8aa3b
SCALE = 0x3db504f3
EPS = 0x3727c5ac
INV512 = 0x3b000000

S_WG, S_W, S_X, S_LOC, S_B, S_SPL, S_KQ, S_CB, S_TAG, S_SPIN = "s2", "s3", "s4", "s5", "s6", "s7", "s8", "s9", "s10", "s11"
S_U = "s7"
S_BT = "s86"
S_SP = "s87"
WSRD = "s[12:15]"
S_EP = "s89"
S_LM = "s88"
PX = "s[42:43]"
S_PH = "s101"
KB_B = 0

def gen(cfg):
    a = Asm()
    D = cfg.D

    def srd(dst, plo, size):
        a(f"s_mov_b32 s{dst}, s{plo}")
        a(f"s_and_b32 s{dst+1}, s{plo+1}, 0xffff")
        a(f"s_mov_b32 s{dst+2}, {size}")
        a(f"s_mov_b32 s{dst+3}, 0x20000")

    def stamp(k):
        if cfg.stamps == 1 or (cfg.stamps == 2 and k == 0): a(f"s_memrealtime s[{64+2*k}:{65+2*k}]")

    def mark(pid, vz):
        if cfg.probe == pid:
            a("s_memrealtime s[62:63]")
            a("s_waitcnt lgkmcnt(0)")
            a("v_mov_b32 v127, s62")
            a(f"ds_max_u32 {vz}, v127 offset:{L_PRB}")

    def dump_stamps(n, final=False):
        if not cfg.stamps: return
        if cfg.stamps == 2:
            if not final: return
            a("s_memrealtime s[66:67]")
            n = 2
        a("s_waitcnt lgkmcnt(0)")
        a(f"s_mul_i32 s90, {S_WG}, 9")
        a(f"s_add_u32 s90, s90, {S_W}")
        a("s_lshl_b32 s90, s90, 7")
        a(f"s_add_u32 s90, s90, {W_STAMP}")
        a("s_mov_b64 exec, 1")
        a("v_mov_b32 v1, 0")
        for k in range(n):
            a(f"v_mov_b32 v2, s{64+2*k}")
            a(f"v_mov_b32 v3, s{65+2*k}")
            a(f"buffer_store_dwordx2 v[2:3], v1, {WSRD}, s90 offen offset:{8*k}")
            a("s_nop 1")
        a("s_waitcnt vmcnt(0)")

    sites = [0]
    def timeout():
        if cfg.site:
            sites[0] += 1
            a(f"s_mov_b32 s1, {sites[0]}")
        a(f"s_sub_u32 {S_SPIN}, {S_SPIN}, 1")
        a("s_cbranch_scc1 L_abort")

    def spin_lds(off, n, vz, vt, sleep=True):
        L = a.newlabel("Lsp"); E = a.newlabel("Lspe")
        a.label(L)
        a(f"ds_read_b32 {vt}, {vz} offset:{off}")
        a("s_waitcnt lgkmcnt(0)")
        a(f"v_readfirstlane_b32 s91, {vt}")
        a(f"s_cmp_ge_i32 s91, {n}")
        a(f"s_cbranch_scc1 {E}")
        timeout()
        if sleep: a("s_sleep 1")
        a(f"s_branch {L}")
        a.label(E)

    def arrive(off, vz, vone):
        a("s_mov_b64 s[92:93], exec")
        a("s_mov_b64 exec, 1")
        a(f"ds_add_u32 {vz}, {vone} offset:{off}")
        a("s_mov_b64 exec, s[92:93]")

    def poll(loads, tags, vacc, sleep=None, sample=False, hook=None):
        if sleep is None: sleep = cfg.rsl
        L = a.newlabel("Lpl"); E = a.newlabel("Lple"); R = a.newlabel("Lplr")
        a(f"s_mov_b64 {PX}, exec")
        if sample:
            a(f"s_mov_b32 {S_PH}, 0")
            a("s_mov_b64 exec, 1")
        if hook:
            H = a.newlabel("Lplh")
            for ld in loads: a(ld)
            hook()
            a(f"s_branch {H}")
        a.label(L)
        for ld in loads: a(ld)
        if hook: a.label(H)
        a("s_waitcnt vmcnt(0)")
        a(f"v_xor_b32 {vacc}, {S_TAG}, {tags[0]}")
        for t in tags[1:]:
            a(f"v_bitop3_b32 {vacc}, {vacc}, {t}, {S_TAG} bitop3:0xf6")
        a(f"v_cmp_ne_u32 vcc, 0, {vacc}")
        if sample:
            a(f"s_cbranch_vccnz {R}")
            a(f"s_cmp_lg_u32 {S_PH}, 0")
            a(f"s_cbranch_scc1 {E}")
            a(f"s_mov_b32 {S_PH}, 1")
            a(f"s_mov_b64 exec, {PX}")
            a(f"s_branch {L}")
            a.label(R)
        else:
            a(f"s_cbranch_vccz {E}")
        a("s_mov_b64 exec, vcc")
        timeout()
        if sleep: a(f"s_sleep {sleep}")
        a(f"s_branch {L}")
        a.label(E)
        a(f"s_mov_b64 exec, {PX}")

    def poll2(mk, vacc, uid, use):
        la, ta = mk(16); lb, tb = mk(64)
        nl = len(la)
        def check(tags):
            a(f"v_xor_b32 {vacc}, {S_TAG}, {tags[0]}")
            for t in tags[1:]: a(f"v_bitop3_b32 {vacc}, {vacc}, {t}, {S_TAG} bitop3:0xf6")
            a(f"v_cmp_ne_u32 vcc, 0, {vacc}")
        for l in la: a(l)
        a(f"s_sleep {cfg.stag}")
        a.label(f"L_p2_{uid}")
        for l in lb: a(l)
        a(f"s_waitcnt vmcnt({nl})")
        check(ta)
        a(f"s_cbranch_vccz L_p2a_{uid}")
        timeout()
        for l in la: a(l)
        a(f"s_waitcnt vmcnt({nl})")
        check(tb)
        a(f"s_cbranch_vccnz L_p2_{uid}")
        use(64)
        a(f"s_branch L_p2e_{uid}")
        a.label(f"L_p2a_{uid}")
        use(16)
        a.label(f"L_p2e_{uid}")

    def after_own(flag, n, vz, vt, dly):
        spin_lds(flag, n, vz, vt, sleep=False)
        if dly: a(f"s_sleep {dly}")

    def get_mode(vz, vt):
        if cfg.local == 2:
            spin_lds(F_LM, 1, vz, vt)
            a(f"s_mov_b32 {S_LM}, s91")

    def store_loc(text):
        if cfg.local == 0: a(text + " sc1")
        elif cfg.local == 1: a(text)
        else:
            P = a.newlabel("Lst"); E = a.newlabel("Lste")
            a(f"s_cmp_eq_u32 {S_LM}, 1")
            a(f"s_cbranch_scc1 {P}")
            a(text + " sc1")
            a(f"s_branch {E}")
            a.label(P)
            a(text)
            a.label(E)

    def bf16r2(d0, d1, s0, s1, tmp):
        a(f"v_cvt_pk_bf16_f32 {tmp}, {s0}, {s1}")
        a(f"v_lshlrev_b32 {d0}, 16, {tmp}")
        a(f"v_and_b32 {d1}, 0xffff0000, {tmp}")

    def bf16r1(d, s):
        a(f"v_cvt_pk_bf16_f32 {d}, {s}, {s}")
        a(f"v_lshlrev_b32 {d}, 16, {d}")

    def allreduce(regs, op, tmps, steps):
        dpp = {"x1": "quad_perm:[1,0,3,2]", "x2": "quad_perm:[2,3,0,1]", "x4": "row_half_mirror", "x8": "row_mirror", "r8": "row_ror:8", "r4": "row_ror:4"}
        for s in steps:
            if s in dpp:
                for r in regs:
                    a(f"{op}_dpp {r}, {r}, {r} {dpp[s]} row_mask:0xf bank_mask:0xf")
            else:
                ins = "v_permlane16_swap_b32" if s == "x16" else "v_permlane32_swap_b32"
                for r, t in zip(regs, tmps): a(f"v_mov_b32 {t}, {r}")
                for r, t in zip(regs, tmps): a(f"{ins} {r}, {t}")
                for r, t in zip(regs, tmps): a(f"{op} {r}, {r}, {t}")
    FULL = ["x1", "x2", "x4", "x8", "x16", "x32"]

    def sexpr(dst, terms, const=0, tmp="s94"):
        first = True
        for (reg, kind, n) in terms:
            tgt = dst if first else tmp
            if kind == "shl":
                if n == 0: a(f"s_mov_b32 {tgt}, {reg}")
                else: a(f"s_lshl_b32 {tgt}, {reg}, {n}")
            else: a(f"s_mul_i32 {tgt}, {reg}, {n}")
            if not first: a(f"s_add_u32 {dst}, {dst}, {tmp}")
            first = False
        if const: a(f"s_add_u32 {dst}, {dst}, {const}")

    def gate_lc(valA, valB, vz, vt):
        a(f"s_mul_i32 s99, {S_B}, {valB - valA}")
        a(f"s_add_u32 s99, s99, {valA}")
        spin_lds(F_LC, "s99", vz, vt)

    def get_tag():
        a(f"v_readfirstlane_b32 {S_EP}, v3")
        a(f"s_add_u32 {S_EP}, {S_EP}, 1")
        a(f"s_mul_i32 {S_TAG}, {S_EP}, 0x9E3779B1")

    def unit_voffs(pitch_shift=None, pitch=None, d0="v24", d1="v25"):
        a("v_lshrrev_b32 v3, 3, v0")
        a("v_bfe_u32 v4, v0, 4, 1")
        a("v_lshlrev_b32 v4, 1, v4")
        a("v_and_b32 v5, 7, v0")
        a("v_xor_b32 v4, v4, v5")
        a("v_lshlrev_b32 v4, 4, v4")
        if pitch_shift is not None: a(f"v_lshlrev_b32 v6, {pitch_shift}, v3")
        else: a(f"v_mul_u32_u24 v6, {pitch}, v3")
        a(f"v_add_u32 {d0}, v6, v4")
        a(f"v_xor_b32 {d1}, 64, {d0}")

    def strip_voff(pitch, d):
        a("v_lshrrev_b32 v6, 2, v0")
        a(f"v_mul_u32_u24 {d}, {pitch}, v6")
        a("v_bfe_u32 v6, v0, 5, 1")
        a("v_lshlrev_b32 v6, 1, v6")
        a("v_and_b32 v7, 3, v0")
        a("v_xor_b32 v6, v6, v7")
        a(f"v_lshl_add_u32 {d}, v6, 4, {d}")

    a.label(f"{NAME}_kernel")
    a(f"s_cmp_ge_u32 {S_WG}, 256")
    a("s_cbranch_scc1 L_end")
    a("s_load_dwordx16 s[16:31], s[0:1], 0")
    a("s_load_dwordx8 s[32:39], s[0:1], 64")
    a("s_load_dwordx4 s[40:43], s[0:1], 96")
    stamp(0)
    if cfg.probe == 3: a("s_memrealtime s[62:63]")
    a("v_lshrrev_b32 v1, 6, v0")
    a("v_and_b32 v0, 63, v0")
    a(f"v_readfirstlane_b32 {S_W}, v1")
    a(f"s_and_b32 {S_X}, {S_WG}, 7")
    a(f"s_lshr_b32 {S_LOC}, {S_WG}, 3")
    a(f"s_cmp_lt_u32 {S_LOC}, 8")
    a(f"s_cselect_b32 {S_B}, 1, 0")
    a(f"s_cselect_b32 s90, 0, 8")
    a(f"s_sub_u32 {S_SPL}, {S_LOC}, s90")
    a(f"s_cselect_b32 s91, 4, 12") if False else None
    a(f"s_cmp_lt_u32 {S_LOC}, 8")
    a(f"s_cselect_b32 s91, 4, 12")
    a(f"s_cselect_b32 s94, 0, 4")
    a(f"s_cmp_ge_u32 {S_SPL}, s91")
    a(f"s_cselect_b32 {S_BT}, 1, 0")
    a(f"s_mul_i32 s90, {S_BT}, s91")
    a(f"s_sub_u32 {S_SP}, {S_SPL}, s90")
    a(f"s_add_u32 {S_SP}, {S_SP}, s94")
    a(f"s_lshr_b32 {S_KQ}, {S_LOC}, 3")
    a(f"s_and_b32 {S_CB}, {S_LOC}, 7")
    a(f"s_mov_b32 {S_SPIN}, {cfg.spin}")
    a(f"s_mov_b32 {S_LM}, {1 if cfg.local == 1 else 2}")
    a(f"s_cmp_lg_u32 {S_W}, 8")
    a("s_cbranch_scc1 L_worker")

    SLC = "s95"; SOFF = "s96"
    unit_voffs(pitch=6144, d0="v20", d1="v21")
    a(f"s_and_b32 s90, {S_SPL}, 3")
    a(f"s_mul_i32 {SOFF}, s90, {128*6144}")
    a(f"s_lshr_b32 s90, {S_SPL}, 2")
    a(f"s_lshl_b32 s94, {S_X}, 2")
    a("s_add_u32 s94, s94, 16")
    a(f"s_lshl_b32 s91, {S_X}, 1")
    a("s_sub_u32 s91, s91, 4")
    a(f"s_cmp_ge_u32 {S_SPL}, 16")
    a("s_cselect_b32 s94, s91, s94")
    a("s_add_u32 s90, s90, s94")
    a("s_lshl_b32 s90, s90, 7")
    a(f"s_add_u32 {SOFF}, {SOFF}, s90")
    a(f"s_mov_b32 m0, {L_MR}")
    a("s_waitcnt lgkmcnt(0)")
    srd(44, 36, 512*3072*2)
    a(f"s_cmp_lt_u32 {S_LOC}, 24")
    a("s_cbranch_scc1 L_ld_nourg")
    for i in range(16):
        a(f"buffer_load_dwordx4 v{20 + (i&1)}, s[44:47], {SOFF} offen nt lds")
        if i < 15:
            a(f"s_add_u32 {SOFF}, {SOFF}, {8*6144}")
            a("s_add_u32 m0, m0, 0x400")
    a.label("L_ld_nourg")
    if cfg.prio: a("s_setprio 3")
    a("s_barrier")
    stamp(1)
    srd(12, 42, W_USED)
    srd(52, 18, 2*8*32768*128*2)
    srd(56, 20, 2*8*32768*128*2)
    srd(60, 24, 4096*512*2)
    a("v_mov_b32 v10, 0")
    a("v_lshrrev_b32 v3, 4, v0")
    a("v_and_b32 v4, 15, v0")
    a("v_xor_b32 v5, v4, v3")
    a("v_lshlrev_b32 v5, 4, v5")
    a("v_lshl_add_u32 v26, v3, 8, v5")
    a("v_xor_b32 v27, 64, v26")
    a("v_xor_b32 v28, 0x80, v26")
    a("v_xor_b32 v29, 0xc0, v26")
    a("v_lshlrev_b32 v5, 1, v3")
    a("v_xor_b32 v5, v4, v5")
    a("v_lshlrev_b32 v5, 4, v5")
    a("v_lshl_add_u32 v30, v3, 8, v5")
    a("v_xor_b32 v31, 0x80, v30")
    a(f"s_mul_i32 s91, {S_B}, {(NK_B - NK_A) * 256}")
    a(f"s_add_u32 s91, s91, {NK_A * 256}")
    a(f"s_mul_i32 s90, {S_SP}, s91")
    a(f"s_mul_i32 s91, {S_B}, {512 * 256}")
    a("s_add_u32 s90, s90, s91")
    sexpr("s98", [(S_BT, "shl", 26), (S_X, "shl", 23), ("s90", "shl", 0)], (28672 - 512) * 256)
    unit_voffs(pitch_shift=10)

    def lc_write(val, off=F_LC):
        a(f"v_mov_b32 v11, {val}")
        a(f"ds_write_b32 v10, v11 offset:{off}")
    def seg(name, variants, srdn, step, iters, ldsbase):
        if ldsbase is not None: a(f"s_mov_b32 m0, {ldsbase}")
        a(f"s_mov_b32 s97, {iters}")
        a.label(name)
        for v in variants:
            a(f"buffer_load_dwordx4 {v}, s[{srdn}:{srdn+3}], {SOFF} offen nt lds")
            a(f"s_add_u32 {SOFF}, {SOFF}, {step}")
            a("s_add_u32 m0, m0, 0x400")
        a("s_sub_u32 s97, s97, 1")
        a("s_cmp_lg_u32 s97, 0")
        a(f"s_cbranch_scc1 {name}")
    def drain(end, ks):
        for k in ks:
            a(f"s_waitcnt vmcnt({k})")
            lc_write(end - k)
    def seg4(name, variants, srdn, iters, ldsbase, D=D):
        if ldsbase is not None: a(f"s_mov_b32 m0, {ldsbase}")
        a(f"s_mov_b32 s97, {iters}")
        a.label(name)
        for i, v in enumerate(variants):
            a(f"buffer_load_dwordx4 {v}, s[{srdn}:{srdn+3}], {SOFF} offen offset:{1024*i} nt lds")
        a(f"s_add_u32 {SOFF}, {SOFF}, 0x1000")
        a("s_add_u32 m0, m0, 0x1000")
        a(f"s_add_u32 {SLC}, {SLC}, 4")
        a(f"v_mov_b32 v11, {SLC}")
        a(f"s_waitcnt vmcnt({D-4})")
        a(f"ds_write_b32 v10, v11 offset:{F_LC}")
        a("s_sub_u32 s97, s97, 1")
        a("s_cmp_lg_u32 s97, 0")
        a(f"s_cbranch_scc1 {name}")
    WO_OFF = [(S_X, "shl", 19), (S_KQ, "shl", 17), (S_CB, "shl", 7)]

    a(f"s_cmp_eq_u32 {S_B}, 0")
    a("s_cbranch_scc1 L_ld_A")
    if cfg.bearly:
        srd(48, 28, 512*1792*2)
        srd(44, 30, 512*1792*2)
        strip_voff(3584, "v20")
        sexpr(SOFF, WO_OFF)
        seg("L_ld_woB", ["v24", "v25"], 60, 8192, 8, L_WO_B)
        a(f"s_cmp_eq_u32 {S_CB}, 7")
        a("s_cbranch_scc1 L_ld_guBe")
        sexpr(SOFF, [(S_KQ, "mul", 128*3584), (S_X, "mul", 448), (S_CB, "shl", 6)])
        a(f"s_mov_b32 m0, {L_G_B}")
        a("s_mov_b32 s97, 8")
        a.label("L_ld_guB")
        a(f"buffer_load_dwordx4 v20, s[48:51], {SOFF} offen nt lds")
        a("s_add_u32 m0, m0, 0x2000")
        a("s_nop 0")
        a(f"buffer_load_dwordx4 v20, s[44:47], {SOFF} offen nt lds")
        a("s_sub_u32 m0, m0, 0x1c00")
        a(f"s_add_u32 {SOFF}, {SOFF}, {16*3584}")
        a("s_sub_u32 s97, s97, 1")
        a("s_cmp_lg_u32 s97, 0")
        a("s_cbranch_scc1 L_ld_guB")
        a.label("L_ld_guBe")
        srd(48, 32, 1792*512*2)
        sexpr(SOFF, [(S_X, "mul", 224*1024), (S_KQ, "mul", 56*1024), (S_CB, "shl", 7)])
        seg("L_ld_dnB", ["v24", "v25"], 48, 8192, 4, L_DN_B)
        a("s_waitcnt vmcnt(0)")
        lc_write(1, F_WOL)
        lc_write(1, F_LATE)
        lc_write(1, F_DN)
    if cfg.kstart == 0:
        spin_lds(F_EC, 4, "v10", "v12")
        spin_lds(F_3, 2, "v10", "v12", sleep=False)
    elif cfg.kstart == 1:
        spin_lds(F_QF, 2, "v10", "v12", sleep=False)
    elif cfg.kstart == 3:
        spin_lds(F_PQ, 4, "v10", "v12", sleep=False)
    else:
        pass
    stamp(2)
    a(f"s_mov_b32 {SLC}, {KB_B - (D - 4)}")
    a(f"s_mov_b32 {SOFF}, s98")
    seg4("L_ld_kB", ["v26", "v27", "v28", "v29"], 52, NK_B // 16, L_K)
    a(f"s_mov_b32 {SOFF}, s98")
    seg4("L_ld_vB", ["v30", "v30", "v31", "v31"], 56, NK_B // 16, L_V)
    stamp(3)
    if cfg.bearly:
        drain(KB_B + NK_B // 2, [k for k in (32, 24, 16, 8) if k < D - 4] + [0])
        stamp(4)
        dump_stamps(5)
        a("s_endpgm")
    else:
        sexpr(SOFF, WO_OFF)
        seg("L_ld_woB", ["v24", "v25"], 60, 8192, 8, L_WO_B)
        if cfg.dnwo:
            srd(48, 32, 1792*512*2)
            sexpr(SOFF, [(S_X, "mul", 224*1024), (S_KQ, "mul", 56*1024), (S_CB, "shl", 7)])
            seg("L_ld_dnB", ["v24", "v25"], 48, 8192, 4, L_DN_B)
            drain(KB_B + NK_B // 2 + 24, [k for k in (56, 48, 40, 32, 24) if k < D + 20])
            stamp(4)
            a("s_waitcnt vmcnt(8)")
            lc_write(1, F_WOL)
            a("s_waitcnt vmcnt(0)")
            lc_write(1, F_DN)
            dump_stamps(5)
            a("s_endpgm")
        else:
            drain(KB_B + NK_B // 2 + 16, [k for k in (48, 40, 32, 24, 16) if k < D + 12])
            stamp(4)
    a.label("L_ld_fin")
    a("s_waitcnt vmcnt(0)")
    lc_write(1, F_WOL)
    stamp(5)
    dump_stamps(6)
    a("s_endpgm")
    a.label("L_ld_A")
    DA = cfg.DA
    a(f"s_cmp_ge_u32 {S_SPL}, 16")
    a("s_cbranch_scc1 L_ld_urg")
    spin_lds(F_1, 2, "v10", "v12", sleep=False)
    if cfg.slow:
        a(f"s_mov_b32 m0, {L_MR}")
        a("s_nop 0")
        for i in range(2 * cfg.slow):
            a(f"buffer_load_dwordx4 v{20 + (i&1)}, s[44:47], {SOFF} offen nt lds")
            a(f"s_add_u32 {SOFF}, {SOFF}, {8*6144}")
            a("s_add_u32 m0, m0, 0x400")
            if i & 1: a("s_waitcnt vmcnt(0)")
        seg("L_ld_mr", ["v20", "v21"], 44, 8*6144, 8 - cfg.slow, None)
    else:
        seg("L_ld_mr", ["v20", "v21"], 44, 8*6144, 8, L_MR)
    a("s_branch L_ld_kgo")
    a.label("L_ld_urg")
    a("s_waitcnt vmcnt(0)")
    lc_write(1, F_MRL)
    spin_lds(F_PM, 4, "v10", "v12", sleep=False)
    a.label("L_ld_kgo")
    DA1 = cfg.DA1 or DA
    a(f"s_mov_b32 {SLC}, {-(DA1 - 4)}")
    a(f"s_mov_b32 {SOFF}, s98")
    n0 = (DA1 - 4 + 3) // 4
    assert 0 < n0 < NK_A // 16
    seg4("L_ld_kA0", ["v26", "v27", "v28", "v29"], 52, n0, L_K, DA1)
    lc_write(1, F_MRL)
    seg4("L_ld_kA", ["v26", "v27", "v28", "v29"], 52, NK_A // 16 - n0, None, DA1)
    stamp(2)
    a(f"s_mov_b32 {SOFF}, s98")
    if DA > DA1:
        assert (DA - DA1) % 4 == 0
        a(f"s_mov_b32 m0, {L_V}")
        a("s_nop 0")
        for it in range((DA - DA1) // 4):
            for i, v in enumerate(["v30", "v30", "v31", "v31"]):
                a(f"buffer_load_dwordx4 {v}, s[56:59], {SOFF} offen offset:{1024*i} nt lds")
            a(f"s_add_u32 {SOFF}, {SOFF}, 0x1000")
            a("s_add_u32 m0, m0, 0x1000")
        seg4("L_ld_vA", ["v30", "v30", "v31", "v31"], 56, NK_A // 16 - 4 - (DA - DA1) // 4, None, DA)
    else:
        seg4("L_ld_vA", ["v30", "v30", "v31", "v31"], 56, NK_A // 16 - 4, L_V, DA)
    spin_lds(F_EC, 4, "v10", "v12")
    seg4("L_ld_vA2", ["v30", "v30", "v31", "v31"], 56, 4, None, DA)
    stamp(3)
    drain(NK_A // 2, [k for k in (32, 24, 16, 8) if k < DA - 4] + [0])
    stamp(4)
    spin_lds(F_KC, 4, "v10", "v12")
    sexpr(SOFF, WO_OFF)
    seg("L_ld_woA", ["v24", "v25"], 60, 8192, 8, L_WO)
    if cfg.dnwo:
        srd(48, 32, 1792*512*2)
        sexpr(SOFF, [(S_X, "mul", 224*1024), (S_KQ, "mul", 56*1024), (S_CB, "shl", 7)])
        seg("L_ld_dnA", ["v24", "v25"], 48, 8192, 4, L_DN)
        if cfg.guwo:
            a("s_waitcnt vmcnt(8)")
            lc_write(1, F_WOL)
            srd(48, 28, 512*1792*2)
            srd(44, 30, 512*1792*2)
            strip_voff(3584, "v20")
            a(f"s_cmp_eq_u32 {S_CB}, 7")
            a("s_cbranch_scc1 L_ld_guAe")
            sexpr(SOFF, [(S_KQ, "mul", 128*3584), (S_X, "mul", 448), (S_CB, "shl", 6)])
            a(f"s_mov_b32 m0, {L_G}")
            a("s_mov_b32 s97, 8")
            a.label("L_ld_guA")
            a(f"buffer_load_dwordx4 v20, s[48:51], {SOFF} offen nt lds")
            a("s_add_u32 m0, m0, 0x2000")
            a("s_nop 0")
            a(f"buffer_load_dwordx4 v20, s[44:47], {SOFF} offen nt lds")
            a("s_sub_u32 m0, m0, 0x1c00")
            a(f"s_add_u32 {SOFF}, {SOFF}, {16*3584}")
            a("s_sub_u32 s97, s97, 1")
            a("s_cmp_lg_u32 s97, 0")
            a("s_cbranch_scc1 L_ld_guA")
            a.label("L_ld_guAe")
            a("s_waitcnt vmcnt(0)")
            lc_write(1, F_DN)
            lc_write(1, F_LATE)
        else:
            a("s_waitcnt vmcnt(8)")
            lc_write(1, F_WOL)
            a("s_waitcnt vmcnt(0)")
            lc_write(1, F_DN)
        dump_stamps(5)
        a("s_endpgm")
    else:
        a("s_branch L_ld_fin")

    a.label("L_worker")
    a(f"s_cmp_lg_u32 {S_W}, 4")
    a("s_cbranch_scc1 L_wk2")
    a("v_mov_b32 v10, 0")
    for r in range(12, 16): a(f"v_mov_b32 v{r}, 0")
    a("v_lshlrev_b32 v1, 2, v0")
    a("v_lshlrev_b32 v2, 4, v0")
    a("ds_write_b32 v1, v10")
    a(f"ds_write_b128 v2, v[12:15] offset:{L_ZERO}")
    if cfg.probe >= 10: a(f"ds_write_b32 v10, v10 offset:{L_PRB}")
    if cfg.local == 1:
        a("v_mov_b32 v11, 1")
        a(f"ds_write_b32 v10, v11 offset:{F_LM}")
    a.label("L_wk2")
    a("s_waitcnt lgkmcnt(0)")
    srd(12, 42, W_USED)
    srd(44, 16, 2048)
    srd(48, 34, 2048)
    a(f"s_sub_u32 s97, {S_W}, 5")
    a("s_and_b32 s97, s97, 1")
    a("s_lshl_b32 s90, s97, 10")
    a(f"s_and_b32 s94, {S_SPL}, 3")
    a("s_lshl_b32 s94, s94, 8")
    a("s_add_u32 s94, s94, s90")
    a("v_lshlrev_b32 v1, 4, v0")
    a("v_lshlrev_b32 v2, 2, v0")
    a(f"s_cmp_lt_u32 {S_W}, 5")
    a("s_cbranch_scc1 L_wk2b")
    a(f"s_cmp_eq_u32 {S_W}, 7")
    a("s_cbranch_scc1 L_wk2b")
    a("buffer_load_dword v9, v2, s[48:51], s94 offen")
    a("buffer_load_dwordx4 v[4:7], v1, s[44:47], s90 offen")
    a(f"s_lshr_b32 s94, {S_SPL}, 1")
    a("s_and_b32 s94, s94, 3")
    a("s_lshl_b32 s94, s94, 8")
    a("s_add_u32 s94, s94, s90")
    a("buffer_load_dword v8, v2, s[44:47], s94 offen")
    a.label("L_wk2b")
    a("v_mov_b32 v2, 0")
    a(f"buffer_load_dword v3, v2, {WSRD}, 0 offen sc1")
    a(f"s_cmp_lg_u32 {S_W}, 7")
    a("s_cbranch_scc1 L_wk3")
    if cfg.local == 2:
        srd(60, 40, 256)
        a("s_getreg_b32 s90, hwreg(HW_REG_XCC_ID)")
        a("s_and_b32 s90, s90, 7")
        a("s_mul_i32 s90, s90, 6")
        a("s_lshl_b64 s[26:27], 1, s90")
        a(f"s_lshl_b32 s91, {S_X}, 5")
        a("s_add_u32 s91, s91, 8")
        a("v_mov_b32 v18, s91")
        a("v_mov_b32 v16, s26")
        a("v_mov_b32 v17, s27")
        a("s_mov_b64 exec, 1")
        a("buffer_atomic_add_x2 v[16:17], v18, s[60:63], 0 offen sc1")
        a("s_mov_b64 exec, -1")
    if cfg.touch:
        sexpr("s90", [(S_BT, "shl", 26), (S_X, "shl", 23), (S_SP, "shl", 16)], 28672*256)
        a("s_load_dword s78, s[18:19], s90")
        a("s_load_dword s79, s[20:21], s90")
        a(f"s_lshr_b32 s91, {S_SPL}, 1")
        a("s_and_b32 s91, s91, 3")
        a("s_lshl_b32 s91, s91, 20")
        a("s_load_dword s80, s[22:23], s91")
        sexpr("s91", [(S_X, "shl", 19), (S_KQ, "shl", 17)])
        a("s_load_dword s81, s[24:25], s91")
        a(f"s_mul_i32 s91, {S_KQ}, {128*3584}")
        a("s_load_dword s82, s[28:29], s91")
        a("s_load_dword s83, s[30:31], s91")
        a(f"s_mul_i32 s91, {S_X}, {224*1024}")
        a("s_load_dword s84, s[32:33], s91")
        a("s_load_dword s85, s[38:39], 0")
    a.label("L_wk3")
    a("s_barrier")
    a(f"s_cmp_ge_u32 {S_W}, 4")
    a("s_cbranch_scc1 L_gwave")

    a.label("L_mwave")
    if cfg.mprio: a("s_setprio 2")
    srd(56, 22, 512*4096*2)
    a("v_lshrrev_b32 v1, 4, v0")
    a("v_and_b32 v2, 15, v0")
    a("v_mov_b32 v4, 1")
    a("v_lshlrev_b32 v22, 1, v1")
    a("v_xor_b32 v22, v2, v22")
    a("v_lshlrev_b32 v22, 4, v22")
    a("v_lshl_add_u32 v56, v1, 13, v22")
    a("v_xor_b32 v57, 0x80, v56")
    a(f"s_lshr_b32 s90, {S_SPL}, 1")
    a(f"s_and_b32 s91, {S_SPL}, 1")
    sexpr("s96", [("s90", "shl", 20), (S_X, "shl", 10), ("s91", "shl", 9), (S_W, "shl", 18)])
    a("s_add_u32 s97, s96, 256")
    def wq_loads(lo, hi):
        for k in range(lo, hi):
            bb, i = k >> 3, k & 7
            sr = "s96" if bb == 0 else "s97"
            if k == lo or i == 0:
                a(f"s_lshl_b32 s90, {S_W}, 13")
                a(f"s_add_u32 m0, s90, {L_WQ + 32768*bb + 1024*i}")
                a("s_nop 0")
            a(f"buffer_load_dwordx4 {'v56' if (i & 2) == 0 else 'v57'}, s[56:59], {sr} offen nt lds")
            a(f"s_add_u32 {sr}, {sr}, {4*8192}")
            a("s_add_u32 m0, m0, 0x400")
    a(f"s_cmp_eq_u32 {S_B}, 0")
    a("s_cbranch_scc1 L_m_nowq")
    wq_loads(0, cfg.wqsplit)
    a.label("L_m_nowq")
    a("v_bfe_u32 v6, v2, 2, 1")
    a(f"v_mul_u32_u24 v6, {APITCH}, v6")
    a("v_lshl_add_u32 v6, v1, 4, v6")
    a("v_bfe_u32 v16, v0, 2, 2")
    a("v_and_b32 v17, 3, v0")
    a("v_lshl_add_u32 v18, v1, 3, v16")
    a("v_lshrrev_b32 v19, 1, v17")
    a("v_and_b32 v20, 1, v17")
    a("v_and_b32 v21, 1, v1")
    a("v_lshrrev_b32 v22, 1, v16")
    a("v_lshl_or_b32 v22, v21, 1, v22")
    a("v_lshlrev_b32 v22, 1, v22")
    a(f"s_lshl_b32 s90, {S_W}, 1")
    a("v_add_u32 v23, s90, v19")
    a("v_xor_b32 v23, v23, v22")
    a("v_lshlrev_b32 v7, 7, v18")
    a("v_lshl_add_u32 v7, v23, 4, v7")
    a("v_lshl_add_u32 v7, v20, 3, v7")
    a(f"s_and_b32 s90, {S_W}, 1")
    a("s_lshl_b32 s90, s90, 1")
    a("v_add_u32 v23, s90, v19")
    a("v_lshlrev_b32 v22, 1, v21")
    a("v_xor_b32 v23, v23, v22")
    a("v_lshlrev_b32 v12, 6, v18")
    a("v_lshl_add_u32 v12, v23, 4, v12")
    a("v_lshl_add_u32 v12, v20, 3, v12")
    a("v_lshl_or_b32 v22, v21, 2, v16")
    a("v_lshlrev_b32 v22, 1, v22")
    a(f"s_lshl_b32 s90, {S_W}, 2")
    a("v_add_u32 v23, s90, v19")
    a("v_xor_b32 v24, v23, v22")
    a("v_lshlrev_b32 v25, 8, v18")
    a("v_lshl_add_u32 v25, v20, 3, v25")
    a("v_lshl_add_u32 v13, v24, 4, v25")
    a("v_add_u32 v23, 2, v23")
    a("v_xor_b32 v24, v23, v22")
    a("v_lshl_add_u32 v14, v24, 4, v25")
    a("v_bfe_u32 v8, v0, 4, 1")
    a("v_lshlrev_b32 v9, 3, v2")
    O_MOD, O_Q, O_O, O_A4, O_GU, O_DN, O_ST, T_K, T_V = "s16", "s17", "s18", "s19", "s20", "s21", "s24", "s25", "s26"
    a(f"s_mul_i32 {T_K}, {S_B}, {KB_B + NK_B // 4 - NK_A // 4}")
    a(f"s_add_u32 {T_K}, {T_K}, {NK_A // 4}")
    a(f"s_mul_i32 {T_V}, {S_B}, {KB_B + NK_B // 2 - NK_A // 2}")
    a(f"s_add_u32 {T_V}, {T_V}, {NK_A // 2}")
    sexpr(O_O, [(S_X, "shl", 16), (S_BT, "shl", 13), (S_SP, "shl", 9), (S_W, "shl", 7)], W_O)
    sexpr(O_A4, [(S_CB, "shl", 14), (S_W, "shl", 12), (S_X, "shl", 8), (S_KQ, "shl", 6)], W_A4)
    a(f"s_add_u32 {O_DN}, {O_A4}, {W_DN - W_A4}")
    a(f"s_lshr_b32 s90, {S_W}, 1")
    a(f"s_and_b32 s91, {S_W}, 1")
    sexpr(O_GU, [(S_X, "shl", 15), ("s90", "shl", 14), (S_KQ, "shl", 11), (S_CB, "shl", 8), ("s91", "shl", 7)], W_GU)
    sexpr(O_ST, [(S_X, "shl", 11), (S_BT, "shl", 10), (S_SP, "shl", 4)], W_ST)
    a(f"s_and_b32 s90, {S_SPL}, 1")
    a("s_lshl_b32 s90, s90, 1")
    a(f"s_lshr_b32 s91, {S_W}, 1")
    a("s_add_u32 s90, s90, s91")
    a(f"s_lshr_b32 s91, {S_SPL}, 1")
    a(f"s_and_b32 s97, {S_W}, 1")
    sexpr(O_Q, [(S_X, "shl", 15), ("s90", "shl", 12), ("s91", "shl", 10), ("s97", "shl", 9)], W_Q)
    a(f"s_cmp_lt_u32 {S_SPL}, 16")
    a("s_cbranch_scc1 L_m_offA")
    a(f"s_lshr_b32 s90, {S_X}, 2")
    a(f"s_and_b32 s91, {S_X}, 3")
    a(f"s_bfe_u32 s97, {S_SPL}, 0x10002")
    a(f"s_and_b32 s98, {S_SPL}, 3")
    sexpr(O_MOD, [("s90", "shl", 15), ("s91", "shl", 12), ("s98", "shl", 10), ("s97", "shl", 9), (S_W, "shl", 7)], W_MOD)
    a("s_branch L_m_offE")
    a.label("L_m_offA")
    a(f"s_lshr_b32 s90, {S_X}, 1")
    a(f"s_and_b32 s91, {S_X}, 1")
    a("s_lshl_b32 s91, s91, 2")
    a(f"s_lshr_b32 s97, {S_SPL}, 2")
    a("s_add_u32 s91, s91, s97")
    a("s_lshr_b32 s97, s91, 1")
    a("s_and_b32 s91, s91, 1")
    a(f"s_and_b32 s98, {S_SPL}, 3")
    sexpr(O_MOD, [("s90", "shl", 15), ("s97", "shl", 12), ("s98", "shl", 10), ("s91", "shl", 9), (S_W, "shl", 7)], W_MOD + 2*32768)
    a.label("L_m_offE")
    a("s_waitcnt vmcnt(0)")
    get_tag()
    a("v_mov_b32 v3, 0")
    stamp(1)

    def loadB(vaddr, nk, kstride, hoff, base=16):
        for t in range(nk):
            a(f"ds_read_b64_tr_b16 v[{base+4*t}:{base+4*t+1}], {vaddr} offset:{t*kstride}")
            a(f"ds_read_b64_tr_b16 v[{base+4*t+2}:{base+4*t+3}], {vaddr} offset:{t*kstride+hoff}")

    def gemv(act_off, nk, bbase=16, second=None):
        for t in range(nk):
            a(f"ds_read_b128 v[{32+4*t}:{35+4*t}], v6 offset:{act_off+64*t}")
        for t in range(nk):
            a(f"s_waitcnt lgkmcnt({nk-1-t})")
            c = "0" if t == 0 else "v[48:51]"
            a(f"v_mfma_f32_16x16x32_bf16 v[48:51], v[{32+4*t}:{35+4*t}], v[{bbase+4*t}:{bbase+4*t+3}], {c}")
            if second is not None:
                c = "0" if t == 0 else "v[56:59]"
                a(f"v_mfma_f32_16x16x32_bf16 v[56:59], v[{32+4*t}:{35+4*t}], v[{second+4*t}:{second+4*t+3}], {c}")

    def publish(shift, soff, local=False, second=False):
        a(f"v_lshl_add_u32 v54, v8, {shift}, v9")
        a(f"v_mov_b32 v53, {S_TAG}")
        if second: a(f"v_mov_b32 v61, {S_TAG}")
        a("v_mov_b32 v52, v48")
        if second: a("v_mov_b32 v60, v56")
        a("s_mov_b32 exec_hi, 0")
        t1 = f"buffer_store_dwordx2 v[52:53], v54, {WSRD}, {soff} offen"
        t2 = f"buffer_store_dwordx2 v[60:61], v54, {WSRD}, {soff} offen offset:128"
        if local:
            store_loc(t1)
            if second: store_loc(t2)
        else:
            a(t1 + " sc1")
            if second: a(t2 + " sc1")
        a("s_mov_b32 exec_hi, -1")

    def publish_pair(soff):
        a("v_lshlrev_b32 v54, 11, v8")
        a("v_lshl_add_u32 v54, v2, 2, v54")
        a(f"v_mov_b32 v53, {S_TAG}")
        a("v_mov_b32_dpp v52, v48 quad_perm:[1,0,3,2] row_mask:0xf bank_mask:0xf")
        a("s_mov_b32 exec_lo, 0x55555555")
        a("s_mov_b32 exec_hi, 0")
        a("v_cvt_pk_bf16_f32 v52, v48, v52")
        a(f"buffer_store_dwordx2 v[52:53], v54, {WSRD}, {soff} offen sc1")
        a("s_mov_b64 exec, -1")

    a(f"s_cmp_lg_u32 {S_B}, 0")
    a("s_cbranch_scc1 L_m_B")
    spin_lds(F_1, 2, "v3", "v5")
    spin_lds(F_MRL, 1, "v3", "v5")
    a(f"v_add_u32 v10, {L_MR}, v7")
    loadB("v10", 4, 4096, 512)
    gemv(L_ACT1, 4)
    arrive(F_EC, "v3", "v4")
    publish(14, O_MOD)
    arrive(F_PM, "v3", "v4")
    stamp(2)
    a("s_branch L_m_s3")
    a.label("L_m_B")
    if cfg.wqsplit < 16:
        spin_lds(F_HI, 2, "v3", "v5", sleep=False)
        wq_loads(cfg.wqsplit, 16)
    a("s_waitcnt vmcnt(0)")
    arrive(F_WQ, "v3", "v4")
    a("v_bfe_u32 v16, v0, 2, 2")
    a("v_and_b32 v17, 3, v0")
    a("v_lshl_add_u32 v18, v1, 3, v16")
    a("v_lshrrev_b32 v19, 1, v17")
    a("v_and_b32 v20, 1, v17")
    a("v_and_b32 v21, 1, v1")
    a("v_lshl_or_b32 v22, v21, 2, v16")
    a("v_lshlrev_b32 v22, 1, v22")
    a("v_lshlrev_b32 v25, 8, v18")
    a("v_lshl_add_u32 v25, v20, 3, v25")
    a(f"s_lshr_b32 s90, {S_W}, 1")
    a("s_lshl_b32 s90, s90, 15")
    a(f"s_add_u32 s90, s90, {L_WQ}")
    a("v_add_u32 v25, s90, v25")
    a(f"s_and_b32 s91, {S_W}, 1")
    a("s_lshl_b32 s91, s91, 3")
    a("v_add_u32 v19, s91, v19")
    for e in range(4):
        a(f"v_add_u32 v23, {2*e}, v19")
        a("v_xor_b32 v23, v23, v22")
        a(f"v_lshl_add_u32 v{28+e}, v23, 4, v25")
    spin_lds(F_WQ, 4, "v3", "v5", sleep=False)
    for e in range(4):
        loadB(f"v{28+e}", 4, 8192, 1024, base=64 + 16*e)
    get_mode("v3", "v5")
    a("s_waitcnt lgkmcnt(0)")
    arrive(F_EC, "v3", "v4")
    a("v_lshl_add_u32 v54, v8, 14, v9")
    a(f"v_mov_b32 v53, {S_TAG}")
    spin_lds(F_2, 2, "v3", "v5", sleep=False)
    for t in range(4):
        a(f"ds_read_b128 v[{32+4*t}:{35+4*t}], v6 offset:{L_ACT2+64*t}")
    for t in range(4):
        a(f"s_waitcnt lgkmcnt({3-t})")
        for e in range(4):
            c = "0" if t == 0 else f"v[{16+4*e}:{19+4*e}]"
            a(f"v_mfma_f32_16x16x32_bf16 v[{16+4*e}:{19+4*e}], v[{32+4*t}:{35+4*t}], v[{64+16*e+4*t}:{67+16*e+4*t}], {c}")
    a("s_mov_b32 exec_hi, 0")
    for e in range(4):
        a(f"v_mov_b32 v{56+2*e}, v{16+4*e}")
        a(f"v_mov_b32 v{57+2*e}, v53")
    if cfg.local == 2:
        P = a.newlabel("Lst"); E = a.newlabel("Lste")
        a(f"s_cmp_eq_u32 {S_LM}, 1")
        a(f"s_cbranch_scc1 {P}")
        for e in range(4): a(f"buffer_store_dwordx2 v[{56+2*e}:{57+2*e}], v54, {WSRD}, {O_Q} offen offset:{128*e} sc1")
        a(f"s_branch {E}")
        a.label(P)
        for e in range(4): a(f"buffer_store_dwordx2 v[{56+2*e}:{57+2*e}], v54, {WSRD}, {O_Q} offen offset:{128*e}")
        a.label(E)
    else:
        for e in range(4): a(f"buffer_store_dwordx2 v[{56+2*e}:{57+2*e}], v54, {WSRD}, {O_Q} offen offset:{128*e}" + (" sc1" if cfg.local == 0 else ""))
    a("s_mov_b32 exec_hi, -1")
    arrive(F_PQ, "v3", "v4")
    stamp(3)
    mark(10, "v3")
    a.label("L_m_s3")
    get_mode("v3", "v5")
    T_ST, T_N = "s27", "s28"
    a(f"s_lshl_b32 s90, {S_B}, 1")
    a(f"s_sub_u32 s90, 4, s90")
    a(f"s_mul_i32 {T_ST}, {S_W}, s90")
    a(f"s_min_u32 s91, {S_W}, 2")
    a(f"s_add_u32 {T_ST}, {T_ST}, s91")
    a(f"s_cmp_lt_u32 {S_W}, 2")
    a(f"s_addc_u32 {T_N}, s90, 0")
    a("s_mov_b64 s[30:31], -1")
    a(f"s_cmp_eq_u32 {T_N}, 3")
    a("s_cselect_b32 s31, 0xffff, s31")
    a(f"s_cmp_eq_u32 {T_N}, 2")
    a("s_cselect_b32 s31, 0, s31")
    a("s_mov_b32 s33, 0")
    a(f"s_cmp_eq_u32 {T_N}, 5")
    a("s_cselect_b32 s32, 0xffff, 0")
    a("v_xor_b32 v10, v1, v2")
    a("v_lshlrev_b32 v10, 4, v10")
    a("v_lshl_add_u32 v10, v2, 8, v10")
    a(f"s_lshl_b32 s90, {T_ST}, 12")
    a(f"s_add_u32 s90, s90, {L_K}")
    a("v_add_u32 v112, s90, v10")
    a("v_xor_b32 v113, 64, v112")
    a("v_xor_b32 v114, 0x80, v112")
    a("v_xor_b32 v115, 0xc0, v112")
    a("v_and_b32 v10, 3, v2")
    a(f"v_mul_u32_u24 v10, {APITCH}, v10")
    a("v_lshl_add_u32 v116, v1, 4, v10")
    a("v_cmp_eq_u32 s[34:35], 1, v1")
    a("v_cmp_eq_u32 s[36:37], 2, v1")
    a("v_cmp_eq_u32 s[38:39], 3, v1")
    for r in range(80, 100): a(f"v_mov_b32 v{r}, 0")
    NEG = "s29"
    a(f"s_mov_b32 {NEG}, 0xff800000")
    spin_lds(F_3, 2, "v3", "v5", sleep=False)
    spin_lds(F_LC, T_K, "v3", "v5", sleep=False)
    stamp(4)
    mark(11, "v3")
    def k_reads(tt, base):
        for t in range(4):
            a(f"ds_read_b128 v[{base+4*t}:{base+4*t+3}], v{112+t} offset:{4096*tt}")
    def qk_mfma(tt, base):
        acc = f"v[{80+4*tt}:{83+4*tt}]"
        for t in range(4):
            c = "0" if t == 0 else acc
            a(f"v_mfma_f32_16x16x32_bf16 {acc}, v[{16+4*t}:{19+4*t}], v[{base+4*t}:{base+4*t+3}], {c}")
    for t in range(4):
        a(f"ds_read_b128 v[{16+4*t}:{19+4*t}], v116 offset:{L_Q+64*t}")
    k_reads(0, 32)
    k_reads(1, 48)
    a(f"s_cmp_eq_u32 {T_N}, 2")
    a("s_cbranch_scc1 L_qk_n2")
    k_reads(2, 64)
    a("s_waitcnt lgkmcnt(8)")
    qk_mfma(0, 32)
    a(f"s_cmp_eq_u32 {T_N}, 3")
    a("s_cbranch_scc1 L_qk_n3")
    k_reads(3, 32)
    a("s_waitcnt lgkmcnt(8)")
    qk_mfma(1, 48)
    a(f"s_cmp_eq_u32 {T_N}, 4")
    a("s_cbranch_scc1 L_qk_n4")
    k_reads(4, 48)
    a("s_waitcnt lgkmcnt(8)")
    qk_mfma(2, 64)
    a("s_waitcnt lgkmcnt(4)")
    qk_mfma(3, 32)
    a("s_waitcnt lgkmcnt(0)")
    qk_mfma(4, 48)
    a("s_branch L_qk_done")
    a.label("L_qk_n4")
    a("s_waitcnt lgkmcnt(4)")
    qk_mfma(2, 64)
    a("s_waitcnt lgkmcnt(0)")
    qk_mfma(3, 32)
    a("s_branch L_qk_done")
    a.label("L_qk_n3")
    a("s_waitcnt lgkmcnt(4)")
    qk_mfma(1, 48)
    a("s_waitcnt lgkmcnt(0)")
    qk_mfma(2, 64)
    a("s_branch L_qk_done")
    a.label("L_qk_n2")
    a("s_waitcnt lgkmcnt(4)")
    qk_mfma(0, 32)
    a("s_waitcnt lgkmcnt(0)")
    qk_mfma(1, 48)
    a.label("L_qk_done")
    arrive(F_KC, "v3", "v4")
    a("s_nop 7")
    for r in range(4): a(f"v_cndmask_b32 v{48+r}, v{80+r}, v{84+r}, s[34:35]")
    for r in range(4): a(f"v_cndmask_b32 v{48+r}, v{48+r}, v{88+r}, s[36:37]")
    for r in range(4): a(f"v_cndmask_b32 v{48+r}, v{48+r}, v{92+r}, s[38:39]")
    a(f"s_mov_b32 s94, {SCALE:#x}")
    for (d, sr) in ((20, 96), (16, 48)):
        bf16r2(f"v{d}", f"v{d+1}", f"v{sr}", f"v{sr+1}", "v32")
        bf16r2(f"v{d+2}", f"v{d+3}", f"v{sr+2}", f"v{sr+3}", "v33")
    for r in range(8): a(f"v_mul_f32 v{16+r}, s94, v{16+r}")
    for d in (16, 20):
        bf16r2(f"v{d}", f"v{d+1}", f"v{d}", f"v{d+1}", "v32")
        bf16r2(f"v{d+2}", f"v{d+3}", f"v{d+2}", f"v{d+3}", "v33")
    a(f"v_mov_b32 v34, {NEG}")
    for r in range(4): a(f"v_cndmask_b32 v{16+r}, v34, v{16+r}, s[30:31]")
    for r in range(4): a(f"v_cndmask_b32 v{20+r}, v34, v{20+r}, s[32:33]")
    for r in range(4): a(f"v_max_f32 v{24+r}, v{16+r}, v{20+r}")
    allreduce(["v24", "v25", "v26", "v27"], "v_max_f32", [], ["x1", "x2", "x4", "x8"])
    for r in range(4): a(f"v_max_f32_dpp v{24+r}, v{24+r}, v{24+r} row_bcast:15 row_mask:0xa bank_mask:0xf")
    for r in range(4): a(f"v_max_f32_dpp v{24+r}, v{24+r}, v{24+r} row_bcast:31 row_mask:0xc bank_mask:0xf")
    a(f"s_lshl_b32 s90, {S_W}, 4")
    a("v_mov_b32 v10, s90")
    a("s_mov_b32 exec_lo, 0")
    a("s_mov_b32 exec_hi, 0x80000000")
    a(f"ds_write_b128 v10, v[24:27] offset:{L_MX}")
    a(f"ds_add_u32 v3, v4 offset:{F_MB1}")
    a("s_mov_b64 exec, -1")
    a(f"s_lshl_b32 s90, {T_ST}, 5")
    a(f"s_add_u32 s90, s90, {L_P}")
    a("v_lshl_add_u32 v10, v0, 1, s90")
    spin_lds(F_MB1, 4, "v3", "v5", sleep=False)
    for w in range(4):
        a(f"ds_read_b128 v[{32+4*w}:{35+4*w}], v3 offset:{L_MX+16*w}")
    a(f"s_mov_b32 s94, {LOG2E:#x}")
    a("s_waitcnt lgkmcnt(0)")
    for r in range(4):
        a(f"v_max3_f32 v{24+r}, v{32+r}, v{36+r}, v{40+r}")
    for r in range(4):
        a(f"v_max_f32 v{24+r}, v{24+r}, v{44+r}")
    for r in range(8): a(f"v_sub_f32 v{16+r}, v{16+r}, v{24+(r&3)}")
    for r in range(8): a(f"v_mul_f32 v{16+r}, s94, v{16+r}")
    for r in range(8): a(f"v_exp_f32 v{16+r}, v{16+r}")
    a("v_cvt_pk_bf16_f32 v28, v16, v17")
    a("v_cvt_pk_bf16_f32 v29, v18, v19")
    a("v_cvt_pk_bf16_f32 v30, v20, v21")
    a("v_cvt_pk_bf16_f32 v31, v22, v23")
    a("s_mov_b64 exec, s[30:31]")
    a("ds_write_b16 v10, v28")
    a(f"ds_write_b16_d16_hi v10, v28 offset:{PPITCH}")
    a(f"ds_write_b16 v10, v29 offset:{2*PPITCH}")
    a(f"ds_write_b16_d16_hi v10, v29 offset:{3*PPITCH}")
    a(f"s_cmp_lg_u32 {T_N}, 5")
    a("s_cbranch_scc1 L_p_w1")
    a("s_mov_b64 exec, s[32:33]")
    a("ds_write_b16 v10, v30 offset:128")
    a(f"ds_write_b16_d16_hi v10, v30 offset:{PPITCH+128}")
    a(f"ds_write_b16 v10, v31 offset:{2*PPITCH+128}")
    a(f"ds_write_b16_d16_hi v10, v31 offset:{3*PPITCH+128}")
    a.label("L_p_w1")
    a("s_mov_b64 exec, 1")
    a(f"ds_add_u32 v3, v4 offset:{F_MB2}")
    a("s_mov_b64 exec, -1")
    a.label("L_m_pv")
    stamp(5)
    a("v_lshrrev_b32 v10, 2, v2")
    a(f"v_mul_u32_u24 v10, {PPITCH}, v10")
    a("v_lshl_add_u32 v10, v1, 4, v10")
    a(f"v_add_u32 v60, {L_P}, v10")
    a(f"v_add_u32 v61, {L_V}, v13")
    a(f"v_add_u32 v62, {L_V}, v14")
    a("v_lshl_add_u32 v63, v1, 14, v9")
    a(f"v_mov_b32 v65, {S_TAG}")
    for r in range(8): a(f"v_mov_b32 v{48+r}, 0")
    spin_lds(F_MB2, 4, "v3", "v5", sleep=False)
    a(f"s_add_u32 s95, {T_K}, 8")
    a("s_mov_b32 s96, -1000")
    def pv_ensure(tagl):
        G = f"L_pv_go{tagl}"; S = f"L_pv_sp{tagl}"
        a("s_cmp_ge_i32 s96, s95")
        a(f"s_cbranch_scc1 {G}")
        a.label(S)
        a(f"ds_read_b32 v5, v3 offset:{F_LC}")
        a("s_waitcnt lgkmcnt(0)")
        a("v_readfirstlane_b32 s96, v5")
        a("s_cmp_ge_i32 s96, s95")
        a(f"s_cbranch_scc1 {G}")
        timeout()
        a(f"s_branch {S}")
        a.label(G)
    def pv_reads(b):
        a(f"ds_read_b128 v[{b}:{b+3}], v60")
        a(f"ds_read_b64_tr_b16 v[{b+4}:{b+5}], v61")
        a(f"ds_read_b64_tr_b16 v[{b+6}:{b+7}], v61 offset:1024")
        a(f"ds_read_b64_tr_b16 v[{b+8}:{b+9}], v62")
        a(f"ds_read_b64_tr_b16 v[{b+10}:{b+11}], v62 offset:1024")
        a("v_add_u32 v60, 64, v60")
        a("v_add_u32 v61, 0x2000, v61")
        a("v_add_u32 v62, 0x2000, v62")
        a("s_add_u32 s95, s95, 8")
    def pv_mfma(b):
        a(f"v_mfma_f32_16x16x32_bf16 v[48:51], v[{b}:{b+3}], v[{b+4}:{b+7}], v[48:51]")
        a(f"v_mfma_f32_16x16x32_bf16 v[52:55], v[{b}:{b+3}], v[{b+8}:{b+11}], v[52:55]")
    pv_ensure("0")
    pv_reads(16)
    a.label("L_pv_loop")
    pv_ensure("1")
    pv_reads(28)
    a("s_waitcnt lgkmcnt(5)")
    pv_mfma(16)
    pv_ensure("2")
    pv_reads(16)
    a("s_waitcnt lgkmcnt(5)")
    pv_mfma(28)
    a(f"s_cmp_le_i32 s95, {T_V}")
    a("s_cbranch_scc1 L_pv_loop")
    a("s_waitcnt lgkmcnt(0)")
    pv_mfma(16)
    stamp(6)
    a("s_nop 4")
    a("v_cvt_pk_bf16_f32 v64, v48, v52")
    store_loc(f"buffer_store_dwordx2 v[64:65], v63, {WSRD}, {O_O} offen")
    arrive(F_PO, "v3", "v4")
    stamp(7)
    mark(12, "v3")
    spin_lds(F_WOL, 1, "v3", "v5", sleep=False)
    a(f"s_mul_i32 s90, {S_B}, {L_WO_B - L_WO}")
    a(f"s_add_u32 s90, s90, {L_WO}")
    a("v_add_u32 v10, s90, v7")
    loadB("v10", 4, 4096, 512)
    a("s_waitcnt lgkmcnt(0)")
    a("s_barrier")
    gemv(L_ACT4, 4)
    publish_pair(O_A4)
    arrive(F_PA, "v3", "v4")
    stamp(8)
    mark(13, "v3")
    spin_lds(F_LATE, 1, "v3", "v5")
    a(f"s_lshr_b32 s90, {S_W}, 1")
    a("s_lshl_b32 s90, s90, 13")
    a(f"s_mul_i32 s91, {S_B}, {(L_G_B - L_G) if cfg.bearly else 0}")
    a("s_add_u32 s90, s90, s91")
    a(f"s_add_u32 s90, s90, {L_G}")
    a("v_add_u32 v11, s90, v12")
    loadB("v11", 4, 2048, 256)
    a(f"s_mul_i32 s90, {S_B}, {(L_DN_B - L_DN) if (cfg.bearly or cfg.dnwo) else 0}")
    a(f"s_add_u32 s90, s90, {L_DN}")
    a("v_add_u32 v15, s90, v7")
    a("s_waitcnt lgkmcnt(0)")
    a("s_barrier")
    a(f"s_cmp_eq_u32 {S_CB}, 7")
    a("s_cbranch_scc1 L_m_s7")
    gemv(L_ACT6, 4)
    publish(13, O_GU, local=True)
    a.label("L_m_s7")
    arrive(F_PG, "v3", "v4")
    stamp(9)
    spin_lds(F_DN, 1, "v3", "v5", sleep=False)
    loadB("v15", 2, 4096, 512, base=64)
    a("s_waitcnt lgkmcnt(0)")
    a("s_barrier")
    gemv(L_ACT7, 2, bbase=64)
    publish_pair(O_DN)
    arrive(F_PD, "v3", "v4")
    stamp(10)
    mark(15, "v3")
    dump_stamps(11)
    a("s_endpgm")

    def r1_block(uid, vz):
        a(f"s_sub_u32 s90, {S_W}, 4")
        a("s_lshr_b32 s91, s90, 1")
        a("s_and_b32 s94, s90, 1")
        a("s_lshl_b32 s99, s94, 8")
        a(f"s_lshl_b32 s100, {S_X}, 16")
        a("s_add_u32 s99, s99, s100")
        a(f"s_lshl_b32 s100, {S_KQ}, 14")
        a("s_add_u32 s99, s99, s100")
        a("s_lshl_b32 s100, s91, 13")
        a("s_add_u32 s99, s99, s100")
        a(f"s_add_u32 s99, s99, {W_O}")
        a(f"s_lshl_b32 s100, {S_X}, 11")
        a("s_lshl_b32 s90, s91, 10")
        a("s_add_u32 s100, s100, s90")
        a(f"s_lshl_b32 s90, {S_KQ}, 8")
        a("s_add_u32 s100, s100, s90")
        a(f"s_add_u32 s100, s100, {W_ST}")
        a("v_lshrrev_b32 v48, 5, v0")
        a("v_and_b32 v49, 31, v0")
        a("v_lshlrev_b32 v50, 12, v48")
        a("v_lshl_add_u32 v50, v49, 3, v50")
        a("v_and_b32 v51, 7, v0")
        a("v_lshl_add_u32 v51, v48, 3, v51")
        a("v_lshlrev_b32 v51, 4, v51")
        a(f"s_mul_i32 s91, s91, {APITCH}")
        a("s_lshl_b32 s94, s94, 7")
        a("s_add_u32 s91, s91, s94")
        a("v_bfe_u32 v52, v0, 4, 1")
        a("v_lshlrev_b32 v52, 6, v52")
        a("v_and_b32 v53, 15, v0")
        a("v_lshl_add_u32 v52, v53, 1, v52")
        a("v_lshl_add_u32 v52, v48, 5, v52")
        a("v_add_u32 v52, s91, v52")
        loads = [f"buffer_load_dwordx4 v[32:35], v51, {WSRD}, s100 offen sc1"]; tags = ["v33", "v35"]
        for i in range(8):
            loads.append(f"buffer_load_dwordx2 v[{16+2*i}:{17+2*i}], v50, {WSRD}, s99 offen offset:{512*i} sc1")
            tags.append(f"v{17+2*i}")
        if cfg.warm:
            for l in loads: a(l)
        after_own(F_PO, 4, vz, "v54", cfg.d_r1)
        stamp(7 if uid != "q" else 4)
        poll(loads, tags, "v54", sleep=cfg.rsl_l)
        if uid == "q": stamp(10)
        a("v_mov_b32 v55, v32")
        allreduce(["v55"], "v_max_f32", ["v56"], ["x1", "x2", "x4", "x32"])
        a(f"s_mov_b32 s94, {LOG2E:#x}")
        a("v_sub_f32 v56, v32, v55")
        for i in range(4): a(f"v_lshlrev_b32 v{36+2*i}, 16, v{16+2*i}"); a(f"v_and_b32 v{37+2*i}, 0xffff0000, v{16+2*i}")
        a("v_mul_f32 v56, s94, v56")
        a("v_exp_f32 v56, v56")
        for i in range(4, 8): a(f"v_lshlrev_b32 v{36+2*i}, 16, v{16+2*i}"); a(f"v_and_b32 v{37+2*i}, 0xffff0000, v{16+2*i}")
        a("v_mul_f32 v57, v56, v34")
        allreduce(["v57"], "v_add_f32", ["v58"], ["x1", "x2", "x4", "x32"])
        a("v_rcp_f32 v57, v57")
        a("v_mov_b32 v58, 0")
        a("v_mov_b32 v59, 0")
        a("v_mul_f32 v56, v56, v57")
        for i in range(8):
            a(f"v_fmac_f32_dpp v58, v56, v{36+2*i} row_newbcast:{i} row_mask:0xf bank_mask:0xf")
            a(f"v_fmac_f32_dpp v59, v56, v{37+2*i} row_newbcast:{i} row_mask:0xf bank_mask:0xf")
        a("v_permlane32_swap_b32 v58, v59")
        a("v_add_f32 v58, v58, v59")
        a("v_cvt_pk_bf16_f32 v58, v58, v58")
        a(f"ds_write_b16 v52, v58 offset:{L_ACT4}")
        a("s_waitcnt lgkmcnt(0)")

    a.label("L_gwave")
    a(f"s_cmp_eq_u32 {S_W}, 4")
    a("s_cbranch_scc1 L_slice")
    a(f"s_cmp_eq_u32 {S_W}, 7")
    a("s_cbranch_scc1 L_aux")

    SB = "s97"
    a("s_mov_b64 s[36:37], s[42:43]")
    a("v_lshlrev_b32 v2, 2, v0")
    a("v_mov_b32 v10, 1")
    a(f"s_mul_i32 s98, {SB}, {APITCH}")
    a("v_add_u32 v11, s98, v2")
    a("v_mov_b32 v19, 0")
    a("s_waitcnt vmcnt(0)")
    stamp(1)
    a("v_lshlrev_b32 v12, 16, v9")
    a("v_and_b32 v13, 0xffff0000, v9")
    a(f"s_mov_b32 s94, {LOG2E:#x}")
    for r in (12, 13): a(f"v_mul_f32 v{r+2}, s94, v{r}")
    for r in (12, 13): a(f"v_exp_f32 v{r+2}, -v{r+2}")
    for r in (12, 13): a(f"v_add_f32 v{r+2}, 1.0, v{r+2}")
    for r in (12, 13): a(f"v_rcp_f32 v{r+2}, v{r+2}")
    for r in (12, 13): a(f"v_mul_f32 v{r}, v{r}, v{r+2}")
    a("v_cvt_pk_bf16_f32 v12, v12, v13")
    a(f"ds_write_b32 v11, v12 offset:{L_ACT1}")
    arrive(F_1, "v19", "v10")
    get_tag()
    a("v_mov_b32 v3, 0")

    def ln_finish(mean, var, x0, x1, tmp):
        bf16r2(mean, var, mean, var, tmp)
        a(f"s_mov_b32 s94, {EPS:#x}")
        a(f"v_add_f32 {var}, s94, {var}")
        bf16r1(var, var)
        a(f"v_sqrt_f32 {var}, {var}")
        a(f"v_sub_f32 {x0}, {x0}, {mean}")
        a(f"v_sub_f32 {x1}, {x1}, {mean}")
        bf16r1(var, var)
        a(f"v_rcp_f32 {var}, {var}")
        bf16r2(x0, x1, x0, x1, tmp)
        a(f"v_mul_f32 {x0}, {x0}, {var}")
        a(f"v_mul_f32 {x1}, {x1}, {var}")
        bf16r2(x0, x1, x0, x1, tmp)

    def quarter_gather(chunkA, chunkB, qreg, pre=None, sample=False, hook=None):
        for (ch, sreg) in ((chunkA, "s90"), (chunkB, "s99")):
            sexpr(sreg, [(SB, "shl", 14), (qreg, "shl", 12)], W_MOD + ch*32768)
        loads = []; tags = []
        for i in range(4):
            loads.append(f"buffer_load_dwordx4 v[{16+4*i}:{19+4*i}], v1, {WSRD}, s90 offen offset:{1024*i} sc1")
            loads.append(f"buffer_load_dwordx4 v[{32+4*i}:{35+4*i}], v1, {WSRD}, s99 offen offset:{1024*i} sc1")
            tags += [f"v{17+4*i}", f"v{19+4*i}", f"v{33+4*i}", f"v{35+4*i}"]
        if pre: pre()
        poll(loads, tags, "v50", sample=sample, hook=hook)
        for (base, d0, d1) in ((16, "v14", "v15"), (32, "v48", "v49")):
            a(f"v_add_f32 {d0}, v{base}, v{base+4}")
            a(f"v_add_f32 {d1}, v{base+2}, v{base+6}")
            a(f"v_add_f32 v50, v{base+8}, v{base+12}")
            a(f"v_add_f32 v51, v{base+10}, v{base+14}")
            a(f"v_add_f32 {d0}, {d0}, v50")
            a(f"v_add_f32 {d1}, {d1}, v51")
            bf16r2(d0, d1, d0, d1, "v50")

    def modulate(x0, x1, sc0, sc1, sh0, sh1, dst, tmp):
        a(f"v_mul_f32 {x0}, {x0}, {sc0}")
        a(f"v_mul_f32 {x1}, {x1}, {sc1}")
        bf16r2(x0, x1, x0, x1, tmp)
        a(f"v_add_f32 {x0}, {x0}, {sh0}")
        a(f"v_add_f32 {x1}, {x1}, {sh1}")
        a(f"v_cvt_pk_bf16_f32 {dst}, {x0}, {x1}")

    a(f"s_cmp_eq_u32 {S_B}, 0")
    a("s_cbranch_scc1 L_q_qg")
    for i in range(4):
        a(f"v_lshlrev_b32 v{16+2*i}, 16, v{4+i}")
        a(f"v_and_b32 v{17+2*i}, 0xffff0000, v{4+i}")
    a("v_add_f32 v24, v16, v17")
    a("v_add_f32 v25, v18, v19")
    a("v_add_f32 v26, v20, v21")
    a("v_add_f32 v27, v22, v23")
    a("v_add_f32 v24, v24, v25")
    a("v_add_f32 v26, v26, v27")
    a("v_add_f32 v24, v24, v26")
    allreduce(["v24"], "v_add_f32", ["v28"], FULL)
    a(f"s_mov_b32 s94, {INV512:#x}")
    a("v_mul_f32 v24, s94, v24")
    for i in range(8): a(f"v_sub_f32 v{16+i}, v{16+i}, v24")
    a("v_mul_f32 v25, v16, v16")
    for i in range(1, 8): a(f"v_fmac_f32 v25, v{16+i}, v{16+i}")
    allreduce(["v25"], "v_add_f32", ["v28"], FULL)
    a("v_mul_f32 v25, s94, v25")
    a("v_lshlrev_b32 v12, 16, v8")
    a("v_and_b32 v13, 0xffff0000, v8")
    ln_finish("v24", "v25", "v12", "v13", "v28")
    a(f"s_lshr_b32 s100, {S_SPL}, 1")
    quarter_gather(0, 1, "s100", pre=lambda: a(f"s_sleep {cfg.d_h}"), hook=(lambda: arrive(F_HI, "v3", "v10")) if cfg.wqsplit < 16 else None)
    a("v_add_f32 v48, 1.0, v48")
    a("v_add_f32 v49, 1.0, v49")
    bf16r2("v48", "v49", "v48", "v49", "v50")
    modulate("v12", "v13", "v48", "v49", "v14", "v15", "v16", "v50")
    a(f"ds_write_b32 v11, v16 offset:{L_ACT2}")
    arrive(F_2, "v3", "v10")
    stamp(2)
    a(f"s_lshr_b32 s90, {S_SPL}, 1")
    a(f"s_and_b32 s91, {S_SPL}, 1")
    sexpr("s99", [(S_X, "shl", 15), (SB, "shl", 14), ("s90", "shl", 12), ("s91", "shl", 9)], W_Q)
    sexpr("s100", [(S_X, "shl", 12), (SB, "shl", 11), (S_SPL, "shl", 8)], W_QF)
    a("v_lshlrev_b32 v54, 3, v0")
    a("s_mov_b32 exec_hi, 0")
    loads = []; tags = []
    for i in range(4):
        loads.append(f"buffer_load_dwordx4 v[{16+4*i}:{19+4*i}], v1, {WSRD}, s99 offen offset:{1024*i} sc1")
        tags += [f"v{17+4*i}", f"v{19+4*i}"]
    get_mode("v3", "v50")
    after_own(F_PQ, 4, "v3", "v50", cfg.d_q)
    poll(loads, tags, "v50", sleep=0)
    a("v_add_f32 v48, v16, v20")
    a("v_add_f32 v49, v18, v22")
    a("v_add_f32 v50, v24, v28")
    a("v_add_f32 v51, v26, v30")
    a("v_add_f32 v48, v48, v50")
    a("v_add_f32 v49, v49, v51")
    a(f"v_mov_b32 v53, {S_TAG}")
    a("v_cvt_pk_bf16_f32 v52, v48, v49")
    store_loc(f"buffer_store_dwordx2 v[52:53], v54, {WSRD}, s100 offen")
    a("s_mov_b64 exec, -1")
    arrive(F_QF, "v3", "v10")
    a.label("L_q_qg")
    sexpr("s90", [(S_X, "shl", 12), (S_BT, "shl", 11), (SB, "shl", 10)], W_QF)
    a("v_lshrrev_b32 v54, 5, v0")
    a(f"v_mul_u32_u24 v54, {APITCH}, v54")
    a("v_and_b32 v55, 31, v0")
    a("v_lshl_add_u32 v54, v55, 3, v54")
    a(f"s_mul_i32 s100, {SB}, {2*APITCH}")
    a("v_add_u32 v54, s100, v54")
    ldA = f"buffer_load_dwordx4 v[16:19], v1, {WSRD}, s90 offen sc1"
    ldB = f"buffer_load_dwordx4 v[20:23], v1, {WSRD}, s90 offen sc1"
    a(f"s_cmp_eq_u32 {S_B}, 0")
    a("s_cbranch_scc1 L_q_qA")
    after_own(F_QF, 2, "v3", "v50", cfg.d_q)
    a("s_branch L_q_qP")
    a.label("L_q_qA")
    if cfg.quiet: spin_lds(F_LC, cfg.quiet, "v3", "v50")
    a.label("L_q_qP")
    a(ldA)
    a(f"s_sleep {cfg.qsl2}")
    a.label("L_q_loop")
    a(ldB)
    a("s_waitcnt vmcnt(1)")
    a(f"v_xor_b32 v50, {S_TAG}, v17")
    a(f"v_bitop3_b32 v50, v50, v19, {S_TAG} bitop3:0xf6")
    a("v_cmp_ne_u32 vcc, 0, v50")
    a("s_cbranch_vccz L_q_gotA")
    timeout()
    a(ldA)
    a("s_waitcnt vmcnt(1)")
    a(f"v_xor_b32 v50, {S_TAG}, v21")
    a(f"v_bitop3_b32 v50, v50, v23, {S_TAG} bitop3:0xf6")
    a("v_cmp_ne_u32 vcc, 0, v50")
    a("s_cbranch_vccnz L_q_loop")
    a("v_mov_b32 v24, v20")
    a("v_mov_b32 v25, v22")
    a("s_branch L_q_got")
    a.label("L_q_gotA")
    a("v_mov_b32 v24, v16")
    a("v_mov_b32 v25, v18")
    a.label("L_q_got")
    a(f"ds_write_b64 v54, v[24:25] offset:{L_Q}")
    arrive(F_3, "v3", "v10")
    stamp(3)
    a("s_waitcnt vmcnt(0)")
    if cfg.g_late: gate_lc(cfg.g_late, cfg.g_late * NK_B // NK_A, "v3", "v50")
    sexpr("s90", [(SB, "shl", 11), (S_KQ, "shl", 9)], W_MODF + 3*4096)
    a("s_add_u32 s99, s90, 4096")
    a("v_lshlrev_b32 v54, 3, v0")
    if cfg.warm:
        a(f"s_mul_i32 s94, {S_KQ}, 448")
        sexpr("s24", [(S_X, "shl", 15), (SB, "shl", 13), ("s94", "shl", 0)], W_GU, tmp="s25")
        a("s_add_u32 s25, s24, 4096")
        a("s_add_u32 s26, s24, 16384")
        a("s_add_u32 s27, s24, 20480")
        for wh in range(2):
            for k6 in range(4):
                sr = [["s24", "s25"], ["s26", "s27"]][wh][k6 >> 1]
                rb = 20 + 8*wh + 2*k6
                a(f"buffer_load_dwordx2 v[{rb}:{rb+1}], v54, {WSRD}, {sr} offen offset:{2048*(k6&1)} sc1")
        sexpr("s24", [(S_X, "shl", 10), (SB, "shl", 9)], W_X1S)
        sexpr("s25", [(S_X, "shl", 12), (SB, "shl", 11), (S_KQ, "shl", 9)], W_X1P)
        a(f"buffer_load_dwordx2 v[36:37], v54, {WSRD}, s24 offen sc1")
        a(f"buffer_load_dwordx2 v[38:39], v54, {WSRD}, s25 offen sc1")
    poll([f"buffer_load_dwordx2 v[16:17], v54, {WSRD}, s90 offen sc1",
          f"buffer_load_dwordx2 v[18:19], v54, {WSRD}, s99 offen sc1"], ["v17", "v19"], "v50", sleep=8)
    a("v_lshlrev_b32 v66, 16, v16")
    a("v_and_b32 v67, 0xffff0000, v16")
    a("v_lshlrev_b32 v48, 16, v18")
    a("v_and_b32 v49, 0xffff0000, v18")
    a("v_add_f32 v48, 1.0, v48")
    a("v_add_f32 v49, 1.0, v49")
    bf16r2("v64", "v65", "v48", "v49", "v50")
    r1_block("q", "v3")
    stamp(5)
    a("s_barrier")
    sexpr("s99", [(S_X, "shl", 10), (SB, "shl", 9)], W_X1S)
    sexpr("s90", [(S_X, "shl", 12), (SB, "shl", 11), (S_KQ, "shl", 9)], W_X1P)
    a("v_lshlrev_b32 v16, 3, v0")
    a("v_and_b32 v17, 31, v0")
    a("v_lshlrev_b32 v17, 4, v17")
    after_own(F_PX, 1, "v3", "v50", cfg.d_x1)
    stamp(8)
    poll([f"buffer_load_dwordx4 v[24:27], v17, {WSRD}, s99 offen sc1",
          f"buffer_load_dwordx2 v[20:21], v16, {WSRD}, s90 offen sc1"], ["v21", "v25", "v27"], "v50", sleep=cfg.rsl_l)
    stamp(9)
    allreduce(["v24", "v26"], "v_add_f32", ["v28", "v29"], ["x1", "x2", "x4", "x8", "x16"])
    a(f"s_mov_b32 s94, {INV512:#x}")
    a("v_mul_f32 v24, s94, v24")
    a("v_mul_f32 v26, s94, v26")
    a("v_lshlrev_b32 v12, 16, v20")
    a("v_fma_f32 v26, -v24, v24, v26")
    a("v_and_b32 v13, 0xffff0000, v20")
    a("v_max_f32 v26, 0, v26")
    ln_finish("v24", "v26", "v12", "v13", "v30")
    modulate("v12", "v13", "v64", "v65", "v66", "v67", "v16", "v30")
    a(f"ds_write_b32 v11, v16 offset:{L_ACT6}")
    a(f"s_mul_i32 s94, {S_KQ}, 448")
    sexpr("s90", [(S_X, "shl", 15), (SB, "shl", 13), ("s94", "shl", 0)], W_GU, tmp="s99")
    a("s_add_u32 s94, s90, 4096")
    a("s_add_u32 s99, s90, 16384")
    a("s_add_u32 s100, s90, 20480")
    a("s_waitcnt lgkmcnt(0)")
    stamp(6)
    a("s_barrier")
    a("v_lshlrev_b32 v16, 3, v0")
    a("v_mov_b32 v40, 0")
    a("v_lshlrev_b32 v17, 1, v0")
    a("v_add_u32 v17, s98, v17")
    a("s_mov_b32 exec_lo, -1")
    a("s_mov_b32 exec_hi, 0x00ffffff")
    loads = []; tags = []
    for wh in range(2):
        for k6 in range(4):
            sr = [["s90", "s94"], ["s99", "s100"]][wh][k6 >> 1]
            rb = 20 + 8*wh + 2*k6
            loads.append(f"buffer_load_dwordx2 v[{rb}:{rb+1}], v16, {WSRD}, {sr} offen offset:{2048*(k6&1)} sc1")
            tags.append(f"v{rb+1}")
    after_own(F_PG, 4, "v3", "v50", cfg.d_gu)
    poll(loads, tags, "v50", sleep=cfg.rsl_l)
    a("v_add_f32 v36, v20, v22")
    a("v_add_f32 v37, v24, v26")
    a("v_add_f32 v38, v28, v30")
    a("v_add_f32 v39, v32, v34")
    a("v_add_f32 v36, v36, v37")
    a("v_add_f32 v38, v38, v39")
    bf16r2("v36", "v38", "v36", "v38", "v50")
    a("v_mul_f32 v36, v36, v38")
    a("v_cvt_pk_bf16_f32 v40, v36, v36")
    a("s_mov_b64 exec, -1")
    a(f"ds_write_b16 v17, v40 offset:{L_ACT7}")
    a("s_waitcnt lgkmcnt(0)")
    stamp(7)
    a("s_barrier")
    dump_stamps(11)
    a("s_endpgm")

    a.label("L_slice")
    srd(48, 38, 2048)
    a("v_lshlrev_b32 v7, 4, v0")
    a("v_and_b32 v1, 3, v0")
    a("v_bfe_u32 v2, v0, 4, 1")
    a("v_bfe_u32 v4, v0, 3, 1")
    a("v_lshrrev_b32 v5, 5, v0")
    a("v_lshlrev_b32 v6, 2, v1")
    a("v_lshl_add_u32 v6, v2, 1, v6")
    a("v_add_u32 v6, v6, v4")
    a("v_lshlrev_b32 v8, 10, v5")
    a("v_lshl_add_u32 v8, v6, 1, v8")
    a(f"s_lshl_b32 s90, {S_LOC}, 5")
    a("buffer_load_ushort v9, v8, s[44:47], s90 offen")
    a("v_lshlrev_b32 v10, 4, v5")
    a("v_add_u32 v10, v10, v6")
    a("v_lshlrev_b32 v10, 2, v10")
    a("v_lshlrev_b32 v11, 1, v1")
    a("v_add_u32 v11, v11, v2")
    a("v_lshlrev_b32 v12, 11, v5")
    a("v_lshl_add_u32 v98, v11, 3, v12")
    a("v_lshlrev_b32 v99, 9, v5")
    a("v_lshlrev_b32 v12, 10, v5")
    a("v_lshl_add_u32 v97, v11, 2, v12")
    sexpr("s22", [(S_X, "shl", 12), (S_LOC, "shl", 6)], W_X1P)
    sexpr("s23", [(S_X, "shl", 10), (S_LOC, "shl", 4)], W_X1S)
    a(f"s_lshl_b32 s24, {S_LOC}, 5")
    a(f"s_lshl_b32 s17, {S_LOC}, 12")
    a("v_cmp_eq_u32 s[26:27], 1, v4")
    a("v_mov_b32 v100, 0x3f80")
    a("v_mov_b32 v101, 0x3f800000")
    a("s_waitcnt vmcnt(0)")
    get_tag()
    a("v_mov_b32 v3, 0")
    a("v_lshlrev_b32 v102, 16, v9")
    get_mode("v3", "v20")
    stamp(1)

    def part_loads(base, rb0=16, setup=True):
        if setup: a(f"s_add_u32 s20, s17, {base}")
        loads = []; tags = []
        for i in range(4):
            rb = rb0 + 4*i
            loads.append(f"buffer_load_dwordx4 v[{rb}:{rb+3}], v7, {WSRD}, s20 offen offset:{1024*i} sc1")
            tags += [f"v{rb+1}", f"v{rb+3}"]
        return loads, tags
    def part_loads_atomic(base):
        a(f"s_add_u32 s20, s17, {base}")
        loads = []; tags = []
        for r in range(16, 32): loads.append(f"v_mov_b32 v{r}, 0")
        for i in range(4):
            rb = 16 + 4*i
            for hh in range(2):
                loads.append(f"buffer_atomic_add_x2 v[{rb+2*hh}:{rb+2*hh+1}], v7, {WSRD}, s20 offen offset:{1024*i + 8*hh} sc0 sc1")
            tags += [f"v{rb+1}", f"v{rb+3}"]
        return loads, tags
    def part_dot(rb0):
        for b in range(2):
            for (k, (off, sel)) in enumerate(((0, "v100"), (0, "v101"), (2, "v100"), (2, "v101"))):
                a(f"v_dot2_f32_bf16 v{32+4*b+k}, v{rb0+8*b+off}, {sel}, 0")
        for b in range(2):
            for (k, (off, sel)) in enumerate(((0, "v100"), (0, "v101"), (2, "v100"), (2, "v101"))):
                a(f"v_dot2_f32_bf16 v{32+4*b+k}, v{rb0+4+8*b+off}, {sel}, v{32+4*b+k}")
    def part_sum(dot=True):
        if dot: part_dot(16)
        for c in range(4): a(f"v_permlane32_swap_b32 v{32+c}, v{36+c}")
        for c in range(4): a(f"v_add_f32 v{32+c}, v{32+c}, v{36+c}")
        a("v_permlane16_swap_b32 v32, v34")
        a("v_permlane16_swap_b32 v33, v35")
        a("v_add_f32 v32, v32, v34")
        a("v_add_f32 v33, v33, v35")
        a("v_cndmask_b32 v36, v32, v33, s[26:27]")
        a("v_cndmask_b32 v37, v33, v32, s[26:27]")
        a("v_add_f32_dpp v36, v37, v36 row_ror:8 row_mask:0xf bank_mask:0xf")
        a("v_add_f32_dpp v40, v36, v36 row_shl:4 row_mask:0xf bank_mask:0x5")
        a("v_add_f32_dpp v40, v36, v36 row_shr:4 row_mask:0xf bank_mask:0xa")
    def resid(gate):
        bf16r1("v40", "v40")
        a(f"v_mul_f32 v40, v40, {gate}")
        bf16r1("v40", "v40")
        a("v_add_f32 v102, v102, v40")
        bf16r1("v102", "v102")
    def make_pair(dst):
        a("v_mov_b32_dpp v41, v102 row_ror:8 row_mask:0xf bank_mask:0xf")
        a(f"v_cvt_pk_bf16_f32 {dst}, v102, v41")
    PUBM = "0x000f000f"

    l1, t1 = part_loads(W_A4)
    spin_lds(F_MB2, 4, "v3", "v15")
    a("v_lshrrev_b32 v16, 4, v0")
    a("v_and_b32 v17, 15, v0")
    a(f"v_mul_u32_u24 v18, {PPITCH}, v16")
    a("v_lshl_add_u32 v18, v17, 2, v18")
    a("v_lshlrev_b32 v19, 2, v16")
    a("v_mov_b32 v20, 0")
    a("v_mov_b32 v21, 0x3f803f80")
    for w in range(4): a(f"ds_read_b32 v{24+w}, v19 offset:{L_MX+16*w}")
    for i in range(NK_B // 32): a(f"ds_read_b32 v{32+i}, v18 offset:{L_P+64*i}")
    a(f"s_cmp_lg_u32 {S_B}, 0")
    a("s_cbranch_scc1 L_sl_stB")
    for i in range(NK_B // 32, NK_A // 32): a(f"ds_read_b32 v{32+i}, v18 offset:{L_P+64*i}")
    a("s_waitcnt lgkmcnt(0)")
    for i in range(NK_B // 32, NK_A // 32): a(f"v_dot2_f32_bf16 v20, v{32+i}, v21, v20")
    a.label("L_sl_stB")
    a("s_waitcnt lgkmcnt(0)")
    for i in range(NK_B // 32): a(f"v_dot2_f32_bf16 v20, v{32+i}, v21, v20")
    allreduce(["v20"], "v_add_f32", [], ["x1", "x2", "x4", "x8"])
    a("v_max3_f32 v24, v24, v25, v26")
    a("v_max_f32 v24, v24, v27")
    a(f"v_mov_b32 v25, {S_TAG}")
    a("v_mov_b32 v26, v20")
    a(f"v_mov_b32 v27, {S_TAG}")
    a("v_lshlrev_b32 v22, 8, v16")
    sexpr("s25", [(S_X, "shl", 11), (S_BT, "shl", 10), (S_SP, "shl", 4)], W_ST)
    a("s_mov_b32 exec_lo, 0x00010001")
    a("s_mov_b32 exec_hi, 0x00010001")
    store_loc(f"buffer_store_dwordx4 v[24:27], v22, {WSRD}, s25 offen")
    a("s_mov_b64 exec, -1")
    spin_lds(F_GA, 1, "v3", "v15")
    a(f"ds_read_b32 v103, v10 offset:{L_GA}")
    a(f"ds_read_b32 v104, v10 offset:{L_GB}")
    a("s_waitcnt lgkmcnt(0)")
    r1_block("s", "v3")
    a(f"v_mov_b32 v43, {S_TAG}")
    a(f"v_mov_b32 v45, {S_TAG}")
    a(f"v_mov_b32 v47, {S_TAG}")
    a("s_barrier")
    after_own(F_PA, 4, "v3", "v15", cfg.d_s5)
    stamp(2)
    if cfg.dbl:
        poll2(lambda rb: part_loads(0, rb, setup=False), "v15", "s5", part_dot)
        stamp(3)
        part_sum(dot=False)
    else:
        poll(l1, t1, "v15")
        stamp(3)
        part_sum()
    resid("v103")
    make_pair("v42")
    a("v_mul_f32 v46, v102, v102")
    a("v_mov_b32 v44, v102")
    a(f"s_mov_b32 exec_lo, {PUBM}")
    a(f"s_mov_b32 exec_hi, {PUBM}")
    store_loc(f"buffer_store_dwordx2 v[42:43], v98, {WSRD}, s22 offen")
    a("s_mov_b64 exec, -1")
    allreduce(["v44", "v46"], "v_add_f32", ["v48", "v49"], ["x1", "x2", "r8", "x16"])
    a("s_mov_b32 exec_lo, 1")
    a("s_mov_b32 exec_hi, 1")
    store_loc(f"buffer_store_dwordx4 v[44:47], v99, {WSRD}, s23 offen")
    a("s_mov_b64 exec, -1")
    a("v_mov_b32 v15, 1")
    arrive(F_PX, "v3", "v15")
    stamp(4)
    mark(14, "v3")
    a(f"s_and_b32 s90, {S_LOC}, 7")
    a(f"s_cmp_lg_u32 s90, {S_X}")
    a("s_cbranch_scc1 L_slice_nf")
    a("s_barrier")
    a("s_barrier")
    l1, t1 = part_loads_atomic(W_DN) if cfg.atom8 else part_loads(W_DN)
    after_own(F_PD, 4, "v3", "v15", cfg.d_s8)
    if cfg.dbl and not cfg.atom8:
        a("s_waitcnt vmcnt(0)")
        poll2(lambda rb: part_loads(0, rb, setup=False), "v15", "s8", part_dot)
        part_sum(dot=False)
    else:
        poll(l1, t1, "v15")
        part_sum()
    resid("v104")
    make_pair("v42")
    a(f"s_mov_b32 exec_lo, {PUBM}")
    a(f"s_mov_b32 exec_hi, {PUBM}")
    a("buffer_store_dword v42, v97, s[48:51], s24 offen")
    a(f"s_cmp_lg_u32 {S_WG}, 0")
    a("s_cbranch_scc1 L_slice_end")
    a("s_mov_b64 exec, 1")
    a(f"v_mov_b32 v24, {S_EP}")
    a("v_mov_b32 v21, 0")
    a(f"buffer_store_dword v24, v21, {WSRD}, 0 offen sc1")
    a.label("L_slice_end")
    if cfg.probe == 1:
        a("s_sleep 94")
        a("s_sleep 94")
    if cfg.probe >= 10:
        a(f"ds_read_b32 v20, v3 offset:{L_PRB}")
        a("s_waitcnt lgkmcnt(0)")
        a("v_readfirstlane_b32 s22, v20")
        a("s_mov_b32 s24, 100000")
        a.label("L_probe")
        a("s_memrealtime s[20:21]")
        a("s_waitcnt lgkmcnt(0)")
        a("s_sub_u32 s24, s24, 1")
        a("s_cbranch_scc1 L_probe_e")
        a("s_sub_u32 s23, s20, s22")
        a("s_cmp_lt_u32 s23, 2000")
        a("s_cbranch_scc1 L_probe")
        a.label("L_probe_e")
    if cfg.probe == 3:
        a("s_add_u32 s22, s62, 2500")
        a.label("L_probe")
        a("s_memrealtime s[20:21]")
        a("s_waitcnt lgkmcnt(0)")
        a("s_sub_u32 s23, s20, s22")
        a("s_cmp_lt_i32 s23, 0")
        a("s_cbranch_scc1 L_probe")
    if cfg.probe == 2:
        a("s_memrealtime s[20:21]")
        a("s_waitcnt lgkmcnt(0)")
        a("s_add_u32 s22, s20, 500")
        a.label("L_probe")
        a("s_memrealtime s[20:21]")
        a("s_waitcnt lgkmcnt(0)")
        a("s_sub_u32 s23, s20, s22")
        a("s_cmp_lt_i32 s23, 0")
        a("s_cbranch_scc1 L_probe")
    a("s_mov_b64 exec, -1")
    stamp(5)
    dump_stamps(6, final=True)
    a("s_endpgm")
    a.label("L_slice_nf")
    a("s_barrier")
    a("s_barrier")
    dump_stamps(5, final=True)
    a("s_endpgm")

    a.label("L_aux")
    srd(44, 28, 512*1792*2)
    srd(48, 30, 512*1792*2)
    srd(52, 32, 1792*512*2)
    a("v_mov_b32 v10, 1")
    sexpr("s18", [(S_X, "mul", 224*1024), (S_KQ, "mul", 56*1024), (S_CB, "shl", 7)])
    sexpr("s19", [(S_KQ, "mul", 128*3584), (S_X, "mul", 448), (S_CB, "shl", 6)])
    a("s_waitcnt vmcnt(0)")
    get_tag()
    strip_voff(3584, "v64")
    unit_voffs(pitch_shift=10, d0="v66", d1="v67")
    a("v_mov_b32 v3, 0")
    stamp(1)

    if cfg.g_piece:
        Lq = a.newlabel("Lgx")
        a(f"s_cmp_lg_u32 {S_B}, 0")
        a(f"s_cbranch_scc1 {Lq}")
        spin_lds(F_LC, cfg.g_piece, "v3", "v50")
        a.label(Lq)
    if cfg.local == 2:
        L = a.newlabel("Lxc"); E = a.newlabel("Lxce")
        srd(60, 40, 256)
        a(f"s_lshl_b32 s91, {S_X}, 5")
        a("s_add_u32 s91, s91, 8")
        a("v_mov_b32 v18, s91")
        a("s_getreg_b32 s90, hwreg(HW_REG_XCC_ID)")
        a("s_and_b32 s90, s90, 7")
        a("s_mul_i32 s90, s90, 6")
        a("s_lshl_b64 s[26:27], 1, s90")
        a("s_mov_b64 exec, 1")
        a.label(L)
        a("buffer_load_dwordx2 v[20:21], v18, s[60:63], 0 offen sc1")
        a("s_waitcnt vmcnt(0)")
        a("v_readfirstlane_b32 s20, v20")
        a("v_readfirstlane_b32 s21, v21")
        a("s_mov_b64 s[22:23], s[20:21]")
        a("s_mov_b32 s90, 0")
        for k in range(8):
            a("s_and_b32 s91, s22, 63")
            a("s_add_u32 s90, s90, s91")
            if k < 7: a("s_lshr_b64 s[22:23], s[22:23], 6")
        a("s_cmp_ge_u32 s90, 32")
        a(f"s_cbranch_scc1 {E}")
        timeout()
        a("s_sleep 2")
        a(f"s_branch {L}")
        a.label(E)
        a("s_lshl_b64 s[22:23], s[26:27], 5")
        a("s_cmp_eq_u64 s[20:21], s[22:23]")
        a("s_cselect_b32 s90, 1, 2")
        a("v_mov_b32 v16, s90")
        a(f"ds_write_b32 v3, v16 offset:{F_LM}")
        a("s_mov_b64 exec, -1")
    stamp(2)
    a(f"s_cmp_lg_u32 {S_B}, 0")
    a("s_cbranch_scc1 L_aux_ga")
    a(f"s_cmp_ge_u32 {S_SPL}, 16")
    a("s_cbranch_scc1 L_aux_ga")
    a(f"s_lshr_b32 s90, {S_X}, 1")
    a(f"s_and_b32 s91, {S_X}, 1")
    a(f"s_lshr_b32 s22, {S_SPL}, 2")
    a(f"s_and_b32 s23, {S_SPL}, 3")
    sexpr("s20", [("s90", "shl", 15), ("s91", "shl", 14), ("s22", "shl", 12), ("s23", "shl", 8)], W_MOD + 2*32768)
    sexpr("s21", [("s90", "shl", 12), ("s91", "shl", 11), (S_SPL, "shl", 7)], W_MODF + 2*4096)
    a("v_lshlrev_b32 v18, 3, v0")
    a("s_mov_b32 exec_hi, 0")
    loads = []; tags = []
    for i in range(4):
        loads.append(f"buffer_load_dwordx2 v[{40+2*i}:{41+2*i}], v18, {WSRD}, s20 offen offset:{1024*i} sc1")
        tags.append(f"v{41+2*i}")
    if cfg.g_piece: spin_lds(F_LC, cfg.g_piece, "v3", "v50")
    poll(loads, tags, "v60", sleep=6, sample=(not cfg.g_piece))
    a("v_add_f32 v40, v40, v42")
    a("v_add_f32 v44, v44, v46")
    a("v_add_f32 v40, v40, v44")
    a("v_lshlrev_b32 v18, 2, v0")
    a(f"v_mov_b32 v43, {S_TAG}")
    a("v_mov_b32_dpp v42, v40 quad_perm:[1,0,3,2] row_mask:0xf bank_mask:0xf")
    a("s_mov_b32 exec_lo, 0x55555555")
    a("v_cvt_pk_bf16_f32 v42, v40, v42")
    a(f"buffer_store_dwordx2 v[42:43], v18, {WSRD}, s21 offen sc1")
    a("s_mov_b64 exec, -1")
    a.label("L_aux_ga")
    if cfg.g_late: gate_lc(cfg.g_late, cfg.g_late * NK_B // NK_A, "v3", "v50")
    sexpr("s20", [(S_LOC, "shl", 6)], W_MODF + 2*4096)
    a(f"s_add_u32 s21, s20, {3*4096}")
    a("v_bfe_u32 v16, v0, 3, 1")
    a("v_and_b32 v17, 7, v0")
    a("v_lshlrev_b32 v18, 11, v16")
    a("v_lshl_add_u32 v18, v17, 3, v18")
    a("v_and_b32 v19, 15, v0")
    a("v_lshlrev_b32 v19, 3, v19")
    a("s_mov_b64 exec, 0xffff")
    poll([f"buffer_load_dwordx2 v[40:41], v18, {WSRD}, s20 offen sc1",
          f"buffer_load_dwordx2 v[42:43], v18, {WSRD}, s21 offen sc1"], ["v41", "v43"], "v60", sleep=8)
    a("v_lshlrev_b32 v44, 16, v40")
    a("v_and_b32 v45, 0xffff0000, v40")
    a("v_lshlrev_b32 v46, 16, v42")
    a("v_and_b32 v47, 0xffff0000, v42")
    a(f"ds_write_b64 v19, v[44:45] offset:{L_GA}")
    a(f"ds_write_b64 v19, v[46:47] offset:{L_GB}")
    a("s_mov_b64 exec, -1")
    arrive(F_GA, "v3", "v10")
    r1_block("a", "v3")
    a("s_barrier")
    if cfg.bearly:
        a(f"s_cmp_lg_u32 {S_B}, 0")
        a("s_cbranch_scc1 L_aux_lateE")
    if cfg.guwo:
        a(f"s_cmp_eq_u32 {S_B}, 0")
        a("s_cbranch_scc1 L_aux_lateE")
    spin_lds(F_PA, 4, "v3", "v50", sleep=False)
    a(f"s_cmp_eq_u32 {S_CB}, 7")
    a("s_cbranch_scc1 L_aux_gu_e")
    a(f"s_mov_b32 m0, {L_G}")
    a("s_mov_b32 s99, 8")
    a.label("L_aux_gu")
    a("buffer_load_dwordx4 v64, s[44:47], s19 offen nt lds")
    a("s_add_u32 m0, m0, 0x2000")
    a("s_nop 0")
    a("buffer_load_dwordx4 v64, s[48:51], s19 offen nt lds")
    a("s_sub_u32 m0, m0, 0x1c00")
    a(f"s_add_u32 s19, s19, {16*3584}")
    a("s_sub_u32 s99, s99, 1")
    a("s_cmp_lg_u32 s99, 0")
    a("s_cbranch_scc1 L_aux_gu")
    a.label("L_aux_gu_e")
    a("s_waitcnt vmcnt(0)")
    arrive(F_LATE, "v3", "v10")
    if not cfg.dnwo:
        spin_lds(F_PX, 1, "v3", "v50", sleep=False)
        a(f"s_mov_b32 m0, {L_DN}")
        a("s_nop 0")
        for i in range(8):
            a(f"buffer_load_dwordx4 v{66 + (i&1)}, s[52:55], s18 offen nt lds")
            a("s_add_u32 m0, m0, 0x400")
            a("s_add_u32 s18, s18, 0x2000")
        a("s_waitcnt vmcnt(0)")
        arrive(F_DN, "v3", "v10")
    a.label("L_aux_lateE")
    stamp(3)
    a("s_barrier")
    a("s_barrier")
    dump_stamps(4)
    a("s_endpgm")

    a.label("L_abort")
    a("s_mov_b64 exec, 1")
    a("v_mov_b32 v1, 0")
    a(f"s_lshl_b32 s90, {S_WG}, 16")
    a("s_or_b32 s90, s90, s1") if cfg.site else None
    a("v_mov_b32 v2, s90")
    a(f"s_and_b32 s90, {S_W}, 1")
    a("s_lshl_b32 s90, s90, 2")
    a("v_mov_b32 v1, s90")
    a("v_or_b32 v2, 0xde000000, v2")
    a("s_mov_b32 s44, s40")
    a("s_and_b32 s45, s41, 0xffff")
    a("s_mov_b32 s46, 256")
    a("s_mov_b32 s47, 0x20000")
    a("buffer_store_dword v2, v1, s[44:47], 0 offen")
    a.label("L_end")
    a("s_endpgm")

    hdr = open(f"cdna_kernels/{NAME}.s.ref").read().split("; Override launch")[0]
    out = hdr
    out += f"; @launch grid=(256,1,1) block=(576,1,1) lds={L_TOTAL}\n"
    out += '.amdgcn_target "amdgcn-amd-amdhsa--gfx950"\n.text\n'
    out += f".globl {NAME}_kernel\n.p2align 8\n.type {NAME}_kernel,@function\n"
    out += a.text()
    out += f""".section .rodata,"a"
.p2align 6
.amdhsa_kernel {NAME}_kernel
  .amdhsa_next_free_vgpr 128
  .amdhsa_next_free_sgpr 102
  .amdhsa_accum_offset 128
  .amdhsa_group_segment_fixed_size 0
  .amdhsa_kernarg_size 112
  .amdhsa_user_sgpr_count 2
  .amdhsa_user_sgpr_kernarg_segment_ptr 1
  .amdhsa_system_sgpr_workgroup_id_x 1
.end_amdhsa_kernel
"""
    return out

if __name__ == "__main__":
    cfg = Cfg()
    outp = sys.argv[1]
    for arg in sys.argv[2:]:
        k, v = arg.split("=")
        assert hasattr(cfg, k), k
        setattr(cfg, k, int(v))
    open(outp, "w").write(gen(cfg))
    print("wrote", outp)
```

```python
import sys
from asmlib import Asm

NAME = "adaLN_cond__sliding_block_cached__glu_gated_bilinear__decode"

class Cfg:
    D = 40
    DA = 28
    DA1 = 0
    stamps = 0
    spin = 1 << 20
    rsl = 1
    local = 2
    touch = 1
    dbl8 = 0
    cwarm = 0
    wqsplit = 16
    guwo = 0
    dnwo = 1
    bearly = 0
    mprio = 1
    warm = 1
    dbl = 1
    stag = 4
    rsl_l = 0
    g_piece = 0
    g_late = 0
    slow = 0
    nwait = 1
    qsl2 = 6
    wq1 = 4
    quiet = 0
    prio = 0
    qsl = 4
    kstart = 1
    d_h = 16
    d_q = 1
    d_r1 = 1
    d_s5 = 8
    d_x1 = 1
    d_gu = 1
    d_s8 = 2
    atom8 = 1
    probe = 0
    site = 0

(F_LC, F_1, F_2, F_3, F_EC, F_KC, F_MB1, F_MB2, F_LATE, F_PO, F_PA, F_PX, F_PG, F_PD,
 F_PM, F_PQ, F_QF, F_WQ, F_WOL, F_MRL, F_LM, F_GA, F_DN, F_HI) = [4*i for i in range(24)]
L_MX = 128; L_LS = 192; L_ZERO = 256
L_ACT1 = 768; L_ACT2 = 1344; L_ACT4 = 1920; L_ACT6 = 2496; L_ACT7 = 3072
L_PRB = 7424
L_GA = 7168; L_GB = 7296
L_Q = 3648
L_P = 4736
L_X = 8192; L_C = 10240
L_K = 12288; L_V = L_K + 73728; L_TOTAL = L_V + 73728; L_MR = L_V + 57344
NK_A = 288; NK_B = 160
L_MODB = L_K; L_WQ = L_V
L_WO = L_K; L_G = L_K + 16384; L_U = L_K + 24576; L_DN = L_K + 32768
L_WO_B = L_K + 40960; L_G_B = L_K + 57344; L_DN_B = L_V + 65536
APITCH = 272; PPITCH = 592

W_EPOCH = 0
W_MOD = 0x1000
W_MODF = 0x38000
W_Q = 0x40000
W_QF = 0x88000
W_ST = 0x80000
W_O = 0x90000
W_A4 = 0x110000
W_X1P = 0x150000
W_X1S = 0x158000
W_GU = 0x160000
W_DN = 0x1A0000
W_STAMP = 0x200000
W_USED = 0x300000

LOG2E = 0x3fb8aa3b
SCALE = 0x3db504f3
EPS = 0x3727c5ac
INV512 = 0x3b000000

S_WG, S_W, S_X, S_LOC, S_B, S_SPL, S_KQ, S_CB, S_TAG, S_SPIN = "s2", "s3", "s4", "s5", "s6", "s7", "s8", "s9", "s10", "s11"
S_U = "s7"
S_BT = "s86"
S_SP = "s87"
WSRD = "s[12:15]"
S_EP = "s89"
S_LM = "s88"
PX = "s[42:43]"
S_PH = "s101"
KB_B = 0

def gen(cfg):
    a = Asm()
    D = cfg.D

    def srd(dst, plo, size):
        a(f"s_mov_b32 s{dst}, s{plo}")
        a(f"s_and_b32 s{dst+1}, s{plo+1}, 0xffff")
        a(f"s_mov_b32 s{dst+2}, {size}")
        a(f"s_mov_b32 s{dst+3}, 0x20000")

    def stamp(k):
        if cfg.stamps == 1 or (cfg.stamps == 2 and k == 0): a(f"s_memrealtime s[{64+2*k}:{65+2*k}]")

    def mark(pid, vz):
        if cfg.probe == pid:
            a("s_memrealtime s[62:63]")
            a("s_waitcnt lgkmcnt(0)")
            a("v_mov_b32 v127, s62")
            a(f"ds_max_u32 {vz}, v127 offset:{L_PRB}")

    def dump_stamps(n, final=False):
        if not cfg.stamps: return
        if cfg.stamps == 2:
            if not final: return
            a("s_memrealtime s[66:67]")
            n = 2
        a("s_waitcnt lgkmcnt(0)")
        a(f"s_mul_i32 s90, {S_WG}, 9")
        a(f"s_add_u32 s90, s90, {S_W}")
        a("s_lshl_b32 s90, s90, 7")
        a(f"s_add_u32 s90, s90, {W_STAMP}")
        a("s_mov_b64 exec, 1")
        a("v_mov_b32 v1, 0")
        for k in range(n):
            a(f"v_mov_b32 v2, s{64+2*k}")
            a(f"v_mov_b32 v3, s{65+2*k}")
            a(f"buffer_store_dwordx2 v[2:3], v1, {WSRD}, s90 offen offset:{8*k}")
            a("s_nop 1")
        a("s_waitcnt vmcnt(0)")

    sites = [0]
    def timeout():
        if cfg.site:
            sites[0] += 1
            a(f"s_mov_b32 s1, {sites[0]}")
        a(f"s_sub_u32 {S_SPIN}, {S_SPIN}, 1")
        a("s_cbranch_scc1 L_abort")

    def spin_lds(off, n, vz, vt, sleep=True):
        L = a.newlabel("Lsp"); E = a.newlabel("Lspe")
        a.label(L)
        a(f"ds_read_b32 {vt}, {vz} offset:{off}")
        a("s_waitcnt lgkmcnt(0)")
        a(f"v_readfirstlane_b32 s91, {vt}")
        a(f"s_cmp_ge_i32 s91, {n}")
        a(f"s_cbranch_scc1 {E}")
        timeout()
        if sleep: a("s_sleep 1")
        a(f"s_branch {L}")
        a.label(E)

    def arrive(off, vz, vone):
        a("s_mov_b64 s[92:93], exec")
        a("s_mov_b64 exec, 1")
        a(f"ds_add_u32 {vz}, {vone} offset:{off}")
        a("s_mov_b64 exec, s[92:93]")

    def poll(loads, tags, vacc, sleep=None, sample=False, hook=None):
        if sleep is None: sleep = cfg.rsl
        L = a.newlabel("Lpl"); E = a.newlabel("Lple"); R = a.newlabel("Lplr")
        a(f"s_mov_b64 {PX}, exec")
        if sample:
            a(f"s_mov_b32 {S_PH}, 0")
            a("s_mov_b64 exec, 1")
        if hook:
            H = a.newlabel("Lplh")
            for ld in loads: a(ld)
            hook()
            a(f"s_branch {H}")
        a.label(L)
        for ld in loads: a(ld)
        if hook: a.label(H)
        a("s_waitcnt vmcnt(0)")
        a(f"v_xor_b32 {vacc}, {S_TAG}, {tags[0]}")
        for t in tags[1:]:
            a(f"v_bitop3_b32 {vacc}, {vacc}, {t}, {S_TAG} bitop3:0xf6")
        a(f"v_cmp_ne_u32 vcc, 0, {vacc}")
        if sample:
            a(f"s_cbranch_vccnz {R}")
            a(f"s_cmp_lg_u32 {S_PH}, 0")
            a(f"s_cbranch_scc1 {E}")
            a(f"s_mov_b32 {S_PH}, 1")
            a(f"s_mov_b64 exec, {PX}")
            a(f"s_branch {L}")
            a.label(R)
        else:
            a(f"s_cbranch_vccz {E}")
        a("s_mov_b64 exec, vcc")
        timeout()
        if sleep: a(f"s_sleep {sleep}")
        a(f"s_branch {L}")
        a.label(E)
        a(f"s_mov_b64 exec, {PX}")

    def poll2(mk, vacc, uid, use):
        la, ta = mk(16); lb, tb = mk(64)
        nl = len(la)
        def check(tags):
            a(f"v_xor_b32 {vacc}, {S_TAG}, {tags[0]}")
            for t in tags[1:]: a(f"v_bitop3_b32 {vacc}, {vacc}, {t}, {S_TAG} bitop3:0xf6")
            a(f"v_cmp_ne_u32 vcc, 0, {vacc}")
        for l in la: a(l)
        a(f"s_sleep {cfg.stag}")
        a.label(f"L_p2_{uid}")
        for l in lb: a(l)
        a(f"s_waitcnt vmcnt({nl})")
        check(ta)
        a(f"s_cbranch_vccz L_p2a_{uid}")
        timeout()
        for l in la: a(l)
        a(f"s_waitcnt vmcnt({nl})")
        check(tb)
        a(f"s_cbranch_vccnz L_p2_{uid}")
        use(64)
        a(f"s_branch L_p2e_{uid}")
        a.label(f"L_p2a_{uid}")
        use(16)
        a.label(f"L_p2e_{uid}")

    def after_own(flag, n, vz, vt, dly):
        spin_lds(flag, n, vz, vt, sleep=False)
        if dly: a(f"s_sleep {dly}")

    def get_mode(vz, vt):
        if cfg.local == 2:
            spin_lds(F_LM, 1, vz, vt)
            a(f"s_mov_b32 {S_LM}, s91")

    def store_loc(text):
        if cfg.local == 0: a(text + " sc1")
        elif cfg.local == 1: a(text)
        else:
            P = a.newlabel("Lst"); E = a.newlabel("Lste")
            a(f"s_cmp_eq_u32 {S_LM}, 1")
            a(f"s_cbranch_scc1 {P}")
            a(text + " sc1")
            a(f"s_branch {E}")
            a.label(P)
            a(text)
            a.label(E)

    def bf16r2(d0, d1, s0, s1, tmp):
        a(f"v_cvt_pk_bf16_f32 {tmp}, {s0}, {s1}")
        a(f"v_lshlrev_b32 {d0}, 16, {tmp}")
        a(f"v_and_b32 {d1}, 0xffff0000, {tmp}")

    def bf16r1(d, s):
        a(f"v_cvt_pk_bf16_f32 {d}, {s}, {s}")
        a(f"v_lshlrev_b32 {d}, 16, {d}")

    def allreduce(regs, op, tmps, steps):
        dpp = {"x1": "quad_perm:[1,0,3,2]", "x2": "quad_perm:[2,3,0,1]", "x4": "row_half_mirror", "x8": "row_mirror", "r8": "row_ror:8", "r4": "row_ror:4"}
        for s in steps:
            if s in dpp:
                for r in regs:
                    a(f"{op}_dpp {r}, {r}, {r} {dpp[s]} row_mask:0xf bank_mask:0xf")
            else:
                ins = "v_permlane16_swap_b32" if s == "x16" else "v_permlane32_swap_b32"
                for r, t in zip(regs, tmps): a(f"v_mov_b32 {t}, {r}")
                for r, t in zip(regs, tmps): a(f"{ins} {r}, {t}")
                for r, t in zip(regs, tmps): a(f"{op} {r}, {r}, {t}")
    FULL = ["x1", "x2", "x4", "x8", "x16", "x32"]

    def sexpr(dst, terms, const=0, tmp="s94"):
        first = True
        for (reg, kind, n) in terms:
            tgt = dst if first else tmp
            if kind == "shl":
                if n == 0: a(f"s_mov_b32 {tgt}, {reg}")
                else: a(f"s_lshl_b32 {tgt}, {reg}, {n}")
            else: a(f"s_mul_i32 {tgt}, {reg}, {n}")
            if not first: a(f"s_add_u32 {dst}, {dst}, {tmp}")
            first = False
        if const: a(f"s_add_u32 {dst}, {dst}, {const}")

    def gate_lc(valA, valB, vz, vt):
        a(f"s_mul_i32 s99, {S_B}, {valB - valA}")
        a(f"s_add_u32 s99, s99, {valA}")
        spin_lds(F_LC, "s99", vz, vt)

    def get_tag():
        a(f"v_readfirstlane_b32 {S_EP}, v3")
        a(f"s_add_u32 {S_EP}, {S_EP}, 1")
        a(f"s_mul_i32 {S_TAG}, {S_EP}, 0x9E3779B1")

    def unit_voffs(pitch_shift=None, pitch=None, d0="v24", d1="v25"):
        a("v_lshrrev_b32 v3, 3, v0")
        a("v_bfe_u32 v4, v0, 4, 1")
        a("v_lshlrev_b32 v4, 1, v4")
        a("v_and_b32 v5, 7, v0")
        a("v_xor_b32 v4, v4, v5")
        a("v_lshlrev_b32 v4, 4, v4")
        if pitch_shift is not None: a(f"v_lshlrev_b32 v6, {pitch_shift}, v3")
        else: a(f"v_mul_u32_u24 v6, {pitch}, v3")
        a(f"v_add_u32 {d0}, v6, v4")
        a(f"v_xor_b32 {d1}, 64, {d0}")

    def strip_voff(pitch, d):
        a("v_lshrrev_b32 v6, 2, v0")
        a(f"v_mul_u32_u24 {d}, {pitch}, v6")
        a("v_bfe_u32 v6, v0, 5, 1")
        a("v_lshlrev_b32 v6, 1, v6")
        a("v_and_b32 v7, 3, v0")
        a("v_xor_b32 v6, v6, v7")
        a(f"v_lshl_add_u32 {d}, v6, 4, {d}")

    a.label(f"{NAME}_kernel")
    a(f"s_cmp_ge_u32 {S_WG}, 256")
    a("s_cbranch_scc1 L_end")
    a("s_load_dwordx16 s[16:31], s[0:1], 0")
    a("s_load_dwordx8 s[32:39], s[0:1], 64")
    a("s_load_dwordx4 s[40:43], s[0:1], 96")
    stamp(0)
    if cfg.probe == 3: a("s_memrealtime s[62:63]")
    a("v_lshrrev_b32 v1, 6, v0")
    a("v_and_b32 v0, 63, v0")
    a(f"v_readfirstlane_b32 {S_W}, v1")
    a(f"s_and_b32 {S_X}, {S_WG}, 7")
    a(f"s_lshr_b32 {S_LOC}, {S_WG}, 3")
    a(f"s_cmp_lt_u32 {S_LOC}, 8")
    a(f"s_cselect_b32 {S_B}, 1, 0")
    a(f"s_cselect_b32 s90, 0, 8")
    a(f"s_sub_u32 {S_SPL}, {S_LOC}, s90")
    a(f"s_cselect_b32 s91, 4, 12") if False else None
    a(f"s_cmp_lt_u32 {S_LOC}, 8")
    a(f"s_cselect_b32 s91, 4, 12")
    a(f"s_cselect_b32 s94, 0, 4")
    a(f"s_cmp_ge_u32 {S_SPL}, s91")
    a(f"s_cselect_b32 {S_BT}, 1, 0")
    a(f"s_mul_i32 s90, {S_BT}, s91")
    a(f"s_sub_u32 {S_SP}, {S_SPL}, s90")
    a(f"s_add_u32 {S_SP}, {S_SP}, s94")
    a(f"s_lshr_b32 {S_KQ}, {S_LOC}, 3")
    a(f"s_and_b32 {S_CB}, {S_LOC}, 7")
    a(f"s_mov_b32 {S_SPIN}, {cfg.spin}")
    a(f"s_mov_b32 {S_LM}, {1 if cfg.local == 1 else 2}")
    a(f"s_cmp_lg_u32 {S_W}, 8")
    a("s_cbranch_scc1 L_worker")

    SLC = "s95"; SOFF = "s96"
    unit_voffs(pitch=6144, d0="v20", d1="v21")
    a(f"s_and_b32 s90, {S_SPL}, 3")
    a(f"s_mul_i32 {SOFF}, s90, {128*6144}")
    a(f"s_lshr_b32 s90, {S_SPL}, 2")
    a(f"s_lshl_b32 s94, {S_X}, 2")
    a("s_add_u32 s94, s94, 16")
    a(f"s_lshl_b32 s91, {S_X}, 1")
    a("s_sub_u32 s91, s91, 4")
    a(f"s_cmp_ge_u32 {S_SPL}, 16")
    a("s_cselect_b32 s94, s91, s94")
    a("s_add_u32 s90, s90, s94")
    a("s_lshl_b32 s90, s90, 7")
    a(f"s_add_u32 {SOFF}, {SOFF}, s90")
    a(f"s_mov_b32 m0, {L_MR}")
    a("s_waitcnt lgkmcnt(0)")
    srd(44, 36, 512*3072*2)
    a(f"s_cmp_lt_u32 {S_LOC}, 24")
    a("s_cbranch_scc1 L_ld_nourg")
    for i in range(16):
        a(f"buffer_load_dwordx4 v{20 + (i&1)}, s[44:47], {SOFF} offen nt lds")
        if i < 15:
            a(f"s_add_u32 {SOFF}, {SOFF}, {8*6144}")
            a("s_add_u32 m0, m0, 0x400")
    a.label("L_ld_nourg")
    if cfg.prio: a("s_setprio 3")
    a("s_barrier")
    stamp(1)
    srd(12, 42, W_USED)
    srd(52, 18, 2*8*32768*128*2)
    srd(56, 20, 2*8*32768*128*2)
    srd(60, 24, 4096*512*2)
    a("v_mov_b32 v10, 0")
    a("v_lshrrev_b32 v3, 4, v0")
    a("v_and_b32 v4, 15, v0")
    a("v_xor_b32 v5, v4, v3")
    a("v_lshlrev_b32 v5, 4, v5")
    a("v_lshl_add_u32 v26, v3, 8, v5")
    a("v_xor_b32 v27, 64, v26")
    a("v_xor_b32 v28, 0x80, v26")
    a("v_xor_b32 v29, 0xc0, v26")
    a("v_lshlrev_b32 v5, 1, v3")
    a("v_xor_b32 v5, v4, v5")
    a("v_lshlrev_b32 v5, 4, v5")
    a("v_lshl_add_u32 v30, v3, 8, v5")
    a("v_xor_b32 v31, 0x80, v30")
    a(f"s_mul_i32 s91, {S_B}, {(NK_B - NK_A) * 256}")
    a(f"s_add_u32 s91, s91, {NK_A * 256}")
    a(f"s_mul_i32 s90, {S_SP}, s91")
    a(f"s_mul_i32 s91, {S_B}, {512 * 256}")
    a("s_add_u32 s90, s90, s91")
    sexpr("s98", [(S_BT, "shl", 26), (S_X, "shl", 23), ("s90", "shl", 0)], (28672 - 512) * 256)
    unit_voffs(pitch_shift=10)

    def lc_write(val, off=F_LC):
        a(f"v_mov_b32 v11, {val}")
        a(f"ds_write_b32 v10, v11 offset:{off}")
    def seg(name, variants, srdn, step, iters, ldsbase):
        if ldsbase is not None: a(f"s_mov_b32 m0, {ldsbase}")
        a(f"s_mov_b32 s97, {iters}")
        a.label(name)
        for v in variants:
            a(f"buffer_load_dwordx4 {v}, s[{srdn}:{srdn+3}], {SOFF} offen nt lds")
            a(f"s_add_u32 {SOFF}, {SOFF}, {step}")
            a("s_add_u32 m0, m0, 0x400")
        a("s_sub_u32 s97, s97, 1")
        a("s_cmp_lg_u32 s97, 0")
        a(f"s_cbranch_scc1 {name}")
    def drain(end, ks):
        for k in ks:
            a(f"s_waitcnt vmcnt({k})")
            lc_write(end - k)
    def seg4(name, variants, srdn, iters, ldsbase, D=D):
        if ldsbase is not None: a(f"s_mov_b32 m0, {ldsbase}")
        a(f"s_mov_b32 s97, {iters}")
        a.label(name)
        for i, v in enumerate(variants):
            a(f"buffer_load_dwordx4 {v}, s[{srdn}:{srdn+3}], {SOFF} offen offset:{1024*i} nt lds")
        a(f"s_add_u32 {SOFF}, {SOFF}, 0x1000")
        a("s_add_u32 m0, m0, 0x1000")
        a(f"s_add_u32 {SLC}, {SLC}, 4")
        a(f"v_mov_b32 v11, {SLC}")
        a(f"s_waitcnt vmcnt({D-4})")
        a(f"ds_write_b32 v10, v11 offset:{F_LC}")
        a("s_sub_u32 s97, s97, 1")
        a("s_cmp_lg_u32 s97, 0")
        a(f"s_cbranch_scc1 {name}")
    WO_OFF = [(S_X, "shl", 19), (S_KQ, "shl", 17), (S_CB, "shl", 7)]

    a(f"s_cmp_eq_u32 {S_B}, 0")
    a("s_cbranch_scc1 L_ld_A")
    if cfg.bearly:
        srd(48, 28, 512*1792*2)
        srd(44, 30, 512*1792*2)
        strip_voff(3584, "v20")
        sexpr(SOFF, WO_OFF)
        seg("L_ld_woB", ["v24", "v25"], 60, 8192, 8, L_WO_B)
        a(f"s_cmp_eq_u32 {S_CB}, 7")
        a("s_cbranch_scc1 L_ld_guBe")
        sexpr(SOFF, [(S_KQ, "mul", 128*3584), (S_X, "mul", 448), (S_CB, "shl", 6)])
        a(f"s_mov_b32 m0, {L_G_B}")
        a("s_mov_b32 s97, 8")
        a.label("L_ld_guB")
        a(f"buffer_load_dwordx4 v20, s[48:51], {SOFF} offen nt lds")
        a("s_add_u32 m0, m0, 0x2000")
        a("s_nop 0")
        a(f"buffer_load_dwordx4 v20, s[44:47], {SOFF} offen nt lds")
        a("s_sub_u32 m0, m0, 0x1c00")
        a(f"s_add_u32 {SOFF}, {SOFF}, {16*3584}")
        a("s_sub_u32 s97, s97, 1")
        a("s_cmp_lg_u32 s97, 0")
        a("s_cbranch_scc1 L_ld_guB")
        a.label("L_ld_guBe")
        srd(48, 32, 1792*512*2)
        sexpr(SOFF, [(S_X, "mul", 224*1024), (S_KQ, "mul", 56*1024), (S_CB, "shl", 7)])
        seg("L_ld_dnB", ["v24", "v25"], 48, 8192, 4, L_DN_B)
        a("s_waitcnt vmcnt(0)")
        lc_write(1, F_WOL)
        lc_write(1, F_LATE)
        lc_write(1, F_DN)
    if cfg.kstart == 0:
        spin_lds(F_EC, 4, "v10", "v12")
        spin_lds(F_3, 2, "v10", "v12", sleep=False)
    elif cfg.kstart == 1:
        spin_lds(F_QF, 2, "v10", "v12", sleep=False)
    elif cfg.kstart == 3:
        spin_lds(F_PQ, 4, "v10", "v12", sleep=False)
    else:
        pass
    stamp(2)
    a(f"s_mov_b32 {SLC}, {KB_B - (D - 4)}")
    a(f"s_mov_b32 {SOFF}, s98")
    seg4("L_ld_kB", ["v26", "v27", "v28", "v29"], 52, NK_B // 16, L_K)
    a(f"s_mov_b32 {SOFF}, s98")
    seg4("L_ld_vB", ["v30", "v30", "v31", "v31"], 56, NK_B // 16, L_V)
    stamp(3)
    if cfg.bearly:
        drain(KB_B + NK_B // 2, [k for k in (32, 24, 16, 8) if k < D - 4] + [0])
        stamp(4)
        dump_stamps(5)
        a("s_endpgm")
    else:
        sexpr(SOFF, WO_OFF)
        seg("L_ld_woB", ["v24", "v25"], 60, 8192, 8, L_WO_B)
        if cfg.dnwo:
            srd(48, 32, 1792*512*2)
            sexpr(SOFF, [(S_X, "mul", 224*1024), (S_KQ, "mul", 56*1024), (S_CB, "shl", 7)])
            seg("L_ld_dnB", ["v24", "v25"], 48, 8192, 4, L_DN_B)
            drain(KB_B + NK_B // 2 + 24, [k for k in (56, 48, 40, 32, 24) if k < D + 20])
            stamp(4)
            a("s_waitcnt vmcnt(8)")
            lc_write(1, F_WOL)
            a("s_waitcnt vmcnt(0)")
            lc_write(1, F_DN)
            dump_stamps(5)
            a("s_endpgm")
        else:
            drain(KB_B + NK_B // 2 + 16, [k for k in (48, 40, 32, 24, 16) if k < D + 12])
            stamp(4)
    a.label("L_ld_fin")
    a("s_waitcnt vmcnt(0)")
    lc_write(1, F_WOL)
    stamp(5)
    dump_stamps(6)
    a("s_endpgm")
    a.label("L_ld_A")
    DA = cfg.DA
    a(f"s_cmp_ge_u32 {S_SPL}, 16")
    a("s_cbranch_scc1 L_ld_urg")
    spin_lds(F_1, 2, "v10", "v12", sleep=False)
    if cfg.slow:
        a(f"s_mov_b32 m0, {L_MR}")
        a("s_nop 0")
        for i in range(2 * cfg.slow):
            a(f"buffer_load_dwordx4 v{20 + (i&1)}, s[44:47], {SOFF} offen nt lds")
            a(f"s_add_u32 {SOFF}, {SOFF}, {8*6144}")
            a("s_add_u32 m0, m0, 0x400")
            if i & 1: a("s_waitcnt vmcnt(0)")
        seg("L_ld_mr", ["v20", "v21"], 44, 8*6144, 8 - cfg.slow, None)
    else:
        seg("L_ld_mr", ["v20", "v21"], 44, 8*6144, 8, L_MR)
    a("s_branch L_ld_kgo")
    a.label("L_ld_urg")
    a("s_waitcnt vmcnt(0)")
    lc_write(1, F_MRL)
    spin_lds(F_PM, 4, "v10", "v12", sleep=False)
    a.label("L_ld_kgo")
    DA1 = cfg.DA1 or DA
    a(f"s_mov_b32 {SLC}, {-(DA1 - 4)}")
    a(f"s_mov_b32 {SOFF}, s98")
    n0 = (DA1 - 4 + 3) // 4
    assert 0 < n0 < NK_A // 16
    seg4("L_ld_kA0", ["v26", "v27", "v28", "v29"], 52, n0, L_K, DA1)
    lc_write(1, F_MRL)
    seg4("L_ld_kA", ["v26", "v27", "v28", "v29"], 52, NK_A // 16 - n0, None, DA1)
    stamp(2)
    a(f"s_mov_b32 {SOFF}, s98")
    if DA > DA1:
        assert (DA - DA1) % 4 == 0
        a(f"s_mov_b32 m0, {L_V}")
        a("s_nop 0")
        for it in range((DA - DA1) // 4):
            for i, v in enumerate(["v30", "v30", "v31", "v31"]):
                a(f"buffer_load_dwordx4 {v}, s[56:59], {SOFF} offen offset:{1024*i} nt lds")
            a(f"s_add_u32 {SOFF}, {SOFF}, 0x1000")
            a("s_add_u32 m0, m0, 0x1000")
        seg4("L_ld_vA", ["v30", "v30", "v31", "v31"], 56, NK_A // 16 - 4 - (DA - DA1) // 4, None, DA)
    else:
        seg4("L_ld_vA", ["v30", "v30", "v31", "v31"], 56, NK_A // 16 - 4, L_V, DA)
    spin_lds(F_EC, 4, "v10", "v12")
    seg4("L_ld_vA2", ["v30", "v30", "v31", "v31"], 56, 4, None, DA)
    stamp(3)
    drain(NK_A // 2, [k for k in (32, 24, 16, 8) if k < DA - 4] + [0])
    stamp(4)
    spin_lds(F_KC, 4, "v10", "v12")
    sexpr(SOFF, WO_OFF)
    seg("L_ld_woA", ["v24", "v25"], 60, 8192, 8, L_WO)
    if cfg.dnwo:
        srd(48, 32, 1792*512*2)
        sexpr(SOFF, [(S_X, "mul", 224*1024), (S_KQ, "mul", 56*1024), (S_CB, "shl", 7)])
        seg("L_ld_dnA", ["v24", "v25"], 48, 8192, 4, L_DN)
        if cfg.guwo:
            a("s_waitcnt vmcnt(8)")
            lc_write(1, F_WOL)
            srd(48, 28, 512*1792*2)
            srd(44, 30, 512*1792*2)
            strip_voff(3584, "v20")
            a(f"s_cmp_eq_u32 {S_CB}, 7")
            a("s_cbranch_scc1 L_ld_guAe")
            sexpr(SOFF, [(S_KQ, "mul", 128*3584), (S_X, "mul", 448), (S_CB, "shl", 6)])
            a(f"s_mov_b32 m0, {L_G}")
            a("s_mov_b32 s97, 8")
            a.label("L_ld_guA")
            a(f"buffer_load_dwordx4 v20, s[48:51], {SOFF} offen nt lds")
            a("s_add_u32 m0, m0, 0x2000")
            a("s_nop 0")
            a(f"buffer_load_dwordx4 v20, s[44:47], {SOFF} offen nt lds")
            a("s_sub_u32 m0, m0, 0x1c00")
            a(f"s_add_u32 {SOFF}, {SOFF}, {16*3584}")
            a("s_sub_u32 s97, s97, 1")
            a("s_cmp_lg_u32 s97, 0")
            a("s_cbranch_scc1 L_ld_guA")
            a.label("L_ld_guAe")
            a("s_waitcnt vmcnt(0)")
            lc_write(1, F_DN)
            lc_write(1, F_LATE)
        else:
            a("s_waitcnt vmcnt(8)")
            lc_write(1, F_WOL)
            a("s_waitcnt vmcnt(0)")
            lc_write(1, F_DN)
        dump_stamps(5)
        a("s_endpgm")
    else:
        a("s_branch L_ld_fin")

    a.label("L_worker")
    a(f"s_cmp_lg_u32 {S_W}, 4")
    a("s_cbranch_scc1 L_wk2")
    a("v_mov_b32 v10, 0")
    for r in range(12, 16): a(f"v_mov_b32 v{r}, 0")
    a("v_lshlrev_b32 v1, 2, v0")
    a("v_lshlrev_b32 v2, 4, v0")
    a("ds_write_b32 v1, v10")
    a(f"ds_write_b128 v2, v[12:15] offset:{L_ZERO}")
    if cfg.probe >= 10: a(f"ds_write_b32 v10, v10 offset:{L_PRB}")
    if cfg.local == 1:
        a("v_mov_b32 v11, 1")
        a(f"ds_write_b32 v10, v11 offset:{F_LM}")
    a.label("L_wk2")
    a("s_waitcnt lgkmcnt(0)")
    srd(12, 42, W_USED)
    srd(44, 16, 2048)
    srd(48, 34, 2048)
    a(f"s_sub_u32 s97, {S_W}, 5")
    a("s_and_b32 s97, s97, 1")
    a("s_lshl_b32 s90, s97, 10")
    a(f"s_and_b32 s94, {S_SPL}, 3")
    a("s_lshl_b32 s94, s94, 8")
    a("s_add_u32 s94, s94, s90")
    a("v_lshlrev_b32 v1, 4, v0")
    a("v_lshlrev_b32 v2, 2, v0")
    a(f"s_cmp_lt_u32 {S_W}, 5")
    a("s_cbranch_scc1 L_wk2b")
    a(f"s_cmp_eq_u32 {S_W}, 7")
    a("s_cbranch_scc1 L_wk2b")
    a("buffer_load_dword v9, v2, s[48:51], s94 offen")
    a("buffer_load_dwordx4 v[4:7], v1, s[44:47], s90 offen")
    a(f"s_lshr_b32 s94, {S_SPL}, 1")
    a("s_and_b32 s94, s94, 3")
    a("s_lshl_b32 s94, s94, 8")
    a("s_add_u32 s94, s94, s90")
    a("buffer_load_dword v8, v2, s[44:47], s94 offen")
    a.label("L_wk2b")
    a("v_mov_b32 v2, 0")
    a(f"buffer_load_dword v3, v2, {WSRD}, 0 offen sc1")
    a(f"s_cmp_lg_u32 {S_W}, 7")
    a("s_cbranch_scc1 L_wk3")
    if cfg.local == 2:
        srd(60, 40, 256)
        a("s_getreg_b32 s90, hwreg(HW_REG_XCC_ID)")
        a("s_and_b32 s90, s90, 7")
        a("s_mul_i32 s90, s90, 6")
        a("s_lshl_b64 s[26:27], 1, s90")
        a(f"s_lshl_b32 s91, {S_X}, 5")
        a("s_add_u32 s91, s91, 8")
        a("v_mov_b32 v18, s91")
        a("v_mov_b32 v16, s26")
        a("v_mov_b32 v17, s27")
        a("s_mov_b64 exec, 1")
        a("buffer_atomic_add_x2 v[16:17], v18, s[60:63], 0 offen sc1")
        a("s_mov_b64 exec, -1")
    if cfg.touch:
        sexpr("s90", [(S_BT, "shl", 26), (S_X, "shl", 23), (S_SP, "shl", 16)], 28672*256)
        a("s_load_dword s78, s[18:19], s90")
        a("s_load_dword s79, s[20:21], s90")
        a(f"s_lshr_b32 s91, {S_SPL}, 1")
        a("s_and_b32 s91, s91, 3")
        a("s_lshl_b32 s91, s91, 20")
        a("s_load_dword s80, s[22:23], s91")
        sexpr("s91", [(S_X, "shl", 19), (S_KQ, "shl", 17)])
        a("s_load_dword s81, s[24:25], s91")
        a(f"s_mul_i32 s91, {S_KQ}, {128*3584}")
        a("s_load_dword s82, s[28:29], s91")
        a("s_load_dword s83, s[30:31], s91")
        a(f"s_mul_i32 s91, {S_X}, {224*1024}")
        a("s_load_dword s84, s[32:33], s91")
        a("s_load_dword s85, s[38:39], 0")
    a.label("L_wk3")
    a("s_barrier")
    if cfg.cwarm:
        a(f"s_cmp_lg_u32 {S_W}, 4")
        a("s_cbranch_scc1 L_cw_e")
        a("s_getpc_b64 s[0:1]")
        a.label("L_cw_base")
        a("s_mov_b32 s90, 0")
        a.label("L_cw_loop")
        for k in range(8):
            a(f"s_load_dword s77, s[0:1], s90 offset:{128*k}")
        a("s_add_u32 s90, s90, 1024")
        a("s_cmp_lt_u32 s90, (L_end - L_cw_base - 1024)")
        a("s_cbranch_scc1 L_cw_loop")
        a.label("L_cw_e")
    a(f"s_cmp_ge_u32 {S_W}, 4")
    a("s_cbranch_scc1 L_gwave")

    a.label("L_mwave")
    if cfg.mprio: a("s_setprio 2")
    srd(56, 22, 512*4096*2)
    a("v_lshrrev_b32 v1, 4, v0")
    a("v_and_b32 v2, 15, v0")
    a("v_mov_b32 v4, 1")
    a("v_lshlrev_b32 v22, 1, v1")
    a("v_xor_b32 v22, v2, v22")
    a("v_lshlrev_b32 v22, 4, v22")
    a("v_lshl_add_u32 v56, v1, 13, v22")
    a("v_xor_b32 v57, 0x80, v56")
    a(f"s_lshr_b32 s90, {S_SPL}, 1")
    a(f"s_and_b32 s91, {S_SPL}, 1")
    sexpr("s96", [("s90", "shl", 20), (S_X, "shl", 10), ("s91", "shl", 9), (S_W, "shl", 18)])
    a("s_add_u32 s97, s96, 256")
    def wq_loads(lo, hi):
        for k in range(lo, hi):
            bb, i = k >> 3, k & 7
            sr = "s96" if bb == 0 else "s97"
            if k == lo or i == 0:
                a(f"s_lshl_b32 s90, {S_W}, 13")
                a(f"s_add_u32 m0, s90, {L_WQ + 32768*bb + 1024*i}")
                a("s_nop 0")
            a(f"buffer_load_dwordx4 {'v56' if (i & 2) == 0 else 'v57'}, s[56:59], {sr} offen nt lds")
            a(f"s_add_u32 {sr}, {sr}, {4*8192}")
            a("s_add_u32 m0, m0, 0x400")
    a(f"s_cmp_eq_u32 {S_B}, 0")
    a("s_cbranch_scc1 L_m_nowq")
    wq_loads(0, cfg.wqsplit)
    a.label("L_m_nowq")
    a("v_bfe_u32 v6, v2, 2, 1")
    a(f"v_mul_u32_u24 v6, {APITCH}, v6")
    a("v_lshl_add_u32 v6, v1, 4, v6")
    a("v_bfe_u32 v16, v0, 2, 2")
    a("v_and_b32 v17, 3, v0")
    a("v_lshl_add_u32 v18, v1, 3, v16")
    a("v_lshrrev_b32 v19, 1, v17")
    a("v_and_b32 v20, 1, v17")
    a("v_and_b32 v21, 1, v1")
    a("v_lshrrev_b32 v22, 1, v16")
    a("v_lshl_or_b32 v22, v21, 1, v22")
    a("v_lshlrev_b32 v22, 1, v22")
    a(f"s_lshl_b32 s90, {S_W}, 1")
    a("v_add_u32 v23, s90, v19")
    a("v_xor_b32 v23, v23, v22")
    a("v_lshlrev_b32 v7, 7, v18")
    a("v_lshl_add_u32 v7, v23, 4, v7")
    a("v_lshl_add_u32 v7, v20, 3, v7")
    a(f"s_and_b32 s90, {S_W}, 1")
    a("s_lshl_b32 s90, s90, 1")
    a("v_add_u32 v23, s90, v19")
    a("v_lshlrev_b32 v22, 1, v21")
    a("v_xor_b32 v23, v23, v22")
    a("v_lshlrev_b32 v12, 6, v18")
    a("v_lshl_add_u32 v12, v23, 4, v12")
    a("v_lshl_add_u32 v12, v20, 3, v12")
    a("v_lshl_or_b32 v22, v21, 2, v16")
    a("v_lshlrev_b32 v22, 1, v22")
    a(f"s_lshl_b32 s90, {S_W}, 2")
    a("v_add_u32 v23, s90, v19")
    a("v_xor_b32 v24, v23, v22")
    a("v_lshlrev_b32 v25, 8, v18")
    a("v_lshl_add_u32 v25, v20, 3, v25")
    a("v_lshl_add_u32 v13, v24, 4, v25")
    a("v_add_u32 v23, 2, v23")
    a("v_xor_b32 v24, v23, v22")
    a("v_lshl_add_u32 v14, v24, 4, v25")
    a("v_bfe_u32 v8, v0, 4, 1")
    a("v_lshlrev_b32 v9, 3, v2")
    O_MOD, O_Q, O_O, O_A4, O_GU, O_DN, O_ST, T_K, T_V = "s16", "s17", "s18", "s19", "s20", "s21", "s24", "s25", "s26"
    a(f"s_mul_i32 {T_K}, {S_B}, {KB_B + NK_B // 4 - NK_A // 4}")
    a(f"s_add_u32 {T_K}, {T_K}, {NK_A // 4}")
    a(f"s_mul_i32 {T_V}, {S_B}, {KB_B + NK_B // 2 - NK_A // 2}")
    a(f"s_add_u32 {T_V}, {T_V}, {NK_A // 2}")
    sexpr(O_O, [(S_X, "shl", 16), (S_BT, "shl", 13), (S_SP, "shl", 9), (S_W, "shl", 7)], W_O)
    sexpr(O_A4, [(S_CB, "shl", 14), (S_W, "shl", 12), (S_X, "shl", 8), (S_KQ, "shl", 6)], W_A4)
    a(f"s_add_u32 {O_DN}, {O_A4}, {W_DN - W_A4}")
    a(f"s_lshr_b32 s90, {S_W}, 1")
    a(f"s_and_b32 s91, {S_W}, 1")
    sexpr(O_GU, [(S_X, "shl", 15), ("s90", "shl", 14), (S_KQ, "shl", 11), (S_CB, "shl", 8), ("s91", "shl", 7)], W_GU)
    sexpr(O_ST, [(S_X, "shl", 11), (S_BT, "shl", 10), (S_SP, "shl", 4)], W_ST)
    a(f"s_and_b32 s90, {S_SPL}, 1")
    a("s_lshl_b32 s90, s90, 1")
    a(f"s_lshr_b32 s91, {S_W}, 1")
    a("s_add_u32 s90, s90, s91")
    a(f"s_lshr_b32 s91, {S_SPL}, 1")
    a(f"s_and_b32 s97, {S_W}, 1")
    sexpr(O_Q, [(S_X, "shl", 15), ("s90", "shl", 12), ("s91", "shl", 10), ("s97", "shl", 9)], W_Q)
    a(f"s_cmp_lt_u32 {S_SPL}, 16")
    a("s_cbranch_scc1 L_m_offA")
    a(f"s_lshr_b32 s90, {S_X}, 2")
    a(f"s_and_b32 s91, {S_X}, 3")
    a(f"s_bfe_u32 s97, {S_SPL}, 0x10002")
    a(f"s_and_b32 s98, {S_SPL}, 3")
    sexpr(O_MOD, [("s90", "shl", 15), ("s91", "shl", 12), ("s98", "shl", 10), ("s97", "shl", 9), (S_W, "shl", 7)], W_MOD)
    a("s_branch L_m_offE")
    a.label("L_m_offA")
    a(f"s_lshr_b32 s90, {S_X}, 1")
    a(f"s_and_b32 s91, {S_X}, 1")
    a("s_lshl_b32 s91, s91, 2")
    a(f"s_lshr_b32 s97, {S_SPL}, 2")
    a("s_add_u32 s91, s91, s97")
    a("s_lshr_b32 s97, s91, 1")
    a("s_and_b32 s91, s91, 1")
    a(f"s_and_b32 s98, {S_SPL}, 3")
    sexpr(O_MOD, [("s90", "shl", 15), ("s97", "shl", 12), ("s98", "shl", 10), ("s91", "shl", 9), (S_W, "shl", 7)], W_MOD + 2*32768)
    a.label("L_m_offE")
    a("s_waitcnt vmcnt(0)")
    get_tag()
    a("v_mov_b32 v3, 0")
    stamp(1)

    def loadB(vaddr, nk, kstride, hoff, base=16):
        for t in range(nk):
            a(f"ds_read_b64_tr_b16 v[{base+4*t}:{base+4*t+1}], {vaddr} offset:{t*kstride}")
            a(f"ds_read_b64_tr_b16 v[{base+4*t+2}:{base+4*t+3}], {vaddr} offset:{t*kstride+hoff}")

    def gemv(act_off, nk, bbase=16, second=None):
        for t in range(nk):
            a(f"ds_read_b128 v[{32+4*t}:{35+4*t}], v6 offset:{act_off+64*t}")
        for t in range(nk):
            a(f"s_waitcnt lgkmcnt({nk-1-t})")
            c = "0" if t == 0 else "v[48:51]"
            a(f"v_mfma_f32_16x16x32_bf16 v[48:51], v[{32+4*t}:{35+4*t}], v[{bbase+4*t}:{bbase+4*t+3}], {c}")
            if second is not None:
                c = "0" if t == 0 else "v[56:59]"
                a(f"v_mfma_f32_16x16x32_bf16 v[56:59], v[{32+4*t}:{35+4*t}], v[{second+4*t}:{second+4*t+3}], {c}")

    def publish(shift, soff, local=False, second=False):
        a(f"v_lshl_add_u32 v54, v8, {shift}, v9")
        a(f"v_mov_b32 v53, {S_TAG}")
        if second: a(f"v_mov_b32 v61, {S_TAG}")
        a("v_mov_b32 v52, v48")
        if second: a("v_mov_b32 v60, v56")
        a("s_mov_b32 exec_hi, 0")
        t1 = f"buffer_store_dwordx2 v[52:53], v54, {WSRD}, {soff} offen"
        t2 = f"buffer_store_dwordx2 v[60:61], v54, {WSRD}, {soff} offen offset:128"
        if local:
            store_loc(t1)
            if second: store_loc(t2)
        else:
            a(t1 + " sc1")
            if second: a(t2 + " sc1")
        a("s_mov_b32 exec_hi, -1")

    def publish_pair(soff):
        a("v_lshlrev_b32 v54, 11, v8")
        a("v_lshl_add_u32 v54, v2, 2, v54")
        a(f"v_mov_b32 v53, {S_TAG}")
        a("v_mov_b32_dpp v52, v48 quad_perm:[1,0,3,2] row_mask:0xf bank_mask:0xf")
        a("s_mov_b32 exec_lo, 0x55555555")
        a("s_mov_b32 exec_hi, 0")
        a("v_cvt_pk_bf16_f32 v52, v48, v52")
        a(f"buffer_store_dwordx2 v[52:53], v54, {WSRD}, {soff} offen sc1")
        a("s_mov_b64 exec, -1")

    a(f"s_cmp_lg_u32 {S_B}, 0")
    a("s_cbranch_scc1 L_m_B")
    spin_lds(F_1, 2, "v3", "v5")
    spin_lds(F_MRL, 1, "v3", "v5")
    a(f"v_add_u32 v10, {L_MR}, v7")
    loadB("v10", 4, 4096, 512)
    gemv(L_ACT1, 4)
    arrive(F_EC, "v3", "v4")
    publish(14, O_MOD)
    arrive(F_PM, "v3", "v4")
    stamp(2)
    a("s_branch L_m_s3")
    a.label("L_m_B")
    if cfg.wqsplit < 16:
        spin_lds(F_HI, 2, "v3", "v5", sleep=False)
        wq_loads(cfg.wqsplit, 16)
    a("s_waitcnt vmcnt(0)")
    arrive(F_WQ, "v3", "v4")
    a("v_bfe_u32 v16, v0, 2, 2")
    a("v_and_b32 v17, 3, v0")
    a("v_lshl_add_u32 v18, v1, 3, v16")
    a("v_lshrrev_b32 v19, 1, v17")
    a("v_and_b32 v20, 1, v17")
    a("v_and_b32 v21, 1, v1")
    a("v_lshl_or_b32 v22, v21, 2, v16")
    a("v_lshlrev_b32 v22, 1, v22")
    a("v_lshlrev_b32 v25, 8, v18")
    a("v_lshl_add_u32 v25, v20, 3, v25")
    a(f"s_lshr_b32 s90, {S_W}, 1")
    a("s_lshl_b32 s90, s90, 15")
    a(f"s_add_u32 s90, s90, {L_WQ}")
    a("v_add_u32 v25, s90, v25")
    a(f"s_and_b32 s91, {S_W}, 1")
    a("s_lshl_b32 s91, s91, 3")
    a("v_add_u32 v19, s91, v19")
    for e in range(4):
        a(f"v_add_u32 v23, {2*e}, v19")
        a("v_xor_b32 v23, v23, v22")
        a(f"v_lshl_add_u32 v{28+e}, v23, 4, v25")
    spin_lds(F_WQ, 4, "v3", "v5", sleep=False)
    for e in range(4):
        loadB(f"v{28+e}", 4, 8192, 1024, base=64 + 16*e)
    get_mode("v3", "v5")
    a("s_waitcnt lgkmcnt(0)")
    arrive(F_EC, "v3", "v4")
    a("v_lshl_add_u32 v54, v8, 14, v9")
    a(f"v_mov_b32 v53, {S_TAG}")
    spin_lds(F_2, 2, "v3", "v5", sleep=False)
    for t in range(4):
        a(f"ds_read_b128 v[{32+4*t}:{35+4*t}], v6 offset:{L_ACT2+64*t}")
    for t in range(4):
        a(f"s_waitcnt lgkmcnt({3-t})")
        for e in range(4):
            c = "0" if t == 0 else f"v[{16+4*e}:{19+4*e}]"
            a(f"v_mfma_f32_16x16x32_bf16 v[{16+4*e}:{19+4*e}], v[{32+4*t}:{35+4*t}], v[{64+16*e+4*t}:{67+16*e+4*t}], {c}")
    a("s_mov_b32 exec_hi, 0")
    for e in range(4):
        a(f"v_mov_b32 v{56+2*e}, v{16+4*e}")
        a(f"v_mov_b32 v{57+2*e}, v53")
    if cfg.local == 2:
        P = a.newlabel("Lst"); E = a.newlabel("Lste")
        a(f"s_cmp_eq_u32 {S_LM}, 1")
        a(f"s_cbranch_scc1 {P}")
        for e in range(4): a(f"buffer_store_dwordx2 v[{56+2*e}:{57+2*e}], v54, {WSRD}, {O_Q} offen offset:{128*e} sc1")
        a(f"s_branch {E}")
        a.label(P)
        for e in range(4): a(f"buffer_store_dwordx2 v[{56+2*e}:{57+2*e}], v54, {WSRD}, {O_Q} offen offset:{128*e}")
        a.label(E)
    else:
        for e in range(4): a(f"buffer_store_dwordx2 v[{56+2*e}:{57+2*e}], v54, {WSRD}, {O_Q} offen offset:{128*e}" + (" sc1" if cfg.local == 0 else ""))
    a("s_mov_b32 exec_hi, -1")
    arrive(F_PQ, "v3", "v4")
    stamp(3)
    mark(10, "v3")
    a.label("L_m_s3")
    get_mode("v3", "v5")
    T_ST, T_N = "s27", "s28"
    a(f"s_lshl_b32 s90, {S_B}, 1")
    a(f"s_sub_u32 s90, 4, s90")
    a(f"s_mul_i32 {T_ST}, {S_W}, s90")
    a(f"s_min_u32 s91, {S_W}, 2")
    a(f"s_add_u32 {T_ST}, {T_ST}, s91")
    a(f"s_cmp_lt_u32 {S_W}, 2")
    a(f"s_addc_u32 {T_N}, s90, 0")
    a("s_mov_b64 s[30:31], -1")
    a(f"s_cmp_eq_u32 {T_N}, 3")
    a("s_cselect_b32 s31, 0xffff, s31")
    a(f"s_cmp_eq_u32 {T_N}, 2")
    a("s_cselect_b32 s31, 0, s31")
    a("s_mov_b32 s33, 0")
    a(f"s_cmp_eq_u32 {T_N}, 5")
    a("s_cselect_b32 s32, 0xffff, 0")
    a("v_xor_b32 v10, v1, v2")
    a("v_lshlrev_b32 v10, 4, v10")
    a("v_lshl_add_u32 v10, v2, 8, v10")
    a(f"s_lshl_b32 s90, {T_ST}, 12")
    a(f"s_add_u32 s90, s90, {L_K}")
    a("v_add_u32 v112, s90, v10")
    a("v_xor_b32 v113, 64, v112")
    a("v_xor_b32 v114, 0x80, v112")
    a("v_xor_b32 v115, 0xc0, v112")
    a("v_and_b32 v10, 3, v2")
    a(f"v_mul_u32_u24 v10, {APITCH}, v10")
    a("v_lshl_add_u32 v116, v1, 4, v10")
    a("v_cmp_eq_u32 s[34:35], 1, v1")
    a("v_cmp_eq_u32 s[36:37], 2, v1")
    a("v_cmp_eq_u32 s[38:39], 3, v1")
    for r in range(80, 100): a(f"v_mov_b32 v{r}, 0")
    NEG = "s29"
    a(f"s_mov_b32 {NEG}, 0xff800000")
    spin_lds(F_3, 2, "v3", "v5", sleep=False)
    spin_lds(F_LC, T_K, "v3", "v5", sleep=False)
    stamp(4)
    mark(11, "v3")
    def k_reads(tt, base):
        for t in range(4):
            a(f"ds_read_b128 v[{base+4*t}:{base+4*t+3}], v{112+t} offset:{4096*tt}")
    def qk_mfma(tt, base):
        acc = f"v[{80+4*tt}:{83+4*tt}]"
        for t in range(4):
            c = "0" if t == 0 else acc
            a(f"v_mfma_f32_16x16x32_bf16 {acc}, v[{16+4*t}:{19+4*t}], v[{base+4*t}:{base+4*t+3}], {c}")
    for t in range(4):
        a(f"ds_read_b128 v[{16+4*t}:{19+4*t}], v116 offset:{L_Q+64*t}")
    k_reads(0, 32)
    k_reads(1, 48)
    a(f"s_cmp_eq_u32 {T_N}, 2")
    a("s_cbranch_scc1 L_qk_n2")
    k_reads(2, 64)
    a("s_waitcnt lgkmcnt(8)")
    qk_mfma(0, 32)
    a(f"s_cmp_eq_u32 {T_N}, 3")
    a("s_cbranch_scc1 L_qk_n3")
    k_reads(3, 32)
    a("s_waitcnt lgkmcnt(8)")
    qk_mfma(1, 48)
    a(f"s_cmp_eq_u32 {T_N}, 4")
    a("s_cbranch_scc1 L_qk_n4")
    k_reads(4, 48)
    a("s_waitcnt lgkmcnt(8)")
    qk_mfma(2, 64)
    a("s_waitcnt lgkmcnt(4)")
    qk_mfma(3, 32)
    a("s_waitcnt lgkmcnt(0)")
    qk_mfma(4, 48)
    a("s_branch L_qk_done")
    a.label("L_qk_n4")
    a("s_waitcnt lgkmcnt(4)")
    qk_mfma(2, 64)
    a("s_waitcnt lgkmcnt(0)")
    qk_mfma(3, 32)
    a("s_branch L_qk_done")
    a.label("L_qk_n3")
    a("s_waitcnt lgkmcnt(4)")
    qk_mfma(1, 48)
    a("s_waitcnt lgkmcnt(0)")
    qk_mfma(2, 64)
    a("s_branch L_qk_done")
    a.label("L_qk_n2")
    a("s_waitcnt lgkmcnt(4)")
    qk_mfma(0, 32)
    a("s_waitcnt lgkmcnt(0)")
    qk_mfma(1, 48)
    a.label("L_qk_done")
    arrive(F_KC, "v3", "v4")
    a("s_nop 7")
    for r in range(4): a(f"v_cndmask_b32 v{48+r}, v{80+r}, v{84+r}, s[34:35]")
    for r in range(4): a(f"v_cndmask_b32 v{48+r}, v{48+r}, v{88+r}, s[36:37]")
    for r in range(4): a(f"v_cndmask_b32 v{48+r}, v{48+r}, v{92+r}, s[38:39]")
    a(f"s_mov_b32 s94, {SCALE:#x}")
    for (d, sr) in ((20, 96), (16, 48)):
        bf16r2(f"v{d}", f"v{d+1}", f"v{sr}", f"v{sr+1}", "v32")
        bf16r2(f"v{d+2}", f"v{d+3}", f"v{sr+2}", f"v{sr+3}", "v33")
    for r in range(8): a(f"v_mul_f32 v{16+r}, s94, v{16+r}")
    for d in (16, 20):
        bf16r2(f"v{d}", f"v{d+1}", f"v{d}", f"v{d+1}", "v32")
        bf16r2(f"v{d+2}", f"v{d+3}", f"v{d+2}", f"v{d+3}", "v33")
    a(f"v_mov_b32 v34, {NEG}")
    for r in range(4): a(f"v_cndmask_b32 v{16+r}, v34, v{16+r}, s[30:31]")
    for r in range(4): a(f"v_cndmask_b32 v{20+r}, v34, v{20+r}, s[32:33]")
    for r in range(4): a(f"v_max_f32 v{24+r}, v{16+r}, v{20+r}")
    allreduce(["v24", "v25", "v26", "v27"], "v_max_f32", [], ["x1", "x2", "x4", "x8"])
    for r in range(4): a(f"v_max_f32_dpp v{24+r}, v{24+r}, v{24+r} row_bcast:15 row_mask:0xa bank_mask:0xf")
    for r in range(4): a(f"v_max_f32_dpp v{24+r}, v{24+r}, v{24+r} row_bcast:31 row_mask:0xc bank_mask:0xf")
    a(f"s_lshl_b32 s90, {S_W}, 4")
    a("v_mov_b32 v10, s90")
    a("s_mov_b32 exec_lo, 0")
    a("s_mov_b32 exec_hi, 0x80000000")
    a(f"ds_write_b128 v10, v[24:27] offset:{L_MX}")
    a(f"ds_add_u32 v3, v4 offset:{F_MB1}")
    a("s_mov_b64 exec, -1")
    a(f"s_lshl_b32 s90, {T_ST}, 5")
    a(f"s_add_u32 s90, s90, {L_P}")
    a("v_lshl_add_u32 v10, v0, 1, s90")
    spin_lds(F_MB1, 4, "v3", "v5", sleep=False)
    for w in range(4):
        a(f"ds_read_b128 v[{32+4*w}:{35+4*w}], v3 offset:{L_MX+16*w}")
    a(f"s_mov_b32 s94, {LOG2E:#x}")
    a("s_waitcnt lgkmcnt(0)")
    for r in range(4):
        a(f"v_max3_f32 v{24+r}, v{32+r}, v{36+r}, v{40+r}")
    for r in range(4):
        a(f"v_max_f32 v{24+r}, v{24+r}, v{44+r}")
    for r in range(8): a(f"v_sub_f32 v{16+r}, v{16+r}, v{24+(r&3)}")
    for r in range(8): a(f"v_mul_f32 v{16+r}, s94, v{16+r}")
    for r in range(8): a(f"v_exp_f32 v{16+r}, v{16+r}")
    a("v_cvt_pk_bf16_f32 v28, v16, v17")
    a("v_cvt_pk_bf16_f32 v29, v18, v19")
    a("v_cvt_pk_bf16_f32 v30, v20, v21")
    a("v_cvt_pk_bf16_f32 v31, v22, v23")
    a("s_mov_b64 exec, s[30:31]")
    a("ds_write_b16 v10, v28")
    a(f"ds_write_b16_d16_hi v10, v28 offset:{PPITCH}")
    a(f"ds_write_b16 v10, v29 offset:{2*PPITCH}")
    a(f"ds_write_b16_d16_hi v10, v29 offset:{3*PPITCH}")
    a(f"s_cmp_lg_u32 {T_N}, 5")
    a("s_cbranch_scc1 L_p_w1")
    a("s_mov_b64 exec, s[32:33]")
    a("ds_write_b16 v10, v30 offset:128")
    a(f"ds_write_b16_d16_hi v10, v30 offset:{PPITCH+128}")
    a(f"ds_write_b16 v10, v31 offset:{2*PPITCH+128}")
    a(f"ds_write_b16_d16_hi v10, v31 offset:{3*PPITCH+128}")
    a.label("L_p_w1")
    a("s_mov_b64 exec, 1")
    a(f"ds_add_u32 v3, v4 offset:{F_MB2}")
    a("s_mov_b64 exec, -1")
    a.label("L_m_pv")
    stamp(5)
    a("v_lshrrev_b32 v10, 2, v2")
    a(f"v_mul_u32_u24 v10, {PPITCH}, v10")
    a("v_lshl_add_u32 v10, v1, 4, v10")
    a(f"v_add_u32 v60, {L_P}, v10")
    a(f"v_add_u32 v61, {L_V}, v13")
    a(f"v_add_u32 v62, {L_V}, v14")
    a("v_lshl_add_u32 v63, v1, 14, v9")
    a(f"v_mov_b32 v65, {S_TAG}")
    for r in range(8): a(f"v_mov_b32 v{48+r}, 0")
    spin_lds(F_MB2, 4, "v3", "v5", sleep=False)
    a(f"s_add_u32 s95, {T_K}, 8")
    a("s_mov_b32 s96, -1000")
    def pv_ensure(tagl):
        G = f"L_pv_go{tagl}"; S = f"L_pv_sp{tagl}"
        a("s_cmp_ge_i32 s96, s95")
        a(f"s_cbranch_scc1 {G}")
        a.label(S)
        a(f"ds_read_b32 v5, v3 offset:{F_LC}")
        a("s_waitcnt lgkmcnt(0)")
        a("v_readfirstlane_b32 s96, v5")
        a("s_cmp_ge_i32 s96, s95")
        a(f"s_cbranch_scc1 {G}")
        timeout()
        a(f"s_branch {S}")
        a.label(G)
    def pv_reads(b):
        a(f"ds_read_b128 v[{b}:{b+3}], v60")
        a(f"ds_read_b64_tr_b16 v[{b+4}:{b+5}], v61")
        a(f"ds_read_b64_tr_b16 v[{b+6}:{b+7}], v61 offset:1024")
        a(f"ds_read_b64_tr_b16 v[{b+8}:{b+9}], v62")
        a(f"ds_read_b64_tr_b16 v[{b+10}:{b+11}], v62 offset:1024")
        a("v_add_u32 v60, 64, v60")
        a("v_add_u32 v61, 0x2000, v61")
        a("v_add_u32 v62, 0x2000, v62")
        a("s_add_u32 s95, s95, 8")
    def pv_mfma(b):
        a(f"v_mfma_f32_16x16x32_bf16 v[48:51], v[{b}:{b+3}], v[{b+4}:{b+7}], v[48:51]")
        a(f"v_mfma_f32_16x16x32_bf16 v[52:55], v[{b}:{b+3}], v[{b+8}:{b+11}], v[52:55]")
    pv_ensure("0")
    pv_reads(16)
    a.label("L_pv_loop")
    pv_ensure("1")
    pv_reads(28)
    a("s_waitcnt lgkmcnt(5)")
    pv_mfma(16)
    pv_ensure("2")
    pv_reads(16)
    a("s_waitcnt lgkmcnt(5)")
    pv_mfma(28)
    a(f"s_cmp_le_i32 s95, {T_V}")
    a("s_cbranch_scc1 L_pv_loop")
    a("s_waitcnt lgkmcnt(0)")
    pv_mfma(16)
    stamp(6)
    a("s_nop 4")
    a("v_cvt_pk_bf16_f32 v64, v48, v52")
    store_loc(f"buffer_store_dwordx2 v[64:65], v63, {WSRD}, {O_O} offen")
    arrive(F_PO, "v3", "v4")
    stamp(7)
    mark(12, "v3")
    spin_lds(F_WOL, 1, "v3", "v5", sleep=False)
    a(f"s_mul_i32 s90, {S_B}, {L_WO_B - L_WO}")
    a(f"s_add_u32 s90, s90, {L_WO}")
    a("v_add_u32 v10, s90, v7")
    loadB("v10", 4, 4096, 512)
    a("s_waitcnt lgkmcnt(0)")
    a("s_barrier")
    gemv(L_ACT4, 4)
    publish_pair(O_A4)
    arrive(F_PA, "v3", "v4")
    stamp(8)
    mark(13, "v3")
    spin_lds(F_LATE, 1, "v3", "v5")
    a(f"s_lshr_b32 s90, {S_W}, 1")
    a("s_lshl_b32 s90, s90, 13")
    a(f"s_mul_i32 s91, {S_B}, {(L_G_B - L_G) if cfg.bearly else 0}")
    a("s_add_u32 s90, s90, s91")
    a(f"s_add_u32 s90, s90, {L_G}")
    a("v_add_u32 v11, s90, v12")
    loadB("v11", 4, 2048, 256)
    a(f"s_mul_i32 s90, {S_B}, {(L_DN_B - L_DN) if (cfg.bearly or cfg.dnwo) else 0}")
    a(f"s_add_u32 s90, s90, {L_DN}")
    a("v_add_u32 v15, s90, v7")
    a("s_waitcnt lgkmcnt(0)")
    a("s_barrier")
    a(f"s_cmp_eq_u32 {S_CB}, 7")
    a("s_cbranch_scc1 L_m_s7")
    gemv(L_ACT6, 4)
    publish(13, O_GU, local=True)
    a.label("L_m_s7")
    arrive(F_PG, "v3", "v4")
    stamp(9)
    spin_lds(F_DN, 1, "v3", "v5", sleep=False)
    loadB("v15", 2, 4096, 512, base=64)
    a("s_waitcnt lgkmcnt(0)")
    a("s_barrier")
    gemv(L_ACT7, 2, bbase=64)
    publish_pair(O_DN)
    arrive(F_PD, "v3", "v4")
    stamp(10)
    mark(15, "v3")
    dump_stamps(11)
    a("s_endpgm")

    def r1_block(uid, vz):
        a(f"s_sub_u32 s90, {S_W}, 4")
        a("s_lshr_b32 s91, s90, 1")
        a("s_and_b32 s94, s90, 1")
        a("s_lshl_b32 s99, s94, 8")
        a(f"s_lshl_b32 s100, {S_X}, 16")
        a("s_add_u32 s99, s99, s100")
        a(f"s_lshl_b32 s100, {S_KQ}, 14")
        a("s_add_u32 s99, s99, s100")
        a("s_lshl_b32 s100, s91, 13")
        a("s_add_u32 s99, s99, s100")
        a(f"s_add_u32 s99, s99, {W_O}")
        a(f"s_lshl_b32 s100, {S_X}, 11")
        a("s_lshl_b32 s90, s91, 10")
        a("s_add_u32 s100, s100, s90")
        a(f"s_lshl_b32 s90, {S_KQ}, 8")
        a("s_add_u32 s100, s100, s90")
        a(f"s_add_u32 s100, s100, {W_ST}")
        a("v_lshrrev_b32 v48, 5, v0")
        a("v_and_b32 v49, 31, v0")
        a("v_lshlrev_b32 v50, 12, v48")
        a("v_lshl_add_u32 v50, v49, 3, v50")
        a("v_and_b32 v51, 7, v0")
        a("v_lshl_add_u32 v51, v48, 3, v51")
        a("v_lshlrev_b32 v51, 4, v51")
        a(f"s_mul_i32 s91, s91, {APITCH}")
        a("s_lshl_b32 s94, s94, 7")
        a("s_add_u32 s91, s91, s94")
        a("v_bfe_u32 v52, v0, 4, 1")
        a("v_lshlrev_b32 v52, 6, v52")
        a("v_and_b32 v53, 15, v0")
        a("v_lshl_add_u32 v52, v53, 1, v52")
        a("v_lshl_add_u32 v52, v48, 5, v52")
        a("v_add_u32 v52, s91, v52")
        loads = [f"buffer_load_dwordx4 v[32:35], v51, {WSRD}, s100 offen sc1"]; tags = ["v33", "v35"]
        for i in range(8):
            loads.append(f"buffer_load_dwordx2 v[{16+2*i}:{17+2*i}], v50, {WSRD}, s99 offen offset:{512*i} sc1")
            tags.append(f"v{17+2*i}")
        if cfg.warm:
            for l in loads: a(l)
        after_own(F_PO, 4, vz, "v54", cfg.d_r1)
        stamp(7 if uid != "q" else 4)
        poll(loads, tags, "v54", sleep=cfg.rsl_l)
        if uid == "q": stamp(10)
        a("v_mov_b32 v55, v32")
        allreduce(["v55"], "v_max_f32", ["v56"], ["x1", "x2", "x4", "x32"])
        a(f"s_mov_b32 s94, {LOG2E:#x}")
        a("v_sub_f32 v56, v32, v55")
        for i in range(4): a(f"v_lshlrev_b32 v{36+2*i}, 16, v{16+2*i}"); a(f"v_and_b32 v{37+2*i}, 0xffff0000, v{16+2*i}")
        a("v_mul_f32 v56, s94, v56")
        a("v_exp_f32 v56, v56")
        for i in range(4, 8): a(f"v_lshlrev_b32 v{36+2*i}, 16, v{16+2*i}"); a(f"v_and_b32 v{37+2*i}, 0xffff0000, v{16+2*i}")
        a("v_mul_f32 v57, v56, v34")
        allreduce(["v57"], "v_add_f32", ["v58"], ["x1", "x2", "x4", "x32"])
        a("v_rcp_f32 v57, v57")
        a("v_mov_b32 v58, 0")
        a("v_mov_b32 v59, 0")
        a("v_mul_f32 v56, v56, v57")
        for i in range(8):
            a(f"v_fmac_f32_dpp v58, v56, v{36+2*i} row_newbcast:{i} row_mask:0xf bank_mask:0xf")
            a(f"v_fmac_f32_dpp v59, v56, v{37+2*i} row_newbcast:{i} row_mask:0xf bank_mask:0xf")
        a("v_permlane32_swap_b32 v58, v59")
        a("v_add_f32 v58, v58, v59")
        a("v_cvt_pk_bf16_f32 v58, v58, v58")
        a(f"ds_write_b16 v52, v58 offset:{L_ACT4}")
        a("s_waitcnt lgkmcnt(0)")

    a.label("L_gwave")
    a(f"s_cmp_eq_u32 {S_W}, 4")
    a("s_cbranch_scc1 L_slice")
    a(f"s_cmp_eq_u32 {S_W}, 7")
    a("s_cbranch_scc1 L_aux")

    SB = "s97"
    a("s_mov_b64 s[36:37], s[42:43]")
    a("v_lshlrev_b32 v2, 2, v0")
    a("v_mov_b32 v10, 1")
    a(f"s_mul_i32 s98, {SB}, {APITCH}")
    a("v_add_u32 v11, s98, v2")
    a("v_mov_b32 v19, 0")
    a("s_waitcnt vmcnt(0)")
    stamp(1)
    a("v_lshlrev_b32 v12, 16, v9")
    a("v_and_b32 v13, 0xffff0000, v9")
    a(f"s_mov_b32 s94, {LOG2E:#x}")
    for r in (12, 13): a(f"v_mul_f32 v{r+2}, s94, v{r}")
    for r in (12, 13): a(f"v_exp_f32 v{r+2}, -v{r+2}")
    for r in (12, 13): a(f"v_add_f32 v{r+2}, 1.0, v{r+2}")
    for r in (12, 13): a(f"v_rcp_f32 v{r+2}, v{r+2}")
    for r in (12, 13): a(f"v_mul_f32 v{r}, v{r}, v{r+2}")
    a("v_cvt_pk_bf16_f32 v12, v12, v13")
    a(f"ds_write_b32 v11, v12 offset:{L_ACT1}")
    arrive(F_1, "v19", "v10")
    get_tag()
    a("v_mov_b32 v3, 0")

    def ln_finish(mean, var, x0, x1, tmp):
        bf16r2(mean, var, mean, var, tmp)
        a(f"s_mov_b32 s94, {EPS:#x}")
        a(f"v_add_f32 {var}, s94, {var}")
        bf16r1(var, var)
        a(f"v_sqrt_f32 {var}, {var}")
        a(f"v_sub_f32 {x0}, {x0}, {mean}")
        a(f"v_sub_f32 {x1}, {x1}, {mean}")
        bf16r1(var, var)
        a(f"v_rcp_f32 {var}, {var}")
        bf16r2(x0, x1, x0, x1, tmp)
        a(f"v_mul_f32 {x0}, {x0}, {var}")
        a(f"v_mul_f32 {x1}, {x1}, {var}")
        bf16r2(x0, x1, x0, x1, tmp)

    def quarter_gather(chunkA, chunkB, qreg, pre=None, sample=False, hook=None):
        for (ch, sreg) in ((chunkA, "s90"), (chunkB, "s99")):
            sexpr(sreg, [(SB, "shl", 14), (qreg, "shl", 12)], W_MOD + ch*32768)
        loads = []; tags = []
        for i in range(4):
            loads.append(f"buffer_load_dwordx4 v[{16+4*i}:{19+4*i}], v1, {WSRD}, s90 offen offset:{1024*i} sc1")
            loads.append(f"buffer_load_dwordx4 v[{32+4*i}:{35+4*i}], v1, {WSRD}, s99 offen offset:{1024*i} sc1")
            tags += [f"v{17+4*i}", f"v{19+4*i}", f"v{33+4*i}", f"v{35+4*i}"]
        if pre: pre()
        poll(loads, tags, "v50", sample=sample, hook=hook)
        for (base, d0, d1) in ((16, "v14", "v15"), (32, "v48", "v49")):
            a(f"v_add_f32 {d0}, v{base}, v{base+4}")
            a(f"v_add_f32 {d1}, v{base+2}, v{base+6}")
            a(f"v_add_f32 v50, v{base+8}, v{base+12}")
            a(f"v_add_f32 v51, v{base+10}, v{base+14}")
            a(f"v_add_f32 {d0}, {d0}, v50")
            a(f"v_add_f32 {d1}, {d1}, v51")
            bf16r2(d0, d1, d0, d1, "v50")

    def modulate(x0, x1, sc0, sc1, sh0, sh1, dst, tmp):
        a(f"v_mul_f32 {x0}, {x0}, {sc0}")
        a(f"v_mul_f32 {x1}, {x1}, {sc1}")
        bf16r2(x0, x1, x0, x1, tmp)
        a(f"v_add_f32 {x0}, {x0}, {sh0}")
        a(f"v_add_f32 {x1}, {x1}, {sh1}")
        a(f"v_cvt_pk_bf16_f32 {dst}, {x0}, {x1}")

    a(f"s_cmp_eq_u32 {S_B}, 0")
    a("s_cbranch_scc1 L_q_qg")
    for i in range(4):
        a(f"v_lshlrev_b32 v{16+2*i}, 16, v{4+i}")
        a(f"v_and_b32 v{17+2*i}, 0xffff0000, v{4+i}")
    a("v_add_f32 v24, v16, v17")
    a("v_add_f32 v25, v18, v19")
    a("v_add_f32 v26, v20, v21")
    a("v_add_f32 v27, v22, v23")
    a("v_add_f32 v24, v24, v25")
    a("v_add_f32 v26, v26, v27")
    a("v_add_f32 v24, v24, v26")
    allreduce(["v24"], "v_add_f32", ["v28"], FULL)
    a(f"s_mov_b32 s94, {INV512:#x}")
    a("v_mul_f32 v24, s94, v24")
    for i in range(8): a(f"v_sub_f32 v{16+i}, v{16+i}, v24")
    a("v_mul_f32 v25, v16, v16")
    for i in range(1, 8): a(f"v_fmac_f32 v25, v{16+i}, v{16+i}")
    allreduce(["v25"], "v_add_f32", ["v28"], FULL)
    a("v_mul_f32 v25, s94, v25")
    a("v_lshlrev_b32 v12, 16, v8")
    a("v_and_b32 v13, 0xffff0000, v8")
    ln_finish("v24", "v25", "v12", "v13", "v28")
    if cfg.warm:
        a(f"s_lshr_b32 s90, {S_SPL}, 1")
        a(f"s_and_b32 s91, {S_SPL}, 1")
        sexpr("s99", [(S_X, "shl", 15), (SB, "shl", 14), ("s90", "shl", 12), ("s91", "shl", 9)], W_Q)
        a("s_mov_b32 exec_hi, 0")
        for i in range(4):
            a(f"buffer_load_dwordx4 v[{16+4*i}:{19+4*i}], v1, {WSRD}, s99 offen offset:{1024*i} sc1")
        a("s_mov_b32 exec_hi, -1")
    a(f"s_lshr_b32 s100, {S_SPL}, 1")
    quarter_gather(0, 1, "s100", pre=lambda: a(f"s_sleep {cfg.d_h}"), hook=(lambda: arrive(F_HI, "v3", "v10")) if cfg.wqsplit < 16 else None)
    a("v_add_f32 v48, 1.0, v48")
    a("v_add_f32 v49, 1.0, v49")
    bf16r2("v48", "v49", "v48", "v49", "v50")
    modulate("v12", "v13", "v48", "v49", "v14", "v15", "v16", "v50")
    a(f"ds_write_b32 v11, v16 offset:{L_ACT2}")
    arrive(F_2, "v3", "v10")
    stamp(2)
    a(f"s_lshr_b32 s90, {S_SPL}, 1")
    a(f"s_and_b32 s91, {S_SPL}, 1")
    sexpr("s99", [(S_X, "shl", 15), (SB, "shl", 14), ("s90", "shl", 12), ("s91", "shl", 9)], W_Q)
    sexpr("s100", [(S_X, "shl", 12), (SB, "shl", 11), (S_SPL, "shl", 8)], W_QF)
    a("v_lshlrev_b32 v54, 3, v0")
    a("s_mov_b32 exec_hi, 0")
    loads = []; tags = []
    for i in range(4):
        loads.append(f"buffer_load_dwordx4 v[{16+4*i}:{19+4*i}], v1, {WSRD}, s99 offen offset:{1024*i} sc1")
        tags += [f"v{17+4*i}", f"v{19+4*i}"]
    get_mode("v3", "v50")
    after_own(F_PQ, 4, "v3", "v50", cfg.d_q)
    poll(loads, tags, "v50", sleep=0)
    a("v_add_f32 v48, v16, v20")
    a("v_add_f32 v49, v18, v22")
    a("v_add_f32 v50, v24, v28")
    a("v_add_f32 v51, v26, v30")
    a("v_add_f32 v48, v48, v50")
    a("v_add_f32 v49, v49, v51")
    a(f"v_mov_b32 v53, {S_TAG}")
    a("v_cvt_pk_bf16_f32 v52, v48, v49")
    store_loc(f"buffer_store_dwordx2 v[52:53], v54, {WSRD}, s100 offen")
    a("s_mov_b64 exec, -1")
    arrive(F_QF, "v3", "v10")
    a.label("L_q_qg")
    sexpr("s90", [(S_X, "shl", 12), (S_BT, "shl", 11), (SB, "shl", 10)], W_QF)
    a("v_lshrrev_b32 v54, 5, v0")
    a(f"v_mul_u32_u24 v54, {APITCH}, v54")
    a("v_and_b32 v55, 31, v0")
    a("v_lshl_add_u32 v54, v55, 3, v54")
    a(f"s_mul_i32 s100, {SB}, {2*APITCH}")
    a("v_add_u32 v54, s100, v54")
    ldA = f"buffer_load_dwordx4 v[16:19], v1, {WSRD}, s90 offen sc1"
    ldB = f"buffer_load_dwordx4 v[20:23], v1, {WSRD}, s90 offen sc1"
    a(f"s_cmp_eq_u32 {S_B}, 0")
    a("s_cbranch_scc1 L_q_qA")
    after_own(F_QF, 2, "v3", "v50", cfg.d_q)
    a("s_branch L_q_qP")
    a.label("L_q_qA")
    if cfg.quiet: spin_lds(F_LC, cfg.quiet, "v3", "v50")
    a.label("L_q_qP")
    a(ldA)
    a(f"s_sleep {cfg.qsl2}")
    a.label("L_q_loop")
    a(ldB)
    a("s_waitcnt vmcnt(1)")
    a(f"v_xor_b32 v50, {S_TAG}, v17")
    a(f"v_bitop3_b32 v50, v50, v19, {S_TAG} bitop3:0xf6")
    a("v_cmp_ne_u32 vcc, 0, v50")
    a("s_cbranch_vccz L_q_gotA")
    timeout()
    a(ldA)
    a("s_waitcnt vmcnt(1)")
    a(f"v_xor_b32 v50, {S_TAG}, v21")
    a(f"v_bitop3_b32 v50, v50, v23, {S_TAG} bitop3:0xf6")
    a("v_cmp_ne_u32 vcc, 0, v50")
    a("s_cbranch_vccnz L_q_loop")
    a("v_mov_b32 v24, v20")
    a("v_mov_b32 v25, v22")
    a("s_branch L_q_got")
    a.label("L_q_gotA")
    a("v_mov_b32 v24, v16")
    a("v_mov_b32 v25, v18")
    a.label("L_q_got")
    a(f"ds_write_b64 v54, v[24:25] offset:{L_Q}")
    arrive(F_3, "v3", "v10")
    stamp(3)
    a("s_waitcnt vmcnt(0)")
    if cfg.g_late: gate_lc(cfg.g_late, cfg.g_late * NK_B // NK_A, "v3", "v50")
    sexpr("s90", [(SB, "shl", 11), (S_KQ, "shl", 9)], W_MODF + 3*4096)
    a("s_add_u32 s99, s90, 4096")
    a("v_lshlrev_b32 v54, 3, v0")
    if cfg.warm:
        a(f"s_mul_i32 s94, {S_KQ}, 448")
        sexpr("s24", [(S_X, "shl", 15), (SB, "shl", 13), ("s94", "shl", 0)], W_GU, tmp="s25")
        a("s_add_u32 s25, s24, 4096")
        a("s_add_u32 s26, s24, 16384")
        a("s_add_u32 s27, s24, 20480")
        for wh in range(2):
            for k6 in range(4):
                sr = [["s24", "s25"], ["s26", "s27"]][wh][k6 >> 1]
                rb = 20 + 8*wh + 2*k6
                a(f"buffer_load_dwordx2 v[{rb}:{rb+1}], v54, {WSRD}, {sr} offen offset:{2048*(k6&1)} sc1")
        sexpr("s24", [(S_X, "shl", 10), (SB, "shl", 9)], W_X1S)
        sexpr("s25", [(S_X, "shl", 12), (SB, "shl", 11), (S_KQ, "shl", 9)], W_X1P)
        a(f"buffer_load_dwordx2 v[36:37], v54, {WSRD}, s24 offen sc1")
        a(f"buffer_load_dwordx2 v[38:39], v54, {WSRD}, s25 offen sc1")
    poll([f"buffer_load_dwordx2 v[16:17], v54, {WSRD}, s90 offen sc1",
          f"buffer_load_dwordx2 v[18:19], v54, {WSRD}, s99 offen sc1"], ["v17", "v19"], "v50", sleep=8)
    a("v_lshlrev_b32 v66, 16, v16")
    a("v_and_b32 v67, 0xffff0000, v16")
    a("v_lshlrev_b32 v48, 16, v18")
    a("v_and_b32 v49, 0xffff0000, v18")
    a("v_add_f32 v48, 1.0, v48")
    a("v_add_f32 v49, 1.0, v49")
    bf16r2("v64", "v65", "v48", "v49", "v50")
    r1_block("q", "v3")
    stamp(5)
    a("s_barrier")
    sexpr("s99", [(S_X, "shl", 10), (SB, "shl", 9)], W_X1S)
    sexpr("s90", [(S_X, "shl", 12), (SB, "shl", 11), (S_KQ, "shl", 9)], W_X1P)
    a("v_lshlrev_b32 v16, 3, v0")
    a("v_and_b32 v17, 31, v0")
    a("v_lshlrev_b32 v17, 4, v17")
    after_own(F_PX, 1, "v3", "v50", cfg.d_x1)
    stamp(8)
    poll([f"buffer_load_dwordx4 v[24:27], v17, {WSRD}, s99 offen sc1",
          f"buffer_load_dwordx2 v[20:21], v16, {WSRD}, s90 offen sc1"], ["v21", "v25", "v27"], "v50", sleep=cfg.rsl_l)
    stamp(9)
    allreduce(["v24", "v26"], "v_add_f32", ["v28", "v29"], ["x1", "x2", "x4", "x8", "x16"])
    a(f"s_mov_b32 s94, {INV512:#x}")
    a("v_mul_f32 v24, s94, v24")
    a("v_mul_f32 v26, s94, v26")
    a("v_lshlrev_b32 v12, 16, v20")
    a("v_fma_f32 v26, -v24, v24, v26")
    a("v_and_b32 v13, 0xffff0000, v20")
    a("v_max_f32 v26, 0, v26")
    ln_finish("v24", "v26", "v12", "v13", "v30")
    modulate("v12", "v13", "v64", "v65", "v66", "v67", "v16", "v30")
    a(f"ds_write_b32 v11, v16 offset:{L_ACT6}")
    a(f"s_mul_i32 s94, {S_KQ}, 448")
    sexpr("s90", [(S_X, "shl", 15), (SB, "shl", 13), ("s94", "shl", 0)], W_GU, tmp="s99")
    a("s_add_u32 s94, s90, 4096")
    a("s_add_u32 s99, s90, 16384")
    a("s_add_u32 s100, s90, 20480")
    a("s_waitcnt lgkmcnt(0)")
    stamp(6)
    a("s_barrier")
    a("v_lshlrev_b32 v16, 3, v0")
    a("v_mov_b32 v40, 0")
    a("v_lshlrev_b32 v17, 1, v0")
    a("v_add_u32 v17, s98, v17")
    a("s_mov_b32 exec_lo, -1")
    a("s_mov_b32 exec_hi, 0x00ffffff")
    loads = []; tags = []
    for wh in range(2):
        for k6 in range(4):
            sr = [["s90", "s94"], ["s99", "s100"]][wh][k6 >> 1]
            rb = 20 + 8*wh + 2*k6
            loads.append(f"buffer_load_dwordx2 v[{rb}:{rb+1}], v16, {WSRD}, {sr} offen offset:{2048*(k6&1)} sc1")
            tags.append(f"v{rb+1}")
    after_own(F_PG, 4, "v3", "v50", cfg.d_gu)
    poll(loads, tags, "v50", sleep=cfg.rsl_l)
    a("v_add_f32 v36, v20, v22")
    a("v_add_f32 v37, v24, v26")
    a("v_add_f32 v38, v28, v30")
    a("v_add_f32 v39, v32, v34")
    a("v_add_f32 v36, v36, v37")
    a("v_add_f32 v38, v38, v39")
    bf16r2("v36", "v38", "v36", "v38", "v50")
    a("v_mul_f32 v36, v36, v38")
    a("v_cvt_pk_bf16_f32 v40, v36, v36")
    a("s_mov_b64 exec, -1")
    a(f"ds_write_b16 v17, v40 offset:{L_ACT7}")
    a("s_waitcnt lgkmcnt(0)")
    stamp(7)
    a("s_barrier")
    dump_stamps(11)
    a("s_endpgm")

    a.label("L_slice")
    srd(48, 38, 2048)
    a("v_lshlrev_b32 v7, 4, v0")
    a("v_and_b32 v1, 3, v0")
    a("v_bfe_u32 v2, v0, 4, 1")
    a("v_bfe_u32 v4, v0, 3, 1")
    a("v_lshrrev_b32 v5, 5, v0")
    a("v_lshlrev_b32 v6, 2, v1")
    a("v_lshl_add_u32 v6, v2, 1, v6")
    a("v_add_u32 v6, v6, v4")
    a("v_lshlrev_b32 v8, 10, v5")
    a("v_lshl_add_u32 v8, v6, 1, v8")
    a(f"s_lshl_b32 s90, {S_LOC}, 5")
    a("buffer_load_ushort v9, v8, s[44:47], s90 offen")
    a("v_lshlrev_b32 v10, 4, v5")
    a("v_add_u32 v10, v10, v6")
    a("v_lshlrev_b32 v10, 2, v10")
    a("v_lshlrev_b32 v11, 1, v1")
    a("v_add_u32 v11, v11, v2")
    a("v_lshlrev_b32 v12, 11, v5")
    a("v_lshl_add_u32 v98, v11, 3, v12")
    a("v_lshlrev_b32 v99, 9, v5")
    a("v_lshlrev_b32 v12, 10, v5")
    a("v_lshl_add_u32 v97, v11, 2, v12")
    sexpr("s22", [(S_X, "shl", 12), (S_LOC, "shl", 6)], W_X1P)
    sexpr("s23", [(S_X, "shl", 10), (S_LOC, "shl", 4)], W_X1S)
    a(f"s_lshl_b32 s24, {S_LOC}, 5")
    a(f"s_lshl_b32 s17, {S_LOC}, 12")
    a("v_cmp_eq_u32 s[26:27], 1, v4")
    a("v_mov_b32 v100, 0x3f80")
    a("v_mov_b32 v101, 0x3f800000")
    a("s_waitcnt vmcnt(0)")
    get_tag()
    a("v_mov_b32 v3, 0")
    a("v_lshlrev_b32 v102, 16, v9")
    get_mode("v3", "v20")
    stamp(1)

    def part_loads(base, rb0=16, setup=True):
        if setup: a(f"s_add_u32 s20, s17, {base}")
        loads = []; tags = []
        for i in range(4):
            rb = rb0 + 4*i
            loads.append(f"buffer_load_dwordx4 v[{rb}:{rb+3}], v7, {WSRD}, s20 offen offset:{1024*i} sc1")
            tags += [f"v{rb+1}", f"v{rb+3}"]
        return loads, tags
    def part_loads_atomic(base):
        a(f"s_add_u32 s20, s17, {base}")
        loads = []; tags = []
        for r in range(16, 32): loads.append(f"v_mov_b32 v{r}, 0")
        for i in range(4):
            rb = 16 + 4*i
            for hh in range(2):
                loads.append(f"buffer_atomic_add_x2 v[{rb+2*hh}:{rb+2*hh+1}], v7, {WSRD}, s20 offen offset:{1024*i + 8*hh} sc0 sc1")
            tags += [f"v{rb+1}", f"v{rb+3}"]
        return loads, tags
    def part_dot(rb0):
        for b in range(2):
            for (k, (off, sel)) in enumerate(((0, "v100"), (0, "v101"), (2, "v100"), (2, "v101"))):
                a(f"v_dot2_f32_bf16 v{32+4*b+k}, v{rb0+8*b+off}, {sel}, 0")
        for b in range(2):
            for (k, (off, sel)) in enumerate(((0, "v100"), (0, "v101"), (2, "v100"), (2, "v101"))):
                a(f"v_dot2_f32_bf16 v{32+4*b+k}, v{rb0+4+8*b+off}, {sel}, v{32+4*b+k}")
    def part_sum(dot=True):
        if dot: part_dot(16)
        for c in range(4): a(f"v_permlane32_swap_b32 v{32+c}, v{36+c}")
        for c in range(4): a(f"v_add_f32 v{32+c}, v{32+c}, v{36+c}")
        a("v_permlane16_swap_b32 v32, v34")
        a("v_permlane16_swap_b32 v33, v35")
        a("v_add_f32 v32, v32, v34")
        a("v_add_f32 v33, v33, v35")
        a("v_cndmask_b32 v36, v32, v33, s[26:27]")
        a("v_cndmask_b32 v37, v33, v32, s[26:27]")
        a("v_add_f32_dpp v36, v37, v36 row_ror:8 row_mask:0xf bank_mask:0xf")
        a("v_add_f32_dpp v40, v36, v36 row_shl:4 row_mask:0xf bank_mask:0x5")
        a("v_add_f32_dpp v40, v36, v36 row_shr:4 row_mask:0xf bank_mask:0xa")
    def resid(gate):
        bf16r1("v40", "v40")
        a(f"v_mul_f32 v40, v40, {gate}")
        bf16r1("v40", "v40")
        a("v_add_f32 v102, v102, v40")
        bf16r1("v102", "v102")
    def make_pair(dst):
        a("v_mov_b32_dpp v41, v102 row_ror:8 row_mask:0xf bank_mask:0xf")
        a(f"v_cvt_pk_bf16_f32 {dst}, v102, v41")
    PUBM = "0x000f000f"

    l1, t1 = part_loads(W_A4)
    spin_lds(F_MB2, 4, "v3", "v15")
    a("v_lshrrev_b32 v16, 4, v0")
    a("v_and_b32 v17, 15, v0")
    a(f"v_mul_u32_u24 v18, {PPITCH}, v16")
    a("v_lshl_add_u32 v18, v17, 2, v18")
    a("v_lshlrev_b32 v19, 2, v16")
    a("v_mov_b32 v20, 0")
    a("v_mov_b32 v21, 0x3f803f80")
    for w in range(4): a(f"ds_read_b32 v{24+w}, v19 offset:{L_MX+16*w}")
    for i in range(NK_B // 32): a(f"ds_read_b32 v{32+i}, v18 offset:{L_P+64*i}")
    a(f"s_cmp_lg_u32 {S_B}, 0")
    a("s_cbranch_scc1 L_sl_stB")
    for i in range(NK_B // 32, NK_A // 32): a(f"ds_read_b32 v{32+i}, v18 offset:{L_P+64*i}")
    a("s_waitcnt lgkmcnt(0)")
    for i in range(NK_B // 32, NK_A // 32): a(f"v_dot2_f32_bf16 v20, v{32+i}, v21, v20")
    a.label("L_sl_stB")
    a("s_waitcnt lgkmcnt(0)")
    for i in range(NK_B // 32): a(f"v_dot2_f32_bf16 v20, v{32+i}, v21, v20")
    allreduce(["v20"], "v_add_f32", [], ["x1", "x2", "x4", "x8"])
    a("v_max3_f32 v24, v24, v25, v26")
    a("v_max_f32 v24, v24, v27")
    a(f"v_mov_b32 v25, {S_TAG}")
    a("v_mov_b32 v26, v20")
    a(f"v_mov_b32 v27, {S_TAG}")
    a("v_lshlrev_b32 v22, 8, v16")
    sexpr("s25", [(S_X, "shl", 11), (S_BT, "shl", 10), (S_SP, "shl", 4)], W_ST)
    a("s_mov_b32 exec_lo, 0x00010001")
    a("s_mov_b32 exec_hi, 0x00010001")
    store_loc(f"buffer_store_dwordx4 v[24:27], v22, {WSRD}, s25 offen")
    a("s_mov_b64 exec, -1")
    spin_lds(F_GA, 1, "v3", "v15")
    a(f"ds_read_b32 v103, v10 offset:{L_GA}")
    a(f"ds_read_b32 v104, v10 offset:{L_GB}")
    a("s_waitcnt lgkmcnt(0)")
    r1_block("s", "v3")
    a(f"v_mov_b32 v43, {S_TAG}")
    a(f"v_mov_b32 v45, {S_TAG}")
    a(f"v_mov_b32 v47, {S_TAG}")
    a("s_barrier")
    after_own(F_PA, 4, "v3", "v15", cfg.d_s5)
    stamp(2)
    if cfg.dbl:
        poll2(lambda rb: part_loads(0, rb, setup=False), "v15", "s5", part_dot)
        stamp(3)
        part_sum(dot=False)
    else:
        poll(l1, t1, "v15")
        stamp(3)
        part_sum()
    resid("v103")
    make_pair("v42")
    a("v_mul_f32 v46, v102, v102")
    a("v_mov_b32 v44, v102")
    a(f"s_mov_b32 exec_lo, {PUBM}")
    a(f"s_mov_b32 exec_hi, {PUBM}")
    store_loc(f"buffer_store_dwordx2 v[42:43], v98, {WSRD}, s22 offen")
    a("s_mov_b64 exec, -1")
    allreduce(["v44", "v46"], "v_add_f32", ["v48", "v49"], ["x1", "x2", "r8", "x16"])
    a("s_mov_b32 exec_lo, 1")
    a("s_mov_b32 exec_hi, 1")
    store_loc(f"buffer_store_dwordx4 v[44:47], v99, {WSRD}, s23 offen")
    a("s_mov_b64 exec, -1")
    a("v_mov_b32 v15, 1")
    arrive(F_PX, "v3", "v15")
    stamp(4)
    mark(14, "v3")
    a(f"s_and_b32 s90, {S_LOC}, 7")
    a(f"s_cmp_lg_u32 s90, {S_X}")
    a("s_cbranch_scc1 L_slice_nf")
    a("s_barrier")
    a("s_barrier")
    l1, t1 = part_loads_atomic(W_DN) if cfg.atom8 else part_loads(W_DN)
    after_own(F_PD, 4, "v3", "v15", cfg.d_s8)
    if cfg.dbl8 and not cfg.atom8:
        a("s_waitcnt vmcnt(0)")
        poll2(lambda rb: part_loads(0, rb, setup=False), "v15", "s8", part_dot)
        part_sum(dot=False)
    else:
        poll(l1, t1, "v15")
        part_sum()
    resid("v104")
    make_pair("v42")
    a(f"s_mov_b32 exec_lo, {PUBM}")
    a(f"s_mov_b32 exec_hi, {PUBM}")
    a("buffer_store_dword v42, v97, s[48:51], s24 offen")
    a(f"s_cmp_lg_u32 {S_WG}, 0")
    a("s_cbranch_scc1 L_slice_end")
    a("s_mov_b64 exec, 1")
    a(f"v_mov_b32 v24, {S_EP}")
    a("v_mov_b32 v21, 0")
    a(f"buffer_store_dword v24, v21, {WSRD}, 0 offen sc1")
    a.label("L_slice_end")
    if cfg.probe == 1:
        a("s_sleep 94")
        a("s_sleep 94")
    if cfg.probe >= 10:
        a(f"ds_read_b32 v20, v3 offset:{L_PRB}")
        a("s_waitcnt lgkmcnt(0)")
        a("v_readfirstlane_b32 s22, v20")
        a("s_mov_b32 s24, 100000")
        a.label("L_probe")
        a("s_memrealtime s[20:21]")
        a("s_waitcnt lgkmcnt(0)")
        a("s_sub_u32 s24, s24, 1")
        a("s_cbranch_scc1 L_probe_e")
        a("s_sub_u32 s23, s20, s22")
        a("s_cmp_lt_u32 s23, 2000")
        a("s_cbranch_scc1 L_probe")
        a.label("L_probe_e")
    if cfg.probe == 3:
        a("s_add_u32 s22, s62, 2500")
        a.label("L_probe")
        a("s_memrealtime s[20:21]")
        a("s_waitcnt lgkmcnt(0)")
        a("s_sub_u32 s23, s20, s22")
        a("s_cmp_lt_i32 s23, 0")
        a("s_cbranch_scc1 L_probe")
    if cfg.probe == 2:
        a("s_memrealtime s[20:21]")
        a("s_waitcnt lgkmcnt(0)")
        a("s_add_u32 s22, s20, 500")
        a.label("L_probe")
        a("s_memrealtime s[20:21]")
        a("s_waitcnt lgkmcnt(0)")
        a("s_sub_u32 s23, s20, s22")
        a("s_cmp_lt_i32 s23, 0")
        a("s_cbranch_scc1 L_probe")
    a("s_mov_b64 exec, -1")
    stamp(5)
    dump_stamps(6, final=True)
    a("s_endpgm")
    a.label("L_slice_nf")
    a("s_barrier")
    a("s_barrier")
    dump_stamps(5, final=True)
    a("s_endpgm")

    a.label("L_aux")
    srd(44, 28, 512*1792*2)
    srd(48, 30, 512*1792*2)
    srd(52, 32, 1792*512*2)
    a("v_mov_b32 v10, 1")
    sexpr("s18", [(S_X, "mul", 224*1024), (S_KQ, "mul", 56*1024), (S_CB, "shl", 7)])
    sexpr("s19", [(S_KQ, "mul", 128*3584), (S_X, "mul", 448), (S_CB, "shl", 6)])
    a("s_waitcnt vmcnt(0)")
    get_tag()
    strip_voff(3584, "v64")
    unit_voffs(pitch_shift=10, d0="v66", d1="v67")
    a("v_mov_b32 v3, 0")
    stamp(1)

    if cfg.g_piece:
        Lq = a.newlabel("Lgx")
        a(f"s_cmp_lg_u32 {S_B}, 0")
        a(f"s_cbranch_scc1 {Lq}")
        spin_lds(F_LC, cfg.g_piece, "v3", "v50")
        a.label(Lq)
    if cfg.local == 2:
        L = a.newlabel("Lxc"); E = a.newlabel("Lxce")
        srd(60, 40, 256)
        a(f"s_lshl_b32 s91, {S_X}, 5")
        a("s_add_u32 s91, s91, 8")
        a("v_mov_b32 v18, s91")
        a("s_getreg_b32 s90, hwreg(HW_REG_XCC_ID)")
        a("s_and_b32 s90, s90, 7")
        a("s_mul_i32 s90, s90, 6")
        a("s_lshl_b64 s[26:27], 1, s90")
        a("s_mov_b64 exec, 1")
        a.label(L)
        a("buffer_load_dwordx2 v[20:21], v18, s[60:63], 0 offen sc1")
        a("s_waitcnt vmcnt(0)")
        a("v_readfirstlane_b32 s20, v20")
        a("v_readfirstlane_b32 s21, v21")
        a("s_mov_b64 s[22:23], s[20:21]")
        a("s_mov_b32 s90, 0")
        for k in range(8):
            a("s_and_b32 s91, s22, 63")
            a("s_add_u32 s90, s90, s91")
            if k < 7: a("s_lshr_b64 s[22:23], s[22:23], 6")
        a("s_cmp_ge_u32 s90, 32")
        a(f"s_cbranch_scc1 {E}")
        timeout()
        a("s_sleep 2")
        a(f"s_branch {L}")
        a.label(E)
        a("s_lshl_b64 s[22:23], s[26:27], 5")
        a("s_cmp_eq_u64 s[20:21], s[22:23]")
        a("s_cselect_b32 s90, 1, 2")
        a("v_mov_b32 v16, s90")
        a(f"ds_write_b32 v3, v16 offset:{F_LM}")
        a("s_mov_b64 exec, -1")
    stamp(2)
    a(f"s_cmp_lg_u32 {S_B}, 0")
    a("s_cbranch_scc1 L_aux_ga")
    a(f"s_cmp_ge_u32 {S_SPL}, 16")
    a("s_cbranch_scc1 L_aux_ga")
    a(f"s_lshr_b32 s90, {S_X}, 1")
    a(f"s_and_b32 s91, {S_X}, 1")
    a(f"s_lshr_b32 s22, {S_SPL}, 2")
    a(f"s_and_b32 s23, {S_SPL}, 3")
    sexpr("s20", [("s90", "shl", 15), ("s91", "shl", 14), ("s22", "shl", 12), ("s23", "shl", 8)], W_MOD + 2*32768)
    sexpr("s21", [("s90", "shl", 12), ("s91", "shl", 11), (S_SPL, "shl", 7)], W_MODF + 2*4096)
    a("v_lshlrev_b32 v18, 3, v0")
    a("s_mov_b32 exec_hi, 0")
    loads = []; tags = []
    for i in range(4):
        loads.append(f"buffer_load_dwordx2 v[{40+2*i}:{41+2*i}], v18, {WSRD}, s20 offen offset:{1024*i} sc1")
        tags.append(f"v{41+2*i}")
    if cfg.g_piece: spin_lds(F_LC, cfg.g_piece, "v3", "v50")
    poll(loads, tags, "v60", sleep=6, sample=(not cfg.g_piece))
    a("v_add_f32 v40, v40, v42")
    a("v_add_f32 v44, v44, v46")
    a("v_add_f32 v40, v40, v44")
    a("v_lshlrev_b32 v18, 2, v0")
    a(f"v_mov_b32 v43, {S_TAG}")
    a("v_mov_b32_dpp v42, v40 quad_perm:[1,0,3,2] row_mask:0xf bank_mask:0xf")
    a("s_mov_b32 exec_lo, 0x55555555")
    a("v_cvt_pk_bf16_f32 v42, v40, v42")
    a(f"buffer_store_dwordx2 v[42:43], v18, {WSRD}, s21 offen sc1")
    a("s_mov_b64 exec, -1")
    a.label("L_aux_ga")
    if cfg.g_late: gate_lc(cfg.g_late, cfg.g_late * NK_B // NK_A, "v3", "v50")
    sexpr("s20", [(S_LOC, "shl", 6)], W_MODF + 2*4096)
    a(f"s_add_u32 s21, s20, {3*4096}")
    a("v_bfe_u32 v16, v0, 3, 1")
    a("v_and_b32 v17, 7, v0")
    a("v_lshlrev_b32 v18, 11, v16")
    a("v_lshl_add_u32 v18, v17, 3, v18")
    a("v_and_b32 v19, 15, v0")
    a("v_lshlrev_b32 v19, 3, v19")
    a("s_mov_b64 exec, 0xffff")
    poll([f"buffer_load_dwordx2 v[40:41], v18, {WSRD}, s20 offen sc1",
          f"buffer_load_dwordx2 v[42:43], v18, {WSRD}, s21 offen sc1"], ["v41", "v43"], "v60", sleep=8)
    a("v_lshlrev_b32 v44, 16, v40")
    a("v_and_b32 v45, 0xffff0000, v40")
    a("v_lshlrev_b32 v46, 16, v42")
    a("v_and_b32 v47, 0xffff0000, v42")
    a(f"ds_write_b64 v19, v[44:45] offset:{L_GA}")
    a(f"ds_write_b64 v19, v[46:47] offset:{L_GB}")
    a("s_mov_b64 exec, -1")
    arrive(F_GA, "v3", "v10")
    r1_block("a", "v3")
    a("s_barrier")
    if cfg.bearly:
        a(f"s_cmp_lg_u32 {S_B}, 0")
        a("s_cbranch_scc1 L_aux_lateE")
    if cfg.guwo:
        a(f"s_cmp_eq_u32 {S_B}, 0")
        a("s_cbranch_scc1 L_aux_lateE")
    spin_lds(F_PA, 4, "v3", "v50", sleep=False)
    a(f"s_cmp_eq_u32 {S_CB}, 7")
    a("s_cbranch_scc1 L_aux_gu_e")
    a(f"s_mov_b32 m0, {L_G}")
    a("s_mov_b32 s99, 8")
    a.label("L_aux_gu")
    a("buffer_load_dwordx4 v64, s[44:47], s19 offen nt lds")
    a("s_add_u32 m0, m0, 0x2000")
    a("s_nop 0")
    a("buffer_load_dwordx4 v64, s[48:51], s19 offen nt lds")
    a("s_sub_u32 m0, m0, 0x1c00")
    a(f"s_add_u32 s19, s19, {16*3584}")
    a("s_sub_u32 s99, s99, 1")
    a("s_cmp_lg_u32 s99, 0")
    a("s_cbranch_scc1 L_aux_gu")
    a.label("L_aux_gu_e")
    a("s_waitcnt vmcnt(0)")
    arrive(F_LATE, "v3", "v10")
    if not cfg.dnwo:
        spin_lds(F_PX, 1, "v3", "v50", sleep=False)
        a(f"s_mov_b32 m0, {L_DN}")
        a("s_nop 0")
        for i in range(8):
            a(f"buffer_load_dwordx4 v{66 + (i&1)}, s[52:55], s18 offen nt lds")
            a("s_add_u32 m0, m0, 0x400")
            a("s_add_u32 s18, s18, 0x2000")
        a("s_waitcnt vmcnt(0)")
        arrive(F_DN, "v3", "v10")
    a.label("L_aux_lateE")
    stamp(3)
    a("s_barrier")
    a("s_barrier")
    dump_stamps(4)
    a("s_endpgm")

    a.label("L_abort")
    a("s_mov_b64 exec, 1")
    a("v_mov_b32 v1, 0")
    a(f"s_lshl_b32 s90, {S_WG}, 16")
    a("s_or_b32 s90, s90, s1") if cfg.site else None
    a("v_mov_b32 v2, s90")
    a(f"s_and_b32 s90, {S_W}, 1")
    a("s_lshl_b32 s90, s90, 2")
    a("v_mov_b32 v1, s90")
    a("v_or_b32 v2, 0xde000000, v2")
    a("s_mov_b32 s44, s40")
    a("s_and_b32 s45, s41, 0xffff")
    a("s_mov_b32 s46, 256")
    a("s_mov_b32 s47, 0x20000")
    a("buffer_store_dword v2, v1, s[44:47], 0 offen")
    a.label("L_end")
    a("s_endpgm")

    hdr = open(f"cdna_kernels/{NAME}.s.ref").read().split("; Override launch")[0]
    out = hdr
    out += f"; @launch grid=(256,1,1) block=(576,1,1) lds={L_TOTAL}\n"
    out += '.amdgcn_target "amdgcn-amd-amdhsa--gfx950"\n.text\n'
    out += f".globl {NAME}_kernel\n.p2align 8\n.type {NAME}_kernel,@function\n"
    out += a.text()
    out += f""".section .rodata,"a"
.p2align 6
.amdhsa_kernel {NAME}_kernel
  .amdhsa_next_free_vgpr 128
  .amdhsa_next_free_sgpr 102
  .amdhsa_accum_offset 128
  .amdhsa_group_segment_fixed_size 0
  .amdhsa_kernarg_size 112
  .amdhsa_user_sgpr_count 2
  .amdhsa_user_sgpr_kernarg_segment_ptr 1
  .amdhsa_system_sgpr_workgroup_id_x 1
.end_amdhsa_kernel
"""
    return out

if __name__ == "__main__":
    cfg = Cfg()
    outp = sys.argv[1]
    for arg in sys.argv[2:]:
        k, v = arg.split("=")
        assert hasattr(cfg, k), k
        setattr(cfg, k, int(v))
    open(outp, "w").write(gen(cfg))
    print("wrote", outp)
```

```python
import sys
from asmlib import Asm

NAME = "adaLN_cond__sliding_block_cached__glu_gated_bilinear__decode"

class Cfg:
    D = 32
    DA = 28
    DA1 = 0
    stamps = 0
    spin = 1 << 22
    rsl = 1
    local = 2
    touch = 1
    dq = 0
    wolate = 0
    early = 0
    dbl8 = 1
    cwarm = 0
    wqsplit = 16
    guwo = 0
    dnwo = 1
    bearly = 0
    mprio = 1
    warm = 1
    dbl = 1
    stag = 6
    rsl_l = 0
    g_piece = 16
    g_late = 100
    slow = 0
    nwait = 1
    qsl2 = 6
    wq1 = 4
    quiet = 40
    prio = 0
    qsl = 4
    kstart = 1
    d_h = 4
    d_q = 1
    d_r1 = 1
    d_s5 = 8
    d_x1 = 1
    d_gu = 1
    d_s8 = 6
    atom8 = 0
    probe = 0
    site = 0

(F_LC, F_1, F_2, F_3, F_EC, F_KC, F_MB1, F_MB2, F_LATE, F_PO, F_PA, F_PX, F_PG, F_PD,
 F_PM, F_PQ, F_QF, F_WQ, F_WOL, F_MRL, F_LM, F_GA, F_DN, F_HI) = [4*i for i in range(24)]
L_MX = 128; L_LS = 192; L_ZERO = 256
L_ACT1 = 768; L_ACT2 = 1344; L_ACT4 = 1920; L_ACT6 = 2496; L_ACT7 = 3072
L_PRB = 7424
L_GA = 7168; L_GB = 7296
L_Q = 3648
L_P = 4736
L_X = 8192; L_C = 10240
L_K = 12288; L_V = L_K + 73728; L_TOTAL = L_V + 73728; L_MR = L_V + 57344
NK_A = 288; NK_B = 160
L_MODB = L_K; L_WQ = L_V
L_WO = L_K; L_G = L_K + 16384; L_U = L_K + 24576; L_DN = L_K + 32768
L_WO_B = L_K + 40960; L_G_B = L_K + 57344; L_DN_B = L_V + 65536
APITCH = 272; PPITCH = 592

W_EPOCH = 0
W_MOD = 0x1000
W_MODF = 0x38000
W_Q = 0x40000
W_QF = 0x88000
W_ST = 0x80000
W_O = 0x90000
W_A4 = 0x110000
W_X1P = 0x150000
W_X1S = 0x158000
W_GU = 0x160000
W_DN = 0x1A0000
W_STAMP = 0x200000
W_USED = 0x300000

LOG2E = 0x3fb8aa3b
SCALE = 0x3db504f3
EPS = 0x3727c5ac
INV512 = 0x3b000000

S_WG, S_W, S_X, S_LOC, S_B, S_SPL, S_KQ, S_CB, S_TAG, S_SPIN = "s2", "s3", "s4", "s5", "s6", "s7", "s8", "s9", "s10", "s11"
S_U = "s7"
S_BT = "s86"
S_SP = "s87"
WSRD = "s[12:15]"
S_EP = "s89"
S_LM = "s88"
PX = "s[42:43]"
S_PH = "s101"
KB_B = 0

def gen(cfg):
    a = Asm()
    D = cfg.D

    def srd(dst, plo, size):
        a(f"s_mov_b32 s{dst}, s{plo}")
        a(f"s_and_b32 s{dst+1}, s{plo+1}, 0xffff")
        a(f"s_mov_b32 s{dst+2}, {size}")
        a(f"s_mov_b32 s{dst+3}, 0x20000")

    def stamp(k):
        if cfg.stamps == 1 or (cfg.stamps == 2 and k == 0): a(f"s_memrealtime s[{64+2*k}:{65+2*k}]")

    def mark(pid, vz):
        if cfg.probe == pid:
            a("s_memrealtime s[62:63]")
            a("s_waitcnt lgkmcnt(0)")
            a("v_mov_b32 v127, s62")
            a(f"ds_max_u32 {vz}, v127 offset:{L_PRB}")

    def dump_stamps(n, final=False):
        if not cfg.stamps: return
        if cfg.stamps == 2:
            if not final: return
            a("s_memrealtime s[66:67]")
            n = 2
        a("s_waitcnt lgkmcnt(0)")
        a(f"s_mul_i32 s90, {S_WG}, 9")
        a(f"s_add_u32 s90, s90, {S_W}")
        a("s_lshl_b32 s90, s90, 7")
        a(f"s_add_u32 s90, s90, {W_STAMP}")
        a("s_mov_b64 exec, 1")
        a("v_mov_b32 v1, 0")
        for k in range(n):
            a(f"v_mov_b32 v2, s{64+2*k}")
            a(f"v_mov_b32 v3, s{65+2*k}")
            a(f"buffer_store_dwordx2 v[2:3], v1, {WSRD}, s90 offen offset:{8*k}")
            a("s_nop 1")
        a("s_waitcnt vmcnt(0)")

    sites = [0]
    def timeout():
        if cfg.site:
            sites[0] += 1
            a(f"s_mov_b32 s1, {sites[0]}")
        a(f"s_sub_u32 {S_SPIN}, {S_SPIN}, 1")
        a("s_cbranch_scc1 L_abort")

    def spin_lds(off, n, vz, vt, sleep=True):
        L = a.newlabel("Lsp"); E = a.newlabel("Lspe")
        a.label(L)
        a(f"ds_read_b32 {vt}, {vz} offset:{off}")
        a("s_waitcnt lgkmcnt(0)")
        a(f"v_readfirstlane_b32 s91, {vt}")
        a(f"s_cmp_ge_i32 s91, {n}")
        a(f"s_cbranch_scc1 {E}")
        timeout()
        if sleep: a("s_sleep 1")
        a(f"s_branch {L}")
        a.label(E)

    def arrive(off, vz, vone):
        a("s_mov_b64 s[92:93], exec")
        a("s_mov_b64 exec, 1")
        a(f"ds_add_u32 {vz}, {vone} offset:{off}")
        a("s_mov_b64 exec, s[92:93]")

    def poll(loads, tags, vacc, sleep=None, sample=False, hook=None):
        if sleep is None: sleep = cfg.rsl
        L = a.newlabel("Lpl"); E = a.newlabel("Lple"); R = a.newlabel("Lplr")
        a(f"s_mov_b64 {PX}, exec")
        if sample:
            a(f"s_mov_b32 {S_PH}, 0")
            a("s_mov_b64 exec, 1")
        if hook:
            H = a.newlabel("Lplh")
            for ld in loads: a(ld)
            hook()
            a(f"s_branch {H}")
        a.label(L)
        for ld in loads: a(ld)
        if hook: a.label(H)
        a("s_waitcnt vmcnt(0)")
        a(f"v_xor_b32 {vacc}, {S_TAG}, {tags[0]}")
        for t in tags[1:]:
            a(f"v_bitop3_b32 {vacc}, {vacc}, {t}, {S_TAG} bitop3:0xf6")
        a(f"v_cmp_ne_u32 vcc, 0, {vacc}")
        if sample:
            a(f"s_cbranch_vccnz {R}")
            a(f"s_cmp_lg_u32 {S_PH}, 0")
            a(f"s_cbranch_scc1 {E}")
            a(f"s_mov_b32 {S_PH}, 1")
            a(f"s_mov_b64 exec, {PX}")
            a(f"s_branch {L}")
            a.label(R)
        else:
            a(f"s_cbranch_vccz {E}")
        a("s_mov_b64 exec, vcc")
        timeout()
        if sleep: a(f"s_sleep {sleep}")
        a(f"s_branch {L}")
        a.label(E)
        a(f"s_mov_b64 exec, {PX}")

    def poll2(mk, vacc, uid, use):
        la, ta = mk(16); lb, tb = mk(64)
        nl = len(la)
        def check(tags):
            a(f"v_xor_b32 {vacc}, {S_TAG}, {tags[0]}")
            for t in tags[1:]: a(f"v_bitop3_b32 {vacc}, {vacc}, {t}, {S_TAG} bitop3:0xf6")
            a(f"v_cmp_ne_u32 vcc, 0, {vacc}")
        for l in la: a(l)
        a(f"s_sleep {cfg.stag}")
        a.label(f"L_p2_{uid}")
        for l in lb: a(l)
        a(f"s_waitcnt vmcnt({nl})")
        check(ta)
        a(f"s_cbranch_vccz L_p2a_{uid}")
        timeout()
        for l in la: a(l)
        a(f"s_waitcnt vmcnt({nl})")
        check(tb)
        a(f"s_cbranch_vccnz L_p2_{uid}")
        use(64)
        a(f"s_branch L_p2e_{uid}")
        a.label(f"L_p2a_{uid}")
        use(16)
        a.label(f"L_p2e_{uid}")

    def after_own(flag, n, vz, vt, dly):
        spin_lds(flag, n, vz, vt, sleep=False)
        if dly: a(f"s_sleep {dly}")

    def get_mode(vz, vt):
        if cfg.local == 2:
            spin_lds(F_LM, 1, vz, vt)
            a(f"s_mov_b32 {S_LM}, s91")

    def store_loc(text):
        if cfg.local == 0: a(text + " sc1")
        elif cfg.local == 1: a(text)
        else:
            P = a.newlabel("Lst"); E = a.newlabel("Lste")
            a(f"s_cmp_eq_u32 {S_LM}, 1")
            a(f"s_cbranch_scc1 {P}")
            a(text + " sc1")
            a(f"s_branch {E}")
            a.label(P)
            a(text)
            a.label(E)

    def bf16r2(d0, d1, s0, s1, tmp):
        a(f"v_cvt_pk_bf16_f32 {tmp}, {s0}, {s1}")
        a(f"v_lshlrev_b32 {d0}, 16, {tmp}")
        a(f"v_and_b32 {d1}, 0xffff0000, {tmp}")

    def bf16r1(d, s):
        a(f"v_cvt_pk_bf16_f32 {d}, {s}, {s}")
        a(f"v_lshlrev_b32 {d}, 16, {d}")

    def allreduce(regs, op, tmps, steps):
        dpp = {"x1": "quad_perm:[1,0,3,2]", "x2": "quad_perm:[2,3,0,1]", "x4": "row_half_mirror", "x8": "row_mirror", "r8": "row_ror:8", "r4": "row_ror:4"}
        for s in steps:
            if s in dpp:
                for r in regs:
                    a(f"{op}_dpp {r}, {r}, {r} {dpp[s]} row_mask:0xf bank_mask:0xf")
            else:
                ins = "v_permlane16_swap_b32" if s == "x16" else "v_permlane32_swap_b32"
                for r, t in zip(regs, tmps): a(f"v_mov_b32 {t}, {r}")
                for r, t in zip(regs, tmps): a(f"{ins} {r}, {t}")
                for r, t in zip(regs, tmps): a(f"{op} {r}, {r}, {t}")
    FULL = ["x1", "x2", "x4", "x8", "x16", "x32"]

    def sexpr(dst, terms, const=0, tmp="s94"):
        first = True
        for (reg, kind, n) in terms:
            tgt = dst if first else tmp
            if kind == "shl":
                if n == 0: a(f"s_mov_b32 {tgt}, {reg}")
                else: a(f"s_lshl_b32 {tgt}, {reg}, {n}")
            else: a(f"s_mul_i32 {tgt}, {reg}, {n}")
            if not first: a(f"s_add_u32 {dst}, {dst}, {tmp}")
            first = False
        if const: a(f"s_add_u32 {dst}, {dst}, {const}")

    def gate_lc(valA, valB, vz, vt):
        a(f"s_mul_i32 s99, {S_B}, {valB - valA}")
        a(f"s_add_u32 s99, s99, {valA}")
        spin_lds(F_LC, "s99", vz, vt)

    def get_tag():
        a(f"v_readfirstlane_b32 {S_EP}, v3")
        a(f"s_add_u32 {S_EP}, {S_EP}, 1")
        a(f"s_mul_i32 {S_TAG}, {S_EP}, 0x9E3779B1")

    def unit_voffs(pitch_shift=None, pitch=None, d0="v24", d1="v25"):
        a("v_lshrrev_b32 v3, 3, v0")
        a("v_bfe_u32 v4, v0, 4, 1")
        a("v_lshlrev_b32 v4, 1, v4")
        a("v_and_b32 v5, 7, v0")
        a("v_xor_b32 v4, v4, v5")
        a("v_lshlrev_b32 v4, 4, v4")
        if pitch_shift is not None: a(f"v_lshlrev_b32 v6, {pitch_shift}, v3")
        else: a(f"v_mul_u32_u24 v6, {pitch}, v3")
        a(f"v_add_u32 {d0}, v6, v4")
        a(f"v_xor_b32 {d1}, 64, {d0}")

    def strip_voff(pitch, d):
        a("v_lshrrev_b32 v6, 2, v0")
        a(f"v_mul_u32_u24 {d}, {pitch}, v6")
        a("v_bfe_u32 v6, v0, 5, 1")
        a("v_lshlrev_b32 v6, 1, v6")
        a("v_and_b32 v7, 3, v0")
        a("v_xor_b32 v6, v6, v7")
        a(f"v_lshl_add_u32 {d}, v6, 4, {d}")

    a.label(f"{NAME}_kernel")
    a(f"s_cmp_ge_u32 {S_WG}, 256")
    a("s_cbranch_scc1 L_end")
    a("s_load_dwordx16 s[16:31], s[0:1], 0")
    a("s_load_dwordx8 s[32:39], s[0:1], 64")
    a("s_load_dwordx4 s[40:43], s[0:1], 96")
    stamp(0)
    if cfg.probe == 3: a("s_memrealtime s[62:63]")
    a("v_lshrrev_b32 v1, 6, v0")
    a("v_and_b32 v0, 63, v0")
    a(f"v_readfirstlane_b32 {S_W}, v1")
    a(f"s_and_b32 {S_X}, {S_WG}, 7")
    a(f"s_lshr_b32 {S_LOC}, {S_WG}, 3")
    a(f"s_cmp_lt_u32 {S_LOC}, 8")
    a(f"s_cselect_b32 {S_B}, 1, 0")
    a(f"s_cselect_b32 s90, 0, 8")
    a(f"s_sub_u32 {S_SPL}, {S_LOC}, s90")
    a(f"s_cselect_b32 s91, 4, 12") if False else None
    a(f"s_cmp_lt_u32 {S_LOC}, 8")
    a(f"s_cselect_b32 s91, 4, 12")
    a(f"s_cselect_b32 s94, 0, 4")
    a(f"s_cmp_ge_u32 {S_SPL}, s91")
    a(f"s_cselect_b32 {S_BT}, 1, 0")
    a(f"s_mul_i32 s90, {S_BT}, s91")
    a(f"s_sub_u32 {S_SP}, {S_SPL}, s90")
    a(f"s_add_u32 {S_SP}, {S_SP}, s94")
    a(f"s_lshr_b32 {S_KQ}, {S_LOC}, 3")
    a(f"s_and_b32 {S_CB}, {S_LOC}, 7")
    a(f"s_mov_b32 {S_SPIN}, {cfg.spin}")
    a(f"s_mov_b32 {S_LM}, {1 if cfg.local == 1 else 2}")
    a(f"s_cmp_lg_u32 {S_W}, 8")
    a("s_cbranch_scc1 L_worker")

    SLC = "s95"; SOFF = "s96"
    unit_voffs(pitch=6144, d0="v20", d1="v21")
    a(f"s_and_b32 s90, {S_SPL}, 3")
    a(f"s_mul_i32 {SOFF}, s90, {128*6144}")
    a(f"s_lshr_b32 s90, {S_SPL}, 2")
    a(f"s_lshl_b32 s94, {S_X}, 2")
    a("s_add_u32 s94, s94, 16")
    a(f"s_lshl_b32 s91, {S_X}, 1")
    a("s_sub_u32 s91, s91, 4")
    a(f"s_cmp_ge_u32 {S_SPL}, 16")
    a("s_cselect_b32 s94, s91, s94")
    a("s_add_u32 s90, s90, s94")
    a("s_lshl_b32 s90, s90, 7")
    a(f"s_add_u32 {SOFF}, {SOFF}, s90")
    a(f"s_mov_b32 m0, {L_MR}")
    a("s_waitcnt lgkmcnt(0)")
    srd(44, 36, 512*3072*2)
    a(f"s_cmp_lt_u32 {S_LOC}, 24")
    a("s_cbranch_scc1 L_ld_nourg")
    for i in range(16):
        a(f"buffer_load_dwordx4 v{20 + (i&1)}, s[44:47], {SOFF} offen nt lds")
        if i < 15:
            a(f"s_add_u32 {SOFF}, {SOFF}, {8*6144}")
            a("s_add_u32 m0, m0, 0x400")
    a.label("L_ld_nourg")
    if cfg.prio: a("s_setprio 3")
    a("s_barrier")
    stamp(1)
    srd(12, 42, W_USED)
    srd(52, 18, 2*8*32768*128*2)
    srd(56, 20, 2*8*32768*128*2)
    srd(60, 24, 4096*512*2)
    a("v_mov_b32 v10, 0")
    a("v_lshrrev_b32 v3, 4, v0")
    a("v_and_b32 v4, 15, v0")
    a("v_xor_b32 v5, v4, v3")
    a("v_lshlrev_b32 v5, 4, v5")
    a("v_lshl_add_u32 v26, v3, 8, v5")
    a("v_xor_b32 v27, 64, v26")
    a("v_xor_b32 v28, 0x80, v26")
    a("v_xor_b32 v29, 0xc0, v26")
    a("v_lshlrev_b32 v5, 1, v3")
    a("v_xor_b32 v5, v4, v5")
    a("v_lshlrev_b32 v5, 4, v5")
    a("v_lshl_add_u32 v30, v3, 8, v5")
    a("v_xor_b32 v31, 0x80, v30")
    a(f"s_mul_i32 s91, {S_B}, {(NK_B - NK_A) * 256}")
    a(f"s_add_u32 s91, s91, {NK_A * 256}")
    a(f"s_mul_i32 s90, {S_SP}, s91")
    a(f"s_mul_i32 s91, {S_B}, {512 * 256}")
    a("s_add_u32 s90, s90, s91")
    sexpr("s98", [(S_BT, "shl", 26), (S_X, "shl", 23), ("s90", "shl", 0)], (28672 - 512) * 256)
    unit_voffs(pitch_shift=10)

    def lc_write(val, off=F_LC):
        a(f"v_mov_b32 v11, {val}")
        a(f"ds_write_b32 v10, v11 offset:{off}")
    def seg(name, variants, srdn, step, iters, ldsbase):
        if ldsbase is not None: a(f"s_mov_b32 m0, {ldsbase}")
        a(f"s_mov_b32 s97, {iters}")
        a.label(name)
        for v in variants:
            a(f"buffer_load_dwordx4 {v}, s[{srdn}:{srdn+3}], {SOFF} offen nt lds")
            a(f"s_add_u32 {SOFF}, {SOFF}, {step}")
            a("s_add_u32 m0, m0, 0x400")
        a("s_sub_u32 s97, s97, 1")
        a("s_cmp_lg_u32 s97, 0")
        a(f"s_cbranch_scc1 {name}")
    def drain(end, ks):
        for k in ks:
            a(f"s_waitcnt vmcnt({k})")
            lc_write(end - k)
    def seg4(name, variants, srdn, iters, ldsbase, D=D):
        if ldsbase is not None: a(f"s_mov_b32 m0, {ldsbase}")
        a(f"s_mov_b32 s97, {iters}")
        a.label(name)
        for i, v in enumerate(variants):
            a(f"buffer_load_dwordx4 {v}, s[{srdn}:{srdn+3}], {SOFF} offen offset:{1024*i} nt lds")
        a(f"s_add_u32 {SOFF}, {SOFF}, 0x1000")
        a("s_add_u32 m0, m0, 0x1000")
        a(f"s_add_u32 {SLC}, {SLC}, 4")
        a(f"v_mov_b32 v11, {SLC}")
        a(f"s_waitcnt vmcnt({D-4})")
        a(f"ds_write_b32 v10, v11 offset:{F_LC}")
        a("s_sub_u32 s97, s97, 1")
        a("s_cmp_lg_u32 s97, 0")
        a(f"s_cbranch_scc1 {name}")
    WO_OFF = [(S_X, "shl", 19), (S_KQ, "shl", 17), (S_CB, "shl", 7)]

    a(f"s_cmp_eq_u32 {S_B}, 0")
    a("s_cbranch_scc1 L_ld_A")
    if cfg.bearly:
        srd(48, 28, 512*1792*2)
        srd(44, 30, 512*1792*2)
        strip_voff(3584, "v20")
        sexpr(SOFF, WO_OFF)
        seg("L_ld_woB", ["v24", "v25"], 60, 8192, 8, L_WO_B)
        a(f"s_cmp_eq_u32 {S_CB}, 7")
        a("s_cbranch_scc1 L_ld_guBe")
        sexpr(SOFF, [(S_KQ, "mul", 128*3584), (S_X, "mul", 448), (S_CB, "shl", 6)])
        a(f"s_mov_b32 m0, {L_G_B}")
        a("s_mov_b32 s97, 8")
        a.label("L_ld_guB")
        a(f"buffer_load_dwordx4 v20, s[48:51], {SOFF} offen nt lds")
        a("s_add_u32 m0, m0, 0x2000")
        a("s_nop 0")
        a(f"buffer_load_dwordx4 v20, s[44:47], {SOFF} offen nt lds")
        a("s_sub_u32 m0, m0, 0x1c00")
        a(f"s_add_u32 {SOFF}, {SOFF}, {16*3584}")
        a("s_sub_u32 s97, s97, 1")
        a("s_cmp_lg_u32 s97, 0")
        a("s_cbranch_scc1 L_ld_guB")
        a.label("L_ld_guBe")
        srd(48, 32, 1792*512*2)
        sexpr(SOFF, [(S_X, "mul", 224*1024), (S_KQ, "mul", 56*1024), (S_CB, "shl", 7)])
        seg("L_ld_dnB", ["v24", "v25"], 48, 8192, 4, L_DN_B)
        a("s_waitcnt vmcnt(0)")
        lc_write(1, F_WOL)
        lc_write(1, F_LATE)
        lc_write(1, F_DN)
    if cfg.kstart == 0:
        spin_lds(F_EC, 4, "v10", "v12")
        spin_lds(F_3, 2, "v10", "v12", sleep=False)
    elif cfg.kstart == 1:
        spin_lds(F_QF, 2, "v10", "v12", sleep=False)
    elif cfg.kstart == 3:
        spin_lds(F_PQ, 4, "v10", "v12", sleep=False)
    else:
        pass
    stamp(2)
    a(f"s_mov_b32 {SLC}, {KB_B - (D - 4)}")
    a(f"s_mov_b32 {SOFF}, s98")
    seg4("L_ld_kB", ["v26", "v27", "v28", "v29"], 52, NK_B // 16, L_K)
    a(f"s_mov_b32 {SOFF}, s98")
    seg4("L_ld_vB", ["v30", "v30", "v31", "v31"], 56, NK_B // 16, L_V)
    stamp(3)
    if cfg.bearly:
        drain(KB_B + NK_B // 2, [k for k in (32, 24, 16, 8) if k < D - 4] + [0])
        stamp(4)
        dump_stamps(5)
        a("s_endpgm")
    else:
        sexpr(SOFF, WO_OFF)
        seg("L_ld_woB", ["v24", "v25"], 60, 8192, 8, L_WO_B)
        if cfg.dnwo:
            srd(48, 32, 1792*512*2)
            sexpr(SOFF, [(S_X, "mul", 224*1024), (S_KQ, "mul", 56*1024), (S_CB, "shl", 7)])
            seg("L_ld_dnB", ["v24", "v25"], 48, 8192, 4, L_DN_B)
            drain(KB_B + NK_B // 2 + 24, [k for k in (56, 48, 40, 32, 24) if k < D + 20])
            stamp(4)
            a("s_waitcnt vmcnt(8)")
            lc_write(1, F_WOL)
            a("s_waitcnt vmcnt(0)")
            lc_write(1, F_DN)
            dump_stamps(5)
            a("s_endpgm")
        else:
            drain(KB_B + NK_B // 2 + 16, [k for k in (48, 40, 32, 24, 16) if k < D + 12])
            stamp(4)
    a.label("L_ld_fin")
    a("s_waitcnt vmcnt(0)")
    lc_write(1, F_WOL)
    stamp(5)
    dump_stamps(6)
    a("s_endpgm")
    a.label("L_ld_A")
    DA = cfg.DA
    a(f"s_cmp_ge_u32 {S_SPL}, 16")
    a("s_cbranch_scc1 L_ld_urg")
    if not cfg.early: spin_lds(F_1, 2, "v10", "v12", sleep=False)
    if cfg.slow:
        a(f"s_mov_b32 m0, {L_MR}")
        a("s_nop 0")
        for i in range(2 * cfg.slow):
            a(f"buffer_load_dwordx4 v{20 + (i&1)}, s[44:47], {SOFF} offen nt lds")
            a(f"s_add_u32 {SOFF}, {SOFF}, {8*6144}")
            a("s_add_u32 m0, m0, 0x400")
            if i & 1: a("s_waitcnt vmcnt(0)")
        seg("L_ld_mr", ["v20", "v21"], 44, 8*6144, 8 - cfg.slow, None)
    else:
        seg("L_ld_mr", ["v20", "v21"], 44, 8*6144, 8, L_MR)
    a("s_branch L_ld_kgo")
    a.label("L_ld_urg")
    a("s_waitcnt vmcnt(0)")
    lc_write(1, F_MRL)
    spin_lds(F_PM, 4, "v10", "v12", sleep=False)
    a.label("L_ld_kgo")
    DA1 = cfg.DA1 or DA
    a(f"s_mov_b32 {SLC}, {-(DA1 - 4)}")
    a(f"s_mov_b32 {SOFF}, s98")
    n0 = (DA1 - 4 + 3) // 4
    assert 0 < n0 < NK_A // 16
    seg4("L_ld_kA0", ["v26", "v27", "v28", "v29"], 52, n0, L_K, DA1)
    lc_write(1, F_MRL)
    seg4("L_ld_kA", ["v26", "v27", "v28", "v29"], 52, NK_A // 16 - n0, None, DA1)
    stamp(2)
    a(f"s_mov_b32 {SOFF}, s98")
    if DA > DA1:
        assert (DA - DA1) % 4 == 0
        a(f"s_mov_b32 m0, {L_V}")
        a("s_nop 0")
        for it in range((DA - DA1) // 4):
            for i, v in enumerate(["v30", "v30", "v31", "v31"]):
                a(f"buffer_load_dwordx4 {v}, s[56:59], {SOFF} offen offset:{1024*i} nt lds")
            a(f"s_add_u32 {SOFF}, {SOFF}, 0x1000")
            a("s_add_u32 m0, m0, 0x1000")
        seg4("L_ld_vA", ["v30", "v30", "v31", "v31"], 56, NK_A // 16 - 4 - (DA - DA1) // 4, None, DA)
    elif cfg.dq:
        a(f"s_mov_b32 m0, {L_V}")
        a(f"s_mov_b32 s97, {NK_A // 16 - 4}")
        a.label("L_ld_vq")
        a(f"ds_read_b32 v12, v10 offset:{F_3}")
        for i, v in enumerate(["v30", "v30", "v31", "v31"]):
            a(f"buffer_load_dwordx4 {v}, s[56:59], {SOFF} offen offset:{1024*i} nt lds")
        a(f"s_add_u32 {SOFF}, {SOFF}, 0x1000")
        a("s_add_u32 m0, m0, 0x1000")
        a(f"s_add_u32 {SLC}, {SLC}, 4")
        a(f"v_mov_b32 v11, {SLC}")
        a("s_waitcnt lgkmcnt(0)")
        a("v_readfirstlane_b32 s91, v12")
        a("s_cmp_ge_i32 s91, 2")
        a("s_cbranch_scc1 L_ld_vq1")
        a(f"s_waitcnt vmcnt({cfg.dq - 4})")
        a.label("L_ld_vq1")
        a(f"s_waitcnt vmcnt({DA - 4})")
        a(f"ds_write_b32 v10, v11 offset:{F_LC}")
        a("s_sub_u32 s97, s97, 1")
        a("s_cmp_lg_u32 s97, 0")
        a("s_cbranch_scc1 L_ld_vq")
    else:
        seg4("L_ld_vA", ["v30", "v30", "v31", "v31"], 56, NK_A // 16 - 4, L_V, DA)
    spin_lds(F_EC, 4, "v10", "v12")
    seg4("L_ld_vA2", ["v30", "v30", "v31", "v31"], 56, 4, None, DA)
    stamp(3)
    drain(NK_A // 2, [k for k in (32, 24, 16, 8) if k < DA - 4] + [0])
    stamp(4)
    spin_lds(F_PO if cfg.wolate else F_KC, 4, "v10", "v12")
    sexpr(SOFF, WO_OFF)
    seg("L_ld_woA", ["v24", "v25"], 60, 8192, 8, L_WO)
    if cfg.dnwo:
        srd(48, 32, 1792*512*2)
        sexpr(SOFF, [(S_X, "mul", 224*1024), (S_KQ, "mul", 56*1024), (S_CB, "shl", 7)])
        seg("L_ld_dnA", ["v24", "v25"], 48, 8192, 4, L_DN)
        if cfg.guwo:
            a("s_waitcnt vmcnt(8)")
            lc_write(1, F_WOL)
            srd(48, 28, 512*1792*2)
            srd(44, 30, 512*1792*2)
            strip_voff(3584, "v20")
            a(f"s_cmp_eq_u32 {S_CB}, 7")
            a("s_cbranch_scc1 L_ld_guAe")
            sexpr(SOFF, [(S_KQ, "mul", 128*3584), (S_X, "mul", 448), (S_CB, "shl", 6)])
            a(f"s_mov_b32 m0, {L_G}")
            a("s_mov_b32 s97, 8")
            a.label("L_ld_guA")
            a(f"buffer_load_dwordx4 v20, s[48:51], {SOFF} offen nt lds")
            a("s_add_u32 m0, m0, 0x2000")
            a("s_nop 0")
            a(f"buffer_load_dwordx4 v20, s[44:47], {SOFF} offen nt lds")
            a("s_sub_u32 m0, m0, 0x1c00")
            a(f"s_add_u32 {SOFF}, {SOFF}, {16*3584}")
            a("s_sub_u32 s97, s97, 1")
            a("s_cmp_lg_u32 s97, 0")
            a("s_cbranch_scc1 L_ld_guA")
            a.label("L_ld_guAe")
            a("s_waitcnt vmcnt(0)")
            lc_write(1, F_DN)
            lc_write(1, F_LATE)
        else:
            a("s_waitcnt vmcnt(8)")
            lc_write(1, F_WOL)
            a("s_waitcnt vmcnt(0)")
            lc_write(1, F_DN)
        dump_stamps(5)
        a("s_endpgm")
    else:
        a("s_branch L_ld_fin")

    a.label("L_worker")
    a(f"s_cmp_lg_u32 {S_W}, 4")
    a("s_cbranch_scc1 L_wk2")
    a("v_mov_b32 v10, 0")
    for r in range(12, 16): a(f"v_mov_b32 v{r}, 0")
    a("v_lshlrev_b32 v1, 2, v0")
    a("v_lshlrev_b32 v2, 4, v0")
    a("ds_write_b32 v1, v10")
    a(f"ds_write_b128 v2, v[12:15] offset:{L_ZERO}")
    if cfg.probe >= 10: a(f"ds_write_b32 v10, v10 offset:{L_PRB}")
    if cfg.local == 1:
        a("v_mov_b32 v11, 1")
        a(f"ds_write_b32 v10, v11 offset:{F_LM}")
    a.label("L_wk2")
    a("s_waitcnt lgkmcnt(0)")
    srd(12, 42, W_USED)
    srd(44, 16, 2048)
    srd(48, 34, 2048)
    a(f"s_sub_u32 s97, {S_W}, 5")
    a("s_and_b32 s97, s97, 1")
    a("s_lshl_b32 s90, s97, 10")
    a(f"s_and_b32 s94, {S_SPL}, 3")
    a("s_lshl_b32 s94, s94, 8")
    a("s_add_u32 s94, s94, s90")
    a("v_lshlrev_b32 v1, 4, v0")
    a("v_lshlrev_b32 v2, 2, v0")
    a(f"s_cmp_lt_u32 {S_W}, 5")
    a("s_cbranch_scc1 L_wk2b")
    a(f"s_cmp_eq_u32 {S_W}, 7")
    a("s_cbranch_scc1 L_wk2b")
    a("buffer_load_dword v9, v2, s[48:51], s94 offen")
    a("buffer_load_dwordx4 v[4:7], v1, s[44:47], s90 offen")
    a(f"s_lshr_b32 s94, {S_SPL}, 1")
    a("s_and_b32 s94, s94, 3")
    a("s_lshl_b32 s94, s94, 8")
    a("s_add_u32 s94, s94, s90")
    a("buffer_load_dword v8, v2, s[44:47], s94 offen")
    a.label("L_wk2b")
    a("v_mov_b32 v2, 0")
    a(f"buffer_load_dword v3, v2, {WSRD}, 0 offen sc1")
    a(f"s_cmp_lg_u32 {S_W}, 7")
    a("s_cbranch_scc1 L_wk3")
    if cfg.local == 2:
        srd(60, 40, 256)
        a("s_getreg_b32 s90, hwreg(HW_REG_XCC_ID)")
        a("s_and_b32 s90, s90, 7")
        a("s_mul_i32 s90, s90, 6")
        a("s_lshl_b64 s[26:27], 1, s90")
        a(f"s_lshl_b32 s91, {S_X}, 5")
        a("s_add_u32 s91, s91, 8")
        a("v_mov_b32 v18, s91")
        a("v_mov_b32 v16, s26")
        a("v_mov_b32 v17, s27")
        a("s_mov_b64 exec, 1")
        a("buffer_atomic_add_x2 v[16:17], v18, s[60:63], 0 offen sc1")
        a("s_mov_b64 exec, -1")
    if cfg.touch:
        sexpr("s90", [(S_BT, "shl", 26), (S_X, "shl", 23), (S_SP, "shl", 16)], 28672*256)
        a("s_load_dword s78, s[18:19], s90")
        a("s_load_dword s79, s[20:21], s90")
        a(f"s_lshr_b32 s91, {S_SPL}, 1")
        a("s_and_b32 s91, s91, 3")
        a("s_lshl_b32 s91, s91, 20")
        a("s_load_dword s80, s[22:23], s91")
        sexpr("s91", [(S_X, "shl", 19), (S_KQ, "shl", 17)])
        a("s_load_dword s81, s[24:25], s91")
        a(f"s_mul_i32 s91, {S_KQ}, {128*3584}")
        a("s_load_dword s82, s[28:29], s91")
        a("s_load_dword s83, s[30:31], s91")
        a(f"s_mul_i32 s91, {S_X}, {224*1024}")
        a("s_load_dword s84, s[32:33], s91")
        a("s_load_dword s85, s[38:39], 0")
    a.label("L_wk3")
    a("s_barrier")
    if cfg.cwarm:
        a(f"s_cmp_lg_u32 {S_W}, 4")
        a("s_cbranch_scc1 L_cw_e")
        a("s_getpc_b64 s[0:1]")
        a.label("L_cw_base")
        a("s_mov_b32 s90, 0")
        a.label("L_cw_loop")
        for k in range(8):
            a(f"s_load_dword s77, s[0:1], s90 offset:{128*k}")
        a("s_add_u32 s90, s90, 1024")
        a("s_cmp_lt_u32 s90, (L_end - L_cw_base - 1024)")
        a("s_cbranch_scc1 L_cw_loop")
        a.label("L_cw_e")
    a(f"s_cmp_ge_u32 {S_W}, 4")
    a("s_cbranch_scc1 L_gwave")

    a.label("L_mwave")
    if cfg.mprio: a("s_setprio 2")
    srd(56, 22, 512*4096*2)
    a("v_lshrrev_b32 v1, 4, v0")
    a("v_and_b32 v2, 15, v0")
    a("v_mov_b32 v4, 1")
    a("v_lshlrev_b32 v22, 1, v1")
    a("v_xor_b32 v22, v2, v22")
    a("v_lshlrev_b32 v22, 4, v22")
    a("v_lshl_add_u32 v56, v1, 13, v22")
    a("v_xor_b32 v57, 0x80, v56")
    a(f"s_lshr_b32 s90, {S_SPL}, 1")
    a(f"s_and_b32 s91, {S_SPL}, 1")
    sexpr("s96", [("s90", "shl", 20), (S_X, "shl", 10), ("s91", "shl", 9), (S_W, "shl", 18)])
    a("s_add_u32 s97, s96, 256")
    def wq_loads(lo, hi):
        for k in range(lo, hi):
            bb, i = k >> 3, k & 7
            sr = "s96" if bb == 0 else "s97"
            if k == lo or i == 0:
                a(f"s_lshl_b32 s90, {S_W}, 13")
                a(f"s_add_u32 m0, s90, {L_WQ + 32768*bb + 1024*i}")
                a("s_nop 0")
            a(f"buffer_load_dwordx4 {'v56' if (i & 2) == 0 else 'v57'}, s[56:59], {sr} offen nt lds")
            a(f"s_add_u32 {sr}, {sr}, {4*8192}")
            a("s_add_u32 m0, m0, 0x400")
    a(f"s_cmp_eq_u32 {S_B}, 0")
    a("s_cbranch_scc1 L_m_nowq")
    wq_loads(0, cfg.wqsplit)
    a.label("L_m_nowq")
    a("v_bfe_u32 v6, v2, 2, 1")
    a(f"v_mul_u32_u24 v6, {APITCH}, v6")
    a("v_lshl_add_u32 v6, v1, 4, v6")
    a("v_bfe_u32 v16, v0, 2, 2")
    a("v_and_b32 v17, 3, v0")
    a("v_lshl_add_u32 v18, v1, 3, v16")
    a("v_lshrrev_b32 v19, 1, v17")
    a("v_and_b32 v20, 1, v17")
    a("v_and_b32 v21, 1, v1")
    a("v_lshrrev_b32 v22, 1, v16")
    a("v_lshl_or_b32 v22, v21, 1, v22")
    a("v_lshlrev_b32 v22, 1, v22")
    a(f"s_lshl_b32 s90, {S_W}, 1")
    a("v_add_u32 v23, s90, v19")
    a("v_xor_b32 v23, v23, v22")
    a("v_lshlrev_b32 v7, 7, v18")
    a("v_lshl_add_u32 v7, v23, 4, v7")
    a("v_lshl_add_u32 v7, v20, 3, v7")
    a(f"s_and_b32 s90, {S_W}, 1")
    a("s_lshl_b32 s90, s90, 1")
    a("v_add_u32 v23, s90, v19")
    a("v_lshlrev_b32 v22, 1, v21")
    a("v_xor_b32 v23, v23, v22")
    a("v_lshlrev_b32 v12, 6, v18")
    a("v_lshl_add_u32 v12, v23, 4, v12")
    a("v_lshl_add_u32 v12, v20, 3, v12")
    a("v_lshl_or_b32 v22, v21, 2, v16")
    a("v_lshlrev_b32 v22, 1, v22")
    a(f"s_lshl_b32 s90, {S_W}, 2")
    a("v_add_u32 v23, s90, v19")
    a("v_xor_b32 v24, v23, v22")
    a("v_lshlrev_b32 v25, 8, v18")
    a("v_lshl_add_u32 v25, v20, 3, v25")
    a("v_lshl_add_u32 v13, v24, 4, v25")
    a("v_add_u32 v23, 2, v23")
    a("v_xor_b32 v24, v23, v22")
    a("v_lshl_add_u32 v14, v24, 4, v25")
    a("v_bfe_u32 v8, v0, 4, 1")
    a("v_lshlrev_b32 v9, 3, v2")
    O_MOD, O_Q, O_O, O_A4, O_GU, O_DN, O_ST, T_K, T_V = "s16", "s17", "s18", "s19", "s20", "s21", "s24", "s25", "s26"
    a(f"s_mul_i32 {T_K}, {S_B}, {KB_B + NK_B // 4 - NK_A // 4}")
    a(f"s_add_u32 {T_K}, {T_K}, {NK_A // 4}")
    a(f"s_mul_i32 {T_V}, {S_B}, {KB_B + NK_B // 2 - NK_A // 2}")
    a(f"s_add_u32 {T_V}, {T_V}, {NK_A // 2}")
    sexpr(O_O, [(S_X, "shl", 16), (S_BT, "shl", 13), (S_SP, "shl", 9), (S_W, "shl", 7)], W_O)
    sexpr(O_A4, [(S_CB, "shl", 14), (S_W, "shl", 12), (S_X, "shl", 8), (S_KQ, "shl", 6)], W_A4)
    a(f"s_add_u32 {O_DN}, {O_A4}, {W_DN - W_A4}")
    a(f"s_lshr_b32 s90, {S_W}, 1")
    a(f"s_and_b32 s91, {S_W}, 1")
    sexpr(O_GU, [(S_X, "shl", 15), ("s90", "shl", 14), (S_KQ, "shl", 11), (S_CB, "shl", 8), ("s91", "shl", 7)], W_GU)
    sexpr(O_ST, [(S_X, "shl", 11), (S_BT, "shl", 10), (S_SP, "shl", 4)], W_ST)
    a(f"s_and_b32 s90, {S_SPL}, 1")
    a("s_lshl_b32 s90, s90, 1")
    a(f"s_lshr_b32 s91, {S_W}, 1")
    a("s_add_u32 s90, s90, s91")
    a(f"s_lshr_b32 s91, {S_SPL}, 1")
    a(f"s_and_b32 s97, {S_W}, 1")
    sexpr(O_Q, [(S_X, "shl", 15), ("s90", "shl", 12), ("s91", "shl", 10), ("s97", "shl", 9)], W_Q)
    a(f"s_cmp_lt_u32 {S_SPL}, 16")
    a("s_cbranch_scc1 L_m_offA")
    a(f"s_lshr_b32 s90, {S_X}, 2")
    a(f"s_and_b32 s91, {S_X}, 3")
    a(f"s_bfe_u32 s97, {S_SPL}, 0x10002")
    a(f"s_and_b32 s98, {S_SPL}, 3")
    sexpr(O_MOD, [("s90", "shl", 15), ("s91", "shl", 12), ("s98", "shl", 10), ("s97", "shl", 9), (S_W, "shl", 7)], W_MOD)
    a("s_branch L_m_offE")
    a.label("L_m_offA")
    a(f"s_lshr_b32 s90, {S_X}, 1")
    a(f"s_and_b32 s91, {S_X}, 1")
    a("s_lshl_b32 s91, s91, 2")
    a(f"s_lshr_b32 s97, {S_SPL}, 2")
    a("s_add_u32 s91, s91, s97")
    a("s_lshr_b32 s97, s91, 1")
    a("s_and_b32 s91, s91, 1")
    a(f"s_and_b32 s98, {S_SPL}, 3")
    sexpr(O_MOD, [("s90", "shl", 15), ("s97", "shl", 12), ("s98", "shl", 10), ("s91", "shl", 9), (S_W, "shl", 7)], W_MOD + 2*32768)
    a.label("L_m_offE")
    a("s_waitcnt vmcnt(0)")
    get_tag()
    a("v_mov_b32 v3, 0")
    stamp(1)

    def loadB(vaddr, nk, kstride, hoff, base=16):
        for t in range(nk):
            a(f"ds_read_b64_tr_b16 v[{base+4*t}:{base+4*t+1}], {vaddr} offset:{t*kstride}")
            a(f"ds_read_b64_tr_b16 v[{base+4*t+2}:{base+4*t+3}], {vaddr} offset:{t*kstride+hoff}")

    def gemv(act_off, nk, bbase=16, second=None):
        for t in range(nk):
            a(f"ds_read_b128 v[{32+4*t}:{35+4*t}], v6 offset:{act_off+64*t}")
        for t in range(nk):
            a(f"s_waitcnt lgkmcnt({nk-1-t})")
            c = "0" if t == 0 else "v[48:51]"
            a(f"v_mfma_f32_16x16x32_bf16 v[48:51], v[{32+4*t}:{35+4*t}], v[{bbase+4*t}:{bbase+4*t+3}], {c}")
            if second is not None:
                c = "0" if t == 0 else "v[56:59]"
                a(f"v_mfma_f32_16x16x32_bf16 v[56:59], v[{32+4*t}:{35+4*t}], v[{second+4*t}:{second+4*t+3}], {c}")

    def publish(shift, soff, local=False, second=False):
        a(f"v_lshl_add_u32 v54, v8, {shift}, v9")
        a(f"v_mov_b32 v53, {S_TAG}")
        if second: a(f"v_mov_b32 v61, {S_TAG}")
        a("v_mov_b32 v52, v48")
        if second: a("v_mov_b32 v60, v56")
        a("s_mov_b32 exec_hi, 0")
        t1 = f"buffer_store_dwordx2 v[52:53], v54, {WSRD}, {soff} offen"
        t2 = f"buffer_store_dwordx2 v[60:61], v54, {WSRD}, {soff} offen offset:128"
        if local:
            store_loc(t1)
            if second: store_loc(t2)
        else:
            a(t1 + " sc1")
            if second: a(t2 + " sc1")
        a("s_mov_b32 exec_hi, -1")

    def publish_pair(soff):
        a("v_lshlrev_b32 v54, 11, v8")
        a("v_lshl_add_u32 v54, v2, 2, v54")
        a(f"v_mov_b32 v53, {S_TAG}")
        a("v_mov_b32_dpp v52, v48 quad_perm:[1,0,3,2] row_mask:0xf bank_mask:0xf")
        a("s_mov_b32 exec_lo, 0x55555555")
        a("s_mov_b32 exec_hi, 0")
        a("v_cvt_pk_bf16_f32 v52, v48, v52")
        a(f"buffer_store_dwordx2 v[52:53], v54, {WSRD}, {soff} offen sc1")
        a("s_mov_b64 exec, -1")

    a(f"s_cmp_lg_u32 {S_B}, 0")
    a("s_cbranch_scc1 L_m_B")
    spin_lds(F_1, 2, "v3", "v5")
    spin_lds(F_MRL, 1, "v3", "v5")
    a(f"v_add_u32 v10, {L_MR}, v7")
    loadB("v10", 4, 4096, 512)
    gemv(L_ACT1, 4)
    arrive(F_EC, "v3", "v4")
    publish(14, O_MOD)
    arrive(F_PM, "v3", "v4")
    stamp(2)
    a("s_branch L_m_s3")
    a.label("L_m_B")
    if cfg.wqsplit < 16:
        spin_lds(F_HI, 2, "v3", "v5", sleep=False)
        wq_loads(cfg.wqsplit, 16)
    a("s_waitcnt vmcnt(0)")
    arrive(F_WQ, "v3", "v4")
    a("v_bfe_u32 v16, v0, 2, 2")
    a("v_and_b32 v17, 3, v0")
    a("v_lshl_add_u32 v18, v1, 3, v16")
    a("v_lshrrev_b32 v19, 1, v17")
    a("v_and_b32 v20, 1, v17")
    a("v_and_b32 v21, 1, v1")
    a("v_lshl_or_b32 v22, v21, 2, v16")
    a("v_lshlrev_b32 v22, 1, v22")
    a("v_lshlrev_b32 v25, 8, v18")
    a("v_lshl_add_u32 v25, v20, 3, v25")
    a(f"s_lshr_b32 s90, {S_W}, 1")
    a("s_lshl_b32 s90, s90, 15")
    a(f"s_add_u32 s90, s90, {L_WQ}")
    a("v_add_u32 v25, s90, v25")
    a(f"s_and_b32 s91, {S_W}, 1")
    a("s_lshl_b32 s91, s91, 3")
    a("v_add_u32 v19, s91, v19")
    for e in range(4):
        a(f"v_add_u32 v23, {2*e}, v19")
        a("v_xor_b32 v23, v23, v22")
        a(f"v_lshl_add_u32 v{28+e}, v23, 4, v25")
    spin_lds(F_WQ, 4, "v3", "v5", sleep=False)
    for e in range(4):
        loadB(f"v{28+e}", 4, 8192, 1024, base=64 + 16*e)
    get_mode("v3", "v5")
    a("s_waitcnt lgkmcnt(0)")
    arrive(F_EC, "v3", "v4")
    a("v_lshl_add_u32 v54, v8, 14, v9")
    a(f"v_mov_b32 v53, {S_TAG}")
    spin_lds(F_2, 2, "v3", "v5", sleep=False)
    for t in range(4):
        a(f"ds_read_b128 v[{32+4*t}:{35+4*t}], v6 offset:{L_ACT2+64*t}")
    for t in range(4):
        a(f"s_waitcnt lgkmcnt({3-t})")
        for e in range(4):
            c = "0" if t == 0 else f"v[{16+4*e}:{19+4*e}]"
            a(f"v_mfma_f32_16x16x32_bf16 v[{16+4*e}:{19+4*e}], v[{32+4*t}:{35+4*t}], v[{64+16*e+4*t}:{67+16*e+4*t}], {c}")
    a("s_mov_b32 exec_hi, 0")
    for e in range(4):
        a(f"v_mov_b32 v{56+2*e}, v{16+4*e}")
        a(f"v_mov_b32 v{57+2*e}, v53")
    if cfg.local == 2:
        P = a.newlabel("Lst"); E = a.newlabel("Lste")
        a(f"s_cmp_eq_u32 {S_LM}, 1")
        a(f"s_cbranch_scc1 {P}")
        for e in range(4): a(f"buffer_store_dwordx2 v[{56+2*e}:{57+2*e}], v54, {WSRD}, {O_Q} offen offset:{128*e} sc1")
        a(f"s_branch {E}")
        a.label(P)
        for e in range(4): a(f"buffer_store_dwordx2 v[{56+2*e}:{57+2*e}], v54, {WSRD}, {O_Q} offen offset:{128*e}")
        a.label(E)
    else:
        for e in range(4): a(f"buffer_store_dwordx2 v[{56+2*e}:{57+2*e}], v54, {WSRD}, {O_Q} offen offset:{128*e}" + (" sc1" if cfg.local == 0 else ""))
    a("s_mov_b32 exec_hi, -1")
    arrive(F_PQ, "v3", "v4")
    stamp(3)
    mark(10, "v3")
    a.label("L_m_s3")
    get_mode("v3", "v5")
    T_ST, T_N = "s27", "s28"
    a(f"s_lshl_b32 s90, {S_B}, 1")
    a(f"s_sub_u32 s90, 4, s90")
    a(f"s_mul_i32 {T_ST}, {S_W}, s90")
    a(f"s_min_u32 s91, {S_W}, 2")
    a(f"s_add_u32 {T_ST}, {T_ST}, s91")
    a(f"s_cmp_lt_u32 {S_W}, 2")
    a(f"s_addc_u32 {T_N}, s90, 0")
    a("s_mov_b64 s[30:31], -1")
    a(f"s_cmp_eq_u32 {T_N}, 3")
    a("s_cselect_b32 s31, 0xffff, s31")
    a(f"s_cmp_eq_u32 {T_N}, 2")
    a("s_cselect_b32 s31, 0, s31")
    a("s_mov_b32 s33, 0")
    a(f"s_cmp_eq_u32 {T_N}, 5")
    a("s_cselect_b32 s32, 0xffff, 0")
    a("v_xor_b32 v10, v1, v2")
    a("v_lshlrev_b32 v10, 4, v10")
    a("v_lshl_add_u32 v10, v2, 8, v10")
    a(f"s_lshl_b32 s90, {T_ST}, 12")
    a(f"s_add_u32 s90, s90, {L_K}")
    a("v_add_u32 v112, s90, v10")
    a("v_xor_b32 v113, 64, v112")
    a("v_xor_b32 v114, 0x80, v112")
    a("v_xor_b32 v115, 0xc0, v112")
    a("v_and_b32 v10, 3, v2")
    a(f"v_mul_u32_u24 v10, {APITCH}, v10")
    a("v_lshl_add_u32 v116, v1, 4, v10")
    a("v_cmp_eq_u32 s[34:35], 1, v1")
    a("v_cmp_eq_u32 s[36:37], 2, v1")
    a("v_cmp_eq_u32 s[38:39], 3, v1")
    for r in range(80, 100): a(f"v_mov_b32 v{r}, 0")
    NEG = "s29"
    a(f"s_mov_b32 {NEG}, 0xff800000")
    spin_lds(F_3, 2, "v3", "v5", sleep=False)
    spin_lds(F_LC, T_K, "v3", "v5", sleep=False)
    stamp(4)
    mark(11, "v3")
    def k_reads(tt, base):
        for t in range(4):
            a(f"ds_read_b128 v[{base+4*t}:{base+4*t+3}], v{112+t} offset:{4096*tt}")
    def qk_mfma(tt, base):
        acc = f"v[{80+4*tt}:{83+4*tt}]"
        for t in range(4):
            c = "0" if t == 0 else acc
            a(f"v_mfma_f32_16x16x32_bf16 {acc}, v[{16+4*t}:{19+4*t}], v[{base+4*t}:{base+4*t+3}], {c}")
    for t in range(4):
        a(f"ds_read_b128 v[{16+4*t}:{19+4*t}], v116 offset:{L_Q+64*t}")
    k_reads(0, 32)
    k_reads(1, 48)
    a(f"s_cmp_eq_u32 {T_N}, 2")
    a("s_cbranch_scc1 L_qk_n2")
    k_reads(2, 64)
    a("s_waitcnt lgkmcnt(8)")
    qk_mfma(0, 32)
    a(f"s_cmp_eq_u32 {T_N}, 3")
    a("s_cbranch_scc1 L_qk_n3")
    k_reads(3, 32)
    a("s_waitcnt lgkmcnt(8)")
    qk_mfma(1, 48)
    a(f"s_cmp_eq_u32 {T_N}, 4")
    a("s_cbranch_scc1 L_qk_n4")
    k_reads(4, 48)
    a("s_waitcnt lgkmcnt(8)")
    qk_mfma(2, 64)
    a("s_waitcnt lgkmcnt(4)")
    qk_mfma(3, 32)
    a("s_waitcnt lgkmcnt(0)")
    qk_mfma(4, 48)
    a("s_branch L_qk_done")
    a.label("L_qk_n4")
    a("s_waitcnt lgkmcnt(4)")
    qk_mfma(2, 64)
    a("s_waitcnt lgkmcnt(0)")
    qk_mfma(3, 32)
    a("s_branch L_qk_done")
    a.label("L_qk_n3")
    a("s_waitcnt lgkmcnt(4)")
    qk_mfma(1, 48)
    a("s_waitcnt lgkmcnt(0)")
    qk_mfma(2, 64)
    a("s_branch L_qk_done")
    a.label("L_qk_n2")
    a("s_waitcnt lgkmcnt(4)")
    qk_mfma(0, 32)
    a("s_waitcnt lgkmcnt(0)")
    qk_mfma(1, 48)
    a.label("L_qk_done")
    arrive(F_KC, "v3", "v4")
    a("s_nop 7")
    for r in range(4): a(f"v_cndmask_b32 v{48+r}, v{80+r}, v{84+r}, s[34:35]")
    for r in range(4): a(f"v_cndmask_b32 v{48+r}, v{48+r}, v{88+r}, s[36:37]")
    for r in range(4): a(f"v_cndmask_b32 v{48+r}, v{48+r}, v{92+r}, s[38:39]")
    a(f"s_mov_b32 s94, {SCALE:#x}")
    for (d, sr) in ((20, 96), (16, 48)):
        bf16r2(f"v{d}", f"v{d+1}", f"v{sr}", f"v{sr+1}", "v32")
        bf16r2(f"v{d+2}", f"v{d+3}", f"v{sr+2}", f"v{sr+3}", "v33")
    for r in range(8): a(f"v_mul_f32 v{16+r}, s94, v{16+r}")
    for d in (16, 20):
        bf16r2(f"v{d}", f"v{d+1}", f"v{d}", f"v{d+1}", "v32")
        bf16r2(f"v{d+2}", f"v{d+3}", f"v{d+2}", f"v{d+3}", "v33")
    a(f"v_mov_b32 v34, {NEG}")
    for r in range(4): a(f"v_cndmask_b32 v{16+r}, v34, v{16+r}, s[30:31]")
    for r in range(4): a(f"v_cndmask_b32 v{20+r}, v34, v{20+r}, s[32:33]")
    for r in range(4): a(f"v_max_f32 v{24+r}, v{16+r}, v{20+r}")
    allreduce(["v24", "v25", "v26", "v27"], "v_max_f32", [], ["x1", "x2", "x4", "x8"])
    for r in range(4): a(f"v_max_f32_dpp v{24+r}, v{24+r}, v{24+r} row_bcast:15 row_mask:0xa bank_mask:0xf")
    for r in range(4): a(f"v_max_f32_dpp v{24+r}, v{24+r}, v{24+r} row_bcast:31 row_mask:0xc bank_mask:0xf")
    a(f"s_lshl_b32 s90, {S_W}, 4")
    a("v_mov_b32 v10, s90")
    a("s_mov_b32 exec_lo, 0")
    a("s_mov_b32 exec_hi, 0x80000000")
    a(f"ds_write_b128 v10, v[24:27] offset:{L_MX}")
    a(f"ds_add_u32 v3, v4 offset:{F_MB1}")
    a("s_mov_b64 exec, -1")
    a(f"s_lshl_b32 s90, {T_ST}, 5")
    a(f"s_add_u32 s90, s90, {L_P}")
    a("v_lshl_add_u32 v10, v0, 1, s90")
    spin_lds(F_MB1, 4, "v3", "v5", sleep=False)
    for w in range(4):
        a(f"ds_read_b128 v[{32+4*w}:{35+4*w}], v3 offset:{L_MX+16*w}")
    a(f"s_mov_b32 s94, {LOG2E:#x}")
    a("s_waitcnt lgkmcnt(0)")
    for r in range(4):
        a(f"v_max3_f32 v{24+r}, v{32+r}, v{36+r}, v{40+r}")
    for r in range(4):
        a(f"v_max_f32 v{24+r}, v{24+r}, v{44+r}")
    for r in range(8): a(f"v_sub_f32 v{16+r}, v{16+r}, v{24+(r&3)}")
    for r in range(8): a(f"v_mul_f32 v{16+r}, s94, v{16+r}")
    for r in range(8): a(f"v_exp_f32 v{16+r}, v{16+r}")
    a("v_cvt_pk_bf16_f32 v28, v16, v17")
    a("v_cvt_pk_bf16_f32 v29, v18, v19")
    a("v_cvt_pk_bf16_f32 v30, v20, v21")
    a("v_cvt_pk_bf16_f32 v31, v22, v23")
    a("s_mov_b64 exec, s[30:31]")
    a("ds_write_b16 v10, v28")
    a(f"ds_write_b16_d16_hi v10, v28 offset:{PPITCH}")
    a(f"ds_write_b16 v10, v29 offset:{2*PPITCH}")
    a(f"ds_write_b16_d16_hi v10, v29 offset:{3*PPITCH}")
    a(f"s_cmp_lg_u32 {T_N}, 5")
    a("s_cbranch_scc1 L_p_w1")
    a("s_mov_b64 exec, s[32:33]")
    a("ds_write_b16 v10, v30 offset:128")
    a(f"ds_write_b16_d16_hi v10, v30 offset:{PPITCH+128}")
    a(f"ds_write_b16 v10, v31 offset:{2*PPITCH+128}")
    a(f"ds_write_b16_d16_hi v10, v31 offset:{3*PPITCH+128}")
    a.label("L_p_w1")
    a("s_mov_b64 exec, 1")
    a(f"ds_add_u32 v3, v4 offset:{F_MB2}")
    a("s_mov_b64 exec, -1")
    a.label("L_m_pv")
    stamp(5)
    a("v_lshrrev_b32 v10, 2, v2")
    a(f"v_mul_u32_u24 v10, {PPITCH}, v10")
    a("v_lshl_add_u32 v10, v1, 4, v10")
    a(f"v_add_u32 v60, {L_P}, v10")
    a(f"v_add_u32 v61, {L_V}, v13")
    a(f"v_add_u32 v62, {L_V}, v14")
    a("v_lshl_add_u32 v63, v1, 14, v9")
    a(f"v_mov_b32 v65, {S_TAG}")
    for r in range(8): a(f"v_mov_b32 v{48+r}, 0")
    spin_lds(F_MB2, 4, "v3", "v5", sleep=False)
    a(f"s_add_u32 s95, {T_K}, 8")
    a("s_mov_b32 s96, -1000")
    def pv_ensure(tagl):
        G = f"L_pv_go{tagl}"; S = f"L_pv_sp{tagl}"
        a("s_cmp_ge_i32 s96, s95")
        a(f"s_cbranch_scc1 {G}")
        a.label(S)
        a(f"ds_read_b32 v5, v3 offset:{F_LC}")
        a("s_waitcnt lgkmcnt(0)")
        a("v_readfirstlane_b32 s96, v5")
        a("s_cmp_ge_i32 s96, s95")
        a(f"s_cbranch_scc1 {G}")
        timeout()
        a(f"s_branch {S}")
        a.label(G)
    def pv_reads(b):
        a(f"ds_read_b128 v[{b}:{b+3}], v60")
        a(f"ds_read_b64_tr_b16 v[{b+4}:{b+5}], v61")
        a(f"ds_read_b64_tr_b16 v[{b+6}:{b+7}], v61 offset:1024")
        a(f"ds_read_b64_tr_b16 v[{b+8}:{b+9}], v62")
        a(f"ds_read_b64_tr_b16 v[{b+10}:{b+11}], v62 offset:1024")
        a("v_add_u32 v60, 64, v60")
        a("v_add_u32 v61, 0x2000, v61")
        a("v_add_u32 v62, 0x2000, v62")
        a("s_add_u32 s95, s95, 8")
    def pv_mfma(b):
        a(f"v_mfma_f32_16x16x32_bf16 v[48:51], v[{b}:{b+3}], v[{b+4}:{b+7}], v[48:51]")
        a(f"v_mfma_f32_16x16x32_bf16 v[52:55], v[{b}:{b+3}], v[{b+8}:{b+11}], v[52:55]")
    pv_ensure("0")
    pv_reads(16)
    a.label("L_pv_loop")
    pv_ensure("1")
    pv_reads(28)
    a("s_waitcnt lgkmcnt(5)")
    pv_mfma(16)
    pv_ensure("2")
    pv_reads(16)
    a("s_waitcnt lgkmcnt(5)")
    pv_mfma(28)
    a(f"s_cmp_le_i32 s95, {T_V}")
    a("s_cbranch_scc1 L_pv_loop")
    a("s_waitcnt lgkmcnt(0)")
    pv_mfma(16)
    stamp(6)
    a("s_nop 4")
    a("v_cvt_pk_bf16_f32 v64, v48, v52")
    store_loc(f"buffer_store_dwordx2 v[64:65], v63, {WSRD}, {O_O} offen")
    arrive(F_PO, "v3", "v4")
    stamp(7)
    mark(12, "v3")
    spin_lds(F_WOL, 1, "v3", "v5", sleep=False)
    a(f"s_mul_i32 s90, {S_B}, {L_WO_B - L_WO}")
    a(f"s_add_u32 s90, s90, {L_WO}")
    a("v_add_u32 v10, s90, v7")
    loadB("v10", 4, 4096, 512)
    a("s_waitcnt lgkmcnt(0)")
    a("s_barrier")
    gemv(L_ACT4, 4)
    publish_pair(O_A4)
    arrive(F_PA, "v3", "v4")
    stamp(8)
    mark(13, "v3")
    spin_lds(F_LATE, 1, "v3", "v5")
    a(f"s_lshr_b32 s90, {S_W}, 1")
    a("s_lshl_b32 s90, s90, 13")
    a(f"s_mul_i32 s91, {S_B}, {(L_G_B - L_G) if cfg.bearly else 0}")
    a("s_add_u32 s90, s90, s91")
    a(f"s_add_u32 s90, s90, {L_G}")
    a("v_add_u32 v11, s90, v12")
    loadB("v11", 4, 2048, 256)
    a(f"s_mul_i32 s90, {S_B}, {(L_DN_B - L_DN) if (cfg.bearly or cfg.dnwo) else 0}")
    a(f"s_add_u32 s90, s90, {L_DN}")
    a("v_add_u32 v15, s90, v7")
    a("s_waitcnt lgkmcnt(0)")
    a("s_barrier")
    a(f"s_cmp_eq_u32 {S_CB}, 7")
    a("s_cbranch_scc1 L_m_s7")
    gemv(L_ACT6, 4)
    publish(13, O_GU, local=True)
    a.label("L_m_s7")
    arrive(F_PG, "v3", "v4")
    stamp(9)
    spin_lds(F_DN, 1, "v3", "v5", sleep=False)
    loadB("v15", 2, 4096, 512, base=64)
    a("s_waitcnt lgkmcnt(0)")
    a("s_barrier")
    gemv(L_ACT7, 2, bbase=64)
    publish_pair(O_DN)
    arrive(F_PD, "v3", "v4")
    stamp(10)
    mark(15, "v3")
    dump_stamps(11)
    a("s_endpgm")

    def r1_block(uid, vz):
        a(f"s_sub_u32 s90, {S_W}, 4")
        a("s_lshr_b32 s91, s90, 1")
        a("s_and_b32 s94, s90, 1")
        a("s_lshl_b32 s99, s94, 8")
        a(f"s_lshl_b32 s100, {S_X}, 16")
        a("s_add_u32 s99, s99, s100")
        a(f"s_lshl_b32 s100, {S_KQ}, 14")
        a("s_add_u32 s99, s99, s100")
        a("s_lshl_b32 s100, s91, 13")
        a("s_add_u32 s99, s99, s100")
        a(f"s_add_u32 s99, s99, {W_O}")
        a(f"s_lshl_b32 s100, {S_X}, 11")
        a("s_lshl_b32 s90, s91, 10")
        a("s_add_u32 s100, s100, s90")
        a(f"s_lshl_b32 s90, {S_KQ}, 8")
        a("s_add_u32 s100, s100, s90")
        a(f"s_add_u32 s100, s100, {W_ST}")
        a("v_lshrrev_b32 v48, 5, v0")
        a("v_and_b32 v49, 31, v0")
        a("v_lshlrev_b32 v50, 12, v48")
        a("v_lshl_add_u32 v50, v49, 3, v50")
        a("v_and_b32 v51, 7, v0")
        a("v_lshl_add_u32 v51, v48, 3, v51")
        a("v_lshlrev_b32 v51, 4, v51")
        a(f"s_mul_i32 s91, s91, {APITCH}")
        a("s_lshl_b32 s94, s94, 7")
        a("s_add_u32 s91, s91, s94")
        a("v_bfe_u32 v52, v0, 4, 1")
        a("v_lshlrev_b32 v52, 6, v52")
        a("v_and_b32 v53, 15, v0")
        a("v_lshl_add_u32 v52, v53, 1, v52")
        a("v_lshl_add_u32 v52, v48, 5, v52")
        a("v_add_u32 v52, s91, v52")
        loads = [f"buffer_load_dwordx4 v[32:35], v51, {WSRD}, s100 offen sc1"]; tags = ["v33", "v35"]
        for i in range(8):
            loads.append(f"buffer_load_dwordx2 v[{16+2*i}:{17+2*i}], v50, {WSRD}, s99 offen offset:{512*i} sc1")
            tags.append(f"v{17+2*i}")
        if cfg.warm:
            for l in loads: a(l)
        after_own(F_PO, 4, vz, "v54", cfg.d_r1)
        stamp(7 if uid != "q" else 4)
        poll(loads, tags, "v54", sleep=cfg.rsl_l)
        if uid == "q": stamp(10)
        a("v_mov_b32 v55, v32")
        allreduce(["v55"], "v_max_f32", ["v56"], ["x1", "x2", "x4", "x32"])
        a(f"s_mov_b32 s94, {LOG2E:#x}")
        a("v_sub_f32 v56, v32, v55")
        for i in range(4): a(f"v_lshlrev_b32 v{36+2*i}, 16, v{16+2*i}"); a(f"v_and_b32 v{37+2*i}, 0xffff0000, v{16+2*i}")
        a("v_mul_f32 v56, s94, v56")
        a("v_exp_f32 v56, v56")
        for i in range(4, 8): a(f"v_lshlrev_b32 v{36+2*i}, 16, v{16+2*i}"); a(f"v_and_b32 v{37+2*i}, 0xffff0000, v{16+2*i}")
        a("v_mul_f32 v57, v56, v34")
        allreduce(["v57"], "v_add_f32", ["v58"], ["x1", "x2", "x4", "x32"])
        a("v_rcp_f32 v57, v57")
        a("v_mov_b32 v58, 0")
        a("v_mov_b32 v59, 0")
        a("v_mul_f32 v56, v56, v57")
        for i in range(8):
            a(f"v_fmac_f32_dpp v58, v56, v{36+2*i} row_newbcast:{i} row_mask:0xf bank_mask:0xf")
            a(f"v_fmac_f32_dpp v59, v56, v{37+2*i} row_newbcast:{i} row_mask:0xf bank_mask:0xf")
        a("v_permlane32_swap_b32 v58, v59")
        a("v_add_f32 v58, v58, v59")
        a("v_cvt_pk_bf16_f32 v58, v58, v58")
        a(f"ds_write_b16 v52, v58 offset:{L_ACT4}")
        a("s_waitcnt lgkmcnt(0)")

    a.label("L_gwave")
    a(f"s_cmp_eq_u32 {S_W}, 4")
    a("s_cbranch_scc1 L_slice")
    a(f"s_cmp_eq_u32 {S_W}, 7")
    a("s_cbranch_scc1 L_aux")

    SB = "s97"
    a("s_mov_b64 s[36:37], s[42:43]")
    a("v_lshlrev_b32 v2, 2, v0")
    a("v_mov_b32 v10, 1")
    a(f"s_mul_i32 s98, {SB}, {APITCH}")
    a("v_add_u32 v11, s98, v2")
    a("v_mov_b32 v19, 0")
    a("s_waitcnt vmcnt(0)")
    stamp(1)
    a("v_lshlrev_b32 v12, 16, v9")
    a("v_and_b32 v13, 0xffff0000, v9")
    a(f"s_mov_b32 s94, {LOG2E:#x}")
    for r in (12, 13): a(f"v_mul_f32 v{r+2}, s94, v{r}")
    for r in (12, 13): a(f"v_exp_f32 v{r+2}, -v{r+2}")
    for r in (12, 13): a(f"v_add_f32 v{r+2}, 1.0, v{r+2}")
    for r in (12, 13): a(f"v_rcp_f32 v{r+2}, v{r+2}")
    for r in (12, 13): a(f"v_mul_f32 v{r}, v{r}, v{r+2}")
    a("v_cvt_pk_bf16_f32 v12, v12, v13")
    a(f"ds_write_b32 v11, v12 offset:{L_ACT1}")
    arrive(F_1, "v19", "v10")
    get_tag()
    a("v_mov_b32 v3, 0")

    def ln_finish(mean, var, x0, x1, tmp):
        bf16r2(mean, var, mean, var, tmp)
        a(f"s_mov_b32 s94, {EPS:#x}")
        a(f"v_add_f32 {var}, s94, {var}")
        bf16r1(var, var)
        a(f"v_sqrt_f32 {var}, {var}")
        a(f"v_sub_f32 {x0}, {x0}, {mean}")
        a(f"v_sub_f32 {x1}, {x1}, {mean}")
        bf16r1(var, var)
        a(f"v_rcp_f32 {var}, {var}")
        bf16r2(x0, x1, x0, x1, tmp)
        a(f"v_mul_f32 {x0}, {x0}, {var}")
        a(f"v_mul_f32 {x1}, {x1}, {var}")
        bf16r2(x0, x1, x0, x1, tmp)

    def quarter_gather(chunkA, chunkB, qreg, pre=None, sample=False, hook=None):
        for (ch, sreg) in ((chunkA, "s90"), (chunkB, "s99")):
            sexpr(sreg, [(SB, "shl", 14), (qreg, "shl", 12)], W_MOD + ch*32768)
        loads = []; tags = []
        for i in range(4):
            loads.append(f"buffer_load_dwordx4 v[{16+4*i}:{19+4*i}], v1, {WSRD}, s90 offen offset:{1024*i} sc1")
            loads.append(f"buffer_load_dwordx4 v[{32+4*i}:{35+4*i}], v1, {WSRD}, s99 offen offset:{1024*i} sc1")
            tags += [f"v{17+4*i}", f"v{19+4*i}", f"v{33+4*i}", f"v{35+4*i}"]
        if pre: pre()
        poll(loads, tags, "v50", sample=sample, hook=hook)
        for (base, d0, d1) in ((16, "v14", "v15"), (32, "v48", "v49")):
            a(f"v_add_f32 {d0}, v{base}, v{base+4}")
            a(f"v_add_f32 {d1}, v{base+2}, v{base+6}")
            a(f"v_add_f32 v50, v{base+8}, v{base+12}")
            a(f"v_add_f32 v51, v{base+10}, v{base+14}")
            a(f"v_add_f32 {d0}, {d0}, v50")
            a(f"v_add_f32 {d1}, {d1}, v51")
            bf16r2(d0, d1, d0, d1, "v50")

    def modulate(x0, x1, sc0, sc1, sh0, sh1, dst, tmp):
        a(f"v_mul_f32 {x0}, {x0}, {sc0}")
        a(f"v_mul_f32 {x1}, {x1}, {sc1}")
        bf16r2(x0, x1, x0, x1, tmp)
        a(f"v_add_f32 {x0}, {x0}, {sh0}")
        a(f"v_add_f32 {x1}, {x1}, {sh1}")
        a(f"v_cvt_pk_bf16_f32 {dst}, {x0}, {x1}")

    a(f"s_cmp_eq_u32 {S_B}, 0")
    a("s_cbranch_scc1 L_q_qg")
    for i in range(4):
        a(f"v_lshlrev_b32 v{16+2*i}, 16, v{4+i}")
        a(f"v_and_b32 v{17+2*i}, 0xffff0000, v{4+i}")
    a("v_add_f32 v24, v16, v17")
    a("v_add_f32 v25, v18, v19")
    a("v_add_f32 v26, v20, v21")
    a("v_add_f32 v27, v22, v23")
    a("v_add_f32 v24, v24, v25")
    a("v_add_f32 v26, v26, v27")
    a("v_add_f32 v24, v24, v26")
    allreduce(["v24"], "v_add_f32", ["v28"], FULL)
    a(f"s_mov_b32 s94, {INV512:#x}")
    a("v_mul_f32 v24, s94, v24")
    for i in range(8): a(f"v_sub_f32 v{16+i}, v{16+i}, v24")
    a("v_mul_f32 v25, v16, v16")
    for i in range(1, 8): a(f"v_fmac_f32 v25, v{16+i}, v{16+i}")
    allreduce(["v25"], "v_add_f32", ["v28"], FULL)
    a("v_mul_f32 v25, s94, v25")
    a("v_lshlrev_b32 v12, 16, v8")
    a("v_and_b32 v13, 0xffff0000, v8")
    ln_finish("v24", "v25", "v12", "v13", "v28")
    if cfg.warm:
        a(f"s_lshr_b32 s90, {S_SPL}, 1")
        a(f"s_and_b32 s91, {S_SPL}, 1")
        sexpr("s99", [(S_X, "shl", 15), (SB, "shl", 14), ("s90", "shl", 12), ("s91", "shl", 9)], W_Q)
        a("s_mov_b32 exec_hi, 0")
        for i in range(4):
            a(f"buffer_load_dwordx4 v[{16+4*i}:{19+4*i}], v1, {WSRD}, s99 offen offset:{1024*i} sc1")
        a("s_mov_b32 exec_hi, -1")
    a(f"s_lshr_b32 s100, {S_SPL}, 1")
    quarter_gather(0, 1, "s100", pre=lambda: a(f"s_sleep {cfg.d_h}"), hook=(lambda: arrive(F_HI, "v3", "v10")) if cfg.wqsplit < 16 else None)
    a("v_add_f32 v48, 1.0, v48")
    a("v_add_f32 v49, 1.0, v49")
    bf16r2("v48", "v49", "v48", "v49", "v50")
    modulate("v12", "v13", "v48", "v49", "v14", "v15", "v16", "v50")
    a(f"ds_write_b32 v11, v16 offset:{L_ACT2}")
    arrive(F_2, "v3", "v10")
    stamp(2)
    a(f"s_lshr_b32 s90, {S_SPL}, 1")
    a(f"s_and_b32 s91, {S_SPL}, 1")
    sexpr("s99", [(S_X, "shl", 15), (SB, "shl", 14), ("s90", "shl", 12), ("s91", "shl", 9)], W_Q)
    sexpr("s100", [(S_X, "shl", 12), (SB, "shl", 11), (S_SPL, "shl", 8)], W_QF)
    a("v_lshlrev_b32 v54, 3, v0")
    a("s_mov_b32 exec_hi, 0")
    loads = []; tags = []
    for i in range(4):
        loads.append(f"buffer_load_dwordx4 v[{16+4*i}:{19+4*i}], v1, {WSRD}, s99 offen offset:{1024*i} sc1")
        tags += [f"v{17+4*i}", f"v{19+4*i}"]
    get_mode("v3", "v50")
    after_own(F_PQ, 4, "v3", "v50", cfg.d_q)
    poll(loads, tags, "v50", sleep=0)
    a("v_add_f32 v48, v16, v20")
    a("v_add_f32 v49, v18, v22")
    a("v_add_f32 v50, v24, v28")
    a("v_add_f32 v51, v26, v30")
    a("v_add_f32 v48, v48, v50")
    a("v_add_f32 v49, v49, v51")
    a(f"v_mov_b32 v53, {S_TAG}")
    a("v_cvt_pk_bf16_f32 v52, v48, v49")
    store_loc(f"buffer_store_dwordx2 v[52:53], v54, {WSRD}, s100 offen")
    a("s_mov_b64 exec, -1")
    arrive(F_QF, "v3", "v10")
    a.label("L_q_qg")
    sexpr("s90", [(S_X, "shl", 12), (S_BT, "shl", 11), (SB, "shl", 10)], W_QF)
    a("v_lshrrev_b32 v54, 5, v0")
    a(f"v_mul_u32_u24 v54, {APITCH}, v54")
    a("v_and_b32 v55, 31, v0")
    a("v_lshl_add_u32 v54, v55, 3, v54")
    a(f"s_mul_i32 s100, {SB}, {2*APITCH}")
    a("v_add_u32 v54, s100, v54")
    ldA = f"buffer_load_dwordx4 v[16:19], v1, {WSRD}, s90 offen sc1"
    ldB = f"buffer_load_dwordx4 v[20:23], v1, {WSRD}, s90 offen sc1"
    a(f"s_cmp_eq_u32 {S_B}, 0")
    a("s_cbranch_scc1 L_q_qA")
    after_own(F_QF, 2, "v3", "v50", cfg.d_q)
    a("s_branch L_q_qP")
    a.label("L_q_qA")
    if cfg.quiet: spin_lds(F_LC, cfg.quiet, "v3", "v50")
    a.label("L_q_qP")
    a(ldA)
    a(f"s_sleep {cfg.qsl2}")
    a.label("L_q_loop")
    a(ldB)
    a("s_waitcnt vmcnt(1)")
    a(f"v_xor_b32 v50, {S_TAG}, v17")
    a(f"v_bitop3_b32 v50, v50, v19, {S_TAG} bitop3:0xf6")
    a("v_cmp_ne_u32 vcc, 0, v50")
    a("s_cbranch_vccz L_q_gotA")
    timeout()
    a(ldA)
    a("s_waitcnt vmcnt(1)")
    a(f"v_xor_b32 v50, {S_TAG}, v21")
    a(f"v_bitop3_b32 v50, v50, v23, {S_TAG} bitop3:0xf6")
    a("v_cmp_ne_u32 vcc, 0, v50")
    a("s_cbranch_vccnz L_q_loop")
    a("v_mov_b32 v24, v20")
    a("v_mov_b32 v25, v22")
    a("s_branch L_q_got")
    a.label("L_q_gotA")
    a("v_mov_b32 v24, v16")
    a("v_mov_b32 v25, v18")
    a.label("L_q_got")
    a(f"ds_write_b64 v54, v[24:25] offset:{L_Q}")
    arrive(F_3, "v3", "v10")
    stamp(3)
    a("s_waitcnt vmcnt(0)")
    if cfg.g_late: gate_lc(cfg.g_late, cfg.g_late * NK_B // NK_A, "v3", "v50")
    sexpr("s90", [(SB, "shl", 11), (S_KQ, "shl", 9)], W_MODF + 3*4096)
    a("s_add_u32 s99, s90, 4096")
    a("v_lshlrev_b32 v54, 3, v0")
    if cfg.warm:
        a(f"s_mul_i32 s94, {S_KQ}, 448")
        sexpr("s24", [(S_X, "shl", 15), (SB, "shl", 13), ("s94", "shl", 0)], W_GU, tmp="s25")
        a("s_add_u32 s25, s24, 4096")
        a("s_add_u32 s26, s24, 16384")
        a("s_add_u32 s27, s24, 20480")
        for wh in range(2):
            for k6 in range(4):
                sr = [["s24", "s25"], ["s26", "s27"]][wh][k6 >> 1]
                rb = 20 + 8*wh + 2*k6
                a(f"buffer_load_dwordx2 v[{rb}:{rb+1}], v54, {WSRD}, {sr} offen offset:{2048*(k6&1)} sc1")
        sexpr("s24", [(S_X, "shl", 10), (SB, "shl", 9)], W_X1S)
        sexpr("s25", [(S_X, "shl", 12), (SB, "shl", 11), (S_KQ, "shl", 9)], W_X1P)
        a(f"buffer_load_dwordx2 v[36:37], v54, {WSRD}, s24 offen sc1")
        a(f"buffer_load_dwordx2 v[38:39], v54, {WSRD}, s25 offen sc1")
    poll([f"buffer_load_dwordx2 v[16:17], v54, {WSRD}, s90 offen sc1",
          f"buffer_load_dwordx2 v[18:19], v54, {WSRD}, s99 offen sc1"], ["v17", "v19"], "v50", sleep=8)
    a("v_lshlrev_b32 v66, 16, v16")
    a("v_and_b32 v67, 0xffff0000, v16")
    a("v_lshlrev_b32 v48, 16, v18")
    a("v_and_b32 v49, 0xffff0000, v18")
    a("v_add_f32 v48, 1.0, v48")
    a("v_add_f32 v49, 1.0, v49")
    bf16r2("v64", "v65", "v48", "v49", "v50")
    r1_block("q", "v3")
    stamp(5)
    a("s_barrier")
    sexpr("s99", [(S_X, "shl", 10), (SB, "shl", 9)], W_X1S)
    sexpr("s90", [(S_X, "shl", 12), (SB, "shl", 11), (S_KQ, "shl", 9)], W_X1P)
    a("v_lshlrev_b32 v16, 3, v0")
    a("v_and_b32 v17, 31, v0")
    a("v_lshlrev_b32 v17, 4, v17")
    after_own(F_PX, 1, "v3", "v50", cfg.d_x1)
    stamp(8)
    poll([f"buffer_load_dwordx4 v[24:27], v17, {WSRD}, s99 offen sc1",
          f"buffer_load_dwordx2 v[20:21], v16, {WSRD}, s90 offen sc1"], ["v21", "v25", "v27"], "v50", sleep=cfg.rsl_l)
    stamp(9)
    allreduce(["v24", "v26"], "v_add_f32", ["v28", "v29"], ["x1", "x2", "x4", "x8", "x16"])
    a(f"s_mov_b32 s94, {INV512:#x}")
    a("v_mul_f32 v24, s94, v24")
    a("v_mul_f32 v26, s94, v26")
    a("v_lshlrev_b32 v12, 16, v20")
    a("v_fma_f32 v26, -v24, v24, v26")
    a("v_and_b32 v13, 0xffff0000, v20")
    a("v_max_f32 v26, 0, v26")
    ln_finish("v24", "v26", "v12", "v13", "v30")
    modulate("v12", "v13", "v64", "v65", "v66", "v67", "v16", "v30")
    a(f"ds_write_b32 v11, v16 offset:{L_ACT6}")
    a(f"s_mul_i32 s94, {S_KQ}, 448")
    sexpr("s90", [(S_X, "shl", 15), (SB, "shl", 13), ("s94", "shl", 0)], W_GU, tmp="s99")
    a("s_add_u32 s94, s90, 4096")
    a("s_add_u32 s99, s90, 16384")
    a("s_add_u32 s100, s90, 20480")
    a("s_waitcnt lgkmcnt(0)")
    stamp(6)
    a("s_barrier")
    a("v_lshlrev_b32 v16, 3, v0")
    a("v_mov_b32 v40, 0")
    a("v_lshlrev_b32 v17, 1, v0")
    a("v_add_u32 v17, s98, v17")
    a("s_mov_b32 exec_lo, -1")
    a("s_mov_b32 exec_hi, 0x00ffffff")
    loads = []; tags = []
    for wh in range(2):
        for k6 in range(4):
            sr = [["s90", "s94"], ["s99", "s100"]][wh][k6 >> 1]
            rb = 20 + 8*wh + 2*k6
            loads.append(f"buffer_load_dwordx2 v[{rb}:{rb+1}], v16, {WSRD}, {sr} offen offset:{2048*(k6&1)} sc1")
            tags.append(f"v{rb+1}")
    after_own(F_PG, 4, "v3", "v50", cfg.d_gu)
    poll(loads, tags, "v50", sleep=cfg.rsl_l)
    a("v_add_f32 v36, v20, v22")
    a("v_add_f32 v37, v24, v26")
    a("v_add_f32 v38, v28, v30")
    a("v_add_f32 v39, v32, v34")
    a("v_add_f32 v36, v36, v37")
    a("v_add_f32 v38, v38, v39")
    bf16r2("v36", "v38", "v36", "v38", "v50")
    a("v_mul_f32 v36, v36, v38")
    a("v_cvt_pk_bf16_f32 v40, v36, v36")
    a("s_mov_b64 exec, -1")
    a(f"ds_write_b16 v17, v40 offset:{L_ACT7}")
    a("s_waitcnt lgkmcnt(0)")
    stamp(7)
    a("s_barrier")
    dump_stamps(11)
    a("s_endpgm")

    a.label("L_slice")
    srd(48, 38, 2048)
    a("v_lshlrev_b32 v7, 4, v0")
    a("v_and_b32 v1, 3, v0")
    a("v_bfe_u32 v2, v0, 4, 1")
    a("v_bfe_u32 v4, v0, 3, 1")
    a("v_lshrrev_b32 v5, 5, v0")
    a("v_lshlrev_b32 v6, 2, v1")
    a("v_lshl_add_u32 v6, v2, 1, v6")
    a("v_add_u32 v6, v6, v4")
    a("v_lshlrev_b32 v8, 10, v5")
    a("v_lshl_add_u32 v8, v6, 1, v8")
    a(f"s_lshl_b32 s90, {S_LOC}, 5")
    a("buffer_load_ushort v9, v8, s[44:47], s90 offen")
    a("v_lshlrev_b32 v10, 4, v5")
    a("v_add_u32 v10, v10, v6")
    a("v_lshlrev_b32 v10, 2, v10")
    a("v_lshlrev_b32 v11, 1, v1")
    a("v_add_u32 v11, v11, v2")
    a("v_lshlrev_b32 v12, 11, v5")
    a("v_lshl_add_u32 v98, v11, 3, v12")
    a("v_lshlrev_b32 v99, 9, v5")
    a("v_lshlrev_b32 v12, 10, v5")
    a("v_lshl_add_u32 v97, v11, 2, v12")
    sexpr("s22", [(S_X, "shl", 12), (S_LOC, "shl", 6)], W_X1P)
    sexpr("s23", [(S_X, "shl", 10), (S_LOC, "shl", 4)], W_X1S)
    a(f"s_lshl_b32 s24, {S_LOC}, 5")
    a(f"s_lshl_b32 s17, {S_LOC}, 12")
    a("v_cmp_eq_u32 s[26:27], 1, v4")
    a("v_mov_b32 v100, 0x3f80")
    a("v_mov_b32 v101, 0x3f800000")
    a("s_waitcnt vmcnt(0)")
    get_tag()
    a("v_mov_b32 v3, 0")
    a("v_lshlrev_b32 v102, 16, v9")
    get_mode("v3", "v20")
    stamp(1)

    def part_loads(base, rb0=16, setup=True):
        if setup: a(f"s_add_u32 s20, s17, {base}")
        loads = []; tags = []
        for i in range(4):
            rb = rb0 + 4*i
            loads.append(f"buffer_load_dwordx4 v[{rb}:{rb+3}], v7, {WSRD}, s20 offen offset:{1024*i} sc1")
            tags += [f"v{rb+1}", f"v{rb+3}"]
        return loads, tags
    def part_loads_atomic(base):
        a(f"s_add_u32 s20, s17, {base}")
        loads = []; tags = []
        for r in range(16, 32): loads.append(f"v_mov_b32 v{r}, 0")
        for i in range(4):
            rb = 16 + 4*i
            for hh in range(2):
                loads.append(f"buffer_atomic_add_x2 v[{rb+2*hh}:{rb+2*hh+1}], v7, {WSRD}, s20 offen offset:{1024*i + 8*hh} sc0 sc1")
            tags += [f"v{rb+1}", f"v{rb+3}"]
        return loads, tags
    def part_dot(rb0):
        for b in range(2):
            for (k, (off, sel)) in enumerate(((0, "v100"), (0, "v101"), (2, "v100"), (2, "v101"))):
                a(f"v_dot2_f32_bf16 v{32+4*b+k}, v{rb0+8*b+off}, {sel}, 0")
        for b in range(2):
            for (k, (off, sel)) in enumerate(((0, "v100"), (0, "v101"), (2, "v100"), (2, "v101"))):
                a(f"v_dot2_f32_bf16 v{32+4*b+k}, v{rb0+4+8*b+off}, {sel}, v{32+4*b+k}")
    def part_sum(dot=True):
        if dot: part_dot(16)
        for c in range(4): a(f"v_permlane32_swap_b32 v{32+c}, v{36+c}")
        for c in range(4): a(f"v_add_f32 v{32+c}, v{32+c}, v{36+c}")
        a("v_permlane16_swap_b32 v32, v34")
        a("v_permlane16_swap_b32 v33, v35")
        a("v_add_f32 v32, v32, v34")
        a("v_add_f32 v33, v33, v35")
        a("v_cndmask_b32 v36, v32, v33, s[26:27]")
        a("v_cndmask_b32 v37, v33, v32, s[26:27]")
        a("v_add_f32_dpp v36, v37, v36 row_ror:8 row_mask:0xf bank_mask:0xf")
        a("v_add_f32_dpp v40, v36, v36 row_shl:4 row_mask:0xf bank_mask:0x5")
        a("v_add_f32_dpp v40, v36, v36 row_shr:4 row_mask:0xf bank_mask:0xa")
    def resid(gate):
        bf16r1("v40", "v40")
        a(f"v_mul_f32 v40, v40, {gate}")
        bf16r1("v40", "v40")
        a("v_add_f32 v102, v102, v40")
        bf16r1("v102", "v102")
    def make_pair(dst):
        a("v_mov_b32_dpp v41, v102 row_ror:8 row_mask:0xf bank_mask:0xf")
        a(f"v_cvt_pk_bf16_f32 {dst}, v102, v41")
    PUBM = "0x000f000f"

    l1, t1 = part_loads(W_A4)
    spin_lds(F_MB2, 4, "v3", "v15")
    a("v_lshrrev_b32 v16, 4, v0")
    a("v_and_b32 v17, 15, v0")
    a(f"v_mul_u32_u24 v18, {PPITCH}, v16")
    a("v_lshl_add_u32 v18, v17, 2, v18")
    a("v_lshlrev_b32 v19, 2, v16")
    a("v_mov_b32 v20, 0")
    a("v_mov_b32 v21, 0x3f803f80")
    for w in range(4): a(f"ds_read_b32 v{24+w}, v19 offset:{L_MX+16*w}")
    for i in range(NK_B // 32): a(f"ds_read_b32 v{32+i}, v18 offset:{L_P+64*i}")
    a(f"s_cmp_lg_u32 {S_B}, 0")
    a("s_cbranch_scc1 L_sl_stB")
    for i in range(NK_B // 32, NK_A // 32): a(f"ds_read_b32 v{32+i}, v18 offset:{L_P+64*i}")
    a("s_waitcnt lgkmcnt(0)")
    for i in range(NK_B // 32, NK_A // 32): a(f"v_dot2_f32_bf16 v20, v{32+i}, v21, v20")
    a.label("L_sl_stB")
    a("s_waitcnt lgkmcnt(0)")
    for i in range(NK_B // 32): a(f"v_dot2_f32_bf16 v20, v{32+i}, v21, v20")
    allreduce(["v20"], "v_add_f32", [], ["x1", "x2", "x4", "x8"])
    a("v_max3_f32 v24, v24, v25, v26")
    a("v_max_f32 v24, v24, v27")
    a(f"v_mov_b32 v25, {S_TAG}")
    a("v_mov_b32 v26, v20")
    a(f"v_mov_b32 v27, {S_TAG}")
    a("v_lshlrev_b32 v22, 8, v16")
    sexpr("s25", [(S_X, "shl", 11), (S_BT, "shl", 10), (S_SP, "shl", 4)], W_ST)
    a("s_mov_b32 exec_lo, 0x00010001")
    a("s_mov_b32 exec_hi, 0x00010001")
    store_loc(f"buffer_store_dwordx4 v[24:27], v22, {WSRD}, s25 offen")
    a("s_mov_b64 exec, -1")
    spin_lds(F_GA, 1, "v3", "v15")
    a(f"ds_read_b32 v103, v10 offset:{L_GA}")
    a(f"ds_read_b32 v104, v10 offset:{L_GB}")
    a("s_waitcnt lgkmcnt(0)")
    r1_block("s", "v3")
    a(f"v_mov_b32 v43, {S_TAG}")
    a(f"v_mov_b32 v45, {S_TAG}")
    a(f"v_mov_b32 v47, {S_TAG}")
    a("s_barrier")
    after_own(F_PA, 4, "v3", "v15", cfg.d_s5)
    stamp(2)
    if cfg.dbl:
        poll2(lambda rb: part_loads(0, rb, setup=False), "v15", "s5", part_dot)
        stamp(3)
        part_sum(dot=False)
    else:
        poll(l1, t1, "v15")
        stamp(3)
        part_sum()
    resid("v103")
    make_pair("v42")
    a("v_mul_f32 v46, v102, v102")
    a("v_mov_b32 v44, v102")
    a(f"s_mov_b32 exec_lo, {PUBM}")
    a(f"s_mov_b32 exec_hi, {PUBM}")
    store_loc(f"buffer_store_dwordx2 v[42:43], v98, {WSRD}, s22 offen")
    a("s_mov_b64 exec, -1")
    allreduce(["v44", "v46"], "v_add_f32", ["v48", "v49"], ["x1", "x2", "r8", "x16"])
    a("s_mov_b32 exec_lo, 1")
    a("s_mov_b32 exec_hi, 1")
    store_loc(f"buffer_store_dwordx4 v[44:47], v99, {WSRD}, s23 offen")
    a("s_mov_b64 exec, -1")
    a("v_mov_b32 v15, 1")
    arrive(F_PX, "v3", "v15")
    stamp(4)
    mark(14, "v3")
    a(f"s_and_b32 s90, {S_LOC}, 7")
    a(f"s_cmp_lg_u32 s90, {S_X}")
    a("s_cbranch_scc1 L_slice_nf")
    a("s_barrier")
    a("s_barrier")
    l1, t1 = part_loads_atomic(W_DN) if cfg.atom8 else part_loads(W_DN)
    after_own(F_PD, 4, "v3", "v15", cfg.d_s8)
    if cfg.dbl8 and not cfg.atom8:
        a("s_waitcnt vmcnt(0)")
        poll2(lambda rb: part_loads(0, rb, setup=False), "v15", "s8", part_dot)
        part_sum(dot=False)
    else:
        poll(l1, t1, "v15")
        part_sum()
    resid("v104")
    make_pair("v42")
    a(f"s_mov_b32 exec_lo, {PUBM}")
    a(f"s_mov_b32 exec_hi, {PUBM}")
    a("buffer_store_dword v42, v97, s[48:51], s24 offen")
    a(f"s_cmp_lg_u32 {S_WG}, 0")
    a("s_cbranch_scc1 L_slice_end")
    a("s_mov_b64 exec, 1")
    a(f"v_mov_b32 v24, {S_EP}")
    a("v_mov_b32 v21, 0")
    a(f"buffer_store_dword v24, v21, {WSRD}, 0 offen sc1")
    a.label("L_slice_end")
    if cfg.probe == 1:
        a("s_sleep 94")
        a("s_sleep 94")
    if cfg.probe >= 10:
        a(f"ds_read_b32 v20, v3 offset:{L_PRB}")
        a("s_waitcnt lgkmcnt(0)")
        a("v_readfirstlane_b32 s22, v20")
        a("s_mov_b32 s24, 100000")
        a.label("L_probe")
        a("s_memrealtime s[20:21]")
        a("s_waitcnt lgkmcnt(0)")
        a("s_sub_u32 s24, s24, 1")
        a("s_cbranch_scc1 L_probe_e")
        a("s_sub_u32 s23, s20, s22")
        a("s_cmp_lt_u32 s23, 2000")
        a("s_cbranch_scc1 L_probe")
        a.label("L_probe_e")
    if cfg.probe == 3:
        a("s_add_u32 s22, s62, 2500")
        a.label("L_probe")
        a("s_memrealtime s[20:21]")
        a("s_waitcnt lgkmcnt(0)")
        a("s_sub_u32 s23, s20, s22")
        a("s_cmp_lt_i32 s23, 0")
        a("s_cbranch_scc1 L_probe")
    if cfg.probe == 2:
        a("s_memrealtime s[20:21]")
        a("s_waitcnt lgkmcnt(0)")
        a("s_add_u32 s22, s20, 500")
        a.label("L_probe")
        a("s_memrealtime s[20:21]")
        a("s_waitcnt lgkmcnt(0)")
        a("s_sub_u32 s23, s20, s22")
        a("s_cmp_lt_i32 s23, 0")
        a("s_cbranch_scc1 L_probe")
    a("s_mov_b64 exec, -1")
    stamp(5)
    dump_stamps(6, final=True)
    a("s_endpgm")
    a.label("L_slice_nf")
    a("s_barrier")
    a("s_barrier")
    dump_stamps(5, final=True)
    a("s_endpgm")

    a.label("L_aux")
    srd(44, 28, 512*1792*2)
    srd(48, 30, 512*1792*2)
    srd(52, 32, 1792*512*2)
    a("v_mov_b32 v10, 1")
    sexpr("s18", [(S_X, "mul", 224*1024), (S_KQ, "mul", 56*1024), (S_CB, "shl", 7)])
    sexpr("s19", [(S_KQ, "mul", 128*3584), (S_X, "mul", 448), (S_CB, "shl", 6)])
    a("s_waitcnt vmcnt(0)")
    get_tag()
    strip_voff(3584, "v64")
    unit_voffs(pitch_shift=10, d0="v66", d1="v67")
    a("v_mov_b32 v3, 0")
    stamp(1)

    if cfg.g_piece:
        Lq = a.newlabel("Lgx")
        a(f"s_cmp_lg_u32 {S_B}, 0")
        a(f"s_cbranch_scc1 {Lq}")
        spin_lds(F_LC, cfg.g_piece, "v3", "v50")
        a.label(Lq)
    if cfg.local == 2:
        L = a.newlabel("Lxc"); E = a.newlabel("Lxce")
        srd(60, 40, 256)
        a(f"s_lshl_b32 s91, {S_X}, 5")
        a("s_add_u32 s91, s91, 8")
        a("v_mov_b32 v18, s91")
        a("s_getreg_b32 s90, hwreg(HW_REG_XCC_ID)")
        a("s_and_b32 s90, s90, 7")
        a("s_mul_i32 s90, s90, 6")
        a("s_lshl_b64 s[26:27], 1, s90")
        a("s_mov_b64 exec, 1")
        a.label(L)
        a("buffer_load_dwordx2 v[20:21], v18, s[60:63], 0 offen sc1")
        a("s_waitcnt vmcnt(0)")
        a("v_readfirstlane_b32 s20, v20")
        a("v_readfirstlane_b32 s21, v21")
        a("s_mov_b64 s[22:23], s[20:21]")
        a("s_mov_b32 s90, 0")
        for k in range(8):
            a("s_and_b32 s91, s22, 63")
            a("s_add_u32 s90, s90, s91")
            if k < 7: a("s_lshr_b64 s[22:23], s[22:23], 6")
        a("s_cmp_ge_u32 s90, 32")
        a(f"s_cbranch_scc1 {E}")
        timeout()
        a("s_sleep 2")
        a(f"s_branch {L}")
        a.label(E)
        a("s_lshl_b64 s[22:23], s[26:27], 5")
        a("s_cmp_eq_u64 s[20:21], s[22:23]")
        a("s_cselect_b32 s90, 1, 2")
        a("v_mov_b32 v16, s90")
        a(f"ds_write_b32 v3, v16 offset:{F_LM}")
        a("s_mov_b64 exec, -1")
    stamp(2)
    a(f"s_cmp_lg_u32 {S_B}, 0")
    a("s_cbranch_scc1 L_aux_ga")
    a(f"s_cmp_ge_u32 {S_SPL}, 16")
    a("s_cbranch_scc1 L_aux_ga")
    a(f"s_lshr_b32 s90, {S_X}, 1")
    a(f"s_and_b32 s91, {S_X}, 1")
    a(f"s_lshr_b32 s22, {S_SPL}, 2")
    a(f"s_and_b32 s23, {S_SPL}, 3")
    sexpr("s20", [("s90", "shl", 15), ("s91", "shl", 14), ("s22", "shl", 12), ("s23", "shl", 8)], W_MOD + 2*32768)
    sexpr("s21", [("s90", "shl", 12), ("s91", "shl", 11), (S_SPL, "shl", 7)], W_MODF + 2*4096)
    a("v_lshlrev_b32 v18, 3, v0")
    a("s_mov_b32 exec_hi, 0")
    loads = []; tags = []
    for i in range(4):
        loads.append(f"buffer_load_dwordx2 v[{40+2*i}:{41+2*i}], v18, {WSRD}, s20 offen offset:{1024*i} sc1")
        tags.append(f"v{41+2*i}")
    if cfg.g_piece: spin_lds(F_LC, cfg.g_piece, "v3", "v50")
    poll(loads, tags, "v60", sleep=6, sample=(not cfg.g_piece))
    a("v_add_f32 v40, v40, v42")
    a("v_add_f32 v44, v44, v46")
    a("v_add_f32 v40, v40, v44")
    a("v_lshlrev_b32 v18, 2, v0")
    a(f"v_mov_b32 v43, {S_TAG}")
    a("v_mov_b32_dpp v42, v40 quad_perm:[1,0,3,2] row_mask:0xf bank_mask:0xf")
    a("s_mov_b32 exec_lo, 0x55555555")
    a("v_cvt_pk_bf16_f32 v42, v40, v42")
    a(f"buffer_store_dwordx2 v[42:43], v18, {WSRD}, s21 offen sc1")
    a("s_mov_b64 exec, -1")
    a.label("L_aux_ga")
    if cfg.g_late: gate_lc(cfg.g_late, cfg.g_late * NK_B // NK_A, "v3", "v50")
    sexpr("s20", [(S_LOC, "shl", 6)], W_MODF + 2*4096)
    a(f"s_add_u32 s21, s20, {3*4096}")
    a("v_bfe_u32 v16, v0, 3, 1")
    a("v_and_b32 v17, 7, v0")
    a("v_lshlrev_b32 v18, 11, v16")
    a("v_lshl_add_u32 v18, v17, 3, v18")
    a("v_and_b32 v19, 15, v0")
    a("v_lshlrev_b32 v19, 3, v19")
    a("s_mov_b64 exec, 0xffff")
    poll([f"buffer_load_dwordx2 v[40:41], v18, {WSRD}, s20 offen sc1",
          f"buffer_load_dwordx2 v[42:43], v18, {WSRD}, s21 offen sc1"], ["v41", "v43"], "v60", sleep=8)
    a("v_lshlrev_b32 v44, 16, v40")
    a("v_and_b32 v45, 0xffff0000, v40")
    a("v_lshlrev_b32 v46, 16, v42")
    a("v_and_b32 v47, 0xffff0000, v42")
    a(f"ds_write_b64 v19, v[44:45] offset:{L_GA}")
    a(f"ds_write_b64 v19, v[46:47] offset:{L_GB}")
    a("s_mov_b64 exec, -1")
    arrive(F_GA, "v3", "v10")
    r1_block("a", "v3")
    a("s_barrier")
    if cfg.bearly:
        a(f"s_cmp_lg_u32 {S_B}, 0")
        a("s_cbranch_scc1 L_aux_lateE")
    if cfg.guwo:
        a(f"s_cmp_eq_u32 {S_B}, 0")
        a("s_cbranch_scc1 L_aux_lateE")
    spin_lds(F_PA, 4, "v3", "v50", sleep=False)
    a(f"s_cmp_eq_u32 {S_CB}, 7")
    a("s_cbranch_scc1 L_aux_gu_e")
    a(f"s_mov_b32 m0, {L_G}")
    a("s_mov_b32 s99, 8")
    a.label("L_aux_gu")
    a("buffer_load_dwordx4 v64, s[44:47], s19 offen nt lds")
    a("s_add_u32 m0, m0, 0x2000")
    a("s_nop 0")
    a("buffer_load_dwordx4 v64, s[48:51], s19 offen nt lds")
    a("s_sub_u32 m0, m0, 0x1c00")
    a(f"s_add_u32 s19, s19, {16*3584}")
    a("s_sub_u32 s99, s99, 1")
    a("s_cmp_lg_u32 s99, 0")
    a("s_cbranch_scc1 L_aux_gu")
    a.label("L_aux_gu_e")
    a("s_waitcnt vmcnt(0)")
    arrive(F_LATE, "v3", "v10")
    if not cfg.dnwo:
        spin_lds(F_PX, 1, "v3", "v50", sleep=False)
        a(f"s_mov_b32 m0, {L_DN}")
        a("s_nop 0")
        for i in range(8):
            a(f"buffer_load_dwordx4 v{66 + (i&1)}, s[52:55], s18 offen nt lds")
            a("s_add_u32 m0, m0, 0x400")
            a("s_add_u32 s18, s18, 0x2000")
        a("s_waitcnt vmcnt(0)")
        arrive(F_DN, "v3", "v10")
    a.label("L_aux_lateE")
    stamp(3)
    a("s_barrier")
    a("s_barrier")
    dump_stamps(4)
    a("s_endpgm")

    a.label("L_abort")
    a("s_mov_b64 exec, 1")
    a("v_mov_b32 v1, 0")
    a(f"s_lshl_b32 s90, {S_WG}, 16")
    a("s_or_b32 s90, s90, s1") if cfg.site else None
    a("v_mov_b32 v2, s90")
    a(f"s_and_b32 s90, {S_W}, 1")
    a("s_lshl_b32 s90, s90, 2")
    a("v_mov_b32 v1, s90")
    a("v_or_b32 v2, 0xde000000, v2")
    a("s_mov_b32 s44, s40")
    a("s_and_b32 s45, s41, 0xffff")
    a("s_mov_b32 s46, 256")
    a("s_mov_b32 s47, 0x20000")
    a("buffer_store_dword v2, v1, s[44:47], 0 offen")
    a.label("L_end")
    a("s_endpgm")

    hdr = open(f"cdna_kernels/{NAME}.s.ref").read().split("; Override launch")[0]
    out = hdr
    out += f"; @launch grid=(256,1,1) block=(576,1,1) lds={L_TOTAL}\n"
    out += '.amdgcn_target "amdgcn-amd-amdhsa--gfx950"\n.text\n'
    out += f".globl {NAME}_kernel\n.p2align 8\n.type {NAME}_kernel,@function\n"
    out += a.text()
    out += f""".section .rodata,"a"
.p2align 6
.amdhsa_kernel {NAME}_kernel
  .amdhsa_next_free_vgpr 128
  .amdhsa_next_free_sgpr 102
  .amdhsa_accum_offset 128
  .amdhsa_group_segment_fixed_size 0
  .amdhsa_kernarg_size 112
  .amdhsa_user_sgpr_count 2
  .amdhsa_user_sgpr_kernarg_segment_ptr 1
  .amdhsa_system_sgpr_workgroup_id_x 1
.end_amdhsa_kernel
"""
    return out

if __name__ == "__main__":
    cfg = Cfg()
    outp = sys.argv[1]
    for arg in sys.argv[2:]:
        k, v = arg.split("=")
        assert hasattr(cfg, k), k
        setattr(cfg, k, int(v))
    open(outp, "w").write(gen(cfg))
    print("wrote", outp)
```

```python
import sys
from asmlib import Asm

NAME = "adaLN_cond__sliding_block_cached__glu_gated_bilinear__decode"

class Cfg:
    D = 32
    DA = 28
    DA1 = 0
    stamps = 0
    spin = 1 << 22
    rsl = 1
    local = 2
    touch = 1
    dq = 0
    wolate = 0
    kpre = 0
    kflag = 0
    early = 0
    dbl8 = 1
    cwarm = 0
    wqsplit = 16
    guwo = 0
    dnwo = 1
    bearly = 0
    mprio = 1
    warm = 1
    dbl = 1
    stag = 6
    rsl_l = 0
    g_piece = 16
    g_late = 100
    slow = 0
    nwait = 1
    qsl2 = 6
    wq1 = 4
    quiet = 40
    prio = 0
    qsl = 4
    kstart = 1
    d_h = 4
    d_q = 1
    d_r1 = 1
    d_s5 = 8
    d_x1 = 1
    d_gu = 1
    d_s8 = 6
    atom8 = 0
    probe = 0
    site = 0

(F_LC, F_1, F_2, F_3, F_EC, F_KC, F_MB1, F_MB2, F_LATE, F_PO, F_PA, F_PX, F_PG, F_PD,
 F_PM, F_PQ, F_QF, F_WQ, F_WOL, F_MRL, F_LM, F_GA, F_DN, F_HI) = [4*i for i in range(24)]
L_MX = 128; L_LS = 192; L_ZERO = 256
L_ACT1 = 768; L_ACT2 = 1344; L_ACT4 = 1920; L_ACT6 = 2496; L_ACT7 = 3072
L_PRB = 7424
L_GA = 7168; L_GB = 7296
L_Q = 3648
L_P = 4736
L_X = 8192; L_C = 10240
L_K = 12288; L_V = L_K + 73728; L_TOTAL = L_V + 73728; L_MR = L_V + 57344
NK_A = 288; NK_B = 160
L_MODB = L_K; L_WQ = L_V
L_WO = L_K; L_G = L_K + 16384; L_U = L_K + 24576; L_DN = L_K + 32768
L_WO_B = L_K + 40960; L_G_B = L_K + 57344; L_DN_B = L_V + 65536
APITCH = 272; PPITCH = 592

W_EPOCH = 0
W_MOD = 0x1000
W_MODF = 0x38000
W_Q = 0x40000
W_QF = 0x88000
W_ST = 0x80000
W_O = 0x90000
W_A4 = 0x110000
W_X1P = 0x150000
W_X1S = 0x158000
W_GU = 0x160000
W_DN = 0x1A0000
W_STAMP = 0x200000
W_USED = 0x300000

LOG2E = 0x3fb8aa3b
SCALE = 0x3db504f3
EPS = 0x3727c5ac
INV512 = 0x3b000000

S_WG, S_W, S_X, S_LOC, S_B, S_SPL, S_KQ, S_CB, S_TAG, S_SPIN = "s2", "s3", "s4", "s5", "s6", "s7", "s8", "s9", "s10", "s11"
S_U = "s7"
S_BT = "s86"
S_SP = "s87"
WSRD = "s[12:15]"
S_EP = "s89"
S_LM = "s88"
PX = "s[42:43]"
S_PH = "s101"
KB_B = 0

def gen(cfg):
    a = Asm()
    D = cfg.D

    def srd(dst, plo, size):
        a(f"s_mov_b32 s{dst}, s{plo}")
        a(f"s_and_b32 s{dst+1}, s{plo+1}, 0xffff")
        a(f"s_mov_b32 s{dst+2}, {size}")
        a(f"s_mov_b32 s{dst+3}, 0x20000")

    def stamp(k):
        if cfg.stamps == 1 or (cfg.stamps == 2 and k == 0): a(f"s_memrealtime s[{64+2*k}:{65+2*k}]")

    def mark(pid, vz):
        if cfg.probe == pid:
            a("s_memrealtime s[62:63]")
            a("s_waitcnt lgkmcnt(0)")
            a("v_mov_b32 v127, s62")
            a(f"ds_max_u32 {vz}, v127 offset:{L_PRB}")

    def dump_stamps(n, final=False):
        if not cfg.stamps: return
        if cfg.stamps == 2:
            if not final: return
            a("s_memrealtime s[66:67]")
            n = 2
        a("s_waitcnt lgkmcnt(0)")
        a(f"s_mul_i32 s90, {S_WG}, 9")
        a(f"s_add_u32 s90, s90, {S_W}")
        a("s_lshl_b32 s90, s90, 7")
        a(f"s_add_u32 s90, s90, {W_STAMP}")
        a("s_mov_b64 exec, 1")
        a("v_mov_b32 v1, 0")
        for k in range(n):
            a(f"v_mov_b32 v2, s{64+2*k}")
            a(f"v_mov_b32 v3, s{65+2*k}")
            a(f"buffer_store_dwordx2 v[2:3], v1, {WSRD}, s90 offen offset:{8*k}")
            a("s_nop 1")
        a("s_waitcnt vmcnt(0)")

    sites = [0]
    def timeout():
        if cfg.site:
            sites[0] += 1
            a(f"s_mov_b32 s1, {sites[0]}")
        a(f"s_sub_u32 {S_SPIN}, {S_SPIN}, 1")
        a("s_cbranch_scc1 L_abort")

    def spin_lds(off, n, vz, vt, sleep=True):
        L = a.newlabel("Lsp"); E = a.newlabel("Lspe")
        a.label(L)
        a(f"ds_read_b32 {vt}, {vz} offset:{off}")
        a("s_waitcnt lgkmcnt(0)")
        a(f"v_readfirstlane_b32 s91, {vt}")
        a(f"s_cmp_ge_i32 s91, {n}")
        a(f"s_cbranch_scc1 {E}")
        timeout()
        if sleep: a("s_sleep 1")
        a(f"s_branch {L}")
        a.label(E)

    def arrive(off, vz, vone):
        a("s_mov_b64 s[92:93], exec")
        a("s_mov_b64 exec, 1")
        a(f"ds_add_u32 {vz}, {vone} offset:{off}")
        a("s_mov_b64 exec, s[92:93]")

    def poll(loads, tags, vacc, sleep=None, sample=False, hook=None):
        if sleep is None: sleep = cfg.rsl
        L = a.newlabel("Lpl"); E = a.newlabel("Lple"); R = a.newlabel("Lplr")
        a(f"s_mov_b64 {PX}, exec")
        if sample:
            a(f"s_mov_b32 {S_PH}, 0")
            a("s_mov_b64 exec, 1")
        if hook:
            H = a.newlabel("Lplh")
            for ld in loads: a(ld)
            hook()
            a(f"s_branch {H}")
        a.label(L)
        for ld in loads: a(ld)
        if hook: a.label(H)
        a("s_waitcnt vmcnt(0)")
        a(f"v_xor_b32 {vacc}, {S_TAG}, {tags[0]}")
        for t in tags[1:]:
            a(f"v_bitop3_b32 {vacc}, {vacc}, {t}, {S_TAG} bitop3:0xf6")
        a(f"v_cmp_ne_u32 vcc, 0, {vacc}")
        if sample:
            a(f"s_cbranch_vccnz {R}")
            a(f"s_cmp_lg_u32 {S_PH}, 0")
            a(f"s_cbranch_scc1 {E}")
            a(f"s_mov_b32 {S_PH}, 1")
            a(f"s_mov_b64 exec, {PX}")
            a(f"s_branch {L}")
            a.label(R)
        else:
            a(f"s_cbranch_vccz {E}")
        a("s_mov_b64 exec, vcc")
        timeout()
        if sleep: a(f"s_sleep {sleep}")
        a(f"s_branch {L}")
        a.label(E)
        a(f"s_mov_b64 exec, {PX}")

    def poll2(mk, vacc, uid, use):
        la, ta = mk(16); lb, tb = mk(64)
        nl = len(la)
        def check(tags):
            a(f"v_xor_b32 {vacc}, {S_TAG}, {tags[0]}")
            for t in tags[1:]: a(f"v_bitop3_b32 {vacc}, {vacc}, {t}, {S_TAG} bitop3:0xf6")
            a(f"v_cmp_ne_u32 vcc, 0, {vacc}")
        for l in la: a(l)
        a(f"s_sleep {cfg.stag}")
        a.label(f"L_p2_{uid}")
        for l in lb: a(l)
        a(f"s_waitcnt vmcnt({nl})")
        check(ta)
        a(f"s_cbranch_vccz L_p2a_{uid}")
        timeout()
        for l in la: a(l)
        a(f"s_waitcnt vmcnt({nl})")
        check(tb)
        a(f"s_cbranch_vccnz L_p2_{uid}")
        use(64)
        a(f"s_branch L_p2e_{uid}")
        a.label(f"L_p2a_{uid}")
        use(16)
        a.label(f"L_p2e_{uid}")

    def after_own(flag, n, vz, vt, dly):
        spin_lds(flag, n, vz, vt, sleep=False)
        if dly: a(f"s_sleep {dly}")

    def get_mode(vz, vt):
        if cfg.local == 2:
            spin_lds(F_LM, 1, vz, vt)
            a(f"s_mov_b32 {S_LM}, s91")

    def store_loc(text):
        if cfg.local == 0: a(text + " sc1")
        elif cfg.local == 1: a(text)
        else:
            P = a.newlabel("Lst"); E = a.newlabel("Lste")
            a(f"s_cmp_eq_u32 {S_LM}, 1")
            a(f"s_cbranch_scc1 {P}")
            a(text + " sc1")
            a(f"s_branch {E}")
            a.label(P)
            a(text)
            a.label(E)

    def bf16r2(d0, d1, s0, s1, tmp):
        a(f"v_cvt_pk_bf16_f32 {tmp}, {s0}, {s1}")
        a(f"v_lshlrev_b32 {d0}, 16, {tmp}")
        a(f"v_and_b32 {d1}, 0xffff0000, {tmp}")

    def bf16r1(d, s):
        a(f"v_cvt_pk_bf16_f32 {d}, {s}, {s}")
        a(f"v_lshlrev_b32 {d}, 16, {d}")

    def allreduce(regs, op, tmps, steps):
        dpp = {"x1": "quad_perm:[1,0,3,2]", "x2": "quad_perm:[2,3,0,1]", "x4": "row_half_mirror", "x8": "row_mirror", "r8": "row_ror:8", "r4": "row_ror:4"}
        for s in steps:
            if s in dpp:
                for r in regs:
                    a(f"{op}_dpp {r}, {r}, {r} {dpp[s]} row_mask:0xf bank_mask:0xf")
            else:
                ins = "v_permlane16_swap_b32" if s == "x16" else "v_permlane32_swap_b32"
                for r, t in zip(regs, tmps): a(f"v_mov_b32 {t}, {r}")
                for r, t in zip(regs, tmps): a(f"{ins} {r}, {t}")
                for r, t in zip(regs, tmps): a(f"{op} {r}, {r}, {t}")
    FULL = ["x1", "x2", "x4", "x8", "x16", "x32"]

    def sexpr(dst, terms, const=0, tmp="s94"):
        first = True
        for (reg, kind, n) in terms:
            tgt = dst if first else tmp
            if kind == "shl":
                if n == 0: a(f"s_mov_b32 {tgt}, {reg}")
                else: a(f"s_lshl_b32 {tgt}, {reg}, {n}")
            else: a(f"s_mul_i32 {tgt}, {reg}, {n}")
            if not first: a(f"s_add_u32 {dst}, {dst}, {tmp}")
            first = False
        if const: a(f"s_add_u32 {dst}, {dst}, {const}")

    def gate_lc(valA, valB, vz, vt):
        a(f"s_mul_i32 s99, {S_B}, {valB - valA}")
        a(f"s_add_u32 s99, s99, {valA}")
        spin_lds(F_LC, "s99", vz, vt)

    def get_tag():
        a(f"v_readfirstlane_b32 {S_EP}, v3")
        a(f"s_add_u32 {S_EP}, {S_EP}, 1")
        a(f"s_mul_i32 {S_TAG}, {S_EP}, 0x9E3779B1")

    def unit_voffs(pitch_shift=None, pitch=None, d0="v24", d1="v25"):
        a("v_lshrrev_b32 v3, 3, v0")
        a("v_bfe_u32 v4, v0, 4, 1")
        a("v_lshlrev_b32 v4, 1, v4")
        a("v_and_b32 v5, 7, v0")
        a("v_xor_b32 v4, v4, v5")
        a("v_lshlrev_b32 v4, 4, v4")
        if pitch_shift is not None: a(f"v_lshlrev_b32 v6, {pitch_shift}, v3")
        else: a(f"v_mul_u32_u24 v6, {pitch}, v3")
        a(f"v_add_u32 {d0}, v6, v4")
        a(f"v_xor_b32 {d1}, 64, {d0}")

    def strip_voff(pitch, d):
        a("v_lshrrev_b32 v6, 2, v0")
        a(f"v_mul_u32_u24 {d}, {pitch}, v6")
        a("v_bfe_u32 v6, v0, 5, 1")
        a("v_lshlrev_b32 v6, 1, v6")
        a("v_and_b32 v7, 3, v0")
        a("v_xor_b32 v6, v6, v7")
        a(f"v_lshl_add_u32 {d}, v6, 4, {d}")

    a.label(f"{NAME}_kernel")
    a(f"s_cmp_ge_u32 {S_WG}, 256")
    a("s_cbranch_scc1 L_end")
    a("s_load_dwordx16 s[16:31], s[0:1], 0")
    a("s_load_dwordx8 s[32:39], s[0:1], 64")
    a("s_load_dwordx4 s[40:43], s[0:1], 96")
    stamp(0)
    if cfg.probe == 3: a("s_memrealtime s[62:63]")
    a("v_lshrrev_b32 v1, 6, v0")
    a("v_and_b32 v0, 63, v0")
    a(f"v_readfirstlane_b32 {S_W}, v1")
    a(f"s_and_b32 {S_X}, {S_WG}, 7")
    a(f"s_lshr_b32 {S_LOC}, {S_WG}, 3")
    a(f"s_cmp_lt_u32 {S_LOC}, 8")
    a(f"s_cselect_b32 {S_B}, 1, 0")
    a(f"s_cselect_b32 s90, 0, 8")
    a(f"s_sub_u32 {S_SPL}, {S_LOC}, s90")
    a(f"s_cselect_b32 s91, 4, 12") if False else None
    a(f"s_cmp_lt_u32 {S_LOC}, 8")
    a(f"s_cselect_b32 s91, 4, 12")
    a(f"s_cselect_b32 s94, 0, 4")
    a(f"s_cmp_ge_u32 {S_SPL}, s91")
    a(f"s_cselect_b32 {S_BT}, 1, 0")
    a(f"s_mul_i32 s90, {S_BT}, s91")
    a(f"s_sub_u32 {S_SP}, {S_SPL}, s90")
    a(f"s_add_u32 {S_SP}, {S_SP}, s94")
    a(f"s_lshr_b32 {S_KQ}, {S_LOC}, 3")
    a(f"s_and_b32 {S_CB}, {S_LOC}, 7")
    a(f"s_mov_b32 {S_SPIN}, {cfg.spin}")
    a(f"s_mov_b32 {S_LM}, {1 if cfg.local == 1 else 2}")
    a(f"s_cmp_lg_u32 {S_W}, 8")
    a("s_cbranch_scc1 L_worker")

    SLC = "s95"; SOFF = "s96"
    unit_voffs(pitch=6144, d0="v20", d1="v21")
    a(f"s_and_b32 s90, {S_SPL}, 3")
    a(f"s_mul_i32 {SOFF}, s90, {128*6144}")
    a(f"s_lshr_b32 s90, {S_SPL}, 2")
    a(f"s_lshl_b32 s94, {S_X}, 2")
    a("s_add_u32 s94, s94, 16")
    a(f"s_lshl_b32 s91, {S_X}, 1")
    a("s_sub_u32 s91, s91, 4")
    a(f"s_cmp_ge_u32 {S_SPL}, 16")
    a("s_cselect_b32 s94, s91, s94")
    a("s_add_u32 s90, s90, s94")
    a("s_lshl_b32 s90, s90, 7")
    a(f"s_add_u32 {SOFF}, {SOFF}, s90")
    a(f"s_mov_b32 m0, {L_MR}")
    a("s_waitcnt lgkmcnt(0)")
    srd(44, 36, 512*3072*2)
    a(f"s_cmp_lt_u32 {S_LOC}, 24")
    a("s_cbranch_scc1 L_ld_nourg")
    for i in range(16):
        a(f"buffer_load_dwordx4 v{20 + (i&1)}, s[44:47], {SOFF} offen nt lds")
        if i < 15:
            a(f"s_add_u32 {SOFF}, {SOFF}, {8*6144}")
            a("s_add_u32 m0, m0, 0x400")
    a.label("L_ld_nourg")
    if cfg.prio: a("s_setprio 3")
    a("s_barrier")
    stamp(1)
    srd(12, 42, W_USED)
    srd(52, 18, 2*8*32768*128*2)
    srd(56, 20, 2*8*32768*128*2)
    srd(60, 24, 4096*512*2)
    a("v_mov_b32 v10, 0")
    a("v_lshrrev_b32 v3, 4, v0")
    a("v_and_b32 v4, 15, v0")
    a("v_xor_b32 v5, v4, v3")
    a("v_lshlrev_b32 v5, 4, v5")
    a("v_lshl_add_u32 v26, v3, 8, v5")
    a("v_xor_b32 v27, 64, v26")
    a("v_xor_b32 v28, 0x80, v26")
    a("v_xor_b32 v29, 0xc0, v26")
    a("v_lshlrev_b32 v5, 1, v3")
    a("v_xor_b32 v5, v4, v5")
    a("v_lshlrev_b32 v5, 4, v5")
    a("v_lshl_add_u32 v30, v3, 8, v5")
    a("v_xor_b32 v31, 0x80, v30")
    a(f"s_mul_i32 s91, {S_B}, {(NK_B - NK_A) * 256}")
    a(f"s_add_u32 s91, s91, {NK_A * 256}")
    a(f"s_mul_i32 s90, {S_SP}, s91")
    a(f"s_mul_i32 s91, {S_B}, {512 * 256}")
    a("s_add_u32 s90, s90, s91")
    sexpr("s98", [(S_BT, "shl", 26), (S_X, "shl", 23), ("s90", "shl", 0)], (28672 - 512) * 256)
    unit_voffs(pitch_shift=10)

    def lc_write(val, off=F_LC):
        a(f"v_mov_b32 v11, {val}")
        a(f"ds_write_b32 v10, v11 offset:{off}")
    def seg(name, variants, srdn, step, iters, ldsbase):
        if ldsbase is not None: a(f"s_mov_b32 m0, {ldsbase}")
        a(f"s_mov_b32 s97, {iters}")
        a.label(name)
        for v in variants:
            a(f"buffer_load_dwordx4 {v}, s[{srdn}:{srdn+3}], {SOFF} offen nt lds")
            a(f"s_add_u32 {SOFF}, {SOFF}, {step}")
            a("s_add_u32 m0, m0, 0x400")
        a("s_sub_u32 s97, s97, 1")
        a("s_cmp_lg_u32 s97, 0")
        a(f"s_cbranch_scc1 {name}")
    def drain(end, ks):
        for k in ks:
            a(f"s_waitcnt vmcnt({k})")
            lc_write(end - k)
    def seg4(name, variants, srdn, iters, ldsbase, D=D, mono=False):
        if ldsbase is not None: a(f"s_mov_b32 m0, {ldsbase}")
        a(f"s_mov_b32 s97, {iters}")
        a.label(name)
        for i, v in enumerate(variants):
            a(f"buffer_load_dwordx4 {v}, s[{srdn}:{srdn+3}], {SOFF} offen offset:{1024*i} nt lds")
        a(f"s_add_u32 {SOFF}, {SOFF}, 0x1000")
        a("s_add_u32 m0, m0, 0x1000")
        a(f"s_add_u32 {SLC}, {SLC}, 4")
        a(f"v_mov_b32 v11, {SLC}")
        a(f"s_waitcnt vmcnt({D-4})")
        a(f"{'ds_max_i32' if mono else 'ds_write_b32'} v10, v11 offset:{F_LC}")
        a("s_sub_u32 s97, s97, 1")
        a("s_cmp_lg_u32 s97, 0")
        a(f"s_cbranch_scc1 {name}")
    WO_OFF = [(S_X, "shl", 19), (S_KQ, "shl", 17), (S_CB, "shl", 7)]

    a(f"s_cmp_eq_u32 {S_B}, 0")
    a("s_cbranch_scc1 L_ld_A")
    if cfg.bearly:
        srd(48, 28, 512*1792*2)
        srd(44, 30, 512*1792*2)
        strip_voff(3584, "v20")
        sexpr(SOFF, WO_OFF)
        seg("L_ld_woB", ["v24", "v25"], 60, 8192, 8, L_WO_B)
        a(f"s_cmp_eq_u32 {S_CB}, 7")
        a("s_cbranch_scc1 L_ld_guBe")
        sexpr(SOFF, [(S_KQ, "mul", 128*3584), (S_X, "mul", 448), (S_CB, "shl", 6)])
        a(f"s_mov_b32 m0, {L_G_B}")
        a("s_mov_b32 s97, 8")
        a.label("L_ld_guB")
        a(f"buffer_load_dwordx4 v20, s[48:51], {SOFF} offen nt lds")
        a("s_add_u32 m0, m0, 0x2000")
        a("s_nop 0")
        a(f"buffer_load_dwordx4 v20, s[44:47], {SOFF} offen nt lds")
        a("s_sub_u32 m0, m0, 0x1c00")
        a(f"s_add_u32 {SOFF}, {SOFF}, {16*3584}")
        a("s_sub_u32 s97, s97, 1")
        a("s_cmp_lg_u32 s97, 0")
        a("s_cbranch_scc1 L_ld_guB")
        a.label("L_ld_guBe")
        srd(48, 32, 1792*512*2)
        sexpr(SOFF, [(S_X, "mul", 224*1024), (S_KQ, "mul", 56*1024), (S_CB, "shl", 7)])
        seg("L_ld_dnB", ["v24", "v25"], 48, 8192, 4, L_DN_B)
        a("s_waitcnt vmcnt(0)")
        lc_write(1, F_WOL)
        lc_write(1, F_LATE)
        lc_write(1, F_DN)
    if cfg.kpre:
        spin_lds(F_2 if cfg.kflag else F_WQ, 2 if cfg.kflag else 4, "v10", "v12", sleep=False)
        a(f"s_mov_b32 {SLC}, {KB_B - (cfg.kpre - 4)}")
        a(f"s_mov_b32 {SOFF}, s98")
        seg4("L_ld_kB", ["v26", "v27", "v28", "v29"], 52, NK_B // 16, L_K, cfg.kpre)
        drain(KB_B + NK_B // 4, [0])
        spin_lds(F_QF, 2, "v10", "v12", sleep=False)
        stamp(2)
        a(f"s_mov_b32 {SLC}, {KB_B + NK_B // 4 - (D - 4)}")
        a(f"s_mov_b32 {SOFF}, s98")
        seg4("L_ld_vB", ["v30", "v30", "v31", "v31"], 56, NK_B // 16, L_V, mono=True)
    else:
        if cfg.kstart == 0:
            spin_lds(F_EC, 4, "v10", "v12")
            spin_lds(F_3, 2, "v10", "v12", sleep=False)
        elif cfg.kstart == 1:
            spin_lds(F_QF, 2, "v10", "v12", sleep=False)
        elif cfg.kstart == 3:
            spin_lds(F_PQ, 4, "v10", "v12", sleep=False)
        else:
            pass
        stamp(2)
        a(f"s_mov_b32 {SLC}, {KB_B - (D - 4)}")
        a(f"s_mov_b32 {SOFF}, s98")
        seg4("L_ld_kB", ["v26", "v27", "v28", "v29"], 52, NK_B // 16, L_K)
        a(f"s_mov_b32 {SOFF}, s98")
        seg4("L_ld_vB", ["v30", "v30", "v31", "v31"], 56, NK_B // 16, L_V)
    stamp(3)
    if cfg.bearly:
        drain(KB_B + NK_B // 2, [k for k in (32, 24, 16, 8) if k < D - 4] + [0])
        stamp(4)
        dump_stamps(5)
        a("s_endpgm")
    else:
        sexpr(SOFF, WO_OFF)
        seg("L_ld_woB", ["v24", "v25"], 60, 8192, 8, L_WO_B)
        if cfg.dnwo:
            srd(48, 32, 1792*512*2)
            sexpr(SOFF, [(S_X, "mul", 224*1024), (S_KQ, "mul", 56*1024), (S_CB, "shl", 7)])
            seg("L_ld_dnB", ["v24", "v25"], 48, 8192, 4, L_DN_B)
            drain(KB_B + NK_B // 2 + 24, [k for k in (56, 48, 40, 32, 24) if k < D + 20])
            stamp(4)
            a("s_waitcnt vmcnt(8)")
            lc_write(1, F_WOL)
            a("s_waitcnt vmcnt(0)")
            lc_write(1, F_DN)
            dump_stamps(5)
            a("s_endpgm")
        else:
            drain(KB_B + NK_B // 2 + 16, [k for k in (48, 40, 32, 24, 16) if k < D + 12])
            stamp(4)
    a.label("L_ld_fin")
    a("s_waitcnt vmcnt(0)")
    lc_write(1, F_WOL)
    stamp(5)
    dump_stamps(6)
    a("s_endpgm")
    a.label("L_ld_A")
    DA = cfg.DA
    a(f"s_cmp_ge_u32 {S_SPL}, 16")
    a("s_cbranch_scc1 L_ld_urg")
    if not cfg.early: spin_lds(F_1, 2, "v10", "v12", sleep=False)
    if cfg.slow:
        a(f"s_mov_b32 m0, {L_MR}")
        a("s_nop 0")
        for i in range(2 * cfg.slow):
            a(f"buffer_load_dwordx4 v{20 + (i&1)}, s[44:47], {SOFF} offen nt lds")
            a(f"s_add_u32 {SOFF}, {SOFF}, {8*6144}")
            a("s_add_u32 m0, m0, 0x400")
            if i & 1: a("s_waitcnt vmcnt(0)")
        seg("L_ld_mr", ["v20", "v21"], 44, 8*6144, 8 - cfg.slow, None)
    else:
        seg("L_ld_mr", ["v20", "v21"], 44, 8*6144, 8, L_MR)
    a("s_branch L_ld_kgo")
    a.label("L_ld_urg")
    a("s_waitcnt vmcnt(0)")
    lc_write(1, F_MRL)
    spin_lds(F_PM, 4, "v10", "v12", sleep=False)
    a.label("L_ld_kgo")
    DA1 = cfg.DA1 or DA
    a(f"s_mov_b32 {SLC}, {-(DA1 - 4)}")
    a(f"s_mov_b32 {SOFF}, s98")
    n0 = (DA1 - 4 + 3) // 4
    assert 0 < n0 < NK_A // 16
    seg4("L_ld_kA0", ["v26", "v27", "v28", "v29"], 52, n0, L_K, DA1)
    lc_write(1, F_MRL)
    seg4("L_ld_kA", ["v26", "v27", "v28", "v29"], 52, NK_A // 16 - n0, None, DA1)
    stamp(2)
    a(f"s_mov_b32 {SOFF}, s98")
    if DA > DA1:
        assert (DA - DA1) % 4 == 0
        a(f"s_mov_b32 m0, {L_V}")
        a("s_nop 0")
        for it in range((DA - DA1) // 4):
            for i, v in enumerate(["v30", "v30", "v31", "v31"]):
                a(f"buffer_load_dwordx4 {v}, s[56:59], {SOFF} offen offset:{1024*i} nt lds")
            a(f"s_add_u32 {SOFF}, {SOFF}, 0x1000")
            a("s_add_u32 m0, m0, 0x1000")
        seg4("L_ld_vA", ["v30", "v30", "v31", "v31"], 56, NK_A // 16 - 4 - (DA - DA1) // 4, None, DA)
    elif cfg.dq:
        a(f"s_mov_b32 m0, {L_V}")
        a(f"s_mov_b32 s97, {NK_A // 16 - 4}")
        a.label("L_ld_vq")
        a(f"ds_read_b32 v12, v10 offset:{F_3}")
        for i, v in enumerate(["v30", "v30", "v31", "v31"]):
            a(f"buffer_load_dwordx4 {v}, s[56:59], {SOFF} offen offset:{1024*i} nt lds")
        a(f"s_add_u32 {SOFF}, {SOFF}, 0x1000")
        a("s_add_u32 m0, m0, 0x1000")
        a(f"s_add_u32 {SLC}, {SLC}, 4")
        a(f"v_mov_b32 v11, {SLC}")
        a("s_waitcnt lgkmcnt(0)")
        a("v_readfirstlane_b32 s91, v12")
        a("s_cmp_ge_i32 s91, 2")
        a("s_cbranch_scc1 L_ld_vq1")
        a(f"s_waitcnt vmcnt({cfg.dq - 4})")
        a.label("L_ld_vq1")
        a(f"s_waitcnt vmcnt({DA - 4})")
        a(f"ds_write_b32 v10, v11 offset:{F_LC}")
        a("s_sub_u32 s97, s97, 1")
        a("s_cmp_lg_u32 s97, 0")
        a("s_cbranch_scc1 L_ld_vq")
    else:
        seg4("L_ld_vA", ["v30", "v30", "v31", "v31"], 56, NK_A // 16 - 4, L_V, DA)
    spin_lds(F_EC, 4, "v10", "v12")
    seg4("L_ld_vA2", ["v30", "v30", "v31", "v31"], 56, 4, None, DA)
    stamp(3)
    drain(NK_A // 2, [k for k in (32, 24, 16, 8) if k < DA - 4] + [0])
    stamp(4)
    spin_lds(F_PO if cfg.wolate else F_KC, 4, "v10", "v12")
    sexpr(SOFF, WO_OFF)
    seg("L_ld_woA", ["v24", "v25"], 60, 8192, 8, L_WO)
    if cfg.dnwo:
        srd(48, 32, 1792*512*2)
        sexpr(SOFF, [(S_X, "mul", 224*1024), (S_KQ, "mul", 56*1024), (S_CB, "shl", 7)])
        seg("L_ld_dnA", ["v24", "v25"], 48, 8192, 4, L_DN)
        if cfg.guwo:
            a("s_waitcnt vmcnt(8)")
            lc_write(1, F_WOL)
            srd(48, 28, 512*1792*2)
            srd(44, 30, 512*1792*2)
            strip_voff(3584, "v20")
            a(f"s_cmp_eq_u32 {S_CB}, 7")
            a("s_cbranch_scc1 L_ld_guAe")
            sexpr(SOFF, [(S_KQ, "mul", 128*3584), (S_X, "mul", 448), (S_CB, "shl", 6)])
            a(f"s_mov_b32 m0, {L_G}")
            a("s_mov_b32 s97, 8")
            a.label("L_ld_guA")
            a(f"buffer_load_dwordx4 v20, s[48:51], {SOFF} offen nt lds")
            a("s_add_u32 m0, m0, 0x2000")
            a("s_nop 0")
            a(f"buffer_load_dwordx4 v20, s[44:47], {SOFF} offen nt lds")
            a("s_sub_u32 m0, m0, 0x1c00")
            a(f"s_add_u32 {SOFF}, {SOFF}, {16*3584}")
            a("s_sub_u32 s97, s97, 1")
            a("s_cmp_lg_u32 s97, 0")
            a("s_cbranch_scc1 L_ld_guA")
            a.label("L_ld_guAe")
            a("s_waitcnt vmcnt(0)")
            lc_write(1, F_DN)
            lc_write(1, F_LATE)
        else:
            a("s_waitcnt vmcnt(8)")
            lc_write(1, F_WOL)
            a("s_waitcnt vmcnt(0)")
            lc_write(1, F_DN)
        dump_stamps(5)
        a("s_endpgm")
    else:
        a("s_branch L_ld_fin")

    a.label("L_worker")
    a(f"s_cmp_lg_u32 {S_W}, 4")
    a("s_cbranch_scc1 L_wk2")
    a("v_mov_b32 v10, 0")
    for r in range(12, 16): a(f"v_mov_b32 v{r}, 0")
    a("v_lshlrev_b32 v1, 2, v0")
    a("v_lshlrev_b32 v2, 4, v0")
    a("ds_write_b32 v1, v10")
    a(f"ds_write_b128 v2, v[12:15] offset:{L_ZERO}")
    if cfg.probe >= 10: a(f"ds_write_b32 v10, v10 offset:{L_PRB}")
    if cfg.local == 1:
        a("v_mov_b32 v11, 1")
        a(f"ds_write_b32 v10, v11 offset:{F_LM}")
    a.label("L_wk2")
    a("s_waitcnt lgkmcnt(0)")
    srd(12, 42, W_USED)
    srd(44, 16, 2048)
    srd(48, 34, 2048)
    a(f"s_sub_u32 s97, {S_W}, 5")
    a("s_and_b32 s97, s97, 1")
    a("s_lshl_b32 s90, s97, 10")
    a(f"s_and_b32 s94, {S_SPL}, 3")
    a("s_lshl_b32 s94, s94, 8")
    a("s_add_u32 s94, s94, s90")
    a("v_lshlrev_b32 v1, 4, v0")
    a("v_lshlrev_b32 v2, 2, v0")
    a(f"s_cmp_lt_u32 {S_W}, 5")
    a("s_cbranch_scc1 L_wk2b")
    a(f"s_cmp_eq_u32 {S_W}, 7")
    a("s_cbranch_scc1 L_wk2b")
    a("buffer_load_dword v9, v2, s[48:51], s94 offen")
    a("buffer_load_dwordx4 v[4:7], v1, s[44:47], s90 offen")
    a(f"s_lshr_b32 s94, {S_SPL}, 1")
    a("s_and_b32 s94, s94, 3")
    a("s_lshl_b32 s94, s94, 8")
    a("s_add_u32 s94, s94, s90")
    a("buffer_load_dword v8, v2, s[44:47], s94 offen")
    a.label("L_wk2b")
    a("v_mov_b32 v2, 0")
    a(f"buffer_load_dword v3, v2, {WSRD}, 0 offen sc1")
    a(f"s_cmp_lg_u32 {S_W}, 7")
    a("s_cbranch_scc1 L_wk3")
    if cfg.local == 2:
        srd(60, 40, 256)
        a("s_getreg_b32 s90, hwreg(HW_REG_XCC_ID)")
        a("s_and_b32 s90, s90, 7")
        a("s_mul_i32 s90, s90, 6")
        a("s_lshl_b64 s[26:27], 1, s90")
        a(f"s_lshl_b32 s91, {S_X}, 5")
        a("s_add_u32 s91, s91, 8")
        a("v_mov_b32 v18, s91")
        a("v_mov_b32 v16, s26")
        a("v_mov_b32 v17, s27")
        a("s_mov_b64 exec, 1")
        a("buffer_atomic_add_x2 v[16:17], v18, s[60:63], 0 offen sc1")
        a("s_mov_b64 exec, -1")
    if cfg.touch:
        sexpr("s90", [(S_BT, "shl", 26), (S_X, "shl", 23), (S_SP, "shl", 16)], 28672*256)
        a("s_load_dword s78, s[18:19], s90")
        a("s_load_dword s79, s[20:21], s90")
        a(f"s_lshr_b32 s91, {S_SPL}, 1")
        a("s_and_b32 s91, s91, 3")
        a("s_lshl_b32 s91, s91, 20")
        a("s_load_dword s80, s[22:23], s91")
        sexpr("s91", [(S_X, "shl", 19), (S_KQ, "shl", 17)])
        a("s_load_dword s81, s[24:25], s91")
        a(f"s_mul_i32 s91, {S_KQ}, {128*3584}")
        a("s_load_dword s82, s[28:29], s91")
        a("s_load_dword s83, s[30:31], s91")
        a(f"s_mul_i32 s91, {S_X}, {224*1024}")
        a("s_load_dword s84, s[32:33], s91")
        a("s_load_dword s85, s[38:39], 0")
    a.label("L_wk3")
    a("s_barrier")
    if cfg.cwarm:
        a(f"s_cmp_lg_u32 {S_W}, 4")
        a("s_cbranch_scc1 L_cw_e")
        a("s_getpc_b64 s[0:1]")
        a.label("L_cw_base")
        a("s_mov_b32 s90, 0")
        a.label("L_cw_loop")
        for k in range(8):
            a(f"s_load_dword s77, s[0:1], s90 offset:{128*k}")
        a("s_add_u32 s90, s90, 1024")
        a("s_cmp_lt_u32 s90, (L_end - L_cw_base - 1024)")
        a("s_cbranch_scc1 L_cw_loop")
        a.label("L_cw_e")
    a(f"s_cmp_ge_u32 {S_W}, 4")
    a("s_cbranch_scc1 L_gwave")

    a.label("L_mwave")
    if cfg.mprio: a("s_setprio 2")
    srd(56, 22, 512*4096*2)
    a("v_lshrrev_b32 v1, 4, v0")
    a("v_and_b32 v2, 15, v0")
    a("v_mov_b32 v4, 1")
    a("v_lshlrev_b32 v22, 1, v1")
    a("v_xor_b32 v22, v2, v22")
    a("v_lshlrev_b32 v22, 4, v22")
    a("v_lshl_add_u32 v56, v1, 13, v22")
    a("v_xor_b32 v57, 0x80, v56")
    a(f"s_lshr_b32 s90, {S_SPL}, 1")
    a(f"s_and_b32 s91, {S_SPL}, 1")
    sexpr("s96", [("s90", "shl", 20), (S_X, "shl", 10), ("s91", "shl", 9), (S_W, "shl", 18)])
    a("s_add_u32 s97, s96, 256")
    def wq_loads(lo, hi):
        for k in range(lo, hi):
            bb, i = k >> 3, k & 7
            sr = "s96" if bb == 0 else "s97"
            if k == lo or i == 0:
                a(f"s_lshl_b32 s90, {S_W}, 13")
                a(f"s_add_u32 m0, s90, {L_WQ + 32768*bb + 1024*i}")
                a("s_nop 0")
            a(f"buffer_load_dwordx4 {'v56' if (i & 2) == 0 else 'v57'}, s[56:59], {sr} offen nt lds")
            a(f"s_add_u32 {sr}, {sr}, {4*8192}")
            a("s_add_u32 m0, m0, 0x400")
    a(f"s_cmp_eq_u32 {S_B}, 0")
    a("s_cbranch_scc1 L_m_nowq")
    wq_loads(0, cfg.wqsplit)
    a.label("L_m_nowq")
    a("v_bfe_u32 v6, v2, 2, 1")
    a(f"v_mul_u32_u24 v6, {APITCH}, v6")
    a("v_lshl_add_u32 v6, v1, 4, v6")
    a("v_bfe_u32 v16, v0, 2, 2")
    a("v_and_b32 v17, 3, v0")
    a("v_lshl_add_u32 v18, v1, 3, v16")
    a("v_lshrrev_b32 v19, 1, v17")
    a("v_and_b32 v20, 1, v17")
    a("v_and_b32 v21, 1, v1")
    a("v_lshrrev_b32 v22, 1, v16")
    a("v_lshl_or_b32 v22, v21, 1, v22")
    a("v_lshlrev_b32 v22, 1, v22")
    a(f"s_lshl_b32 s90, {S_W}, 1")
    a("v_add_u32 v23, s90, v19")
    a("v_xor_b32 v23, v23, v22")
    a("v_lshlrev_b32 v7, 7, v18")
    a("v_lshl_add_u32 v7, v23, 4, v7")
    a("v_lshl_add_u32 v7, v20, 3, v7")
    a(f"s_and_b32 s90, {S_W}, 1")
    a("s_lshl_b32 s90, s90, 1")
    a("v_add_u32 v23, s90, v19")
    a("v_lshlrev_b32 v22, 1, v21")
    a("v_xor_b32 v23, v23, v22")
    a("v_lshlrev_b32 v12, 6, v18")
    a("v_lshl_add_u32 v12, v23, 4, v12")
    a("v_lshl_add_u32 v12, v20, 3, v12")
    a("v_lshl_or_b32 v22, v21, 2, v16")
    a("v_lshlrev_b32 v22, 1, v22")
    a(f"s_lshl_b32 s90, {S_W}, 2")
    a("v_add_u32 v23, s90, v19")
    a("v_xor_b32 v24, v23, v22")
    a("v_lshlrev_b32 v25, 8, v18")
    a("v_lshl_add_u32 v25, v20, 3, v25")
    a("v_lshl_add_u32 v13, v24, 4, v25")
    a("v_add_u32 v23, 2, v23")
    a("v_xor_b32 v24, v23, v22")
    a("v_lshl_add_u32 v14, v24, 4, v25")
    a("v_bfe_u32 v8, v0, 4, 1")
    a("v_lshlrev_b32 v9, 3, v2")
    O_MOD, O_Q, O_O, O_A4, O_GU, O_DN, O_ST, T_K, T_V = "s16", "s17", "s18", "s19", "s20", "s21", "s24", "s25", "s26"
    a(f"s_mul_i32 {T_K}, {S_B}, {KB_B + NK_B // 4 - NK_A // 4}")
    a(f"s_add_u32 {T_K}, {T_K}, {NK_A // 4}")
    a(f"s_mul_i32 {T_V}, {S_B}, {KB_B + NK_B // 2 - NK_A // 2}")
    a(f"s_add_u32 {T_V}, {T_V}, {NK_A // 2}")
    sexpr(O_O, [(S_X, "shl", 16), (S_BT, "shl", 13), (S_SP, "shl", 9), (S_W, "shl", 7)], W_O)
    sexpr(O_A4, [(S_CB, "shl", 14), (S_W, "shl", 12), (S_X, "shl", 8), (S_KQ, "shl", 6)], W_A4)
    a(f"s_add_u32 {O_DN}, {O_A4}, {W_DN - W_A4}")
    a(f"s_lshr_b32 s90, {S_W}, 1")
    a(f"s_and_b32 s91, {S_W}, 1")
    sexpr(O_GU, [(S_X, "shl", 15), ("s90", "shl", 14), (S_KQ, "shl", 11), (S_CB, "shl", 8), ("s91", "shl", 7)], W_GU)
    sexpr(O_ST, [(S_X, "shl", 11), (S_BT, "shl", 10), (S_SP, "shl", 4)], W_ST)
    a(f"s_and_b32 s90, {S_SPL}, 1")
    a("s_lshl_b32 s90, s90, 1")
    a(f"s_lshr_b32 s91, {S_W}, 1")
    a("s_add_u32 s90, s90, s91")
    a(f"s_lshr_b32 s91, {S_SPL}, 1")
    a(f"s_and_b32 s97, {S_W}, 1")
    sexpr(O_Q, [(S_X, "shl", 15), ("s90", "shl", 12), ("s91", "shl", 10), ("s97", "shl", 9)], W_Q)
    a(f"s_cmp_lt_u32 {S_SPL}, 16")
    a("s_cbranch_scc1 L_m_offA")
    a(f"s_lshr_b32 s90, {S_X}, 2")
    a(f"s_and_b32 s91, {S_X}, 3")
    a(f"s_bfe_u32 s97, {S_SPL}, 0x10002")
    a(f"s_and_b32 s98, {S_SPL}, 3")
    sexpr(O_MOD, [("s90", "shl", 15), ("s91", "shl", 12), ("s98", "shl", 10), ("s97", "shl", 9), (S_W, "shl", 7)], W_MOD)
    a("s_branch L_m_offE")
    a.label("L_m_offA")
    a(f"s_lshr_b32 s90, {S_X}, 1")
    a(f"s_and_b32 s91, {S_X}, 1")
    a("s_lshl_b32 s91, s91, 2")
    a(f"s_lshr_b32 s97, {S_SPL}, 2")
    a("s_add_u32 s91, s91, s97")
    a("s_lshr_b32 s97, s91, 1")
    a("s_and_b32 s91, s91, 1")
    a(f"s_and_b32 s98, {S_SPL}, 3")
    sexpr(O_MOD, [("s90", "shl", 15), ("s97", "shl", 12), ("s98", "shl", 10), ("s91", "shl", 9), (S_W, "shl", 7)], W_MOD + 2*32768)
    a.label("L_m_offE")
    a("s_waitcnt vmcnt(0)")
    get_tag()
    a("v_mov_b32 v3, 0")
    stamp(1)

    def loadB(vaddr, nk, kstride, hoff, base=16):
        for t in range(nk):
            a(f"ds_read_b64_tr_b16 v[{base+4*t}:{base+4*t+1}], {vaddr} offset:{t*kstride}")
            a(f"ds_read_b64_tr_b16 v[{base+4*t+2}:{base+4*t+3}], {vaddr} offset:{t*kstride+hoff}")

    def gemv(act_off, nk, bbase=16, second=None):
        for t in range(nk):
            a(f"ds_read_b128 v[{32+4*t}:{35+4*t}], v6 offset:{act_off+64*t}")
        for t in range(nk):
            a(f"s_waitcnt lgkmcnt({nk-1-t})")
            c = "0" if t == 0 else "v[48:51]"
            a(f"v_mfma_f32_16x16x32_bf16 v[48:51], v[{32+4*t}:{35+4*t}], v[{bbase+4*t}:{bbase+4*t+3}], {c}")
            if second is not None:
                c = "0" if t == 0 else "v[56:59]"
                a(f"v_mfma_f32_16x16x32_bf16 v[56:59], v[{32+4*t}:{35+4*t}], v[{second+4*t}:{second+4*t+3}], {c}")

    def publish(shift, soff, local=False, second=False):
        a(f"v_lshl_add_u32 v54, v8, {shift}, v9")
        a(f"v_mov_b32 v53, {S_TAG}")
        if second: a(f"v_mov_b32 v61, {S_TAG}")
        a("v_mov_b32 v52, v48")
        if second: a("v_mov_b32 v60, v56")
        a("s_mov_b32 exec_hi, 0")
        t1 = f"buffer_store_dwordx2 v[52:53], v54, {WSRD}, {soff} offen"
        t2 = f"buffer_store_dwordx2 v[60:61], v54, {WSRD}, {soff} offen offset:128"
        if local:
            store_loc(t1)
            if second: store_loc(t2)
        else:
            a(t1 + " sc1")
            if second: a(t2 + " sc1")
        a("s_mov_b32 exec_hi, -1")

    def publish_pair(soff):
        a("v_lshlrev_b32 v54, 11, v8")
        a("v_lshl_add_u32 v54, v2, 2, v54")
        a(f"v_mov_b32 v53, {S_TAG}")
        a("v_mov_b32_dpp v52, v48 quad_perm:[1,0,3,2] row_mask:0xf bank_mask:0xf")
        a("s_mov_b32 exec_lo, 0x55555555")
        a("s_mov_b32 exec_hi, 0")
        a("v_cvt_pk_bf16_f32 v52, v48, v52")
        a(f"buffer_store_dwordx2 v[52:53], v54, {WSRD}, {soff} offen sc1")
        a("s_mov_b64 exec, -1")

    a(f"s_cmp_lg_u32 {S_B}, 0")
    a("s_cbranch_scc1 L_m_B")
    spin_lds(F_1, 2, "v3", "v5")
    spin_lds(F_MRL, 1, "v3", "v5")
    a(f"v_add_u32 v10, {L_MR}, v7")
    loadB("v10", 4, 4096, 512)
    gemv(L_ACT1, 4)
    arrive(F_EC, "v3", "v4")
    publish(14, O_MOD)
    arrive(F_PM, "v3", "v4")
    stamp(2)
    a("s_branch L_m_s3")
    a.label("L_m_B")
    if cfg.wqsplit < 16:
        spin_lds(F_HI, 2, "v3", "v5", sleep=False)
        wq_loads(cfg.wqsplit, 16)
    a("s_waitcnt vmcnt(0)")
    arrive(F_WQ, "v3", "v4")
    a("v_bfe_u32 v16, v0, 2, 2")
    a("v_and_b32 v17, 3, v0")
    a("v_lshl_add_u32 v18, v1, 3, v16")
    a("v_lshrrev_b32 v19, 1, v17")
    a("v_and_b32 v20, 1, v17")
    a("v_and_b32 v21, 1, v1")
    a("v_lshl_or_b32 v22, v21, 2, v16")
    a("v_lshlrev_b32 v22, 1, v22")
    a("v_lshlrev_b32 v25, 8, v18")
    a("v_lshl_add_u32 v25, v20, 3, v25")
    a(f"s_lshr_b32 s90, {S_W}, 1")
    a("s_lshl_b32 s90, s90, 15")
    a(f"s_add_u32 s90, s90, {L_WQ}")
    a("v_add_u32 v25, s90, v25")
    a(f"s_and_b32 s91, {S_W}, 1")
    a("s_lshl_b32 s91, s91, 3")
    a("v_add_u32 v19, s91, v19")
    for e in range(4):
        a(f"v_add_u32 v23, {2*e}, v19")
        a("v_xor_b32 v23, v23, v22")
        a(f"v_lshl_add_u32 v{28+e}, v23, 4, v25")
    spin_lds(F_WQ, 4, "v3", "v5", sleep=False)
    for e in range(4):
        loadB(f"v{28+e}", 4, 8192, 1024, base=64 + 16*e)
    get_mode("v3", "v5")
    a("s_waitcnt lgkmcnt(0)")
    arrive(F_EC, "v3", "v4")
    a("v_lshl_add_u32 v54, v8, 14, v9")
    a(f"v_mov_b32 v53, {S_TAG}")
    spin_lds(F_2, 2, "v3", "v5", sleep=False)
    for t in range(4):
        a(f"ds_read_b128 v[{32+4*t}:{35+4*t}], v6 offset:{L_ACT2+64*t}")
    for t in range(4):
        a(f"s_waitcnt lgkmcnt({3-t})")
        for e in range(4):
            c = "0" if t == 0 else f"v[{16+4*e}:{19+4*e}]"
            a(f"v_mfma_f32_16x16x32_bf16 v[{16+4*e}:{19+4*e}], v[{32+4*t}:{35+4*t}], v[{64+16*e+4*t}:{67+16*e+4*t}], {c}")
    a("s_mov_b32 exec_hi, 0")
    for e in range(4):
        a(f"v_mov_b32 v{56+2*e}, v{16+4*e}")
        a(f"v_mov_b32 v{57+2*e}, v53")
    if cfg.local == 2:
        P = a.newlabel("Lst"); E = a.newlabel("Lste")
        a(f"s_cmp_eq_u32 {S_LM}, 1")
        a(f"s_cbranch_scc1 {P}")
        for e in range(4): a(f"buffer_store_dwordx2 v[{56+2*e}:{57+2*e}], v54, {WSRD}, {O_Q} offen offset:{128*e} sc1")
        a(f"s_branch {E}")
        a.label(P)
        for e in range(4): a(f"buffer_store_dwordx2 v[{56+2*e}:{57+2*e}], v54, {WSRD}, {O_Q} offen offset:{128*e}")
        a.label(E)
    else:
        for e in range(4): a(f"buffer_store_dwordx2 v[{56+2*e}:{57+2*e}], v54, {WSRD}, {O_Q} offen offset:{128*e}" + (" sc1" if cfg.local == 0 else ""))
    a("s_mov_b32 exec_hi, -1")
    arrive(F_PQ, "v3", "v4")
    stamp(3)
    mark(10, "v3")
    a.label("L_m_s3")
    get_mode("v3", "v5")
    T_ST, T_N = "s27", "s28"
    a(f"s_lshl_b32 s90, {S_B}, 1")
    a(f"s_sub_u32 s90, 4, s90")
    a(f"s_mul_i32 {T_ST}, {S_W}, s90")
    a(f"s_min_u32 s91, {S_W}, 2")
    a(f"s_add_u32 {T_ST}, {T_ST}, s91")
    a(f"s_cmp_lt_u32 {S_W}, 2")
    a(f"s_addc_u32 {T_N}, s90, 0")
    a("s_mov_b64 s[30:31], -1")
    a(f"s_cmp_eq_u32 {T_N}, 3")
    a("s_cselect_b32 s31, 0xffff, s31")
    a(f"s_cmp_eq_u32 {T_N}, 2")
    a("s_cselect_b32 s31, 0, s31")
    a("s_mov_b32 s33, 0")
    a(f"s_cmp_eq_u32 {T_N}, 5")
    a("s_cselect_b32 s32, 0xffff, 0")
    a("v_xor_b32 v10, v1, v2")
    a("v_lshlrev_b32 v10, 4, v10")
    a("v_lshl_add_u32 v10, v2, 8, v10")
    a(f"s_lshl_b32 s90, {T_ST}, 12")
    a(f"s_add_u32 s90, s90, {L_K}")
    a("v_add_u32 v112, s90, v10")
    a("v_xor_b32 v113, 64, v112")
    a("v_xor_b32 v114, 0x80, v112")
    a("v_xor_b32 v115, 0xc0, v112")
    a("v_and_b32 v10, 3, v2")
    a(f"v_mul_u32_u24 v10, {APITCH}, v10")
    a("v_lshl_add_u32 v116, v1, 4, v10")
    a("v_cmp_eq_u32 s[34:35], 1, v1")
    a("v_cmp_eq_u32 s[36:37], 2, v1")
    a("v_cmp_eq_u32 s[38:39], 3, v1")
    for r in range(80, 100): a(f"v_mov_b32 v{r}, 0")
    NEG = "s29"
    a(f"s_mov_b32 {NEG}, 0xff800000")
    spin_lds(F_3, 2, "v3", "v5", sleep=False)
    spin_lds(F_LC, T_K, "v3", "v5", sleep=False)
    stamp(4)
    mark(11, "v3")
    def k_reads(tt, base):
        for t in range(4):
            a(f"ds_read_b128 v[{base+4*t}:{base+4*t+3}], v{112+t} offset:{4096*tt}")
    def qk_mfma(tt, base):
        acc = f"v[{80+4*tt}:{83+4*tt}]"
        for t in range(4):
            c = "0" if t == 0 else acc
            a(f"v_mfma_f32_16x16x32_bf16 {acc}, v[{16+4*t}:{19+4*t}], v[{base+4*t}:{base+4*t+3}], {c}")
    for t in range(4):
        a(f"ds_read_b128 v[{16+4*t}:{19+4*t}], v116 offset:{L_Q+64*t}")
    k_reads(0, 32)
    k_reads(1, 48)
    a(f"s_cmp_eq_u32 {T_N}, 2")
    a("s_cbranch_scc1 L_qk_n2")
    k_reads(2, 64)
    a("s_waitcnt lgkmcnt(8)")
    qk_mfma(0, 32)
    a(f"s_cmp_eq_u32 {T_N}, 3")
    a("s_cbranch_scc1 L_qk_n3")
    k_reads(3, 32)
    a("s_waitcnt lgkmcnt(8)")
    qk_mfma(1, 48)
    a(f"s_cmp_eq_u32 {T_N}, 4")
    a("s_cbranch_scc1 L_qk_n4")
    k_reads(4, 48)
    a("s_waitcnt lgkmcnt(8)")
    qk_mfma(2, 64)
    a("s_waitcnt lgkmcnt(4)")
    qk_mfma(3, 32)
    a("s_waitcnt lgkmcnt(0)")
    qk_mfma(4, 48)
    a("s_branch L_qk_done")
    a.label("L_qk_n4")
    a("s_waitcnt lgkmcnt(4)")
    qk_mfma(2, 64)
    a("s_waitcnt lgkmcnt(0)")
    qk_mfma(3, 32)
    a("s_branch L_qk_done")
    a.label("L_qk_n3")
    a("s_waitcnt lgkmcnt(4)")
    qk_mfma(1, 48)
    a("s_waitcnt lgkmcnt(0)")
    qk_mfma(2, 64)
    a("s_branch L_qk_done")
    a.label("L_qk_n2")
    a("s_waitcnt lgkmcnt(4)")
    qk_mfma(0, 32)
    a("s_waitcnt lgkmcnt(0)")
    qk_mfma(1, 48)
    a.label("L_qk_done")
    arrive(F_KC, "v3", "v4")
    a("s_nop 7")
    for r in range(4): a(f"v_cndmask_b32 v{48+r}, v{80+r}, v{84+r}, s[34:35]")
    for r in range(4): a(f"v_cndmask_b32 v{48+r}, v{48+r}, v{88+r}, s[36:37]")
    for r in range(4): a(f"v_cndmask_b32 v{48+r}, v{48+r}, v{92+r}, s[38:39]")
    a(f"s_mov_b32 s94, {SCALE:#x}")
    for (d, sr) in ((20, 96), (16, 48)):
        bf16r2(f"v{d}", f"v{d+1}", f"v{sr}", f"v{sr+1}", "v32")
        bf16r2(f"v{d+2}", f"v{d+3}", f"v{sr+2}", f"v{sr+3}", "v33")
    for r in range(8): a(f"v_mul_f32 v{16+r}, s94, v{16+r}")
    for d in (16, 20):
        bf16r2(f"v{d}", f"v{d+1}", f"v{d}", f"v{d+1}", "v32")
        bf16r2(f"v{d+2}", f"v{d+3}", f"v{d+2}", f"v{d+3}", "v33")
    a(f"v_mov_b32 v34, {NEG}")
    for r in range(4): a(f"v_cndmask_b32 v{16+r}, v34, v{16+r}, s[30:31]")
    for r in range(4): a(f"v_cndmask_b32 v{20+r}, v34, v{20+r}, s[32:33]")
    for r in range(4): a(f"v_max_f32 v{24+r}, v{16+r}, v{20+r}")
    allreduce(["v24", "v25", "v26", "v27"], "v_max_f32", [], ["x1", "x2", "x4", "x8"])
    for r in range(4): a(f"v_max_f32_dpp v{24+r}, v{24+r}, v{24+r} row_bcast:15 row_mask:0xa bank_mask:0xf")
    for r in range(4): a(f"v_max_f32_dpp v{24+r}, v{24+r}, v{24+r} row_bcast:31 row_mask:0xc bank_mask:0xf")
    a(f"s_lshl_b32 s90, {S_W}, 4")
    a("v_mov_b32 v10, s90")
    a("s_mov_b32 exec_lo, 0")
    a("s_mov_b32 exec_hi, 0x80000000")
    a(f"ds_write_b128 v10, v[24:27] offset:{L_MX}")
    a(f"ds_add_u32 v3, v4 offset:{F_MB1}")
    a("s_mov_b64 exec, -1")
    a(f"s_lshl_b32 s90, {T_ST}, 5")
    a(f"s_add_u32 s90, s90, {L_P}")
    a("v_lshl_add_u32 v10, v0, 1, s90")
    spin_lds(F_MB1, 4, "v3", "v5", sleep=False)
    for w in range(4):
        a(f"ds_read_b128 v[{32+4*w}:{35+4*w}], v3 offset:{L_MX+16*w}")
    a(f"s_mov_b32 s94, {LOG2E:#x}")
    a("s_waitcnt lgkmcnt(0)")
    for r in range(4):
        a(f"v_max3_f32 v{24+r}, v{32+r}, v{36+r}, v{40+r}")
    for r in range(4):
        a(f"v_max_f32 v{24+r}, v{24+r}, v{44+r}")
    for r in range(8): a(f"v_sub_f32 v{16+r}, v{16+r}, v{24+(r&3)}")
    for r in range(8): a(f"v_mul_f32 v{16+r}, s94, v{16+r}")
    for r in range(8): a(f"v_exp_f32 v{16+r}, v{16+r}")
    a("v_cvt_pk_bf16_f32 v28, v16, v17")
    a("v_cvt_pk_bf16_f32 v29, v18, v19")
    a("v_cvt_pk_bf16_f32 v30, v20, v21")
    a("v_cvt_pk_bf16_f32 v31, v22, v23")
    a("s_mov_b64 exec, s[30:31]")
    a("ds_write_b16 v10, v28")
    a(f"ds_write_b16_d16_hi v10, v28 offset:{PPITCH}")
    a(f"ds_write_b16 v10, v29 offset:{2*PPITCH}")
    a(f"ds_write_b16_d16_hi v10, v29 offset:{3*PPITCH}")
    a(f"s_cmp_lg_u32 {T_N}, 5")
    a("s_cbranch_scc1 L_p_w1")
    a("s_mov_b64 exec, s[32:33]")
    a("ds_write_b16 v10, v30 offset:128")
    a(f"ds_write_b16_d16_hi v10, v30 offset:{PPITCH+128}")
    a(f"ds_write_b16 v10, v31 offset:{2*PPITCH+128}")
    a(f"ds_write_b16_d16_hi v10, v31 offset:{3*PPITCH+128}")
    a.label("L_p_w1")
    a("s_mov_b64 exec, 1")
    a(f"ds_add_u32 v3, v4 offset:{F_MB2}")
    a("s_mov_b64 exec, -1")
    a.label("L_m_pv")
    stamp(5)
    a("v_lshrrev_b32 v10, 2, v2")
    a(f"v_mul_u32_u24 v10, {PPITCH}, v10")
    a("v_lshl_add_u32 v10, v1, 4, v10")
    a(f"v_add_u32 v60, {L_P}, v10")
    a(f"v_add_u32 v61, {L_V}, v13")
    a(f"v_add_u32 v62, {L_V}, v14")
    a("v_lshl_add_u32 v63, v1, 14, v9")
    a(f"v_mov_b32 v65, {S_TAG}")
    for r in range(8): a(f"v_mov_b32 v{48+r}, 0")
    spin_lds(F_MB2, 4, "v3", "v5", sleep=False)
    a(f"s_add_u32 s95, {T_K}, 8")
    a("s_mov_b32 s96, -1000")
    def pv_ensure(tagl):
        G = f"L_pv_go{tagl}"; S = f"L_pv_sp{tagl}"
        a("s_cmp_ge_i32 s96, s95")
        a(f"s_cbranch_scc1 {G}")
        a.label(S)
        a(f"ds_read_b32 v5, v3 offset:{F_LC}")
        a("s_waitcnt lgkmcnt(0)")
        a("v_readfirstlane_b32 s96, v5")
        a("s_cmp_ge_i32 s96, s95")
        a(f"s_cbranch_scc1 {G}")
        timeout()
        a(f"s_branch {S}")
        a.label(G)
    def pv_reads(b):
        a(f"ds_read_b128 v[{b}:{b+3}], v60")
        a(f"ds_read_b64_tr_b16 v[{b+4}:{b+5}], v61")
        a(f"ds_read_b64_tr_b16 v[{b+6}:{b+7}], v61 offset:1024")
        a(f"ds_read_b64_tr_b16 v[{b+8}:{b+9}], v62")
        a(f"ds_read_b64_tr_b16 v[{b+10}:{b+11}], v62 offset:1024")
        a("v_add_u32 v60, 64, v60")
        a("v_add_u32 v61, 0x2000, v61")
        a("v_add_u32 v62, 0x2000, v62")
        a("s_add_u32 s95, s95, 8")
    def pv_mfma(b):
        a(f"v_mfma_f32_16x16x32_bf16 v[48:51], v[{b}:{b+3}], v[{b+4}:{b+7}], v[48:51]")
        a(f"v_mfma_f32_16x16x32_bf16 v[52:55], v[{b}:{b+3}], v[{b+8}:{b+11}], v[52:55]")
    pv_ensure("0")
    pv_reads(16)
    a.label("L_pv_loop")
    pv_ensure("1")
    pv_reads(28)
    a("s_waitcnt lgkmcnt(5)")
    pv_mfma(16)
    pv_ensure("2")
    pv_reads(16)
    a("s_waitcnt lgkmcnt(5)")
    pv_mfma(28)
    a(f"s_cmp_le_i32 s95, {T_V}")
    a("s_cbranch_scc1 L_pv_loop")
    a("s_waitcnt lgkmcnt(0)")
    pv_mfma(16)
    stamp(6)
    a("s_nop 4")
    a("v_cvt_pk_bf16_f32 v64, v48, v52")
    store_loc(f"buffer_store_dwordx2 v[64:65], v63, {WSRD}, {O_O} offen")
    arrive(F_PO, "v3", "v4")
    stamp(7)
    mark(12, "v3")
    spin_lds(F_WOL, 1, "v3", "v5", sleep=False)
    a(f"s_mul_i32 s90, {S_B}, {L_WO_B - L_WO}")
    a(f"s_add_u32 s90, s90, {L_WO}")
    a("v_add_u32 v10, s90, v7")
    loadB("v10", 4, 4096, 512)
    a("s_waitcnt lgkmcnt(0)")
    a("s_barrier")
    gemv(L_ACT4, 4)
    publish_pair(O_A4)
    arrive(F_PA, "v3", "v4")
    stamp(8)
    mark(13, "v3")
    spin_lds(F_LATE, 1, "v3", "v5")
    a(f"s_lshr_b32 s90, {S_W}, 1")
    a("s_lshl_b32 s90, s90, 13")
    a(f"s_mul_i32 s91, {S_B}, {(L_G_B - L_G) if cfg.bearly else 0}")
    a("s_add_u32 s90, s90, s91")
    a(f"s_add_u32 s90, s90, {L_G}")
    a("v_add_u32 v11, s90, v12")
    loadB("v11", 4, 2048, 256)
    a(f"s_mul_i32 s90, {S_B}, {(L_DN_B - L_DN) if (cfg.bearly or cfg.dnwo) else 0}")
    a(f"s_add_u32 s90, s90, {L_DN}")
    a("v_add_u32 v15, s90, v7")
    a("s_waitcnt lgkmcnt(0)")
    a("s_barrier")
    a(f"s_cmp_eq_u32 {S_CB}, 7")
    a("s_cbranch_scc1 L_m_s7")
    gemv(L_ACT6, 4)
    publish(13, O_GU, local=True)
    a.label("L_m_s7")
    arrive(F_PG, "v3", "v4")
    stamp(9)
    spin_lds(F_DN, 1, "v3", "v5", sleep=False)
    loadB("v15", 2, 4096, 512, base=64)
    a("s_waitcnt lgkmcnt(0)")
    a("s_barrier")
    gemv(L_ACT7, 2, bbase=64)
    publish_pair(O_DN)
    arrive(F_PD, "v3", "v4")
    stamp(10)
    mark(15, "v3")
    dump_stamps(11)
    a("s_endpgm")

    def r1_block(uid, vz):
        a(f"s_sub_u32 s90, {S_W}, 4")
        a("s_lshr_b32 s91, s90, 1")
        a("s_and_b32 s94, s90, 1")
        a("s_lshl_b32 s99, s94, 8")
        a(f"s_lshl_b32 s100, {S_X}, 16")
        a("s_add_u32 s99, s99, s100")
        a(f"s_lshl_b32 s100, {S_KQ}, 14")
        a("s_add_u32 s99, s99, s100")
        a("s_lshl_b32 s100, s91, 13")
        a("s_add_u32 s99, s99, s100")
        a(f"s_add_u32 s99, s99, {W_O}")
        a(f"s_lshl_b32 s100, {S_X}, 11")
        a("s_lshl_b32 s90, s91, 10")
        a("s_add_u32 s100, s100, s90")
        a(f"s_lshl_b32 s90, {S_KQ}, 8")
        a("s_add_u32 s100, s100, s90")
        a(f"s_add_u32 s100, s100, {W_ST}")
        a("v_lshrrev_b32 v48, 5, v0")
        a("v_and_b32 v49, 31, v0")
        a("v_lshlrev_b32 v50, 12, v48")
        a("v_lshl_add_u32 v50, v49, 3, v50")
        a("v_and_b32 v51, 7, v0")
        a("v_lshl_add_u32 v51, v48, 3, v51")
        a("v_lshlrev_b32 v51, 4, v51")
        a(f"s_mul_i32 s91, s91, {APITCH}")
        a("s_lshl_b32 s94, s94, 7")
        a("s_add_u32 s91, s91, s94")
        a("v_bfe_u32 v52, v0, 4, 1")
        a("v_lshlrev_b32 v52, 6, v52")
        a("v_and_b32 v53, 15, v0")
        a("v_lshl_add_u32 v52, v53, 1, v52")
        a("v_lshl_add_u32 v52, v48, 5, v52")
        a("v_add_u32 v52, s91, v52")
        loads = [f"buffer_load_dwordx4 v[32:35], v51, {WSRD}, s100 offen sc1"]; tags = ["v33", "v35"]
        for i in range(8):
            loads.append(f"buffer_load_dwordx2 v[{16+2*i}:{17+2*i}], v50, {WSRD}, s99 offen offset:{512*i} sc1")
            tags.append(f"v{17+2*i}")
        if cfg.warm:
            for l in loads: a(l)
        after_own(F_PO, 4, vz, "v54", cfg.d_r1)
        stamp(7 if uid != "q" else 4)
        poll(loads, tags, "v54", sleep=cfg.rsl_l)
        if uid == "q": stamp(10)
        a("v_mov_b32 v55, v32")
        allreduce(["v55"], "v_max_f32", ["v56"], ["x1", "x2", "x4", "x32"])
        a(f"s_mov_b32 s94, {LOG2E:#x}")
        a("v_sub_f32 v56, v32, v55")
        for i in range(4): a(f"v_lshlrev_b32 v{36+2*i}, 16, v{16+2*i}"); a(f"v_and_b32 v{37+2*i}, 0xffff0000, v{16+2*i}")
        a("v_mul_f32 v56, s94, v56")
        a("v_exp_f32 v56, v56")
        for i in range(4, 8): a(f"v_lshlrev_b32 v{36+2*i}, 16, v{16+2*i}"); a(f"v_and_b32 v{37+2*i}, 0xffff0000, v{16+2*i}")
        a("v_mul_f32 v57, v56, v34")
        allreduce(["v57"], "v_add_f32", ["v58"], ["x1", "x2", "x4", "x32"])
        a("v_rcp_f32 v57, v57")
        a("v_mov_b32 v58, 0")
        a("v_mov_b32 v59, 0")
        a("v_mul_f32 v56, v56, v57")
        for i in range(8):
            a(f"v_fmac_f32_dpp v58, v56, v{36+2*i} row_newbcast:{i} row_mask:0xf bank_mask:0xf")
            a(f"v_fmac_f32_dpp v59, v56, v{37+2*i} row_newbcast:{i} row_mask:0xf bank_mask:0xf")
        a("v_permlane32_swap_b32 v58, v59")
        a("v_add_f32 v58, v58, v59")
        a("v_cvt_pk_bf16_f32 v58, v58, v58")
        a(f"ds_write_b16 v52, v58 offset:{L_ACT4}")
        a("s_waitcnt lgkmcnt(0)")

    a.label("L_gwave")
    a(f"s_cmp_eq_u32 {S_W}, 4")
    a("s_cbranch_scc1 L_slice")
    a(f"s_cmp_eq_u32 {S_W}, 7")
    a("s_cbranch_scc1 L_aux")

    SB = "s97"
    a("s_mov_b64 s[36:37], s[42:43]")
    a("v_lshlrev_b32 v2, 2, v0")
    a("v_mov_b32 v10, 1")
    a(f"s_mul_i32 s98, {SB}, {APITCH}")
    a("v_add_u32 v11, s98, v2")
    a("v_mov_b32 v19, 0")
    a("s_waitcnt vmcnt(0)")
    stamp(1)
    a("v_lshlrev_b32 v12, 16, v9")
    a("v_and_b32 v13, 0xffff0000, v9")
    a(f"s_mov_b32 s94, {LOG2E:#x}")
    for r in (12, 13): a(f"v_mul_f32 v{r+2}, s94, v{r}")
    for r in (12, 13): a(f"v_exp_f32 v{r+2}, -v{r+2}")
    for r in (12, 13): a(f"v_add_f32 v{r+2}, 1.0, v{r+2}")
    for r in (12, 13): a(f"v_rcp_f32 v{r+2}, v{r+2}")
    for r in (12, 13): a(f"v_mul_f32 v{r}, v{r}, v{r+2}")
    a("v_cvt_pk_bf16_f32 v12, v12, v13")
    a(f"ds_write_b32 v11, v12 offset:{L_ACT1}")
    arrive(F_1, "v19", "v10")
    get_tag()
    a("v_mov_b32 v3, 0")

    def ln_finish(mean, var, x0, x1, tmp):
        bf16r2(mean, var, mean, var, tmp)
        a(f"s_mov_b32 s94, {EPS:#x}")
        a(f"v_add_f32 {var}, s94, {var}")
        bf16r1(var, var)
        a(f"v_sqrt_f32 {var}, {var}")
        a(f"v_sub_f32 {x0}, {x0}, {mean}")
        a(f"v_sub_f32 {x1}, {x1}, {mean}")
        bf16r1(var, var)
        a(f"v_rcp_f32 {var}, {var}")
        bf16r2(x0, x1, x0, x1, tmp)
        a(f"v_mul_f32 {x0}, {x0}, {var}")
        a(f"v_mul_f32 {x1}, {x1}, {var}")
        bf16r2(x0, x1, x0, x1, tmp)

    def quarter_gather(chunkA, chunkB, qreg, pre=None, sample=False, hook=None):
        for (ch, sreg) in ((chunkA, "s90"), (chunkB, "s99")):
            sexpr(sreg, [(SB, "shl", 14), (qreg, "shl", 12)], W_MOD + ch*32768)
        loads = []; tags = []
        for i in range(4):
            loads.append(f"buffer_load_dwordx4 v[{16+4*i}:{19+4*i}], v1, {WSRD}, s90 offen offset:{1024*i} sc1")
            loads.append(f"buffer_load_dwordx4 v[{32+4*i}:{35+4*i}], v1, {WSRD}, s99 offen offset:{1024*i} sc1")
            tags += [f"v{17+4*i}", f"v{19+4*i}", f"v{33+4*i}", f"v{35+4*i}"]
        if pre: pre()
        poll(loads, tags, "v50", sample=sample, hook=hook)
        for (base, d0, d1) in ((16, "v14", "v15"), (32, "v48", "v49")):
            a(f"v_add_f32 {d0}, v{base}, v{base+4}")
            a(f"v_add_f32 {d1}, v{base+2}, v{base+6}")
            a(f"v_add_f32 v50, v{base+8}, v{base+12}")
            a(f"v_add_f32 v51, v{base+10}, v{base+14}")
            a(f"v_add_f32 {d0}, {d0}, v50")
            a(f"v_add_f32 {d1}, {d1}, v51")
            bf16r2(d0, d1, d0, d1, "v50")

    def modulate(x0, x1, sc0, sc1, sh0, sh1, dst, tmp):
        a(f"v_mul_f32 {x0}, {x0}, {sc0}")
        a(f"v_mul_f32 {x1}, {x1}, {sc1}")
        bf16r2(x0, x1, x0, x1, tmp)
        a(f"v_add_f32 {x0}, {x0}, {sh0}")
        a(f"v_add_f32 {x1}, {x1}, {sh1}")
        a(f"v_cvt_pk_bf16_f32 {dst}, {x0}, {x1}")

    a(f"s_cmp_eq_u32 {S_B}, 0")
    a("s_cbranch_scc1 L_q_qg")
    for i in range(4):
        a(f"v_lshlrev_b32 v{16+2*i}, 16, v{4+i}")
        a(f"v_and_b32 v{17+2*i}, 0xffff0000, v{4+i}")
    a("v_add_f32 v24, v16, v17")
    a("v_add_f32 v25, v18, v19")
    a("v_add_f32 v26, v20, v21")
    a("v_add_f32 v27, v22, v23")
    a("v_add_f32 v24, v24, v25")
    a("v_add_f32 v26, v26, v27")
    a("v_add_f32 v24, v24, v26")
    allreduce(["v24"], "v_add_f32", ["v28"], FULL)
    a(f"s_mov_b32 s94, {INV512:#x}")
    a("v_mul_f32 v24, s94, v24")
    for i in range(8): a(f"v_sub_f32 v{16+i}, v{16+i}, v24")
    a("v_mul_f32 v25, v16, v16")
    for i in range(1, 8): a(f"v_fmac_f32 v25, v{16+i}, v{16+i}")
    allreduce(["v25"], "v_add_f32", ["v28"], FULL)
    a("v_mul_f32 v25, s94, v25")
    a("v_lshlrev_b32 v12, 16, v8")
    a("v_and_b32 v13, 0xffff0000, v8")
    ln_finish("v24", "v25", "v12", "v13", "v28")
    if cfg.warm:
        a(f"s_lshr_b32 s90, {S_SPL}, 1")
        a(f"s_and_b32 s91, {S_SPL}, 1")
        sexpr("s99", [(S_X, "shl", 15), (SB, "shl", 14), ("s90", "shl", 12), ("s91", "shl", 9)], W_Q)
        a("s_mov_b32 exec_hi, 0")
        for i in range(4):
            a(f"buffer_load_dwordx4 v[{16+4*i}:{19+4*i}], v1, {WSRD}, s99 offen offset:{1024*i} sc1")
        a("s_mov_b32 exec_hi, -1")
    a(f"s_lshr_b32 s100, {S_SPL}, 1")
    quarter_gather(0, 1, "s100", pre=lambda: a(f"s_sleep {cfg.d_h}"), hook=(lambda: arrive(F_HI, "v3", "v10")) if cfg.wqsplit < 16 else None)
    a("v_add_f32 v48, 1.0, v48")
    a("v_add_f32 v49, 1.0, v49")
    bf16r2("v48", "v49", "v48", "v49", "v50")
    modulate("v12", "v13", "v48", "v49", "v14", "v15", "v16", "v50")
    a(f"ds_write_b32 v11, v16 offset:{L_ACT2}")
    arrive(F_2, "v3", "v10")
    stamp(2)
    a(f"s_lshr_b32 s90, {S_SPL}, 1")
    a(f"s_and_b32 s91, {S_SPL}, 1")
    sexpr("s99", [(S_X, "shl", 15), (SB, "shl", 14), ("s90", "shl", 12), ("s91", "shl", 9)], W_Q)
    sexpr("s100", [(S_X, "shl", 12), (SB, "shl", 11), (S_SPL, "shl", 8)], W_QF)
    a("v_lshlrev_b32 v54, 3, v0")
    a("s_mov_b32 exec_hi, 0")
    loads = []; tags = []
    for i in range(4):
        loads.append(f"buffer_load_dwordx4 v[{16+4*i}:{19+4*i}], v1, {WSRD}, s99 offen offset:{1024*i} sc1")
        tags += [f"v{17+4*i}", f"v{19+4*i}"]
    get_mode("v3", "v50")
    after_own(F_PQ, 4, "v3", "v50", cfg.d_q)
    poll(loads, tags, "v50", sleep=0)
    a("v_add_f32 v48, v16, v20")
    a("v_add_f32 v49, v18, v22")
    a("v_add_f32 v50, v24, v28")
    a("v_add_f32 v51, v26, v30")
    a("v_add_f32 v48, v48, v50")
    a("v_add_f32 v49, v49, v51")
    a(f"v_mov_b32 v53, {S_TAG}")
    a("v_cvt_pk_bf16_f32 v52, v48, v49")
    store_loc(f"buffer_store_dwordx2 v[52:53], v54, {WSRD}, s100 offen")
    a("s_mov_b64 exec, -1")
    arrive(F_QF, "v3", "v10")
    a.label("L_q_qg")
    sexpr("s90", [(S_X, "shl", 12), (S_BT, "shl", 11), (SB, "shl", 10)], W_QF)
    a("v_lshrrev_b32 v54, 5, v0")
    a(f"v_mul_u32_u24 v54, {APITCH}, v54")
    a("v_and_b32 v55, 31, v0")
    a("v_lshl_add_u32 v54, v55, 3, v54")
    a(f"s_mul_i32 s100, {SB}, {2*APITCH}")
    a("v_add_u32 v54, s100, v54")
    ldA = f"buffer_load_dwordx4 v[16:19], v1, {WSRD}, s90 offen sc1"
    ldB = f"buffer_load_dwordx4 v[20:23], v1, {WSRD}, s90 offen sc1"
    a(f"s_cmp_eq_u32 {S_B}, 0")
    a("s_cbranch_scc1 L_q_qA")
    after_own(F_QF, 2, "v3", "v50", cfg.d_q)
    a("s_branch L_q_qP")
    a.label("L_q_qA")
    if cfg.quiet: spin_lds(F_LC, cfg.quiet, "v3", "v50")
    a.label("L_q_qP")
    a(ldA)
    a(f"s_sleep {cfg.qsl2}")
    a.label("L_q_loop")
    a(ldB)
    a("s_waitcnt vmcnt(1)")
    a(f"v_xor_b32 v50, {S_TAG}, v17")
    a(f"v_bitop3_b32 v50, v50, v19, {S_TAG} bitop3:0xf6")
    a("v_cmp_ne_u32 vcc, 0, v50")
    a("s_cbranch_vccz L_q_gotA")
    timeout()
    a(ldA)
    a("s_waitcnt vmcnt(1)")
    a(f"v_xor_b32 v50, {S_TAG}, v21")
    a(f"v_bitop3_b32 v50, v50, v23, {S_TAG} bitop3:0xf6")
    a("v_cmp_ne_u32 vcc, 0, v50")
    a("s_cbranch_vccnz L_q_loop")
    a("v_mov_b32 v24, v20")
    a("v_mov_b32 v25, v22")
    a("s_branch L_q_got")
    a.label("L_q_gotA")
    a("v_mov_b32 v24, v16")
    a("v_mov_b32 v25, v18")
    a.label("L_q_got")
    a(f"ds_write_b64 v54, v[24:25] offset:{L_Q}")
    arrive(F_3, "v3", "v10")
    stamp(3)
    a("s_waitcnt vmcnt(0)")
    if cfg.g_late: gate_lc(cfg.g_late, cfg.g_late * NK_B // NK_A, "v3", "v50")
    sexpr("s90", [(SB, "shl", 11), (S_KQ, "shl", 9)], W_MODF + 3*4096)
    a("s_add_u32 s99, s90, 4096")
    a("v_lshlrev_b32 v54, 3, v0")
    if cfg.warm:
        a(f"s_mul_i32 s94, {S_KQ}, 448")
        sexpr("s24", [(S_X, "shl", 15), (SB, "shl", 13), ("s94", "shl", 0)], W_GU, tmp="s25")
        a("s_add_u32 s25, s24, 4096")
        a("s_add_u32 s26, s24, 16384")
        a("s_add_u32 s27, s24, 20480")
        for wh in range(2):
            for k6 in range(4):
                sr = [["s24", "s25"], ["s26", "s27"]][wh][k6 >> 1]
                rb = 20 + 8*wh + 2*k6
                a(f"buffer_load_dwordx2 v[{rb}:{rb+1}], v54, {WSRD}, {sr} offen offset:{2048*(k6&1)} sc1")
        sexpr("s24", [(S_X, "shl", 10), (SB, "shl", 9)], W_X1S)
        sexpr("s25", [(S_X, "shl", 12), (SB, "shl", 11), (S_KQ, "shl", 9)], W_X1P)
        a(f"buffer_load_dwordx2 v[36:37], v54, {WSRD}, s24 offen sc1")
        a(f"buffer_load_dwordx2 v[38:39], v54, {WSRD}, s25 offen sc1")
    poll([f"buffer_load_dwordx2 v[16:17], v54, {WSRD}, s90 offen sc1",
          f"buffer_load_dwordx2 v[18:19], v54, {WSRD}, s99 offen sc1"], ["v17", "v19"], "v50", sleep=8)
    a("v_lshlrev_b32 v66, 16, v16")
    a("v_and_b32 v67, 0xffff0000, v16")
    a("v_lshlrev_b32 v48, 16, v18")
    a("v_and_b32 v49, 0xffff0000, v18")
    a("v_add_f32 v48, 1.0, v48")
    a("v_add_f32 v49, 1.0, v49")
    bf16r2("v64", "v65", "v48", "v49", "v50")
    r1_block("q", "v3")
    stamp(5)
    a("s_barrier")
    sexpr("s99", [(S_X, "shl", 10), (SB, "shl", 9)], W_X1S)
    sexpr("s90", [(S_X, "shl", 12), (SB, "shl", 11), (S_KQ, "shl", 9)], W_X1P)
    a("v_lshlrev_b32 v16, 3, v0")
    a("v_and_b32 v17, 31, v0")
    a("v_lshlrev_b32 v17, 4, v17")
    after_own(F_PX, 1, "v3", "v50", cfg.d_x1)
    stamp(8)
    poll([f"buffer_load_dwordx4 v[24:27], v17, {WSRD}, s99 offen sc1",
          f"buffer_load_dwordx2 v[20:21], v16, {WSRD}, s90 offen sc1"], ["v21", "v25", "v27"], "v50", sleep=cfg.rsl_l)
    stamp(9)
    allreduce(["v24", "v26"], "v_add_f32", ["v28", "v29"], ["x1", "x2", "x4", "x8", "x16"])
    a(f"s_mov_b32 s94, {INV512:#x}")
    a("v_mul_f32 v24, s94, v24")
    a("v_mul_f32 v26, s94, v26")
    a("v_lshlrev_b32 v12, 16, v20")
    a("v_fma_f32 v26, -v24, v24, v26")
    a("v_and_b32 v13, 0xffff0000, v20")
    a("v_max_f32 v26, 0, v26")
    ln_finish("v24", "v26", "v12", "v13", "v30")
    modulate("v12", "v13", "v64", "v65", "v66", "v67", "v16", "v30")
    a(f"ds_write_b32 v11, v16 offset:{L_ACT6}")
    a(f"s_mul_i32 s94, {S_KQ}, 448")
    sexpr("s90", [(S_X, "shl", 15), (SB, "shl", 13), ("s94", "shl", 0)], W_GU, tmp="s99")
    a("s_add_u32 s94, s90, 4096")
    a("s_add_u32 s99, s90, 16384")
    a("s_add_u32 s100, s90, 20480")
    a("s_waitcnt lgkmcnt(0)")
    stamp(6)
    a("s_barrier")
    a("v_lshlrev_b32 v16, 3, v0")
    a("v_mov_b32 v40, 0")
    a("v_lshlrev_b32 v17, 1, v0")
    a("v_add_u32 v17, s98, v17")
    a("s_mov_b32 exec_lo, -1")
    a("s_mov_b32 exec_hi, 0x00ffffff")
    loads = []; tags = []
    for wh in range(2):
        for k6 in range(4):
            sr = [["s90", "s94"], ["s99", "s100"]][wh][k6 >> 1]
            rb = 20 + 8*wh + 2*k6
            loads.append(f"buffer_load_dwordx2 v[{rb}:{rb+1}], v16, {WSRD}, {sr} offen offset:{2048*(k6&1)} sc1")
            tags.append(f"v{rb+1}")
    after_own(F_PG, 4, "v3", "v50", cfg.d_gu)
    poll(loads, tags, "v50", sleep=cfg.rsl_l)
    a("v_add_f32 v36, v20, v22")
    a("v_add_f32 v37, v24, v26")
    a("v_add_f32 v38, v28, v30")
    a("v_add_f32 v39, v32, v34")
    a("v_add_f32 v36, v36, v37")
    a("v_add_f32 v38, v38, v39")
    bf16r2("v36", "v38", "v36", "v38", "v50")
    a("v_mul_f32 v36, v36, v38")
    a("v_cvt_pk_bf16_f32 v40, v36, v36")
    a("s_mov_b64 exec, -1")
    a(f"ds_write_b16 v17, v40 offset:{L_ACT7}")
    a("s_waitcnt lgkmcnt(0)")
    stamp(7)
    a("s_barrier")
    dump_stamps(11)
    a("s_endpgm")

    a.label("L_slice")
    srd(48, 38, 2048)
    a("v_lshlrev_b32 v7, 4, v0")
    a("v_and_b32 v1, 3, v0")
    a("v_bfe_u32 v2, v0, 4, 1")
    a("v_bfe_u32 v4, v0, 3, 1")
    a("v_lshrrev_b32 v5, 5, v0")
    a("v_lshlrev_b32 v6, 2, v1")
    a("v_lshl_add_u32 v6, v2, 1, v6")
    a("v_add_u32 v6, v6, v4")
    a("v_lshlrev_b32 v8, 10, v5")
    a("v_lshl_add_u32 v8, v6, 1, v8")
    a(f"s_lshl_b32 s90, {S_LOC}, 5")
    a("buffer_load_ushort v9, v8, s[44:47], s90 offen")
    a("v_lshlrev_b32 v10, 4, v5")
    a("v_add_u32 v10, v10, v6")
    a("v_lshlrev_b32 v10, 2, v10")
    a("v_lshlrev_b32 v11, 1, v1")
    a("v_add_u32 v11, v11, v2")
    a("v_lshlrev_b32 v12, 11, v5")
    a("v_lshl_add_u32 v98, v11, 3, v12")
    a("v_lshlrev_b32 v99, 9, v5")
    a("v_lshlrev_b32 v12, 10, v5")
    a("v_lshl_add_u32 v97, v11, 2, v12")
    sexpr("s22", [(S_X, "shl", 12), (S_LOC, "shl", 6)], W_X1P)
    sexpr("s23", [(S_X, "shl", 10), (S_LOC, "shl", 4)], W_X1S)
    a(f"s_lshl_b32 s24, {S_LOC}, 5")
    a(f"s_lshl_b32 s17, {S_LOC}, 12")
    a("v_cmp_eq_u32 s[26:27], 1, v4")
    a("v_mov_b32 v100, 0x3f80")
    a("v_mov_b32 v101, 0x3f800000")
    a("s_waitcnt vmcnt(0)")
    get_tag()
    a("v_mov_b32 v3, 0")
    a("v_lshlrev_b32 v102, 16, v9")
    get_mode("v3", "v20")
    stamp(1)

    def part_loads(base, rb0=16, setup=True):
        if setup: a(f"s_add_u32 s20, s17, {base}")
        loads = []; tags = []
        for i in range(4):
            rb = rb0 + 4*i
            loads.append(f"buffer_load_dwordx4 v[{rb}:{rb+3}], v7, {WSRD}, s20 offen offset:{1024*i} sc1")
            tags += [f"v{rb+1}", f"v{rb+3}"]
        return loads, tags
    def part_loads_atomic(base):
        a(f"s_add_u32 s20, s17, {base}")
        loads = []; tags = []
        for r in range(16, 32): loads.append(f"v_mov_b32 v{r}, 0")
        for i in range(4):
            rb = 16 + 4*i
            for hh in range(2):
                loads.append(f"buffer_atomic_add_x2 v[{rb+2*hh}:{rb+2*hh+1}], v7, {WSRD}, s20 offen offset:{1024*i + 8*hh} sc0 sc1")
            tags += [f"v{rb+1}", f"v{rb+3}"]
        return loads, tags
    def part_dot(rb0):
        for b in range(2):
            for (k, (off, sel)) in enumerate(((0, "v100"), (0, "v101"), (2, "v100"), (2, "v101"))):
                a(f"v_dot2_f32_bf16 v{32+4*b+k}, v{rb0+8*b+off}, {sel}, 0")
        for b in range(2):
            for (k, (off, sel)) in enumerate(((0, "v100"), (0, "v101"), (2, "v100"), (2, "v101"))):
                a(f"v_dot2_f32_bf16 v{32+4*b+k}, v{rb0+4+8*b+off}, {sel}, v{32+4*b+k}")
    def part_sum(dot=True):
        if dot: part_dot(16)
        for c in range(4): a(f"v_permlane32_swap_b32 v{32+c}, v{36+c}")
        for c in range(4): a(f"v_add_f32 v{32+c}, v{32+c}, v{36+c}")
        a("v_permlane16_swap_b32 v32, v34")
        a("v_permlane16_swap_b32 v33, v35")
        a("v_add_f32 v32, v32, v34")
        a("v_add_f32 v33, v33, v35")
        a("v_cndmask_b32 v36, v32, v33, s[26:27]")
        a("v_cndmask_b32 v37, v33, v32, s[26:27]")
        a("v_add_f32_dpp v36, v37, v36 row_ror:8 row_mask:0xf bank_mask:0xf")
        a("v_add_f32_dpp v40, v36, v36 row_shl:4 row_mask:0xf bank_mask:0x5")
        a("v_add_f32_dpp v40, v36, v36 row_shr:4 row_mask:0xf bank_mask:0xa")
    def resid(gate):
        bf16r1("v40", "v40")
        a(f"v_mul_f32 v40, v40, {gate}")
        bf16r1("v40", "v40")
        a("v_add_f32 v102, v102, v40")
        bf16r1("v102", "v102")
    def make_pair(dst):
        a("v_mov_b32_dpp v41, v102 row_ror:8 row_mask:0xf bank_mask:0xf")
        a(f"v_cvt_pk_bf16_f32 {dst}, v102, v41")
    PUBM = "0x000f000f"

    l1, t1 = part_loads(W_A4)
    spin_lds(F_MB2, 4, "v3", "v15")
    a("v_lshrrev_b32 v16, 4, v0")
    a("v_and_b32 v17, 15, v0")
    a(f"v_mul_u32_u24 v18, {PPITCH}, v16")
    a("v_lshl_add_u32 v18, v17, 2, v18")
    a("v_lshlrev_b32 v19, 2, v16")
    a("v_mov_b32 v20, 0")
    a("v_mov_b32 v21, 0x3f803f80")
    for w in range(4): a(f"ds_read_b32 v{24+w}, v19 offset:{L_MX+16*w}")
    for i in range(NK_B // 32): a(f"ds_read_b32 v{32+i}, v18 offset:{L_P+64*i}")
    a(f"s_cmp_lg_u32 {S_B}, 0")
    a("s_cbranch_scc1 L_sl_stB")
    for i in range(NK_B // 32, NK_A // 32): a(f"ds_read_b32 v{32+i}, v18 offset:{L_P+64*i}")
    a("s_waitcnt lgkmcnt(0)")
    for i in range(NK_B // 32, NK_A // 32): a(f"v_dot2_f32_bf16 v20, v{32+i}, v21, v20")
    a.label("L_sl_stB")
    a("s_waitcnt lgkmcnt(0)")
    for i in range(NK_B // 32): a(f"v_dot2_f32_bf16 v20, v{32+i}, v21, v20")
    allreduce(["v20"], "v_add_f32", [], ["x1", "x2", "x4", "x8"])
    a("v_max3_f32 v24, v24, v25, v26")
    a("v_max_f32 v24, v24, v27")
    a(f"v_mov_b32 v25, {S_TAG}")
    a("v_mov_b32 v26, v20")
    a(f"v_mov_b32 v27, {S_TAG}")
    a("v_lshlrev_b32 v22, 8, v16")
    sexpr("s25", [(S_X, "shl", 11), (S_BT, "shl", 10), (S_SP, "shl", 4)], W_ST)
    a("s_mov_b32 exec_lo, 0x00010001")
    a("s_mov_b32 exec_hi, 0x00010001")
    store_loc(f"buffer_store_dwordx4 v[24:27], v22, {WSRD}, s25 offen")
    a("s_mov_b64 exec, -1")
    spin_lds(F_GA, 1, "v3", "v15")
    a(f"ds_read_b32 v103, v10 offset:{L_GA}")
    a(f"ds_read_b32 v104, v10 offset:{L_GB}")
    a("s_waitcnt lgkmcnt(0)")
    r1_block("s", "v3")
    a(f"v_mov_b32 v43, {S_TAG}")
    a(f"v_mov_b32 v45, {S_TAG}")
    a(f"v_mov_b32 v47, {S_TAG}")
    a("s_barrier")
    after_own(F_PA, 4, "v3", "v15", cfg.d_s5)
    stamp(2)
    if cfg.dbl:
        poll2(lambda rb: part_loads(0, rb, setup=False), "v15", "s5", part_dot)
        stamp(3)
        part_sum(dot=False)
    else:
        poll(l1, t1, "v15")
        stamp(3)
        part_sum()
    resid("v103")
    make_pair("v42")
    a("v_mul_f32 v46, v102, v102")
    a("v_mov_b32 v44, v102")
    a(f"s_mov_b32 exec_lo, {PUBM}")
    a(f"s_mov_b32 exec_hi, {PUBM}")
    store_loc(f"buffer_store_dwordx2 v[42:43], v98, {WSRD}, s22 offen")
    a("s_mov_b64 exec, -1")
    allreduce(["v44", "v46"], "v_add_f32", ["v48", "v49"], ["x1", "x2", "r8", "x16"])
    a("s_mov_b32 exec_lo, 1")
    a("s_mov_b32 exec_hi, 1")
    store_loc(f"buffer_store_dwordx4 v[44:47], v99, {WSRD}, s23 offen")
    a("s_mov_b64 exec, -1")
    a("v_mov_b32 v15, 1")
    arrive(F_PX, "v3", "v15")
    stamp(4)
    mark(14, "v3")
    a(f"s_and_b32 s90, {S_LOC}, 7")
    a(f"s_cmp_lg_u32 s90, {S_X}")
    a("s_cbranch_scc1 L_slice_nf")
    a("s_barrier")
    a("s_barrier")
    l1, t1 = part_loads_atomic(W_DN) if cfg.atom8 else part_loads(W_DN)
    after_own(F_PD, 4, "v3", "v15", cfg.d_s8)
    if cfg.dbl8 and not cfg.atom8:
        a("s_waitcnt vmcnt(0)")
        poll2(lambda rb: part_loads(0, rb, setup=False), "v15", "s8", part_dot)
        part_sum(dot=False)
    else:
        poll(l1, t1, "v15")
        part_sum()
    resid("v104")
    make_pair("v42")
    a(f"s_mov_b32 exec_lo, {PUBM}")
    a(f"s_mov_b32 exec_hi, {PUBM}")
    a("buffer_store_dword v42, v97, s[48:51], s24 offen")
    a(f"s_cmp_lg_u32 {S_WG}, 0")
    a("s_cbranch_scc1 L_slice_end")
    a("s_mov_b64 exec, 1")
    a(f"v_mov_b32 v24, {S_EP}")
    a("v_mov_b32 v21, 0")
    a(f"buffer_store_dword v24, v21, {WSRD}, 0 offen sc1")
    a.label("L_slice_end")
    if cfg.probe == 1:
        a("s_sleep 94")
        a("s_sleep 94")
    if cfg.probe >= 10:
        a(f"ds_read_b32 v20, v3 offset:{L_PRB}")
        a("s_waitcnt lgkmcnt(0)")
        a("v_readfirstlane_b32 s22, v20")
        a("s_mov_b32 s24, 100000")
        a.label("L_probe")
        a("s_memrealtime s[20:21]")
        a("s_waitcnt lgkmcnt(0)")
        a("s_sub_u32 s24, s24, 1")
        a("s_cbranch_scc1 L_probe_e")
        a("s_sub_u32 s23, s20, s22")
        a("s_cmp_lt_u32 s23, 2000")
        a("s_cbranch_scc1 L_probe")
        a.label("L_probe_e")
    if cfg.probe == 3:
        a("s_add_u32 s22, s62, 2500")
        a.label("L_probe")
        a("s_memrealtime s[20:21]")
        a("s_waitcnt lgkmcnt(0)")
        a("s_sub_u32 s23, s20, s22")
        a("s_cmp_lt_i32 s23, 0")
        a("s_cbranch_scc1 L_probe")
    if cfg.probe == 2:
        a("s_memrealtime s[20:21]")
        a("s_waitcnt lgkmcnt(0)")
        a("s_add_u32 s22, s20, 500")
        a.label("L_probe")
        a("s_memrealtime s[20:21]")
        a("s_waitcnt lgkmcnt(0)")
        a("s_sub_u32 s23, s20, s22")
        a("s_cmp_lt_i32 s23, 0")
        a("s_cbranch_scc1 L_probe")
    a("s_mov_b64 exec, -1")
    stamp(5)
    dump_stamps(6, final=True)
    a("s_endpgm")
    a.label("L_slice_nf")
    a("s_barrier")
    a("s_barrier")
    dump_stamps(5, final=True)
    a("s_endpgm")

    a.label("L_aux")
    srd(44, 28, 512*1792*2)
    srd(48, 30, 512*1792*2)
    srd(52, 32, 1792*512*2)
    a("v_mov_b32 v10, 1")
    sexpr("s18", [(S_X, "mul", 224*1024), (S_KQ, "mul", 56*1024), (S_CB, "shl", 7)])
    sexpr("s19", [(S_KQ, "mul", 128*3584), (S_X, "mul", 448), (S_CB, "shl", 6)])
    a("s_waitcnt vmcnt(0)")
    get_tag()
    strip_voff(3584, "v64")
    unit_voffs(pitch_shift=10, d0="v66", d1="v67")
    a("v_mov_b32 v3, 0")
    stamp(1)

    if cfg.g_piece:
        Lq = a.newlabel("Lgx")
        a(f"s_cmp_lg_u32 {S_B}, 0")
        a(f"s_cbranch_scc1 {Lq}")
        spin_lds(F_LC, cfg.g_piece, "v3", "v50")
        a.label(Lq)
    if cfg.local == 2:
        L = a.newlabel("Lxc"); E = a.newlabel("Lxce")
        srd(60, 40, 256)
        a(f"s_lshl_b32 s91, {S_X}, 5")
        a("s_add_u32 s91, s91, 8")
        a("v_mov_b32 v18, s91")
        a("s_getreg_b32 s90, hwreg(HW_REG_XCC_ID)")
        a("s_and_b32 s90, s90, 7")
        a("s_mul_i32 s90, s90, 6")
        a("s_lshl_b64 s[26:27], 1, s90")
        a("s_mov_b64 exec, 1")
        a.label(L)
        a("buffer_load_dwordx2 v[20:21], v18, s[60:63], 0 offen sc1")
        a("s_waitcnt vmcnt(0)")
        a("v_readfirstlane_b32 s20, v20")
        a("v_readfirstlane_b32 s21, v21")
        a("s_mov_b64 s[22:23], s[20:21]")
        a("s_mov_b32 s90, 0")
        for k in range(8):
            a("s_and_b32 s91, s22, 63")
            a("s_add_u32 s90, s90, s91")
            if k < 7: a("s_lshr_b64 s[22:23], s[22:23], 6")
        a("s_cmp_ge_u32 s90, 32")
        a(f"s_cbranch_scc1 {E}")
        timeout()
        a("s_sleep 2")
        a(f"s_branch {L}")
        a.label(E)
        a("s_lshl_b64 s[22:23], s[26:27], 5")
        a("s_cmp_eq_u64 s[20:21], s[22:23]")
        a("s_cselect_b32 s90, 1, 2")
        a("v_mov_b32 v16, s90")
        a(f"ds_write_b32 v3, v16 offset:{F_LM}")
        a("s_mov_b64 exec, -1")
    stamp(2)
    a(f"s_cmp_lg_u32 {S_B}, 0")
    a("s_cbranch_scc1 L_aux_ga")
    a(f"s_cmp_ge_u32 {S_SPL}, 16")
    a("s_cbranch_scc1 L_aux_ga")
    a(f"s_lshr_b32 s90, {S_X}, 1")
    a(f"s_and_b32 s91, {S_X}, 1")
    a(f"s_lshr_b32 s22, {S_SPL}, 2")
    a(f"s_and_b32 s23, {S_SPL}, 3")
    sexpr("s20", [("s90", "shl", 15), ("s91", "shl", 14), ("s22", "shl", 12), ("s23", "shl", 8)], W_MOD + 2*32768)
    sexpr("s21", [("s90", "shl", 12), ("s91", "shl", 11), (S_SPL, "shl", 7)], W_MODF + 2*4096)
    a("v_lshlrev_b32 v18, 3, v0")
    a("s_mov_b32 exec_hi, 0")
    loads = []; tags = []
    for i in range(4):
        loads.append(f"buffer_load_dwordx2 v[{40+2*i}:{41+2*i}], v18, {WSRD}, s20 offen offset:{1024*i} sc1")
        tags.append(f"v{41+2*i}")
    if cfg.g_piece: spin_lds(F_LC, cfg.g_piece, "v3", "v50")
    poll(loads, tags, "v60", sleep=6, sample=(not cfg.g_piece))
    a("v_add_f32 v40, v40, v42")
    a("v_add_f32 v44, v44, v46")
    a("v_add_f32 v40, v40, v44")
    a("v_lshlrev_b32 v18, 2, v0")
    a(f"v_mov_b32 v43, {S_TAG}")
    a("v_mov_b32_dpp v42, v40 quad_perm:[1,0,3,2] row_mask:0xf bank_mask:0xf")
    a("s_mov_b32 exec_lo, 0x55555555")
    a("v_cvt_pk_bf16_f32 v42, v40, v42")
    a(f"buffer_store_dwordx2 v[42:43], v18, {WSRD}, s21 offen sc1")
    a("s_mov_b64 exec, -1")
    a.label("L_aux_ga")
    if cfg.g_late: gate_lc(cfg.g_late, cfg.g_late * NK_B // NK_A, "v3", "v50")
    sexpr("s20", [(S_LOC, "shl", 6)], W_MODF + 2*4096)
    a(f"s_add_u32 s21, s20, {3*4096}")
    a("v_bfe_u32 v16, v0, 3, 1")
    a("v_and_b32 v17, 7, v0")
    a("v_lshlrev_b32 v18, 11, v16")
    a("v_lshl_add_u32 v18, v17, 3, v18")
    a("v_and_b32 v19, 15, v0")
    a("v_lshlrev_b32 v19, 3, v19")
    a("s_mov_b64 exec, 0xffff")
    poll([f"buffer_load_dwordx2 v[40:41], v18, {WSRD}, s20 offen sc1",
          f"buffer_load_dwordx2 v[42:43], v18, {WSRD}, s21 offen sc1"], ["v41", "v43"], "v60", sleep=8)
    a("v_lshlrev_b32 v44, 16, v40")
    a("v_and_b32 v45, 0xffff0000, v40")
    a("v_lshlrev_b32 v46, 16, v42")
    a("v_and_b32 v47, 0xffff0000, v42")
    a(f"ds_write_b64 v19, v[44:45] offset:{L_GA}")
    a(f"ds_write_b64 v19, v[46:47] offset:{L_GB}")
    a("s_mov_b64 exec, -1")
    arrive(F_GA, "v3", "v10")
    r1_block("a", "v3")
    a("s_barrier")
    if cfg.bearly:
        a(f"s_cmp_lg_u32 {S_B}, 0")
        a("s_cbranch_scc1 L_aux_lateE")
    if cfg.guwo:
        a(f"s_cmp_eq_u32 {S_B}, 0")
        a("s_cbranch_scc1 L_aux_lateE")
    spin_lds(F_PA, 4, "v3", "v50", sleep=False)
    a(f"s_cmp_eq_u32 {S_CB}, 7")
    a("s_cbranch_scc1 L_aux_gu_e")
    a(f"s_mov_b32 m0, {L_G}")
    a("s_mov_b32 s99, 8")
    a.label("L_aux_gu")
    a("buffer_load_dwordx4 v64, s[44:47], s19 offen nt lds")
    a("s_add_u32 m0, m0, 0x2000")
    a("s_nop 0")
    a("buffer_load_dwordx4 v64, s[48:51], s19 offen nt lds")
    a("s_sub_u32 m0, m0, 0x1c00")
    a(f"s_add_u32 s19, s19, {16*3584}")
    a("s_sub_u32 s99, s99, 1")
    a("s_cmp_lg_u32 s99, 0")
    a("s_cbranch_scc1 L_aux_gu")
    a.label("L_aux_gu_e")
    a("s_waitcnt vmcnt(0)")
    arrive(F_LATE, "v3", "v10")
    if not cfg.dnwo:
        spin_lds(F_PX, 1, "v3", "v50", sleep=False)
        a(f"s_mov_b32 m0, {L_DN}")
        a("s_nop 0")
        for i in range(8):
            a(f"buffer_load_dwordx4 v{66 + (i&1)}, s[52:55], s18 offen nt lds")
            a("s_add_u32 m0, m0, 0x400")
            a("s_add_u32 s18, s18, 0x2000")
        a("s_waitcnt vmcnt(0)")
        arrive(F_DN, "v3", "v10")
    a.label("L_aux_lateE")
    stamp(3)
    a("s_barrier")
    a("s_barrier")
    dump_stamps(4)
    a("s_endpgm")

    a.label("L_abort")
    a("s_mov_b64 exec, 1")
    a("v_mov_b32 v1, 0")
    a(f"s_lshl_b32 s90, {S_WG}, 16")
    a("s_or_b32 s90, s90, s1") if cfg.site else None
    a("v_mov_b32 v2, s90")
    a(f"s_and_b32 s90, {S_W}, 1")
    a("s_lshl_b32 s90, s90, 2")
    a("v_mov_b32 v1, s90")
    a("v_or_b32 v2, 0xde000000, v2")
    a("s_mov_b32 s44, s40")
    a("s_and_b32 s45, s41, 0xffff")
    a("s_mov_b32 s46, 256")
    a("s_mov_b32 s47, 0x20000")
    a("buffer_store_dword v2, v1, s[44:47], 0 offen")
    a.label("L_end")
    a("s_endpgm")

    hdr = open(f"cdna_kernels/{NAME}.s.ref").read().split("; Override launch")[0]
    out = hdr
    out += f"; @launch grid=(256,1,1) block=(576,1,1) lds={L_TOTAL}\n"
    out += '.amdgcn_target "amdgcn-amd-amdhsa--gfx950"\n.text\n'
    out += f".globl {NAME}_kernel\n.p2align 8\n.type {NAME}_kernel,@function\n"
    out += a.text()
    out += f""".section .rodata,"a"
.p2align 6
.amdhsa_kernel {NAME}_kernel
  .amdhsa_next_free_vgpr 128
  .amdhsa_next_free_sgpr 102
  .amdhsa_accum_offset 128
  .amdhsa_group_segment_fixed_size 0
  .amdhsa_kernarg_size 112
  .amdhsa_user_sgpr_count 2
  .amdhsa_user_sgpr_kernarg_segment_ptr 1
  .amdhsa_system_sgpr_workgroup_id_x 1
.end_amdhsa_kernel
"""
    return out

if __name__ == "__main__":
    cfg = Cfg()
    outp = sys.argv[1]
    for arg in sys.argv[2:]:
        k, v = arg.split("=")
        assert hasattr(cfg, k), k
        setattr(cfg, k, int(v))
    open(outp, "w").write(gen(cfg))
    print("wrote", outp)
```

```python
import sys
from asmlib import Asm

NAME = "adaLN_cond__sliding_block_cached__glu_gated_bilinear__decode"

class Cfg:
    D = 32
    DA = 28
    DA1 = 0
    stamps = 0
    spin = 1 << 22
    rsl = 1
    local = 2
    touch = 1
    dq = 0
    wolate = 0
    kpre = 16
    kcont = 0
    kflag = 0
    wqld = 0
    early = 0
    dbl8 = 1
    cwarm = 0
    wqsplit = 16
    guwo = 0
    dnwo = 1
    bearly = 0
    mprio = 1
    warm = 1
    dbl = 1
    stag = 6
    rsl_l = 0
    g_piece = 16
    g_late = 100
    slow = 0
    nwait = 1
    qsl2 = 6
    wq1 = 4
    quiet = 40
    prio = 0
    qsl = 4
    kstart = 1
    d_h = 4
    d_q = 1
    d_r1 = 1
    d_s5 = 8
    d_x1 = 1
    d_gu = 1
    d_s8 = 6
    atom8 = 0
    probe = 0
    site = 0

(F_LC, F_1, F_2, F_3, F_EC, F_KC, F_MB1, F_MB2, F_LATE, F_PO, F_PA, F_PX, F_PG, F_PD,
 F_PM, F_PQ, F_QF, F_WQ, F_WOL, F_MRL, F_LM, F_GA, F_DN, F_HI) = [4*i for i in range(24)]
L_MX = 128; L_LS = 192; L_ZERO = 256
L_ACT1 = 768; L_ACT2 = 1344; L_ACT4 = 1920; L_ACT6 = 2496; L_ACT7 = 3072
L_PRB = 7424
L_GA = 7168; L_GB = 7296
L_Q = 3648
L_P = 4736
L_X = 8192; L_C = 10240
L_K = 12288; L_V = L_K + 73728; L_TOTAL = L_V + 73728; L_MR = L_V + 57344
NK_A = 288; NK_B = 160
L_MODB = L_K; L_WQ = L_V
L_WO = L_K; L_G = L_K + 16384; L_U = L_K + 24576; L_DN = L_K + 32768
L_WO_B = L_K + 40960; L_G_B = L_K + 57344; L_DN_B = L_V + 65536
APITCH = 272; PPITCH = 592

W_EPOCH = 0
W_MOD = 0x1000
W_MODF = 0x38000
W_Q = 0x40000
W_QF = 0x88000
W_ST = 0x80000
W_O = 0x90000
W_A4 = 0x110000
W_X1P = 0x150000
W_X1S = 0x158000
W_GU = 0x160000
W_DN = 0x1A0000
W_STAMP = 0x200000
W_USED = 0x300000

LOG2E = 0x3fb8aa3b
SCALE = 0x3db504f3
EPS = 0x3727c5ac
INV512 = 0x3b000000

S_WG, S_W, S_X, S_LOC, S_B, S_SPL, S_KQ, S_CB, S_TAG, S_SPIN = "s2", "s3", "s4", "s5", "s6", "s7", "s8", "s9", "s10", "s11"
S_U = "s7"
S_BT = "s86"
S_SP = "s87"
WSRD = "s[12:15]"
S_EP = "s89"
S_LM = "s88"
PX = "s[42:43]"
S_PH = "s101"
KB_B = 0

def gen(cfg):
    a = Asm()
    D = cfg.D

    def srd(dst, plo, size):
        a(f"s_mov_b32 s{dst}, s{plo}")
        a(f"s_and_b32 s{dst+1}, s{plo+1}, 0xffff")
        a(f"s_mov_b32 s{dst+2}, {size}")
        a(f"s_mov_b32 s{dst+3}, 0x20000")

    def stamp(k):
        if cfg.stamps == 1 or (cfg.stamps == 2 and k == 0): a(f"s_memrealtime s[{64+2*k}:{65+2*k}]")

    def mark(pid, vz):
        if cfg.probe == pid:
            a("s_memrealtime s[62:63]")
            a("s_waitcnt lgkmcnt(0)")
            a("v_mov_b32 v127, s62")
            a(f"ds_max_u32 {vz}, v127 offset:{L_PRB}")

    def dump_stamps(n, final=False):
        if not cfg.stamps: return
        if cfg.stamps == 2:
            if not final: return
            a("s_memrealtime s[66:67]")
            n = 2
        a("s_waitcnt lgkmcnt(0)")
        a(f"s_mul_i32 s90, {S_WG}, 9")
        a(f"s_add_u32 s90, s90, {S_W}")
        a("s_lshl_b32 s90, s90, 7")
        a(f"s_add_u32 s90, s90, {W_STAMP}")
        a("s_mov_b64 exec, 1")
        a("v_mov_b32 v1, 0")
        for k in range(n):
            a(f"v_mov_b32 v2, s{64+2*k}")
            a(f"v_mov_b32 v3, s{65+2*k}")
            a(f"buffer_store_dwordx2 v[2:3], v1, {WSRD}, s90 offen offset:{8*k}")
            a("s_nop 1")
        a("s_waitcnt vmcnt(0)")

    sites = [0]
    def timeout():
        if cfg.site:
            sites[0] += 1
            a(f"s_mov_b32 s1, {sites[0]}")
        a(f"s_sub_u32 {S_SPIN}, {S_SPIN}, 1")
        a("s_cbranch_scc1 L_abort")

    def spin_lds(off, n, vz, vt, sleep=True):
        L = a.newlabel("Lsp"); E = a.newlabel("Lspe")
        a.label(L)
        a(f"ds_read_b32 {vt}, {vz} offset:{off}")
        a("s_waitcnt lgkmcnt(0)")
        a(f"v_readfirstlane_b32 s91, {vt}")
        a(f"s_cmp_ge_i32 s91, {n}")
        a(f"s_cbranch_scc1 {E}")
        timeout()
        if sleep: a("s_sleep 1")
        a(f"s_branch {L}")
        a.label(E)

    def arrive(off, vz, vone):
        a("s_mov_b64 s[92:93], exec")
        a("s_mov_b64 exec, 1")
        a(f"ds_add_u32 {vz}, {vone} offset:{off}")
        a("s_mov_b64 exec, s[92:93]")

    def poll(loads, tags, vacc, sleep=None, sample=False, hook=None):
        if sleep is None: sleep = cfg.rsl
        L = a.newlabel("Lpl"); E = a.newlabel("Lple"); R = a.newlabel("Lplr")
        a(f"s_mov_b64 {PX}, exec")
        if sample:
            a(f"s_mov_b32 {S_PH}, 0")
            a("s_mov_b64 exec, 1")
        if hook:
            H = a.newlabel("Lplh")
            for ld in loads: a(ld)
            hook()
            a(f"s_branch {H}")
        a.label(L)
        for ld in loads: a(ld)
        if hook: a.label(H)
        a("s_waitcnt vmcnt(0)")
        a(f"v_xor_b32 {vacc}, {S_TAG}, {tags[0]}")
        for t in tags[1:]:
            a(f"v_bitop3_b32 {vacc}, {vacc}, {t}, {S_TAG} bitop3:0xf6")
        a(f"v_cmp_ne_u32 vcc, 0, {vacc}")
        if sample:
            a(f"s_cbranch_vccnz {R}")
            a(f"s_cmp_lg_u32 {S_PH}, 0")
            a(f"s_cbranch_scc1 {E}")
            a(f"s_mov_b32 {S_PH}, 1")
            a(f"s_mov_b64 exec, {PX}")
            a(f"s_branch {L}")
            a.label(R)
        else:
            a(f"s_cbranch_vccz {E}")
        a("s_mov_b64 exec, vcc")
        timeout()
        if sleep: a(f"s_sleep {sleep}")
        a(f"s_branch {L}")
        a.label(E)
        a(f"s_mov_b64 exec, {PX}")

    def poll2(mk, vacc, uid, use):
        la, ta = mk(16); lb, tb = mk(64)
        nl = len(la)
        def check(tags):
            a(f"v_xor_b32 {vacc}, {S_TAG}, {tags[0]}")
            for t in tags[1:]: a(f"v_bitop3_b32 {vacc}, {vacc}, {t}, {S_TAG} bitop3:0xf6")
            a(f"v_cmp_ne_u32 vcc, 0, {vacc}")
        for l in la: a(l)
        a(f"s_sleep {cfg.stag}")
        a.label(f"L_p2_{uid}")
        for l in lb: a(l)
        a(f"s_waitcnt vmcnt({nl})")
        check(ta)
        a(f"s_cbranch_vccz L_p2a_{uid}")
        timeout()
        for l in la: a(l)
        a(f"s_waitcnt vmcnt({nl})")
        check(tb)
        a(f"s_cbranch_vccnz L_p2_{uid}")
        use(64)
        a(f"s_branch L_p2e_{uid}")
        a.label(f"L_p2a_{uid}")
        use(16)
        a.label(f"L_p2e_{uid}")

    def after_own(flag, n, vz, vt, dly):
        spin_lds(flag, n, vz, vt, sleep=False)
        if dly: a(f"s_sleep {dly}")

    def get_mode(vz, vt):
        if cfg.local == 2:
            spin_lds(F_LM, 1, vz, vt)
            a(f"s_mov_b32 {S_LM}, s91")

    def store_loc(text):
        if cfg.local == 0: a(text + " sc1")
        elif cfg.local == 1: a(text)
        else:
            P = a.newlabel("Lst"); E = a.newlabel("Lste")
            a(f"s_cmp_eq_u32 {S_LM}, 1")
            a(f"s_cbranch_scc1 {P}")
            a(text + " sc1")
            a(f"s_branch {E}")
            a.label(P)
            a(text)
            a.label(E)

    def bf16r2(d0, d1, s0, s1, tmp):
        a(f"v_cvt_pk_bf16_f32 {tmp}, {s0}, {s1}")
        a(f"v_lshlrev_b32 {d0}, 16, {tmp}")
        a(f"v_and_b32 {d1}, 0xffff0000, {tmp}")

    def bf16r1(d, s):
        a(f"v_cvt_pk_bf16_f32 {d}, {s}, {s}")
        a(f"v_lshlrev_b32 {d}, 16, {d}")

    def allreduce(regs, op, tmps, steps):
        dpp = {"x1": "quad_perm:[1,0,3,2]", "x2": "quad_perm:[2,3,0,1]", "x4": "row_half_mirror", "x8": "row_mirror", "r8": "row_ror:8", "r4": "row_ror:4"}
        for s in steps:
            if s in dpp:
                for r in regs:
                    a(f"{op}_dpp {r}, {r}, {r} {dpp[s]} row_mask:0xf bank_mask:0xf")
            else:
                ins = "v_permlane16_swap_b32" if s == "x16" else "v_permlane32_swap_b32"
                for r, t in zip(regs, tmps): a(f"v_mov_b32 {t}, {r}")
                for r, t in zip(regs, tmps): a(f"{ins} {r}, {t}")
                for r, t in zip(regs, tmps): a(f"{op} {r}, {r}, {t}")
    FULL = ["x1", "x2", "x4", "x8", "x16", "x32"]

    def sexpr(dst, terms, const=0, tmp="s94"):
        first = True
        for (reg, kind, n) in terms:
            tgt = dst if first else tmp
            if kind == "shl":
                if n == 0: a(f"s_mov_b32 {tgt}, {reg}")
                else: a(f"s_lshl_b32 {tgt}, {reg}, {n}")
            else: a(f"s_mul_i32 {tgt}, {reg}, {n}")
            if not first: a(f"s_add_u32 {dst}, {dst}, {tmp}")
            first = False
        if const: a(f"s_add_u32 {dst}, {dst}, {const}")

    def gate_lc(valA, valB, vz, vt):
        a(f"s_mul_i32 s99, {S_B}, {valB - valA}")
        a(f"s_add_u32 s99, s99, {valA}")
        spin_lds(F_LC, "s99", vz, vt)

    def get_tag():
        a(f"v_readfirstlane_b32 {S_EP}, v3")
        a(f"s_add_u32 {S_EP}, {S_EP}, 1")
        a(f"s_mul_i32 {S_TAG}, {S_EP}, 0x9E3779B1")

    def unit_voffs(pitch_shift=None, pitch=None, d0="v24", d1="v25"):
        a("v_lshrrev_b32 v3, 3, v0")
        a("v_bfe_u32 v4, v0, 4, 1")
        a("v_lshlrev_b32 v4, 1, v4")
        a("v_and_b32 v5, 7, v0")
        a("v_xor_b32 v4, v4, v5")
        a("v_lshlrev_b32 v4, 4, v4")
        if pitch_shift is not None: a(f"v_lshlrev_b32 v6, {pitch_shift}, v3")
        else: a(f"v_mul_u32_u24 v6, {pitch}, v3")
        a(f"v_add_u32 {d0}, v6, v4")
        a(f"v_xor_b32 {d1}, 64, {d0}")

    def strip_voff(pitch, d):
        a("v_lshrrev_b32 v6, 2, v0")
        a(f"v_mul_u32_u24 {d}, {pitch}, v6")
        a("v_bfe_u32 v6, v0, 5, 1")
        a("v_lshlrev_b32 v6, 1, v6")
        a("v_and_b32 v7, 3, v0")
        a("v_xor_b32 v6, v6, v7")
        a(f"v_lshl_add_u32 {d}, v6, 4, {d}")

    a.label(f"{NAME}_kernel")
    a(f"s_cmp_ge_u32 {S_WG}, 256")
    a("s_cbranch_scc1 L_end")
    a("s_load_dwordx16 s[16:31], s[0:1], 0")
    a("s_load_dwordx8 s[32:39], s[0:1], 64")
    a("s_load_dwordx4 s[40:43], s[0:1], 96")
    stamp(0)
    if cfg.probe == 3: a("s_memrealtime s[62:63]")
    a("v_lshrrev_b32 v1, 6, v0")
    a("v_and_b32 v0, 63, v0")
    a(f"v_readfirstlane_b32 {S_W}, v1")
    a(f"s_and_b32 {S_X}, {S_WG}, 7")
    a(f"s_lshr_b32 {S_LOC}, {S_WG}, 3")
    a(f"s_cmp_lt_u32 {S_LOC}, 8")
    a(f"s_cselect_b32 {S_B}, 1, 0")
    a(f"s_cselect_b32 s90, 0, 8")
    a(f"s_sub_u32 {S_SPL}, {S_LOC}, s90")
    a(f"s_cselect_b32 s91, 4, 12") if False else None
    a(f"s_cmp_lt_u32 {S_LOC}, 8")
    a(f"s_cselect_b32 s91, 4, 12")
    a(f"s_cselect_b32 s94, 0, 4")
    a(f"s_cmp_ge_u32 {S_SPL}, s91")
    a(f"s_cselect_b32 {S_BT}, 1, 0")
    a(f"s_mul_i32 s90, {S_BT}, s91")
    a(f"s_sub_u32 {S_SP}, {S_SPL}, s90")
    a(f"s_add_u32 {S_SP}, {S_SP}, s94")
    a(f"s_lshr_b32 {S_KQ}, {S_LOC}, 3")
    a(f"s_and_b32 {S_CB}, {S_LOC}, 7")
    a(f"s_mov_b32 {S_SPIN}, {cfg.spin}")
    a(f"s_mov_b32 {S_LM}, {1 if cfg.local == 1 else 2}")
    a(f"s_cmp_lg_u32 {S_W}, 8")
    a("s_cbranch_scc1 L_worker")

    SLC = "s95"; SOFF = "s96"
    unit_voffs(pitch=6144, d0="v20", d1="v21")
    a(f"s_and_b32 s90, {S_SPL}, 3")
    a(f"s_mul_i32 {SOFF}, s90, {128*6144}")
    a(f"s_lshr_b32 s90, {S_SPL}, 2")
    a(f"s_lshl_b32 s94, {S_X}, 2")
    a("s_add_u32 s94, s94, 16")
    a(f"s_lshl_b32 s91, {S_X}, 1")
    a("s_sub_u32 s91, s91, 4")
    a(f"s_cmp_ge_u32 {S_SPL}, 16")
    a("s_cselect_b32 s94, s91, s94")
    a("s_add_u32 s90, s90, s94")
    a("s_lshl_b32 s90, s90, 7")
    a(f"s_add_u32 {SOFF}, {SOFF}, s90")
    a(f"s_mov_b32 m0, {L_MR}")
    a("s_waitcnt lgkmcnt(0)")
    srd(44, 36, 512*3072*2)
    a(f"s_cmp_lt_u32 {S_LOC}, 24")
    a("s_cbranch_scc1 L_ld_nourg")
    for i in range(16):
        a(f"buffer_load_dwordx4 v{20 + (i&1)}, s[44:47], {SOFF} offen nt lds")
        if i < 15:
            a(f"s_add_u32 {SOFF}, {SOFF}, {8*6144}")
            a("s_add_u32 m0, m0, 0x400")
    a.label("L_ld_nourg")
    if cfg.prio: a("s_setprio 3")
    a("s_barrier")
    if cfg.wqld:
        a(f"s_cmp_eq_u32 {S_B}, 0")
        a("s_cbranch_scc1 L_ld_nowq")
        srd(48, 22, 512*4096*2)
        a("v_lshrrev_b32 v3, 4, v0")
        a("v_and_b32 v4, 15, v0")
        a("v_lshlrev_b32 v5, 1, v3")
        a("v_xor_b32 v5, v4, v5")
        a("v_lshlrev_b32 v5, 4, v5")
        a("v_lshl_add_u32 v22, v3, 13, v5")
        a("v_xor_b32 v23, 0x80, v22")
        a(f"s_lshr_b32 s90, {S_SPL}, 1")
        a(f"s_and_b32 s91, {S_SPL}, 1")
        sexpr(SOFF, [("s90", "shl", 20), (S_X, "shl", 10), ("s91", "shl", 9)])
        a(f"s_mov_b32 m0, {L_WQ}")
        a("s_mov_b32 s97, 8")
        a(f"s_add_u32 s99, {SOFF}, 256")
        a.label("L_ld_wq0")
        for v in ("v22", "v22", "v23", "v23"):
            a(f"buffer_load_dwordx4 {v}, s[48:51], {SOFF} offen nt lds")
            a(f"s_add_u32 {SOFF}, {SOFF}, {4*8192}")
            a("s_add_u32 m0, m0, 0x400")
        a("s_sub_u32 s97, s97, 1")
        a("s_cmp_lg_u32 s97, 0")
        a("s_cbranch_scc1 L_ld_wq0")
        a("s_mov_b32 s97, 8")
        a.label("L_ld_wq1")
        for v in ("v22", "v22", "v23", "v23"):
            a(f"buffer_load_dwordx4 {v}, s[48:51], s99 offen nt lds")
            a(f"s_add_u32 s99, s99, {4*8192}")
            a("s_add_u32 m0, m0, 0x400")
        a("s_sub_u32 s97, s97, 1")
        a("s_cmp_lg_u32 s97, 0")
        a("s_cbranch_scc1 L_ld_wq1")
        a.label("L_ld_nowq")
    stamp(1)
    srd(12, 42, W_USED)
    srd(52, 18, 2*8*32768*128*2)
    srd(56, 20, 2*8*32768*128*2)
    srd(60, 24, 4096*512*2)
    a("v_mov_b32 v10, 0")
    a("v_lshrrev_b32 v3, 4, v0")
    a("v_and_b32 v4, 15, v0")
    a("v_xor_b32 v5, v4, v3")
    a("v_lshlrev_b32 v5, 4, v5")
    a("v_lshl_add_u32 v26, v3, 8, v5")
    a("v_xor_b32 v27, 64, v26")
    a("v_xor_b32 v28, 0x80, v26")
    a("v_xor_b32 v29, 0xc0, v26")
    a("v_lshlrev_b32 v5, 1, v3")
    a("v_xor_b32 v5, v4, v5")
    a("v_lshlrev_b32 v5, 4, v5")
    a("v_lshl_add_u32 v30, v3, 8, v5")
    a("v_xor_b32 v31, 0x80, v30")
    a(f"s_mul_i32 s91, {S_B}, {(NK_B - NK_A) * 256}")
    a(f"s_add_u32 s91, s91, {NK_A * 256}")
    a(f"s_mul_i32 s90, {S_SP}, s91")
    a(f"s_mul_i32 s91, {S_B}, {512 * 256}")
    a("s_add_u32 s90, s90, s91")
    sexpr("s98", [(S_BT, "shl", 26), (S_X, "shl", 23), ("s90", "shl", 0)], (28672 - 512) * 256)
    unit_voffs(pitch_shift=10)

    def lc_write(val, off=F_LC):
        a(f"v_mov_b32 v11, {val}")
        a(f"ds_write_b32 v10, v11 offset:{off}")
    def seg(name, variants, srdn, step, iters, ldsbase):
        if ldsbase is not None: a(f"s_mov_b32 m0, {ldsbase}")
        a(f"s_mov_b32 s97, {iters}")
        a.label(name)
        for v in variants:
            a(f"buffer_load_dwordx4 {v}, s[{srdn}:{srdn+3}], {SOFF} offen nt lds")
            a(f"s_add_u32 {SOFF}, {SOFF}, {step}")
            a("s_add_u32 m0, m0, 0x400")
        a("s_sub_u32 s97, s97, 1")
        a("s_cmp_lg_u32 s97, 0")
        a(f"s_cbranch_scc1 {name}")
    def drain(end, ks):
        for k in ks:
            a(f"s_waitcnt vmcnt({k})")
            lc_write(end - k)
    def seg4(name, variants, srdn, iters, ldsbase, D=D, mono=False):
        if ldsbase is not None: a(f"s_mov_b32 m0, {ldsbase}")
        a(f"s_mov_b32 s97, {iters}")
        a.label(name)
        for i, v in enumerate(variants):
            a(f"buffer_load_dwordx4 {v}, s[{srdn}:{srdn+3}], {SOFF} offen offset:{1024*i} nt lds")
        a(f"s_add_u32 {SOFF}, {SOFF}, 0x1000")
        a("s_add_u32 m0, m0, 0x1000")
        a(f"s_add_u32 {SLC}, {SLC}, 4")
        a(f"v_mov_b32 v11, {SLC}")
        a(f"s_waitcnt vmcnt({D-4})")
        a(f"{'ds_max_i32' if mono else 'ds_write_b32'} v10, v11 offset:{F_LC}")
        a("s_sub_u32 s97, s97, 1")
        a("s_cmp_lg_u32 s97, 0")
        a(f"s_cbranch_scc1 {name}")
    WO_OFF = [(S_X, "shl", 19), (S_KQ, "shl", 17), (S_CB, "shl", 7)]

    a(f"s_cmp_eq_u32 {S_B}, 0")
    a("s_cbranch_scc1 L_ld_A")
    if cfg.wqld:
        a("s_waitcnt vmcnt(0)")
        lc_write(4, F_WQ)
    if cfg.bearly:
        srd(48, 28, 512*1792*2)
        srd(44, 30, 512*1792*2)
        strip_voff(3584, "v20")
        sexpr(SOFF, WO_OFF)
        seg("L_ld_woB", ["v24", "v25"], 60, 8192, 8, L_WO_B)
        a(f"s_cmp_eq_u32 {S_CB}, 7")
        a("s_cbranch_scc1 L_ld_guBe")
        sexpr(SOFF, [(S_KQ, "mul", 128*3584), (S_X, "mul", 448), (S_CB, "shl", 6)])
        a(f"s_mov_b32 m0, {L_G_B}")
        a("s_mov_b32 s97, 8")
        a.label("L_ld_guB")
        a(f"buffer_load_dwordx4 v20, s[48:51], {SOFF} offen nt lds")
        a("s_add_u32 m0, m0, 0x2000")
        a("s_nop 0")
        a(f"buffer_load_dwordx4 v20, s[44:47], {SOFF} offen nt lds")
        a("s_sub_u32 m0, m0, 0x1c00")
        a(f"s_add_u32 {SOFF}, {SOFF}, {16*3584}")
        a("s_sub_u32 s97, s97, 1")
        a("s_cmp_lg_u32 s97, 0")
        a("s_cbranch_scc1 L_ld_guB")
        a.label("L_ld_guBe")
        srd(48, 32, 1792*512*2)
        sexpr(SOFF, [(S_X, "mul", 224*1024), (S_KQ, "mul", 56*1024), (S_CB, "shl", 7)])
        seg("L_ld_dnB", ["v24", "v25"], 48, 8192, 4, L_DN_B)
        a("s_waitcnt vmcnt(0)")
        lc_write(1, F_WOL)
        lc_write(1, F_LATE)
        lc_write(1, F_DN)
    if cfg.kpre:
        spin_lds(F_2 if cfg.kflag else F_WQ, 2 if cfg.kflag else 4, "v10", "v12", sleep=False)
        a(f"s_mov_b32 {SLC}, {KB_B - (cfg.kpre - 4)}")
        a(f"s_mov_b32 {SOFF}, s98")
        seg4("L_ld_kB", ["v26", "v27", "v28", "v29"], 52, NK_B // 16, L_K, cfg.kpre)
        if cfg.kcont:
            spin_lds(F_EC, 4, "v10", "v12", sleep=False)
            stamp(2)
            a(f"s_mov_b32 {SOFF}, s98")
            seg4("L_ld_vB", ["v30", "v30", "v31", "v31"], 56, NK_B // 16, L_V, cfg.kpre)
        else:
            drain(KB_B + NK_B // 4, [0])
            spin_lds(F_QF, 2, "v10", "v12", sleep=False)
            stamp(2)
            a(f"s_mov_b32 {SLC}, {KB_B + NK_B // 4 - (D - 4)}")
            a(f"s_mov_b32 {SOFF}, s98")
            seg4("L_ld_vB", ["v30", "v30", "v31", "v31"], 56, NK_B // 16, L_V, mono=True)
    else:
        if cfg.kstart == 0:
            spin_lds(F_EC, 4, "v10", "v12")
            spin_lds(F_3, 2, "v10", "v12", sleep=False)
        elif cfg.kstart == 1:
            spin_lds(F_QF, 2, "v10", "v12", sleep=False)
        elif cfg.kstart == 3:
            spin_lds(F_PQ, 4, "v10", "v12", sleep=False)
        else:
            pass
        stamp(2)
        a(f"s_mov_b32 {SLC}, {KB_B - (D - 4)}")
        a(f"s_mov_b32 {SOFF}, s98")
        seg4("L_ld_kB", ["v26", "v27", "v28", "v29"], 52, NK_B // 16, L_K)
        a(f"s_mov_b32 {SOFF}, s98")
        seg4("L_ld_vB", ["v30", "v30", "v31", "v31"], 56, NK_B // 16, L_V)
    stamp(3)
    if cfg.bearly:
        drain(KB_B + NK_B // 2, [k for k in (32, 24, 16, 8) if k < D - 4] + [0])
        stamp(4)
        dump_stamps(5)
        a("s_endpgm")
    else:
        sexpr(SOFF, WO_OFF)
        seg("L_ld_woB", ["v24", "v25"], 60, 8192, 8, L_WO_B)
        if cfg.dnwo:
            srd(48, 32, 1792*512*2)
            sexpr(SOFF, [(S_X, "mul", 224*1024), (S_KQ, "mul", 56*1024), (S_CB, "shl", 7)])
            seg("L_ld_dnB", ["v24", "v25"], 48, 8192, 4, L_DN_B)
            drain(KB_B + NK_B // 2 + 24, [k for k in (56, 48, 40, 32, 24) if k < D + 20])
            stamp(4)
            a("s_waitcnt vmcnt(8)")
            lc_write(1, F_WOL)
            a("s_waitcnt vmcnt(0)")
            lc_write(1, F_DN)
            dump_stamps(5)
            a("s_endpgm")
        else:
            drain(KB_B + NK_B // 2 + 16, [k for k in (48, 40, 32, 24, 16) if k < D + 12])
            stamp(4)
    a.label("L_ld_fin")
    a("s_waitcnt vmcnt(0)")
    lc_write(1, F_WOL)
    stamp(5)
    dump_stamps(6)
    a("s_endpgm")
    a.label("L_ld_A")
    DA = cfg.DA
    a(f"s_cmp_ge_u32 {S_SPL}, 16")
    a("s_cbranch_scc1 L_ld_urg")
    if not cfg.early: spin_lds(F_1, 2, "v10", "v12", sleep=False)
    if cfg.slow:
        a(f"s_mov_b32 m0, {L_MR}")
        a("s_nop 0")
        for i in range(2 * cfg.slow):
            a(f"buffer_load_dwordx4 v{20 + (i&1)}, s[44:47], {SOFF} offen nt lds")
            a(f"s_add_u32 {SOFF}, {SOFF}, {8*6144}")
            a("s_add_u32 m0, m0, 0x400")
            if i & 1: a("s_waitcnt vmcnt(0)")
        seg("L_ld_mr", ["v20", "v21"], 44, 8*6144, 8 - cfg.slow, None)
    else:
        seg("L_ld_mr", ["v20", "v21"], 44, 8*6144, 8, L_MR)
    a("s_branch L_ld_kgo")
    a.label("L_ld_urg")
    a("s_waitcnt vmcnt(0)")
    lc_write(1, F_MRL)
    spin_lds(F_PM, 4, "v10", "v12", sleep=False)
    a.label("L_ld_kgo")
    DA1 = cfg.DA1 or DA
    a(f"s_mov_b32 {SLC}, {-(DA1 - 4)}")
    a(f"s_mov_b32 {SOFF}, s98")
    n0 = (DA1 - 4 + 3) // 4
    assert 0 < n0 < NK_A // 16
    seg4("L_ld_kA0", ["v26", "v27", "v28", "v29"], 52, n0, L_K, DA1)
    lc_write(1, F_MRL)
    seg4("L_ld_kA", ["v26", "v27", "v28", "v29"], 52, NK_A // 16 - n0, None, DA1)
    stamp(2)
    a(f"s_mov_b32 {SOFF}, s98")
    if DA > DA1:
        assert (DA - DA1) % 4 == 0
        a(f"s_mov_b32 m0, {L_V}")
        a("s_nop 0")
        for it in range((DA - DA1) // 4):
            for i, v in enumerate(["v30", "v30", "v31", "v31"]):
                a(f"buffer_load_dwordx4 {v}, s[56:59], {SOFF} offen offset:{1024*i} nt lds")
            a(f"s_add_u32 {SOFF}, {SOFF}, 0x1000")
            a("s_add_u32 m0, m0, 0x1000")
        seg4("L_ld_vA", ["v30", "v30", "v31", "v31"], 56, NK_A // 16 - 4 - (DA - DA1) // 4, None, DA)
    elif cfg.dq:
        a(f"s_mov_b32 m0, {L_V}")
        a(f"s_mov_b32 s97, {NK_A // 16 - 4}")
        a.label("L_ld_vq")
        a(f"ds_read_b32 v12, v10 offset:{F_3}")
        for i, v in enumerate(["v30", "v30", "v31", "v31"]):
            a(f"buffer_load_dwordx4 {v}, s[56:59], {SOFF} offen offset:{1024*i} nt lds")
        a(f"s_add_u32 {SOFF}, {SOFF}, 0x1000")
        a("s_add_u32 m0, m0, 0x1000")
        a(f"s_add_u32 {SLC}, {SLC}, 4")
        a(f"v_mov_b32 v11, {SLC}")
        a("s_waitcnt lgkmcnt(0)")
        a("v_readfirstlane_b32 s91, v12")
        a("s_cmp_ge_i32 s91, 2")
        a("s_cbranch_scc1 L_ld_vq1")
        a(f"s_waitcnt vmcnt({cfg.dq - 4})")
        a.label("L_ld_vq1")
        a(f"s_waitcnt vmcnt({DA - 4})")
        a(f"ds_write_b32 v10, v11 offset:{F_LC}")
        a("s_sub_u32 s97, s97, 1")
        a("s_cmp_lg_u32 s97, 0")
        a("s_cbranch_scc1 L_ld_vq")
    else:
        seg4("L_ld_vA", ["v30", "v30", "v31", "v31"], 56, NK_A // 16 - 4, L_V, DA)
    spin_lds(F_EC, 4, "v10", "v12")
    seg4("L_ld_vA2", ["v30", "v30", "v31", "v31"], 56, 4, None, DA)
    stamp(3)
    drain(NK_A // 2, [k for k in (32, 24, 16, 8) if k < DA - 4] + [0])
    stamp(4)
    spin_lds(F_PO if cfg.wolate else F_KC, 4, "v10", "v12")
    sexpr(SOFF, WO_OFF)
    seg("L_ld_woA", ["v24", "v25"], 60, 8192, 8, L_WO)
    if cfg.dnwo:
        srd(48, 32, 1792*512*2)
        sexpr(SOFF, [(S_X, "mul", 224*1024), (S_KQ, "mul", 56*1024), (S_CB, "shl", 7)])
        seg("L_ld_dnA", ["v24", "v25"], 48, 8192, 4, L_DN)
        if cfg.guwo:
            a("s_waitcnt vmcnt(8)")
            lc_write(1, F_WOL)
            srd(48, 28, 512*1792*2)
            srd(44, 30, 512*1792*2)
            strip_voff(3584, "v20")
            a(f"s_cmp_eq_u32 {S_CB}, 7")
            a("s_cbranch_scc1 L_ld_guAe")
            sexpr(SOFF, [(S_KQ, "mul", 128*3584), (S_X, "mul", 448), (S_CB, "shl", 6)])
            a(f"s_mov_b32 m0, {L_G}")
            a("s_mov_b32 s97, 8")
            a.label("L_ld_guA")
            a(f"buffer_load_dwordx4 v20, s[48:51], {SOFF} offen nt lds")
            a("s_add_u32 m0, m0, 0x2000")
            a("s_nop 0")
            a(f"buffer_load_dwordx4 v20, s[44:47], {SOFF} offen nt lds")
            a("s_sub_u32 m0, m0, 0x1c00")
            a(f"s_add_u32 {SOFF}, {SOFF}, {16*3584}")
            a("s_sub_u32 s97, s97, 1")
            a("s_cmp_lg_u32 s97, 0")
            a("s_cbranch_scc1 L_ld_guA")
            a.label("L_ld_guAe")
            a("s_waitcnt vmcnt(0)")
            lc_write(1, F_DN)
            lc_write(1, F_LATE)
        else:
            a("s_waitcnt vmcnt(8)")
            lc_write(1, F_WOL)
            a("s_waitcnt vmcnt(0)")
            lc_write(1, F_DN)
        dump_stamps(5)
        a("s_endpgm")
    else:
        a("s_branch L_ld_fin")

    a.label("L_worker")
    a(f"s_cmp_lg_u32 {S_W}, 4")
    a("s_cbranch_scc1 L_wk2")
    a("v_mov_b32 v10, 0")
    for r in range(12, 16): a(f"v_mov_b32 v{r}, 0")
    a("v_lshlrev_b32 v1, 2, v0")
    a("v_lshlrev_b32 v2, 4, v0")
    a("ds_write_b32 v1, v10")
    a(f"ds_write_b128 v2, v[12:15] offset:{L_ZERO}")
    if cfg.probe >= 10: a(f"ds_write_b32 v10, v10 offset:{L_PRB}")
    if cfg.local == 1:
        a("v_mov_b32 v11, 1")
        a(f"ds_write_b32 v10, v11 offset:{F_LM}")
    a.label("L_wk2")
    a("s_waitcnt lgkmcnt(0)")
    srd(12, 42, W_USED)
    srd(44, 16, 2048)
    srd(48, 34, 2048)
    a(f"s_sub_u32 s97, {S_W}, 5")
    a("s_and_b32 s97, s97, 1")
    a("s_lshl_b32 s90, s97, 10")
    a(f"s_and_b32 s94, {S_SPL}, 3")
    a("s_lshl_b32 s94, s94, 8")
    a("s_add_u32 s94, s94, s90")
    a("v_lshlrev_b32 v1, 4, v0")
    a("v_lshlrev_b32 v2, 2, v0")
    a(f"s_cmp_lt_u32 {S_W}, 5")
    a("s_cbranch_scc1 L_wk2b")
    a(f"s_cmp_eq_u32 {S_W}, 7")
    a("s_cbranch_scc1 L_wk2b")
    a("buffer_load_dword v9, v2, s[48:51], s94 offen")
    a("buffer_load_dwordx4 v[4:7], v1, s[44:47], s90 offen")
    a(f"s_lshr_b32 s94, {S_SPL}, 1")
    a("s_and_b32 s94, s94, 3")
    a("s_lshl_b32 s94, s94, 8")
    a("s_add_u32 s94, s94, s90")
    a("buffer_load_dword v8, v2, s[44:47], s94 offen")
    a.label("L_wk2b")
    a("v_mov_b32 v2, 0")
    a(f"buffer_load_dword v3, v2, {WSRD}, 0 offen sc1")
    a(f"s_cmp_lg_u32 {S_W}, 7")
    a("s_cbranch_scc1 L_wk3")
    if cfg.local == 2:
        srd(60, 40, 256)
        a("s_getreg_b32 s90, hwreg(HW_REG_XCC_ID)")
        a("s_and_b32 s90, s90, 7")
        a("s_mul_i32 s90, s90, 6")
        a("s_lshl_b64 s[26:27], 1, s90")
        a(f"s_lshl_b32 s91, {S_X}, 5")
        a("s_add_u32 s91, s91, 8")
        a("v_mov_b32 v18, s91")
        a("v_mov_b32 v16, s26")
        a("v_mov_b32 v17, s27")
        a("s_mov_b64 exec, 1")
        a("buffer_atomic_add_x2 v[16:17], v18, s[60:63], 0 offen sc1")
        a("s_mov_b64 exec, -1")
    if cfg.touch:
        sexpr("s90", [(S_BT, "shl", 26), (S_X, "shl", 23), (S_SP, "shl", 16)], 28672*256)
        a("s_load_dword s78, s[18:19], s90")
        a("s_load_dword s79, s[20:21], s90")
        a(f"s_lshr_b32 s91, {S_SPL}, 1")
        a("s_and_b32 s91, s91, 3")
        a("s_lshl_b32 s91, s91, 20")
        a("s_load_dword s80, s[22:23], s91")
        sexpr("s91", [(S_X, "shl", 19), (S_KQ, "shl", 17)])
        a("s_load_dword s81, s[24:25], s91")
        a(f"s_mul_i32 s91, {S_KQ}, {128*3584}")
        a("s_load_dword s82, s[28:29], s91")
        a("s_load_dword s83, s[30:31], s91")
        a(f"s_mul_i32 s91, {S_X}, {224*1024}")
        a("s_load_dword s84, s[32:33], s91")
        a("s_load_dword s85, s[38:39], 0")
    a.label("L_wk3")
    a("s_barrier")
    if cfg.cwarm:
        a(f"s_cmp_lg_u32 {S_W}, 4")
        a("s_cbranch_scc1 L_cw_e")
        a("s_getpc_b64 s[0:1]")
        a.label("L_cw_base")
        a("s_mov_b32 s90, 0")
        a.label("L_cw_loop")
        for k in range(8):
            a(f"s_load_dword s77, s[0:1], s90 offset:{128*k}")
        a("s_add_u32 s90, s90, 1024")
        a("s_cmp_lt_u32 s90, (L_end - L_cw_base - 1024)")
        a("s_cbranch_scc1 L_cw_loop")
        a.label("L_cw_e")
    a(f"s_cmp_ge_u32 {S_W}, 4")
    a("s_cbranch_scc1 L_gwave")

    a.label("L_mwave")
    if cfg.mprio: a("s_setprio 2")
    srd(56, 22, 512*4096*2)
    a("v_lshrrev_b32 v1, 4, v0")
    a("v_and_b32 v2, 15, v0")
    a("v_mov_b32 v4, 1")
    a("v_lshlrev_b32 v22, 1, v1")
    a("v_xor_b32 v22, v2, v22")
    a("v_lshlrev_b32 v22, 4, v22")
    a("v_lshl_add_u32 v56, v1, 13, v22")
    a("v_xor_b32 v57, 0x80, v56")
    a(f"s_lshr_b32 s90, {S_SPL}, 1")
    a(f"s_and_b32 s91, {S_SPL}, 1")
    sexpr("s96", [("s90", "shl", 20), (S_X, "shl", 10), ("s91", "shl", 9), (S_W, "shl", 18)])
    a("s_add_u32 s97, s96, 256")
    def wq_loads(lo, hi):
        for k in range(lo, hi):
            bb, i = k >> 3, k & 7
            sr = "s96" if bb == 0 else "s97"
            if k == lo or i == 0:
                a(f"s_lshl_b32 s90, {S_W}, 13")
                a(f"s_add_u32 m0, s90, {L_WQ + 32768*bb + 1024*i}")
                a("s_nop 0")
            a(f"buffer_load_dwordx4 {'v56' if (i & 2) == 0 else 'v57'}, s[56:59], {sr} offen nt lds")
            a(f"s_add_u32 {sr}, {sr}, {4*8192}")
            a("s_add_u32 m0, m0, 0x400")
    if not cfg.wqld:
        a(f"s_cmp_eq_u32 {S_B}, 0")
        a("s_cbranch_scc1 L_m_nowq")
        wq_loads(0, cfg.wqsplit)
        a.label("L_m_nowq")
    a("v_bfe_u32 v6, v2, 2, 1")
    a(f"v_mul_u32_u24 v6, {APITCH}, v6")
    a("v_lshl_add_u32 v6, v1, 4, v6")
    a("v_bfe_u32 v16, v0, 2, 2")
    a("v_and_b32 v17, 3, v0")
    a("v_lshl_add_u32 v18, v1, 3, v16")
    a("v_lshrrev_b32 v19, 1, v17")
    a("v_and_b32 v20, 1, v17")
    a("v_and_b32 v21, 1, v1")
    a("v_lshrrev_b32 v22, 1, v16")
    a("v_lshl_or_b32 v22, v21, 1, v22")
    a("v_lshlrev_b32 v22, 1, v22")
    a(f"s_lshl_b32 s90, {S_W}, 1")
    a("v_add_u32 v23, s90, v19")
    a("v_xor_b32 v23, v23, v22")
    a("v_lshlrev_b32 v7, 7, v18")
    a("v_lshl_add_u32 v7, v23, 4, v7")
    a("v_lshl_add_u32 v7, v20, 3, v7")
    a(f"s_and_b32 s90, {S_W}, 1")
    a("s_lshl_b32 s90, s90, 1")
    a("v_add_u32 v23, s90, v19")
    a("v_lshlrev_b32 v22, 1, v21")
    a("v_xor_b32 v23, v23, v22")
    a("v_lshlrev_b32 v12, 6, v18")
    a("v_lshl_add_u32 v12, v23, 4, v12")
    a("v_lshl_add_u32 v12, v20, 3, v12")
    a("v_lshl_or_b32 v22, v21, 2, v16")
    a("v_lshlrev_b32 v22, 1, v22")
    a(f"s_lshl_b32 s90, {S_W}, 2")
    a("v_add_u32 v23, s90, v19")
    a("v_xor_b32 v24, v23, v22")
    a("v_lshlrev_b32 v25, 8, v18")
    a("v_lshl_add_u32 v25, v20, 3, v25")
    a("v_lshl_add_u32 v13, v24, 4, v25")
    a("v_add_u32 v23, 2, v23")
    a("v_xor_b32 v24, v23, v22")
    a("v_lshl_add_u32 v14, v24, 4, v25")
    a("v_bfe_u32 v8, v0, 4, 1")
    a("v_lshlrev_b32 v9, 3, v2")
    O_MOD, O_Q, O_O, O_A4, O_GU, O_DN, O_ST, T_K, T_V = "s16", "s17", "s18", "s19", "s20", "s21", "s24", "s25", "s26"
    a(f"s_mul_i32 {T_K}, {S_B}, {KB_B + NK_B // 4 - NK_A // 4}")
    a(f"s_add_u32 {T_K}, {T_K}, {NK_A // 4}")
    a(f"s_mul_i32 {T_V}, {S_B}, {KB_B + NK_B // 2 - NK_A // 2}")
    a(f"s_add_u32 {T_V}, {T_V}, {NK_A // 2}")
    sexpr(O_O, [(S_X, "shl", 16), (S_BT, "shl", 13), (S_SP, "shl", 9), (S_W, "shl", 7)], W_O)
    sexpr(O_A4, [(S_CB, "shl", 14), (S_W, "shl", 12), (S_X, "shl", 8), (S_KQ, "shl", 6)], W_A4)
    a(f"s_add_u32 {O_DN}, {O_A4}, {W_DN - W_A4}")
    a(f"s_lshr_b32 s90, {S_W}, 1")
    a(f"s_and_b32 s91, {S_W}, 1")
    sexpr(O_GU, [(S_X, "shl", 15), ("s90", "shl", 14), (S_KQ, "shl", 11), (S_CB, "shl", 8), ("s91", "shl", 7)], W_GU)
    sexpr(O_ST, [(S_X, "shl", 11), (S_BT, "shl", 10), (S_SP, "shl", 4)], W_ST)
    a(f"s_and_b32 s90, {S_SPL}, 1")
    a("s_lshl_b32 s90, s90, 1")
    a(f"s_lshr_b32 s91, {S_W}, 1")
    a("s_add_u32 s90, s90, s91")
    a(f"s_lshr_b32 s91, {S_SPL}, 1")
    a(f"s_and_b32 s97, {S_W}, 1")
    sexpr(O_Q, [(S_X, "shl", 15), ("s90", "shl", 12), ("s91", "shl", 10), ("s97", "shl", 9)], W_Q)
    a(f"s_cmp_lt_u32 {S_SPL}, 16")
    a("s_cbranch_scc1 L_m_offA")
    a(f"s_lshr_b32 s90, {S_X}, 2")
    a(f"s_and_b32 s91, {S_X}, 3")
    a(f"s_bfe_u32 s97, {S_SPL}, 0x10002")
    a(f"s_and_b32 s98, {S_SPL}, 3")
    sexpr(O_MOD, [("s90", "shl", 15), ("s91", "shl", 12), ("s98", "shl", 10), ("s97", "shl", 9), (S_W, "shl", 7)], W_MOD)
    a("s_branch L_m_offE")
    a.label("L_m_offA")
    a(f"s_lshr_b32 s90, {S_X}, 1")
    a(f"s_and_b32 s91, {S_X}, 1")
    a("s_lshl_b32 s91, s91, 2")
    a(f"s_lshr_b32 s97, {S_SPL}, 2")
    a("s_add_u32 s91, s91, s97")
    a("s_lshr_b32 s97, s91, 1")
    a("s_and_b32 s91, s91, 1")
    a(f"s_and_b32 s98, {S_SPL}, 3")
    sexpr(O_MOD, [("s90", "shl", 15), ("s97", "shl", 12), ("s98", "shl", 10), ("s91", "shl", 9), (S_W, "shl", 7)], W_MOD + 2*32768)
    a.label("L_m_offE")
    a("s_waitcnt vmcnt(0)")
    get_tag()
    a("v_mov_b32 v3, 0")
    stamp(1)

    def loadB(vaddr, nk, kstride, hoff, base=16):
        for t in range(nk):
            a(f"ds_read_b64_tr_b16 v[{base+4*t}:{base+4*t+1}], {vaddr} offset:{t*kstride}")
            a(f"ds_read_b64_tr_b16 v[{base+4*t+2}:{base+4*t+3}], {vaddr} offset:{t*kstride+hoff}")

    def gemv(act_off, nk, bbase=16, second=None):
        for t in range(nk):
            a(f"ds_read_b128 v[{32+4*t}:{35+4*t}], v6 offset:{act_off+64*t}")
        for t in range(nk):
            a(f"s_waitcnt lgkmcnt({nk-1-t})")
            c = "0" if t == 0 else "v[48:51]"
            a(f"v_mfma_f32_16x16x32_bf16 v[48:51], v[{32+4*t}:{35+4*t}], v[{bbase+4*t}:{bbase+4*t+3}], {c}")
            if second is not None:
                c = "0" if t == 0 else "v[56:59]"
                a(f"v_mfma_f32_16x16x32_bf16 v[56:59], v[{32+4*t}:{35+4*t}], v[{second+4*t}:{second+4*t+3}], {c}")

    def publish(shift, soff, local=False, second=False):
        a(f"v_lshl_add_u32 v54, v8, {shift}, v9")
        a(f"v_mov_b32 v53, {S_TAG}")
        if second: a(f"v_mov_b32 v61, {S_TAG}")
        a("v_mov_b32 v52, v48")
        if second: a("v_mov_b32 v60, v56")
        a("s_mov_b32 exec_hi, 0")
        t1 = f"buffer_store_dwordx2 v[52:53], v54, {WSRD}, {soff} offen"
        t2 = f"buffer_store_dwordx2 v[60:61], v54, {WSRD}, {soff} offen offset:128"
        if local:
            store_loc(t1)
            if second: store_loc(t2)
        else:
            a(t1 + " sc1")
            if second: a(t2 + " sc1")
        a("s_mov_b32 exec_hi, -1")

    def publish_pair(soff):
        a("v_lshlrev_b32 v54, 11, v8")
        a("v_lshl_add_u32 v54, v2, 2, v54")
        a(f"v_mov_b32 v53, {S_TAG}")
        a("v_mov_b32_dpp v52, v48 quad_perm:[1,0,3,2] row_mask:0xf bank_mask:0xf")
        a("s_mov_b32 exec_lo, 0x55555555")
        a("s_mov_b32 exec_hi, 0")
        a("v_cvt_pk_bf16_f32 v52, v48, v52")
        a(f"buffer_store_dwordx2 v[52:53], v54, {WSRD}, {soff} offen sc1")
        a("s_mov_b64 exec, -1")

    a(f"s_cmp_lg_u32 {S_B}, 0")
    a("s_cbranch_scc1 L_m_B")
    spin_lds(F_1, 2, "v3", "v5")
    spin_lds(F_MRL, 1, "v3", "v5")
    a(f"v_add_u32 v10, {L_MR}, v7")
    loadB("v10", 4, 4096, 512)
    gemv(L_ACT1, 4)
    arrive(F_EC, "v3", "v4")
    publish(14, O_MOD)
    arrive(F_PM, "v3", "v4")
    stamp(2)
    a("s_branch L_m_s3")
    a.label("L_m_B")
    if cfg.wqsplit < 16:
        spin_lds(F_HI, 2, "v3", "v5", sleep=False)
        wq_loads(cfg.wqsplit, 16)
    if not cfg.wqld:
        a("s_waitcnt vmcnt(0)")
        arrive(F_WQ, "v3", "v4")
    a("v_bfe_u32 v16, v0, 2, 2")
    a("v_and_b32 v17, 3, v0")
    a("v_lshl_add_u32 v18, v1, 3, v16")
    a("v_lshrrev_b32 v19, 1, v17")
    a("v_and_b32 v20, 1, v17")
    a("v_and_b32 v21, 1, v1")
    a("v_lshl_or_b32 v22, v21, 2, v16")
    a("v_lshlrev_b32 v22, 1, v22")
    a("v_lshlrev_b32 v25, 8, v18")
    a("v_lshl_add_u32 v25, v20, 3, v25")
    a(f"s_lshr_b32 s90, {S_W}, 1")
    a("s_lshl_b32 s90, s90, 15")
    a(f"s_add_u32 s90, s90, {L_WQ}")
    a("v_add_u32 v25, s90, v25")
    a(f"s_and_b32 s91, {S_W}, 1")
    a("s_lshl_b32 s91, s91, 3")
    a("v_add_u32 v19, s91, v19")
    for e in range(4):
        a(f"v_add_u32 v23, {2*e}, v19")
        a("v_xor_b32 v23, v23, v22")
        a(f"v_lshl_add_u32 v{28+e}, v23, 4, v25")
    spin_lds(F_WQ, 4, "v3", "v5", sleep=False)
    for e in range(4):
        loadB(f"v{28+e}", 4, 8192, 1024, base=64 + 16*e)
    get_mode("v3", "v5")
    a("s_waitcnt lgkmcnt(0)")
    arrive(F_EC, "v3", "v4")
    a("v_lshl_add_u32 v54, v8, 14, v9")
    a(f"v_mov_b32 v53, {S_TAG}")
    spin_lds(F_2, 2, "v3", "v5", sleep=False)
    for t in range(4):
        a(f"ds_read_b128 v[{32+4*t}:{35+4*t}], v6 offset:{L_ACT2+64*t}")
    for t in range(4):
        a(f"s_waitcnt lgkmcnt({3-t})")
        for e in range(4):
            c = "0" if t == 0 else f"v[{16+4*e}:{19+4*e}]"
            a(f"v_mfma_f32_16x16x32_bf16 v[{16+4*e}:{19+4*e}], v[{32+4*t}:{35+4*t}], v[{64+16*e+4*t}:{67+16*e+4*t}], {c}")
    a("s_mov_b32 exec_hi, 0")
    for e in range(4):
        a(f"v_mov_b32 v{56+2*e}, v{16+4*e}")
        a(f"v_mov_b32 v{57+2*e}, v53")
    if cfg.local == 2:
        P = a.newlabel("Lst"); E = a.newlabel("Lste")
        a(f"s_cmp_eq_u32 {S_LM}, 1")
        a(f"s_cbranch_scc1 {P}")
        for e in range(4): a(f"buffer_store_dwordx2 v[{56+2*e}:{57+2*e}], v54, {WSRD}, {O_Q} offen offset:{128*e} sc1")
        a(f"s_branch {E}")
        a.label(P)
        for e in range(4): a(f"buffer_store_dwordx2 v[{56+2*e}:{57+2*e}], v54, {WSRD}, {O_Q} offen offset:{128*e}")
        a.label(E)
    else:
        for e in range(4): a(f"buffer_store_dwordx2 v[{56+2*e}:{57+2*e}], v54, {WSRD}, {O_Q} offen offset:{128*e}" + (" sc1" if cfg.local == 0 else ""))
    a("s_mov_b32 exec_hi, -1")
    arrive(F_PQ, "v3", "v4")
    stamp(3)
    mark(10, "v3")
    a.label("L_m_s3")
    get_mode("v3", "v5")
    T_ST, T_N = "s27", "s28"
    a(f"s_lshl_b32 s90, {S_B}, 1")
    a(f"s_sub_u32 s90, 4, s90")
    a(f"s_mul_i32 {T_ST}, {S_W}, s90")
    a(f"s_min_u32 s91, {S_W}, 2")
    a(f"s_add_u32 {T_ST}, {T_ST}, s91")
    a(f"s_cmp_lt_u32 {S_W}, 2")
    a(f"s_addc_u32 {T_N}, s90, 0")
    a("s_mov_b64 s[30:31], -1")
    a(f"s_cmp_eq_u32 {T_N}, 3")
    a("s_cselect_b32 s31, 0xffff, s31")
    a(f"s_cmp_eq_u32 {T_N}, 2")
    a("s_cselect_b32 s31, 0, s31")
    a("s_mov_b32 s33, 0")
    a(f"s_cmp_eq_u32 {T_N}, 5")
    a("s_cselect_b32 s32, 0xffff, 0")
    a("v_xor_b32 v10, v1, v2")
    a("v_lshlrev_b32 v10, 4, v10")
    a("v_lshl_add_u32 v10, v2, 8, v10")
    a(f"s_lshl_b32 s90, {T_ST}, 12")
    a(f"s_add_u32 s90, s90, {L_K}")
    a("v_add_u32 v112, s90, v10")
    a("v_xor_b32 v113, 64, v112")
    a("v_xor_b32 v114, 0x80, v112")
    a("v_xor_b32 v115, 0xc0, v112")
    a("v_and_b32 v10, 3, v2")
    a(f"v_mul_u32_u24 v10, {APITCH}, v10")
    a("v_lshl_add_u32 v116, v1, 4, v10")
    a("v_cmp_eq_u32 s[34:35], 1, v1")
    a("v_cmp_eq_u32 s[36:37], 2, v1")
    a("v_cmp_eq_u32 s[38:39], 3, v1")
    for r in range(80, 100): a(f"v_mov_b32 v{r}, 0")
    NEG = "s29"
    a(f"s_mov_b32 {NEG}, 0xff800000")
    spin_lds(F_3, 2, "v3", "v5", sleep=False)
    spin_lds(F_LC, T_K, "v3", "v5", sleep=False)
    stamp(4)
    mark(11, "v3")
    def k_reads(tt, base):
        for t in range(4):
            a(f"ds_read_b128 v[{base+4*t}:{base+4*t+3}], v{112+t} offset:{4096*tt}")
    def qk_mfma(tt, base):
        acc = f"v[{80+4*tt}:{83+4*tt}]"
        for t in range(4):
            c = "0" if t == 0 else acc
            a(f"v_mfma_f32_16x16x32_bf16 {acc}, v[{16+4*t}:{19+4*t}], v[{base+4*t}:{base+4*t+3}], {c}")
    for t in range(4):
        a(f"ds_read_b128 v[{16+4*t}:{19+4*t}], v116 offset:{L_Q+64*t}")
    k_reads(0, 32)
    k_reads(1, 48)
    a(f"s_cmp_eq_u32 {T_N}, 2")
    a("s_cbranch_scc1 L_qk_n2")
    k_reads(2, 64)
    a("s_waitcnt lgkmcnt(8)")
    qk_mfma(0, 32)
    a(f"s_cmp_eq_u32 {T_N}, 3")
    a("s_cbranch_scc1 L_qk_n3")
    k_reads(3, 32)
    a("s_waitcnt lgkmcnt(8)")
    qk_mfma(1, 48)
    a(f"s_cmp_eq_u32 {T_N}, 4")
    a("s_cbranch_scc1 L_qk_n4")
    k_reads(4, 48)
    a("s_waitcnt lgkmcnt(8)")
    qk_mfma(2, 64)
    a("s_waitcnt lgkmcnt(4)")
    qk_mfma(3, 32)
    a("s_waitcnt lgkmcnt(0)")
    qk_mfma(4, 48)
    a("s_branch L_qk_done")
    a.label("L_qk_n4")
    a("s_waitcnt lgkmcnt(4)")
    qk_mfma(2, 64)
    a("s_waitcnt lgkmcnt(0)")
    qk_mfma(3, 32)
    a("s_branch L_qk_done")
    a.label("L_qk_n3")
    a("s_waitcnt lgkmcnt(4)")
    qk_mfma(1, 48)
    a("s_waitcnt lgkmcnt(0)")
    qk_mfma(2, 64)
    a("s_branch L_qk_done")
    a.label("L_qk_n2")
    a("s_waitcnt lgkmcnt(4)")
    qk_mfma(0, 32)
    a("s_waitcnt lgkmcnt(0)")
    qk_mfma(1, 48)
    a.label("L_qk_done")
    arrive(F_KC, "v3", "v4")
    a("s_nop 7")
    for r in range(4): a(f"v_cndmask_b32 v{48+r}, v{80+r}, v{84+r}, s[34:35]")
    for r in range(4): a(f"v_cndmask_b32 v{48+r}, v{48+r}, v{88+r}, s[36:37]")
    for r in range(4): a(f"v_cndmask_b32 v{48+r}, v{48+r}, v{92+r}, s[38:39]")
    a(f"s_mov_b32 s94, {SCALE:#x}")
    for (d, sr) in ((20, 96), (16, 48)):
        bf16r2(f"v{d}", f"v{d+1}", f"v{sr}", f"v{sr+1}", "v32")
        bf16r2(f"v{d+2}", f"v{d+3}", f"v{sr+2}", f"v{sr+3}", "v33")
    for r in range(8): a(f"v_mul_f32 v{16+r}, s94, v{16+r}")
    for d in (16, 20):
        bf16r2(f"v{d}", f"v{d+1}", f"v{d}", f"v{d+1}", "v32")
        bf16r2(f"v{d+2}", f"v{d+3}", f"v{d+2}", f"v{d+3}", "v33")
    a(f"v_mov_b32 v34, {NEG}")
    for r in range(4): a(f"v_cndmask_b32 v{16+r}, v34, v{16+r}, s[30:31]")
    for r in range(4): a(f"v_cndmask_b32 v{20+r}, v34, v{20+r}, s[32:33]")
    for r in range(4): a(f"v_max_f32 v{24+r}, v{16+r}, v{20+r}")
    allreduce(["v24", "v25", "v26", "v27"], "v_max_f32", [], ["x1", "x2", "x4", "x8"])
    for r in range(4): a(f"v_max_f32_dpp v{24+r}, v{24+r}, v{24+r} row_bcast:15 row_mask:0xa bank_mask:0xf")
    for r in range(4): a(f"v_max_f32_dpp v{24+r}, v{24+r}, v{24+r} row_bcast:31 row_mask:0xc bank_mask:0xf")
    a(f"s_lshl_b32 s90, {S_W}, 4")
    a("v_mov_b32 v10, s90")
    a("s_mov_b32 exec_lo, 0")
    a("s_mov_b32 exec_hi, 0x80000000")
    a(f"ds_write_b128 v10, v[24:27] offset:{L_MX}")
    a(f"ds_add_u32 v3, v4 offset:{F_MB1}")
    a("s_mov_b64 exec, -1")
    a(f"s_lshl_b32 s90, {T_ST}, 5")
    a(f"s_add_u32 s90, s90, {L_P}")
    a("v_lshl_add_u32 v10, v0, 1, s90")
    spin_lds(F_MB1, 4, "v3", "v5", sleep=False)
    for w in range(4):
        a(f"ds_read_b128 v[{32+4*w}:{35+4*w}], v3 offset:{L_MX+16*w}")
    a(f"s_mov_b32 s94, {LOG2E:#x}")
    a("s_waitcnt lgkmcnt(0)")
    for r in range(4):
        a(f"v_max3_f32 v{24+r}, v{32+r}, v{36+r}, v{40+r}")
    for r in range(4):
        a(f"v_max_f32 v{24+r}, v{24+r}, v{44+r}")
    for r in range(8): a(f"v_sub_f32 v{16+r}, v{16+r}, v{24+(r&3)}")
    for r in range(8): a(f"v_mul_f32 v{16+r}, s94, v{16+r}")
    for r in range(8): a(f"v_exp_f32 v{16+r}, v{16+r}")
    a("v_cvt_pk_bf16_f32 v28, v16, v17")
    a("v_cvt_pk_bf16_f32 v29, v18, v19")
    a("v_cvt_pk_bf16_f32 v30, v20, v21")
    a("v_cvt_pk_bf16_f32 v31, v22, v23")
    a("s_mov_b64 exec, s[30:31]")
    a("ds_write_b16 v10, v28")
    a(f"ds_write_b16_d16_hi v10, v28 offset:{PPITCH}")
    a(f"ds_write_b16 v10, v29 offset:{2*PPITCH}")
    a(f"ds_write_b16_d16_hi v10, v29 offset:{3*PPITCH}")
    a(f"s_cmp_lg_u32 {T_N}, 5")
    a("s_cbranch_scc1 L_p_w1")
    a("s_mov_b64 exec, s[32:33]")
    a("ds_write_b16 v10, v30 offset:128")
    a(f"ds_write_b16_d16_hi v10, v30 offset:{PPITCH+128}")
    a(f"ds_write_b16 v10, v31 offset:{2*PPITCH+128}")
    a(f"ds_write_b16_d16_hi v10, v31 offset:{3*PPITCH+128}")
    a.label("L_p_w1")
    a("s_mov_b64 exec, 1")
    a(f"ds_add_u32 v3, v4 offset:{F_MB2}")
    a("s_mov_b64 exec, -1")
    a.label("L_m_pv")
    stamp(5)
    a("v_lshrrev_b32 v10, 2, v2")
    a(f"v_mul_u32_u24 v10, {PPITCH}, v10")
    a("v_lshl_add_u32 v10, v1, 4, v10")
    a(f"v_add_u32 v60, {L_P}, v10")
    a(f"v_add_u32 v61, {L_V}, v13")
    a(f"v_add_u32 v62, {L_V}, v14")
    a("v_lshl_add_u32 v63, v1, 14, v9")
    a(f"v_mov_b32 v65, {S_TAG}")
    for r in range(8): a(f"v_mov_b32 v{48+r}, 0")
    spin_lds(F_MB2, 4, "v3", "v5", sleep=False)
    a(f"s_add_u32 s95, {T_K}, 8")
    a("s_mov_b32 s96, -1000")
    def pv_ensure(tagl):
        G = f"L_pv_go{tagl}"; S = f"L_pv_sp{tagl}"
        a("s_cmp_ge_i32 s96, s95")
        a(f"s_cbranch_scc1 {G}")
        a.label(S)
        a(f"ds_read_b32 v5, v3 offset:{F_LC}")
        a("s_waitcnt lgkmcnt(0)")
        a("v_readfirstlane_b32 s96, v5")
        a("s_cmp_ge_i32 s96, s95")
        a(f"s_cbranch_scc1 {G}")
        timeout()
        a(f"s_branch {S}")
        a.label(G)
    def pv_reads(b):
        a(f"ds_read_b128 v[{b}:{b+3}], v60")
        a(f"ds_read_b64_tr_b16 v[{b+4}:{b+5}], v61")
        a(f"ds_read_b64_tr_b16 v[{b+6}:{b+7}], v61 offset:1024")
        a(f"ds_read_b64_tr_b16 v[{b+8}:{b+9}], v62")
        a(f"ds_read_b64_tr_b16 v[{b+10}:{b+11}], v62 offset:1024")
        a("v_add_u32 v60, 64, v60")
        a("v_add_u32 v61, 0x2000, v61")
        a("v_add_u32 v62, 0x2000, v62")
        a("s_add_u32 s95, s95, 8")
    def pv_mfma(b):
        a(f"v_mfma_f32_16x16x32_bf16 v[48:51], v[{b}:{b+3}], v[{b+4}:{b+7}], v[48:51]")
        a(f"v_mfma_f32_16x16x32_bf16 v[52:55], v[{b}:{b+3}], v[{b+8}:{b+11}], v[52:55]")
    pv_ensure("0")
    pv_reads(16)
    a.label("L_pv_loop")
    pv_ensure("1")
    pv_reads(28)
    a("s_waitcnt lgkmcnt(5)")
    pv_mfma(16)
    pv_ensure("2")
    pv_reads(16)
    a("s_waitcnt lgkmcnt(5)")
    pv_mfma(28)
    a(f"s_cmp_le_i32 s95, {T_V}")
    a("s_cbranch_scc1 L_pv_loop")
    a("s_waitcnt lgkmcnt(0)")
    pv_mfma(16)
    stamp(6)
    a("s_nop 4")
    a("v_cvt_pk_bf16_f32 v64, v48, v52")
    store_loc(f"buffer_store_dwordx2 v[64:65], v63, {WSRD}, {O_O} offen")
    arrive(F_PO, "v3", "v4")
    stamp(7)
    mark(12, "v3")
    spin_lds(F_WOL, 1, "v3", "v5", sleep=False)
    a(f"s_mul_i32 s90, {S_B}, {L_WO_B - L_WO}")
    a(f"s_add_u32 s90, s90, {L_WO}")
    a("v_add_u32 v10, s90, v7")
    loadB("v10", 4, 4096, 512)
    a("s_waitcnt lgkmcnt(0)")
    a("s_barrier")
    gemv(L_ACT4, 4)
    publish_pair(O_A4)
    arrive(F_PA, "v3", "v4")
    stamp(8)
    mark(13, "v3")
    spin_lds(F_LATE, 1, "v3", "v5")
    a(f"s_lshr_b32 s90, {S_W}, 1")
    a("s_lshl_b32 s90, s90, 13")
    a(f"s_mul_i32 s91, {S_B}, {(L_G_B - L_G) if cfg.bearly else 0}")
    a("s_add_u32 s90, s90, s91")
    a(f"s_add_u32 s90, s90, {L_G}")
    a("v_add_u32 v11, s90, v12")
    loadB("v11", 4, 2048, 256)
    a(f"s_mul_i32 s90, {S_B}, {(L_DN_B - L_DN) if (cfg.bearly or cfg.dnwo) else 0}")
    a(f"s_add_u32 s90, s90, {L_DN}")
    a("v_add_u32 v15, s90, v7")
    a("s_waitcnt lgkmcnt(0)")
    a("s_barrier")
    a(f"s_cmp_eq_u32 {S_CB}, 7")
    a("s_cbranch_scc1 L_m_s7")
    gemv(L_ACT6, 4)
    publish(13, O_GU, local=True)
    a.label("L_m_s7")
    arrive(F_PG, "v3", "v4")
    stamp(9)
    spin_lds(F_DN, 1, "v3", "v5", sleep=False)
    loadB("v15", 2, 4096, 512, base=64)
    a("s_waitcnt lgkmcnt(0)")
    a("s_barrier")
    gemv(L_ACT7, 2, bbase=64)
    publish_pair(O_DN)
    arrive(F_PD, "v3", "v4")
    stamp(10)
    mark(15, "v3")
    dump_stamps(11)
    a("s_endpgm")

    def r1_block(uid, vz):
        a(f"s_sub_u32 s90, {S_W}, 4")
        a("s_lshr_b32 s91, s90, 1")
        a("s_and_b32 s94, s90, 1")
        a("s_lshl_b32 s99, s94, 8")
        a(f"s_lshl_b32 s100, {S_X}, 16")
        a("s_add_u32 s99, s99, s100")
        a(f"s_lshl_b32 s100, {S_KQ}, 14")
        a("s_add_u32 s99, s99, s100")
        a("s_lshl_b32 s100, s91, 13")
        a("s_add_u32 s99, s99, s100")
        a(f"s_add_u32 s99, s99, {W_O}")
        a(f"s_lshl_b32 s100, {S_X}, 11")
        a("s_lshl_b32 s90, s91, 10")
        a("s_add_u32 s100, s100, s90")
        a(f"s_lshl_b32 s90, {S_KQ}, 8")
        a("s_add_u32 s100, s100, s90")
        a(f"s_add_u32 s100, s100, {W_ST}")
        a("v_lshrrev_b32 v48, 5, v0")
        a("v_and_b32 v49, 31, v0")
        a("v_lshlrev_b32 v50, 12, v48")
        a("v_lshl_add_u32 v50, v49, 3, v50")
        a("v_and_b32 v51, 7, v0")
        a("v_lshl_add_u32 v51, v48, 3, v51")
        a("v_lshlrev_b32 v51, 4, v51")
        a(f"s_mul_i32 s91, s91, {APITCH}")
        a("s_lshl_b32 s94, s94, 7")
        a("s_add_u32 s91, s91, s94")
        a("v_bfe_u32 v52, v0, 4, 1")
        a("v_lshlrev_b32 v52, 6, v52")
        a("v_and_b32 v53, 15, v0")
        a("v_lshl_add_u32 v52, v53, 1, v52")
        a("v_lshl_add_u32 v52, v48, 5, v52")
        a("v_add_u32 v52, s91, v52")
        loads = [f"buffer_load_dwordx4 v[32:35], v51, {WSRD}, s100 offen sc1"]; tags = ["v33", "v35"]
        for i in range(8):
            loads.append(f"buffer_load_dwordx2 v[{16+2*i}:{17+2*i}], v50, {WSRD}, s99 offen offset:{512*i} sc1")
            tags.append(f"v{17+2*i}")
        if cfg.warm:
            for l in loads: a(l)
        after_own(F_PO, 4, vz, "v54", cfg.d_r1)
        stamp(7 if uid != "q" else 4)
        poll(loads, tags, "v54", sleep=cfg.rsl_l)
        if uid == "q": stamp(10)
        a("v_mov_b32 v55, v32")
        allreduce(["v55"], "v_max_f32", ["v56"], ["x1", "x2", "x4", "x32"])
        a(f"s_mov_b32 s94, {LOG2E:#x}")
        a("v_sub_f32 v56, v32, v55")
        for i in range(4): a(f"v_lshlrev_b32 v{36+2*i}, 16, v{16+2*i}"); a(f"v_and_b32 v{37+2*i}, 0xffff0000, v{16+2*i}")
        a("v_mul_f32 v56, s94, v56")
        a("v_exp_f32 v56, v56")
        for i in range(4, 8): a(f"v_lshlrev_b32 v{36+2*i}, 16, v{16+2*i}"); a(f"v_and_b32 v{37+2*i}, 0xffff0000, v{16+2*i}")
        a("v_mul_f32 v57, v56, v34")
        allreduce(["v57"], "v_add_f32", ["v58"], ["x1", "x2", "x4", "x32"])
        a("v_rcp_f32 v57, v57")
        a("v_mov_b32 v58, 0")
        a("v_mov_b32 v59, 0")
        a("v_mul_f32 v56, v56, v57")
        for i in range(8):
            a(f"v_fmac_f32_dpp v58, v56, v{36+2*i} row_newbcast:{i} row_mask:0xf bank_mask:0xf")
            a(f"v_fmac_f32_dpp v59, v56, v{37+2*i} row_newbcast:{i} row_mask:0xf bank_mask:0xf")
        a("v_permlane32_swap_b32 v58, v59")
        a("v_add_f32 v58, v58, v59")
        a("v_cvt_pk_bf16_f32 v58, v58, v58")
        a(f"ds_write_b16 v52, v58 offset:{L_ACT4}")
        a("s_waitcnt lgkmcnt(0)")

    a.label("L_gwave")
    a(f"s_cmp_eq_u32 {S_W}, 4")
    a("s_cbranch_scc1 L_slice")
    a(f"s_cmp_eq_u32 {S_W}, 7")
    a("s_cbranch_scc1 L_aux")

    SB = "s97"
    a("s_mov_b64 s[36:37], s[42:43]")
    a("v_lshlrev_b32 v2, 2, v0")
    a("v_mov_b32 v10, 1")
    a(f"s_mul_i32 s98, {SB}, {APITCH}")
    a("v_add_u32 v11, s98, v2")
    a("v_mov_b32 v19, 0")
    a("s_waitcnt vmcnt(0)")
    stamp(1)
    a("v_lshlrev_b32 v12, 16, v9")
    a("v_and_b32 v13, 0xffff0000, v9")
    a(f"s_mov_b32 s94, {LOG2E:#x}")
    for r in (12, 13): a(f"v_mul_f32 v{r+2}, s94, v{r}")
    for r in (12, 13): a(f"v_exp_f32 v{r+2}, -v{r+2}")
    for r in (12, 13): a(f"v_add_f32 v{r+2}, 1.0, v{r+2}")
    for r in (12, 13): a(f"v_rcp_f32 v{r+2}, v{r+2}")
    for r in (12, 13): a(f"v_mul_f32 v{r}, v{r}, v{r+2}")
    a("v_cvt_pk_bf16_f32 v12, v12, v13")
    a(f"ds_write_b32 v11, v12 offset:{L_ACT1}")
    arrive(F_1, "v19", "v10")
    get_tag()
    a("v_mov_b32 v3, 0")

    def ln_finish(mean, var, x0, x1, tmp):
        bf16r2(mean, var, mean, var, tmp)
        a(f"s_mov_b32 s94, {EPS:#x}")
        a(f"v_add_f32 {var}, s94, {var}")
        bf16r1(var, var)
        a(f"v_sqrt_f32 {var}, {var}")
        a(f"v_sub_f32 {x0}, {x0}, {mean}")
        a(f"v_sub_f32 {x1}, {x1}, {mean}")
        bf16r1(var, var)
        a(f"v_rcp_f32 {var}, {var}")
        bf16r2(x0, x1, x0, x1, tmp)
        a(f"v_mul_f32 {x0}, {x0}, {var}")
        a(f"v_mul_f32 {x1}, {x1}, {var}")
        bf16r2(x0, x1, x0, x1, tmp)

    def quarter_gather(chunkA, chunkB, qreg, pre=None, sample=False, hook=None):
        for (ch, sreg) in ((chunkA, "s90"), (chunkB, "s99")):
            sexpr(sreg, [(SB, "shl", 14), (qreg, "shl", 12)], W_MOD + ch*32768)
        loads = []; tags = []
        for i in range(4):
            loads.append(f"buffer_load_dwordx4 v[{16+4*i}:{19+4*i}], v1, {WSRD}, s90 offen offset:{1024*i} sc1")
            loads.append(f"buffer_load_dwordx4 v[{32+4*i}:{35+4*i}], v1, {WSRD}, s99 offen offset:{1024*i} sc1")
            tags += [f"v{17+4*i}", f"v{19+4*i}", f"v{33+4*i}", f"v{35+4*i}"]
        if pre: pre()
        poll(loads, tags, "v50", sample=sample, hook=hook)
        for (base, d0, d1) in ((16, "v14", "v15"), (32, "v48", "v49")):
            a(f"v_add_f32 {d0}, v{base}, v{base+4}")
            a(f"v_add_f32 {d1}, v{base+2}, v{base+6}")
            a(f"v_add_f32 v50, v{base+8}, v{base+12}")
            a(f"v_add_f32 v51, v{base+10}, v{base+14}")
            a(f"v_add_f32 {d0}, {d0}, v50")
            a(f"v_add_f32 {d1}, {d1}, v51")
            bf16r2(d0, d1, d0, d1, "v50")

    def modulate(x0, x1, sc0, sc1, sh0, sh1, dst, tmp):
        a(f"v_mul_f32 {x0}, {x0}, {sc0}")
        a(f"v_mul_f32 {x1}, {x1}, {sc1}")
        bf16r2(x0, x1, x0, x1, tmp)
        a(f"v_add_f32 {x0}, {x0}, {sh0}")
        a(f"v_add_f32 {x1}, {x1}, {sh1}")
        a(f"v_cvt_pk_bf16_f32 {dst}, {x0}, {x1}")

    a(f"s_cmp_eq_u32 {S_B}, 0")
    a("s_cbranch_scc1 L_q_qg")
    for i in range(4):
        a(f"v_lshlrev_b32 v{16+2*i}, 16, v{4+i}")
        a(f"v_and_b32 v{17+2*i}, 0xffff0000, v{4+i}")
    a("v_add_f32 v24, v16, v17")
    a("v_add_f32 v25, v18, v19")
    a("v_add_f32 v26, v20, v21")
    a("v_add_f32 v27, v22, v23")
    a("v_add_f32 v24, v24, v25")
    a("v_add_f32 v26, v26, v27")
    a("v_add_f32 v24, v24, v26")
    allreduce(["v24"], "v_add_f32", ["v28"], FULL)
    a(f"s_mov_b32 s94, {INV512:#x}")
    a("v_mul_f32 v24, s94, v24")
    for i in range(8): a(f"v_sub_f32 v{16+i}, v{16+i}, v24")
    a("v_mul_f32 v25, v16, v16")
    for i in range(1, 8): a(f"v_fmac_f32 v25, v{16+i}, v{16+i}")
    allreduce(["v25"], "v_add_f32", ["v28"], FULL)
    a("v_mul_f32 v25, s94, v25")
    a("v_lshlrev_b32 v12, 16, v8")
    a("v_and_b32 v13, 0xffff0000, v8")
    ln_finish("v24", "v25", "v12", "v13", "v28")
    if cfg.warm:
        a(f"s_lshr_b32 s90, {S_SPL}, 1")
        a(f"s_and_b32 s91, {S_SPL}, 1")
        sexpr("s99", [(S_X, "shl", 15), (SB, "shl", 14), ("s90", "shl", 12), ("s91", "shl", 9)], W_Q)
        a("s_mov_b32 exec_hi, 0")
        for i in range(4):
            a(f"buffer_load_dwordx4 v[{16+4*i}:{19+4*i}], v1, {WSRD}, s99 offen offset:{1024*i} sc1")
        a("s_mov_b32 exec_hi, -1")
    a(f"s_lshr_b32 s100, {S_SPL}, 1")
    quarter_gather(0, 1, "s100", pre=lambda: a(f"s_sleep {cfg.d_h}"), hook=(lambda: arrive(F_HI, "v3", "v10")) if cfg.wqsplit < 16 else None)
    a("v_add_f32 v48, 1.0, v48")
    a("v_add_f32 v49, 1.0, v49")
    bf16r2("v48", "v49", "v48", "v49", "v50")
    modulate("v12", "v13", "v48", "v49", "v14", "v15", "v16", "v50")
    a(f"ds_write_b32 v11, v16 offset:{L_ACT2}")
    arrive(F_2, "v3", "v10")
    stamp(2)
    a(f"s_lshr_b32 s90, {S_SPL}, 1")
    a(f"s_and_b32 s91, {S_SPL}, 1")
    sexpr("s99", [(S_X, "shl", 15), (SB, "shl", 14), ("s90", "shl", 12), ("s91", "shl", 9)], W_Q)
    sexpr("s100", [(S_X, "shl", 12), (SB, "shl", 11), (S_SPL, "shl", 8)], W_QF)
    a("v_lshlrev_b32 v54, 3, v0")
    a("s_mov_b32 exec_hi, 0")
    loads = []; tags = []
    for i in range(4):
        loads.append(f"buffer_load_dwordx4 v[{16+4*i}:{19+4*i}], v1, {WSRD}, s99 offen offset:{1024*i} sc1")
        tags += [f"v{17+4*i}", f"v{19+4*i}"]
    get_mode("v3", "v50")
    after_own(F_PQ, 4, "v3", "v50", cfg.d_q)
    poll(loads, tags, "v50", sleep=0)
    a("v_add_f32 v48, v16, v20")
    a("v_add_f32 v49, v18, v22")
    a("v_add_f32 v50, v24, v28")
    a("v_add_f32 v51, v26, v30")
    a("v_add_f32 v48, v48, v50")
    a("v_add_f32 v49, v49, v51")
    a(f"v_mov_b32 v53, {S_TAG}")
    a("v_cvt_pk_bf16_f32 v52, v48, v49")
    store_loc(f"buffer_store_dwordx2 v[52:53], v54, {WSRD}, s100 offen")
    a("s_mov_b64 exec, -1")
    arrive(F_QF, "v3", "v10")
    a.label("L_q_qg")
    sexpr("s90", [(S_X, "shl", 12), (S_BT, "shl", 11), (SB, "shl", 10)], W_QF)
    a("v_lshrrev_b32 v54, 5, v0")
    a(f"v_mul_u32_u24 v54, {APITCH}, v54")
    a("v_and_b32 v55, 31, v0")
    a("v_lshl_add_u32 v54, v55, 3, v54")
    a(f"s_mul_i32 s100, {SB}, {2*APITCH}")
    a("v_add_u32 v54, s100, v54")
    ldA = f"buffer_load_dwordx4 v[16:19], v1, {WSRD}, s90 offen sc1"
    ldB = f"buffer_load_dwordx4 v[20:23], v1, {WSRD}, s90 offen sc1"
    a(f"s_cmp_eq_u32 {S_B}, 0")
    a("s_cbranch_scc1 L_q_qA")
    after_own(F_QF, 2, "v3", "v50", cfg.d_q)
    a("s_branch L_q_qP")
    a.label("L_q_qA")
    if cfg.quiet: spin_lds(F_LC, cfg.quiet, "v3", "v50")
    a.label("L_q_qP")
    a(ldA)
    a(f"s_sleep {cfg.qsl2}")
    a.label("L_q_loop")
    a(ldB)
    a("s_waitcnt vmcnt(1)")
    a(f"v_xor_b32 v50, {S_TAG}, v17")
    a(f"v_bitop3_b32 v50, v50, v19, {S_TAG} bitop3:0xf6")
    a("v_cmp_ne_u32 vcc, 0, v50")
    a("s_cbranch_vccz L_q_gotA")
    timeout()
    a(ldA)
    a("s_waitcnt vmcnt(1)")
    a(f"v_xor_b32 v50, {S_TAG}, v21")
    a(f"v_bitop3_b32 v50, v50, v23, {S_TAG} bitop3:0xf6")
    a("v_cmp_ne_u32 vcc, 0, v50")
    a("s_cbranch_vccnz L_q_loop")
    a("v_mov_b32 v24, v20")
    a("v_mov_b32 v25, v22")
    a("s_branch L_q_got")
    a.label("L_q_gotA")
    a("v_mov_b32 v24, v16")
    a("v_mov_b32 v25, v18")
    a.label("L_q_got")
    a(f"ds_write_b64 v54, v[24:25] offset:{L_Q}")
    arrive(F_3, "v3", "v10")
    stamp(3)
    a("s_waitcnt vmcnt(0)")
    if cfg.g_late: gate_lc(cfg.g_late, cfg.g_late * NK_B // NK_A, "v3", "v50")
    sexpr("s90", [(SB, "shl", 11), (S_KQ, "shl", 9)], W_MODF + 3*4096)
    a("s_add_u32 s99, s90, 4096")
    a("v_lshlrev_b32 v54, 3, v0")
    if cfg.warm:
        a(f"s_mul_i32 s94, {S_KQ}, 448")
        sexpr("s24", [(S_X, "shl", 15), (SB, "shl", 13), ("s94", "shl", 0)], W_GU, tmp="s25")
        a("s_add_u32 s25, s24, 4096")
        a("s_add_u32 s26, s24, 16384")
        a("s_add_u32 s27, s24, 20480")
        for wh in range(2):
            for k6 in range(4):
                sr = [["s24", "s25"], ["s26", "s27"]][wh][k6 >> 1]
                rb = 20 + 8*wh + 2*k6
                a(f"buffer_load_dwordx2 v[{rb}:{rb+1}], v54, {WSRD}, {sr} offen offset:{2048*(k6&1)} sc1")
        sexpr("s24", [(S_X, "shl", 10), (SB, "shl", 9)], W_X1S)
        sexpr("s25", [(S_X, "shl", 12), (SB, "shl", 11), (S_KQ, "shl", 9)], W_X1P)
        a(f"buffer_load_dwordx2 v[36:37], v54, {WSRD}, s24 offen sc1")
        a(f"buffer_load_dwordx2 v[38:39], v54, {WSRD}, s25 offen sc1")
    poll([f"buffer_load_dwordx2 v[16:17], v54, {WSRD}, s90 offen sc1",
          f"buffer_load_dwordx2 v[18:19], v54, {WSRD}, s99 offen sc1"], ["v17", "v19"], "v50", sleep=8)
    a("v_lshlrev_b32 v66, 16, v16")
    a("v_and_b32 v67, 0xffff0000, v16")
    a("v_lshlrev_b32 v48, 16, v18")
    a("v_and_b32 v49, 0xffff0000, v18")
    a("v_add_f32 v48, 1.0, v48")
    a("v_add_f32 v49, 1.0, v49")
    bf16r2("v64", "v65", "v48", "v49", "v50")
    r1_block("q", "v3")
    stamp(5)
    a("s_barrier")
    sexpr("s99", [(S_X, "shl", 10), (SB, "shl", 9)], W_X1S)
    sexpr("s90", [(S_X, "shl", 12), (SB, "shl", 11), (S_KQ, "shl", 9)], W_X1P)
    a("v_lshlrev_b32 v16, 3, v0")
    a("v_and_b32 v17, 31, v0")
    a("v_lshlrev_b32 v17, 4, v17")
    after_own(F_PX, 1, "v3", "v50", cfg.d_x1)
    stamp(8)
    poll([f"buffer_load_dwordx4 v[24:27], v17, {WSRD}, s99 offen sc1",
          f"buffer_load_dwordx2 v[20:21], v16, {WSRD}, s90 offen sc1"], ["v21", "v25", "v27"], "v50", sleep=cfg.rsl_l)
    stamp(9)
    allreduce(["v24", "v26"], "v_add_f32", ["v28", "v29"], ["x1", "x2", "x4", "x8", "x16"])
    a(f"s_mov_b32 s94, {INV512:#x}")
    a("v_mul_f32 v24, s94, v24")
    a("v_mul_f32 v26, s94, v26")
    a("v_lshlrev_b32 v12, 16, v20")
    a("v_fma_f32 v26, -v24, v24, v26")
    a("v_and_b32 v13, 0xffff0000, v20")
    a("v_max_f32 v26, 0, v26")
    ln_finish("v24", "v26", "v12", "v13", "v30")
    modulate("v12", "v13", "v64", "v65", "v66", "v67", "v16", "v30")
    a(f"ds_write_b32 v11, v16 offset:{L_ACT6}")
    a(f"s_mul_i32 s94, {S_KQ}, 448")
    sexpr("s90", [(S_X, "shl", 15), (SB, "shl", 13), ("s94", "shl", 0)], W_GU, tmp="s99")
    a("s_add_u32 s94, s90, 4096")
    a("s_add_u32 s99, s90, 16384")
    a("s_add_u32 s100, s90, 20480")
    a("s_waitcnt lgkmcnt(0)")
    stamp(6)
    a("s_barrier")
    a("v_lshlrev_b32 v16, 3, v0")
    a("v_mov_b32 v40, 0")
    a("v_lshlrev_b32 v17, 1, v0")
    a("v_add_u32 v17, s98, v17")
    a("s_mov_b32 exec_lo, -1")
    a("s_mov_b32 exec_hi, 0x00ffffff")
    loads = []; tags = []
    for wh in range(2):
        for k6 in range(4):
            sr = [["s90", "s94"], ["s99", "s100"]][wh][k6 >> 1]
            rb = 20 + 8*wh + 2*k6
            loads.append(f"buffer_load_dwordx2 v[{rb}:{rb+1}], v16, {WSRD}, {sr} offen offset:{2048*(k6&1)} sc1")
            tags.append(f"v{rb+1}")
    after_own(F_PG, 4, "v3", "v50", cfg.d_gu)
    poll(loads, tags, "v50", sleep=cfg.rsl_l)
    a("v_add_f32 v36, v20, v22")
    a("v_add_f32 v37, v24, v26")
    a("v_add_f32 v38, v28, v30")
    a("v_add_f32 v39, v32, v34")
    a("v_add_f32 v36, v36, v37")
    a("v_add_f32 v38, v38, v39")
    bf16r2("v36", "v38", "v36", "v38", "v50")
    a("v_mul_f32 v36, v36, v38")
    a("v_cvt_pk_bf16_f32 v40, v36, v36")
    a("s_mov_b64 exec, -1")
    a(f"ds_write_b16 v17, v40 offset:{L_ACT7}")
    a("s_waitcnt lgkmcnt(0)")
    stamp(7)
    a("s_barrier")
    dump_stamps(11)
    a("s_endpgm")

    a.label("L_slice")
    srd(48, 38, 2048)
    a("v_lshlrev_b32 v7, 4, v0")
    a("v_and_b32 v1, 3, v0")
    a("v_bfe_u32 v2, v0, 4, 1")
    a("v_bfe_u32 v4, v0, 3, 1")
    a("v_lshrrev_b32 v5, 5, v0")
    a("v_lshlrev_b32 v6, 2, v1")
    a("v_lshl_add_u32 v6, v2, 1, v6")
    a("v_add_u32 v6, v6, v4")
    a("v_lshlrev_b32 v8, 10, v5")
    a("v_lshl_add_u32 v8, v6, 1, v8")
    a(f"s_lshl_b32 s90, {S_LOC}, 5")
    a("buffer_load_ushort v9, v8, s[44:47], s90 offen")
    a("v_lshlrev_b32 v10, 4, v5")
    a("v_add_u32 v10, v10, v6")
    a("v_lshlrev_b32 v10, 2, v10")
    a("v_lshlrev_b32 v11, 1, v1")
    a("v_add_u32 v11, v11, v2")
    a("v_lshlrev_b32 v12, 11, v5")
    a("v_lshl_add_u32 v98, v11, 3, v12")
    a("v_lshlrev_b32 v99, 9, v5")
    a("v_lshlrev_b32 v12, 10, v5")
    a("v_lshl_add_u32 v97, v11, 2, v12")
    sexpr("s22", [(S_X, "shl", 12), (S_LOC, "shl", 6)], W_X1P)
    sexpr("s23", [(S_X, "shl", 10), (S_LOC, "shl", 4)], W_X1S)
    a(f"s_lshl_b32 s24, {S_LOC}, 5")
    a(f"s_lshl_b32 s17, {S_LOC}, 12")
    a("v_cmp_eq_u32 s[26:27], 1, v4")
    a("v_mov_b32 v100, 0x3f80")
    a("v_mov_b32 v101, 0x3f800000")
    a("s_waitcnt vmcnt(0)")
    get_tag()
    a("v_mov_b32 v3, 0")
    a("v_lshlrev_b32 v102, 16, v9")
    get_mode("v3", "v20")
    stamp(1)

    def part_loads(base, rb0=16, setup=True):
        if setup: a(f"s_add_u32 s20, s17, {base}")
        loads = []; tags = []
        for i in range(4):
            rb = rb0 + 4*i
            loads.append(f"buffer_load_dwordx4 v[{rb}:{rb+3}], v7, {WSRD}, s20 offen offset:{1024*i} sc1")
            tags += [f"v{rb+1}", f"v{rb+3}"]
        return loads, tags
    def part_loads_atomic(base):
        a(f"s_add_u32 s20, s17, {base}")
        loads = []; tags = []
        for r in range(16, 32): loads.append(f"v_mov_b32 v{r}, 0")
        for i in range(4):
            rb = 16 + 4*i
            for hh in range(2):
                loads.append(f"buffer_atomic_add_x2 v[{rb+2*hh}:{rb+2*hh+1}], v7, {WSRD}, s20 offen offset:{1024*i + 8*hh} sc0 sc1")
            tags += [f"v{rb+1}", f"v{rb+3}"]
        return loads, tags
    def part_dot(rb0):
        for b in range(2):
            for (k, (off, sel)) in enumerate(((0, "v100"), (0, "v101"), (2, "v100"), (2, "v101"))):
                a(f"v_dot2_f32_bf16 v{32+4*b+k}, v{rb0+8*b+off}, {sel}, 0")
        for b in range(2):
            for (k, (off, sel)) in enumerate(((0, "v100"), (0, "v101"), (2, "v100"), (2, "v101"))):
                a(f"v_dot2_f32_bf16 v{32+4*b+k}, v{rb0+4+8*b+off}, {sel}, v{32+4*b+k}")
    def part_sum(dot=True):
        if dot: part_dot(16)
        for c in range(4): a(f"v_permlane32_swap_b32 v{32+c}, v{36+c}")
        for c in range(4): a(f"v_add_f32 v{32+c}, v{32+c}, v{36+c}")
        a("v_permlane16_swap_b32 v32, v34")
        a("v_permlane16_swap_b32 v33, v35")
        a("v_add_f32 v32, v32, v34")
        a("v_add_f32 v33, v33, v35")
        a("v_cndmask_b32 v36, v32, v33, s[26:27]")
        a("v_cndmask_b32 v37, v33, v32, s[26:27]")
        a("v_add_f32_dpp v36, v37, v36 row_ror:8 row_mask:0xf bank_mask:0xf")
        a("v_add_f32_dpp v40, v36, v36 row_shl:4 row_mask:0xf bank_mask:0x5")
        a("v_add_f32_dpp v40, v36, v36 row_shr:4 row_mask:0xf bank_mask:0xa")
    def resid(gate):
        bf16r1("v40", "v40")
        a(f"v_mul_f32 v40, v40, {gate}")
        bf16r1("v40", "v40")
        a("v_add_f32 v102, v102, v40")
        bf16r1("v102", "v102")
    def make_pair(dst):
        a("v_mov_b32_dpp v41, v102 row_ror:8 row_mask:0xf bank_mask:0xf")
        a(f"v_cvt_pk_bf16_f32 {dst}, v102, v41")
    PUBM = "0x000f000f"

    l1, t1 = part_loads(W_A4)
    spin_lds(F_MB2, 4, "v3", "v15")
    a("v_lshrrev_b32 v16, 4, v0")
    a("v_and_b32 v17, 15, v0")
    a(f"v_mul_u32_u24 v18, {PPITCH}, v16")
    a("v_lshl_add_u32 v18, v17, 2, v18")
    a("v_lshlrev_b32 v19, 2, v16")
    a("v_mov_b32 v20, 0")
    a("v_mov_b32 v21, 0x3f803f80")
    for w in range(4): a(f"ds_read_b32 v{24+w}, v19 offset:{L_MX+16*w}")
    for i in range(NK_B // 32): a(f"ds_read_b32 v{32+i}, v18 offset:{L_P+64*i}")
    a(f"s_cmp_lg_u32 {S_B}, 0")
    a("s_cbranch_scc1 L_sl_stB")
    for i in range(NK_B // 32, NK_A // 32): a(f"ds_read_b32 v{32+i}, v18 offset:{L_P+64*i}")
    a("s_waitcnt lgkmcnt(0)")
    for i in range(NK_B // 32, NK_A // 32): a(f"v_dot2_f32_bf16 v20, v{32+i}, v21, v20")
    a.label("L_sl_stB")
    a("s_waitcnt lgkmcnt(0)")
    for i in range(NK_B // 32): a(f"v_dot2_f32_bf16 v20, v{32+i}, v21, v20")
    allreduce(["v20"], "v_add_f32", [], ["x1", "x2", "x4", "x8"])
    a("v_max3_f32 v24, v24, v25, v26")
    a("v_max_f32 v24, v24, v27")
    a(f"v_mov_b32 v25, {S_TAG}")
    a("v_mov_b32 v26, v20")
    a(f"v_mov_b32 v27, {S_TAG}")
    a("v_lshlrev_b32 v22, 8, v16")
    sexpr("s25", [(S_X, "shl", 11), (S_BT, "shl", 10), (S_SP, "shl", 4)], W_ST)
    a("s_mov_b32 exec_lo, 0x00010001")
    a("s_mov_b32 exec_hi, 0x00010001")
    store_loc(f"buffer_store_dwordx4 v[24:27], v22, {WSRD}, s25 offen")
    a("s_mov_b64 exec, -1")
    spin_lds(F_GA, 1, "v3", "v15")
    a(f"ds_read_b32 v103, v10 offset:{L_GA}")
    a(f"ds_read_b32 v104, v10 offset:{L_GB}")
    a("s_waitcnt lgkmcnt(0)")
    r1_block("s", "v3")
    a(f"v_mov_b32 v43, {S_TAG}")
    a(f"v_mov_b32 v45, {S_TAG}")
    a(f"v_mov_b32 v47, {S_TAG}")
    a("s_barrier")
    after_own(F_PA, 4, "v3", "v15", cfg.d_s5)
    stamp(2)
    if cfg.dbl:
        poll2(lambda rb: part_loads(0, rb, setup=False), "v15", "s5", part_dot)
        stamp(3)
        part_sum(dot=False)
    else:
        poll(l1, t1, "v15")
        stamp(3)
        part_sum()
    resid("v103")
    make_pair("v42")
    a("v_mul_f32 v46, v102, v102")
    a("v_mov_b32 v44, v102")
    a(f"s_mov_b32 exec_lo, {PUBM}")
    a(f"s_mov_b32 exec_hi, {PUBM}")
    store_loc(f"buffer_store_dwordx2 v[42:43], v98, {WSRD}, s22 offen")
    a("s_mov_b64 exec, -1")
    allreduce(["v44", "v46"], "v_add_f32", ["v48", "v49"], ["x1", "x2", "r8", "x16"])
    a("s_mov_b32 exec_lo, 1")
    a("s_mov_b32 exec_hi, 1")
    store_loc(f"buffer_store_dwordx4 v[44:47], v99, {WSRD}, s23 offen")
    a("s_mov_b64 exec, -1")
    a("v_mov_b32 v15, 1")
    arrive(F_PX, "v3", "v15")
    stamp(4)
    mark(14, "v3")
    a(f"s_and_b32 s90, {S_LOC}, 7")
    a(f"s_cmp_lg_u32 s90, {S_X}")
    a("s_cbranch_scc1 L_slice_nf")
    a("s_barrier")
    a("s_barrier")
    l1, t1 = part_loads_atomic(W_DN) if cfg.atom8 else part_loads(W_DN)
    after_own(F_PD, 4, "v3", "v15", cfg.d_s8)
    if cfg.dbl8 and not cfg.atom8:
        a("s_waitcnt vmcnt(0)")
        poll2(lambda rb: part_loads(0, rb, setup=False), "v15", "s8", part_dot)
        part_sum(dot=False)
    else:
        poll(l1, t1, "v15")
        part_sum()
    resid("v104")
    make_pair("v42")
    a(f"s_mov_b32 exec_lo, {PUBM}")
    a(f"s_mov_b32 exec_hi, {PUBM}")
    a("buffer_store_dword v42, v97, s[48:51], s24 offen")
    a(f"s_cmp_lg_u32 {S_WG}, 0")
    a("s_cbranch_scc1 L_slice_end")
    a("s_mov_b64 exec, 1")
    a(f"v_mov_b32 v24, {S_EP}")
    a("v_mov_b32 v21, 0")
    a(f"buffer_store_dword v24, v21, {WSRD}, 0 offen sc1")
    a.label("L_slice_end")
    if cfg.probe == 1:
        a("s_sleep 94")
        a("s_sleep 94")
    if cfg.probe >= 10:
        a(f"ds_read_b32 v20, v3 offset:{L_PRB}")
        a("s_waitcnt lgkmcnt(0)")
        a("v_readfirstlane_b32 s22, v20")
        a("s_mov_b32 s24, 100000")
        a.label("L_probe")
        a("s_memrealtime s[20:21]")
        a("s_waitcnt lgkmcnt(0)")
        a("s_sub_u32 s24, s24, 1")
        a("s_cbranch_scc1 L_probe_e")
        a("s_sub_u32 s23, s20, s22")
        a("s_cmp_lt_u32 s23, 2000")
        a("s_cbranch_scc1 L_probe")
        a.label("L_probe_e")
    if cfg.probe == 3:
        a("s_add_u32 s22, s62, 2500")
        a.label("L_probe")
        a("s_memrealtime s[20:21]")
        a("s_waitcnt lgkmcnt(0)")
        a("s_sub_u32 s23, s20, s22")
        a("s_cmp_lt_i32 s23, 0")
        a("s_cbranch_scc1 L_probe")
    if cfg.probe == 2:
        a("s_memrealtime s[20:21]")
        a("s_waitcnt lgkmcnt(0)")
        a("s_add_u32 s22, s20, 500")
        a.label("L_probe")
        a("s_memrealtime s[20:21]")
        a("s_waitcnt lgkmcnt(0)")
        a("s_sub_u32 s23, s20, s22")
        a("s_cmp_lt_i32 s23, 0")
        a("s_cbranch_scc1 L_probe")
    a("s_mov_b64 exec, -1")
    stamp(5)
    dump_stamps(6, final=True)
    a("s_endpgm")
    a.label("L_slice_nf")
    a("s_barrier")
    a("s_barrier")
    dump_stamps(5, final=True)
    a("s_endpgm")

    a.label("L_aux")
    srd(44, 28, 512*1792*2)
    srd(48, 30, 512*1792*2)
    srd(52, 32, 1792*512*2)
    a("v_mov_b32 v10, 1")
    sexpr("s18", [(S_X, "mul", 224*1024), (S_KQ, "mul", 56*1024), (S_CB, "shl", 7)])
    sexpr("s19", [(S_KQ, "mul", 128*3584), (S_X, "mul", 448), (S_CB, "shl", 6)])
    a("s_waitcnt vmcnt(0)")
    get_tag()
    strip_voff(3584, "v64")
    unit_voffs(pitch_shift=10, d0="v66", d1="v67")
    a("v_mov_b32 v3, 0")
    stamp(1)

    if cfg.g_piece:
        Lq = a.newlabel("Lgx")
        a(f"s_cmp_lg_u32 {S_B}, 0")
        a(f"s_cbranch_scc1 {Lq}")
        spin_lds(F_LC, cfg.g_piece, "v3", "v50")
        a.label(Lq)
    if cfg.local == 2:
        L = a.newlabel("Lxc"); E = a.newlabel("Lxce")
        srd(60, 40, 256)
        a(f"s_lshl_b32 s91, {S_X}, 5")
        a("s_add_u32 s91, s91, 8")
        a("v_mov_b32 v18, s91")
        a("s_getreg_b32 s90, hwreg(HW_REG_XCC_ID)")
        a("s_and_b32 s90, s90, 7")
        a("s_mul_i32 s90, s90, 6")
        a("s_lshl_b64 s[26:27], 1, s90")
        a("s_mov_b64 exec, 1")
        a.label(L)
        a("buffer_load_dwordx2 v[20:21], v18, s[60:63], 0 offen sc1")
        a("s_waitcnt vmcnt(0)")
        a("v_readfirstlane_b32 s20, v20")
        a("v_readfirstlane_b32 s21, v21")
        a("s_mov_b64 s[22:23], s[20:21]")
        a("s_mov_b32 s90, 0")
        for k in range(8):
            a("s_and_b32 s91, s22, 63")
            a("s_add_u32 s90, s90, s91")
            if k < 7: a("s_lshr_b64 s[22:23], s[22:23], 6")
        a("s_cmp_ge_u32 s90, 32")
        a(f"s_cbranch_scc1 {E}")
        timeout()
        a("s_sleep 2")
        a(f"s_branch {L}")
        a.label(E)
        a("s_lshl_b64 s[22:23], s[26:27], 5")
        a("s_cmp_eq_u64 s[20:21], s[22:23]")
        a("s_cselect_b32 s90, 1, 2")
        a("v_mov_b32 v16, s90")
        a(f"ds_write_b32 v3, v16 offset:{F_LM}")
        a("s_mov_b64 exec, -1")
    stamp(2)
    a(f"s_cmp_lg_u32 {S_B}, 0")
    a("s_cbranch_scc1 L_aux_ga")
    a(f"s_cmp_ge_u32 {S_SPL}, 16")
    a("s_cbranch_scc1 L_aux_ga")
    a(f"s_lshr_b32 s90, {S_X}, 1")
    a(f"s_and_b32 s91, {S_X}, 1")
    a(f"s_lshr_b32 s22, {S_SPL}, 2")
    a(f"s_and_b32 s23, {S_SPL}, 3")
    sexpr("s20", [("s90", "shl", 15), ("s91", "shl", 14), ("s22", "shl", 12), ("s23", "shl", 8)], W_MOD + 2*32768)
    sexpr("s21", [("s90", "shl", 12), ("s91", "shl", 11), (S_SPL, "shl", 7)], W_MODF + 2*4096)
    a("v_lshlrev_b32 v18, 3, v0")
    a("s_mov_b32 exec_hi, 0")
    loads = []; tags = []
    for i in range(4):
        loads.append(f"buffer_load_dwordx2 v[{40+2*i}:{41+2*i}], v18, {WSRD}, s20 offen offset:{1024*i} sc1")
        tags.append(f"v{41+2*i}")
    if cfg.g_piece: spin_lds(F_LC, cfg.g_piece, "v3", "v50")
    poll(loads, tags, "v60", sleep=6, sample=(not cfg.g_piece))
    a("v_add_f32 v40, v40, v42")
    a("v_add_f32 v44, v44, v46")
    a("v_add_f32 v40, v40, v44")
    a("v_lshlrev_b32 v18, 2, v0")
    a(f"v_mov_b32 v43, {S_TAG}")
    a("v_mov_b32_dpp v42, v40 quad_perm:[1,0,3,2] row_mask:0xf bank_mask:0xf")
    a("s_mov_b32 exec_lo, 0x55555555")
    a("v_cvt_pk_bf16_f32 v42, v40, v42")
    a(f"buffer_store_dwordx2 v[42:43], v18, {WSRD}, s21 offen sc1")
    a("s_mov_b64 exec, -1")
    a.label("L_aux_ga")
    if cfg.g_late: gate_lc(cfg.g_late, cfg.g_late * NK_B // NK_A, "v3", "v50")
    sexpr("s20", [(S_LOC, "shl", 6)], W_MODF + 2*4096)
    a(f"s_add_u32 s21, s20, {3*4096}")
    a("v_bfe_u32 v16, v0, 3, 1")
    a("v_and_b32 v17, 7, v0")
    a("v_lshlrev_b32 v18, 11, v16")
    a("v_lshl_add_u32 v18, v17, 3, v18")
    a("v_and_b32 v19, 15, v0")
    a("v_lshlrev_b32 v19, 3, v19")
    a("s_mov_b64 exec, 0xffff")
    poll([f"buffer_load_dwordx2 v[40:41], v18, {WSRD}, s20 offen sc1",
          f"buffer_load_dwordx2 v[42:43], v18, {WSRD}, s21 offen sc1"], ["v41", "v43"], "v60", sleep=8)
    a("v_lshlrev_b32 v44, 16, v40")
    a("v_and_b32 v45, 0xffff0000, v40")
    a("v_lshlrev_b32 v46, 16, v42")
    a("v_and_b32 v47, 0xffff0000, v42")
    a(f"ds_write_b64 v19, v[44:45] offset:{L_GA}")
    a(f"ds_write_b64 v19, v[46:47] offset:{L_GB}")
    a("s_mov_b64 exec, -1")
    arrive(F_GA, "v3", "v10")
    r1_block("a", "v3")
    a("s_barrier")
    if cfg.bearly:
        a(f"s_cmp_lg_u32 {S_B}, 0")
        a("s_cbranch_scc1 L_aux_lateE")
    if cfg.guwo:
        a(f"s_cmp_eq_u32 {S_B}, 0")
        a("s_cbranch_scc1 L_aux_lateE")
    spin_lds(F_PA, 4, "v3", "v50", sleep=False)
    a(f"s_cmp_eq_u32 {S_CB}, 7")
    a("s_cbranch_scc1 L_aux_gu_e")
    a(f"s_mov_b32 m0, {L_G}")
    a("s_mov_b32 s99, 8")
    a.label("L_aux_gu")
    a("buffer_load_dwordx4 v64, s[44:47], s19 offen nt lds")
    a("s_add_u32 m0, m0, 0x2000")
    a("s_nop 0")
    a("buffer_load_dwordx4 v64, s[48:51], s19 offen nt lds")
    a("s_sub_u32 m0, m0, 0x1c00")
    a(f"s_add_u32 s19, s19, {16*3584}")
    a("s_sub_u32 s99, s99, 1")
    a("s_cmp_lg_u32 s99, 0")
    a("s_cbranch_scc1 L_aux_gu")
    a.label("L_aux_gu_e")
    a("s_waitcnt vmcnt(0)")
    arrive(F_LATE, "v3", "v10")
    if not cfg.dnwo:
        spin_lds(F_PX, 1, "v3", "v50", sleep=False)
        a(f"s_mov_b32 m0, {L_DN}")
        a("s_nop 0")
        for i in range(8):
            a(f"buffer_load_dwordx4 v{66 + (i&1)}, s[52:55], s18 offen nt lds")
            a("s_add_u32 m0, m0, 0x400")
            a("s_add_u32 s18, s18, 0x2000")
        a("s_waitcnt vmcnt(0)")
        arrive(F_DN, "v3", "v10")
    a.label("L_aux_lateE")
    stamp(3)
    a("s_barrier")
    a("s_barrier")
    dump_stamps(4)
    a("s_endpgm")

    a.label("L_abort")
    a("s_mov_b64 exec, 1")
    a("v_mov_b32 v1, 0")
    a(f"s_lshl_b32 s90, {S_WG}, 16")
    a("s_or_b32 s90, s90, s1") if cfg.site else None
    a("v_mov_b32 v2, s90")
    a(f"s_and_b32 s90, {S_W}, 1")
    a("s_lshl_b32 s90, s90, 2")
    a("v_mov_b32 v1, s90")
    a("v_or_b32 v2, 0xde000000, v2")
    a("s_mov_b32 s44, s40")
    a("s_and_b32 s45, s41, 0xffff")
    a("s_mov_b32 s46, 256")
    a("s_mov_b32 s47, 0x20000")
    a("buffer_store_dword v2, v1, s[44:47], 0 offen")
    a.label("L_end")
    a("s_endpgm")

    hdr = open(f"cdna_kernels/{NAME}.s.ref").read().split("; Override launch")[0]
    out = hdr
    out += f"; @launch grid=(256,1,1) block=(576,1,1) lds={L_TOTAL}\n"
    out += '.amdgcn_target "amdgcn-amd-amdhsa--gfx950"\n.text\n'
    out += f".globl {NAME}_kernel\n.p2align 8\n.type {NAME}_kernel,@function\n"
    out += a.text()
    out += f""".section .rodata,"a"
.p2align 6
.amdhsa_kernel {NAME}_kernel
  .amdhsa_next_free_vgpr 128
  .amdhsa_next_free_sgpr 102
  .amdhsa_accum_offset 128
  .amdhsa_group_segment_fixed_size 0
  .amdhsa_kernarg_size 112
  .amdhsa_user_sgpr_count 2
  .amdhsa_user_sgpr_kernarg_segment_ptr 1
  .amdhsa_system_sgpr_workgroup_id_x 1
.end_amdhsa_kernel
"""
    return out

if __name__ == "__main__":
    cfg = Cfg()
    outp = sys.argv[1]
    for arg in sys.argv[2:]:
        k, v = arg.split("=")
        assert hasattr(cfg, k), k
        setattr(cfg, k, int(v))
    open(outp, "w").write(gen(cfg))
    print("wrote", outp)
```

```python
import sys
from asmlib import Asm

NAME = "adaLN_cond__sliding_block_cached__glu_gated_bilinear__decode"

class Cfg:
    D = 32
    DA = 28
    DA1 = 0
    stamps = 0
    spin = 1 << 22
    rsl = 1
    local = 2
    touch = 1
    dq = 0
    wolate = 0
    kpre = 16
    kflag = 0
    early = 0
    dbl8 = 1
    cwarm = 0
    wqsplit = 16
    guwo = 0
    dnwo = 1
    bearly = 0
    mprio = 1
    warm = 1
    dbl = 1
    stag = 6
    rsl_l = 0
    g_piece = 16
    g_late = 100
    slow = 0
    nwait = 1
    qsl2 = 6
    wq1 = 4
    quiet = 40
    prio = 0
    qsl = 4
    kstart = 1
    d_h = 4
    d_q = 1
    d_r1 = 1
    d_s5 = 8
    d_x1 = 1
    d_gu = 1
    d_s8 = 6
    atom8 = 0
    probe = 0
    site = 0

(F_LC, F_1, F_2, F_3, F_EC, F_KC, F_MB1, F_MB2, F_LATE, F_PO, F_PA, F_PX, F_PG, F_PD,
 F_PM, F_PQ, F_QF, F_WQ, F_WOL, F_MRL, F_LM, F_GA, F_DN, F_HI) = [4*i for i in range(24)]
L_MX = 128; L_LS = 192; L_ZERO = 256
L_ACT1 = 768; L_ACT2 = 1344; L_ACT4 = 1920; L_ACT6 = 2496; L_ACT7 = 3072
L_PRB = 7424
L_GA = 7168; L_GB = 7296
L_Q = 3648
L_P = 4736
L_X = 8192; L_C = 10240
L_K = 12288; L_V = L_K + 73728; L_TOTAL = L_V + 73728; L_MR = L_V + 57344
NK_A = 288; NK_B = 160
L_MODB = L_K; L_WQ = L_V
L_WO = L_K; L_G = L_K + 16384; L_U = L_K + 24576; L_DN = L_K + 32768
L_WO_B = L_K + 40960; L_G_B = L_K + 57344; L_DN_B = L_V + 65536
APITCH = 272; PPITCH = 592

W_EPOCH = 0
W_MOD = 0x1000
W_MODF = 0x38000
W_Q = 0x40000
W_QF = 0x88000
W_ST = 0x80000
W_O = 0x90000
W_A4 = 0x110000
W_X1P = 0x150000
W_X1S = 0x158000
W_GU = 0x160000
W_DN = 0x1A0000
W_STAMP = 0x200000
W_USED = 0x300000

LOG2E = 0x3fb8aa3b
SCALE = 0x3db504f3
EPS = 0x3727c5ac
INV512 = 0x3b000000

S_WG, S_W, S_X, S_LOC, S_B, S_SPL, S_KQ, S_CB, S_TAG, S_SPIN = "s2", "s3", "s4", "s5", "s6", "s7", "s8", "s9", "s10", "s11"
S_U = "s7"
S_BT = "s86"
S_SP = "s87"
WSRD = "s[12:15]"
S_EP = "s89"
S_LM = "s88"
PX = "s[42:43]"
S_PH = "s101"
KB_B = 0

def gen(cfg):
    a = Asm()
    D = cfg.D

    def srd(dst, plo, size):
        a(f"s_mov_b32 s{dst}, s{plo}")
        a(f"s_and_b32 s{dst+1}, s{plo+1}, 0xffff")
        a(f"s_mov_b32 s{dst+2}, {size}")
        a(f"s_mov_b32 s{dst+3}, 0x20000")

    def stamp(k):
        if cfg.stamps == 1 or (cfg.stamps == 2 and k == 0): a(f"s_memrealtime s[{64+2*k}:{65+2*k}]")

    def mark(pid, vz):
        if cfg.probe == pid:
            a("s_memrealtime s[62:63]")
            a("s_waitcnt lgkmcnt(0)")
            a("v_mov_b32 v127, s62")
            a(f"ds_max_u32 {vz}, v127 offset:{L_PRB}")

    def dump_stamps(n, final=False):
        if not cfg.stamps: return
        if cfg.stamps == 2:
            if not final: return
            a("s_memrealtime s[66:67]")
            n = 2
        a("s_waitcnt lgkmcnt(0)")
        a(f"s_mul_i32 s90, {S_WG}, 9")
        a(f"s_add_u32 s90, s90, {S_W}")
        a("s_lshl_b32 s90, s90, 7")
        a(f"s_add_u32 s90, s90, {W_STAMP}")
        a("s_mov_b64 exec, 1")
        a("v_mov_b32 v1, 0")
        for k in range(n):
            a(f"v_mov_b32 v2, s{64+2*k}")
            a(f"v_mov_b32 v3, s{65+2*k}")
            a(f"buffer_store_dwordx2 v[2:3], v1, {WSRD}, s90 offen offset:{8*k}")
            a("s_nop 1")
        a("s_waitcnt vmcnt(0)")

    sites = [0]
    def timeout():
        if cfg.site:
            sites[0] += 1
            a(f"s_mov_b32 s1, {sites[0]}")
        a(f"s_sub_u32 {S_SPIN}, {S_SPIN}, 1")
        a("s_cbranch_scc1 L_abort")

    def spin_lds(off, n, vz, vt, sleep=True):
        L = a.newlabel("Lsp"); E = a.newlabel("Lspe")
        a.label(L)
        a(f"ds_read_b32 {vt}, {vz} offset:{off}")
        a("s_waitcnt lgkmcnt(0)")
        a(f"v_readfirstlane_b32 s91, {vt}")
        a(f"s_cmp_ge_i32 s91, {n}")
        a(f"s_cbranch_scc1 {E}")
        timeout()
        if sleep: a("s_sleep 1")
        a(f"s_branch {L}")
        a.label(E)

    def arrive(off, vz, vone):
        a("s_mov_b64 s[92:93], exec")
        a("s_mov_b64 exec, 1")
        a(f"ds_add_u32 {vz}, {vone} offset:{off}")
        a("s_mov_b64 exec, s[92:93]")

    def poll(loads, tags, vacc, sleep=None, sample=False, hook=None):
        if sleep is None: sleep = cfg.rsl
        L = a.newlabel("Lpl"); E = a.newlabel("Lple"); R = a.newlabel("Lplr")
        a(f"s_mov_b64 {PX}, exec")
        if sample:
            a(f"s_mov_b32 {S_PH}, 0")
            a("s_mov_b64 exec, 1")
        if hook:
            H = a.newlabel("Lplh")
            for ld in loads: a(ld)
            hook()
            a(f"s_branch {H}")
        a.label(L)
        for ld in loads: a(ld)
        if hook: a.label(H)
        a("s_waitcnt vmcnt(0)")
        a(f"v_xor_b32 {vacc}, {S_TAG}, {tags[0]}")
        for t in tags[1:]:
            a(f"v_bitop3_b32 {vacc}, {vacc}, {t}, {S_TAG} bitop3:0xf6")
        a(f"v_cmp_ne_u32 vcc, 0, {vacc}")
        if sample:
            a(f"s_cbranch_vccnz {R}")
            a(f"s_cmp_lg_u32 {S_PH}, 0")
            a(f"s_cbranch_scc1 {E}")
            a(f"s_mov_b32 {S_PH}, 1")
            a(f"s_mov_b64 exec, {PX}")
            a(f"s_branch {L}")
            a.label(R)
        else:
            a(f"s_cbranch_vccz {E}")
        a("s_mov_b64 exec, vcc")
        timeout()
        if sleep: a(f"s_sleep {sleep}")
        a(f"s_branch {L}")
        a.label(E)
        a(f"s_mov_b64 exec, {PX}")

    def poll2(mk, vacc, uid, use):
        la, ta = mk(16); lb, tb = mk(64)
        nl = len(la)
        def check(tags):
            a(f"v_xor_b32 {vacc}, {S_TAG}, {tags[0]}")
            for t in tags[1:]: a(f"v_bitop3_b32 {vacc}, {vacc}, {t}, {S_TAG} bitop3:0xf6")
            a(f"v_cmp_ne_u32 vcc, 0, {vacc}")
        for l in la: a(l)
        a(f"s_sleep {cfg.stag}")
        a.label(f"L_p2_{uid}")
        for l in lb: a(l)
        a(f"s_waitcnt vmcnt({nl})")
        check(ta)
        a(f"s_cbranch_vccz L_p2a_{uid}")
        timeout()
        for l in la: a(l)
        a(f"s_waitcnt vmcnt({nl})")
        check(tb)
        a(f"s_cbranch_vccnz L_p2_{uid}")
        use(64)
        a(f"s_branch L_p2e_{uid}")
        a.label(f"L_p2a_{uid}")
        use(16)
        a.label(f"L_p2e_{uid}")

    def after_own(flag, n, vz, vt, dly):
        spin_lds(flag, n, vz, vt, sleep=False)
        if dly: a(f"s_sleep {dly}")

    def get_mode(vz, vt):
        if cfg.local == 2:
            spin_lds(F_LM, 1, vz, vt)
            a(f"s_mov_b32 {S_LM}, s91")

    def store_loc(text):
        if cfg.local == 0: a(text + " sc1")
        elif cfg.local == 1: a(text)
        else:
            P = a.newlabel("Lst"); E = a.newlabel("Lste")
            a(f"s_cmp_eq_u32 {S_LM}, 1")
            a(f"s_cbranch_scc1 {P}")
            a(text + " sc1")
            a(f"s_branch {E}")
            a.label(P)
            a(text)
            a.label(E)

    def bf16r2(d0, d1, s0, s1, tmp):
        a(f"v_cvt_pk_bf16_f32 {tmp}, {s0}, {s1}")
        a(f"v_lshlrev_b32 {d0}, 16, {tmp}")
        a(f"v_and_b32 {d1}, 0xffff0000, {tmp}")

    def bf16r1(d, s):
        a(f"v_cvt_pk_bf16_f32 {d}, {s}, {s}")
        a(f"v_lshlrev_b32 {d}, 16, {d}")

    def allreduce(regs, op, tmps, steps):
        dpp = {"x1": "quad_perm:[1,0,3,2]", "x2": "quad_perm:[2,3,0,1]", "x4": "row_half_mirror", "x8": "row_mirror", "r8": "row_ror:8", "r4": "row_ror:4"}
        for s in steps:
            if s in dpp:
                for r in regs:
                    a(f"{op}_dpp {r}, {r}, {r} {dpp[s]} row_mask:0xf bank_mask:0xf")
            else:
                ins = "v_permlane16_swap_b32" if s == "x16" else "v_permlane32_swap_b32"
                for r, t in zip(regs, tmps): a(f"v_mov_b32 {t}, {r}")
                for r, t in zip(regs, tmps): a(f"{ins} {r}, {t}")
                for r, t in zip(regs, tmps): a(f"{op} {r}, {r}, {t}")
    FULL = ["x1", "x2", "x4", "x8", "x16", "x32"]

    def sexpr(dst, terms, const=0, tmp="s94"):
        first = True
        for (reg, kind, n) in terms:
            tgt = dst if first else tmp
            if kind == "shl":
                if n == 0: a(f"s_mov_b32 {tgt}, {reg}")
                else: a(f"s_lshl_b32 {tgt}, {reg}, {n}")
            else: a(f"s_mul_i32 {tgt}, {reg}, {n}")
            if not first: a(f"s_add_u32 {dst}, {dst}, {tmp}")
            first = False
        if const: a(f"s_add_u32 {dst}, {dst}, {const}")

    def gate_lc(valA, valB, vz, vt):
        a(f"s_mul_i32 s99, {S_B}, {valB - valA}")
        a(f"s_add_u32 s99, s99, {valA}")
        spin_lds(F_LC, "s99", vz, vt)

    def get_tag():
        a(f"v_readfirstlane_b32 {S_EP}, v3")
        a(f"s_add_u32 {S_EP}, {S_EP}, 1")
        a(f"s_mul_i32 {S_TAG}, {S_EP}, 0x9E3779B1")

    def unit_voffs(pitch_shift=None, pitch=None, d0="v24", d1="v25"):
        a("v_lshrrev_b32 v3, 3, v0")
        a("v_bfe_u32 v4, v0, 4, 1")
        a("v_lshlrev_b32 v4, 1, v4")
        a("v_and_b32 v5, 7, v0")
        a("v_xor_b32 v4, v4, v5")
        a("v_lshlrev_b32 v4, 4, v4")
        if pitch_shift is not None: a(f"v_lshlrev_b32 v6, {pitch_shift}, v3")
        else: a(f"v_mul_u32_u24 v6, {pitch}, v3")
        a(f"v_add_u32 {d0}, v6, v4")
        a(f"v_xor_b32 {d1}, 64, {d0}")

    def strip_voff(pitch, d):
        a("v_lshrrev_b32 v6, 2, v0")
        a(f"v_mul_u32_u24 {d}, {pitch}, v6")
        a("v_bfe_u32 v6, v0, 5, 1")
        a("v_lshlrev_b32 v6, 1, v6")
        a("v_and_b32 v7, 3, v0")
        a("v_xor_b32 v6, v6, v7")
        a(f"v_lshl_add_u32 {d}, v6, 4, {d}")

    a.label(f"{NAME}_kernel")
    a(f"s_cmp_ge_u32 {S_WG}, 256")
    a("s_cbranch_scc1 L_end")
    a("s_load_dwordx16 s[16:31], s[0:1], 0")
    a("s_load_dwordx8 s[32:39], s[0:1], 64")
    a("s_load_dwordx4 s[40:43], s[0:1], 96")
    stamp(0)
    if cfg.probe == 3: a("s_memrealtime s[62:63]")
    a("v_lshrrev_b32 v1, 6, v0")
    a("v_and_b32 v0, 63, v0")
    a(f"v_readfirstlane_b32 {S_W}, v1")
    a(f"s_and_b32 {S_X}, {S_WG}, 7")
    a(f"s_lshr_b32 {S_LOC}, {S_WG}, 3")
    a(f"s_cmp_lt_u32 {S_LOC}, 8")
    a(f"s_cselect_b32 {S_B}, 1, 0")
    a(f"s_cselect_b32 s90, 0, 8")
    a(f"s_sub_u32 {S_SPL}, {S_LOC}, s90")
    a(f"s_cselect_b32 s91, 4, 12") if False else None
    a(f"s_cmp_lt_u32 {S_LOC}, 8")
    a(f"s_cselect_b32 s91, 4, 12")
    a(f"s_cselect_b32 s94, 0, 4")
    a(f"s_cmp_ge_u32 {S_SPL}, s91")
    a(f"s_cselect_b32 {S_BT}, 1, 0")
    a(f"s_mul_i32 s90, {S_BT}, s91")
    a(f"s_sub_u32 {S_SP}, {S_SPL}, s90")
    a(f"s_add_u32 {S_SP}, {S_SP}, s94")
    a(f"s_lshr_b32 {S_KQ}, {S_LOC}, 3")
    a(f"s_and_b32 {S_CB}, {S_LOC}, 7")
    a(f"s_mov_b32 {S_SPIN}, {cfg.spin}")
    a(f"s_mov_b32 {S_LM}, {1 if cfg.local == 1 else 2}")
    a(f"s_cmp_lg_u32 {S_W}, 8")
    a("s_cbranch_scc1 L_worker")

    SLC = "s95"; SOFF = "s96"
    unit_voffs(pitch=6144, d0="v20", d1="v21")
    a(f"s_and_b32 s90, {S_SPL}, 3")
    a(f"s_mul_i32 {SOFF}, s90, {128*6144}")
    a(f"s_lshr_b32 s90, {S_SPL}, 2")
    a(f"s_lshl_b32 s94, {S_X}, 2")
    a("s_add_u32 s94, s94, 16")
    a(f"s_lshl_b32 s91, {S_X}, 1")
    a("s_sub_u32 s91, s91, 4")
    a(f"s_cmp_ge_u32 {S_SPL}, 16")
    a("s_cselect_b32 s94, s91, s94")
    a("s_add_u32 s90, s90, s94")
    a("s_lshl_b32 s90, s90, 7")
    a(f"s_add_u32 {SOFF}, {SOFF}, s90")
    a(f"s_mov_b32 m0, {L_MR}")
    a("s_waitcnt lgkmcnt(0)")
    srd(44, 36, 512*3072*2)
    a(f"s_cmp_lt_u32 {S_LOC}, 24")
    a("s_cbranch_scc1 L_ld_nourg")
    for i in range(16):
        a(f"buffer_load_dwordx4 v{20 + (i&1)}, s[44:47], {SOFF} offen nt lds")
        if i < 15:
            a(f"s_add_u32 {SOFF}, {SOFF}, {8*6144}")
            a("s_add_u32 m0, m0, 0x400")
    a.label("L_ld_nourg")
    if cfg.prio: a("s_setprio 3")
    a("s_barrier")
    stamp(1)
    srd(12, 42, W_USED)
    srd(52, 18, 2*8*32768*128*2)
    srd(56, 20, 2*8*32768*128*2)
    srd(60, 24, 4096*512*2)
    a("v_mov_b32 v10, 0")
    a("v_lshrrev_b32 v3, 4, v0")
    a("v_and_b32 v4, 15, v0")
    a("v_xor_b32 v5, v4, v3")
    a("v_lshlrev_b32 v5, 4, v5")
    a("v_lshl_add_u32 v26, v3, 8, v5")
    a("v_xor_b32 v27, 64, v26")
    a("v_xor_b32 v28, 0x80, v26")
    a("v_xor_b32 v29, 0xc0, v26")
    a("v_lshlrev_b32 v5, 1, v3")
    a("v_xor_b32 v5, v4, v5")
    a("v_lshlrev_b32 v5, 4, v5")
    a("v_lshl_add_u32 v30, v3, 8, v5")
    a("v_xor_b32 v31, 0x80, v30")
    a(f"s_mul_i32 s91, {S_B}, {(NK_B - NK_A) * 256}")
    a(f"s_add_u32 s91, s91, {NK_A * 256}")
    a(f"s_mul_i32 s90, {S_SP}, s91")
    a(f"s_mul_i32 s91, {S_B}, {512 * 256}")
    a("s_add_u32 s90, s90, s91")
    sexpr("s98", [(S_BT, "shl", 26), (S_X, "shl", 23), ("s90", "shl", 0)], (28672 - 512) * 256)
    unit_voffs(pitch_shift=10)

    def lc_write(val, off=F_LC):
        a(f"v_mov_b32 v11, {val}")
        a(f"ds_write_b32 v10, v11 offset:{off}")
    def seg(name, variants, srdn, step, iters, ldsbase):
        if ldsbase is not None: a(f"s_mov_b32 m0, {ldsbase}")
        a(f"s_mov_b32 s97, {iters}")
        a.label(name)
        for v in variants:
            a(f"buffer_load_dwordx4 {v}, s[{srdn}:{srdn+3}], {SOFF} offen nt lds")
            a(f"s_add_u32 {SOFF}, {SOFF}, {step}")
            a("s_add_u32 m0, m0, 0x400")
        a("s_sub_u32 s97, s97, 1")
        a("s_cmp_lg_u32 s97, 0")
        a(f"s_cbranch_scc1 {name}")
    def drain(end, ks):
        for k in ks:
            a(f"s_waitcnt vmcnt({k})")
            lc_write(end - k)
    def seg4(name, variants, srdn, iters, ldsbase, D=D, mono=False):
        if ldsbase is not None: a(f"s_mov_b32 m0, {ldsbase}")
        a(f"s_mov_b32 s97, {iters}")
        a.label(name)
        for i, v in enumerate(variants):
            a(f"buffer_load_dwordx4 {v}, s[{srdn}:{srdn+3}], {SOFF} offen offset:{1024*i} nt lds")
        a(f"s_add_u32 {SOFF}, {SOFF}, 0x1000")
        a("s_add_u32 m0, m0, 0x1000")
        a(f"s_add_u32 {SLC}, {SLC}, 4")
        a(f"v_mov_b32 v11, {SLC}")
        a(f"s_waitcnt vmcnt({D-4})")
        a(f"{'ds_max_i32' if mono else 'ds_write_b32'} v10, v11 offset:{F_LC}")
        a("s_sub_u32 s97, s97, 1")
        a("s_cmp_lg_u32 s97, 0")
        a(f"s_cbranch_scc1 {name}")
    WO_OFF = [(S_X, "shl", 19), (S_KQ, "shl", 17), (S_CB, "shl", 7)]

    a(f"s_cmp_eq_u32 {S_B}, 0")
    a("s_cbranch_scc1 L_ld_A")
    if cfg.bearly:
        srd(48, 28, 512*1792*2)
        srd(44, 30, 512*1792*2)
        strip_voff(3584, "v20")
        sexpr(SOFF, WO_OFF)
        seg("L_ld_woB", ["v24", "v25"], 60, 8192, 8, L_WO_B)
        a(f"s_cmp_eq_u32 {S_CB}, 7")
        a("s_cbranch_scc1 L_ld_guBe")
        sexpr(SOFF, [(S_KQ, "mul", 128*3584), (S_X, "mul", 448), (S_CB, "shl", 6)])
        a(f"s_mov_b32 m0, {L_G_B}")
        a("s_mov_b32 s97, 8")
        a.label("L_ld_guB")
        a(f"buffer_load_dwordx4 v20, s[48:51], {SOFF} offen nt lds")
        a("s_add_u32 m0, m0, 0x2000")
        a("s_nop 0")
        a(f"buffer_load_dwordx4 v20, s[44:47], {SOFF} offen nt lds")
        a("s_sub_u32 m0, m0, 0x1c00")
        a(f"s_add_u32 {SOFF}, {SOFF}, {16*3584}")
        a("s_sub_u32 s97, s97, 1")
        a("s_cmp_lg_u32 s97, 0")
        a("s_cbranch_scc1 L_ld_guB")
        a.label("L_ld_guBe")
        srd(48, 32, 1792*512*2)
        sexpr(SOFF, [(S_X, "mul", 224*1024), (S_KQ, "mul", 56*1024), (S_CB, "shl", 7)])
        seg("L_ld_dnB", ["v24", "v25"], 48, 8192, 4, L_DN_B)
        a("s_waitcnt vmcnt(0)")
        lc_write(1, F_WOL)
        lc_write(1, F_LATE)
        lc_write(1, F_DN)
    if cfg.kpre:
        spin_lds(F_2 if cfg.kflag else F_WQ, 2 if cfg.kflag else 4, "v10", "v12", sleep=False)
        a(f"s_mov_b32 {SLC}, {KB_B - (cfg.kpre - 4)}")
        a(f"s_mov_b32 {SOFF}, s98")
        seg4("L_ld_kB", ["v26", "v27", "v28", "v29"], 52, NK_B // 16, L_K, cfg.kpre)
        drain(KB_B + NK_B // 4, [0])
        spin_lds(F_QF, 2, "v10", "v12", sleep=False)
        stamp(2)
        a(f"s_mov_b32 {SLC}, {KB_B + NK_B // 4 - (D - 4)}")
        a(f"s_mov_b32 {SOFF}, s98")
        seg4("L_ld_vB", ["v30", "v30", "v31", "v31"], 56, NK_B // 16, L_V, mono=True)
    else:
        if cfg.kstart == 0:
            spin_lds(F_EC, 4, "v10", "v12")
            spin_lds(F_3, 2, "v10", "v12", sleep=False)
        elif cfg.kstart == 1:
            spin_lds(F_QF, 2, "v10", "v12", sleep=False)
        elif cfg.kstart == 3:
            spin_lds(F_PQ, 4, "v10", "v12", sleep=False)
        else:
            pass
        stamp(2)
        a(f"s_mov_b32 {SLC}, {KB_B - (D - 4)}")
        a(f"s_mov_b32 {SOFF}, s98")
        seg4("L_ld_kB", ["v26", "v27", "v28", "v29"], 52, NK_B // 16, L_K)
        a(f"s_mov_b32 {SOFF}, s98")
        seg4("L_ld_vB", ["v30", "v30", "v31", "v31"], 56, NK_B // 16, L_V)
    stamp(3)
    if cfg.bearly:
        drain(KB_B + NK_B // 2, [k for k in (32, 24, 16, 8) if k < D - 4] + [0])
        stamp(4)
        dump_stamps(5)
        a("s_endpgm")
    else:
        sexpr(SOFF, WO_OFF)
        seg("L_ld_woB", ["v24", "v25"], 60, 8192, 8, L_WO_B)
        if cfg.dnwo:
            srd(48, 32, 1792*512*2)
            sexpr(SOFF, [(S_X, "mul", 224*1024), (S_KQ, "mul", 56*1024), (S_CB, "shl", 7)])
            seg("L_ld_dnB", ["v24", "v25"], 48, 8192, 4, L_DN_B)
            drain(KB_B + NK_B // 2 + 24, [k for k in (56, 48, 40, 32, 24) if k < D + 20])
            stamp(4)
            a("s_waitcnt vmcnt(8)")
            lc_write(1, F_WOL)
            a("s_waitcnt vmcnt(0)")
            lc_write(1, F_DN)
            dump_stamps(5)
            a("s_endpgm")
        else:
            drain(KB_B + NK_B // 2 + 16, [k for k in (48, 40, 32, 24, 16) if k < D + 12])
            stamp(4)
    a.label("L_ld_fin")
    a("s_waitcnt vmcnt(0)")
    lc_write(1, F_WOL)
    stamp(5)
    dump_stamps(6)
    a("s_endpgm")
    a.label("L_ld_A")
    DA = cfg.DA
    a(f"s_cmp_ge_u32 {S_SPL}, 16")
    a("s_cbranch_scc1 L_ld_urg")
    if not cfg.early: spin_lds(F_1, 2, "v10", "v12", sleep=False)
    if cfg.slow:
        a(f"s_mov_b32 m0, {L_MR}")
        a("s_nop 0")
        for i in range(2 * cfg.slow):
            a(f"buffer_load_dwordx4 v{20 + (i&1)}, s[44:47], {SOFF} offen nt lds")
            a(f"s_add_u32 {SOFF}, {SOFF}, {8*6144}")
            a("s_add_u32 m0, m0, 0x400")
            if i & 1: a("s_waitcnt vmcnt(0)")
        seg("L_ld_mr", ["v20", "v21"], 44, 8*6144, 8 - cfg.slow, None)
    else:
        seg("L_ld_mr", ["v20", "v21"], 44, 8*6144, 8, L_MR)
    a("s_branch L_ld_kgo")
    a.label("L_ld_urg")
    a("s_waitcnt vmcnt(0)")
    lc_write(1, F_MRL)
    spin_lds(F_PM, 4, "v10", "v12", sleep=False)
    a.label("L_ld_kgo")
    DA1 = cfg.DA1 or DA
    a(f"s_mov_b32 {SLC}, {-(DA1 - 4)}")
    a(f"s_mov_b32 {SOFF}, s98")
    n0 = (DA1 - 4 + 3) // 4
    assert 0 < n0 < NK_A // 16
    seg4("L_ld_kA0", ["v26", "v27", "v28", "v29"], 52, n0, L_K, DA1)
    lc_write(1, F_MRL)
    seg4("L_ld_kA", ["v26", "v27", "v28", "v29"], 52, NK_A // 16 - n0, None, DA1)
    stamp(2)
    a(f"s_mov_b32 {SOFF}, s98")
    if DA > DA1:
        assert (DA - DA1) % 4 == 0
        a(f"s_mov_b32 m0, {L_V}")
        a("s_nop 0")
        for it in range((DA - DA1) // 4):
            for i, v in enumerate(["v30", "v30", "v31", "v31"]):
                a(f"buffer_load_dwordx4 {v}, s[56:59], {SOFF} offen offset:{1024*i} nt lds")
            a(f"s_add_u32 {SOFF}, {SOFF}, 0x1000")
            a("s_add_u32 m0, m0, 0x1000")
        seg4("L_ld_vA", ["v30", "v30", "v31", "v31"], 56, NK_A // 16 - 4 - (DA - DA1) // 4, None, DA)
    elif cfg.dq:
        a(f"s_mov_b32 m0, {L_V}")
        a(f"s_mov_b32 s97, {NK_A // 16 - 4}")
        a.label("L_ld_vq")
        a(f"ds_read_b32 v12, v10 offset:{F_3}")
        for i, v in enumerate(["v30", "v30", "v31", "v31"]):
            a(f"buffer_load_dwordx4 {v}, s[56:59], {SOFF} offen offset:{1024*i} nt lds")
        a(f"s_add_u32 {SOFF}, {SOFF}, 0x1000")
        a("s_add_u32 m0, m0, 0x1000")
        a(f"s_add_u32 {SLC}, {SLC}, 4")
        a(f"v_mov_b32 v11, {SLC}")
        a("s_waitcnt lgkmcnt(0)")
        a("v_readfirstlane_b32 s91, v12")
        a("s_cmp_ge_i32 s91, 2")
        a("s_cbranch_scc1 L_ld_vq1")
        a(f"s_waitcnt vmcnt({cfg.dq - 4})")
        a.label("L_ld_vq1")
        a(f"s_waitcnt vmcnt({DA - 4})")
        a(f"ds_write_b32 v10, v11 offset:{F_LC}")
        a("s_sub_u32 s97, s97, 1")
        a("s_cmp_lg_u32 s97, 0")
        a("s_cbranch_scc1 L_ld_vq")
    else:
        seg4("L_ld_vA", ["v30", "v30", "v31", "v31"], 56, NK_A // 16 - 4, L_V, DA)
    spin_lds(F_EC, 4, "v10", "v12")
    seg4("L_ld_vA2", ["v30", "v30", "v31", "v31"], 56, 4, None, DA)
    stamp(3)
    drain(NK_A // 2, [k for k in (32, 24, 16, 8) if k < DA - 4] + [0])
    stamp(4)
    spin_lds(F_PO if cfg.wolate else F_KC, 4, "v10", "v12")
    sexpr(SOFF, WO_OFF)
    seg("L_ld_woA", ["v24", "v25"], 60, 8192, 8, L_WO)
    if cfg.dnwo:
        srd(48, 32, 1792*512*2)
        sexpr(SOFF, [(S_X, "mul", 224*1024), (S_KQ, "mul", 56*1024), (S_CB, "shl", 7)])
        seg("L_ld_dnA", ["v24", "v25"], 48, 8192, 4, L_DN)
        if cfg.guwo:
            a("s_waitcnt vmcnt(8)")
            lc_write(1, F_WOL)
            srd(48, 28, 512*1792*2)
            srd(44, 30, 512*1792*2)
            strip_voff(3584, "v20")
            a(f"s_cmp_eq_u32 {S_CB}, 7")
            a("s_cbranch_scc1 L_ld_guAe")
            sexpr(SOFF, [(S_KQ, "mul", 128*3584), (S_X, "mul", 448), (S_CB, "shl", 6)])
            a(f"s_mov_b32 m0, {L_G}")
            a("s_mov_b32 s97, 8")
            a.label("L_ld_guA")
            a(f"buffer_load_dwordx4 v20, s[48:51], {SOFF} offen nt lds")
            a("s_add_u32 m0, m0, 0x2000")
            a("s_nop 0")
            a(f"buffer_load_dwordx4 v20, s[44:47], {SOFF} offen nt lds")
            a("s_sub_u32 m0, m0, 0x1c00")
            a(f"s_add_u32 {SOFF}, {SOFF}, {16*3584}")
            a("s_sub_u32 s97, s97, 1")
            a("s_cmp_lg_u32 s97, 0")
            a("s_cbranch_scc1 L_ld_guA")
            a.label("L_ld_guAe")
            a("s_waitcnt vmcnt(0)")
            lc_write(1, F_DN)
            lc_write(1, F_LATE)
        else:
            a("s_waitcnt vmcnt(8)")
            lc_write(1, F_WOL)
            a("s_waitcnt vmcnt(0)")
            lc_write(1, F_DN)
        dump_stamps(5)
        a("s_endpgm")
    else:
        a("s_branch L_ld_fin")

    a.label("L_worker")
    a(f"s_cmp_lg_u32 {S_W}, 4")
    a("s_cbranch_scc1 L_wk2")
    a("v_mov_b32 v10, 0")
    for r in range(12, 16): a(f"v_mov_b32 v{r}, 0")
    a("v_lshlrev_b32 v1, 2, v0")
    a("v_lshlrev_b32 v2, 4, v0")
    a("ds_write_b32 v1, v10")
    a(f"ds_write_b128 v2, v[12:15] offset:{L_ZERO}")
    if cfg.probe >= 10: a(f"ds_write_b32 v10, v10 offset:{L_PRB}")
    if cfg.local == 1:
        a("v_mov_b32 v11, 1")
        a(f"ds_write_b32 v10, v11 offset:{F_LM}")
    a.label("L_wk2")
    a("s_waitcnt lgkmcnt(0)")
    srd(12, 42, W_USED)
    srd(44, 16, 2048)
    srd(48, 34, 2048)
    a(f"s_sub_u32 s97, {S_W}, 5")
    a("s_and_b32 s97, s97, 1")
    a("s_lshl_b32 s90, s97, 10")
    a(f"s_and_b32 s94, {S_SPL}, 3")
    a("s_lshl_b32 s94, s94, 8")
    a("s_add_u32 s94, s94, s90")
    a("v_lshlrev_b32 v1, 4, v0")
    a("v_lshlrev_b32 v2, 2, v0")
    a(f"s_cmp_lt_u32 {S_W}, 5")
    a("s_cbranch_scc1 L_wk2b")
    a(f"s_cmp_eq_u32 {S_W}, 7")
    a("s_cbranch_scc1 L_wk2b")
    a("buffer_load_dword v9, v2, s[48:51], s94 offen")
    a("buffer_load_dwordx4 v[4:7], v1, s[44:47], s90 offen")
    a(f"s_lshr_b32 s94, {S_SPL}, 1")
    a("s_and_b32 s94, s94, 3")
    a("s_lshl_b32 s94, s94, 8")
    a("s_add_u32 s94, s94, s90")
    a("buffer_load_dword v8, v2, s[44:47], s94 offen")
    a.label("L_wk2b")
    a("v_mov_b32 v2, 0")
    a(f"buffer_load_dword v3, v2, {WSRD}, 0 offen sc1")
    a(f"s_cmp_lg_u32 {S_W}, 7")
    a("s_cbranch_scc1 L_wk3")
    if cfg.local == 2:
        srd(60, 40, 256)
        a("s_getreg_b32 s90, hwreg(HW_REG_XCC_ID)")
        a("s_and_b32 s90, s90, 7")
        a("s_mul_i32 s90, s90, 6")
        a("s_lshl_b64 s[26:27], 1, s90")
        a(f"s_lshl_b32 s91, {S_X}, 5")
        a("s_add_u32 s91, s91, 8")
        a("v_mov_b32 v18, s91")
        a("v_mov_b32 v16, s26")
        a("v_mov_b32 v17, s27")
        a("s_mov_b64 exec, 1")
        a("buffer_atomic_add_x2 v[16:17], v18, s[60:63], 0 offen sc1")
        a("s_mov_b64 exec, -1")
    if cfg.touch:
        sexpr("s90", [(S_BT, "shl", 26), (S_X, "shl", 23), (S_SP, "shl", 16)], 28672*256)
        a("s_load_dword s78, s[18:19], s90")
        a("s_load_dword s79, s[20:21], s90")
        a(f"s_lshr_b32 s91, {S_SPL}, 1")
        a("s_and_b32 s91, s91, 3")
        a("s_lshl_b32 s91, s91, 20")
        a("s_load_dword s80, s[22:23], s91")
        sexpr("s91", [(S_X, "shl", 19), (S_KQ, "shl", 17)])
        a("s_load_dword s81, s[24:25], s91")
        a(f"s_mul_i32 s91, {S_KQ}, {128*3584}")
        a("s_load_dword s82, s[28:29], s91")
        a("s_load_dword s83, s[30:31], s91")
        a(f"s_mul_i32 s91, {S_X}, {224*1024}")
        a("s_load_dword s84, s[32:33], s91")
        a("s_load_dword s85, s[38:39], 0")
    a.label("L_wk3")
    a("s_barrier")
    if cfg.cwarm:
        a(f"s_cmp_lg_u32 {S_W}, 4")
        a("s_cbranch_scc1 L_cw_e")
        a("s_getpc_b64 s[0:1]")
        a.label("L_cw_base")
        a("s_mov_b32 s90, 0")
        a.label("L_cw_loop")
        for k in range(8):
            a(f"s_load_dword s77, s[0:1], s90 offset:{128*k}")
        a("s_add_u32 s90, s90, 1024")
        a("s_cmp_lt_u32 s90, (L_end - L_cw_base - 1024)")
        a("s_cbranch_scc1 L_cw_loop")
        a.label("L_cw_e")
    a(f"s_cmp_ge_u32 {S_W}, 4")
    a("s_cbranch_scc1 L_gwave")

    a.label("L_mwave")
    if cfg.mprio: a("s_setprio 2")
    srd(56, 22, 512*4096*2)
    a("v_lshrrev_b32 v1, 4, v0")
    a("v_and_b32 v2, 15, v0")
    a("v_mov_b32 v4, 1")
    a("v_lshlrev_b32 v22, 1, v1")
    a("v_xor_b32 v22, v2, v22")
    a("v_lshlrev_b32 v22, 4, v22")
    a("v_lshl_add_u32 v56, v1, 13, v22")
    a("v_xor_b32 v57, 0x80, v56")
    a(f"s_lshr_b32 s90, {S_SPL}, 1")
    a(f"s_and_b32 s91, {S_SPL}, 1")
    sexpr("s96", [("s90", "shl", 20), (S_X, "shl", 10), ("s91", "shl", 9), (S_W, "shl", 18)])
    a("s_add_u32 s97, s96, 256")
    def wq_loads(lo, hi):
        for k in range(lo, hi):
            bb, i = k >> 3, k & 7
            sr = "s96" if bb == 0 else "s97"
            if k == lo or i == 0:
                a(f"s_lshl_b32 s90, {S_W}, 13")
                a(f"s_add_u32 m0, s90, {L_WQ + 32768*bb + 1024*i}")
                a("s_nop 0")
            a(f"buffer_load_dwordx4 {'v56' if (i & 2) == 0 else 'v57'}, s[56:59], {sr} offen nt lds")
            a(f"s_add_u32 {sr}, {sr}, {4*8192}")
            a("s_add_u32 m0, m0, 0x400")
    a(f"s_cmp_eq_u32 {S_B}, 0")
    a("s_cbranch_scc1 L_m_nowq")
    wq_loads(0, cfg.wqsplit)
    a.label("L_m_nowq")
    a("v_bfe_u32 v6, v2, 2, 1")
    a(f"v_mul_u32_u24 v6, {APITCH}, v6")
    a("v_lshl_add_u32 v6, v1, 4, v6")
    a("v_bfe_u32 v16, v0, 2, 2")
    a("v_and_b32 v17, 3, v0")
    a("v_lshl_add_u32 v18, v1, 3, v16")
    a("v_lshrrev_b32 v19, 1, v17")
    a("v_and_b32 v20, 1, v17")
    a("v_and_b32 v21, 1, v1")
    a("v_lshrrev_b32 v22, 1, v16")
    a("v_lshl_or_b32 v22, v21, 1, v22")
    a("v_lshlrev_b32 v22, 1, v22")
    a(f"s_lshl_b32 s90, {S_W}, 1")
    a("v_add_u32 v23, s90, v19")
    a("v_xor_b32 v23, v23, v22")
    a("v_lshlrev_b32 v7, 7, v18")
    a("v_lshl_add_u32 v7, v23, 4, v7")
    a("v_lshl_add_u32 v7, v20, 3, v7")
    a(f"s_and_b32 s90, {S_W}, 1")
    a("s_lshl_b32 s90, s90, 1")
    a("v_add_u32 v23, s90, v19")
    a("v_lshlrev_b32 v22, 1, v21")
    a("v_xor_b32 v23, v23, v22")
    a("v_lshlrev_b32 v12, 6, v18")
    a("v_lshl_add_u32 v12, v23, 4, v12")
    a("v_lshl_add_u32 v12, v20, 3, v12")
    a("v_lshl_or_b32 v22, v21, 2, v16")
    a("v_lshlrev_b32 v22, 1, v22")
    a(f"s_lshl_b32 s90, {S_W}, 2")
    a("v_add_u32 v23, s90, v19")
    a("v_xor_b32 v24, v23, v22")
    a("v_lshlrev_b32 v25, 8, v18")
    a("v_lshl_add_u32 v25, v20, 3, v25")
    a("v_lshl_add_u32 v13, v24, 4, v25")
    a("v_add_u32 v23, 2, v23")
    a("v_xor_b32 v24, v23, v22")
    a("v_lshl_add_u32 v14, v24, 4, v25")
    a("v_bfe_u32 v8, v0, 4, 1")
    a("v_lshlrev_b32 v9, 3, v2")
    O_MOD, O_Q, O_O, O_A4, O_GU, O_DN, O_ST, T_K, T_V = "s16", "s17", "s18", "s19", "s20", "s21", "s24", "s25", "s26"
    a(f"s_mul_i32 {T_K}, {S_B}, {KB_B + NK_B // 4 - NK_A // 4}")
    a(f"s_add_u32 {T_K}, {T_K}, {NK_A // 4}")
    a(f"s_mul_i32 {T_V}, {S_B}, {KB_B + NK_B // 2 - NK_A // 2}")
    a(f"s_add_u32 {T_V}, {T_V}, {NK_A // 2}")
    sexpr(O_O, [(S_X, "shl", 16), (S_BT, "shl", 13), (S_SP, "shl", 9), (S_W, "shl", 7)], W_O)
    sexpr(O_A4, [(S_CB, "shl", 14), (S_W, "shl", 12), (S_X, "shl", 8), (S_KQ, "shl", 6)], W_A4)
    a(f"s_add_u32 {O_DN}, {O_A4}, {W_DN - W_A4}")
    a(f"s_lshr_b32 s90, {S_W}, 1")
    a(f"s_and_b32 s91, {S_W}, 1")
    sexpr(O_GU, [(S_X, "shl", 15), ("s90", "shl", 14), (S_KQ, "shl", 11), (S_CB, "shl", 8), ("s91", "shl", 7)], W_GU)
    sexpr(O_ST, [(S_X, "shl", 11), (S_BT, "shl", 10), (S_SP, "shl", 4)], W_ST)
    a(f"s_and_b32 s90, {S_SPL}, 1")
    a("s_lshl_b32 s90, s90, 1")
    a(f"s_lshr_b32 s91, {S_W}, 1")
    a("s_add_u32 s90, s90, s91")
    a(f"s_lshr_b32 s91, {S_SPL}, 1")
    a(f"s_and_b32 s97, {S_W}, 1")
    sexpr(O_Q, [(S_X, "shl", 15), ("s90", "shl", 12), ("s91", "shl", 10), ("s97", "shl", 9)], W_Q)
    a(f"s_cmp_lt_u32 {S_SPL}, 16")
    a("s_cbranch_scc1 L_m_offA")
    a(f"s_lshr_b32 s90, {S_X}, 2")
    a(f"s_and_b32 s91, {S_X}, 3")
    a(f"s_bfe_u32 s97, {S_SPL}, 0x10002")
    a(f"s_and_b32 s98, {S_SPL}, 3")
    sexpr(O_MOD, [("s90", "shl", 15), ("s91", "shl", 12), ("s98", "shl", 10), ("s97", "shl", 9), (S_W, "shl", 7)], W_MOD)
    a("s_branch L_m_offE")
    a.label("L_m_offA")
    a(f"s_lshr_b32 s90, {S_X}, 1")
    a(f"s_and_b32 s91, {S_X}, 1")
    a("s_lshl_b32 s91, s91, 2")
    a(f"s_lshr_b32 s97, {S_SPL}, 2")
    a("s_add_u32 s91, s91, s97")
    a("s_lshr_b32 s97, s91, 1")
    a("s_and_b32 s91, s91, 1")
    a(f"s_and_b32 s98, {S_SPL}, 3")
    sexpr(O_MOD, [("s90", "shl", 15), ("s97", "shl", 12), ("s98", "shl", 10), ("s91", "shl", 9), (S_W, "shl", 7)], W_MOD + 2*32768)
    a.label("L_m_offE")
    a("s_waitcnt vmcnt(0)")
    get_tag()
    a("v_mov_b32 v3, 0")
    stamp(1)

    def loadB(vaddr, nk, kstride, hoff, base=16):
        for t in range(nk):
            a(f"ds_read_b64_tr_b16 v[{base+4*t}:{base+4*t+1}], {vaddr} offset:{t*kstride}")
            a(f"ds_read_b64_tr_b16 v[{base+4*t+2}:{base+4*t+3}], {vaddr} offset:{t*kstride+hoff}")

    def gemv(act_off, nk, bbase=16, second=None):
        for t in range(nk):
            a(f"ds_read_b128 v[{32+4*t}:{35+4*t}], v6 offset:{act_off+64*t}")
        for t in range(nk):
            a(f"s_waitcnt lgkmcnt({nk-1-t})")
            c = "0" if t == 0 else "v[48:51]"
            a(f"v_mfma_f32_16x16x32_bf16 v[48:51], v[{32+4*t}:{35+4*t}], v[{bbase+4*t}:{bbase+4*t+3}], {c}")
            if second is not None:
                c = "0" if t == 0 else "v[56:59]"
                a(f"v_mfma_f32_16x16x32_bf16 v[56:59], v[{32+4*t}:{35+4*t}], v[{second+4*t}:{second+4*t+3}], {c}")

    def publish(shift, soff, local=False, second=False):
        a(f"v_lshl_add_u32 v54, v8, {shift}, v9")
        a(f"v_mov_b32 v53, {S_TAG}")
        if second: a(f"v_mov_b32 v61, {S_TAG}")
        a("v_mov_b32 v52, v48")
        if second: a("v_mov_b32 v60, v56")
        a("s_mov_b32 exec_hi, 0")
        t1 = f"buffer_store_dwordx2 v[52:53], v54, {WSRD}, {soff} offen"
        t2 = f"buffer_store_dwordx2 v[60:61], v54, {WSRD}, {soff} offen offset:128"
        if local:
            store_loc(t1)
            if second: store_loc(t2)
        else:
            a(t1 + " sc1")
            if second: a(t2 + " sc1")
        a("s_mov_b32 exec_hi, -1")

    def publish_pair(soff):
        a("v_lshlrev_b32 v54, 11, v8")
        a("v_lshl_add_u32 v54, v2, 2, v54")
        a(f"v_mov_b32 v53, {S_TAG}")
        a("v_mov_b32_dpp v52, v48 quad_perm:[1,0,3,2] row_mask:0xf bank_mask:0xf")
        a("s_mov_b32 exec_lo, 0x55555555")
        a("s_mov_b32 exec_hi, 0")
        a("v_cvt_pk_bf16_f32 v52, v48, v52")
        a(f"buffer_store_dwordx2 v[52:53], v54, {WSRD}, {soff} offen sc1")
        a("s_mov_b64 exec, -1")

    a(f"s_cmp_lg_u32 {S_B}, 0")
    a("s_cbranch_scc1 L_m_B")
    spin_lds(F_1, 2, "v3", "v5")
    spin_lds(F_MRL, 1, "v3", "v5")
    a(f"v_add_u32 v10, {L_MR}, v7")
    loadB("v10", 4, 4096, 512)
    gemv(L_ACT1, 4)
    arrive(F_EC, "v3", "v4")
    publish(14, O_MOD)
    arrive(F_PM, "v3", "v4")
    stamp(2)
    a("s_branch L_m_s3")
    a.label("L_m_B")
    if cfg.wqsplit < 16:
        spin_lds(F_HI, 2, "v3", "v5", sleep=False)
        wq_loads(cfg.wqsplit, 16)
    a("s_waitcnt vmcnt(0)")
    arrive(F_WQ, "v3", "v4")
    a("v_bfe_u32 v16, v0, 2, 2")
    a("v_and_b32 v17, 3, v0")
    a("v_lshl_add_u32 v18, v1, 3, v16")
    a("v_lshrrev_b32 v19, 1, v17")
    a("v_and_b32 v20, 1, v17")
    a("v_and_b32 v21, 1, v1")
    a("v_lshl_or_b32 v22, v21, 2, v16")
    a("v_lshlrev_b32 v22, 1, v22")
    a("v_lshlrev_b32 v25, 8, v18")
    a("v_lshl_add_u32 v25, v20, 3, v25")
    a(f"s_lshr_b32 s90, {S_W}, 1")
    a("s_lshl_b32 s90, s90, 15")
    a(f"s_add_u32 s90, s90, {L_WQ}")
    a("v_add_u32 v25, s90, v25")
    a(f"s_and_b32 s91, {S_W}, 1")
    a("s_lshl_b32 s91, s91, 3")
    a("v_add_u32 v19, s91, v19")
    for e in range(4):
        a(f"v_add_u32 v23, {2*e}, v19")
        a("v_xor_b32 v23, v23, v22")
        a(f"v_lshl_add_u32 v{28+e}, v23, 4, v25")
    spin_lds(F_WQ, 4, "v3", "v5", sleep=False)
    for e in range(4):
        loadB(f"v{28+e}", 4, 8192, 1024, base=64 + 16*e)
    get_mode("v3", "v5")
    a("s_waitcnt lgkmcnt(0)")
    arrive(F_EC, "v3", "v4")
    a("v_lshl_add_u32 v54, v8, 14, v9")
    a(f"v_mov_b32 v53, {S_TAG}")
    spin_lds(F_2, 2, "v3", "v5", sleep=False)
    for t in range(4):
        a(f"ds_read_b128 v[{32+4*t}:{35+4*t}], v6 offset:{L_ACT2+64*t}")
    for t in range(4):
        a(f"s_waitcnt lgkmcnt({3-t})")
        for e in range(4):
            c = "0" if t == 0 else f"v[{16+4*e}:{19+4*e}]"
            a(f"v_mfma_f32_16x16x32_bf16 v[{16+4*e}:{19+4*e}], v[{32+4*t}:{35+4*t}], v[{64+16*e+4*t}:{67+16*e+4*t}], {c}")
    a("s_mov_b32 exec_hi, 0")
    for e in range(4):
        a(f"v_mov_b32 v{56+2*e}, v{16+4*e}")
        a(f"v_mov_b32 v{57+2*e}, v53")
    if cfg.local == 2:
        P = a.newlabel("Lst"); E = a.newlabel("Lste")
        a(f"s_cmp_eq_u32 {S_LM}, 1")
        a(f"s_cbranch_scc1 {P}")
        for e in range(4): a(f"buffer_store_dwordx2 v[{56+2*e}:{57+2*e}], v54, {WSRD}, {O_Q} offen offset:{128*e} sc1")
        a(f"s_branch {E}")
        a.label(P)
        for e in range(4): a(f"buffer_store_dwordx2 v[{56+2*e}:{57+2*e}], v54, {WSRD}, {O_Q} offen offset:{128*e}")
        a.label(E)
    else:
        for e in range(4): a(f"buffer_store_dwordx2 v[{56+2*e}:{57+2*e}], v54, {WSRD}, {O_Q} offen offset:{128*e}" + (" sc1" if cfg.local == 0 else ""))
    a("s_mov_b32 exec_hi, -1")
    arrive(F_PQ, "v3", "v4")
    stamp(3)
    mark(10, "v3")
    a.label("L_m_s3")
    get_mode("v3", "v5")
    T_ST, T_N = "s27", "s28"
    a(f"s_lshl_b32 s90, {S_B}, 1")
    a(f"s_sub_u32 s90, 4, s90")
    a(f"s_mul_i32 {T_ST}, {S_W}, s90")
    a(f"s_min_u32 s91, {S_W}, 2")
    a(f"s_add_u32 {T_ST}, {T_ST}, s91")
    a(f"s_cmp_lt_u32 {S_W}, 2")
    a(f"s_addc_u32 {T_N}, s90, 0")
    a("s_mov_b64 s[30:31], -1")
    a(f"s_cmp_eq_u32 {T_N}, 3")
    a("s_cselect_b32 s31, 0xffff, s31")
    a(f"s_cmp_eq_u32 {T_N}, 2")
    a("s_cselect_b32 s31, 0, s31")
    a("s_mov_b32 s33, 0")
    a(f"s_cmp_eq_u32 {T_N}, 5")
    a("s_cselect_b32 s32, 0xffff, 0")
    a("v_xor_b32 v10, v1, v2")
    a("v_lshlrev_b32 v10, 4, v10")
    a("v_lshl_add_u32 v10, v2, 8, v10")
    a(f"s_lshl_b32 s90, {T_ST}, 12")
    a(f"s_add_u32 s90, s90, {L_K}")
    a("v_add_u32 v112, s90, v10")
    a("v_xor_b32 v113, 64, v112")
    a("v_xor_b32 v114, 0x80, v112")
    a("v_xor_b32 v115, 0xc0, v112")
    a("v_and_b32 v10, 3, v2")
    a(f"v_mul_u32_u24 v10, {APITCH}, v10")
    a("v_lshl_add_u32 v116, v1, 4, v10")
    a("v_cmp_eq_u32 s[34:35], 1, v1")
    a("v_cmp_eq_u32 s[36:37], 2, v1")
    a("v_cmp_eq_u32 s[38:39], 3, v1")
    for r in range(80, 100): a(f"v_mov_b32 v{r}, 0")
    NEG = "s29"
    a(f"s_mov_b32 {NEG}, 0xff800000")
    spin_lds(F_3, 2, "v3", "v5", sleep=False)
    spin_lds(F_LC, T_K, "v3", "v5", sleep=False)
    stamp(4)
    mark(11, "v3")
    def k_reads(tt, base):
        for t in range(4):
            a(f"ds_read_b128 v[{base+4*t}:{base+4*t+3}], v{112+t} offset:{4096*tt}")
    def qk_mfma(tt, base):
        acc = f"v[{80+4*tt}:{83+4*tt}]"
        for t in range(4):
            c = "0" if t == 0 else acc
            a(f"v_mfma_f32_16x16x32_bf16 {acc}, v[{16+4*t}:{19+4*t}], v[{base+4*t}:{base+4*t+3}], {c}")
    for t in range(4):
        a(f"ds_read_b128 v[{16+4*t}:{19+4*t}], v116 offset:{L_Q+64*t}")
    k_reads(0, 32)
    k_reads(1, 48)
    a(f"s_cmp_eq_u32 {T_N}, 2")
    a("s_cbranch_scc1 L_qk_n2")
    k_reads(2, 64)
    a("s_waitcnt lgkmcnt(8)")
    qk_mfma(0, 32)
    a(f"s_cmp_eq_u32 {T_N}, 3")
    a("s_cbranch_scc1 L_qk_n3")
    k_reads(3, 32)
    a("s_waitcnt lgkmcnt(8)")
    qk_mfma(1, 48)
    a(f"s_cmp_eq_u32 {T_N}, 4")
    a("s_cbranch_scc1 L_qk_n4")
    k_reads(4, 48)
    a("s_waitcnt lgkmcnt(8)")
    qk_mfma(2, 64)
    a("s_waitcnt lgkmcnt(4)")
    qk_mfma(3, 32)
    a("s_waitcnt lgkmcnt(0)")
    qk_mfma(4, 48)
    a("s_branch L_qk_done")
    a.label("L_qk_n4")
    a("s_waitcnt lgkmcnt(4)")
    qk_mfma(2, 64)
    a("s_waitcnt lgkmcnt(0)")
    qk_mfma(3, 32)
    a("s_branch L_qk_done")
    a.label("L_qk_n3")
    a("s_waitcnt lgkmcnt(4)")
    qk_mfma(1, 48)
    a("s_waitcnt lgkmcnt(0)")
    qk_mfma(2, 64)
    a("s_branch L_qk_done")
    a.label("L_qk_n2")
    a("s_waitcnt lgkmcnt(4)")
    qk_mfma(0, 32)
    a("s_waitcnt lgkmcnt(0)")
    qk_mfma(1, 48)
    a.label("L_qk_done")
    arrive(F_KC, "v3", "v4")
    a("s_nop 7")
    for r in range(4): a(f"v_cndmask_b32 v{48+r}, v{80+r}, v{84+r}, s[34:35]")
    for r in range(4): a(f"v_cndmask_b32 v{48+r}, v{48+r}, v{88+r}, s[36:37]")
    for r in range(4): a(f"v_cndmask_b32 v{48+r}, v{48+r}, v{92+r}, s[38:39]")
    a(f"s_mov_b32 s94, {SCALE:#x}")
    for (d, sr) in ((20, 96), (16, 48)):
        bf16r2(f"v{d}", f"v{d+1}", f"v{sr}", f"v{sr+1}", "v32")
        bf16r2(f"v{d+2}", f"v{d+3}", f"v{sr+2}", f"v{sr+3}", "v33")
    for r in range(8): a(f"v_mul_f32 v{16+r}, s94, v{16+r}")
    for d in (16, 20):
        bf16r2(f"v{d}", f"v{d+1}", f"v{d}", f"v{d+1}", "v32")
        bf16r2(f"v{d+2}", f"v{d+3}", f"v{d+2}", f"v{d+3}", "v33")
    a(f"v_mov_b32 v34, {NEG}")
    for r in range(4): a(f"v_cndmask_b32 v{16+r}, v34, v{16+r}, s[30:31]")
    for r in range(4): a(f"v_cndmask_b32 v{20+r}, v34, v{20+r}, s[32:33]")
    for r in range(4): a(f"v_max_f32 v{24+r}, v{16+r}, v{20+r}")
    allreduce(["v24", "v25", "v26", "v27"], "v_max_f32", [], ["x1", "x2", "x4", "x8"])
    for r in range(4): a(f"v_max_f32_dpp v{24+r}, v{24+r}, v{24+r} row_bcast:15 row_mask:0xa bank_mask:0xf")
    for r in range(4): a(f"v_max_f32_dpp v{24+r}, v{24+r}, v{24+r} row_bcast:31 row_mask:0xc bank_mask:0xf")
    a(f"s_lshl_b32 s90, {S_W}, 4")
    a("v_mov_b32 v10, s90")
    a("s_mov_b32 exec_lo, 0")
    a("s_mov_b32 exec_hi, 0x80000000")
    a(f"ds_write_b128 v10, v[24:27] offset:{L_MX}")
    a(f"ds_add_u32 v3, v4 offset:{F_MB1}")
    a("s_mov_b64 exec, -1")
    a(f"s_lshl_b32 s90, {T_ST}, 5")
    a(f"s_add_u32 s90, s90, {L_P}")
    a("v_lshl_add_u32 v10, v0, 1, s90")
    spin_lds(F_MB1, 4, "v3", "v5", sleep=False)
    for w in range(4):
        a(f"ds_read_b128 v[{32+4*w}:{35+4*w}], v3 offset:{L_MX+16*w}")
    a(f"s_mov_b32 s94, {LOG2E:#x}")
    a("s_waitcnt lgkmcnt(0)")
    for r in range(4):
        a(f"v_max3_f32 v{24+r}, v{32+r}, v{36+r}, v{40+r}")
    for r in range(4):
        a(f"v_max_f32 v{24+r}, v{24+r}, v{44+r}")
    for r in range(8): a(f"v_sub_f32 v{16+r}, v{16+r}, v{24+(r&3)}")
    for r in range(8): a(f"v_mul_f32 v{16+r}, s94, v{16+r}")
    for r in range(8): a(f"v_exp_f32 v{16+r}, v{16+r}")
    a("v_cvt_pk_bf16_f32 v28, v16, v17")
    a("v_cvt_pk_bf16_f32 v29, v18, v19")
    a("v_cvt_pk_bf16_f32 v30, v20, v21")
    a("v_cvt_pk_bf16_f32 v31, v22, v23")
    a("s_mov_b64 exec, s[30:31]")
    a("ds_write_b16 v10, v28")
    a(f"ds_write_b16_d16_hi v10, v28 offset:{PPITCH}")
    a(f"ds_write_b16 v10, v29 offset:{2*PPITCH}")
    a(f"ds_write_b16_d16_hi v10, v29 offset:{3*PPITCH}")
    a(f"s_cmp_lg_u32 {T_N}, 5")
    a("s_cbranch_scc1 L_p_w1")
    a("s_mov_b64 exec, s[32:33]")
    a("ds_write_b16 v10, v30 offset:128")
    a(f"ds_write_b16_d16_hi v10, v30 offset:{PPITCH+128}")
    a(f"ds_write_b16 v10, v31 offset:{2*PPITCH+128}")
    a(f"ds_write_b16_d16_hi v10, v31 offset:{3*PPITCH+128}")
    a.label("L_p_w1")
    a("s_mov_b64 exec, 1")
    a(f"ds_add_u32 v3, v4 offset:{F_MB2}")
    a("s_mov_b64 exec, -1")
    a.label("L_m_pv")
    stamp(5)
    a("v_lshrrev_b32 v10, 2, v2")
    a(f"v_mul_u32_u24 v10, {PPITCH}, v10")
    a("v_lshl_add_u32 v10, v1, 4, v10")
    a(f"v_add_u32 v60, {L_P}, v10")
    a(f"v_add_u32 v61, {L_V}, v13")
    a(f"v_add_u32 v62, {L_V}, v14")
    a("v_lshl_add_u32 v63, v1, 14, v9")
    a(f"v_mov_b32 v65, {S_TAG}")
    for r in range(8): a(f"v_mov_b32 v{48+r}, 0")
    spin_lds(F_MB2, 4, "v3", "v5", sleep=False)
    a(f"s_add_u32 s95, {T_K}, 8")
    a("s_mov_b32 s96, -1000")
    def pv_ensure(tagl):
        G = f"L_pv_go{tagl}"; S = f"L_pv_sp{tagl}"
        a("s_cmp_ge_i32 s96, s95")
        a(f"s_cbranch_scc1 {G}")
        a.label(S)
        a(f"ds_read_b32 v5, v3 offset:{F_LC}")
        a("s_waitcnt lgkmcnt(0)")
        a("v_readfirstlane_b32 s96, v5")
        a("s_cmp_ge_i32 s96, s95")
        a(f"s_cbranch_scc1 {G}")
        timeout()
        a(f"s_branch {S}")
        a.label(G)
    def pv_reads(b):
        a(f"ds_read_b128 v[{b}:{b+3}], v60")
        a(f"ds_read_b64_tr_b16 v[{b+4}:{b+5}], v61")
        a(f"ds_read_b64_tr_b16 v[{b+6}:{b+7}], v61 offset:1024")
        a(f"ds_read_b64_tr_b16 v[{b+8}:{b+9}], v62")
        a(f"ds_read_b64_tr_b16 v[{b+10}:{b+11}], v62 offset:1024")
        a("v_add_u32 v60, 64, v60")
        a("v_add_u32 v61, 0x2000, v61")
        a("v_add_u32 v62, 0x2000, v62")
        a("s_add_u32 s95, s95, 8")
    def pv_mfma(b):
        a(f"v_mfma_f32_16x16x32_bf16 v[48:51], v[{b}:{b+3}], v[{b+4}:{b+7}], v[48:51]")
        a(f"v_mfma_f32_16x16x32_bf16 v[52:55], v[{b}:{b+3}], v[{b+8}:{b+11}], v[52:55]")
    pv_ensure("0")
    pv_reads(16)
    a.label("L_pv_loop")
    pv_ensure("1")
    pv_reads(28)
    a("s_waitcnt lgkmcnt(5)")
    pv_mfma(16)
    pv_ensure("2")
    pv_reads(16)
    a("s_waitcnt lgkmcnt(5)")
    pv_mfma(28)
    a(f"s_cmp_le_i32 s95, {T_V}")
    a("s_cbranch_scc1 L_pv_loop")
    a("s_waitcnt lgkmcnt(0)")
    pv_mfma(16)
    stamp(6)
    a("s_nop 4")
    a("v_cvt_pk_bf16_f32 v64, v48, v52")
    store_loc(f"buffer_store_dwordx2 v[64:65], v63, {WSRD}, {O_O} offen")
    arrive(F_PO, "v3", "v4")
    stamp(7)
    mark(12, "v3")
    spin_lds(F_WOL, 1, "v3", "v5", sleep=False)
    a(f"s_mul_i32 s90, {S_B}, {L_WO_B - L_WO}")
    a(f"s_add_u32 s90, s90, {L_WO}")
    a("v_add_u32 v10, s90, v7")
    loadB("v10", 4, 4096, 512)
    a("s_waitcnt lgkmcnt(0)")
    a("s_barrier")
    gemv(L_ACT4, 4)
    publish_pair(O_A4)
    arrive(F_PA, "v3", "v4")
    stamp(8)
    mark(13, "v3")
    spin_lds(F_LATE, 1, "v3", "v5")
    a(f"s_lshr_b32 s90, {S_W}, 1")
    a("s_lshl_b32 s90, s90, 13")
    a(f"s_mul_i32 s91, {S_B}, {(L_G_B - L_G) if cfg.bearly else 0}")
    a("s_add_u32 s90, s90, s91")
    a(f"s_add_u32 s90, s90, {L_G}")
    a("v_add_u32 v11, s90, v12")
    loadB("v11", 4, 2048, 256)
    a(f"s_mul_i32 s90, {S_B}, {(L_DN_B - L_DN) if (cfg.bearly or cfg.dnwo) else 0}")
    a(f"s_add_u32 s90, s90, {L_DN}")
    a("v_add_u32 v15, s90, v7")
    a("s_waitcnt lgkmcnt(0)")
    a("s_barrier")
    a(f"s_cmp_eq_u32 {S_CB}, 7")
    a("s_cbranch_scc1 L_m_s7")
    gemv(L_ACT6, 4)
    publish(13, O_GU, local=True)
    a.label("L_m_s7")
    arrive(F_PG, "v3", "v4")
    stamp(9)
    spin_lds(F_DN, 1, "v3", "v5", sleep=False)
    loadB("v15", 2, 4096, 512, base=64)
    a("s_waitcnt lgkmcnt(0)")
    a("s_barrier")
    gemv(L_ACT7, 2, bbase=64)
    publish_pair(O_DN)
    arrive(F_PD, "v3", "v4")
    stamp(10)
    mark(15, "v3")
    dump_stamps(11)
    a("s_endpgm")

    def r1_block(uid, vz):
        a(f"s_sub_u32 s90, {S_W}, 4")
        a("s_lshr_b32 s91, s90, 1")
        a("s_and_b32 s94, s90, 1")
        a("s_lshl_b32 s99, s94, 8")
        a(f"s_lshl_b32 s100, {S_X}, 16")
        a("s_add_u32 s99, s99, s100")
        a(f"s_lshl_b32 s100, {S_KQ}, 14")
        a("s_add_u32 s99, s99, s100")
        a("s_lshl_b32 s100, s91, 13")
        a("s_add_u32 s99, s99, s100")
        a(f"s_add_u32 s99, s99, {W_O}")
        a(f"s_lshl_b32 s100, {S_X}, 11")
        a("s_lshl_b32 s90, s91, 10")
        a("s_add_u32 s100, s100, s90")
        a(f"s_lshl_b32 s90, {S_KQ}, 8")
        a("s_add_u32 s100, s100, s90")
        a(f"s_add_u32 s100, s100, {W_ST}")
        a("v_lshrrev_b32 v48, 5, v0")
        a("v_and_b32 v49, 31, v0")
        a("v_lshlrev_b32 v50, 12, v48")
        a("v_lshl_add_u32 v50, v49, 3, v50")
        a("v_and_b32 v51, 7, v0")
        a("v_lshl_add_u32 v51, v48, 3, v51")
        a("v_lshlrev_b32 v51, 4, v51")
        a(f"s_mul_i32 s91, s91, {APITCH}")
        a("s_lshl_b32 s94, s94, 7")
        a("s_add_u32 s91, s91, s94")
        a("v_bfe_u32 v52, v0, 4, 1")
        a("v_lshlrev_b32 v52, 6, v52")
        a("v_and_b32 v53, 15, v0")
        a("v_lshl_add_u32 v52, v53, 1, v52")
        a("v_lshl_add_u32 v52, v48, 5, v52")
        a("v_add_u32 v52, s91, v52")
        loads = [f"buffer_load_dwordx4 v[32:35], v51, {WSRD}, s100 offen sc1"]; tags = ["v33", "v35"]
        for i in range(8):
            loads.append(f"buffer_load_dwordx2 v[{16+2*i}:{17+2*i}], v50, {WSRD}, s99 offen offset:{512*i} sc1")
            tags.append(f"v{17+2*i}")
        if cfg.warm:
            for l in loads: a(l)
        after_own(F_PO, 4, vz, "v54", cfg.d_r1)
        stamp(7 if uid != "q" else 4)
        poll(loads, tags, "v54", sleep=cfg.rsl_l)
        if uid == "q": stamp(10)
        a("v_mov_b32 v55, v32")
        allreduce(["v55"], "v_max_f32", ["v56"], ["x1", "x2", "x4", "x32"])
        a(f"s_mov_b32 s94, {LOG2E:#x}")
        a("v_sub_f32 v56, v32, v55")
        for i in range(4): a(f"v_lshlrev_b32 v{36+2*i}, 16, v{16+2*i}"); a(f"v_and_b32 v{37+2*i}, 0xffff0000, v{16+2*i}")
        a("v_mul_f32 v56, s94, v56")
        a("v_exp_f32 v56, v56")
        for i in range(4, 8): a(f"v_lshlrev_b32 v{36+2*i}, 16, v{16+2*i}"); a(f"v_and_b32 v{37+2*i}, 0xffff0000, v{16+2*i}")
        a("v_mul_f32 v57, v56, v34")
        allreduce(["v57"], "v_add_f32", ["v58"], ["x1", "x2", "x4", "x32"])
        a("v_rcp_f32 v57, v57")
        a("v_mov_b32 v58, 0")
        a("v_mov_b32 v59, 0")
        a("v_mul_f32 v56, v56, v57")
        for i in range(8):
            a(f"v_fmac_f32_dpp v58, v56, v{36+2*i} row_newbcast:{i} row_mask:0xf bank_mask:0xf")
            a(f"v_fmac_f32_dpp v59, v56, v{37+2*i} row_newbcast:{i} row_mask:0xf bank_mask:0xf")
        a("v_permlane32_swap_b32 v58, v59")
        a("v_add_f32 v58, v58, v59")
        a("v_cvt_pk_bf16_f32 v58, v58, v58")
        a(f"ds_write_b16 v52, v58 offset:{L_ACT4}")
        a("s_waitcnt lgkmcnt(0)")

    a.label("L_gwave")
    a(f"s_cmp_eq_u32 {S_W}, 4")
    a("s_cbranch_scc1 L_slice")
    a(f"s_cmp_eq_u32 {S_W}, 7")
    a("s_cbranch_scc1 L_aux")

    SB = "s97"
    a("s_mov_b64 s[36:37], s[42:43]")
    a("v_lshlrev_b32 v2, 2, v0")
    a("v_mov_b32 v10, 1")
    a(f"s_mul_i32 s98, {SB}, {APITCH}")
    a("v_add_u32 v11, s98, v2")
    a("v_mov_b32 v19, 0")
    a("s_waitcnt vmcnt(0)")
    stamp(1)
    a("v_lshlrev_b32 v12, 16, v9")
    a("v_and_b32 v13, 0xffff0000, v9")
    a(f"s_mov_b32 s94, {LOG2E:#x}")
    for r in (12, 13): a(f"v_mul_f32 v{r+2}, s94, v{r}")
    for r in (12, 13): a(f"v_exp_f32 v{r+2}, -v{r+2}")
    for r in (12, 13): a(f"v_add_f32 v{r+2}, 1.0, v{r+2}")
    for r in (12, 13): a(f"v_rcp_f32 v{r+2}, v{r+2}")
    for r in (12, 13): a(f"v_mul_f32 v{r}, v{r}, v{r+2}")
    a("v_cvt_pk_bf16_f32 v12, v12, v13")
    a(f"ds_write_b32 v11, v12 offset:{L_ACT1}")
    arrive(F_1, "v19", "v10")
    get_tag()
    a("v_mov_b32 v3, 0")

    def ln_finish(mean, var, x0, x1, tmp):
        bf16r2(mean, var, mean, var, tmp)
        a(f"s_mov_b32 s94, {EPS:#x}")
        a(f"v_add_f32 {var}, s94, {var}")
        bf16r1(var, var)
        a(f"v_sqrt_f32 {var}, {var}")
        a(f"v_sub_f32 {x0}, {x0}, {mean}")
        a(f"v_sub_f32 {x1}, {x1}, {mean}")
        bf16r1(var, var)
        a(f"v_rcp_f32 {var}, {var}")
        bf16r2(x0, x1, x0, x1, tmp)
        a(f"v_mul_f32 {x0}, {x0}, {var}")
        a(f"v_mul_f32 {x1}, {x1}, {var}")
        bf16r2(x0, x1, x0, x1, tmp)

    def quarter_gather(chunkA, chunkB, qreg, pre=None, sample=False, hook=None):
        for (ch, sreg) in ((chunkA, "s90"), (chunkB, "s99")):
            sexpr(sreg, [(SB, "shl", 14), (qreg, "shl", 12)], W_MOD + ch*32768)
        loads = []; tags = []
        for i in range(4):
            loads.append(f"buffer_load_dwordx4 v[{16+4*i}:{19+4*i}], v1, {WSRD}, s90 offen offset:{1024*i} sc1")
            loads.append(f"buffer_load_dwordx4 v[{32+4*i}:{35+4*i}], v1, {WSRD}, s99 offen offset:{1024*i} sc1")
            tags += [f"v{17+4*i}", f"v{19+4*i}", f"v{33+4*i}", f"v{35+4*i}"]
        if pre: pre()
        poll(loads, tags, "v50", sample=sample, hook=hook)
        for (base, d0, d1) in ((16, "v14", "v15"), (32, "v48", "v49")):
            a(f"v_add_f32 {d0}, v{base}, v{base+4}")
            a(f"v_add_f32 {d1}, v{base+2}, v{base+6}")
            a(f"v_add_f32 v50, v{base+8}, v{base+12}")
            a(f"v_add_f32 v51, v{base+10}, v{base+14}")
            a(f"v_add_f32 {d0}, {d0}, v50")
            a(f"v_add_f32 {d1}, {d1}, v51")
            bf16r2(d0, d1, d0, d1, "v50")

    def modulate(x0, x1, sc0, sc1, sh0, sh1, dst, tmp):
        a(f"v_mul_f32 {x0}, {x0}, {sc0}")
        a(f"v_mul_f32 {x1}, {x1}, {sc1}")
        bf16r2(x0, x1, x0, x1, tmp)
        a(f"v_add_f32 {x0}, {x0}, {sh0}")
        a(f"v_add_f32 {x1}, {x1}, {sh1}")
        a(f"v_cvt_pk_bf16_f32 {dst}, {x0}, {x1}")

    a(f"s_cmp_eq_u32 {S_B}, 0")
    a("s_cbranch_scc1 L_q_qg")
    for i in range(4):
        a(f"v_lshlrev_b32 v{16+2*i}, 16, v{4+i}")
        a(f"v_and_b32 v{17+2*i}, 0xffff0000, v{4+i}")
    a("v_add_f32 v24, v16, v17")
    a("v_add_f32 v25, v18, v19")
    a("v_add_f32 v26, v20, v21")
    a("v_add_f32 v27, v22, v23")
    a("v_add_f32 v24, v24, v25")
    a("v_add_f32 v26, v26, v27")
    a("v_add_f32 v24, v24, v26")
    allreduce(["v24"], "v_add_f32", ["v28"], FULL)
    a(f"s_mov_b32 s94, {INV512:#x}")
    a("v_mul_f32 v24, s94, v24")
    for i in range(8): a(f"v_sub_f32 v{16+i}, v{16+i}, v24")
    a("v_mul_f32 v25, v16, v16")
    for i in range(1, 8): a(f"v_fmac_f32 v25, v{16+i}, v{16+i}")
    allreduce(["v25"], "v_add_f32", ["v28"], FULL)
    a("v_mul_f32 v25, s94, v25")
    a("v_lshlrev_b32 v12, 16, v8")
    a("v_and_b32 v13, 0xffff0000, v8")
    ln_finish("v24", "v25", "v12", "v13", "v28")
    if cfg.warm:
        a(f"s_lshr_b32 s90, {S_SPL}, 1")
        a(f"s_and_b32 s91, {S_SPL}, 1")
        sexpr("s99", [(S_X, "shl", 15), (SB, "shl", 14), ("s90", "shl", 12), ("s91", "shl", 9)], W_Q)
        a("s_mov_b32 exec_hi, 0")
        for i in range(4):
            a(f"buffer_load_dwordx4 v[{16+4*i}:{19+4*i}], v1, {WSRD}, s99 offen offset:{1024*i} sc1")
        a("s_mov_b32 exec_hi, -1")
    a(f"s_lshr_b32 s100, {S_SPL}, 1")
    quarter_gather(0, 1, "s100", pre=lambda: a(f"s_sleep {cfg.d_h}"), hook=(lambda: arrive(F_HI, "v3", "v10")) if cfg.wqsplit < 16 else None)
    a("v_add_f32 v48, 1.0, v48")
    a("v_add_f32 v49, 1.0, v49")
    bf16r2("v48", "v49", "v48", "v49", "v50")
    modulate("v12", "v13", "v48", "v49", "v14", "v15", "v16", "v50")
    a(f"ds_write_b32 v11, v16 offset:{L_ACT2}")
    arrive(F_2, "v3", "v10")
    stamp(2)
    a(f"s_lshr_b32 s90, {S_SPL}, 1")
    a(f"s_and_b32 s91, {S_SPL}, 1")
    sexpr("s99", [(S_X, "shl", 15), (SB, "shl", 14), ("s90", "shl", 12), ("s91", "shl", 9)], W_Q)
    sexpr("s100", [(S_X, "shl", 12), (SB, "shl", 11), (S_SPL, "shl", 8)], W_QF)
    a("v_lshlrev_b32 v54, 3, v0")
    a("s_mov_b32 exec_hi, 0")
    loads = []; tags = []
    for i in range(4):
        loads.append(f"buffer_load_dwordx4 v[{16+4*i}:{19+4*i}], v1, {WSRD}, s99 offen offset:{1024*i} sc1")
        tags += [f"v{17+4*i}", f"v{19+4*i}"]
    get_mode("v3", "v50")
    after_own(F_PQ, 4, "v3", "v50", cfg.d_q)
    poll(loads, tags, "v50", sleep=0)
    a("v_add_f32 v48, v16, v20")
    a("v_add_f32 v49, v18, v22")
    a("v_add_f32 v50, v24, v28")
    a("v_add_f32 v51, v26, v30")
    a("v_add_f32 v48, v48, v50")
    a("v_add_f32 v49, v49, v51")
    a(f"v_mov_b32 v53, {S_TAG}")
    a("v_cvt_pk_bf16_f32 v52, v48, v49")
    store_loc(f"buffer_store_dwordx2 v[52:53], v54, {WSRD}, s100 offen")
    a("s_mov_b64 exec, -1")
    arrive(F_QF, "v3", "v10")
    a.label("L_q_qg")
    sexpr("s90", [(S_X, "shl", 12), (S_BT, "shl", 11), (SB, "shl", 10)], W_QF)
    a("v_lshrrev_b32 v54, 5, v0")
    a(f"v_mul_u32_u24 v54, {APITCH}, v54")
    a("v_and_b32 v55, 31, v0")
    a("v_lshl_add_u32 v54, v55, 3, v54")
    a(f"s_mul_i32 s100, {SB}, {2*APITCH}")
    a("v_add_u32 v54, s100, v54")
    ldA = f"buffer_load_dwordx4 v[16:19], v1, {WSRD}, s90 offen sc1"
    ldB = f"buffer_load_dwordx4 v[20:23], v1, {WSRD}, s90 offen sc1"
    a(f"s_cmp_eq_u32 {S_B}, 0")
    a("s_cbranch_scc1 L_q_qA")
    after_own(F_QF, 2, "v3", "v50", cfg.d_q)
    a("s_branch L_q_qP")
    a.label("L_q_qA")
    if cfg.quiet: spin_lds(F_LC, cfg.quiet, "v3", "v50")
    a.label("L_q_qP")
    a(ldA)
    a(f"s_sleep {cfg.qsl2}")
    a.label("L_q_loop")
    a(ldB)
    a("s_waitcnt vmcnt(1)")
    a(f"v_xor_b32 v50, {S_TAG}, v17")
    a(f"v_bitop3_b32 v50, v50, v19, {S_TAG} bitop3:0xf6")
    a("v_cmp_ne_u32 vcc, 0, v50")
    a("s_cbranch_vccz L_q_gotA")
    timeout()
    a(ldA)
    a("s_waitcnt vmcnt(1)")
    a(f"v_xor_b32 v50, {S_TAG}, v21")
    a(f"v_bitop3_b32 v50, v50, v23, {S_TAG} bitop3:0xf6")
    a("v_cmp_ne_u32 vcc, 0, v50")
    a("s_cbranch_vccnz L_q_loop")
    a("v_mov_b32 v24, v20")
    a("v_mov_b32 v25, v22")
    a("s_branch L_q_got")
    a.label("L_q_gotA")
    a("v_mov_b32 v24, v16")
    a("v_mov_b32 v25, v18")
    a.label("L_q_got")
    a(f"ds_write_b64 v54, v[24:25] offset:{L_Q}")
    arrive(F_3, "v3", "v10")
    stamp(3)
    a("s_waitcnt vmcnt(0)")
    if cfg.g_late: gate_lc(cfg.g_late, cfg.g_late * NK_B // NK_A, "v3", "v50")
    sexpr("s90", [(SB, "shl", 11), (S_KQ, "shl", 9)], W_MODF + 3*4096)
    a("s_add_u32 s99, s90, 4096")
    a("v_lshlrev_b32 v54, 3, v0")
    if cfg.warm:
        a(f"s_mul_i32 s94, {S_KQ}, 448")
        sexpr("s24", [(S_X, "shl", 15), (SB, "shl", 13), ("s94", "shl", 0)], W_GU, tmp="s25")
        a("s_add_u32 s25, s24, 4096")
        a("s_add_u32 s26, s24, 16384")
        a("s_add_u32 s27, s24, 20480")
        for wh in range(2):
            for k6 in range(4):
                sr = [["s24", "s25"], ["s26", "s27"]][wh][k6 >> 1]
                rb = 20 + 8*wh + 2*k6
                a(f"buffer_load_dwordx2 v[{rb}:{rb+1}], v54, {WSRD}, {sr} offen offset:{2048*(k6&1)} sc1")
        sexpr("s24", [(S_X, "shl", 10), (SB, "shl", 9)], W_X1S)
        sexpr("s25", [(S_X, "shl", 12), (SB, "shl", 11), (S_KQ, "shl", 9)], W_X1P)
        a(f"buffer_load_dwordx2 v[36:37], v54, {WSRD}, s24 offen sc1")
        a(f"buffer_load_dwordx2 v[38:39], v54, {WSRD}, s25 offen sc1")
    poll([f"buffer_load_dwordx2 v[16:17], v54, {WSRD}, s90 offen sc1",
          f"buffer_load_dwordx2 v[18:19], v54, {WSRD}, s99 offen sc1"], ["v17", "v19"], "v50", sleep=8)
    a("v_lshlrev_b32 v66, 16, v16")
    a("v_and_b32 v67, 0xffff0000, v16")
    a("v_lshlrev_b32 v48, 16, v18")
    a("v_and_b32 v49, 0xffff0000, v18")
    a("v_add_f32 v48, 1.0, v48")
    a("v_add_f32 v49, 1.0, v49")
    bf16r2("v64", "v65", "v48", "v49", "v50")
    r1_block("q", "v3")
    stamp(5)
    a("s_barrier")
    sexpr("s99", [(S_X, "shl", 10), (SB, "shl", 9)], W_X1S)
    sexpr("s90", [(S_X, "shl", 12), (SB, "shl", 11), (S_KQ, "shl", 9)], W_X1P)
    a("v_lshlrev_b32 v16, 3, v0")
    a("v_and_b32 v17, 31, v0")
    a("v_lshlrev_b32 v17, 4, v17")
    after_own(F_PX, 1, "v3", "v50", cfg.d_x1)
    stamp(8)
    poll([f"buffer_load_dwordx4 v[24:27], v17, {WSRD}, s99 offen sc1",
          f"buffer_load_dwordx2 v[20:21], v16, {WSRD}, s90 offen sc1"], ["v21", "v25", "v27"], "v50", sleep=cfg.rsl_l)
    stamp(9)
    allreduce(["v24", "v26"], "v_add_f32", ["v28", "v29"], ["x1", "x2", "x4", "x8", "x16"])
    a(f"s_mov_b32 s94, {INV512:#x}")
    a("v_mul_f32 v24, s94, v24")
    a("v_mul_f32 v26, s94, v26")
    a("v_lshlrev_b32 v12, 16, v20")
    a("v_fma_f32 v26, -v24, v24, v26")
    a("v_and_b32 v13, 0xffff0000, v20")
    a("v_max_f32 v26, 0, v26")
    ln_finish("v24", "v26", "v12", "v13", "v30")
    modulate("v12", "v13", "v64", "v65", "v66", "v67", "v16", "v30")
    a(f"ds_write_b32 v11, v16 offset:{L_ACT6}")
    a(f"s_mul_i32 s94, {S_KQ}, 448")
    sexpr("s90", [(S_X, "shl", 15), (SB, "shl", 13), ("s94", "shl", 0)], W_GU, tmp="s99")
    a("s_add_u32 s94, s90, 4096")
    a("s_add_u32 s99, s90, 16384")
    a("s_add_u32 s100, s90, 20480")
    a("s_waitcnt lgkmcnt(0)")
    stamp(6)
    a("s_barrier")
    a("v_lshlrev_b32 v16, 3, v0")
    a("v_mov_b32 v40, 0")
    a("v_lshlrev_b32 v17, 1, v0")
    a("v_add_u32 v17, s98, v17")
    a("s_mov_b32 exec_lo, -1")
    a("s_mov_b32 exec_hi, 0x00ffffff")
    loads = []; tags = []
    for wh in range(2):
        for k6 in range(4):
            sr = [["s90", "s94"], ["s99", "s100"]][wh][k6 >> 1]
            rb = 20 + 8*wh + 2*k6
            loads.append(f"buffer_load_dwordx2 v[{rb}:{rb+1}], v16, {WSRD}, {sr} offen offset:{2048*(k6&1)} sc1")
            tags.append(f"v{rb+1}")
    after_own(F_PG, 4, "v3", "v50", cfg.d_gu)
    poll(loads, tags, "v50", sleep=cfg.rsl_l)
    a("v_add_f32 v36, v20, v22")
    a("v_add_f32 v37, v24, v26")
    a("v_add_f32 v38, v28, v30")
    a("v_add_f32 v39, v32, v34")
    a("v_add_f32 v36, v36, v37")
    a("v_add_f32 v38, v38, v39")
    bf16r2("v36", "v38", "v36", "v38", "v50")
    a("v_mul_f32 v36, v36, v38")
    a("v_cvt_pk_bf16_f32 v40, v36, v36")
    a("s_mov_b64 exec, -1")
    a(f"ds_write_b16 v17, v40 offset:{L_ACT7}")
    a("s_waitcnt lgkmcnt(0)")
    stamp(7)
    a("s_barrier")
    dump_stamps(11)
    a("s_endpgm")

    a.label("L_slice")
    srd(48, 38, 2048)
    a("v_lshlrev_b32 v7, 4, v0")
    a("v_and_b32 v1, 3, v0")
    a("v_bfe_u32 v2, v0, 4, 1")
    a("v_bfe_u32 v4, v0, 3, 1")
    a("v_lshrrev_b32 v5, 5, v0")
    a("v_lshlrev_b32 v6, 2, v1")
    a("v_lshl_add_u32 v6, v2, 1, v6")
    a("v_add_u32 v6, v6, v4")
    a("v_lshlrev_b32 v8, 10, v5")
    a("v_lshl_add_u32 v8, v6, 1, v8")
    a(f"s_lshl_b32 s90, {S_LOC}, 5")
    a("buffer_load_ushort v9, v8, s[44:47], s90 offen")
    a("v_lshlrev_b32 v10, 4, v5")
    a("v_add_u32 v10, v10, v6")
    a("v_lshlrev_b32 v10, 2, v10")
    a("v_lshlrev_b32 v11, 1, v1")
    a("v_add_u32 v11, v11, v2")
    a("v_lshlrev_b32 v12, 11, v5")
    a("v_lshl_add_u32 v98, v11, 3, v12")
    a("v_lshlrev_b32 v99, 9, v5")
    a("v_lshlrev_b32 v12, 10, v5")
    a("v_lshl_add_u32 v97, v11, 2, v12")
    sexpr("s22", [(S_X, "shl", 12), (S_LOC, "shl", 6)], W_X1P)
    sexpr("s23", [(S_X, "shl", 10), (S_LOC, "shl", 4)], W_X1S)
    a(f"s_lshl_b32 s24, {S_LOC}, 5")
    a(f"s_lshl_b32 s17, {S_LOC}, 12")
    a("v_cmp_eq_u32 s[26:27], 1, v4")
    a("v_mov_b32 v100, 0x3f80")
    a("v_mov_b32 v101, 0x3f800000")
    a("s_waitcnt vmcnt(0)")
    get_tag()
    a("v_mov_b32 v3, 0")
    a("v_lshlrev_b32 v102, 16, v9")
    get_mode("v3", "v20")
    stamp(1)

    def part_loads(base, rb0=16, setup=True):
        if setup: a(f"s_add_u32 s20, s17, {base}")
        loads = []; tags = []
        for i in range(4):
            rb = rb0 + 4*i
            loads.append(f"buffer_load_dwordx4 v[{rb}:{rb+3}], v7, {WSRD}, s20 offen offset:{1024*i} sc1")
            tags += [f"v{rb+1}", f"v{rb+3}"]
        return loads, tags
    def part_loads_atomic(base):
        a(f"s_add_u32 s20, s17, {base}")
        loads = []; tags = []
        for r in range(16, 32): loads.append(f"v_mov_b32 v{r}, 0")
        for i in range(4):
            rb = 16 + 4*i
            for hh in range(2):
                loads.append(f"buffer_atomic_add_x2 v[{rb+2*hh}:{rb+2*hh+1}], v7, {WSRD}, s20 offen offset:{1024*i + 8*hh} sc0 sc1")
            tags += [f"v{rb+1}", f"v{rb+3}"]
        return loads, tags
    def part_dot(rb0):
        for b in range(2):
            for (k, (off, sel)) in enumerate(((0, "v100"), (0, "v101"), (2, "v100"), (2, "v101"))):
                a(f"v_dot2_f32_bf16 v{32+4*b+k}, v{rb0+8*b+off}, {sel}, 0")
        for b in range(2):
            for (k, (off, sel)) in enumerate(((0, "v100"), (0, "v101"), (2, "v100"), (2, "v101"))):
                a(f"v_dot2_f32_bf16 v{32+4*b+k}, v{rb0+4+8*b+off}, {sel}, v{32+4*b+k}")
    def part_sum(dot=True):
        if dot: part_dot(16)
        for c in range(4): a(f"v_permlane32_swap_b32 v{32+c}, v{36+c}")
        for c in range(4): a(f"v_add_f32 v{32+c}, v{32+c}, v{36+c}")
        a("v_permlane16_swap_b32 v32, v34")
        a("v_permlane16_swap_b32 v33, v35")
        a("v_add_f32 v32, v32, v34")
        a("v_add_f32 v33, v33, v35")
        a("v_cndmask_b32 v36, v32, v33, s[26:27]")
        a("v_cndmask_b32 v37, v33, v32, s[26:27]")
        a("v_add_f32_dpp v36, v37, v36 row_ror:8 row_mask:0xf bank_mask:0xf")
        a("v_add_f32_dpp v40, v36, v36 row_shl:4 row_mask:0xf bank_mask:0x5")
        a("v_add_f32_dpp v40, v36, v36 row_shr:4 row_mask:0xf bank_mask:0xa")
    def resid(gate):
        bf16r1("v40", "v40")
        a(f"v_mul_f32 v40, v40, {gate}")
        bf16r1("v40", "v40")
        a("v_add_f32 v102, v102, v40")
        bf16r1("v102", "v102")
    def make_pair(dst):
        a("v_mov_b32_dpp v41, v102 row_ror:8 row_mask:0xf bank_mask:0xf")
        a(f"v_cvt_pk_bf16_f32 {dst}, v102, v41")
    PUBM = "0x000f000f"

    l1, t1 = part_loads(W_A4)
    spin_lds(F_MB2, 4, "v3", "v15")
    a("v_lshrrev_b32 v16, 4, v0")
    a("v_and_b32 v17, 15, v0")
    a(f"v_mul_u32_u24 v18, {PPITCH}, v16")
    a("v_lshl_add_u32 v18, v17, 2, v18")
    a("v_lshlrev_b32 v19, 2, v16")
    a("v_mov_b32 v20, 0")
    a("v_mov_b32 v21, 0x3f803f80")
    for w in range(4): a(f"ds_read_b32 v{24+w}, v19 offset:{L_MX+16*w}")
    for i in range(NK_B // 32): a(f"ds_read_b32 v{32+i}, v18 offset:{L_P+64*i}")
    a(f"s_cmp_lg_u32 {S_B}, 0")
    a("s_cbranch_scc1 L_sl_stB")
    for i in range(NK_B // 32, NK_A // 32): a(f"ds_read_b32 v{32+i}, v18 offset:{L_P+64*i}")
    a("s_waitcnt lgkmcnt(0)")
    for i in range(NK_B // 32, NK_A // 32): a(f"v_dot2_f32_bf16 v20, v{32+i}, v21, v20")
    a.label("L_sl_stB")
    a("s_waitcnt lgkmcnt(0)")
    for i in range(NK_B // 32): a(f"v_dot2_f32_bf16 v20, v{32+i}, v21, v20")
    allreduce(["v20"], "v_add_f32", [], ["x1", "x2", "x4", "x8"])
    a("v_max3_f32 v24, v24, v25, v26")
    a("v_max_f32 v24, v24, v27")
    a(f"v_mov_b32 v25, {S_TAG}")
    a("v_mov_b32 v26, v20")
    a(f"v_mov_b32 v27, {S_TAG}")
    a("v_lshlrev_b32 v22, 8, v16")
    sexpr("s25", [(S_X, "shl", 11), (S_BT, "shl", 10), (S_SP, "shl", 4)], W_ST)
    a("s_mov_b32 exec_lo, 0x00010001")
    a("s_mov_b32 exec_hi, 0x00010001")
    store_loc(f"buffer_store_dwordx4 v[24:27], v22, {WSRD}, s25 offen")
    a("s_mov_b64 exec, -1")
    spin_lds(F_GA, 1, "v3", "v15")
    a(f"ds_read_b32 v103, v10 offset:{L_GA}")
    a(f"ds_read_b32 v104, v10 offset:{L_GB}")
    a("s_waitcnt lgkmcnt(0)")
    r1_block("s", "v3")
    a(f"v_mov_b32 v43, {S_TAG}")
    a(f"v_mov_b32 v45, {S_TAG}")
    a(f"v_mov_b32 v47, {S_TAG}")
    a("s_barrier")
    after_own(F_PA, 4, "v3", "v15", cfg.d_s5)
    stamp(2)
    if cfg.dbl:
        poll2(lambda rb: part_loads(0, rb, setup=False), "v15", "s5", part_dot)
        stamp(3)
        part_sum(dot=False)
    else:
        poll(l1, t1, "v15")
        stamp(3)
        part_sum()
    resid("v103")
    make_pair("v42")
    a("v_mul_f32 v46, v102, v102")
    a("v_mov_b32 v44, v102")
    a(f"s_mov_b32 exec_lo, {PUBM}")
    a(f"s_mov_b32 exec_hi, {PUBM}")
    store_loc(f"buffer_store_dwordx2 v[42:43], v98, {WSRD}, s22 offen")
    a("s_mov_b64 exec, -1")
    allreduce(["v44", "v46"], "v_add_f32", ["v48", "v49"], ["x1", "x2", "r8", "x16"])
    a("s_mov_b32 exec_lo, 1")
    a("s_mov_b32 exec_hi, 1")
    store_loc(f"buffer_store_dwordx4 v[44:47], v99, {WSRD}, s23 offen")
    a("s_mov_b64 exec, -1")
    a("v_mov_b32 v15, 1")
    arrive(F_PX, "v3", "v15")
    stamp(4)
    mark(14, "v3")
    a(f"s_and_b32 s90, {S_LOC}, 7")
    a(f"s_cmp_lg_u32 s90, {S_X}")
    a("s_cbranch_scc1 L_slice_nf")
    a("s_barrier")
    a("s_barrier")
    l1, t1 = part_loads_atomic(W_DN) if cfg.atom8 else part_loads(W_DN)
    after_own(F_PD, 4, "v3", "v15", cfg.d_s8)
    if cfg.dbl8 and not cfg.atom8:
        a("s_waitcnt vmcnt(0)")
        poll2(lambda rb: part_loads(0, rb, setup=False), "v15", "s8", part_dot)
        part_sum(dot=False)
    else:
        poll(l1, t1, "v15")
        part_sum()
    resid("v104")
    make_pair("v42")
    a(f"s_mov_b32 exec_lo, {PUBM}")
    a(f"s_mov_b32 exec_hi, {PUBM}")
    a("buffer_store_dword v42, v97, s[48:51], s24 offen")
    a(f"s_cmp_lg_u32 {S_WG}, 0")
    a("s_cbranch_scc1 L_slice_end")
    a("s_mov_b64 exec, 1")
    a(f"v_mov_b32 v24, {S_EP}")
    a("v_mov_b32 v21, 0")
    a(f"buffer_store_dword v24, v21, {WSRD}, 0 offen sc1")
    a.label("L_slice_end")
    if cfg.probe == 1:
        a("s_sleep 94")
        a("s_sleep 94")
    if cfg.probe >= 10:
        a(f"ds_read_b32 v20, v3 offset:{L_PRB}")
        a("s_waitcnt lgkmcnt(0)")
        a("v_readfirstlane_b32 s22, v20")
        a("s_mov_b32 s24, 100000")
        a.label("L_probe")
        a("s_memrealtime s[20:21]")
        a("s_waitcnt lgkmcnt(0)")
        a("s_sub_u32 s24, s24, 1")
        a("s_cbranch_scc1 L_probe_e")
        a("s_sub_u32 s23, s20, s22")
        a("s_cmp_lt_u32 s23, 2000")
        a("s_cbranch_scc1 L_probe")
        a.label("L_probe_e")
    if cfg.probe == 3:
        a("s_add_u32 s22, s62, 2500")
        a.label("L_probe")
        a("s_memrealtime s[20:21]")
        a("s_waitcnt lgkmcnt(0)")
        a("s_sub_u32 s23, s20, s22")
        a("s_cmp_lt_i32 s23, 0")
        a("s_cbranch_scc1 L_probe")
    if cfg.probe == 2:
        a("s_memrealtime s[20:21]")
        a("s_waitcnt lgkmcnt(0)")
        a("s_add_u32 s22, s20, 500")
        a.label("L_probe")
        a("s_memrealtime s[20:21]")
        a("s_waitcnt lgkmcnt(0)")
        a("s_sub_u32 s23, s20, s22")
        a("s_cmp_lt_i32 s23, 0")
        a("s_cbranch_scc1 L_probe")
    a("s_mov_b64 exec, -1")
    stamp(5)
    dump_stamps(6, final=True)
    a("s_endpgm")
    a.label("L_slice_nf")
    a("s_barrier")
    a("s_barrier")
    dump_stamps(5, final=True)
    a("s_endpgm")

    a.label("L_aux")
    srd(44, 28, 512*1792*2)
    srd(48, 30, 512*1792*2)
    srd(52, 32, 1792*512*2)
    a("v_mov_b32 v10, 1")
    sexpr("s18", [(S_X, "mul", 224*1024), (S_KQ, "mul", 56*1024), (S_CB, "shl", 7)])
    sexpr("s19", [(S_KQ, "mul", 128*3584), (S_X, "mul", 448), (S_CB, "shl", 6)])
    a("s_waitcnt vmcnt(0)")
    get_tag()
    strip_voff(3584, "v64")
    unit_voffs(pitch_shift=10, d0="v66", d1="v67")
    a("v_mov_b32 v3, 0")
    stamp(1)

    if cfg.g_piece:
        Lq = a.newlabel("Lgx")
        a(f"s_cmp_lg_u32 {S_B}, 0")
        a(f"s_cbranch_scc1 {Lq}")
        spin_lds(F_LC, cfg.g_piece, "v3", "v50")
        a.label(Lq)
    if cfg.local == 2:
        L = a.newlabel("Lxc"); E = a.newlabel("Lxce")
        srd(60, 40, 256)
        a(f"s_lshl_b32 s91, {S_X}, 5")
        a("s_add_u32 s91, s91, 8")
        a("v_mov_b32 v18, s91")
        a("s_getreg_b32 s90, hwreg(HW_REG_XCC_ID)")
        a("s_and_b32 s90, s90, 7")
        a("s_mul_i32 s90, s90, 6")
        a("s_lshl_b64 s[26:27], 1, s90")
        a("s_mov_b64 exec, 1")
        a.label(L)
        a("buffer_load_dwordx2 v[20:21], v18, s[60:63], 0 offen sc1")
        a("s_waitcnt vmcnt(0)")
        a("v_readfirstlane_b32 s20, v20")
        a("v_readfirstlane_b32 s21, v21")
        a("s_mov_b64 s[22:23], s[20:21]")
        a("s_mov_b32 s90, 0")
        for k in range(8):
            a("s_and_b32 s91, s22, 63")
            a("s_add_u32 s90, s90, s91")
            if k < 7: a("s_lshr_b64 s[22:23], s[22:23], 6")
        a("s_cmp_ge_u32 s90, 32")
        a(f"s_cbranch_scc1 {E}")
        timeout()
        a("s_sleep 2")
        a(f"s_branch {L}")
        a.label(E)
        a("s_lshl_b64 s[22:23], s[26:27], 5")
        a("s_cmp_eq_u64 s[20:21], s[22:23]")
        a("s_cselect_b32 s90, 1, 2")
        a("v_mov_b32 v16, s90")
        a(f"ds_write_b32 v3, v16 offset:{F_LM}")
        a("s_mov_b64 exec, -1")
    stamp(2)
    a(f"s_cmp_lg_u32 {S_B}, 0")
    a("s_cbranch_scc1 L_aux_ga")
    a(f"s_cmp_ge_u32 {S_SPL}, 16")
    a("s_cbranch_scc1 L_aux_ga")
    a(f"s_lshr_b32 s90, {S_X}, 1")
    a(f"s_and_b32 s91, {S_X}, 1")
    a(f"s_lshr_b32 s22, {S_SPL}, 2")
    a(f"s_and_b32 s23, {S_SPL}, 3")
    sexpr("s20", [("s90", "shl", 15), ("s91", "shl", 14), ("s22", "shl", 12), ("s23", "shl", 8)], W_MOD + 2*32768)
    sexpr("s21", [("s90", "shl", 12), ("s91", "shl", 11), (S_SPL, "shl", 7)], W_MODF + 2*4096)
    a("v_lshlrev_b32 v18, 3, v0")
    a("s_mov_b32 exec_hi, 0")
    loads = []; tags = []
    for i in range(4):
        loads.append(f"buffer_load_dwordx2 v[{40+2*i}:{41+2*i}], v18, {WSRD}, s20 offen offset:{1024*i} sc1")
        tags.append(f"v{41+2*i}")
    if cfg.g_piece: spin_lds(F_LC, cfg.g_piece, "v3", "v50")
    poll(loads, tags, "v60", sleep=6, sample=(not cfg.g_piece))
    a("v_add_f32 v40, v40, v42")
    a("v_add_f32 v44, v44, v46")
    a("v_add_f32 v40, v40, v44")
    a("v_lshlrev_b32 v18, 2, v0")
    a(f"v_mov_b32 v43, {S_TAG}")
    a("v_mov_b32_dpp v42, v40 quad_perm:[1,0,3,2] row_mask:0xf bank_mask:0xf")
    a("s_mov_b32 exec_lo, 0x55555555")
    a("v_cvt_pk_bf16_f32 v42, v40, v42")
    a(f"buffer_store_dwordx2 v[42:43], v18, {WSRD}, s21 offen sc1")
    a("s_mov_b64 exec, -1")
    a.label("L_aux_ga")
    if cfg.g_late: gate_lc(cfg.g_late, cfg.g_late * NK_B // NK_A, "v3", "v50")
    sexpr("s20", [(S_LOC, "shl", 6)], W_MODF + 2*4096)
    a(f"s_add_u32 s21, s20, {3*4096}")
    a("v_bfe_u32 v16, v0, 3, 1")
    a("v_and_b32 v17, 7, v0")
    a("v_lshlrev_b32 v18, 11, v16")
    a("v_lshl_add_u32 v18, v17, 3, v18")
    a("v_and_b32 v19, 15, v0")
    a("v_lshlrev_b32 v19, 3, v19")
    a("s_mov_b64 exec, 0xffff")
    poll([f"buffer_load_dwordx2 v[40:41], v18, {WSRD}, s20 offen sc1",
          f"buffer_load_dwordx2 v[42:43], v18, {WSRD}, s21 offen sc1"], ["v41", "v43"], "v60", sleep=8)
    a("v_lshlrev_b32 v44, 16, v40")
    a("v_and_b32 v45, 0xffff0000, v40")
    a("v_lshlrev_b32 v46, 16, v42")
    a("v_and_b32 v47, 0xffff0000, v42")
    a(f"ds_write_b64 v19, v[44:45] offset:{L_GA}")
    a(f"ds_write_b64 v19, v[46:47] offset:{L_GB}")
    a("s_mov_b64 exec, -1")
    arrive(F_GA, "v3", "v10")
    r1_block("a", "v3")
    a("s_barrier")
    if cfg.bearly:
        a(f"s_cmp_lg_u32 {S_B}, 0")
        a("s_cbranch_scc1 L_aux_lateE")
    if cfg.guwo:
        a(f"s_cmp_eq_u32 {S_B}, 0")
        a("s_cbranch_scc1 L_aux_lateE")
    spin_lds(F_PA, 4, "v3", "v50", sleep=False)
    a(f"s_cmp_eq_u32 {S_CB}, 7")
    a("s_cbranch_scc1 L_aux_gu_e")
    a(f"s_mov_b32 m0, {L_G}")
    a("s_mov_b32 s99, 8")
    a.label("L_aux_gu")
    a("buffer_load_dwordx4 v64, s[44:47], s19 offen nt lds")
    a("s_add_u32 m0, m0, 0x2000")
    a("s_nop 0")
    a("buffer_load_dwordx4 v64, s[48:51], s19 offen nt lds")
    a("s_sub_u32 m0, m0, 0x1c00")
    a(f"s_add_u32 s19, s19, {16*3584}")
    a("s_sub_u32 s99, s99, 1")
    a("s_cmp_lg_u32 s99, 0")
    a("s_cbranch_scc1 L_aux_gu")
    a.label("L_aux_gu_e")
    a("s_waitcnt vmcnt(0)")
    arrive(F_LATE, "v3", "v10")
    if not cfg.dnwo:
        spin_lds(F_PX, 1, "v3", "v50", sleep=False)
        a(f"s_mov_b32 m0, {L_DN}")
        a("s_nop 0")
        for i in range(8):
            a(f"buffer_load_dwordx4 v{66 + (i&1)}, s[52:55], s18 offen nt lds")
            a("s_add_u32 m0, m0, 0x400")
            a("s_add_u32 s18, s18, 0x2000")
        a("s_waitcnt vmcnt(0)")
        arrive(F_DN, "v3", "v10")
    a.label("L_aux_lateE")
    stamp(3)
    a("s_barrier")
    a("s_barrier")
    dump_stamps(4)
    a("s_endpgm")

    a.label("L_abort")
    a("s_mov_b64 exec, 1")
    a("v_mov_b32 v1, 0")
    a(f"s_lshl_b32 s90, {S_WG}, 16")
    a("s_or_b32 s90, s90, s1") if cfg.site else None
    a("v_mov_b32 v2, s90")
    a(f"s_and_b32 s90, {S_W}, 1")
    a("s_lshl_b32 s90, s90, 2")
    a("v_mov_b32 v1, s90")
    a("v_or_b32 v2, 0xde000000, v2")
    a("s_mov_b32 s44, s40")
    a("s_and_b32 s45, s41, 0xffff")
    a("s_mov_b32 s46, 256")
    a("s_mov_b32 s47, 0x20000")
    a("buffer_store_dword v2, v1, s[44:47], 0 offen")
    a.label("L_end")
    a("s_endpgm")

    hdr = open(f"cdna_kernels/{NAME}.s.ref").read().split("; Override launch")[0]
    out = hdr
    out += f"; @launch grid=(256,1,1) block=(576,1,1) lds={L_TOTAL}\n"
    out += '.amdgcn_target "amdgcn-amd-amdhsa--gfx950"\n.text\n'
    out += f".globl {NAME}_kernel\n.p2align 8\n.type {NAME}_kernel,@function\n"
    out += a.text()
    out += f""".section .rodata,"a"
.p2align 6
.amdhsa_kernel {NAME}_kernel
  .amdhsa_next_free_vgpr 128
  .amdhsa_next_free_sgpr 102
  .amdhsa_accum_offset 128
  .amdhsa_group_segment_fixed_size 0
  .amdhsa_kernarg_size 112
  .amdhsa_user_sgpr_count 2
  .amdhsa_user_sgpr_kernarg_segment_ptr 1
  .amdhsa_system_sgpr_workgroup_id_x 1
.end_amdhsa_kernel
"""
    return out

if __name__ == "__main__":
    cfg = Cfg()
    outp = sys.argv[1]
    for arg in sys.argv[2:]:
        k, v = arg.split("=")
        assert hasattr(cfg, k), k
        setattr(cfg, k, int(v))
    open(outp, "w").write(gen(cfg))
    print("wrote", outp)
```
